```python
import torch

def _softmax(x, axis=-1):
    return torch.softmax(x, dim=axis)
def _gelu(x):
    return torch.nn.functional.gelu(x, approximate="tanh")
def _silu(x):
    return torch.nn.functional.silu(x)
def _sigmoid(x):
    return torch.sigmoid(x)
def _layernorm(x, axis=-1, eps=1e-5):
    m = x.mean(dim=axis, keepdim=True)
    v = x.var(dim=axis, keepdim=True, unbiased=False)
    return (x - m) / torch.sqrt(v + eps)
def _scatter_add(tgt, idx, src, axis=0):
    return tgt.clone().index_add_(axis, idx, src)
def _segment_sum(src, seg, n):
    out = torch.zeros((n,) + src.shape[1:], dtype=src.dtype)
    return out.index_add_(0, seg, src)
def _pad(x, pw):
    flat = tuple(v for pair in reversed(pw) for v in pair)
    return torch.nn.functional.pad(x, flat)

kernel_name = 'interleave_layers__linear_attn_block__linear_kernel_hedgehog__prompt'

def setup_inputs():

    _w = (lambda a: (lambda t: t.to(torch.bfloat16) if t.is_floating_point() else t)(torch.as_tensor(a)))
    def _A_setup():
        B, S, D = 1, 2048, 512
        return {
            "x": _w((lambda *s: torch.randn(*s, dtype=torch.bfloat16) * 0.1)(B, S, D)),
            "wqkv": _w((lambda *s: torch.randn(*s, dtype=torch.bfloat16) * 0.2)(D, 3 * D)),
            "wo": _w((lambda *s: torch.randn(*s, dtype=torch.bfloat16) * 0.2)(D, D)),
        }
    _A_in = _A_setup()

    def _B_setup():
        B, S, D, H = 1, 2048, 512, 32
        Dh = D // H
        return {
            "x": _w((lambda *s: torch.randn(*s, dtype=torch.bfloat16) * 0.1)(B, S, D)),
            "wqkv": _w((lambda *s: torch.randn(*s, dtype=torch.bfloat16) * 0.8)(D, 3 * D)),
            "w_phi": _w((lambda *s: torch.randn(*s, dtype=torch.bfloat16) * 0.8)(H, Dh, Dh) * (Dh ** -0.5)),
            "wo": _w((lambda *s: torch.randn(*s, dtype=torch.bfloat16) * 0.1)(D, D)),
        }
    _B_in = _B_setup()

    return {
        "A_x": _A_in["x"],
        "A_wqkv": _A_in["wqkv"],
        "A_wo": _A_in["wo"],
        "B_x": _B_in["x"],
        "B_wqkv": _B_in["wqkv"],
        "B_w_phi": _B_in["w_phi"],
        "B_wo": _B_in["wo"],
    }

def reference(A_x, A_wqkv, A_wo, B_x, B_wqkv, B_w_phi, B_wo):
    def _A_ref(x, wqkv, wo):
        B, S, D = x.shape
        H = 32; Dh = D // H
        qkv = (lambda x, *d: x.permute(*d))((x @ wqkv).reshape(B, S, 3, H, Dh), 2, 0, 3, 1, 4)
        q, k, v = qkv[0], qkv[1], qkv[2]
        phi = lambda t: torch.where(t > 0, t + 1, torch.exp(t)) + 1e-6
        pq, pk = phi(q), phi(k)
        kv = torch.einsum("bhsd,bhse->bhde", pk, v)
        z = torch.einsum("bhsd->bhd", pk)
        num = torch.einsum("bhqd,bhde->bhqe", pq, kv)
        den = torch.einsum("bhqd,bhd->bhq", pq, z)[..., None] + 1e-6
        o = num / den
        return (lambda x, *d: x.permute(*d))(o, 0, 2, 1, 3).reshape(B, S, D) @ wo

    def _B_ref(x, wqkv, w_phi, wo):
        B, S, D = x.shape
        H = 32; Dh = D // H
        qkv = (lambda x, *d: x.permute(*d))((x @ wqkv).reshape(B, S, 3, H, Dh), 2, 0, 3, 1, 4)
        q, k, v = qkv[0], qkv[1], qkv[2]
        pq = torch.einsum("bhsd,hdf->bhsf", q, w_phi)
        pk = torch.einsum("bhsd,hdf->bhsf", k, w_phi)
        phi_q = torch.concatenate([_softmax(pq, axis=-1), _softmax(-pq, axis=-1)], axis=-1)
        phi_k = torch.concatenate([_softmax(pk, axis=-1), _softmax(-pk, axis=-1)], axis=-1)
        kv = torch.einsum("bhsf,bhsd->bhfd", phi_k, v)
        z  = torch.einsum("bhsf->bhf", phi_k)
        num = torch.einsum("bhqf,bhfd->bhqd", phi_q, kv)
        den = torch.einsum("bhqf,bhf->bhq", phi_q, z)[..., None] + 1e-6
        o = num / den
        return (lambda x, *d: x.permute(*d))(o, 0, 2, 1, 3).reshape(B, S, D) @ wo

    x = A_x
    x = x + _A_ref(_layernorm(x, axis=-1), A_wqkv, A_wo)
    x = x + _B_ref(_layernorm(x, axis=-1), B_wqkv, B_w_phi, B_wo)
    x = x + _A_ref(_layernorm(x, axis=-1), A_wqkv, A_wo)
    x = x + _B_ref(_layernorm(x, axis=-1), B_wqkv, B_w_phi, B_wo)
    return x
```

```python
import re

def R(kind, lo, n=1):
    return f"{kind}{lo}" if n == 1 else f"{kind}[{lo}:{lo+n-1}]"
def v(lo, n=1): return R('v', lo, n)
def a(lo, n=1): return R('a', lo, n)
def s(lo, n=1): return R('s', lo, n)

_reg_re = re.compile(r'(?<![\w.])(-|\|)?([vas])(?:(\d+)\b|\[(\d+):(\d+)\])')
def regs_of(op):
    out = set()
    op = op.strip()
    if op in ('vcc', 'vcc_lo', 'vcc_hi'): return {('s', 'vcc')}
    if op in ('exec', 'exec_lo', 'exec_hi'): return {('s', 'exec')}
    if op == 'm0': return {('s', 'm0')}
    for m in _reg_re.finditer(op):
        k = m.group(2)
        if m.group(3) is not None: out.add((k, int(m.group(3))))
        else:
            for i in range(int(m.group(4)), int(m.group(5)) + 1): out.add((k, i))
    return out

TRANS = ('v_exp_f32', 'v_log_f32', 'v_rcp_f32', 'v_rsq_f32', 'v_sqrt_f32', 'v_sin_f32', 'v_cos_f32', 'v_rcp_iflag')
def split_ops(rest):
    ops, depth, cur = [], 0, ''
    for ch in rest:
        if ch == '[': depth += 1
        if ch == ']': depth -= 1
        if ch == ',' and depth == 0:
            ops.append(cur.strip()); cur = ''
        else: cur += ch
    if cur.strip(): ops.append(cur.strip())
    return ops

class Ins:
    def __init__(self, text):
        self.text = text
        t = text.split(';')[0].strip()
        self.label = t.endswith(':')
        self.directive = t.startswith('.') and not self.label
        self.empty = (t == '')
        self.mn = ''
        self.w = set(); self.r = set(); self.srcC = set(); self.srcAB = set(); self.stdata = set()
        if self.label or self.directive or self.empty: return
        parts = t.split(None, 1)
        mn = self.mn = parts[0]
        rest = parts[1] if len(parts) > 1 else ''
        ops = split_ops(rest)
        clean = []
        for o in ops:
            clean.append(o.split(' ')[0] if not o.startswith('hwreg') else o)
        self.mods = rest
        self.mfma = mn.startswith('v_mfma')
        self.valu = mn.startswith('v_') and not self.mfma
        self.salu = mn.startswith('s_')
        self.trans = mn.startswith(TRANS)
        self.dot = mn.startswith('v_dot')
        self.vmem = mn.startswith(('buffer_', 'global_'))
        self.ds = mn.startswith('ds_')
        self.dpp = ('_dpp' in mn) or ('row_' in rest) or ('quad_perm' in rest)
        self.perml = mn.startswith('v_permlane')
        self.rdlane = mn.startswith(('v_readlane', 'v_readfirstlane'))
        self.ldsdma = self.vmem and (re.search(r'\blds\b', rest) is not None or 'load_lds' in mn)
        rs = [regs_of(o) for o in clean]
        if self.mfma:
            self.w = rs[0]; self.srcAB = rs[1] | rs[2]; self.srcC = rs[3]; self.r = self.srcAB | self.srcC
            self.passes = 8 if '32x32' in mn else 4
            if mn in ('v_mfma_f32_16x16x4_f32', 'v_mfma_f32_32x32x2_f32'): raise Exception('sgemm not modelled')
        elif self.valu:
            if self.perml:
                self.w = rs[0] | rs[1]; self.r = rs[0] | rs[1]
            else:
                self.w = set(rs[0])
                for x in rs[1:]: self.r |= x
                if mn.startswith(('v_fmac', 'v_dot2c', 'v_writelane', 'v_pk_fmac')): self.r |= rs[0]
                if mn.startswith(('v_add_co', 'v_addc_co', 'v_sub_co')):
                    self.w |= rs[1]
                if self.dot and len(rs) == 4: self.srcC = rs[3]
        elif self.vmem:
            if 'store' in mn or ('atomic' in mn):
                for x in rs: self.r |= x
                if mn.startswith('buffer_'): self.stdata = rs[0]
                else: self.stdata = rs[1]
                if 'atomic' in mn and 'sc0' in rest: self.w = rs[0]
                if not ('x3' in mn or 'x4' in mn): self.stdata = set()
            elif self.ldsdma:
                for x in rs: self.r |= x
                self.r.add(('s', 'm0'))
            elif mn in ('buffer_inv', 'buffer_wbl2'):
                pass
            else:
                self.w = rs[0]
                for x in rs[1:]: self.r |= x
        elif self.ds:
            if 'read' in mn or 'permute' in mn or 'swizzle' in mn:
                self.w = rs[0]
                for x in rs[1:]: self.r |= x
            else:
                for x in rs: self.r |= x
        elif self.salu:
            if mn.startswith(('s_cmp', 's_cbranch', 's_branch', 's_waitcnt', 's_barrier', 's_nop', 's_endpgm', 's_sleep', 's_setprio', 's_bitcmp')):
                for x in rs: self.r |= x
            else:
                if rs: self.w = rs[0]
                for x in rs[1:]: self.r |= x
    def states(self):
        if self.label or self.directive or self.empty: return 0
        if self.mn == 's_nop': return int(self.mods.strip(), 0) + 1
        return 1

def need(p, c):
    n = 0
    vec = lambda S: {x for x in S if x[0] in 'va'}
    sca = lambda S: {x for x in S if x[0] == 's'}
    if p.valu:
        pw = vec(p.w); ps = sca(p.w)
        if c.mfma and (pw & c.r): n = max(n, 3 if p.dot else 2)
        if p.trans and (c.valu and not c.trans or c.vmem or c.ds) and (pw & c.r): n = max(n, 1)
        if c.valu and (c.perml or c.dpp) and (pw & c.r): n = max(n, 2)
        if c.valu and c.rdlane and (pw & c.r): n = max(n, 1)
        if p.dot and (c.valu or c.vmem or c.ds):
            if pw & (c.r | c.w):
                if c.valu and c.dot and c.mn == p.mn and not (pw & (c.r - c.srcC)) : pass
                else: n = max(n, 3)
        if ps:
            if c.valu and (ps & c.r): n = max(n, 4 if c.mn.startswith(('v_readlane', 'v_writelane')) else 2)
            if c.valu and c.mn.startswith('v_cndmask') and ('s', 'vcc') in ps: n = max(n, 2)
            if c.vmem and (ps & c.r): n = max(n, 5)
            if c.salu and (ps & c.r): n = max(n, 1)
    if p.mfma:
        big = {4: 8, 8: 12}[p.passes]
        if c.mfma:
            if p.w & c.srcAB: n = max(n, big)
            if p.w & c.srcC:
                if not (p.w == c.srcC and p.passes == c.passes): n = max(n, big - 2)
            elif p.w & c.w:
                n = max(n, big - 2)
        elif c.valu or c.vmem or c.ds:
            if p.w & (c.r | c.w): n = max(n, big)
            if c.valu and (p.srcC & c.w): n = max(n, {4: 3, 8: 7}[p.passes])
    if p.vmem and p.stdata:
        if (c.valu or c.mfma) and (p.stdata & c.w): n = max(n, 2)
        elif (c.vmem or c.ds) and (p.stdata & c.w): n = max(n, 1)
    if p.salu and ('s', 'm0') in p.w and c.vmem and c.ldsdma: n = max(n, 1)
    return n

class Asm:
    def __init__(self):
        self.ins = []
        self.vm = 0
        self.lg = 0
        self.vm_done = 0
        self.lg_done = 0
    def __call__(self, text):
        tag = None
        for line in text.split('\n'):
            if not line.strip(): continue
            i = Ins(line.strip())
            self.ins.append(i)
            if i.mn:
                if i.vmem: self.vm += 1; tag = self.vm
                if i.ds: self.lg += 1; tag = self.lg
        return tag
    def wait(self, vm=None, lg=None):
        parts = []
        if vm is not None and vm > self.vm_done:
            n = self.vm - vm
            if n <= 63:
                parts.append(f'vmcnt({n})'); self.vm_done = vm
            else: raise Exception('vmcnt overflow')
        if lg is not None and lg > self.lg_done:
            n = min(self.lg - lg, 15)
            parts.append(f'lgkmcnt({n})'); self.lg_done = self.lg - n
        if parts: self('s_waitcnt ' + ' '.join(parts))
    def wait_all_vm(self):
        self('s_waitcnt vmcnt(0)'); self.vm_done = self.vm
    def wait_all_lg(self):
        self('s_waitcnt lgkmcnt(0)'); self.lg_done = self.lg
    def finish(self):
        out = []
        hist = []
        nnop = 0
        for c in self.ins:
            if c.label or c.directive or c.empty:
                out.append(c); continue
            req = 0; dist = 0
            for p in reversed(hist):
                n = need(p, c)
                if n > dist: req = max(req, n - dist)
                dist += p.states()
                if dist >= 20: break
            while req > 0:
                k = min(req, 16)
                nop = Ins(f's_nop {k-1}')
                out.append(nop); hist.append(nop); req -= k; nnop += 1
            out.append(c); hist.append(c)
            if c.mn in ('s_branch', 's_endpgm'): hist = []
        lines = []
        for i in out:
            lines.append(i.text if i.label else '    ' + i.text)
        return '\n'.join(lines) + '\n'
```

```python
import sys, argparse
sys.path.insert(0, 'gen')
from asmlib import *

NAME = 'interleave_layers__linear_attn_block__linear_kernel_hedgehog__prompt'

FLG_O, FLG_X = 0x0000, 0x2000
ZP = 0x10000
STAMP = 0x60000
KVP = 0x100000
EXB, EXSTRIDE = 0x400000, 0x500000
OB, XB, ST = EXB, EXB + 0x200000, EXB + 0x400000
DUMP = 0x2400000
WS_BYTES = 0x4000000
OOB = 0x7F000000
SLOT = 32768
SCR = 4 * SLOT
PL = 2176
L_PK = SCR
L_EX = SCR
L_KV = SCR + 12 * PL
L_CS = L_KV + 2176
L_WP = L_CS + 3072
assert L_WP + 1024 <= 163840

sX, sWA, sWOA, sWB, sWP, sWOB, sOUT, sDBG, sWS, sCODE = 4, 8, 12, 16, 20, 24, 28, 32, 36, 40
_sn = [44]
def salloc(n=1, al=1):
    while _sn[0] % al: _sn[0] += 1
    r = _sn[0]; _sn[0] += n
    assert _sn[0] <= 100
    return r
sW, sR, sG, sRB, sRBO, sJ, sMODE, sBUD, sSTR = [salloc() for _ in range(9)]
sWg0, sWg1, sWl0, sWl1, sWOg, sWOl = [salloc() for _ in range(6)]
sXrd, sXwr, sSTrd, sSTwr, sOrd, sOwr, sFOrd, sFOwr, sFXrd, sFXwr = [salloc() for _ in range(10)]
sKVrdA, sKVrdB, sKVwrB, sZrdA, sZrdB, sZwrB, sSKIP = [salloc() for _ in range(7)]
sXO, sONES, sPERM, sHI, sXCC, sSTAMP = [salloc() for _ in range(6)]
sL2E = salloc(2, 2); sEPS6 = salloc(2, 2)
sT = [salloc() for _ in range(6)]
sTS = salloc(2, 2)

_vn = [1]
def valloc(n=1, al=1):
    while _vn[0] % al: _vn[0] += 1
    r = _vn[0]; _vn[0] += n
    return r
vLane = valloc()
vL16 = valloc(); vL4 = valloc()
vRES = valloc(8, 4)
vWPH = valloc(8, 4)
vSEL = valloc(4, 4)
vCS = valloc(12, 2)
vMF = valloc(2, 2)
vRS = valloc(2, 2)
vXq = valloc(4); vWtr = valloc(4)
vWdma, vWOdma, vPKwA, vPKwB, vPKrA, vPKrB, vKVw, vZw, vKVrA, vKVrB, vEXw, vE1st, vZst, vSTst, vFl16, vXO = [valloc() for _ in range(16)]
assert _vn[0] <= 64, _vn[0]
vA0, vA1, vWB, vTM = 64, 80, 96, 120
vXF = 128
vSTAMP = 0

class Gen:
    def __init__(self, opt):
        self.o = opt
        self.e = Asm()
        self.tail = []
        self.nstamp = 0
        self.stamp_names = []
        self.wtr_slot = 0
        self.ndump = 0

    def stamp(self, name):
        if not self.o.stamps: return
        e = self.e
        e(f's_memtime {s(sTS,2)}')
        e.wait_all_lg()
        e(f'v_writelane_b32 {v(vSTAMP)}, {s(sTS)}, {self.nstamp}')
        self.nstamp += 1; self.stamp_names.append(name)
    def dump(self, name, regs):
        if name not in self.o.dump: return
        e = self.e
        for r in regs:
            e(f's_lshl_b32 {s(sT[5])}, s2, 2\ns_add_u32 {s(sT[5])}, {s(sT[5])}, {s(sW)}\ns_lshl_b32 {s(sT[5])}, {s(sT[5])}, 14\ns_add_u32 {s(sT[5])}, {s(sT[5])}, {DUMP + self.ndump*256}')
            e(f'buffer_store_dword {r}, {v(vL4)}, {s(sWS,4)}, {s(sT[5])} offen')
            self.ndump += 1
        assert self.ndump <= 64
        e.wait_all_vm()
    def set_wtr(self, slot):
        d = (slot - self.wtr_slot) * SLOT
        if d:
            for q in range(4):
                self.e(f'v_add_u32 {v(vWtr+q)}, {d & 0xffffffff}, {v(vWtr+q)}')
        self.wtr_slot = slot
    def dma_w(self, typ, part, slot, n):
        g, l = (sWg0, sWl0) if n < 4 else (sWg1, sWl1)
        srd = sWA if typ == 0 else sWB
        self.e(f's_add_u32 {s(sT[4])}, {s(g)}, {(n&3)*4*49152 + part*1024}')
        self.e(f's_add_u32 m0, {s(l)}, {slot*SLOT + (n&3)*4096}')
        return self.e(f'buffer_load_dwordx4 {v(vWdma)}, {s(srd,4)}, {s(sT[4])} offen lds')
    def dma_wo(self, typ, half, slot, n):
        srd = sWOA if typ == 0 else sWOB
        self.e(f's_add_u32 {s(sT[4])}, {s(sWOg)}, {half*131072 + n*8192}')
        self.e(f's_add_u32 m0, {s(sWOl)}, {slot*SLOT + n*1024}')
        return self.e(f'buffer_load_dwordx4 {v(vWOdma)}, {s(srd,4)}, {s(sT[4])} offen lds')
    def dma_item(self, it, n):
        if it[0] == 'W': return self.dma_w(it[1], it[2], it[3], n)
        return self.dma_wo(it[1], it[2], it[3], n)
    def dma_list(self, items):
        return [(it, n) for it in items for n in range(8)]
    def poll(self, name, sbase, val):
        e = self.e
        e(f'L_{name}:')
        e(f'buffer_load_dword {v(vTM)}, {v(vFl16)}, {s(sWS,4)}, {s(sbase)} offen sc1')
        e(f's_sub_u32 {s(sBUD)}, {s(sBUD)}, 1\ns_cbranch_scc1 L_fail')
        e.wait_all_vm()
        e(f'v_cmp_gt_u32 vcc, {val}, {v(vTM)}\ns_cbranch_vccnz L_{name}')
    def modal(self, name, fn):
        e = self.e
        e(f's_cmp_lg_u32 {s(sMODE)}, 0\ns_cbranch_scc1 L_{name}_safe')
        fn(e, '')
        e(f'L_{name}_join:')
        t = Asm(); t(f'L_{name}_safe:\ns_nop 4'); fn(t, ' sc1'); t(f's_nop 1\ns_branch L_{name}_join')
        self.tail.append(t)

    def x_stats(self):
        e = self.e
        S, Q = vTM, vTM + 1
        for i in range(8):
            e(f'v_dot2_f32_bf16 {v(S)}, {v(vRES+i)}, {s(sONES)}, {v(S) if i else 0}')
        for i in range(8):
            e(f'v_dot2_f32_bf16 {v(Q)}, {v(vRES+i)}, {v(vRES+i)}, {v(Q) if i else 0}')
        e(f'v_permlane32_swap_b32 {v(S)}, {v(Q)}')
        e(f'v_add_f32 {v(S)}, {v(S)}, {v(Q)}')
    def publish_x(self, name, flagval):
        def st1(e, m):
            e(f'buffer_store_dwordx4 {v(vRES,4)}, {v(vL16)}, {s(sWS,4)}, {s(sXwr)} offen{m}')
            e(f'buffer_store_dwordx4 {v(vRES+4,4)}, {v(vL16)}, {s(sWS,4)}, {s(sXwr)} offen offset:1024{m}')
        def st2(e, m):
            e(f'buffer_store_dword {v(vTM)}, {v(vSTst)}, {s(sWS,4)}, {s(sSTwr)} offen{m}')
            e(f'v_mov_b32 {v(vTM+2)}, {flagval}')
            e.wait_all_vm()
            e(f's_mov_b64 exec, 1\nbuffer_store_dword {v(vTM+2)}, off, {s(sWS,4)}, {s(sFXwr)}{m}\ns_mov_b64 exec, -1')
        self.modal(name + 'a', st1)
        self.x_stats()
        self.modal(name + 'b', st2)

    def prologue(self):
        e = self.e
        e('s_cmp_ge_u32 s2, 256\ns_cbranch_scc1 L_fail')
        for srd, off in ((sX, 0), (sWS, 72), (sWA, 8), (sWOA, 16), (sWB, 32), (sWP, 40), (sWOB, 48), (sOUT, 56), (sDBG, 64)):
            e(f's_load_dwordx2 {s(srd,2)}, s[0:1], {off}')
        e(f's_getpc_b64 {s(sCODE,2)}')
        e(f'v_and_b32 {v(vLane)}, 63, v0\nv_lshrrev_b32 {v(vTM)}, 6, v0')
        e(f's_mov_b32 {s(sCODE+2)}, L_code_end-{NAME}_kernel-128\ns_mov_b32 {s(sCODE+3)}, 0x20000')
        e(f'v_readfirstlane_b32 {s(sW)}, {v(vTM)}')
        e(f's_lshr_b32 {s(sT[0])}, s2, 3\ns_lshl_b32 {s(sT[0])}, {s(sT[0])}, 2\ns_add_u32 {s(sT[0])}, {s(sT[0])}, {s(sW)}')
        e(f's_and_b32 {s(sT[0])}, {s(sT[0])}, 7\ns_lshl_b32 {s(sT[0])}, {s(sT[0])}, 13')
        e(f'v_lshlrev_b32 {v(vTM+1)}, 7, {v(vLane)}')
        e(f'buffer_load_dword {v(vTM+7)}, {v(vTM+1)}, {s(sCODE,4)}, {s(sT[0])} offen')
        for srd, sz in ((sX, 0x200000), (sWA, 0x180000), (sWOA, 0x80000), (sWB, 0x180000), (sWP, 0x4000), (sWOB, 0x80000), (sOUT, 0x200000), (sDBG, 256), (sWS, WS_BYTES)):
            e(f's_mov_b32 {s(srd+2)}, {sz}\ns_mov_b32 {s(srd+3)}, 0x20000')
        T = sT
        e(f'''
        s_and_b32 {s(sR)}, s2, 7
        s_lshl_b32 {s(sR)}, {s(sR)}, 1
        s_lshr_b32 {s(T[0])}, s2, 7
        s_add_u32 {s(sR)}, {s(sR)}, {s(T[0])}
        s_lshr_b32 {s(sG)}, s2, 3
        s_and_b32 {s(sG)}, {s(sG)}, 15
        s_lshl_b32 {s(sRB)}, {s(sR)}, 2
        s_lshr_b32 {s(T[0])}, {s(sG)}, 3
        s_lshl_b32 {s(T[0])}, {s(T[0])}, 1
        s_add_u32 {s(sRBO)}, {s(sRB)}, {s(T[0])}
        s_and_b32 {s(T[0])}, {s(sW)}, 1
        s_add_u32 {s(sRBO)}, {s(sRBO)}, {s(T[0])}
        s_add_u32 {s(sRB)}, {s(sRB)}, {s(sW)}
        s_and_b32 {s(sJ)}, {s(sG)}, 7
        s_lshl_b32 {s(sJ)}, {s(sJ)}, 1
        s_lshr_b32 {s(T[1])}, {s(sW)}, 1
        s_add_u32 {s(sJ)}, {s(sJ)}, {s(T[1])}
        s_lshl_b32 {s(sXO)}, {s(sRBO)}, 15
        s_lshl_b32 {s(T[2])}, {s(sJ)}, 6
        s_add_u32 {s(sXO)}, {s(sXO)}, {s(T[2])}
        v_and_b32 {v(vTM)}, 31, {v(vLane)}
        v_lshrrev_b32 {v(vTM+1)}, 5, {v(vLane)}
        v_lshlrev_b32 {v(vXO)}, 10, {v(vTM)}
        v_lshl_add_u32 {v(vXO)}, {v(vTM+1)}, 5, {v(vXO)}
        v_lshlrev_b32 {v(vL16)}, 4, {v(vLane)}
        v_lshlrev_b32 {v(vL4)}, 2, {v(vLane)}
        ''')
        e(f'''
        s_lshl_b32 {s(T[2])}, {s(sG)}, 2
        s_add_u32 {s(T[3])}, {s(T[2])}, {s(sW)}
        s_lshl_b32 {s(sKVrdB)}, {s(T[3])}, 13
        s_add_u32 {s(sKVrdB)}, {s(sKVrdB)}, {KVP}
        s_lshl_b32 {s(sZrdB)}, {s(T[3])}, 10
        s_add_u32 {s(sZrdB)}, {s(sZrdB)}, {ZP}
        s_lshl_b32 {s(T[4])}, {s(sR)}, 9
        s_add_u32 {s(sKVwrB)}, {s(sKVrdB)}, {s(T[4])}
        s_lshl_b32 {s(T[5])}, {s(sR)}, 6
        s_add_u32 {s(sZwrB)}, {s(sZrdB)}, {s(T[5])}
        v_lshlrev_b32 {v(vTM+2)}, 4, {v(vTM)}
        v_lshl_add_u32 {v(vTM+2)}, {v(vTM+1)}, 19, {v(vTM+2)}
        v_and_b32 {v(vFl16)}, 15, {v(vLane)}
        v_lshlrev_b32 {v(vFl16)}, 2, {v(vFl16)}
        v_lshrrev_b32 {v(vTM+4)}, 4, {v(vLane)}
        v_lshl_add_u32 {v(vTM+3)}, {v(vTM+4)}, 16, {v(vFl16)}
        v_mov_b32 {v(vA0)}, -1
        v_mov_b32 {v(vA0+1)}, -1
        v_mov_b32 {v(vA0+2)}, -1
        v_mov_b32 {v(vA0+3)}, -1
        v_mov_b32 {v(vA0+4)}, 0
        v_lshrrev_b32 {v(vWdma)}, 2, {v(vLane)}
        v_mul_u32_u24 {v(vWdma)}, 3072, {v(vWdma)}
        v_and_b32 {v(vTM+5)}, 3, {v(vLane)}
        v_lshl_add_u32 {v(vWdma)}, {v(vTM+5)}, 4, {v(vWdma)}
        ''')
        e(f'''
        s_lshr_b32 {s(sFOwr)}, {s(sG)}, 1
        s_lshl_b32 {s(sFOwr)}, {s(sFOwr)}, 13
        s_lshl_b32 {s(sFOrd)}, {s(sR)}, 9
        s_add_u32 {s(sFOwr)}, {s(sFOwr)}, {s(sFOrd)}
        s_and_b32 {s(sFOrd)}, {s(sG)}, 1
        s_lshl_b32 {s(sFOrd)}, {s(sFOrd)}, 8
        s_add_u32 {s(sFOwr)}, {s(sFOwr)}, {s(sFOrd)}
        ''')
        e(f'''
        s_and_b32 {s(sFOrd)}, {s(sG)}, 1
        s_lshl_b32 {s(sFOrd)}, {s(sFOrd)}, 4
        s_add_u32 {s(sWl0)}, {s(sFOrd)}, {s(sW)}
        s_xor_b32 {s(sWl1)}, {s(sWl0)}, 16
        s_mul_i32 {s(sWg0)}, {s(sWl0)}, 49152
        s_mul_i32 {s(sWg1)}, {s(sWl1)}, 49152
        s_lshl_b32 {s(sFOrd)}, {s(sG)}, 6
        s_add_u32 {s(sWg0)}, {s(sWg0)}, {s(sFOrd)}
        s_add_u32 {s(sWg1)}, {s(sWg1)}, {s(sFOrd)}
        s_lshl_b32 {s(sWl0)}, {s(sWl0)}, 10
        s_lshl_b32 {s(sWl1)}, {s(sWl1)}, 10
        s_and_b32 {s(sMODE)}, {s(sR)}, 1
        s_lshl_b32 {s(sBUD)}, {s(sMODE)}, 10
        s_lshl_b32 {s(sMODE)}, {s(sMODE)}, 15
        s_add_u32 {s(sWg0)}, {s(sWg0)}, {s(sBUD)}
        s_add_u32 {s(sWg1)}, {s(sWg1)}, {s(sBUD)}
        s_add_u32 {s(sWl0)}, {s(sWl0)}, {s(sMODE)}
        s_add_u32 {s(sWl1)}, {s(sWl1)}, {s(sMODE)}
        ''')
        e('s_waitcnt lgkmcnt(0)')
        self.stamp('start')
        e(f's_and_b32 {s(sFOrd)}, {s(T[3])}, 0x33\ns_cbranch_scc1 L_noclr')
        e(f'buffer_store_dword {v(vA0+4)}, {v(vL4)}, {s(sWS,4)}, {s(sFOwr)} offen sc1')
        e('L_noclr:')
        e(f'buffer_load_dwordx4 {v(vRES,4)}, {v(vXO)}, {s(sX,4)}, {s(sXO)} offen')
        tx = e(f'buffer_load_dwordx4 {v(vRES+4,4)}, {v(vXO)}, {s(sX,4)}, {s(sXO)} offen offset:16')
        e(f'''
        buffer_store_dwordx4 {v(vA0,4)}, {v(vTM+2)}, {s(sWS,4)}, {s(sKVwrB)} offen sc1
        s_add_u32 {s(sFOrd)}, {s(sKVwrB)}, 0x100000
        buffer_store_dwordx4 {v(vA0,4)}, {v(vTM+2)}, {s(sWS,4)}, {s(sFOrd)} offen sc1
        buffer_store_dword {v(vA0)}, {v(vTM+3)}, {s(sWS,4)}, {s(sZwrB)} offen sc1
        ''')
        for n in range(8): self.dma_w(0, 1, 0, n)
        e(f'''
        s_lshl_b32 {s(T[4])}, {s(T[1])}, 12
        s_add_u32 {s(sKVrdA)}, {s(sKVrdB)}, {s(T[4])}
        s_lshl_b32 {s(T[4])}, {s(T[1])}, 9
        s_add_u32 {s(sZrdA)}, {s(sZrdB)}, {s(T[4])}
        s_lshr_b32 {s(sSKIP)}, {s(sR)}, 3
        s_xor_b32 {s(sSKIP)}, {s(sSKIP)}, {s(T[1])}
        s_lshl_b32 {s(T[4])}, {s(sRB)}, 15
        s_add_u32 {s(sXrd)}, {s(T[4])}, {XB}
        s_lshl_b32 {s(T[5])}, {s(sG)}, 11
        s_add_u32 {s(sOwr)}, {s(T[4])}, {s(T[5])}
        s_add_u32 {s(sOwr)}, {s(sOwr)}, {OB}
        s_lshl_b32 {s(T[4])}, {s(sRBO)}, 15
        s_lshl_b32 {s(T[5])}, {s(sJ)}, 11
        s_add_u32 {s(sXwr)}, {s(T[4])}, {s(T[5])}
        s_add_u32 {s(sXwr)}, {s(sXwr)}, {XB}
        s_lshl_b32 {s(T[5])}, {s(T[1])}, 14
        s_add_u32 {s(sOrd)}, {s(T[4])}, {s(T[5])}
        s_add_u32 {s(sOrd)}, {s(sOrd)}, {OB}
        s_lshl_b32 {s(sSTrd)}, {s(sRB)}, 12
        s_add_u32 {s(sSTrd)}, {s(sSTrd)}, {ST}
        s_lshl_b32 {s(sSTwr)}, {s(sRBO)}, 12
        s_and_b32 {s(T[4])}, {s(sG)}, 7
        s_lshl_b32 {s(T[5])}, {s(T[4])}, 9
        s_add_u32 {s(sSTwr)}, {s(sSTwr)}, {s(T[5])}
        s_lshl_b32 {s(T[5])}, {s(T[1])}, 3
        s_add_u32 {s(sSTwr)}, {s(sSTwr)}, {s(T[5])}
        s_add_u32 {s(sSTwr)}, {s(sSTwr)}, {ST}
        s_lshl_b32 {s(sWOg)}, {s(T[4])}, 7
        s_lshl_b32 {s(T[5])}, {s(T[1])}, 18
        s_add_u32 {s(sWOg)}, {s(sWOg)}, {s(T[5])}
        s_lshl_b32 {s(T[5])}, {s(T[0])}, 16
        s_add_u32 {s(sWOg)}, {s(sWOg)}, {s(T[5])}
        s_lshl_b32 {s(sWOl)}, {s(sW)}, 13
        s_lshl_b32 {s(sFXrd)}, {s(sRB)}, 7
        s_lshl_b32 {s(T[5])}, {s(sG)}, 2
        s_add_u32 {s(sFOwr)}, {s(sFXrd)}, {s(T[5])}
        s_add_u32 {s(sFXrd)}, {s(sFXrd)}, {FLG_X}
        s_lshl_b32 {s(sFOrd)}, {s(sRBO)}, 7
        s_lshl_b32 {s(T[5])}, {s(sJ)}, 2
        s_add_u32 {s(sFXwr)}, {s(sFOrd)}, {s(T[5])}
        s_add_u32 {s(sFXwr)}, {s(sFXwr)}, {FLG_X}
        s_mov_b32 {s(sONES)}, 0x3f803f80
        s_mov_b32 {s(sPERM)}, 0x07060302
        s_mov_b32 {s(sHI)}, 0xffff0000
        s_mov_b32 {s(sL2E)}, 0x3fb8aa3b
        s_mov_b32 {s(sL2E+1)}, 0x3fb8aa3b
        s_mov_b32 {s(sEPS6)}, 0x358637bd
        s_mov_b32 {s(sEPS6+1)}, 0x358637bd
        s_getreg_b32 {s(sXCC)}, hwreg(HW_REG_XCC_ID, 0, 3)
        s_lshl_b32 {s(sXCC)}, {s(sXCC)}, 2
        ''')
        t0, t1, t2 = vA1, vA1 + 1, vA1 + 2
        e(f'''
        v_lshlrev_b32 {v(vSTst)}, 4, {v(vTM)}
        v_lshl_add_u32 {v(vSTst)}, {v(vTM+1)}, 2, {v(vSTst)}
        v_lshrrev_b32 {v(t0)}, 3, {v(vLane)}
        v_and_b32 {v(t1)}, 1, {v(vTM+4)}
        v_lshlrev_b32 {v(t1)}, 2, {v(t1)}
        v_and_b32 {v(t2)}, 7, {v(vLane)}
        v_xor_b32 {v(t1)}, {v(t1)}, {v(t2)}
        v_lshlrev_b32 {v(t1)}, 4, {v(t1)}
        v_lshl_add_u32 {v(vWOdma)}, {v(t0)}, 10, {v(t1)}
        ''')
        e(f'''
        v_bfe_u32 {v(t0)}, {v(vLane)}, 2, 2
        v_lshl_add_u32 {v(t0)}, {v(vTM+1)}, 4, {v(t0)}
        v_lshlrev_b32 {v(t0)}, 6, {v(t0)}
        v_and_b32 {v(t1)}, 1, {v(vTM+4)}
        v_lshl_add_u32 {v(t0)}, {v(t1)}, 5, {v(t0)}
        v_and_b32 {v(t1)}, 1, {v(vLane)}
        v_lshl_add_u32 {v(t0)}, {v(t1)}, 4, {v(t0)}
        v_bfe_u32 {v(t1)}, {v(vLane)}, 1, 1
        v_lshl_add_u32 {v(t0)}, {v(t1)}, 3, {v(t0)}
        ''')
        for q in range(4):
            e(f'''
            s_xor_b32 {s(T[4])}, {s(sW)}, {q}
            s_lshl_b32 {s(T[5])}, {s(T[4])}, 10
            v_add_u32 {v(vXq+q)}, {s(T[5])}, {v(vL16)}
            s_lshr_b32 {s(T[5])}, {s(T[4])}, 1
            s_lshl_b32 {s(T[5])}, {s(T[5])}, 11
            s_and_b32 {s(T[4])}, {s(T[4])}, 1
            s_lshl_b32 {s(T[4])}, {s(T[4])}, 9
            s_add_u32 {s(T[4])}, {s(T[4])}, {s(T[5])}
            v_add_u32 {v(vWtr+q)}, {s(T[4])}, {v(t0)}
            ''')
        e(f'''
        s_lshl_b32 {s(T[4])}, {s(sW)}, 9
        s_add_u32 {s(T[4])}, {s(T[4])}, {L_PK}
        v_lshl_add_u32 {v(t0)}, {v(vTM)}, 4, {s(T[4])}
        v_mul_u32_u24 {v(t1)}, {PL}, {v(vTM+1)}
        v_add_u32 {v(vPKwA)}, {v(t0)}, {v(t1)}
        v_lshl_add_u32 {v(vPKwB)}, {v(t1)}, 2, {v(t0)}
        v_bfe_u32 {v(t0)}, {v(vLane)}, 1, 1
        v_mul_u32_u24 {v(t0)}, {PL}, {v(t0)}
        v_lshrrev_b32 {v(t1)}, 2, {v(vLane)}
        v_lshl_add_u32 {v(t0)}, {v(t1)}, 4, {v(t0)}
        v_and_b32 {v(t1)}, 1, {v(vLane)}
        v_lshl_add_u32 {v(t0)}, {v(t1)}, 3, {v(t0)}
        s_mul_i32 {s(T[4])}, {s(sW)}, {2*PL}
        s_add_u32 {s(T[4])}, {s(T[4])}, {L_PK}
        v_add_u32 {v(vPKrB)}, {s(T[4])}, {v(t0)}
        s_mul_i32 {s(T[4])}, {s(T[0])}, {2*PL}
        s_add_u32 {s(T[4])}, {s(T[4])}, {L_PK}
        v_add_u32 {v(vPKrA)}, {s(T[4])}, {v(t0)}
        ''')
        e(f'''
        s_mul_i32 {s(T[4])}, {s(sW)}, 544
        s_add_u32 {s(T[4])}, {s(T[4])}, {L_KV}
        v_lshl_add_u32 {v(t0)}, {v(vFl16)}, 3, {s(T[4])}
        v_lshl_add_u32 {v(vKVw)}, {v(vTM+4)}, 3, {v(t0)}
        v_lshrrev_b32 {v(t0)}, 1, {v(vFl16)}
        v_add_u32 {v(vZw)}, {s(T[4])}, {v(t0)}
        v_bfe_u32 {v(t0)}, {v(vLane)}, 2, 1
        v_lshl_add_u32 {v(t0)}, {v(t0)}, 3, {v(vTM+5)}
        v_bfe_u32 {v(t1)}, {v(vLane)}, 3, 1
        v_lshl_add_u32 {v(t0)}, {v(t1)}, 2, {v(t0)}
        v_cmp_gt_u32 vcc, 16, {v(vTM)}
        v_cndmask_b32 {v(t0)}, 16, {v(t0)}, vcc
        v_lshlrev_b32 {v(t0)}, 5, {v(t0)}
        v_add_u32 {v(t0)}, {L_KV}, {v(t0)}
        v_lshl_add_u32 {v(vKVrA)}, {v(vTM+1)}, 4, {v(t0)}
        v_mul_u32_u24 {v(t1)}, 1088, {v(vTM+1)}
        v_add_u32 {v(vKVrB)}, {v(t0)}, {v(t1)}
        v_lshlrev_b32 {v(t0)}, 2, {v(vFl16)}
        v_lshl_add_u32 {v(t0)}, {v(vTM+1)}, 8, {v(t0)}
        v_and_b32 {v(t1)}, 1, {v(vTM+4)}
        v_lshl_add_u32 {v(vE1st)}, {v(t1)}, 3, {v(t0)}
        v_lshl_add_u32 {v(vZst)}, {v(vTM+4)}, 26, {v(vFl16)}
        s_lshl_b32 {s(T[4])}, {s(sW)}, 12
        s_add_u32 {s(T[4])}, {s(T[4])}, {L_EX}
        v_add_u32 {v(vEXw)}, {s(T[4])}, {v(vL16)}
        ''')
        e(f'''
        v_and_b32 {v(t0)}, 1, {v(vLane)}
        v_lshlrev_b32 {v(t0)}, 4, {v(t0)}
        v_mov_b32 {v(t1)}, 0x3f80
        v_lshlrev_b32 {v(t0)}, {v(t0)}, {v(t1)}
        v_lshrrev_b32 {v(t1)}, 1, {v(vLane)}
        v_xor_b32 {v(t1)}, {v(t1)}, {v(vLane)}
        v_and_b32 {v(t1)}, 8, {v(t1)}
        v_bfe_u32 {v(t2)}, {v(vLane)}, 1, 2
        v_or_b32 {v(t1)}, {v(t1)}, {v(t2)}
        ''')
        for d in range(4):
            e(f'v_cmp_eq_u32 vcc, {d}, {v(t1)}\nv_cndmask_b32 {v(vSEL+d)}, 0, {v(t0)}, vcc')
        e.wait(vm=tx)
        self.stamp('xblk')
        e(f'buffer_store_dwordx4 {v(vRES,4)}, {v(vL16)}, {s(sWS,4)}, {s(sXwr)} offen')
        e(f'buffer_store_dwordx4 {v(vRES+4,4)}, {v(vL16)}, {s(sWS,4)}, {s(sXwr)} offen offset:1024')
        self.x_stats()
        e(f'buffer_store_dword {v(vTM)}, {v(vSTst)}, {s(sWS,4)}, {s(sSTwr)} offen')
        e(f'''
        s_lshl_b32 {s(T[4])}, 1, {s(sXCC)}
        v_mov_b32 {v(vTM+2)}, {s(T[4])}
        s_lshr_b32 {s(T[5])}, {s(sG)}, 3
        s_lshl_b32 {s(T[4])}, {s(sR)}, 1
        s_add_u32 {s(T[5])}, {s(T[5])}, {s(T[4])}
        s_lshl_b32 {s(T[5])}, {s(T[5])}, 2
        s_lshl_b32 {s(T[3])}, {s(sR)}, 3
        v_and_b32 {v(vTM+3)}, 4, {v(vL4)}
        ''')
        e(f'''
        s_lshl_b32 {s(sBUD)}, {s(sBUD)}, 1
        s_lshl_b32 {s(sMODE)}, {s(sMODE)}, 1
        s_sub_u32 {s(sWg0)}, {s(sWg0)}, {s(sBUD)}
        s_sub_u32 {s(sWg1)}, {s(sWg1)}, {s(sBUD)}
        s_sub_u32 {s(sWl0)}, {s(sWl0)}, {s(sMODE)}
        s_sub_u32 {s(sWl1)}, {s(sWl1)}, {s(sMODE)}
        ''')
        e.wait_all_vm()
        e('s_barrier')
        e(f's_cmp_lg_u32 {s(sW)}, 0\ns_cbranch_scc1 L_noat')
        e(f's_mov_b64 exec, 1\nbuffer_atomic_add {v(vTM+2)}, off, {s(sDBG,4)}, {s(T[5])}\ns_mov_b64 exec, -1')
        e('L_noat:')
        self.stamp('atomic')
        for n in range(8): self.dma_w(0, 2, 1, n)
        e(f'''
        s_lshr_b32 {s(sBUD)}, {s(sBUD)}, 1
        s_lshr_b32 {s(sMODE)}, {s(sMODE)}, 1
        s_add_u32 {s(sWg0)}, {s(sWg0)}, {s(sBUD)}
        s_add_u32 {s(sWg1)}, {s(sWg1)}, {s(sBUD)}
        s_add_u32 {s(sWl0)}, {s(sWl0)}, {s(sMODE)}
        s_add_u32 {s(sWl1)}, {s(sWl1)}, {s(sMODE)}
        s_mov_b32 {s(sBUD)}, 400000
        s_mov_b32 {s(T[2])}, 0x11111111
        s_lshl_b32 {s(T[1])}, 8, {s(sXCC)}
        ''')
        e(f's_lshl_b32 {s(T[4])}, {s(sG)}, 10\ns_mov_b32 m0, {L_WP}')
        e(f'buffer_load_dwordx4 {v(vL16)}, {s(sWP,4)}, {s(T[4])} offen lds')
        e('L_grp:')
        e(f'buffer_load_dword {v(vTM)}, {v(vTM+3)}, {s(sDBG,4)}, {s(T[3])} offen sc1')
        e(f's_sub_u32 {s(sBUD)}, {s(sBUD)}, 1\ns_cbranch_scc1 L_fail')
        e.wait_all_vm()
        e(f'v_dot8_u32_u4 {v(vTM+1)}, {v(vTM)}, {s(T[2])}, 0')
        e(f'v_cmp_ne_u32 vcc, 8, {v(vTM+1)}\ns_cbranch_vccnz L_grp')
        e(f'v_cmp_ne_u32 vcc, {s(T[1])}, {v(vTM)}')
        e(f's_mov_b32 {s(sMODE)}, 0\ns_mov_b32 {s(sSTR)}, 0')
        if self.o.force_safe:
            e('s_branch L_init_safe')
        else:
            e('s_cbranch_vccnz L_init_safe')
        e('L_init_join:')
        e('s_barrier')
        save = self.e
        t = self.e = Asm()
        t(f'L_init_safe:\ns_mov_b32 {s(sMODE)}, 1\ns_mov_b32 {s(sSTR)}, {EXSTRIDE}')
        for r in (sXrd, sXwr, sSTrd, sSTwr, sOrd, sOwr): t(f's_add_u32 {s(r)}, {s(r)}, {s(sSTR)}')
        self.x_stats()
        t(f'buffer_store_dwordx4 {v(vRES,4)}, {v(vL16)}, {s(sWS,4)}, {s(sXwr)} offen sc1')
        t(f'buffer_store_dwordx4 {v(vRES+4,4)}, {v(vL16)}, {s(sWS,4)}, {s(sXwr)} offen offset:1024 sc1')
        t(f'buffer_store_dword {v(vTM)}, {v(vSTst)}, {s(sWS,4)}, {s(sSTwr)} offen sc1')
        t(f'v_mov_b32 {v(vTM+2)}, 1')
        t.wait_all_vm()
        t(f's_mov_b64 exec, 1\nbuffer_store_dword {v(vTM+2)}, off, {s(sWS,4)}, {s(sFXwr)} sc1\ns_mov_b64 exec, -1')
        self.poll('pollx_init', sFXrd, 1)
        t('s_branch L_init_join')
        self.tail.append(t)
        self.e = save
        self.stamp('grp')

    def cs_write(self, acc, blk):
        e = self.e
        t = vTM + 6
        e(f'v_and_b32 {v(t)}, 31, {v(vLane)}\nv_lshlrev_b32 {v(t)}, 5, {v(t)}\nv_lshrrev_b32 {v(t+1)}, 5, {v(vLane)}')
        e(f'v_lshl_add_u32 {v(t+1)}, {v(t+1)}, 2, {v(t)}\ns_lshl_b32 {s(sT[3])}, {s(sW)}, 3\ns_add_u32 {s(sT[3])}, {s(sT[3])}, {L_CS}')
        e(f'v_add_u32 {v(t+1)}, {s(sT[3])}, {v(t+1)}\nv_add_u32 {v(t)}, {L_CS}, {v(t)}')
        tag = None
        for ac, b in zip(acc, blk):
            tag = e(f'ds_write_b32 {v(t+1)}, {v(ac)} offset:{b*1024}')
        return tag
    def cs_read(self, blk, dst):
        e = self.e
        e(f'ds_read_b128 {v(dst,4)}, {v(vTM+6)} offset:{blk*1024}')
        return e(f'ds_read_b128 {v(dst+4,4)}, {v(vTM+6)} offset:{blk*1024+16}')
    def cs_pack(self, src, out):
        e = self.e
        e(f'''
        v_pk_add_f32 {v(src,2)}, {v(src,2)}, {v(src+2,2)}
        v_pk_add_f32 {v(src+4,2)}, {v(src+4,2)}, {v(src+6,2)}
        v_pk_add_f32 {v(src,2)}, {v(src,2)}, {v(src+4,2)}
        v_add_f32 {v(src)}, {v(src)}, {v(src+1)}
        v_and_b32 {v(src+1)}, {s(sHI)}, {v(src)}
        v_sub_f32 {v(src+1)}, {v(src)}, {v(src+1)}
        v_perm_b32 {v(out)}, {v(src+1)}, {v(src)}, {s(sPERM)}
        v_and_b32 {v(src+2)}, {s(sHI)}, {v(src+1)}
        v_sub_f32 {v(src+2)}, {v(src+1)}, {v(src+2)}
        v_lshrrev_b32 {v(out+1)}, 16, {v(src+2)}
        ''')

    def stats_ops(self):
        b = vXF + 112
        ops = []
        for i in range(4): ops.append(f'v_pk_add_f32 {v(b+4*i,2)}, {v(b+4*i,2)}, {v(b+4*i+2,2)}')
        ops += [f'v_pk_add_f32 {v(b,2)}, {v(b,2)}, {v(b+4,2)}', f'v_pk_add_f32 {v(b+8,2)}, {v(b+8,2)}, {v(b+12,2)}',
                f'v_pk_add_f32 {v(b,2)}, {v(b,2)}, {v(b+8,2)}',
                f'v_mov_b32 {v(b+2)}, {v(b)}', f'v_mov_b32 {v(b+3)}, {v(b+1)}',
                f'v_permlane32_swap_b32 {v(b)}, {v(b+2)}', f'v_permlane32_swap_b32 {v(b+1)}, {v(b+3)}',
                f'v_pk_add_f32 {v(b,2)}, {v(b,2)}, {v(b+2,2)}',
                f'v_mul_f32 {v(b)}, 0xbb000000, {v(b)}',
                f'v_mul_f32 {v(b+1)}, 0x3b000000, {v(b+1)}',
                f'v_fma_f32 {v(b+1)}, -{v(b)}, {v(b)}, {v(b+1)}',
                f'v_max_f32 {v(b+1)}, 0, {v(b+1)}',
                f'v_add_f32 {v(b+1)}, 0x3727c5ac, {v(b+1)}',
                f'v_rsq_f32 {v(vRS)}, {v(b+1)}',
                f'v_and_b32 {v(b+2)}, {s(sHI)}, {v(b)}',
                f'v_sub_f32 {v(b+2)}, {v(b)}, {v(b+2)}',
                f'v_cmp_gt_u32 vcc, 32, {v(vLane)}',
                f'v_mul_f32 {v(vRS+1)}, {s(sL2E)}, {v(vRS)}',
                f'v_cndmask_b32 {v(b)}, {v(b+2)}, {v(b)}, vcc',
                f'v_perm_b32 {v(vMF)}, {v(b)}, {v(b)}, {s(sPERM)}',
                f'v_lshrrev_b32 {v(vMF+1)}, 16, {v(b)}']
        return ops

    def tr_w(self, dst, ks, extra):
        e = self.e
        off = (ks >> 2) * 4096 + extra
        e(f'ds_read_b64_tr_b16 {v(dst,2)}, {v(vWtr + (ks&3))} offset:{off}')
        return e(f'ds_read_b64_tr_b16 {v(dst+2,2)}, {v(vWtr + (ks&3))} offset:{off+256}')

    def kv_gemm(self, l, slot, dma):
        e = self.e; typ = l & 1; first = l < 2
        self.set_wtr(slot)
        xt = [None] * 32
        def xload(k):
            if k % 4 == 0: e(f's_add_u32 {s(sT[0])}, {s(sXrd)}, {k*1024}')
            xt[k] = e(f'buffer_load_dwordx4 {v(vXF+4*k,4)}, {v(vXq+(k&3))}, {s(sWS,4)}, {s(sT[0])} offen sc1')
        PRE = self.o.xpre
        assert PRE <= 9
        for k in range(PRE): xload(k)
        wt = [None] * 32
        def wread(k):
            b = vWB + (k % 3) * 8
            self.tr_w(b, k, 0)
            wt[k] = self.tr_w(b + 4, k, SLOT)
        wread(0); wread(1)
        stt = None
        sops = self.stats_ops()
        dl = self.dma_list(dma)
        csK, csV = vTM, vTM + 1
        cK, cV = vCS + typ*6 + 2, vCS + typ*6 + 4
        for k in range(32):
            if k + PRE < 32: xload(k + PRE)
            elif dl: self.dma_item(*dl.pop(0))
            if k < 4:
                stt = e(f'buffer_load_dwordx4 {v(vXF+112+4*k,4)}, {v(vL16)}, {s(sWS,4)}, {s(sSTrd)} offen offset:{k*1024} sc1')
            if k + 2 < 32: wread(k + 2)
            e.wait(vm=xt[k], lg=wt[k])
            if k == 0: self.stamp(f'L{l}.x0')
            b = vWB + (k % 3) * 8
            e(f'v_mfma_f32_32x32x16_bf16 {v(vA0,16)}, {v(b,4)}, {v(vXF+4*k,4)}, {v(vA0,16) if k else 0}')
            if first and k % 4 == 0:
                for i in range(4): e(f'v_dot2_f32_bf16 {v(csK)}, {v(b+i)}, {s(sONES)}, {v(csK) if (k or i) else 0}')
            if 13 <= k < 19:
                if k == 13: e.wait(vm=stt)
                for _ in range(3):
                    if sops: e(sops.pop(0))
            e(f'v_mfma_f32_32x32x16_bf16 {v(vA1,16)}, {v(b+4,4)}, {v(vXF+4*k,4)}, {v(vA1,16) if k else 0}')
            if first and k % 4 == 0:
                for i in range(4): e(f'v_dot2_f32_bf16 {v(csV)}, {v(b+4+i)}, {s(sONES)}, {v(csV) if (k or i) else 0}')
            if 13 <= k < 19:
                for _ in range(2):
                    if sops: e(sops.pop(0))
            if k == 19:
                assert not sops
                if not first:
                    e(f'v_mfma_f32_32x32x8_bf16 {v(vA0,16)}, {v(cK,2)}, {v(vMF,2)}, {v(vA0,16)}')
                    e(f'v_mfma_f32_32x32x8_bf16 {v(vA1,16)}, {v(cV,2)}, {v(vMF,2)}, {v(vA1,16)}')
            if first and k == 28:
                cw = self.cs_write([csK, csV], [1, 2])
            if first and k == 29:
                e.wait(lg=cw); e('s_barrier')
            if first and k == 30:
                r1 = self.cs_read(1, vWB + 16)
        while dl: self.dma_item(*dl.pop(0))
        if first:
            r2 = self.cs_read(2, vWB)
            e.wait(lg=r1); self.cs_pack(vWB + 16, cK)
            e(f'v_mfma_f32_32x32x8_bf16 {v(vA0,16)}, {v(cK,2)}, {v(vMF,2)}, {v(vA0,16)}')
            e.wait(lg=r2); self.cs_pack(vWB, cV)
            e(f'v_mfma_f32_32x32x8_bf16 {v(vA1,16)}, {v(cV,2)}, {v(vMF,2)}, {v(vA1,16)}')
        self.stamp(f'L{l}.kvgemm')

    def scale_pack(self, acc, out):
        e = self.e
        for i in range(8):
            e(f'v_pk_mul_f32 {v(acc+2*i,2)}, {v(acc+2*i,2)}, {v(vRS,2)} op_sel_hi:[1,0]')
        for i in range(8):
            e(f'v_cvt_pk_bf16_f32 {v(out+i)}, {v(acc+2*i)}, {v(acc+2*i+1)}')
    def phi_a(self, acc, tmp, out, after=None):
        e = self.e
        for hh in range(2):
            r = range(4*hh, 4*hh+4)
            for i in r: e(f'v_pk_mul_f32 {v(tmp+2*i,2)}, {v(acc+2*i,2)}, {v(vRS,2)} op_sel:[0,1] op_sel_hi:[1,1]')
            for i in r:
                e(f'v_exp_f32_e64 {v(tmp+2*i)}, {v(tmp+2*i)} clamp')
                e(f'v_exp_f32_e64 {v(tmp+2*i+1)}, {v(tmp+2*i+1)} clamp')
            for i in r: e(f'v_pk_fma_f32 {v(acc+2*i,2)}, {v(acc+2*i,2)}, {v(vRS,2)}, 1.0 op_sel_hi:[1,0,0]')
            for i in r:
                e(f'v_max_f32 {v(acc+2*i)}, {v(acc+2*i)}, {v(tmp+2*i)}')
                e(f'v_max_f32 {v(acc+2*i+1)}, {v(acc+2*i+1)}, {v(tmp+2*i+1)}')
            for i in r: e(f'v_pk_add_f32 {v(acc+2*i,2)}, {v(acc+2*i,2)}, {s(sEPS6,2)}')
            for i in r: e(f'v_cvt_pk_bf16_f32 {v(out+i)}, {v(acc+2*i)}, {v(acc+2*i+1)}')
            if after: after(hh)
    def softmax16(self, p, tm, out):
        e = self.e
        e(f'v_max3_f32 {v(tm)}, {v(p)}, {v(p+1)}, {v(p+2)}')
        e(f'v_max3_f32 {v(tm+1)}, {v(p+3)}, {v(p+4)}, {v(p+5)}')
        e(f'v_max3_f32 {v(tm)}, {v(tm)}, {v(p+6)}, {v(p+7)}')
        e(f'v_max3_f32 {v(tm+1)}, {v(tm+1)}, {v(p+8)}, {v(p+9)}')
        e(f'v_max3_f32 {v(tm)}, {v(tm)}, {v(p+10)}, {v(p+11)}')
        e(f'v_max3_f32 {v(tm+1)}, {v(tm+1)}, {v(p+12)}, {v(p+13)}')
        e(f'v_max3_f32 {v(tm)}, {v(tm)}, {v(p+14)}, {v(p+15)}')
        e(f'v_max_f32 {v(tm)}, {v(tm)}, {v(tm+1)}')
        e(f'v_mul_f32 {v(tm)}, {s(sL2E)}, {v(tm)}')
        for i in range(8):
            e(f'v_pk_fma_f32 {v(p+2*i,2)}, {v(p+2*i,2)}, {s(sL2E,2)}, {v(tm,2)} op_sel_hi:[1,1,0] neg_lo:[0,0,1] neg_hi:[0,0,1]')
        for i in range(16): e(f'v_exp_f32 {v(p+i)}, {v(p+i)}')
        for i in range(4): e(f'v_pk_add_f32 {v(tm+2*i,2)}, {v(p+4*i,2)}, {v(p+4*i+2,2)}')
        e(f'v_pk_add_f32 {v(tm,2)}, {v(tm,2)}, {v(tm+2,2)}')
        e(f'v_pk_add_f32 {v(tm+4,2)}, {v(tm+4,2)}, {v(tm+6,2)}')
        e(f'v_pk_add_f32 {v(tm,2)}, {v(tm,2)}, {v(tm+4,2)}')
        e(f'v_add_f32 {v(tm)}, {v(tm)}, {v(tm+1)}')
        e(f'v_rcp_f32 {v(tm)}, {v(tm)}')
        for i in range(8): e(f'v_pk_mul_f32 {v(p+2*i,2)}, {v(p+2*i,2)}, {v(tm,2)} op_sel_hi:[1,0]')
        for i in range(8): e(f'v_cvt_pk_bf16_f32 {v(out+i)}, {v(p+2*i)}, {v(p+2*i+1)}')

    def kv_epilogue(self, l, need_vm):
        e = self.e; typ = l & 1
        self.dump(f'L{l}.kv', [v(vA0+i) for i in range(32)] + [v(vRS)])
        if typ == 0:
            def wr(hh): e(f'ds_write_b128 {v(vPKwA)}, {v(vTM+4*hh,4)} offset:{2*hh*PL}')
            self.phi_a(vA0, vWB, vTM, wr)
            self.scale_pack(vA1, vA1)
            e(f'ds_write_b128 {v(vPKwA)}, {v(vA1,4)} offset:{8*PL}')
            e(f'ds_write_b128 {v(vPKwA)}, {v(vA1+4,4)} offset:{10*PL}')
        else:
            self.scale_pack(vA0, vTM)
            e(f'v_mfma_f32_32x32x16_bf16 {v(vA0,16)}, {v(vWPH,4)}, {v(vTM,4)}, 0')
            e(f'v_mfma_f32_32x32x16_bf16 {v(vWB,16)}, {v(vWPH+4,4)}, {v(vTM+4,4)}, 0')
            self.scale_pack(vA1, vA1)
            e(f'ds_write_b128 {v(vPKwA)}, {v(vA1,4)} offset:{8*PL}')
            e(f'ds_write_b128 {v(vPKwA)}, {v(vA1+4,4)} offset:{10*PL}')
            for hh, p in ((0, vA0), (1, vWB)):
                self.softmax16(p, vTM, p)
                e(f'ds_write_b128 {v(vPKwB)}, {v(p,4)} offset:{(2*hh)*PL}')
                e(f'ds_write_b128 {v(vPKwB)}, {v(p+4,4)} offset:{(2*hh+1)*PL}')
        ones = vTM + 4
        for i in range(4): e(f'v_mov_b32 {v(ones+i)}, {s(sONES)}')
        if need_vm is not None: e.wait(vm=need_vm)
        e.wait_all_lg()
        e('s_barrier')
        self.stamp(f'L{l}.B1')
        pr = vPKrA if typ == 0 else vPKrB
        if typ == 0: e(f's_cmp_lg_u32 {s(sSKIP)}, 0\ns_cbranch_scc1 L_skip{l}')
        tags = []
        for st in range(4):
            e(f'ds_read_b64_tr_b16 {v(vA0+4*st,2)}, {v(pr)} offset:{st*512}')
            e(f'ds_read_b64_tr_b16 {v(vA0+4*st+2,2)}, {v(pr)} offset:{st*512+256}')
            e(f'ds_read_b64_tr_b16 {v(vA1+4*st,2)}, {v(vPKrA)} offset:{8*PL+st*512}')
            tags.append(e(f'ds_read_b64_tr_b16 {v(vA1+4*st+2,2)}, {v(vPKrA)} offset:{8*PL+st*512+256}'))
        ckv, cz = vWB + 16, vWB + 20
        for st in range(4):
            e.wait(lg=tags[st])
            e(f'v_mfma_f32_16x16x32_bf16 {v(ckv,4)}, {v(vA0+4*st,4)}, {v(vA1+4*st,4)}, {v(ckv,4) if st else 0}')
            e(f'v_mfma_f32_16x16x32_bf16 {v(cz,4)}, {v(ones,4)}, {v(vA0+4*st,4)}, {v(cz,4) if st else 0}')
        sk, sz = sKVwrB, sZwrB
        e(f's_add_u32 {s(sT[0])}, {s(sk)}, {l*0x80000}\ns_add_u32 {s(sT[1])}, {s(sz)}, {l*0x10000}')
        e(f'v_cvt_pk_bf16_f32 {v(vTM)}, {v(ckv)}, {v(ckv+1)}\nv_cvt_pk_bf16_f32 {v(vTM+1)}, {v(ckv+2)}, {v(ckv+3)}')
        e(f'v_min_u32 {v(vTM)}, -2, {v(vTM)}\nv_min_u32 {v(vTM+1)}, -2, {v(vTM+1)}')
        e(f'buffer_store_dwordx2 {v(vTM,2)}, {v(vE1st)}, {s(sWS,4)}, {s(sT[0])} offen sc1')
        e(f'v_min_u32 {v(vTM+2)}, -2, {v(cz)}')
        e(f'buffer_store_dword {v(vTM+2)}, {v(vZst)}, {s(sWS,4)}, {s(sT[1])} offen sc1')
        if typ == 0: e(f'L_skip{l}:')
        self.stamp(f'L{l}.pub1')

    def e1_loads(self, e, l):
        typ = l & 1
        nk, nz = (4, 2) if typ == 0 else (8, 4)
        sk, sz = (sKVrdA, sZrdA) if typ == 0 else (sKVrdB, sZrdB)
        e(f's_add_u32 {s(sT[1])}, {s(sz)}, {l*0x10000}')
        zt = None
        for t in range(nz):
            zt = e(f'buffer_load_dword {v(vXF+32+t)}, {v(vL4)}, {s(sWS,4)}, {s(sT[1])} offen offset:{t*256} sc1')
        tags = []
        for p in range(nk):
            if p % 4 == 0: e(f's_add_u32 {s(sT[0])}, {s(sk)}, {l*0x80000 + p*1024}')
            tags.append(e(f'buffer_load_dwordx4 {v(vXF+4*p,4)}, {v(vL16)}, {s(sWS,4)}, {s(sT[0])} offen offset:{(p&3)*1024} sc1'))
        return zt, tags

    def q_phase(self, l, slot, dma1, dma2):
        e = self.e; typ = l & 1; first = l < 2
        self.set_wtr(slot)
        wt = [None] * 32
        def wread(k): wt[k] = self.tr_w(vWB + (k % 6) * 4, k, 0)
        for k in range(4): wread(k)
        dl = self.dma_list(dma1)
        csQ = vTM; cQ = vCS + typ * 6
        if l == 0:
            e(f'v_and_b32 {v(vTM+3)}, 0x7c, {v(vL4)}')
            dbt = e(f'buffer_load_dword {v(vTM+2)}, {v(vTM+3)}, {s(sDBG,4)}, 0 offen sc1')
            e(f'buffer_load_dword {v(vTM+4)}, {v(vFl16)}, {s(sWS,4)}, {s(sFOrd)} offen sc1')
            e(f'buffer_load_dword {v(vTM+4)}, {v(vFl16)}, {s(sWS,4)}, {s(sFXrd)} offen sc1')
        E1AT = self.o.e1at
        for k in range(32):
            if dl and k < E1AT: self.dma_item(*dl.pop(0))
            if k == E1AT:
                while dl: self.dma_item(*dl.pop(0))
                if l == 0:
                    e.wait(vm=dbt)
                    e(f's_mov_b32 {s(sT[2])}, 0x11111111')
                    e('L_all_chk:')
                    e(f'v_dot8_u32_u4 {v(vTM+2)}, {v(vTM+2)}, {s(sT[2])}, 0')
                    e(f'v_cmp_ne_u32 vcc, 8, {v(vTM+2)}\ns_cbranch_vccnz L_all_retry')
                    t = Asm()
                    t(f'L_all_retry:\nbuffer_load_dword {v(vTM+2)}, {v(vTM+3)}, {s(sDBG,4)}, 0 offen sc1')
                    t(f's_sub_u32 {s(sBUD)}, {s(sBUD)}, 1\ns_cbranch_scc1 L_fail\ns_waitcnt vmcnt(0)\ns_branch L_all_chk')
                    self.tail.append(t)
                zt, kt = self.e1_loads(e, l)
            if k + 4 < 32: wread(k + 4)
            e.wait(lg=wt[k])
            b = vWB + (k % 6) * 4
            e(f'v_mfma_f32_32x32x16_bf16 {v(vA0,16)}, {v(b,4)}, {v(vXF+4*k,4)}, {v(vA0,16) if k else 0}')
            if k == 0 and not first:
                e(f'v_mfma_f32_32x32x8_bf16 {v(vA0,16)}, {v(cQ,2)}, {v(vMF,2)}, {v(vA0,16)}')
            if first and k % 4 == 0:
                for i in range(4): e(f'v_dot2_f32_bf16 {v(csQ)}, {v(b+i)}, {s(sONES)}, {v(csQ) if (k or i) else 0}')
            if first and k == 28: cw = self.cs_write([csQ], [0])
            if first and k == 30:
                e.wait(lg=cw); e('s_barrier')
                r0 = self.cs_read(0, vA1)
        if first:
            e.wait(lg=r0); self.cs_pack(vA1, cQ)
            e(f'v_mfma_f32_32x32x8_bf16 {v(vA0,16)}, {v(cQ,2)}, {v(vMF,2)}, {v(vA0,16)}')
        self.stamp(f'L{l}.qgemm')
        self.dump(f'L{l}.q', [v(vA0+i) for i in range(16)])
        PQ = vXF + 64
        if typ == 0:
            self.phi_a(vA0, vWB, PQ)
        else:
            self.scale_pack(vA0, vTM)
            e(f'v_mfma_f32_32x32x16_bf16 {v(vA0,16)}, {v(vWPH,4)}, {v(vTM,4)}, 0')
            e(f'v_mfma_f32_32x32x16_bf16 {v(vA1,16)}, {v(vWPH+4,4)}, {v(vTM+4,4)}, 0')
            self.softmax16(vA0, vWB, PQ)
            self.softmax16(vA1, vWB, PQ + 8)
        self.stamp(f'L{l}.phiq')
        nk, nz = (4, 2) if typ == 0 else (8, 4)
        C = vWB; mx = vTM; z = vXF + 32
        e(f'L_e1c{l}:')
        e.wait(vm=zt)
        if nz == 2:
            e(f'v_max_u32 {v(mx)}, {v(z)}, {v(z+1)}\nv_add_f32 {v(z)}, {v(z)}, {v(z+1)}')
        else:
            e(f'v_max3_u32 {v(mx)}, {v(z)}, {v(z+1)}, {v(z+2)}\nv_max_u32 {v(mx)}, {v(mx)}, {v(z+3)}')
            e(f'v_pk_add_f32 {v(z,2)}, {v(z,2)}, {v(z+2,2)}\nv_add_f32 {v(z)}, {v(z)}, {v(z+1)}')
        e(f'v_mov_b32 {v(z+1)}, {v(z)}\nv_permlane16_swap_b32 {v(z)}, {v(z+1)}\nv_add_f32 {v(z)}, {v(z)}, {v(z+1)}')
        e(f'v_mov_b32 {v(z+1)}, {v(z)}\nv_permlane32_swap_b32 {v(z)}, {v(z+1)}\nv_add_f32 {v(z)}, {v(z)}, {v(z+1)}')
        e(f'v_cvt_pk_bf16_f32 {v(z)}, {v(z)}, {v(z)}')
        e(f'ds_write_b16 {v(vZw)}, {v(z)} offset:512')
        for p in range(nk):
            e.wait(vm=kt[p])
            b = vXF + 4*p
            e(f'v_mfma_f32_16x16x32_bf16 {v(C,4)}, {v(vSEL,4)}, {v(b,4)}, {v(C,4) if p else 0}')
            e(f'v_max3_u32 {v(mx)}, {v(mx)}, {v(b)}, {v(b+1)}\nv_max3_u32 {v(mx)}, {v(mx)}, {v(b+2)}, {v(b+3)}')
        e(f'v_cmp_eq_u32 vcc, -1, {v(mx)}\ns_cbranch_vccnz L_e1r{l}')
        t = Asm()
        t(f'L_e1r{l}:\ns_nop 7')
        self.e1_loads(t, l)
        t(f's_sub_u32 {s(sBUD)}, {s(sBUD)}, 1\ns_cbranch_scc1 L_fail\ns_waitcnt vmcnt(0)\ns_branch L_e1c{l}')
        self.tail.append(t)
        self.stamp(f'L{l}.e1')
        dl = self.dma_list(dma2)
        e(f'v_cvt_pk_bf16_f32 {v(vTM)}, {v(C)}, {v(C+1)}\nv_cvt_pk_bf16_f32 {v(vTM+1)}, {v(C+2)}, {v(C+3)}')
        e(f'ds_write_b64 {v(vKVw)}, {v(vTM,2)}')
        for _ in range(2):
            if dl: self.dma_item(*dl.pop(0))
        e.wait_all_lg()
        e('s_barrier')
        KF = vWB + 8
        kr = vKVrA if typ == 0 else vKVrB
        tg = []
        for hh in range(2):
            for u in range(2):
                off = (2*u + hh) * 544 if typ == 0 else hh * 544 + u * 16
                tg.append(e(f'ds_read_b128 {v(KF + 4*(2*hh+u),4)}, {v(kr)} offset:{off}'))
        for _ in range(3):
            if dl: self.dma_item(*dl.pop(0))
        for hh in range(2):
            acc = (vA0, vA1)[hh]
            for u in range(2):
                e.wait(lg=tg[2*hh+u])
                pq = PQ + 4*hh if typ == 0 else PQ + 8*hh + 4*u
                e(f'v_mfma_f32_32x32x16_bf16 {v(acc,16)}, {v(KF+4*(2*hh+u),4)}, {v(pq,4)}, {v(acc,16) if u else 0}')
        while dl: self.dma_item(*dl.pop(0))
        for hh in range(2):
            acc = (vA0, vA1)[hh]
            e(f'v_add_f32 {v(acc+8)}, {s(sEPS6)}, {v(acc+8)}\nv_rcp_f32 {v(acc+8)}, {v(acc+8)}')
            for i in range(4): e(f'v_pk_mul_f32 {v(acc+2*i,2)}, {v(acc+2*i,2)}, {v(acc+8,2)} op_sel_hi:[1,0]')
            for i in range(4): e(f'v_cvt_pk_bf16_f32 {v(vTM+4*hh+i)}, {v(acc+2*i)}, {v(acc+2*i+1)}')
        self.dump(f'L{l}.o', [v(vTM+i) for i in range(8)])
        def st(e, m):
            e(f'buffer_store_dwordx4 {v(vTM,4)}, {v(vL16)}, {s(sWS,4)}, {s(sOwr)} offen{m}')
            e(f'buffer_store_dwordx4 {v(vTM+4,4)}, {v(vL16)}, {s(sWS,4)}, {s(sOwr)} offen offset:1024{m}')
            e(f'v_mov_b32 {v(vWB)}, {l+1}')
            e.wait_all_vm()
            e(f's_mov_b64 exec, 1\nbuffer_store_dword {v(vWB)}, off, {s(sWS,4)}, {s(sFOwr)}{m}\ns_mov_b64 exec, -1')
        self.modal(f'po{l}', st)
        self.stamp(f'L{l}.pub2')

    def o_proj(self, l, wo_slots, dma):
        e = self.e; typ = l & 1
        AW = 128 * typ
        if l == 0:
            t0, t1 = vTM, vTM + 1
            e(f'''
            v_bfe_u32 {v(t0)}, {v(vLane)}, 2, 2
            v_lshrrev_b32 {v(t1)}, 5, {v(vLane)}
            v_lshl_add_u32 {v(t0)}, {v(t1)}, 3, {v(t0)}
            v_lshlrev_b32 {v(t0)}, 5, {v(t0)}
            v_bfe_u32 {v(t1)}, {v(vLane)}, 4, 1
            v_lshl_add_u32 {v(t0)}, {v(t1)}, 4, {v(t0)}
            v_bfe_u32 {v(t1)}, {v(vLane)}, 1, 1
            v_lshl_add_u32 {v(t0)}, {v(t1)}, 3, {v(t0)}
            v_add_u32 {v(t0)}, {L_WP}, {v(t0)}
            ''')
            for hh in range(2):
                for t in range(2):
                    tw = e(f'ds_read_b64_tr_b16 {v(vWPH+4*hh+2*t,2)}, {v(t0)} offset:{hh*512 + t*128}')
            e(f'v_bfe_u32 {v(t1)}, {v(vLane)}, 2, 1\nv_mul_u32_u24 {v(t1)}, 0x8000, {v(t1)}\nv_lshl_or_b32 {v(t1)}, {v(t1)}, 16, {v(t1)}')
            e.wait(lg=tw)
            for i in range(8): e(f'v_xor_b32 {v(vWPH+i)}, {v(t1)}, {v(vWPH+i)}')
        if wo_slots:
            t0, t1, t2 = vTM, vTM + 1, vTM + 2
            e(f'''
            s_lshr_b32 {s(sT[0])}, {s(sW)}, 1
            s_lshl_b32 {s(sT[1])}, {s(sT[0])}, 14
            v_bfe_u32 {v(t0)}, {v(vLane)}, 2, 2
            v_lshrrev_b32 {v(t1)}, 5, {v(vLane)}
            v_lshl_add_u32 {v(t0)}, {v(t1)}, 3, {v(t0)}
            v_lshl_add_u32 {v(t0)}, {v(t0)}, 7, {s(sT[1])}
            v_bfe_u32 {v(t1)}, {v(vLane)}, 3, 1
            v_xor_b32 {v(t1)}, {s(sT[0])}, {v(t1)}
            v_lshl_add_u32 {v(t0)}, {v(t1)}, 6, {v(t0)}
            v_and_b32 {v(t1)}, 1, {v(vLane)}
            v_lshl_add_u32 {v(t0)}, {v(t1)}, 5, {v(t0)}
            v_bfe_u32 {v(t1)}, {v(vLane)}, 4, 1
            v_lshl_add_u32 {v(t0)}, {v(t1)}, 4, {v(t0)}
            v_bfe_u32 {v(t1)}, {v(vLane)}, 1, 1
            v_lshl_add_u32 {v(t0)}, {v(t1)}, 3, {v(t0)}
            ''')
            for half in range(2):
                e(f'v_add_u32 {v(t1)}, {wo_slots[half]*SLOT}, {v(t0)}\nv_xor_b32 {v(t2)}, 64, {v(t1)}')
                for hh in range(8):
                    ks = half * 8 + hh
                    for own, ad in ((0, t1), (1, t2)):
                        for t in range(2):
                            e(f'ds_read_b64_tr_b16 {a(AW + ks*8 + own*4 + 2*t, 2)}, {v(ad)} offset:{hh*2048 + t*512}')
        for i in range(8):
            e(f'v_lshlrev_b32 {v(vA0+2*i)}, 16, {v(vRES+i)}\nv_and_b32 {v(vA0+2*i+1)}, {s(sHI)}, {v(vRES+i)}')
        e.wait_all_lg()
        self.stamp(f'L{l}.pre2')
        self.poll(f'pollo{l}', sFOrd, l + 1)
        self.stamp(f'L{l}.poll2')
        ot = [None] * 16
        def oload(k):
            if k % 4 == 0: e(f's_add_u32 {s(sT[0])}, {s(sOrd)}, {k*1024}')
            ot[k] = e(f'buffer_load_dwordx4 {v(vXF+4*k,4)}, {v(vL16)}, {s(sWS,4)}, {s(sT[0])} offen offset:{(k&3)*1024} sc1')
        PRE = self.o.xpre
        for k in range(PRE): oload(k)
        dl = self.dma_list(dma)
        for k in range(16):
            if k + PRE < 16: oload(k + PRE)
            elif dl: self.dma_item(*dl.pop(0))
            e.wait(vm=ot[k])
            e(f'v_mfma_f32_32x32x16_bf16 {v(vA1,16)}, {a(AW+k*8+4,4)}, {v(vXF+4*k,4)}, {v(vA1,16) if k else 0}')
            e(f'v_mfma_f32_32x32x16_bf16 {v(vA0,16)}, {a(AW+k*8,4)}, {v(vXF+4*k,4)}, {v(vA0,16)}')
        while dl: self.dma_item(*dl.pop(0))
        e(f'v_xor_b32 {v(vTM)}, 0x2000, {v(vEXw)}')
        for r in (sXrd, sXwr, sSTrd, sSTwr, sOrd, sOwr): e(f's_add_u32 {s(r)}, {s(r)}, {s(sSTR)}')
        for n in range(4): e(f'ds_write_b128 {v(vEXw)}, {v(vA1+4*n,4)} offset:{n*1024}')
        e.wait_all_lg()
        e('s_barrier')
        self.stamp(f'L{l}.B3')
        tg = [e(f'ds_read_b128 {v(vWB+4*n,4)}, {v(vTM)} offset:{n*1024}') for n in range(4)]
        for n in range(4):
            e.wait(lg=tg[n])
            for i in (0, 2): e(f'v_pk_add_f32 {v(vA0+4*n+i,2)}, {v(vA0+4*n+i,2)}, {v(vWB+4*n+i,2)}')
            for i in (0, 2): e(f'v_cvt_pk_bf16_f32 {v(vRES+2*n+i//2)}, {v(vA0+4*n+i)}, {v(vA0+4*n+i+1)}')
        self.dump(f'L{l}.x', [v(vRES+i) for i in range(8)])
        if l < 3:
            self.publish_x(f'px{l}', l + 2)
            e('s_barrier')
            self.stamp(f'L{l}.pub3')
            self.poll(f'pollx{l}', sFXrd, l + 2)
            self.stamp(f'L{l}.poll3')
        else:
            e(f'buffer_store_dwordx4 {v(vRES,4)}, {v(vXO)}, {s(sOUT,4)}, {s(sXO)} offen')
            e(f'buffer_store_dwordx4 {v(vRES+4,4)}, {v(vXO)}, {s(sOUT,4)}, {s(sXO)} offen offset:16')

    def build(self):
        e = self.e
        self.prologue()
        W = lambda t, p, sl: ('W', t, p, sl)
        O = lambda t, h, sl: ('O', t, h, sl)
        plan = [
            dict(kv=0, q=2, wo=(3, 0), b0=[W(0,0,2)], b1=[O(0,0,3), O(0,1,0)], b2=[W(1,1,1)], b3=[W(1,2,2)]),
            dict(kv=1, q=3, wo=(0, 1), b0=[W(1,0,3)], b1=[O(1,0,0), O(1,1,1)], b2=[W(0,1,2)], b3=[W(0,2,3)]),
            dict(kv=2, q=0, wo=None, b0=[W(0,0,0)], b1=[W(1,1,1)], b2=[], b3=[W(1,2,2)]),
            dict(kv=1, q=3, wo=None, b0=[W(1,0,3)], b1=[], b2=[], b3=[]),
        ]
        for l in range(4):
            p = plan[l]
            self.kv_gemm(l, p['kv'], p['b0'])
            self.kv_epilogue(l, self.e.vm)
            self.q_phase(l, p['q'], p['b1'], p['b2'])
            self.o_proj(l, p['wo'], p['b3'])
        if self.o.stamps:
            self.stamp('end')
            e(f's_memrealtime {s(sTS,2)}'); e.wait_all_lg()
            e(f'v_writelane_b32 {v(vSTAMP)}, {s(sTS)}, 63')
            e(f's_lshl_b32 {s(sT[0])}, s2, 2\ns_add_u32 {s(sT[0])}, {s(sT[0])}, {s(sW)}\ns_lshl_b32 {s(sT[0])}, {s(sT[0])}, 8\ns_add_u32 {s(sT[0])}, {s(sT[0])}, {STAMP}')
            e(f'buffer_store_dword {v(vSTAMP)}, {v(vL4)}, {s(sWS,4)}, {s(sT[0])} offen')
        e('L_fail:\ns_endpgm')
        body = e.finish() + ''.join(t.finish() for t in self.tail) + 'L_code_end:\n    s_endpgm\n'
        head = open('cdna_kernels/' + NAME + '.s.ref').read().split('; Override launch')[0]
        txt = head + '; @launch grid=(256,1,1) block=(256,1,1) lds=163840\n'
        txt += f'''.amdgcn_target "amdgcn-amd-amdhsa--gfx950"
.text
.globl {NAME}_kernel
.p2align 8
.type {NAME}_kernel,@function
{NAME}_kernel:
{body}.section .rodata,"a"
.p2align 6
.amdhsa_kernel {NAME}_kernel
  .amdhsa_next_free_vgpr 512
  .amdhsa_next_free_sgpr 102
  .amdhsa_accum_offset 256
  .amdhsa_group_segment_fixed_size 0
  .amdhsa_kernarg_size 80
  .amdhsa_user_sgpr_count 2
  .amdhsa_user_sgpr_kernarg_segment_ptr 1
  .amdhsa_system_sgpr_workgroup_id_x 1
  .amdhsa_float_denorm_mode_32 3
.end_amdhsa_kernel
'''
        return txt

if __name__ == '__main__':
    ap = argparse.ArgumentParser()
    ap.add_argument('-o', default='cdna_kernels/' + NAME + '.s')
    ap.add_argument('--stamps', action='store_true')
    ap.add_argument('--force-safe', action='store_true')
    ap.add_argument('--dump', default='')
    ap.add_argument('--xpre', type=int, default=8)
    ap.add_argument('--e1at', type=int, default=24)
    opt = ap.parse_args()
    opt.dump = opt.dump.split(',') if opt.dump else []
    g = Gen(opt)
    txt = g.build()
    open(opt.o, 'w').write(txt)
    if opt.stamps:
        open(opt.o + '.stamps', 'w').write('\n'.join(g.stamp_names))
    print('wrote', opt.o, len(txt), 'bytes; vgpr persistent', _vn[0], 'sgpr', _sn[0], 'stamps', g.nstamp)
```

```python
import sys, argparse
sys.path.insert(0, 'gen')
from asmlib import *

NAME = 'interleave_layers__linear_attn_block__linear_kernel_hedgehog__prompt'

FLG_O, FLG_X = 0x0000, 0x2000
ZP = 0x10000
STAMP = 0x60000
KVP = 0x100000
EXB, EXSTRIDE = 0x400000, 0x500000
OB, XB, ST = EXB, EXB + 0x200000, EXB + 0x400000
DUMP = 0x2400000
WS_BYTES = 0x4000000
OOB = 0x7F000000
SLOT = 32768
SCR = 4 * SLOT
PL = 2176
L_PK = SCR
L_EX = SCR
L_KV = SCR + 12 * PL
L_CS = L_KV + 2176
L_WP = L_CS + 3072
assert L_WP + 1024 <= 163840

sX, sWA, sWOA, sWB, sWP, sWOB, sOUT, sDBG, sWS, sCODE = 4, 8, 12, 16, 20, 24, 28, 32, 36, 40
_sn = [44]
def salloc(n=1, al=1):
    while _sn[0] % al: _sn[0] += 1
    r = _sn[0]; _sn[0] += n
    assert _sn[0] <= 100
    return r
sW, sR, sG, sRB, sRBO, sJ, sMODE, sBUD, sSTR = [salloc() for _ in range(9)]
sWg0, sWg1, sWl0, sWl1, sWOg, sWOl = [salloc() for _ in range(6)]
sXrd, sXwr, sSTrd, sSTwr, sOrd, sOwr, sFOrd, sFOwr, sFXrd, sFXwr = [salloc() for _ in range(10)]
sKVrdA, sKVrdB, sKVwrB, sZrdA, sZrdB, sZwrB, sSKIP = [salloc() for _ in range(7)]
sXO, sONES, sPERM, sHI, sXCC, sSTAMP = [salloc() for _ in range(6)]
sL2E = salloc(2, 2); sEPS6 = salloc(2, 2)
sT = [salloc() for _ in range(6)]
sTS = salloc(2, 2)
sE0 = salloc(2, 2); sE1 = salloc(2, 2)

_vn = [1]
def valloc(n=1, al=1):
    while _vn[0] % al: _vn[0] += 1
    r = _vn[0]; _vn[0] += n
    return r
vLane = valloc()
vL16 = valloc(); vL4 = valloc()
vRES = valloc(8, 4)
vWPH = valloc(8, 4)
vSEL = valloc(4, 4)
vCS = valloc(12, 2)
vMF = valloc(2, 2)
vRS = valloc(2, 2)
vXq = valloc(4); vWtr = valloc(4)
vWdma, vWOdma, vPKwA, vPKwB, vPKrA, vPKrB, vKVw, vZw, vKVrA, vKVrB, vEXw, vE1st, vZst, vSTst, vFl16, vXO = [valloc() for _ in range(16)]
assert _vn[0] <= 64, _vn[0]
vA0, vA1, vWB, vTM = 64, 80, 96, 120
vXF = 128
vSTAMP = 0

class Gen:
    def __init__(self, opt):
        self.o = opt
        self.e = Asm()
        self.tail = []
        self.nstamp = 0
        self.stamp_names = []
        self.wtr_slot = 0
        self.ndump = 0

    def stamp(self, name):
        if self.o.echo and name in self.o.echo[:2]:
            self.e(f's_memtime {s(sE0 if name == self.o.echo[0] else sE1, 2)}')
            self.e.wait_all_lg()
        if not self.o.stamps: return
        e = self.e
        e(f's_memtime {s(sTS,2)}')
        e.wait_all_lg()
        e(f'v_writelane_b32 {v(vSTAMP)}, {s(sTS)}, {self.nstamp}')
        self.nstamp += 1; self.stamp_names.append(name)
    def dump(self, name, regs):
        if name not in self.o.dump: return
        e = self.e
        for r in regs:
            e(f's_lshl_b32 {s(sT[5])}, s2, 2\ns_add_u32 {s(sT[5])}, {s(sT[5])}, {s(sW)}\ns_lshl_b32 {s(sT[5])}, {s(sT[5])}, 14\ns_add_u32 {s(sT[5])}, {s(sT[5])}, {DUMP + self.ndump*256}')
            e(f'buffer_store_dword {r}, {v(vL4)}, {s(sWS,4)}, {s(sT[5])} offen')
            self.ndump += 1
        assert self.ndump <= 64
        e.wait_all_vm()
    def set_wtr(self, slot):
        d = (slot - self.wtr_slot) * SLOT
        if d:
            for q in range(4):
                self.e(f'v_add_u32 {v(vWtr+q)}, {d & 0xffffffff}, {v(vWtr+q)}')
        self.wtr_slot = slot
    def dma_w(self, typ, part, slot, n):
        g, l = (sWg0, sWl0) if n < 4 else (sWg1, sWl1)
        srd = sWA if typ == 0 else sWB
        self.e(f's_add_u32 {s(sT[4])}, {s(g)}, {(n&3)*4*49152 + part*1024}')
        self.e(f's_add_u32 m0, {s(l)}, {slot*SLOT + (n&3)*4096}')
        return self.e(f'buffer_load_dwordx4 {v(vWdma)}, {s(srd,4)}, {s(sT[4])} offen lds')
    def dma_wo(self, typ, half, slot, n):
        srd = sWOA if typ == 0 else sWOB
        self.e(f's_add_u32 {s(sT[4])}, {s(sWOg)}, {half*131072 + n*8192}')
        self.e(f's_add_u32 m0, {s(sWOl)}, {slot*SLOT + n*1024}')
        return self.e(f'buffer_load_dwordx4 {v(vWOdma)}, {s(srd,4)}, {s(sT[4])} offen lds')
    def dma_item(self, it, n):
        if it[0] == 'W': return self.dma_w(it[1], it[2], it[3], n)
        return self.dma_wo(it[1], it[2], it[3], n)
    def dma_list(self, items):
        return [(it, n) for it in items for n in range(8)]
    def poll(self, name, sbase, val):
        e = self.e
        e(f'L_{name}:')
        e(f'buffer_load_dword {v(vTM)}, {v(vFl16)}, {s(sWS,4)}, {s(sbase)} offen sc1')
        e(f's_sub_u32 {s(sBUD)}, {s(sBUD)}, 1\ns_cbranch_scc1 L_fail')
        e.wait_all_vm()
        e(f'v_cmp_gt_u32 vcc, {val}, {v(vTM)}\ns_cbranch_vccnz L_{name}')
    def modal(self, name, fn):
        e = self.e
        e(f's_cmp_lg_u32 {s(sMODE)}, 0\ns_cbranch_scc1 L_{name}_safe')
        fn(e, '')
        e(f'L_{name}_join:')
        t = Asm(); t(f'L_{name}_safe:\ns_nop 4'); fn(t, ' sc1'); t(f's_nop 1\ns_branch L_{name}_join')
        self.tail.append(t)

    def x_stats(self):
        e = self.e
        S, Q = vTM, vTM + 1
        for i in range(8):
            e(f'v_dot2_f32_bf16 {v(S)}, {v(vRES+i)}, {s(sONES)}, {v(S) if i else 0}')
        for i in range(8):
            e(f'v_dot2_f32_bf16 {v(Q)}, {v(vRES+i)}, {v(vRES+i)}, {v(Q) if i else 0}')
        e(f'v_permlane32_swap_b32 {v(S)}, {v(Q)}')
        e(f'v_add_f32 {v(S)}, {v(S)}, {v(Q)}')
    def publish_x(self, name, flagval):
        def st1(e, m):
            e(f'buffer_store_dwordx4 {v(vRES,4)}, {v(vL16)}, {s(sWS,4)}, {s(sXwr)} offen{m}')
            e(f'buffer_store_dwordx4 {v(vRES+4,4)}, {v(vL16)}, {s(sWS,4)}, {s(sXwr)} offen offset:1024{m}')
        def st2(e, m):
            e(f'buffer_store_dword {v(vTM)}, {v(vSTst)}, {s(sWS,4)}, {s(sSTwr)} offen{m}')
            e(f'v_mov_b32 {v(vTM+2)}, {flagval}')
            e.wait_all_vm()
            e(f's_mov_b64 exec, 1\nbuffer_store_dword {v(vTM+2)}, off, {s(sWS,4)}, {s(sFXwr)}{m}\ns_mov_b64 exec, -1')
        self.modal(name + 'a', st1)
        self.x_stats()
        self.modal(name + 'b', st2)

    def prologue(self):
        e = self.e
        e('s_cmp_ge_u32 s2, 256\ns_cbranch_scc1 L_fail')
        if self.o.echo and self.o.echo[0] == 'entry': e(f's_memtime {s(sE0,2)}')
        for srd, off in ((sX, 0), (sWS, 72), (sWA, 8), (sWOA, 16), (sWB, 32), (sWP, 40), (sWOB, 48), (sOUT, 56), (sDBG, 64)):
            e(f's_load_dwordx2 {s(srd,2)}, s[0:1], {off}')
        e(f's_getpc_b64 {s(sCODE,2)}')
        e(f'v_and_b32 {v(vLane)}, 63, v0\nv_lshrrev_b32 {v(vTM)}, 6, v0')
        e(f's_mov_b32 {s(sCODE+2)}, L_code_end-{NAME}_kernel-128\ns_mov_b32 {s(sCODE+3)}, 0x20000')
        e(f'v_readfirstlane_b32 {s(sW)}, {v(vTM)}')
        e(f's_lshr_b32 {s(sT[0])}, s2, 3\ns_lshl_b32 {s(sT[0])}, {s(sT[0])}, 2\ns_add_u32 {s(sT[0])}, {s(sT[0])}, {s(sW)}')
        e(f's_and_b32 {s(sT[0])}, {s(sT[0])}, 7\ns_lshl_b32 {s(sT[0])}, {s(sT[0])}, 13')
        e(f'v_lshlrev_b32 {v(vTM+1)}, 7, {v(vLane)}')
        e(f'buffer_load_dword {v(vTM+7)}, {v(vTM+1)}, {s(sCODE,4)}, {s(sT[0])} offen')
        for srd, sz in ((sX, 0x200000), (sWA, 0x180000), (sWOA, 0x80000), (sWB, 0x180000), (sWP, 0x4000), (sWOB, 0x80000), (sOUT, 0x200000), (sDBG, 256), (sWS, WS_BYTES)):
            e(f's_mov_b32 {s(srd+2)}, {sz}\ns_mov_b32 {s(srd+3)}, 0x20000')
        T = sT
        e(f'''
        s_and_b32 {s(sR)}, s2, 7
        s_lshl_b32 {s(sR)}, {s(sR)}, 1
        s_lshr_b32 {s(T[0])}, s2, 7
        s_add_u32 {s(sR)}, {s(sR)}, {s(T[0])}
        s_lshr_b32 {s(sG)}, s2, 3
        s_and_b32 {s(sG)}, {s(sG)}, 15
        s_lshl_b32 {s(sRB)}, {s(sR)}, 2
        s_lshr_b32 {s(T[0])}, {s(sG)}, 3
        s_lshl_b32 {s(T[0])}, {s(T[0])}, 1
        s_add_u32 {s(sRBO)}, {s(sRB)}, {s(T[0])}
        s_and_b32 {s(T[0])}, {s(sW)}, 1
        s_add_u32 {s(sRBO)}, {s(sRBO)}, {s(T[0])}
        s_add_u32 {s(sRB)}, {s(sRB)}, {s(sW)}
        s_and_b32 {s(sJ)}, {s(sG)}, 7
        s_lshl_b32 {s(sJ)}, {s(sJ)}, 1
        s_lshr_b32 {s(T[1])}, {s(sW)}, 1
        s_add_u32 {s(sJ)}, {s(sJ)}, {s(T[1])}
        s_lshl_b32 {s(sXO)}, {s(sRBO)}, 15
        s_lshl_b32 {s(T[2])}, {s(sJ)}, 6
        s_add_u32 {s(sXO)}, {s(sXO)}, {s(T[2])}
        v_and_b32 {v(vTM)}, 31, {v(vLane)}
        v_lshrrev_b32 {v(vTM+1)}, 5, {v(vLane)}
        v_lshlrev_b32 {v(vXO)}, 10, {v(vTM)}
        v_lshl_add_u32 {v(vXO)}, {v(vTM+1)}, 5, {v(vXO)}
        v_lshlrev_b32 {v(vL16)}, 4, {v(vLane)}
        v_lshlrev_b32 {v(vL4)}, 2, {v(vLane)}
        ''')
        e(f'''
        s_lshl_b32 {s(T[2])}, {s(sG)}, 2
        s_add_u32 {s(T[3])}, {s(T[2])}, {s(sW)}
        s_lshl_b32 {s(sKVrdB)}, {s(T[3])}, 13
        s_add_u32 {s(sKVrdB)}, {s(sKVrdB)}, {KVP}
        s_lshl_b32 {s(sZrdB)}, {s(T[3])}, 10
        s_add_u32 {s(sZrdB)}, {s(sZrdB)}, {ZP}
        s_lshl_b32 {s(T[4])}, {s(sR)}, 9
        s_add_u32 {s(sKVwrB)}, {s(sKVrdB)}, {s(T[4])}
        s_lshl_b32 {s(T[5])}, {s(sR)}, 6
        s_add_u32 {s(sZwrB)}, {s(sZrdB)}, {s(T[5])}
        v_lshlrev_b32 {v(vTM+2)}, 4, {v(vTM)}
        v_lshl_add_u32 {v(vTM+2)}, {v(vTM+1)}, 19, {v(vTM+2)}
        v_and_b32 {v(vFl16)}, 15, {v(vLane)}
        v_lshlrev_b32 {v(vFl16)}, 2, {v(vFl16)}
        v_lshrrev_b32 {v(vTM+4)}, 4, {v(vLane)}
        v_lshl_add_u32 {v(vTM+3)}, {v(vTM+4)}, 16, {v(vFl16)}
        v_mov_b32 {v(vA0)}, -1
        v_mov_b32 {v(vA0+1)}, -1
        v_mov_b32 {v(vA0+2)}, -1
        v_mov_b32 {v(vA0+3)}, -1
        v_mov_b32 {v(vA0+4)}, 0
        v_lshrrev_b32 {v(vWdma)}, 2, {v(vLane)}
        v_mul_u32_u24 {v(vWdma)}, 3072, {v(vWdma)}
        v_and_b32 {v(vTM+5)}, 3, {v(vLane)}
        v_lshl_add_u32 {v(vWdma)}, {v(vTM+5)}, 4, {v(vWdma)}
        ''')
        e(f'''
        s_lshr_b32 {s(sFOwr)}, {s(sG)}, 1
        s_lshl_b32 {s(sFOwr)}, {s(sFOwr)}, 13
        s_lshl_b32 {s(sFOrd)}, {s(sR)}, 9
        s_add_u32 {s(sFOwr)}, {s(sFOwr)}, {s(sFOrd)}
        s_and_b32 {s(sFOrd)}, {s(sG)}, 1
        s_lshl_b32 {s(sFOrd)}, {s(sFOrd)}, 8
        s_add_u32 {s(sFOwr)}, {s(sFOwr)}, {s(sFOrd)}
        ''')
        e(f'''
        s_and_b32 {s(sFOrd)}, {s(sG)}, 1
        s_lshl_b32 {s(sFOrd)}, {s(sFOrd)}, 4
        s_add_u32 {s(sWl0)}, {s(sFOrd)}, {s(sW)}
        s_xor_b32 {s(sWl1)}, {s(sWl0)}, 16
        s_mul_i32 {s(sWg0)}, {s(sWl0)}, 49152
        s_mul_i32 {s(sWg1)}, {s(sWl1)}, 49152
        s_lshl_b32 {s(sFOrd)}, {s(sG)}, 6
        s_add_u32 {s(sWg0)}, {s(sWg0)}, {s(sFOrd)}
        s_add_u32 {s(sWg1)}, {s(sWg1)}, {s(sFOrd)}
        s_lshl_b32 {s(sWl0)}, {s(sWl0)}, 10
        s_lshl_b32 {s(sWl1)}, {s(sWl1)}, 10
        s_and_b32 {s(sMODE)}, {s(sR)}, 1
        s_lshl_b32 {s(sBUD)}, {s(sMODE)}, 10
        s_lshl_b32 {s(sMODE)}, {s(sMODE)}, 15
        s_add_u32 {s(sWg0)}, {s(sWg0)}, {s(sBUD)}
        s_add_u32 {s(sWg1)}, {s(sWg1)}, {s(sBUD)}
        s_add_u32 {s(sWl0)}, {s(sWl0)}, {s(sMODE)}
        s_add_u32 {s(sWl1)}, {s(sWl1)}, {s(sMODE)}
        ''')
        e('s_waitcnt lgkmcnt(0)')
        self.stamp('start')
        e(f's_and_b32 {s(sFOrd)}, {s(T[3])}, 0x33\ns_cbranch_scc1 L_noclr')
        e(f'buffer_store_dword {v(vA0+4)}, {v(vL4)}, {s(sWS,4)}, {s(sFOwr)} offen sc1')
        e('L_noclr:')
        e(f'buffer_load_dwordx4 {v(vRES,4)}, {v(vXO)}, {s(sX,4)}, {s(sXO)} offen')
        tx = e(f'buffer_load_dwordx4 {v(vRES+4,4)}, {v(vXO)}, {s(sX,4)}, {s(sXO)} offen offset:16')
        e(f'''
        buffer_store_dwordx4 {v(vA0,4)}, {v(vTM+2)}, {s(sWS,4)}, {s(sKVwrB)} offen sc1
        s_add_u32 {s(sFOrd)}, {s(sKVwrB)}, 0x100000
        buffer_store_dwordx4 {v(vA0,4)}, {v(vTM+2)}, {s(sWS,4)}, {s(sFOrd)} offen sc1
        buffer_store_dword {v(vA0)}, {v(vTM+3)}, {s(sWS,4)}, {s(sZwrB)} offen sc1
        ''')
        for n in range(8): self.dma_w(0, 1, 0, n)
        e(f'''
        s_lshl_b32 {s(T[4])}, {s(T[1])}, 12
        s_add_u32 {s(sKVrdA)}, {s(sKVrdB)}, {s(T[4])}
        s_lshl_b32 {s(T[4])}, {s(T[1])}, 9
        s_add_u32 {s(sZrdA)}, {s(sZrdB)}, {s(T[4])}
        s_lshr_b32 {s(sSKIP)}, {s(sR)}, 3
        s_xor_b32 {s(sSKIP)}, {s(sSKIP)}, {s(T[1])}
        s_lshl_b32 {s(T[4])}, {s(sRB)}, 15
        s_add_u32 {s(sXrd)}, {s(T[4])}, {XB}
        s_lshl_b32 {s(T[5])}, {s(sG)}, 11
        s_add_u32 {s(sOwr)}, {s(T[4])}, {s(T[5])}
        s_add_u32 {s(sOwr)}, {s(sOwr)}, {OB}
        s_lshl_b32 {s(T[4])}, {s(sRBO)}, 15
        s_lshl_b32 {s(T[5])}, {s(sJ)}, 11
        s_add_u32 {s(sXwr)}, {s(T[4])}, {s(T[5])}
        s_add_u32 {s(sXwr)}, {s(sXwr)}, {XB}
        s_lshl_b32 {s(T[5])}, {s(T[1])}, 14
        s_add_u32 {s(sOrd)}, {s(T[4])}, {s(T[5])}
        s_add_u32 {s(sOrd)}, {s(sOrd)}, {OB}
        s_lshl_b32 {s(sSTrd)}, {s(sRB)}, 12
        s_add_u32 {s(sSTrd)}, {s(sSTrd)}, {ST}
        s_lshl_b32 {s(sSTwr)}, {s(sRBO)}, 12
        s_and_b32 {s(T[4])}, {s(sG)}, 7
        s_lshl_b32 {s(T[5])}, {s(T[4])}, 9
        s_add_u32 {s(sSTwr)}, {s(sSTwr)}, {s(T[5])}
        s_lshl_b32 {s(T[5])}, {s(T[1])}, 3
        s_add_u32 {s(sSTwr)}, {s(sSTwr)}, {s(T[5])}
        s_add_u32 {s(sSTwr)}, {s(sSTwr)}, {ST}
        s_lshl_b32 {s(sWOg)}, {s(T[4])}, 7
        s_lshl_b32 {s(T[5])}, {s(T[1])}, 18
        s_add_u32 {s(sWOg)}, {s(sWOg)}, {s(T[5])}
        s_lshl_b32 {s(T[5])}, {s(T[0])}, 16
        s_add_u32 {s(sWOg)}, {s(sWOg)}, {s(T[5])}
        s_lshl_b32 {s(sWOl)}, {s(sW)}, 13
        s_lshl_b32 {s(sFXrd)}, {s(sRB)}, 7
        s_lshl_b32 {s(T[5])}, {s(sG)}, 2
        s_add_u32 {s(sFOwr)}, {s(sFXrd)}, {s(T[5])}
        s_add_u32 {s(sFXrd)}, {s(sFXrd)}, {FLG_X}
        s_lshl_b32 {s(sFOrd)}, {s(sRBO)}, 7
        s_lshl_b32 {s(T[5])}, {s(sJ)}, 2
        s_add_u32 {s(sFXwr)}, {s(sFOrd)}, {s(T[5])}
        s_add_u32 {s(sFXwr)}, {s(sFXwr)}, {FLG_X}
        s_mov_b32 {s(sONES)}, 0x3f803f80
        s_mov_b32 {s(sPERM)}, 0x07060302
        s_mov_b32 {s(sHI)}, 0xffff0000
        s_mov_b32 {s(sL2E)}, 0x3fb8aa3b
        s_mov_b32 {s(sL2E+1)}, 0x3fb8aa3b
        s_mov_b32 {s(sEPS6)}, 0x358637bd
        s_mov_b32 {s(sEPS6+1)}, 0x358637bd
        s_getreg_b32 {s(sXCC)}, hwreg(HW_REG_XCC_ID, 0, 3)
        s_lshl_b32 {s(sXCC)}, {s(sXCC)}, 2
        ''')
        t0, t1, t2 = vA1, vA1 + 1, vA1 + 2
        e(f'''
        v_lshlrev_b32 {v(vSTst)}, 4, {v(vTM)}
        v_lshl_add_u32 {v(vSTst)}, {v(vTM+1)}, 2, {v(vSTst)}
        v_lshrrev_b32 {v(t0)}, 3, {v(vLane)}
        v_and_b32 {v(t1)}, 1, {v(vTM+4)}
        v_lshlrev_b32 {v(t1)}, 2, {v(t1)}
        v_and_b32 {v(t2)}, 7, {v(vLane)}
        v_xor_b32 {v(t1)}, {v(t1)}, {v(t2)}
        v_lshlrev_b32 {v(t1)}, 4, {v(t1)}
        v_lshl_add_u32 {v(vWOdma)}, {v(t0)}, 10, {v(t1)}
        ''')
        e(f'''
        v_bfe_u32 {v(t0)}, {v(vLane)}, 2, 2
        v_lshl_add_u32 {v(t0)}, {v(vTM+1)}, 4, {v(t0)}
        v_lshlrev_b32 {v(t0)}, 6, {v(t0)}
        v_and_b32 {v(t1)}, 1, {v(vTM+4)}
        v_lshl_add_u32 {v(t0)}, {v(t1)}, 5, {v(t0)}
        v_and_b32 {v(t1)}, 1, {v(vLane)}
        v_lshl_add_u32 {v(t0)}, {v(t1)}, 4, {v(t0)}
        v_bfe_u32 {v(t1)}, {v(vLane)}, 1, 1
        v_lshl_add_u32 {v(t0)}, {v(t1)}, 3, {v(t0)}
        ''')
        for q in range(4):
            e(f'''
            s_xor_b32 {s(T[4])}, {s(sW)}, {q}
            s_lshl_b32 {s(T[5])}, {s(T[4])}, 10
            v_add_u32 {v(vXq+q)}, {s(T[5])}, {v(vL16)}
            s_lshr_b32 {s(T[5])}, {s(T[4])}, 1
            s_lshl_b32 {s(T[5])}, {s(T[5])}, 11
            s_and_b32 {s(T[4])}, {s(T[4])}, 1
            s_lshl_b32 {s(T[4])}, {s(T[4])}, 9
            s_add_u32 {s(T[4])}, {s(T[4])}, {s(T[5])}
            v_add_u32 {v(vWtr+q)}, {s(T[4])}, {v(t0)}
            ''')
        e(f'''
        s_lshl_b32 {s(T[4])}, {s(sW)}, 9
        s_add_u32 {s(T[4])}, {s(T[4])}, {L_PK}
        v_lshl_add_u32 {v(t0)}, {v(vTM)}, 4, {s(T[4])}
        v_mul_u32_u24 {v(t1)}, {PL}, {v(vTM+1)}
        v_add_u32 {v(vPKwA)}, {v(t0)}, {v(t1)}
        v_lshl_add_u32 {v(vPKwB)}, {v(t1)}, 2, {v(t0)}
        v_bfe_u32 {v(t0)}, {v(vLane)}, 1, 1
        v_mul_u32_u24 {v(t0)}, {PL}, {v(t0)}
        v_lshrrev_b32 {v(t1)}, 2, {v(vLane)}
        v_lshl_add_u32 {v(t0)}, {v(t1)}, 4, {v(t0)}
        v_and_b32 {v(t1)}, 1, {v(vLane)}
        v_lshl_add_u32 {v(t0)}, {v(t1)}, 3, {v(t0)}
        s_mul_i32 {s(T[4])}, {s(sW)}, {2*PL}
        s_add_u32 {s(T[4])}, {s(T[4])}, {L_PK}
        v_add_u32 {v(vPKrB)}, {s(T[4])}, {v(t0)}
        s_mul_i32 {s(T[4])}, {s(T[0])}, {2*PL}
        s_add_u32 {s(T[4])}, {s(T[4])}, {L_PK}
        v_add_u32 {v(vPKrA)}, {s(T[4])}, {v(t0)}
        ''')
        e(f'''
        s_mul_i32 {s(T[4])}, {s(sW)}, 544
        s_add_u32 {s(T[4])}, {s(T[4])}, {L_KV}
        v_lshl_add_u32 {v(t0)}, {v(vFl16)}, 3, {s(T[4])}
        v_lshl_add_u32 {v(vKVw)}, {v(vTM+4)}, 3, {v(t0)}
        v_lshrrev_b32 {v(t0)}, 1, {v(vFl16)}
        v_add_u32 {v(vZw)}, {s(T[4])}, {v(t0)}
        v_bfe_u32 {v(t0)}, {v(vLane)}, 2, 1
        v_lshl_add_u32 {v(t0)}, {v(t0)}, 3, {v(vTM+5)}
        v_bfe_u32 {v(t1)}, {v(vLane)}, 3, 1
        v_lshl_add_u32 {v(t0)}, {v(t1)}, 2, {v(t0)}
        v_cmp_gt_u32 vcc, 16, {v(vTM)}
        v_cndmask_b32 {v(t0)}, 16, {v(t0)}, vcc
        v_lshlrev_b32 {v(t0)}, 5, {v(t0)}
        v_add_u32 {v(t0)}, {L_KV}, {v(t0)}
        v_lshl_add_u32 {v(vKVrA)}, {v(vTM+1)}, 4, {v(t0)}
        v_mul_u32_u24 {v(t1)}, 1088, {v(vTM+1)}
        v_add_u32 {v(vKVrB)}, {v(t0)}, {v(t1)}
        v_lshlrev_b32 {v(t0)}, 2, {v(vFl16)}
        v_lshl_add_u32 {v(t0)}, {v(vTM+1)}, 8, {v(t0)}
        v_and_b32 {v(t1)}, 1, {v(vTM+4)}
        v_lshl_add_u32 {v(vE1st)}, {v(t1)}, 3, {v(t0)}
        v_lshl_add_u32 {v(vZst)}, {v(vTM+4)}, 26, {v(vFl16)}
        s_lshl_b32 {s(T[4])}, {s(sW)}, 12
        s_add_u32 {s(T[4])}, {s(T[4])}, {L_EX}
        v_add_u32 {v(vEXw)}, {s(T[4])}, {v(vL16)}
        ''')
        e(f'''
        v_and_b32 {v(t0)}, 1, {v(vLane)}
        v_lshlrev_b32 {v(t0)}, 4, {v(t0)}
        v_mov_b32 {v(t1)}, 0x3f80
        v_lshlrev_b32 {v(t0)}, {v(t0)}, {v(t1)}
        v_lshrrev_b32 {v(t1)}, 1, {v(vLane)}
        v_xor_b32 {v(t1)}, {v(t1)}, {v(vLane)}
        v_and_b32 {v(t1)}, 8, {v(t1)}
        v_bfe_u32 {v(t2)}, {v(vLane)}, 1, 2
        v_or_b32 {v(t1)}, {v(t1)}, {v(t2)}
        ''')
        for d in range(4):
            e(f'v_cmp_eq_u32 vcc, {d}, {v(t1)}\nv_cndmask_b32 {v(vSEL+d)}, 0, {v(t0)}, vcc')
        e.wait(vm=tx)
        self.stamp('xblk')
        e(f'buffer_store_dwordx4 {v(vRES,4)}, {v(vL16)}, {s(sWS,4)}, {s(sXwr)} offen')
        e(f'buffer_store_dwordx4 {v(vRES+4,4)}, {v(vL16)}, {s(sWS,4)}, {s(sXwr)} offen offset:1024')
        self.x_stats()
        e(f'buffer_store_dword {v(vTM)}, {v(vSTst)}, {s(sWS,4)}, {s(sSTwr)} offen')
        e(f'''
        s_lshl_b32 {s(T[4])}, 1, {s(sXCC)}
        v_mov_b32 {v(vTM+2)}, {s(T[4])}
        s_lshr_b32 {s(T[5])}, {s(sG)}, 3
        s_lshl_b32 {s(T[4])}, {s(sR)}, 1
        s_add_u32 {s(T[5])}, {s(T[5])}, {s(T[4])}
        s_lshl_b32 {s(T[5])}, {s(T[5])}, 2
        s_lshl_b32 {s(T[3])}, {s(sR)}, 3
        v_and_b32 {v(vTM+3)}, 4, {v(vL4)}
        ''')
        e(f'''
        s_lshl_b32 {s(sBUD)}, {s(sBUD)}, 1
        s_lshl_b32 {s(sMODE)}, {s(sMODE)}, 1
        s_sub_u32 {s(sWg0)}, {s(sWg0)}, {s(sBUD)}
        s_sub_u32 {s(sWg1)}, {s(sWg1)}, {s(sBUD)}
        s_sub_u32 {s(sWl0)}, {s(sWl0)}, {s(sMODE)}
        s_sub_u32 {s(sWl1)}, {s(sWl1)}, {s(sMODE)}
        ''')
        e.wait_all_vm()
        e('s_barrier')
        e(f's_cmp_lg_u32 {s(sW)}, 0\ns_cbranch_scc1 L_noat')
        e(f's_mov_b64 exec, 1\nbuffer_atomic_add {v(vTM+2)}, off, {s(sDBG,4)}, {s(T[5])}\ns_mov_b64 exec, -1')
        e('L_noat:')
        self.stamp('atomic')
        for n in range(8): self.dma_w(0, 2, 1, n)
        e(f'''
        s_lshr_b32 {s(sBUD)}, {s(sBUD)}, 1
        s_lshr_b32 {s(sMODE)}, {s(sMODE)}, 1
        s_add_u32 {s(sWg0)}, {s(sWg0)}, {s(sBUD)}
        s_add_u32 {s(sWg1)}, {s(sWg1)}, {s(sBUD)}
        s_add_u32 {s(sWl0)}, {s(sWl0)}, {s(sMODE)}
        s_add_u32 {s(sWl1)}, {s(sWl1)}, {s(sMODE)}
        s_mov_b32 {s(sBUD)}, 100000
        s_mov_b32 {s(T[2])}, 0x11111111
        s_lshl_b32 {s(T[1])}, 8, {s(sXCC)}
        ''')
        e(f's_lshl_b32 {s(T[4])}, {s(sG)}, 10\ns_mov_b32 m0, {L_WP}')
        e(f'buffer_load_dwordx4 {v(vL16)}, {s(sWP,4)}, {s(T[4])} offen lds')
        e('L_grp:')
        e(f'buffer_load_dword {v(vTM)}, {v(vTM+3)}, {s(sDBG,4)}, {s(T[3])} offen sc1')
        e(f's_sub_u32 {s(sBUD)}, {s(sBUD)}, 1\ns_cbranch_scc1 L_fail')
        e.wait_all_vm()
        e(f'v_dot8_u32_u4 {v(vTM+1)}, {v(vTM)}, {s(T[2])}, 0')
        e(f'v_cmp_ne_u32 vcc, 8, {v(vTM+1)}\ns_cbranch_vccnz L_grp')
        e(f'v_cmp_ne_u32 vcc, {s(T[1])}, {v(vTM)}')
        e(f's_mov_b32 {s(sMODE)}, 0\ns_mov_b32 {s(sSTR)}, 0')
        if self.o.force_safe:
            e('s_branch L_init_safe')
        else:
            e('s_cbranch_vccnz L_init_safe')
        e('L_init_join:')
        e('s_barrier')
        save = self.e
        t = self.e = Asm()
        t(f'L_init_safe:\ns_mov_b32 {s(sMODE)}, 1\ns_mov_b32 {s(sSTR)}, {EXSTRIDE}')
        for r in (sXrd, sXwr, sSTrd, sSTwr, sOrd, sOwr): t(f's_add_u32 {s(r)}, {s(r)}, {s(sSTR)}')
        self.x_stats()
        t(f'buffer_store_dwordx4 {v(vRES,4)}, {v(vL16)}, {s(sWS,4)}, {s(sXwr)} offen sc1')
        t(f'buffer_store_dwordx4 {v(vRES+4,4)}, {v(vL16)}, {s(sWS,4)}, {s(sXwr)} offen offset:1024 sc1')
        t(f'buffer_store_dword {v(vTM)}, {v(vSTst)}, {s(sWS,4)}, {s(sSTwr)} offen sc1')
        t(f'v_mov_b32 {v(vTM+2)}, 1')
        t.wait_all_vm()
        t(f's_mov_b64 exec, 1\nbuffer_store_dword {v(vTM+2)}, off, {s(sWS,4)}, {s(sFXwr)} sc1\ns_mov_b64 exec, -1')
        self.poll('pollx_init', sFXrd, 1)
        t('s_branch L_init_join')
        self.tail.append(t)
        self.e = save
        self.stamp('grp')

    def cs_write(self, acc, blk):
        e = self.e
        t = vTM + 6
        e(f'v_and_b32 {v(t)}, 31, {v(vLane)}\nv_lshlrev_b32 {v(t)}, 5, {v(t)}\nv_lshrrev_b32 {v(t+1)}, 5, {v(vLane)}')
        e(f'v_lshl_add_u32 {v(t+1)}, {v(t+1)}, 2, {v(t)}\ns_lshl_b32 {s(sT[3])}, {s(sW)}, 3\ns_add_u32 {s(sT[3])}, {s(sT[3])}, {L_CS}')
        e(f'v_add_u32 {v(t+1)}, {s(sT[3])}, {v(t+1)}\nv_add_u32 {v(t)}, {L_CS}, {v(t)}')
        tag = None
        for ac, b in zip(acc, blk):
            tag = e(f'ds_write_b32 {v(t+1)}, {v(ac)} offset:{b*1024}')
        return tag
    def cs_read(self, blk, dst):
        e = self.e
        e(f'ds_read_b128 {v(dst,4)}, {v(vTM+6)} offset:{blk*1024}')
        return e(f'ds_read_b128 {v(dst+4,4)}, {v(vTM+6)} offset:{blk*1024+16}')
    def cs_pack(self, src, out):
        e = self.e
        e(f'''
        v_pk_add_f32 {v(src,2)}, {v(src,2)}, {v(src+2,2)}
        v_pk_add_f32 {v(src+4,2)}, {v(src+4,2)}, {v(src+6,2)}
        v_pk_add_f32 {v(src,2)}, {v(src,2)}, {v(src+4,2)}
        v_add_f32 {v(src)}, {v(src)}, {v(src+1)}
        v_and_b32 {v(src+1)}, {s(sHI)}, {v(src)}
        v_sub_f32 {v(src+1)}, {v(src)}, {v(src+1)}
        v_perm_b32 {v(out)}, {v(src+1)}, {v(src)}, {s(sPERM)}
        v_and_b32 {v(src+2)}, {s(sHI)}, {v(src+1)}
        v_sub_f32 {v(src+2)}, {v(src+1)}, {v(src+2)}
        v_lshrrev_b32 {v(out+1)}, 16, {v(src+2)}
        ''')

    def stats_ops(self):
        b = vXF + 112
        ops = []
        for i in range(4): ops.append(f'v_pk_add_f32 {v(b+4*i,2)}, {v(b+4*i,2)}, {v(b+4*i+2,2)}')
        ops += [f'v_pk_add_f32 {v(b,2)}, {v(b,2)}, {v(b+4,2)}', f'v_pk_add_f32 {v(b+8,2)}, {v(b+8,2)}, {v(b+12,2)}',
                f'v_pk_add_f32 {v(b,2)}, {v(b,2)}, {v(b+8,2)}',
                f'v_mov_b32 {v(b+2)}, {v(b)}', f'v_mov_b32 {v(b+3)}, {v(b+1)}',
                f'v_permlane32_swap_b32 {v(b)}, {v(b+2)}', f'v_permlane32_swap_b32 {v(b+1)}, {v(b+3)}',
                f'v_pk_add_f32 {v(b,2)}, {v(b,2)}, {v(b+2,2)}',
                f'v_mul_f32 {v(b)}, 0xbb000000, {v(b)}',
                f'v_mul_f32 {v(b+1)}, 0x3b000000, {v(b+1)}',
                f'v_fma_f32 {v(b+1)}, -{v(b)}, {v(b)}, {v(b+1)}',
                f'v_max_f32 {v(b+1)}, 0, {v(b+1)}',
                f'v_add_f32 {v(b+1)}, 0x3727c5ac, {v(b+1)}',
                f'v_rsq_f32 {v(vRS)}, {v(b+1)}',
                f'v_and_b32 {v(b+2)}, {s(sHI)}, {v(b)}',
                f'v_sub_f32 {v(b+2)}, {v(b)}, {v(b+2)}',
                f'v_cmp_gt_u32 vcc, 32, {v(vLane)}',
                f'v_mul_f32 {v(vRS+1)}, {s(sL2E)}, {v(vRS)}',
                f'v_cndmask_b32 {v(b)}, {v(b+2)}, {v(b)}, vcc',
                f'v_perm_b32 {v(vMF)}, {v(b)}, {v(b)}, {s(sPERM)}',
                f'v_lshrrev_b32 {v(vMF+1)}, 16, {v(b)}']
        return ops

    def tr_w(self, dst, ks, extra):
        e = self.e
        off = (ks >> 2) * 4096 + extra
        e(f'ds_read_b64_tr_b16 {v(dst,2)}, {v(vWtr + (ks&3))} offset:{off}')
        return e(f'ds_read_b64_tr_b16 {v(dst+2,2)}, {v(vWtr + (ks&3))} offset:{off+256}')

    def kv_gemm(self, l, slot, dma):
        e = self.e; typ = l & 1; first = l < 2
        self.set_wtr(slot)
        xt = [None] * 32
        def xload(k):
            if k % 4 == 0: e(f's_add_u32 {s(sT[0])}, {s(sXrd)}, {k*1024}')
            xt[k] = e(f'buffer_load_dwordx4 {v(vXF+4*k,4)}, {v(vXq+(k&3))}, {s(sWS,4)}, {s(sT[0])} offen sc1')
        PRE = self.o.xpre
        assert PRE <= 9
        for k in range(PRE): xload(k)
        wt = [None] * 32
        def wread(k):
            b = vWB + (k % 3) * 8
            self.tr_w(b, k, 0)
            wt[k] = self.tr_w(b + 4, k, SLOT)
        wread(0); wread(1)
        stt = None
        sops = self.stats_ops()
        dl = self.dma_list(dma)
        csK, csV = vTM, vTM + 1
        cK, cV = vCS + typ*6 + 2, vCS + typ*6 + 4
        for k in range(32):
            if k + PRE < 32: xload(k + PRE)
            elif dl: self.dma_item(*dl.pop(0))
            if k < 4:
                stt = e(f'buffer_load_dwordx4 {v(vXF+112+4*k,4)}, {v(vL16)}, {s(sWS,4)}, {s(sSTrd)} offen offset:{k*1024} sc1')
            if k + 2 < 32: wread(k + 2)
            e.wait(vm=xt[k], lg=wt[k])
            if k == 0: self.stamp(f'L{l}.x0')
            b = vWB + (k % 3) * 8
            e(f'v_mfma_f32_32x32x16_bf16 {v(vA0,16)}, {v(b,4)}, {v(vXF+4*k,4)}, {v(vA0,16) if k else 0}')
            if first and k % 4 == 0:
                for i in range(4): e(f'v_dot2_f32_bf16 {v(csK)}, {v(b+i)}, {s(sONES)}, {v(csK) if (k or i) else 0}')
            if 13 <= k < 19:
                if k == 13: e.wait(vm=stt)
                for _ in range(3):
                    if sops: e(sops.pop(0))
            e(f'v_mfma_f32_32x32x16_bf16 {v(vA1,16)}, {v(b+4,4)}, {v(vXF+4*k,4)}, {v(vA1,16) if k else 0}')
            if first and k % 4 == 0:
                for i in range(4): e(f'v_dot2_f32_bf16 {v(csV)}, {v(b+4+i)}, {s(sONES)}, {v(csV) if (k or i) else 0}')
            if 13 <= k < 19:
                for _ in range(2):
                    if sops: e(sops.pop(0))
            if k == 19:
                assert not sops
                if not first:
                    e(f'v_mfma_f32_32x32x8_bf16 {v(vA0,16)}, {v(cK,2)}, {v(vMF,2)}, {v(vA0,16)}')
                    e(f'v_mfma_f32_32x32x8_bf16 {v(vA1,16)}, {v(cV,2)}, {v(vMF,2)}, {v(vA1,16)}')
            if first and k == 28:
                cw = self.cs_write([csK, csV], [1, 2])
            if first and k == 29:
                e.wait(lg=cw); e('s_barrier')
            if first and k == 30:
                r1 = self.cs_read(1, vWB + 16)
        while dl: self.dma_item(*dl.pop(0))
        if first:
            r2 = self.cs_read(2, vWB)
            e.wait(lg=r1); self.cs_pack(vWB + 16, cK)
            e(f'v_mfma_f32_32x32x8_bf16 {v(vA0,16)}, {v(cK,2)}, {v(vMF,2)}, {v(vA0,16)}')
            e.wait(lg=r2); self.cs_pack(vWB, cV)
            e(f'v_mfma_f32_32x32x8_bf16 {v(vA1,16)}, {v(cV,2)}, {v(vMF,2)}, {v(vA1,16)}')
        self.stamp(f'L{l}.kvgemm')

    def scale_pack(self, acc, out):
        e = self.e
        for i in range(8):
            e(f'v_pk_mul_f32 {v(acc+2*i,2)}, {v(acc+2*i,2)}, {v(vRS,2)} op_sel_hi:[1,0]')
        for i in range(8):
            e(f'v_cvt_pk_bf16_f32 {v(out+i)}, {v(acc+2*i)}, {v(acc+2*i+1)}')
    def phi_a(self, acc, tmp, out, after=None):
        e = self.e
        for hh in range(2):
            r = range(4*hh, 4*hh+4)
            for i in r: e(f'v_pk_mul_f32 {v(tmp+2*i,2)}, {v(acc+2*i,2)}, {v(vRS,2)} op_sel:[0,1] op_sel_hi:[1,1]')
            for i in r:
                e(f'v_exp_f32_e64 {v(tmp+2*i)}, {v(tmp+2*i)} clamp')
                e(f'v_exp_f32_e64 {v(tmp+2*i+1)}, {v(tmp+2*i+1)} clamp')
            for i in r: e(f'v_pk_fma_f32 {v(acc+2*i,2)}, {v(acc+2*i,2)}, {v(vRS,2)}, 1.0 op_sel_hi:[1,0,0]')
            for i in r:
                e(f'v_max_f32 {v(acc+2*i)}, {v(acc+2*i)}, {v(tmp+2*i)}')
                e(f'v_max_f32 {v(acc+2*i+1)}, {v(acc+2*i+1)}, {v(tmp+2*i+1)}')
            for i in r: e(f'v_pk_add_f32 {v(acc+2*i,2)}, {v(acc+2*i,2)}, {s(sEPS6,2)}')
            for i in r: e(f'v_cvt_pk_bf16_f32 {v(out+i)}, {v(acc+2*i)}, {v(acc+2*i+1)}')
            if after: after(hh)
    def softmax16(self, p, tm, out):
        e = self.e
        e(f'v_max3_f32 {v(tm)}, {v(p)}, {v(p+1)}, {v(p+2)}')
        e(f'v_max3_f32 {v(tm+1)}, {v(p+3)}, {v(p+4)}, {v(p+5)}')
        e(f'v_max3_f32 {v(tm)}, {v(tm)}, {v(p+6)}, {v(p+7)}')
        e(f'v_max3_f32 {v(tm+1)}, {v(tm+1)}, {v(p+8)}, {v(p+9)}')
        e(f'v_max3_f32 {v(tm)}, {v(tm)}, {v(p+10)}, {v(p+11)}')
        e(f'v_max3_f32 {v(tm+1)}, {v(tm+1)}, {v(p+12)}, {v(p+13)}')
        e(f'v_max3_f32 {v(tm)}, {v(tm)}, {v(p+14)}, {v(p+15)}')
        e(f'v_max_f32 {v(tm)}, {v(tm)}, {v(tm+1)}')
        e(f'v_mul_f32 {v(tm)}, {s(sL2E)}, {v(tm)}')
        for i in range(8):
            e(f'v_pk_fma_f32 {v(p+2*i,2)}, {v(p+2*i,2)}, {s(sL2E,2)}, {v(tm,2)} op_sel_hi:[1,1,0] neg_lo:[0,0,1] neg_hi:[0,0,1]')
        for i in range(16): e(f'v_exp_f32 {v(p+i)}, {v(p+i)}')
        for i in range(4): e(f'v_pk_add_f32 {v(tm+2*i,2)}, {v(p+4*i,2)}, {v(p+4*i+2,2)}')
        e(f'v_pk_add_f32 {v(tm,2)}, {v(tm,2)}, {v(tm+2,2)}')
        e(f'v_pk_add_f32 {v(tm+4,2)}, {v(tm+4,2)}, {v(tm+6,2)}')
        e(f'v_pk_add_f32 {v(tm,2)}, {v(tm,2)}, {v(tm+4,2)}')
        e(f'v_add_f32 {v(tm)}, {v(tm)}, {v(tm+1)}')
        e(f'v_rcp_f32 {v(tm)}, {v(tm)}')
        for i in range(8): e(f'v_pk_mul_f32 {v(p+2*i,2)}, {v(p+2*i,2)}, {v(tm,2)} op_sel_hi:[1,0]')
        for i in range(8): e(f'v_cvt_pk_bf16_f32 {v(out+i)}, {v(p+2*i)}, {v(p+2*i+1)}')

    def kv_epilogue(self, l, need_vm):
        e = self.e; typ = l & 1
        self.dump(f'L{l}.kv', [v(vA0+i) for i in range(32)] + [v(vRS)])
        if typ == 0:
            def wr(hh): e(f'ds_write_b128 {v(vPKwA)}, {v(vTM+4*hh,4)} offset:{2*hh*PL}')
            self.phi_a(vA0, vWB, vTM, wr)
            self.scale_pack(vA1, vA1)
            e(f'ds_write_b128 {v(vPKwA)}, {v(vA1,4)} offset:{8*PL}')
            e(f'ds_write_b128 {v(vPKwA)}, {v(vA1+4,4)} offset:{10*PL}')
        else:
            self.scale_pack(vA0, vTM)
            e(f'v_mfma_f32_32x32x16_bf16 {v(vA0,16)}, {v(vWPH,4)}, {v(vTM,4)}, 0')
            e(f'v_mfma_f32_32x32x16_bf16 {v(vWB,16)}, {v(vWPH+4,4)}, {v(vTM+4,4)}, 0')
            self.scale_pack(vA1, vA1)
            e(f'ds_write_b128 {v(vPKwA)}, {v(vA1,4)} offset:{8*PL}')
            e(f'ds_write_b128 {v(vPKwA)}, {v(vA1+4,4)} offset:{10*PL}')
            for hh, p in ((0, vA0), (1, vWB)):
                self.softmax16(p, vTM, p)
                e(f'ds_write_b128 {v(vPKwB)}, {v(p,4)} offset:{(2*hh)*PL}')
                e(f'ds_write_b128 {v(vPKwB)}, {v(p+4,4)} offset:{(2*hh+1)*PL}')
        ones = vTM + 4
        for i in range(4): e(f'v_mov_b32 {v(ones+i)}, {s(sONES)}')
        if need_vm is not None: e.wait(vm=need_vm)
        e.wait_all_lg()
        e('s_barrier')
        self.stamp(f'L{l}.B1')
        pr = vPKrA if typ == 0 else vPKrB
        if typ == 0: e(f's_cmp_lg_u32 {s(sSKIP)}, 0\ns_cbranch_scc1 L_skip{l}')
        tags = []
        for st in range(4):
            e(f'ds_read_b64_tr_b16 {v(vA0+4*st,2)}, {v(pr)} offset:{st*512}')
            e(f'ds_read_b64_tr_b16 {v(vA0+4*st+2,2)}, {v(pr)} offset:{st*512+256}')
            e(f'ds_read_b64_tr_b16 {v(vA1+4*st,2)}, {v(vPKrA)} offset:{8*PL+st*512}')
            tags.append(e(f'ds_read_b64_tr_b16 {v(vA1+4*st+2,2)}, {v(vPKrA)} offset:{8*PL+st*512+256}'))
        ckv, cz = vWB + 16, vWB + 20
        for st in range(4):
            e.wait(lg=tags[st])
            e(f'v_mfma_f32_16x16x32_bf16 {v(ckv,4)}, {v(vA0+4*st,4)}, {v(vA1+4*st,4)}, {v(ckv,4) if st else 0}')
            e(f'v_mfma_f32_16x16x32_bf16 {v(cz,4)}, {v(ones,4)}, {v(vA0+4*st,4)}, {v(cz,4) if st else 0}')
        sk, sz = sKVwrB, sZwrB
        e(f's_add_u32 {s(sT[0])}, {s(sk)}, {l*0x80000}\ns_add_u32 {s(sT[1])}, {s(sz)}, {l*0x10000}')
        e(f'v_cvt_pk_bf16_f32 {v(vTM)}, {v(ckv)}, {v(ckv+1)}\nv_cvt_pk_bf16_f32 {v(vTM+1)}, {v(ckv+2)}, {v(ckv+3)}')
        e(f'v_min_u32 {v(vTM)}, -2, {v(vTM)}\nv_min_u32 {v(vTM+1)}, -2, {v(vTM+1)}')
        e(f'buffer_store_dwordx2 {v(vTM,2)}, {v(vE1st)}, {s(sWS,4)}, {s(sT[0])} offen sc1')
        e(f'v_min_u32 {v(vTM+2)}, -2, {v(cz)}')
        e(f'buffer_store_dword {v(vTM+2)}, {v(vZst)}, {s(sWS,4)}, {s(sT[1])} offen sc1')
        if typ == 0: e(f'L_skip{l}:')
        self.stamp(f'L{l}.pub1')

    def e1_loads(self, e, l):
        typ = l & 1
        nk, nz = (4, 2) if typ == 0 else (8, 4)
        sk, sz = (sKVrdA, sZrdA) if typ == 0 else (sKVrdB, sZrdB)
        e(f's_add_u32 {s(sT[1])}, {s(sz)}, {l*0x10000}')
        zt = None
        for t in range(nz):
            zt = e(f'buffer_load_dword {v(vXF+32+t)}, {v(vL4)}, {s(sWS,4)}, {s(sT[1])} offen offset:{t*256} sc1')
        tags = []
        for p in range(nk):
            if p % 4 == 0: e(f's_add_u32 {s(sT[0])}, {s(sk)}, {l*0x80000 + p*1024}')
            tags.append(e(f'buffer_load_dwordx4 {v(vXF+4*p,4)}, {v(vL16)}, {s(sWS,4)}, {s(sT[0])} offen offset:{(p&3)*1024} sc1'))
        return zt, tags

    def q_phase(self, l, slot, dma1, dma2):
        e = self.e; typ = l & 1; first = l < 2
        self.set_wtr(slot)
        wt = [None] * 32
        def wread(k): wt[k] = self.tr_w(vWB + (k % 6) * 4, k, 0)
        for k in range(4): wread(k)
        dl = self.dma_list(dma1)
        csQ = vTM; cQ = vCS + typ * 6
        if l == 0:
            e(f'v_and_b32 {v(vTM+3)}, 0x7c, {v(vL4)}')
            dbt = e(f'buffer_load_dword {v(vTM+2)}, {v(vTM+3)}, {s(sDBG,4)}, 0 offen sc1')
            e(f'buffer_load_dword {v(vTM+4)}, {v(vFl16)}, {s(sWS,4)}, {s(sFOrd)} offen sc1')
            e(f'buffer_load_dword {v(vTM+4)}, {v(vFl16)}, {s(sWS,4)}, {s(sFXrd)} offen sc1')
        E1AT = self.o.e1at
        for k in range(32):
            if dl and k < E1AT: self.dma_item(*dl.pop(0))
            if k == E1AT:
                while dl: self.dma_item(*dl.pop(0))
                if l == 0:
                    e.wait(vm=dbt)
                    e(f's_mov_b32 {s(sT[2])}, 0x11111111')
                    e('L_all_chk:')
                    e(f'v_dot8_u32_u4 {v(vTM+2)}, {v(vTM+2)}, {s(sT[2])}, 0')
                    e(f'v_cmp_ne_u32 vcc, 8, {v(vTM+2)}\ns_cbranch_vccnz L_all_retry')
                    t = Asm()
                    t(f'L_all_retry:\nbuffer_load_dword {v(vTM+2)}, {v(vTM+3)}, {s(sDBG,4)}, 0 offen sc1')
                    t(f's_sub_u32 {s(sBUD)}, {s(sBUD)}, 1\ns_cbranch_scc1 L_fail\ns_waitcnt vmcnt(0)\ns_branch L_all_chk')
                    self.tail.append(t)
                zt, kt = self.e1_loads(e, l)
            if k + 4 < 32: wread(k + 4)
            e.wait(lg=wt[k])
            b = vWB + (k % 6) * 4
            e(f'v_mfma_f32_32x32x16_bf16 {v(vA0,16)}, {v(b,4)}, {v(vXF+4*k,4)}, {v(vA0,16) if k else 0}')
            if k == 0 and not first:
                e(f'v_mfma_f32_32x32x8_bf16 {v(vA0,16)}, {v(cQ,2)}, {v(vMF,2)}, {v(vA0,16)}')
            if first and k % 4 == 0:
                for i in range(4): e(f'v_dot2_f32_bf16 {v(csQ)}, {v(b+i)}, {s(sONES)}, {v(csQ) if (k or i) else 0}')
            if first and k == 28: cw = self.cs_write([csQ], [0])
            if first and k == 30:
                e.wait(lg=cw); e('s_barrier')
                r0 = self.cs_read(0, vA1)
        if first:
            e.wait(lg=r0); self.cs_pack(vA1, cQ)
            e(f'v_mfma_f32_32x32x8_bf16 {v(vA0,16)}, {v(cQ,2)}, {v(vMF,2)}, {v(vA0,16)}')
        self.stamp(f'L{l}.qgemm')
        self.dump(f'L{l}.q', [v(vA0+i) for i in range(16)])
        PQ = vXF + 64
        if typ == 0:
            self.phi_a(vA0, vWB, PQ)
        else:
            self.scale_pack(vA0, vTM)
            e(f'v_mfma_f32_32x32x16_bf16 {v(vA0,16)}, {v(vWPH,4)}, {v(vTM,4)}, 0')
            e(f'v_mfma_f32_32x32x16_bf16 {v(vA1,16)}, {v(vWPH+4,4)}, {v(vTM+4,4)}, 0')
            self.softmax16(vA0, vWB, PQ)
            self.softmax16(vA1, vWB, PQ + 8)
        self.stamp(f'L{l}.phiq')
        nk, nz = (4, 2) if typ == 0 else (8, 4)
        C = vWB; mx = vTM; z = vXF + 32
        e(f'L_e1c{l}:')
        e.wait(vm=zt)
        if nz == 2:
            e(f'v_max_u32 {v(mx)}, {v(z)}, {v(z+1)}\nv_add_f32 {v(z)}, {v(z)}, {v(z+1)}')
        else:
            e(f'v_max3_u32 {v(mx)}, {v(z)}, {v(z+1)}, {v(z+2)}\nv_max_u32 {v(mx)}, {v(mx)}, {v(z+3)}')
            e(f'v_pk_add_f32 {v(z,2)}, {v(z,2)}, {v(z+2,2)}\nv_add_f32 {v(z)}, {v(z)}, {v(z+1)}')
        e(f'v_mov_b32 {v(z+1)}, {v(z)}\nv_permlane16_swap_b32 {v(z)}, {v(z+1)}\nv_add_f32 {v(z)}, {v(z)}, {v(z+1)}')
        e(f'v_mov_b32 {v(z+1)}, {v(z)}\nv_permlane32_swap_b32 {v(z)}, {v(z+1)}\nv_add_f32 {v(z)}, {v(z)}, {v(z+1)}')
        e(f'v_cvt_pk_bf16_f32 {v(z)}, {v(z)}, {v(z)}')
        e(f'ds_write_b16 {v(vZw)}, {v(z)} offset:512')
        for p in range(nk):
            e.wait(vm=kt[p])
            b = vXF + 4*p
            e(f'v_mfma_f32_16x16x32_bf16 {v(C,4)}, {v(vSEL,4)}, {v(b,4)}, {v(C,4) if p else 0}')
            e(f'v_max3_u32 {v(mx)}, {v(mx)}, {v(b)}, {v(b+1)}\nv_max3_u32 {v(mx)}, {v(mx)}, {v(b+2)}, {v(b+3)}')
        e(f'v_cmp_eq_u32 vcc, -1, {v(mx)}\ns_cbranch_vccnz L_e1r{l}')
        t = Asm()
        t(f'L_e1r{l}:\ns_nop 7')
        self.e1_loads(t, l)
        t(f's_sub_u32 {s(sBUD)}, {s(sBUD)}, 1\ns_cbranch_scc1 L_fail\ns_waitcnt vmcnt(0)\ns_branch L_e1c{l}')
        self.tail.append(t)
        self.stamp(f'L{l}.e1')
        dl = self.dma_list(dma2)
        e(f'v_cvt_pk_bf16_f32 {v(vTM)}, {v(C)}, {v(C+1)}\nv_cvt_pk_bf16_f32 {v(vTM+1)}, {v(C+2)}, {v(C+3)}')
        e(f'ds_write_b64 {v(vKVw)}, {v(vTM,2)}')
        for _ in range(2):
            if dl: self.dma_item(*dl.pop(0))
        e.wait_all_lg()
        e('s_barrier')
        KF = vWB + 8
        kr = vKVrA if typ == 0 else vKVrB
        tg = []
        for hh in range(2):
            for u in range(2):
                off = (2*u + hh) * 544 if typ == 0 else hh * 544 + u * 16
                tg.append(e(f'ds_read_b128 {v(KF + 4*(2*hh+u),4)}, {v(kr)} offset:{off}'))
        for _ in range(3):
            if dl: self.dma_item(*dl.pop(0))
        for hh in range(2):
            acc = (vA0, vA1)[hh]
            for u in range(2):
                e.wait(lg=tg[2*hh+u])
                pq = PQ + 4*hh if typ == 0 else PQ + 8*hh + 4*u
                e(f'v_mfma_f32_32x32x16_bf16 {v(acc,16)}, {v(KF+4*(2*hh+u),4)}, {v(pq,4)}, {v(acc,16) if u else 0}')
        while dl: self.dma_item(*dl.pop(0))
        for hh in range(2):
            acc = (vA0, vA1)[hh]
            e(f'v_add_f32 {v(acc+8)}, {s(sEPS6)}, {v(acc+8)}\nv_rcp_f32 {v(acc+8)}, {v(acc+8)}')
            for i in range(4): e(f'v_pk_mul_f32 {v(acc+2*i,2)}, {v(acc+2*i,2)}, {v(acc+8,2)} op_sel_hi:[1,0]')
            for i in range(4): e(f'v_cvt_pk_bf16_f32 {v(vTM+4*hh+i)}, {v(acc+2*i)}, {v(acc+2*i+1)}')
        self.dump(f'L{l}.o', [v(vTM+i) for i in range(8)])
        def st(e, m):
            e(f'buffer_store_dwordx4 {v(vTM,4)}, {v(vL16)}, {s(sWS,4)}, {s(sOwr)} offen{m}')
            e(f'buffer_store_dwordx4 {v(vTM+4,4)}, {v(vL16)}, {s(sWS,4)}, {s(sOwr)} offen offset:1024{m}')
            e(f'v_mov_b32 {v(vWB)}, {l+1}')
            e.wait_all_vm()
            e(f's_mov_b64 exec, 1\nbuffer_store_dword {v(vWB)}, off, {s(sWS,4)}, {s(sFOwr)}{m}\ns_mov_b64 exec, -1')
        self.modal(f'po{l}', st)
        self.stamp(f'L{l}.pub2')

    def o_proj(self, l, wo_slots, dma):
        e = self.e; typ = l & 1
        AW = 128 * typ
        if l == 0:
            t0, t1 = vTM, vTM + 1
            e(f'''
            v_bfe_u32 {v(t0)}, {v(vLane)}, 2, 2
            v_lshrrev_b32 {v(t1)}, 5, {v(vLane)}
            v_lshl_add_u32 {v(t0)}, {v(t1)}, 3, {v(t0)}
            v_lshlrev_b32 {v(t0)}, 5, {v(t0)}
            v_bfe_u32 {v(t1)}, {v(vLane)}, 4, 1
            v_lshl_add_u32 {v(t0)}, {v(t1)}, 4, {v(t0)}
            v_bfe_u32 {v(t1)}, {v(vLane)}, 1, 1
            v_lshl_add_u32 {v(t0)}, {v(t1)}, 3, {v(t0)}
            v_add_u32 {v(t0)}, {L_WP}, {v(t0)}
            ''')
            for hh in range(2):
                for t in range(2):
                    tw = e(f'ds_read_b64_tr_b16 {v(vWPH+4*hh+2*t,2)}, {v(t0)} offset:{hh*512 + t*128}')
            e(f'v_bfe_u32 {v(t1)}, {v(vLane)}, 2, 1\nv_mul_u32_u24 {v(t1)}, 0x8000, {v(t1)}\nv_lshl_or_b32 {v(t1)}, {v(t1)}, 16, {v(t1)}')
            e.wait(lg=tw)
            for i in range(8): e(f'v_xor_b32 {v(vWPH+i)}, {v(t1)}, {v(vWPH+i)}')
        if wo_slots:
            t0, t1, t2 = vTM, vTM + 1, vTM + 2
            e(f'''
            s_lshr_b32 {s(sT[0])}, {s(sW)}, 1
            s_lshl_b32 {s(sT[1])}, {s(sT[0])}, 14
            v_bfe_u32 {v(t0)}, {v(vLane)}, 2, 2
            v_lshrrev_b32 {v(t1)}, 5, {v(vLane)}
            v_lshl_add_u32 {v(t0)}, {v(t1)}, 3, {v(t0)}
            v_lshl_add_u32 {v(t0)}, {v(t0)}, 7, {s(sT[1])}
            v_bfe_u32 {v(t1)}, {v(vLane)}, 3, 1
            v_xor_b32 {v(t1)}, {s(sT[0])}, {v(t1)}
            v_lshl_add_u32 {v(t0)}, {v(t1)}, 6, {v(t0)}
            v_and_b32 {v(t1)}, 1, {v(vLane)}
            v_lshl_add_u32 {v(t0)}, {v(t1)}, 5, {v(t0)}
            v_bfe_u32 {v(t1)}, {v(vLane)}, 4, 1
            v_lshl_add_u32 {v(t0)}, {v(t1)}, 4, {v(t0)}
            v_bfe_u32 {v(t1)}, {v(vLane)}, 1, 1
            v_lshl_add_u32 {v(t0)}, {v(t1)}, 3, {v(t0)}
            ''')
            for half in range(2):
                e(f'v_add_u32 {v(t1)}, {wo_slots[half]*SLOT}, {v(t0)}\nv_xor_b32 {v(t2)}, 64, {v(t1)}')
                for hh in range(8):
                    ks = half * 8 + hh
                    for own, ad in ((0, t1), (1, t2)):
                        for t in range(2):
                            e(f'ds_read_b64_tr_b16 {a(AW + ks*8 + own*4 + 2*t, 2)}, {v(ad)} offset:{hh*2048 + t*512}')
        for i in range(8):
            e(f'v_lshlrev_b32 {v(vA0+2*i)}, 16, {v(vRES+i)}\nv_and_b32 {v(vA0+2*i+1)}, {s(sHI)}, {v(vRES+i)}')
        e.wait_all_lg()
        self.stamp(f'L{l}.pre2')
        self.poll(f'pollo{l}', sFOrd, l + 1)
        self.stamp(f'L{l}.poll2')
        ot = [None] * 16
        def oload(k):
            if k % 4 == 0: e(f's_add_u32 {s(sT[0])}, {s(sOrd)}, {k*1024}')
            ot[k] = e(f'buffer_load_dwordx4 {v(vXF+4*k,4)}, {v(vL16)}, {s(sWS,4)}, {s(sT[0])} offen offset:{(k&3)*1024} sc1')
        PRE = self.o.xpre
        for k in range(PRE): oload(k)
        dl = self.dma_list(dma)
        for k in range(16):
            if k + PRE < 16: oload(k + PRE)
            elif dl: self.dma_item(*dl.pop(0))
            e.wait(vm=ot[k])
            e(f'v_mfma_f32_32x32x16_bf16 {v(vA1,16)}, {a(AW+k*8+4,4)}, {v(vXF+4*k,4)}, {v(vA1,16) if k else 0}')
            e(f'v_mfma_f32_32x32x16_bf16 {v(vA0,16)}, {a(AW+k*8,4)}, {v(vXF+4*k,4)}, {v(vA0,16)}')
        while dl: self.dma_item(*dl.pop(0))
        e(f'v_xor_b32 {v(vTM)}, 0x2000, {v(vEXw)}')
        for r in (sXrd, sXwr, sSTrd, sSTwr, sOrd, sOwr): e(f's_add_u32 {s(r)}, {s(r)}, {s(sSTR)}')
        for n in range(4): e(f'ds_write_b128 {v(vEXw)}, {v(vA1+4*n,4)} offset:{n*1024}')
        e.wait_all_lg()
        e('s_barrier')
        self.stamp(f'L{l}.B3')
        tg = [e(f'ds_read_b128 {v(vWB+4*n,4)}, {v(vTM)} offset:{n*1024}') for n in range(4)]
        for n in range(4):
            e.wait(lg=tg[n])
            for i in (0, 2): e(f'v_pk_add_f32 {v(vA0+4*n+i,2)}, {v(vA0+4*n+i,2)}, {v(vWB+4*n+i,2)}')
            if l == 3 and self.o.bias:
                for i in range(4): e(f'v_add_f32 {v(vA0+4*n+i)}, {self.o.bias}, {v(vA0+4*n+i)}')
            for i in (0, 2): e(f'v_cvt_pk_bf16_f32 {v(vRES+2*n+i//2)}, {v(vA0+4*n+i)}, {v(vA0+4*n+i+1)}')
        self.dump(f'L{l}.x', [v(vRES+i) for i in range(8)])
        if l < 3:
            self.publish_x(f'px{l}', l + 2)
            e('s_barrier')
            self.stamp(f'L{l}.pub3')
            self.poll(f'pollx{l}', sFXrd, l + 2)
            self.stamp(f'L{l}.poll3')
        else:
            e(f'buffer_store_dwordx4 {v(vRES,4)}, {v(vXO)}, {s(sOUT,4)}, {s(sXO)} offen')
            e(f'buffer_store_dwordx4 {v(vRES+4,4)}, {v(vXO)}, {s(sOUT,4)}, {s(sXO)} offen offset:16')

    def build(self):
        e = self.e
        self.prologue()
        W = lambda t, p, sl: ('W', t, p, sl)
        O = lambda t, h, sl: ('O', t, h, sl)
        plan = [
            dict(kv=0, q=2, wo=(3, 0), b0=[W(0,0,2)], b1=[O(0,0,3), O(0,1,0)], b2=[W(1,1,1)], b3=[W(1,2,2)]),
            dict(kv=1, q=3, wo=(0, 1), b0=[W(1,0,3)], b1=[O(1,0,0), O(1,1,1)], b2=[W(0,1,2)], b3=[W(0,2,3)]),
            dict(kv=2, q=0, wo=None, b0=[W(0,0,0)], b1=[W(1,1,1)], b2=[], b3=[W(1,2,2)]),
            dict(kv=1, q=3, wo=None, b0=[W(1,0,3)], b1=[], b2=[], b3=[]),
        ]
        for l in range(4):
            p = plan[l]
            self.kv_gemm(l, p['kv'], p['b0'])
            self.kv_epilogue(l, self.e.vm)
            self.q_phase(l, p['q'], p['b1'], p['b2'])
            self.o_proj(l, p['wo'], p['b3'])
        if self.o.stamps:
            self.stamp('end')
            e(f's_memrealtime {s(sTS,2)}'); e.wait_all_lg()
            e(f'v_writelane_b32 {v(vSTAMP)}, {s(sTS)}, 63')
            e(f's_lshl_b32 {s(sT[0])}, s2, 2\ns_add_u32 {s(sT[0])}, {s(sT[0])}, {s(sW)}\ns_lshl_b32 {s(sT[0])}, {s(sT[0])}, 8\ns_add_u32 {s(sT[0])}, {s(sT[0])}, {STAMP}')
            e(f'buffer_store_dword {v(vSTAMP)}, {v(vL4)}, {s(sWS,4)}, {s(sT[0])} offen')
        if self.o.echo:
            self.stamp('end')
            if self.o.echo[0] == 'fixed':
                e(f's_mov_b32 {s(sE0)}, {self.o.echo[2]}')
            else:
                e(f's_sub_u32 {s(sE0)}, {s(sE1)}, {s(sE0)}\ns_mul_i32 {s(sE0)}, {s(sE0)}, {self.o.echo[2]}')
            e(f's_memtime {s(sE1,2)}\ns_waitcnt lgkmcnt(0)')
            e(f'L_echo:\ns_memtime {s(sTS,2)}\ns_waitcnt lgkmcnt(0)\ns_sub_u32 {s(sTS)}, {s(sTS)}, {s(sE1)}\ns_cmp_lt_u32 {s(sTS)}, {s(sE0)}\ns_cbranch_scc1 L_echo')
        e('L_fail:\ns_endpgm')
        body = e.finish() + ''.join(t.finish() for t in self.tail) + 'L_code_end:\n    s_endpgm\n'
        head = open('cdna_kernels/' + NAME + '.s.ref').read().split('; Override launch')[0]
        txt = head + '; @launch grid=(256,1,1) block=(256,1,1) lds=163840\n'
        txt += f'''.amdgcn_target "amdgcn-amd-amdhsa--gfx950"
.text
.globl {NAME}_kernel
.p2align 8
.type {NAME}_kernel,@function
{NAME}_kernel:
{body}.section .rodata,"a"
.p2align 6
.amdhsa_kernel {NAME}_kernel
  .amdhsa_next_free_vgpr 512
  .amdhsa_next_free_sgpr 102
  .amdhsa_accum_offset 256
  .amdhsa_group_segment_fixed_size 0
  .amdhsa_kernarg_size 80
  .amdhsa_user_sgpr_count 2
  .amdhsa_user_sgpr_kernarg_segment_ptr 1
  .amdhsa_system_sgpr_workgroup_id_x 1
  .amdhsa_float_denorm_mode_32 3
.end_amdhsa_kernel
'''
        return txt

if __name__ == '__main__':
    ap = argparse.ArgumentParser()
    ap.add_argument('-o', default='cdna_kernels/' + NAME + '.s')
    ap.add_argument('--stamps', action='store_true')
    ap.add_argument('--force-safe', action='store_true')
    ap.add_argument('--dump', default='')
    ap.add_argument('--echo', default='')
    ap.add_argument('--bias', default='')
    ap.add_argument('--xpre', type=int, default=8)
    ap.add_argument('--e1at', type=int, default=24)
    opt = ap.parse_args()
    opt.dump = opt.dump.split(',') if opt.dump else []
    opt.echo = opt.echo.split(',') if opt.echo else []
    g = Gen(opt)
    txt = g.build()
    open(opt.o, 'w').write(txt)
    if opt.stamps:
        open(opt.o + '.stamps', 'w').write('\n'.join(g.stamp_names))
    print('wrote', opt.o, len(txt), 'bytes; vgpr persistent', _vn[0], 'sgpr', _sn[0], 'stamps', g.nstamp)
```

```python
import sys, argparse
sys.path.insert(0, 'gen')
from asmlib import *

NAME = 'interleave_layers__linear_attn_block__linear_kernel_hedgehog__prompt'

FLG_O, FLG_X = 0x0000, 0x2000
ZP = 0x10000
STAMP = 0x60000
KVP = 0x100000
EXB, EXSTRIDE = 0x400000, 0x500000
OB, XB, ST = EXB, EXB + 0x200000, EXB + 0x400000
DUMP = 0x2400000
WS_BYTES = 0x4000000
OOB = 0x7F000000
SLOT = 32768
SCR = 4 * SLOT
PL = 2176
L_PK = SCR
L_EX = SCR
L_KV = SCR + 12 * PL
L_CS = L_KV + 2176
L_WP = L_CS + 3072
assert L_WP + 1024 <= 163840

sX, sWA, sWOA, sWB, sWP, sWOB, sOUT, sDBG, sWS, sCODE = 4, 8, 12, 16, 20, 24, 28, 32, 36, 40
_sn = [44]
def salloc(n=1, al=1):
    while _sn[0] % al: _sn[0] += 1
    r = _sn[0]; _sn[0] += n
    assert _sn[0] <= 100
    return r
sW, sR, sG, sRB, sRBO, sJ, sMODE, sBUD, sSTR = [salloc() for _ in range(9)]
sWg0, sWg1, sWl0, sWl1, sWOg, sWOl = [salloc() for _ in range(6)]
sXrd, sXwr, sSTrd, sSTwr, sOrd, sOwr, sFOrd, sFOwr, sFXrd, sFXwr = [salloc() for _ in range(10)]
sKVrdA, sKVrdB, sKVwrB, sZrdA, sZrdB, sZwrB, sSKIP = [salloc() for _ in range(7)]
sXO, sONES, sPERM, sHI, sXCC, sSTAMP = [salloc() for _ in range(6)]
sL2E = salloc(2, 2); sEPS6 = salloc(2, 2)
sT = [salloc() for _ in range(6)]
sTS = salloc(2, 2)
sE0 = salloc(2, 2); sE1 = salloc(2, 2)

_vn = [1]
def valloc(n=1, al=1):
    while _vn[0] % al: _vn[0] += 1
    r = _vn[0]; _vn[0] += n
    return r
vLane = valloc()
vL16 = valloc(); vL4 = valloc()
vRES = valloc(8, 4)
vWPH = valloc(8, 4)
vSEL = valloc(4, 4)
vCS = valloc(12, 2)
vMF = valloc(2, 2)
vRS = valloc(2, 2)
vXq = valloc(4); vWtr = valloc(4)
vWdma, vWOdma, vPKwA, vPKwB, vPKrA, vPKrB, vKVw, vZw, vKVrA, vKVrB, vEXw, vE1st, vZst, vSTst, vFl16, vXO = [valloc() for _ in range(16)]
assert _vn[0] <= 64, _vn[0]
vA0, vA1, vWB, vTM = 64, 80, 96, 120
vXF = 128
vSTAMP = 0

class Gen:
    def __init__(self, opt):
        self.o = opt
        self.e = Asm()
        self.tail = []
        self.nstamp = 0
        self.stamp_names = []
        self.wtr_slot = 0
        self.ndump = 0

    def stamp(self, name):
        if self.o.echo and name in self.o.echo[:2]:
            self.e(f'{self.o.clk} {s(sE0 if name == self.o.echo[0] else sE1, 2)}')
            self.e.wait_all_lg()
        if not self.o.stamps: return
        e = self.e
        e(f'{self.o.clk} {s(sTS,2)}')
        e.wait_all_lg()
        e(f'v_writelane_b32 {v(vSTAMP)}, {s(sTS)}, {self.nstamp}')
        self.nstamp += 1; self.stamp_names.append(name)
    def dump(self, name, regs):
        if name not in self.o.dump: return
        e = self.e
        for r in regs:
            e(f's_lshl_b32 {s(sT[5])}, s2, 2\ns_add_u32 {s(sT[5])}, {s(sT[5])}, {s(sW)}\ns_lshl_b32 {s(sT[5])}, {s(sT[5])}, 14\ns_add_u32 {s(sT[5])}, {s(sT[5])}, {DUMP + self.ndump*256}')
            e(f'buffer_store_dword {r}, {v(vL4)}, {s(sWS,4)}, {s(sT[5])} offen')
            self.ndump += 1
        assert self.ndump <= 64
        e.wait_all_vm()
    def set_wtr(self, slot):
        d = (slot - self.wtr_slot) * SLOT
        if d:
            for q in range(4):
                self.e(f'v_add_u32 {v(vWtr+q)}, {d & 0xffffffff}, {v(vWtr+q)}')
        self.wtr_slot = slot
    def dma_w(self, typ, part, slot, n):
        g, l = (sWg0, sWl0) if n < 4 else (sWg1, sWl1)
        srd = sWA if typ == 0 else sWB
        self.e(f's_add_u32 {s(sT[4])}, {s(g)}, {(n&3)*4*49152 + part*1024}')
        self.e(f's_add_u32 m0, {s(l)}, {slot*SLOT + (n&3)*4096}')
        return self.e(f'buffer_load_dwordx4 {v(vWdma)}, {s(srd,4)}, {s(sT[4])} offen lds')
    def dma_wo(self, typ, half, slot, n):
        srd = sWOA if typ == 0 else sWOB
        self.e(f's_add_u32 {s(sT[4])}, {s(sWOg)}, {half*131072 + n*8192}')
        self.e(f's_add_u32 m0, {s(sWOl)}, {slot*SLOT + n*1024}')
        return self.e(f'buffer_load_dwordx4 {v(vWOdma)}, {s(srd,4)}, {s(sT[4])} offen lds')
    def dma_item(self, it, n):
        if it[0] == 'W': return self.dma_w(it[1], it[2], it[3], n)
        return self.dma_wo(it[1], it[2], it[3], n)
    def dma_list(self, items):
        return [(it, n) for it in items for n in range(8)]
    def poll(self, name, sbase, val):
        e = self.e
        e(f'L_{name}:')
        e(f'buffer_load_dword {v(vTM)}, {v(vFl16)}, {s(sWS,4)}, {s(sbase)} offen sc1')
        e(f's_sub_u32 {s(sBUD)}, {s(sBUD)}, 1\ns_cbranch_scc1 L_fail')
        e.wait_all_vm()
        e(f'v_cmp_gt_u32 vcc, {val}, {v(vTM)}\ns_cbranch_vccnz L_{name}')
    def modal(self, name, fn):
        e = self.e
        e(f's_cmp_lg_u32 {s(sMODE)}, 0\ns_cbranch_scc1 L_{name}_safe')
        fn(e, '')
        e(f'L_{name}_join:')
        t = Asm(); t(f'L_{name}_safe:\ns_nop 4'); fn(t, ' sc1'); t(f's_nop 1\ns_branch L_{name}_join')
        self.tail.append(t)

    def x_stats(self):
        e = self.e
        S, Q = vTM, vTM + 1
        for i in range(8):
            e(f'v_dot2_f32_bf16 {v(S)}, {v(vRES+i)}, {s(sONES)}, {v(S) if i else 0}')
        for i in range(8):
            e(f'v_dot2_f32_bf16 {v(Q)}, {v(vRES+i)}, {v(vRES+i)}, {v(Q) if i else 0}')
        e(f'v_permlane32_swap_b32 {v(S)}, {v(Q)}')
        e(f'v_add_f32 {v(S)}, {v(S)}, {v(Q)}')
    def publish_x(self, name, flagval):
        def st1(e, m):
            e(f'buffer_store_dwordx4 {v(vRES,4)}, {v(vL16)}, {s(sWS,4)}, {s(sXwr)} offen{m}')
            e(f'buffer_store_dwordx4 {v(vRES+4,4)}, {v(vL16)}, {s(sWS,4)}, {s(sXwr)} offen offset:1024{m}')
        def st2(e, m):
            e(f'buffer_store_dword {v(vTM)}, {v(vSTst)}, {s(sWS,4)}, {s(sSTwr)} offen{m}')
            e(f'v_mov_b32 {v(vTM+2)}, {flagval}')
            e.wait_all_vm()
            e(f's_mov_b64 exec, 1\nbuffer_store_dword {v(vTM+2)}, off, {s(sWS,4)}, {s(sFXwr)}{m}\ns_mov_b64 exec, -1')
        self.modal(name + 'a', st1)
        self.x_stats()
        self.modal(name + 'b', st2)

    def prologue(self):
        e = self.e
        e('s_cmp_ge_u32 s2, 256\ns_cbranch_scc1 L_fail')
        if self.o.echo and self.o.echo[0] == 'entry': e(f'{self.o.clk} {s(sE0,2)}')
        for srd, off in ((sX, 0), (sWS, 72), (sWA, 8), (sWOA, 16), (sWB, 32), (sWP, 40), (sWOB, 48), (sOUT, 56), (sDBG, 64)):
            e(f's_load_dwordx2 {s(srd,2)}, s[0:1], {off}')
        e(f's_getpc_b64 {s(sCODE,2)}')
        e(f'v_and_b32 {v(vLane)}, 63, v0\nv_lshrrev_b32 {v(vTM)}, 6, v0')
        e(f's_mov_b32 {s(sCODE+2)}, L_code_end-{NAME}_kernel-128\ns_mov_b32 {s(sCODE+3)}, 0x20000')
        e(f'v_readfirstlane_b32 {s(sW)}, {v(vTM)}')
        e(f's_lshr_b32 {s(sT[0])}, s2, 3\ns_lshl_b32 {s(sT[0])}, {s(sT[0])}, 2\ns_add_u32 {s(sT[0])}, {s(sT[0])}, {s(sW)}')
        e(f's_and_b32 {s(sT[0])}, {s(sT[0])}, 7\ns_lshl_b32 {s(sT[0])}, {s(sT[0])}, 13')
        e(f'v_lshlrev_b32 {v(vTM+1)}, 7, {v(vLane)}')
        e(f'buffer_load_dword {v(vTM+7)}, {v(vTM+1)}, {s(sCODE,4)}, {s(sT[0])} offen')
        for srd, sz in ((sX, 0x200000), (sWA, 0x180000), (sWOA, 0x80000), (sWB, 0x180000), (sWP, 0x4000), (sWOB, 0x80000), (sOUT, 0x200000), (sDBG, 256), (sWS, WS_BYTES)):
            e(f's_mov_b32 {s(srd+2)}, {sz}\ns_mov_b32 {s(srd+3)}, 0x20000')
        T = sT
        e(f'''
        s_and_b32 {s(sR)}, s2, 7
        s_lshl_b32 {s(sR)}, {s(sR)}, 1
        s_lshr_b32 {s(T[0])}, s2, 7
        s_add_u32 {s(sR)}, {s(sR)}, {s(T[0])}
        s_lshr_b32 {s(sG)}, s2, 3
        s_and_b32 {s(sG)}, {s(sG)}, 15
        s_lshl_b32 {s(sRB)}, {s(sR)}, 2
        s_lshr_b32 {s(T[0])}, {s(sG)}, 3
        s_lshl_b32 {s(T[0])}, {s(T[0])}, 1
        s_add_u32 {s(sRBO)}, {s(sRB)}, {s(T[0])}
        s_and_b32 {s(T[0])}, {s(sW)}, 1
        s_add_u32 {s(sRBO)}, {s(sRBO)}, {s(T[0])}
        s_add_u32 {s(sRB)}, {s(sRB)}, {s(sW)}
        s_and_b32 {s(sJ)}, {s(sG)}, 7
        s_lshl_b32 {s(sJ)}, {s(sJ)}, 1
        s_lshr_b32 {s(T[1])}, {s(sW)}, 1
        s_add_u32 {s(sJ)}, {s(sJ)}, {s(T[1])}
        s_lshl_b32 {s(sXO)}, {s(sRBO)}, 15
        s_lshl_b32 {s(T[2])}, {s(sJ)}, 6
        s_add_u32 {s(sXO)}, {s(sXO)}, {s(T[2])}
        v_and_b32 {v(vTM)}, 31, {v(vLane)}
        v_lshrrev_b32 {v(vTM+1)}, 5, {v(vLane)}
        v_lshlrev_b32 {v(vXO)}, 10, {v(vTM)}
        v_lshl_add_u32 {v(vXO)}, {v(vTM+1)}, 5, {v(vXO)}
        v_lshlrev_b32 {v(vL16)}, 4, {v(vLane)}
        v_lshlrev_b32 {v(vL4)}, 2, {v(vLane)}
        ''')
        e(f'''
        s_lshl_b32 {s(T[2])}, {s(sG)}, 2
        s_add_u32 {s(T[3])}, {s(T[2])}, {s(sW)}
        s_lshl_b32 {s(sKVrdB)}, {s(T[3])}, 13
        s_add_u32 {s(sKVrdB)}, {s(sKVrdB)}, {KVP}
        s_lshl_b32 {s(sZrdB)}, {s(T[3])}, 10
        s_add_u32 {s(sZrdB)}, {s(sZrdB)}, {ZP}
        s_lshl_b32 {s(T[4])}, {s(sR)}, 9
        s_add_u32 {s(sKVwrB)}, {s(sKVrdB)}, {s(T[4])}
        s_lshl_b32 {s(T[5])}, {s(sR)}, 6
        s_add_u32 {s(sZwrB)}, {s(sZrdB)}, {s(T[5])}
        v_lshlrev_b32 {v(vTM+2)}, 4, {v(vTM)}
        v_lshl_add_u32 {v(vTM+2)}, {v(vTM+1)}, 19, {v(vTM+2)}
        v_and_b32 {v(vFl16)}, 15, {v(vLane)}
        v_lshlrev_b32 {v(vFl16)}, 2, {v(vFl16)}
        v_lshrrev_b32 {v(vTM+4)}, 4, {v(vLane)}
        v_lshl_add_u32 {v(vTM+3)}, {v(vTM+4)}, 16, {v(vFl16)}
        v_mov_b32 {v(vA0)}, -1
        v_mov_b32 {v(vA0+1)}, -1
        v_mov_b32 {v(vA0+2)}, -1
        v_mov_b32 {v(vA0+3)}, -1
        v_mov_b32 {v(vA0+4)}, 0
        v_lshrrev_b32 {v(vWdma)}, 2, {v(vLane)}
        v_mul_u32_u24 {v(vWdma)}, 3072, {v(vWdma)}
        v_and_b32 {v(vTM+5)}, 3, {v(vLane)}
        v_lshl_add_u32 {v(vWdma)}, {v(vTM+5)}, 4, {v(vWdma)}
        ''')
        e(f'''
        s_lshr_b32 {s(sFOwr)}, {s(sG)}, 1
        s_lshl_b32 {s(sFOwr)}, {s(sFOwr)}, 13
        s_lshl_b32 {s(sFOrd)}, {s(sR)}, 9
        s_add_u32 {s(sFOwr)}, {s(sFOwr)}, {s(sFOrd)}
        s_and_b32 {s(sFOrd)}, {s(sG)}, 1
        s_lshl_b32 {s(sFOrd)}, {s(sFOrd)}, 8
        s_add_u32 {s(sFOwr)}, {s(sFOwr)}, {s(sFOrd)}
        ''')
        e(f'''
        s_and_b32 {s(sFOrd)}, {s(sG)}, 1
        s_lshl_b32 {s(sFOrd)}, {s(sFOrd)}, 4
        s_add_u32 {s(sWl0)}, {s(sFOrd)}, {s(sW)}
        s_xor_b32 {s(sWl1)}, {s(sWl0)}, 16
        s_mul_i32 {s(sWg0)}, {s(sWl0)}, 49152
        s_mul_i32 {s(sWg1)}, {s(sWl1)}, 49152
        s_lshl_b32 {s(sFOrd)}, {s(sG)}, 6
        s_add_u32 {s(sWg0)}, {s(sWg0)}, {s(sFOrd)}
        s_add_u32 {s(sWg1)}, {s(sWg1)}, {s(sFOrd)}
        s_lshl_b32 {s(sWl0)}, {s(sWl0)}, 10
        s_lshl_b32 {s(sWl1)}, {s(sWl1)}, 10
        s_and_b32 {s(sMODE)}, {s(sR)}, 1
        s_lshl_b32 {s(sBUD)}, {s(sMODE)}, 10
        s_lshl_b32 {s(sMODE)}, {s(sMODE)}, 15
        s_add_u32 {s(sWg0)}, {s(sWg0)}, {s(sBUD)}
        s_add_u32 {s(sWg1)}, {s(sWg1)}, {s(sBUD)}
        s_add_u32 {s(sWl0)}, {s(sWl0)}, {s(sMODE)}
        s_add_u32 {s(sWl1)}, {s(sWl1)}, {s(sMODE)}
        ''')
        e('s_waitcnt lgkmcnt(0)')
        if self.o.stamps:
            e(f's_memrealtime {s(sTS,2)}'); e.wait_all_lg()
            e(f'v_writelane_b32 {v(vSTAMP)}, {s(sTS)}, 62')
        self.stamp('start')
        e(f's_and_b32 {s(sFOrd)}, {s(T[3])}, 0x33\ns_cbranch_scc1 L_noclr')
        e(f'buffer_store_dword {v(vA0+4)}, {v(vL4)}, {s(sWS,4)}, {s(sFOwr)} offen sc1')
        e('L_noclr:')
        e(f'buffer_load_dwordx4 {v(vRES,4)}, {v(vXO)}, {s(sX,4)}, {s(sXO)} offen')
        tx = e(f'buffer_load_dwordx4 {v(vRES+4,4)}, {v(vXO)}, {s(sX,4)}, {s(sXO)} offen offset:16')
        e(f'''
        buffer_store_dwordx4 {v(vA0,4)}, {v(vTM+2)}, {s(sWS,4)}, {s(sKVwrB)} offen sc1
        s_add_u32 {s(sFOrd)}, {s(sKVwrB)}, 0x100000
        buffer_store_dwordx4 {v(vA0,4)}, {v(vTM+2)}, {s(sWS,4)}, {s(sFOrd)} offen sc1
        buffer_store_dword {v(vA0)}, {v(vTM+3)}, {s(sWS,4)}, {s(sZwrB)} offen sc1
        ''')
        for n in range(8): self.dma_w(0, 1, 0, n)
        e(f'''
        s_lshl_b32 {s(T[4])}, {s(T[1])}, 12
        s_add_u32 {s(sKVrdA)}, {s(sKVrdB)}, {s(T[4])}
        s_lshl_b32 {s(T[4])}, {s(T[1])}, 9
        s_add_u32 {s(sZrdA)}, {s(sZrdB)}, {s(T[4])}
        s_lshr_b32 {s(sSKIP)}, {s(sR)}, 3
        s_xor_b32 {s(sSKIP)}, {s(sSKIP)}, {s(T[1])}
        s_lshl_b32 {s(T[4])}, {s(sRB)}, 15
        s_add_u32 {s(sXrd)}, {s(T[4])}, {XB}
        s_lshl_b32 {s(T[5])}, {s(sG)}, 11
        s_add_u32 {s(sOwr)}, {s(T[4])}, {s(T[5])}
        s_add_u32 {s(sOwr)}, {s(sOwr)}, {OB}
        s_lshl_b32 {s(T[4])}, {s(sRBO)}, 15
        s_lshl_b32 {s(T[5])}, {s(sJ)}, 11
        s_add_u32 {s(sXwr)}, {s(T[4])}, {s(T[5])}
        s_add_u32 {s(sXwr)}, {s(sXwr)}, {XB}
        s_lshl_b32 {s(T[5])}, {s(T[1])}, 14
        s_add_u32 {s(sOrd)}, {s(T[4])}, {s(T[5])}
        s_add_u32 {s(sOrd)}, {s(sOrd)}, {OB}
        s_lshl_b32 {s(sSTrd)}, {s(sRB)}, 12
        s_add_u32 {s(sSTrd)}, {s(sSTrd)}, {ST}
        s_lshl_b32 {s(sSTwr)}, {s(sRBO)}, 12
        s_and_b32 {s(T[4])}, {s(sG)}, 7
        s_lshl_b32 {s(T[5])}, {s(T[4])}, 9
        s_add_u32 {s(sSTwr)}, {s(sSTwr)}, {s(T[5])}
        s_lshl_b32 {s(T[5])}, {s(T[1])}, 3
        s_add_u32 {s(sSTwr)}, {s(sSTwr)}, {s(T[5])}
        s_add_u32 {s(sSTwr)}, {s(sSTwr)}, {ST}
        s_lshl_b32 {s(sWOg)}, {s(T[4])}, 7
        s_lshl_b32 {s(T[5])}, {s(T[1])}, 18
        s_add_u32 {s(sWOg)}, {s(sWOg)}, {s(T[5])}
        s_lshl_b32 {s(T[5])}, {s(T[0])}, 16
        s_add_u32 {s(sWOg)}, {s(sWOg)}, {s(T[5])}
        s_lshl_b32 {s(sWOl)}, {s(sW)}, 13
        s_lshl_b32 {s(sFXrd)}, {s(sRB)}, 7
        s_lshl_b32 {s(T[5])}, {s(sG)}, 2
        s_add_u32 {s(sFOwr)}, {s(sFXrd)}, {s(T[5])}
        s_add_u32 {s(sFXrd)}, {s(sFXrd)}, {FLG_X}
        s_lshl_b32 {s(sFOrd)}, {s(sRBO)}, 7
        s_lshl_b32 {s(T[5])}, {s(sJ)}, 2
        s_add_u32 {s(sFXwr)}, {s(sFOrd)}, {s(T[5])}
        s_add_u32 {s(sFXwr)}, {s(sFXwr)}, {FLG_X}
        s_mov_b32 {s(sONES)}, 0x3f803f80
        s_mov_b32 {s(sPERM)}, 0x07060302
        s_mov_b32 {s(sHI)}, 0xffff0000
        s_mov_b32 {s(sL2E)}, 0x3fb8aa3b
        s_mov_b32 {s(sL2E+1)}, 0x3fb8aa3b
        s_mov_b32 {s(sEPS6)}, 0x358637bd
        s_mov_b32 {s(sEPS6+1)}, 0x358637bd
        s_getreg_b32 {s(sXCC)}, hwreg(HW_REG_XCC_ID, 0, 3)
        s_lshl_b32 {s(sXCC)}, {s(sXCC)}, 2
        ''')
        t0, t1, t2 = vA1, vA1 + 1, vA1 + 2
        e(f'''
        v_lshlrev_b32 {v(vSTst)}, 4, {v(vTM)}
        v_lshl_add_u32 {v(vSTst)}, {v(vTM+1)}, 2, {v(vSTst)}
        v_lshrrev_b32 {v(t0)}, 3, {v(vLane)}
        v_and_b32 {v(t1)}, 1, {v(vTM+4)}
        v_lshlrev_b32 {v(t1)}, 2, {v(t1)}
        v_and_b32 {v(t2)}, 7, {v(vLane)}
        v_xor_b32 {v(t1)}, {v(t1)}, {v(t2)}
        v_lshlrev_b32 {v(t1)}, 4, {v(t1)}
        v_lshl_add_u32 {v(vWOdma)}, {v(t0)}, 10, {v(t1)}
        ''')
        e(f'''
        v_bfe_u32 {v(t0)}, {v(vLane)}, 2, 2
        v_lshl_add_u32 {v(t0)}, {v(vTM+1)}, 4, {v(t0)}
        v_lshlrev_b32 {v(t0)}, 6, {v(t0)}
        v_and_b32 {v(t1)}, 1, {v(vTM+4)}
        v_lshl_add_u32 {v(t0)}, {v(t1)}, 5, {v(t0)}
        v_and_b32 {v(t1)}, 1, {v(vLane)}
        v_lshl_add_u32 {v(t0)}, {v(t1)}, 4, {v(t0)}
        v_bfe_u32 {v(t1)}, {v(vLane)}, 1, 1
        v_lshl_add_u32 {v(t0)}, {v(t1)}, 3, {v(t0)}
        ''')
        for q in range(4):
            e(f'''
            s_xor_b32 {s(T[4])}, {s(sW)}, {q}
            s_lshl_b32 {s(T[5])}, {s(T[4])}, 10
            v_add_u32 {v(vXq+q)}, {s(T[5])}, {v(vL16)}
            s_lshr_b32 {s(T[5])}, {s(T[4])}, 1
            s_lshl_b32 {s(T[5])}, {s(T[5])}, 11
            s_and_b32 {s(T[4])}, {s(T[4])}, 1
            s_lshl_b32 {s(T[4])}, {s(T[4])}, 9
            s_add_u32 {s(T[4])}, {s(T[4])}, {s(T[5])}
            v_add_u32 {v(vWtr+q)}, {s(T[4])}, {v(t0)}
            ''')
        e(f'''
        s_lshl_b32 {s(T[4])}, {s(sW)}, 9
        s_add_u32 {s(T[4])}, {s(T[4])}, {L_PK}
        v_lshl_add_u32 {v(t0)}, {v(vTM)}, 4, {s(T[4])}
        v_mul_u32_u24 {v(t1)}, {PL}, {v(vTM+1)}
        v_add_u32 {v(vPKwA)}, {v(t0)}, {v(t1)}
        v_lshl_add_u32 {v(vPKwB)}, {v(t1)}, 2, {v(t0)}
        v_bfe_u32 {v(t0)}, {v(vLane)}, 1, 1
        v_mul_u32_u24 {v(t0)}, {PL}, {v(t0)}
        v_lshrrev_b32 {v(t1)}, 2, {v(vLane)}
        v_lshl_add_u32 {v(t0)}, {v(t1)}, 4, {v(t0)}
        v_and_b32 {v(t1)}, 1, {v(vLane)}
        v_lshl_add_u32 {v(t0)}, {v(t1)}, 3, {v(t0)}
        s_mul_i32 {s(T[4])}, {s(sW)}, {2*PL}
        s_add_u32 {s(T[4])}, {s(T[4])}, {L_PK}
        v_add_u32 {v(vPKrB)}, {s(T[4])}, {v(t0)}
        s_mul_i32 {s(T[4])}, {s(T[0])}, {2*PL}
        s_add_u32 {s(T[4])}, {s(T[4])}, {L_PK}
        v_add_u32 {v(vPKrA)}, {s(T[4])}, {v(t0)}
        ''')
        e(f'''
        s_mul_i32 {s(T[4])}, {s(sW)}, 544
        s_add_u32 {s(T[4])}, {s(T[4])}, {L_KV}
        v_lshl_add_u32 {v(t0)}, {v(vFl16)}, 3, {s(T[4])}
        v_lshl_add_u32 {v(vKVw)}, {v(vTM+4)}, 3, {v(t0)}
        v_lshrrev_b32 {v(t0)}, 1, {v(vFl16)}
        v_add_u32 {v(vZw)}, {s(T[4])}, {v(t0)}
        v_bfe_u32 {v(t0)}, {v(vLane)}, 2, 1
        v_lshl_add_u32 {v(t0)}, {v(t0)}, 3, {v(vTM+5)}
        v_bfe_u32 {v(t1)}, {v(vLane)}, 3, 1
        v_lshl_add_u32 {v(t0)}, {v(t1)}, 2, {v(t0)}
        v_cmp_gt_u32 vcc, 16, {v(vTM)}
        v_cndmask_b32 {v(t0)}, 16, {v(t0)}, vcc
        v_lshlrev_b32 {v(t0)}, 5, {v(t0)}
        v_add_u32 {v(t0)}, {L_KV}, {v(t0)}
        v_lshl_add_u32 {v(vKVrA)}, {v(vTM+1)}, 4, {v(t0)}
        v_mul_u32_u24 {v(t1)}, 1088, {v(vTM+1)}
        v_add_u32 {v(vKVrB)}, {v(t0)}, {v(t1)}
        v_lshlrev_b32 {v(t0)}, 2, {v(vFl16)}
        v_lshl_add_u32 {v(t0)}, {v(vTM+1)}, 8, {v(t0)}
        v_and_b32 {v(t1)}, 1, {v(vTM+4)}
        v_lshl_add_u32 {v(vE1st)}, {v(t1)}, 3, {v(t0)}
        v_lshl_add_u32 {v(vZst)}, {v(vTM+4)}, 26, {v(vFl16)}
        s_lshl_b32 {s(T[4])}, {s(sW)}, 12
        s_add_u32 {s(T[4])}, {s(T[4])}, {L_EX}
        v_add_u32 {v(vEXw)}, {s(T[4])}, {v(vL16)}
        ''')
        e(f'''
        v_and_b32 {v(t0)}, 1, {v(vLane)}
        v_lshlrev_b32 {v(t0)}, 4, {v(t0)}
        v_mov_b32 {v(t1)}, 0x3f80
        v_lshlrev_b32 {v(t0)}, {v(t0)}, {v(t1)}
        v_lshrrev_b32 {v(t1)}, 1, {v(vLane)}
        v_xor_b32 {v(t1)}, {v(t1)}, {v(vLane)}
        v_and_b32 {v(t1)}, 8, {v(t1)}
        v_bfe_u32 {v(t2)}, {v(vLane)}, 1, 2
        v_or_b32 {v(t1)}, {v(t1)}, {v(t2)}
        ''')
        for d in range(4):
            e(f'v_cmp_eq_u32 vcc, {d}, {v(t1)}\nv_cndmask_b32 {v(vSEL+d)}, 0, {v(t0)}, vcc')
        e.wait(vm=tx)
        self.stamp('xblk')
        e(f'buffer_store_dwordx4 {v(vRES,4)}, {v(vL16)}, {s(sWS,4)}, {s(sXwr)} offen {self.o.initmod}')
        e(f'buffer_store_dwordx4 {v(vRES+4,4)}, {v(vL16)}, {s(sWS,4)}, {s(sXwr)} offen offset:1024 {self.o.initmod}')
        self.x_stats()
        e(f'buffer_store_dword {v(vTM)}, {v(vSTst)}, {s(sWS,4)}, {s(sSTwr)} offen {self.o.initmod}')
        e(f'''
        s_lshl_b32 {s(T[4])}, 1, {s(sXCC)}
        v_mov_b32 {v(vTM+2)}, {s(T[4])}
        s_lshr_b32 {s(T[5])}, {s(sG)}, 3
        s_lshl_b32 {s(T[4])}, {s(sR)}, 1
        s_add_u32 {s(T[5])}, {s(T[5])}, {s(T[4])}
        s_lshl_b32 {s(T[5])}, {s(T[5])}, 2
        s_lshl_b32 {s(T[3])}, {s(sR)}, 3
        v_and_b32 {v(vTM+3)}, 4, {v(vL4)}
        ''')
        e(f'''
        s_lshl_b32 {s(sBUD)}, {s(sBUD)}, 1
        s_lshl_b32 {s(sMODE)}, {s(sMODE)}, 1
        s_sub_u32 {s(sWg0)}, {s(sWg0)}, {s(sBUD)}
        s_sub_u32 {s(sWg1)}, {s(sWg1)}, {s(sBUD)}
        s_sub_u32 {s(sWl0)}, {s(sWl0)}, {s(sMODE)}
        s_sub_u32 {s(sWl1)}, {s(sWl1)}, {s(sMODE)}
        ''')
        e.wait_all_vm()
        e('s_barrier')
        e(f's_cmp_lg_u32 {s(sW)}, 0\ns_cbranch_scc1 L_noat')
        e(f's_mov_b64 exec, 1\nbuffer_atomic_add {v(vTM+2)}, off, {s(sDBG,4)}, {s(T[5])}\ns_mov_b64 exec, -1')
        e('L_noat:')
        self.stamp('atomic')
        for n in range(8): self.dma_w(0, 2, 1, n)
        e(f'''
        s_lshr_b32 {s(sBUD)}, {s(sBUD)}, 1
        s_lshr_b32 {s(sMODE)}, {s(sMODE)}, 1
        s_add_u32 {s(sWg0)}, {s(sWg0)}, {s(sBUD)}
        s_add_u32 {s(sWg1)}, {s(sWg1)}, {s(sBUD)}
        s_add_u32 {s(sWl0)}, {s(sWl0)}, {s(sMODE)}
        s_add_u32 {s(sWl1)}, {s(sWl1)}, {s(sMODE)}
        s_mov_b32 {s(sBUD)}, 100000
        s_mov_b32 {s(T[2])}, 0x11111111
        s_lshl_b32 {s(T[1])}, 8, {s(sXCC)}
        ''')
        e(f's_lshl_b32 {s(T[4])}, {s(sG)}, 10\ns_mov_b32 m0, {L_WP}')
        e(f'buffer_load_dwordx4 {v(vL16)}, {s(sWP,4)}, {s(T[4])} offen lds')
        e('L_grp:')
        e(f'buffer_load_dword {v(vTM)}, {v(vTM+3)}, {s(sDBG,4)}, {s(T[3])} offen sc1')
        e(f's_sub_u32 {s(sBUD)}, {s(sBUD)}, 1\ns_cbranch_scc1 L_fail')
        e.wait_all_vm()
        e(f'v_dot8_u32_u4 {v(vTM+1)}, {v(vTM)}, {s(T[2])}, 0')
        e(f'v_cmp_ne_u32 vcc, 8, {v(vTM+1)}\ns_cbranch_vccnz L_grp')
        e(f'v_cmp_ne_u32 vcc, {s(T[1])}, {v(vTM)}')
        e(f's_mov_b32 {s(sMODE)}, 0\ns_mov_b32 {s(sSTR)}, 0')
        if self.o.force_safe:
            e('s_branch L_init_safe')
        else:
            e('s_cbranch_vccnz L_init_safe')
        e('L_init_join:')
        e('s_barrier')
        save = self.e
        t = self.e = Asm()
        t(f'L_init_safe:\ns_mov_b32 {s(sMODE)}, 1\ns_mov_b32 {s(sSTR)}, {EXSTRIDE}')
        for r in (sXrd, sXwr, sSTrd, sSTwr, sOrd, sOwr): t(f's_add_u32 {s(r)}, {s(r)}, {s(sSTR)}')
        self.x_stats()
        t(f'buffer_store_dwordx4 {v(vRES,4)}, {v(vL16)}, {s(sWS,4)}, {s(sXwr)} offen sc1')
        t(f'buffer_store_dwordx4 {v(vRES+4,4)}, {v(vL16)}, {s(sWS,4)}, {s(sXwr)} offen offset:1024 sc1')
        t(f'buffer_store_dword {v(vTM)}, {v(vSTst)}, {s(sWS,4)}, {s(sSTwr)} offen sc1')
        t(f'v_mov_b32 {v(vTM+2)}, 1')
        t.wait_all_vm()
        t(f's_mov_b64 exec, 1\nbuffer_store_dword {v(vTM+2)}, off, {s(sWS,4)}, {s(sFXwr)} sc1\ns_mov_b64 exec, -1')
        self.poll('pollx_init', sFXrd, 1)
        t('s_branch L_init_join')
        self.tail.append(t)
        self.e = save
        self.stamp('grp')

    def cs_write(self, acc, blk):
        e = self.e
        t = vTM + 6
        e(f'v_and_b32 {v(t)}, 31, {v(vLane)}\nv_lshlrev_b32 {v(t)}, 5, {v(t)}\nv_lshrrev_b32 {v(t+1)}, 5, {v(vLane)}')
        e(f'v_lshl_add_u32 {v(t+1)}, {v(t+1)}, 2, {v(t)}\ns_lshl_b32 {s(sT[3])}, {s(sW)}, 3\ns_add_u32 {s(sT[3])}, {s(sT[3])}, {L_CS}')
        e(f'v_add_u32 {v(t+1)}, {s(sT[3])}, {v(t+1)}\nv_add_u32 {v(t)}, {L_CS}, {v(t)}')
        tag = None
        for ac, b in zip(acc, blk):
            tag = e(f'ds_write_b32 {v(t+1)}, {v(ac)} offset:{b*1024}')
        return tag
    def cs_read(self, blk, dst):
        e = self.e
        e(f'ds_read_b128 {v(dst,4)}, {v(vTM+6)} offset:{blk*1024}')
        return e(f'ds_read_b128 {v(dst+4,4)}, {v(vTM+6)} offset:{blk*1024+16}')
    def cs_pack(self, src, out):
        e = self.e
        e(f'''
        v_pk_add_f32 {v(src,2)}, {v(src,2)}, {v(src+2,2)}
        v_pk_add_f32 {v(src+4,2)}, {v(src+4,2)}, {v(src+6,2)}
        v_pk_add_f32 {v(src,2)}, {v(src,2)}, {v(src+4,2)}
        v_add_f32 {v(src)}, {v(src)}, {v(src+1)}
        v_and_b32 {v(src+1)}, {s(sHI)}, {v(src)}
        v_sub_f32 {v(src+1)}, {v(src)}, {v(src+1)}
        v_perm_b32 {v(out)}, {v(src+1)}, {v(src)}, {s(sPERM)}
        v_and_b32 {v(src+2)}, {s(sHI)}, {v(src+1)}
        v_sub_f32 {v(src+2)}, {v(src+1)}, {v(src+2)}
        v_lshrrev_b32 {v(out+1)}, 16, {v(src+2)}
        ''')

    def stats_ops(self):
        b = vXF + 112
        ops = []
        for i in range(4): ops.append(f'v_pk_add_f32 {v(b+4*i,2)}, {v(b+4*i,2)}, {v(b+4*i+2,2)}')
        ops += [f'v_pk_add_f32 {v(b,2)}, {v(b,2)}, {v(b+4,2)}', f'v_pk_add_f32 {v(b+8,2)}, {v(b+8,2)}, {v(b+12,2)}',
                f'v_pk_add_f32 {v(b,2)}, {v(b,2)}, {v(b+8,2)}',
                f'v_mov_b32 {v(b+2)}, {v(b)}', f'v_mov_b32 {v(b+3)}, {v(b+1)}',
                f'v_permlane32_swap_b32 {v(b)}, {v(b+2)}', f'v_permlane32_swap_b32 {v(b+1)}, {v(b+3)}',
                f'v_pk_add_f32 {v(b,2)}, {v(b,2)}, {v(b+2,2)}',
                f'v_mul_f32 {v(b)}, 0xbb000000, {v(b)}',
                f'v_mul_f32 {v(b+1)}, 0x3b000000, {v(b+1)}',
                f'v_fma_f32 {v(b+1)}, -{v(b)}, {v(b)}, {v(b+1)}',
                f'v_max_f32 {v(b+1)}, 0, {v(b+1)}',
                f'v_add_f32 {v(b+1)}, 0x3727c5ac, {v(b+1)}',
                f'v_rsq_f32 {v(vRS)}, {v(b+1)}',
                f'v_and_b32 {v(b+2)}, {s(sHI)}, {v(b)}',
                f'v_sub_f32 {v(b+2)}, {v(b)}, {v(b+2)}',
                f'v_cmp_gt_u32 vcc, 32, {v(vLane)}',
                f'v_mul_f32 {v(vRS+1)}, {s(sL2E)}, {v(vRS)}',
                f'v_cndmask_b32 {v(b)}, {v(b+2)}, {v(b)}, vcc',
                f'v_perm_b32 {v(vMF)}, {v(b)}, {v(b)}, {s(sPERM)}',
                f'v_lshrrev_b32 {v(vMF+1)}, 16, {v(b)}']
        return ops

    def tr_w(self, dst, ks, extra):
        e = self.e
        off = (ks >> 2) * 4096 + extra
        e(f'ds_read_b64_tr_b16 {v(dst,2)}, {v(vWtr + (ks&3))} offset:{off}')
        return e(f'ds_read_b64_tr_b16 {v(dst+2,2)}, {v(vWtr + (ks&3))} offset:{off+256}')

    def kv_gemm(self, l, slot, dma):
        e = self.e; typ = l & 1; first = l < 2
        self.set_wtr(slot)
        xt = [None] * 32
        def xload(k):
            if k % 4 == 0: e(f's_add_u32 {s(sT[0])}, {s(sXrd)}, {k*1024}')
            xt[k] = e(f'buffer_load_dwordx4 {v(vXF+4*k,4)}, {v(vXq+(k&3))}, {s(sWS,4)}, {s(sT[0])} offen sc1')
        PRE = self.o.xpre
        assert PRE <= 9
        for k in range(PRE): xload(k)
        wt = [None] * 32
        def wread(k):
            b = vWB + (k % 3) * 8
            self.tr_w(b, k, 0)
            wt[k] = self.tr_w(b + 4, k, SLOT)
        wread(0); wread(1)
        stt = None
        sops = self.stats_ops()
        dl = self.dma_list(dma)
        csK, csV = vTM, vTM + 1
        cK, cV = vCS + typ*6 + 2, vCS + typ*6 + 4
        for k in range(32):
            if k + PRE < 32: xload(k + PRE)
            elif dl: self.dma_item(*dl.pop(0))
            if k < 4:
                stt = e(f'buffer_load_dwordx4 {v(vXF+112+4*k,4)}, {v(vL16)}, {s(sWS,4)}, {s(sSTrd)} offen offset:{k*1024} sc1')
            if k + 2 < 32: wread(k + 2)
            e.wait(vm=xt[k], lg=wt[k])
            if k == 0: self.stamp(f'L{l}.x0')
            b = vWB + (k % 3) * 8
            e(f'v_mfma_f32_32x32x16_bf16 {v(vA0,16)}, {v(b,4)}, {v(vXF+4*k,4)}, {v(vA0,16) if k else 0}')
            if first and k % 4 == 0:
                for i in range(4): e(f'v_dot2_f32_bf16 {v(csK)}, {v(b+i)}, {s(sONES)}, {v(csK) if (k or i) else 0}')
            if 13 <= k < 19:
                if k == 13: e.wait(vm=stt)
                for _ in range(3):
                    if sops: e(sops.pop(0))
            e(f'v_mfma_f32_32x32x16_bf16 {v(vA1,16)}, {v(b+4,4)}, {v(vXF+4*k,4)}, {v(vA1,16) if k else 0}')
            if first and k % 4 == 0:
                for i in range(4): e(f'v_dot2_f32_bf16 {v(csV)}, {v(b+4+i)}, {s(sONES)}, {v(csV) if (k or i) else 0}')
            if 13 <= k < 19:
                for _ in range(2):
                    if sops: e(sops.pop(0))
            if k == 19:
                assert not sops
                if not first:
                    e(f'v_mfma_f32_32x32x8_bf16 {v(vA0,16)}, {v(cK,2)}, {v(vMF,2)}, {v(vA0,16)}')
                    e(f'v_mfma_f32_32x32x8_bf16 {v(vA1,16)}, {v(cV,2)}, {v(vMF,2)}, {v(vA1,16)}')
            if first and k == 28:
                cw = self.cs_write([csK, csV], [1, 2])
            if first and k == 29:
                e.wait(lg=cw); e('s_barrier')
            if first and k == 30:
                r1 = self.cs_read(1, vWB + 16)
        while dl: self.dma_item(*dl.pop(0))
        if first:
            r2 = self.cs_read(2, vWB)
            e.wait(lg=r1); self.cs_pack(vWB + 16, cK)
            e(f'v_mfma_f32_32x32x8_bf16 {v(vA0,16)}, {v(cK,2)}, {v(vMF,2)}, {v(vA0,16)}')
            e.wait(lg=r2); self.cs_pack(vWB, cV)
            e(f'v_mfma_f32_32x32x8_bf16 {v(vA1,16)}, {v(cV,2)}, {v(vMF,2)}, {v(vA1,16)}')
        self.stamp(f'L{l}.kvgemm')

    def scale_pack(self, acc, out):
        e = self.e
        for i in range(8):
            e(f'v_pk_mul_f32 {v(acc+2*i,2)}, {v(acc+2*i,2)}, {v(vRS,2)} op_sel_hi:[1,0]')
        for i in range(8):
            e(f'v_cvt_pk_bf16_f32 {v(out+i)}, {v(acc+2*i)}, {v(acc+2*i+1)}')
    def phi_a(self, acc, tmp, out, after=None):
        e = self.e
        for hh in range(2):
            r = range(4*hh, 4*hh+4)
            for i in r: e(f'v_pk_mul_f32 {v(tmp+2*i,2)}, {v(acc+2*i,2)}, {v(vRS,2)} op_sel:[0,1] op_sel_hi:[1,1]')
            for i in r:
                e(f'v_exp_f32_e64 {v(tmp+2*i)}, {v(tmp+2*i)} clamp')
                e(f'v_exp_f32_e64 {v(tmp+2*i+1)}, {v(tmp+2*i+1)} clamp')
            for i in r: e(f'v_pk_fma_f32 {v(acc+2*i,2)}, {v(acc+2*i,2)}, {v(vRS,2)}, 1.0 op_sel_hi:[1,0,0]')
            for i in r:
                e(f'v_max_f32 {v(acc+2*i)}, {v(acc+2*i)}, {v(tmp+2*i)}')
                e(f'v_max_f32 {v(acc+2*i+1)}, {v(acc+2*i+1)}, {v(tmp+2*i+1)}')
            for i in r: e(f'v_pk_add_f32 {v(acc+2*i,2)}, {v(acc+2*i,2)}, {s(sEPS6,2)}')
            for i in r: e(f'v_cvt_pk_bf16_f32 {v(out+i)}, {v(acc+2*i)}, {v(acc+2*i+1)}')
            if after: after(hh)
    def softmax16(self, p, tm, out):
        e = self.e
        e(f'v_max3_f32 {v(tm)}, {v(p)}, {v(p+1)}, {v(p+2)}')
        e(f'v_max3_f32 {v(tm+1)}, {v(p+3)}, {v(p+4)}, {v(p+5)}')
        e(f'v_max3_f32 {v(tm)}, {v(tm)}, {v(p+6)}, {v(p+7)}')
        e(f'v_max3_f32 {v(tm+1)}, {v(tm+1)}, {v(p+8)}, {v(p+9)}')
        e(f'v_max3_f32 {v(tm)}, {v(tm)}, {v(p+10)}, {v(p+11)}')
        e(f'v_max3_f32 {v(tm+1)}, {v(tm+1)}, {v(p+12)}, {v(p+13)}')
        e(f'v_max3_f32 {v(tm)}, {v(tm)}, {v(p+14)}, {v(p+15)}')
        e(f'v_max_f32 {v(tm)}, {v(tm)}, {v(tm+1)}')
        e(f'v_mul_f32 {v(tm)}, {s(sL2E)}, {v(tm)}')
        for i in range(8):
            e(f'v_pk_fma_f32 {v(p+2*i,2)}, {v(p+2*i,2)}, {s(sL2E,2)}, {v(tm,2)} op_sel_hi:[1,1,0] neg_lo:[0,0,1] neg_hi:[0,0,1]')
        for i in range(16): e(f'v_exp_f32 {v(p+i)}, {v(p+i)}')
        for i in range(4): e(f'v_pk_add_f32 {v(tm+2*i,2)}, {v(p+4*i,2)}, {v(p+4*i+2,2)}')
        e(f'v_pk_add_f32 {v(tm,2)}, {v(tm,2)}, {v(tm+2,2)}')
        e(f'v_pk_add_f32 {v(tm+4,2)}, {v(tm+4,2)}, {v(tm+6,2)}')
        e(f'v_pk_add_f32 {v(tm,2)}, {v(tm,2)}, {v(tm+4,2)}')
        e(f'v_add_f32 {v(tm)}, {v(tm)}, {v(tm+1)}')
        e(f'v_rcp_f32 {v(tm)}, {v(tm)}')
        for i in range(8): e(f'v_pk_mul_f32 {v(p+2*i,2)}, {v(p+2*i,2)}, {v(tm,2)} op_sel_hi:[1,0]')
        for i in range(8): e(f'v_cvt_pk_bf16_f32 {v(out+i)}, {v(p+2*i)}, {v(p+2*i+1)}')

    def kv_epilogue(self, l, need_vm):
        e = self.e; typ = l & 1
        self.dump(f'L{l}.kv', [v(vA0+i) for i in range(32)] + [v(vRS)])
        if typ == 0:
            def wr(hh): e(f'ds_write_b128 {v(vPKwA)}, {v(vTM+4*hh,4)} offset:{2*hh*PL}')
            self.phi_a(vA0, vWB, vTM, wr)
            self.scale_pack(vA1, vA1)
            e(f'ds_write_b128 {v(vPKwA)}, {v(vA1,4)} offset:{8*PL}')
            e(f'ds_write_b128 {v(vPKwA)}, {v(vA1+4,4)} offset:{10*PL}')
        else:
            self.scale_pack(vA0, vTM)
            e(f'v_mfma_f32_32x32x16_bf16 {v(vA0,16)}, {v(vWPH,4)}, {v(vTM,4)}, 0')
            e(f'v_mfma_f32_32x32x16_bf16 {v(vWB,16)}, {v(vWPH+4,4)}, {v(vTM+4,4)}, 0')
            self.scale_pack(vA1, vA1)
            e(f'ds_write_b128 {v(vPKwA)}, {v(vA1,4)} offset:{8*PL}')
            e(f'ds_write_b128 {v(vPKwA)}, {v(vA1+4,4)} offset:{10*PL}')
            for hh, p in ((0, vA0), (1, vWB)):
                self.softmax16(p, vTM, p)
                e(f'ds_write_b128 {v(vPKwB)}, {v(p,4)} offset:{(2*hh)*PL}')
                e(f'ds_write_b128 {v(vPKwB)}, {v(p+4,4)} offset:{(2*hh+1)*PL}')
        ones = vTM + 4
        for i in range(4): e(f'v_mov_b32 {v(ones+i)}, {s(sONES)}')
        if need_vm is not None: e.wait(vm=need_vm)
        e.wait_all_lg()
        e('s_barrier')
        self.stamp(f'L{l}.B1')
        pr = vPKrA if typ == 0 else vPKrB
        if typ == 0: e(f's_cmp_lg_u32 {s(sSKIP)}, 0\ns_cbranch_scc1 L_skip{l}')
        tags = []
        for st in range(4):
            e(f'ds_read_b64_tr_b16 {v(vA0+4*st,2)}, {v(pr)} offset:{st*512}')
            e(f'ds_read_b64_tr_b16 {v(vA0+4*st+2,2)}, {v(pr)} offset:{st*512+256}')
            e(f'ds_read_b64_tr_b16 {v(vA1+4*st,2)}, {v(vPKrA)} offset:{8*PL+st*512}')
            tags.append(e(f'ds_read_b64_tr_b16 {v(vA1+4*st+2,2)}, {v(vPKrA)} offset:{8*PL+st*512+256}'))
        ckv, cz = vWB + 16, vWB + 20
        for st in range(4):
            e.wait(lg=tags[st])
            e(f'v_mfma_f32_16x16x32_bf16 {v(ckv,4)}, {v(vA0+4*st,4)}, {v(vA1+4*st,4)}, {v(ckv,4) if st else 0}')
            e(f'v_mfma_f32_16x16x32_bf16 {v(cz,4)}, {v(ones,4)}, {v(vA0+4*st,4)}, {v(cz,4) if st else 0}')
        sk, sz = sKVwrB, sZwrB
        e(f's_add_u32 {s(sT[0])}, {s(sk)}, {l*0x80000}\ns_add_u32 {s(sT[1])}, {s(sz)}, {l*0x10000}')
        e(f'v_cvt_pk_bf16_f32 {v(vTM)}, {v(ckv)}, {v(ckv+1)}\nv_cvt_pk_bf16_f32 {v(vTM+1)}, {v(ckv+2)}, {v(ckv+3)}')
        e(f'v_min_u32 {v(vTM)}, -2, {v(vTM)}\nv_min_u32 {v(vTM+1)}, -2, {v(vTM+1)}')
        e(f'buffer_store_dwordx2 {v(vTM,2)}, {v(vE1st)}, {s(sWS,4)}, {s(sT[0])} offen sc1')
        e(f'v_min_u32 {v(vTM+2)}, -2, {v(cz)}')
        e(f'buffer_store_dword {v(vTM+2)}, {v(vZst)}, {s(sWS,4)}, {s(sT[1])} offen sc1')
        if typ == 0: e(f'L_skip{l}:')
        self.stamp(f'L{l}.pub1')

    def e1_loads(self, e, l):
        typ = l & 1
        nk, nz = (4, 2) if typ == 0 else (8, 4)
        sk, sz = (sKVrdA, sZrdA) if typ == 0 else (sKVrdB, sZrdB)
        e(f's_add_u32 {s(sT[1])}, {s(sz)}, {l*0x10000}')
        zt = None
        for t in range(nz):
            zt = e(f'buffer_load_dword {v(vXF+32+t)}, {v(vL4)}, {s(sWS,4)}, {s(sT[1])} offen offset:{t*256} sc1')
        tags = []
        for p in range(nk):
            if p % 4 == 0: e(f's_add_u32 {s(sT[0])}, {s(sk)}, {l*0x80000 + p*1024}')
            tags.append(e(f'buffer_load_dwordx4 {v(vXF+4*p,4)}, {v(vL16)}, {s(sWS,4)}, {s(sT[0])} offen offset:{(p&3)*1024} sc1'))
        return zt, tags

    def q_phase(self, l, slot, dma1, dma2):
        e = self.e; typ = l & 1; first = l < 2
        self.set_wtr(slot)
        wt = [None] * 32
        def wread(k): wt[k] = self.tr_w(vWB + (k % 6) * 4, k, 0)
        for k in range(4): wread(k)
        dl = self.dma_list(dma1)
        csQ = vTM; cQ = vCS + typ * 6
        if l == 0:
            e(f'v_and_b32 {v(vTM+3)}, 0x7c, {v(vL4)}')
            dbt = e(f'buffer_load_dword {v(vTM+2)}, {v(vTM+3)}, {s(sDBG,4)}, 0 offen sc1')
            e(f'buffer_load_dword {v(vTM+4)}, {v(vFl16)}, {s(sWS,4)}, {s(sFOrd)} offen sc1')
            e(f'buffer_load_dword {v(vTM+4)}, {v(vFl16)}, {s(sWS,4)}, {s(sFXrd)} offen sc1')
        E1AT = self.o.e1at
        for k in range(32):
            if dl and k < E1AT: self.dma_item(*dl.pop(0))
            if k == E1AT:
                while dl: self.dma_item(*dl.pop(0))
                if l == 0:
                    e.wait(vm=dbt)
                    e(f's_mov_b32 {s(sT[2])}, 0x11111111')
                    e('L_all_chk:')
                    e(f'v_dot8_u32_u4 {v(vTM+2)}, {v(vTM+2)}, {s(sT[2])}, 0')
                    e(f'v_cmp_ne_u32 vcc, 8, {v(vTM+2)}\ns_cbranch_vccnz L_all_retry')
                    t = Asm()
                    t(f'L_all_retry:\nbuffer_load_dword {v(vTM+2)}, {v(vTM+3)}, {s(sDBG,4)}, 0 offen sc1')
                    t(f's_sub_u32 {s(sBUD)}, {s(sBUD)}, 1\ns_cbranch_scc1 L_fail\ns_waitcnt vmcnt(0)\ns_branch L_all_chk')
                    self.tail.append(t)
                zt, kt = self.e1_loads(e, l)
            if k + 4 < 32: wread(k + 4)
            e.wait(lg=wt[k])
            b = vWB + (k % 6) * 4
            e(f'v_mfma_f32_32x32x16_bf16 {v(vA0,16)}, {v(b,4)}, {v(vXF+4*k,4)}, {v(vA0,16) if k else 0}')
            if k == 0 and not first:
                e(f'v_mfma_f32_32x32x8_bf16 {v(vA0,16)}, {v(cQ,2)}, {v(vMF,2)}, {v(vA0,16)}')
            if first and k % 4 == 0:
                for i in range(4): e(f'v_dot2_f32_bf16 {v(csQ)}, {v(b+i)}, {s(sONES)}, {v(csQ) if (k or i) else 0}')
            if first and k == 28: cw = self.cs_write([csQ], [0])
            if first and k == 30:
                e.wait(lg=cw); e('s_barrier')
                r0 = self.cs_read(0, vA1)
        if first:
            e.wait(lg=r0); self.cs_pack(vA1, cQ)
            e(f'v_mfma_f32_32x32x8_bf16 {v(vA0,16)}, {v(cQ,2)}, {v(vMF,2)}, {v(vA0,16)}')
        self.stamp(f'L{l}.qgemm')
        self.dump(f'L{l}.q', [v(vA0+i) for i in range(16)])
        PQ = vXF + 64
        if typ == 0:
            self.phi_a(vA0, vWB, PQ)
        else:
            self.scale_pack(vA0, vTM)
            e(f'v_mfma_f32_32x32x16_bf16 {v(vA0,16)}, {v(vWPH,4)}, {v(vTM,4)}, 0')
            e(f'v_mfma_f32_32x32x16_bf16 {v(vA1,16)}, {v(vWPH+4,4)}, {v(vTM+4,4)}, 0')
            self.softmax16(vA0, vWB, PQ)
            self.softmax16(vA1, vWB, PQ + 8)
        self.stamp(f'L{l}.phiq')
        nk, nz = (4, 2) if typ == 0 else (8, 4)
        C = vWB; mx = vTM; z = vXF + 32
        e(f'L_e1c{l}:')
        e.wait(vm=zt)
        if nz == 2:
            e(f'v_max_u32 {v(mx)}, {v(z)}, {v(z+1)}\nv_add_f32 {v(z)}, {v(z)}, {v(z+1)}')
        else:
            e(f'v_max3_u32 {v(mx)}, {v(z)}, {v(z+1)}, {v(z+2)}\nv_max_u32 {v(mx)}, {v(mx)}, {v(z+3)}')
            e(f'v_pk_add_f32 {v(z,2)}, {v(z,2)}, {v(z+2,2)}\nv_add_f32 {v(z)}, {v(z)}, {v(z+1)}')
        e(f'v_mov_b32 {v(z+1)}, {v(z)}\nv_permlane16_swap_b32 {v(z)}, {v(z+1)}\nv_add_f32 {v(z)}, {v(z)}, {v(z+1)}')
        e(f'v_mov_b32 {v(z+1)}, {v(z)}\nv_permlane32_swap_b32 {v(z)}, {v(z+1)}\nv_add_f32 {v(z)}, {v(z)}, {v(z+1)}')
        e(f'v_cvt_pk_bf16_f32 {v(z)}, {v(z)}, {v(z)}')
        e(f'ds_write_b16 {v(vZw)}, {v(z)} offset:512')
        for p in range(nk):
            e.wait(vm=kt[p])
            b = vXF + 4*p
            e(f'v_mfma_f32_16x16x32_bf16 {v(C,4)}, {v(vSEL,4)}, {v(b,4)}, {v(C,4) if p else 0}')
            e(f'v_max3_u32 {v(mx)}, {v(mx)}, {v(b)}, {v(b+1)}\nv_max3_u32 {v(mx)}, {v(mx)}, {v(b+2)}, {v(b+3)}')
        e(f'v_cmp_eq_u32 vcc, -1, {v(mx)}\ns_cbranch_vccnz L_e1r{l}')
        t = Asm()
        t(f'L_e1r{l}:\ns_nop 7')
        self.e1_loads(t, l)
        t(f's_sub_u32 {s(sBUD)}, {s(sBUD)}, 1\ns_cbranch_scc1 L_fail\ns_waitcnt vmcnt(0)\ns_branch L_e1c{l}')
        self.tail.append(t)
        self.stamp(f'L{l}.e1')
        dl = self.dma_list(dma2)
        e(f'v_cvt_pk_bf16_f32 {v(vTM)}, {v(C)}, {v(C+1)}\nv_cvt_pk_bf16_f32 {v(vTM+1)}, {v(C+2)}, {v(C+3)}')
        e(f'ds_write_b64 {v(vKVw)}, {v(vTM,2)}')
        for _ in range(2):
            if dl: self.dma_item(*dl.pop(0))
        e.wait_all_lg()
        e('s_barrier')
        KF = vWB + 8
        kr = vKVrA if typ == 0 else vKVrB
        tg = []
        for hh in range(2):
            for u in range(2):
                off = (2*u + hh) * 544 if typ == 0 else hh * 544 + u * 16
                tg.append(e(f'ds_read_b128 {v(KF + 4*(2*hh+u),4)}, {v(kr)} offset:{off}'))
        for _ in range(3):
            if dl: self.dma_item(*dl.pop(0))
        for hh in range(2):
            acc = (vA0, vA1)[hh]
            for u in range(2):
                e.wait(lg=tg[2*hh+u])
                pq = PQ + 4*hh if typ == 0 else PQ + 8*hh + 4*u
                e(f'v_mfma_f32_32x32x16_bf16 {v(acc,16)}, {v(KF+4*(2*hh+u),4)}, {v(pq,4)}, {v(acc,16) if u else 0}')
        while dl: self.dma_item(*dl.pop(0))
        for hh in range(2):
            acc = (vA0, vA1)[hh]
            e(f'v_add_f32 {v(acc+8)}, {s(sEPS6)}, {v(acc+8)}\nv_rcp_f32 {v(acc+8)}, {v(acc+8)}')
            for i in range(4): e(f'v_pk_mul_f32 {v(acc+2*i,2)}, {v(acc+2*i,2)}, {v(acc+8,2)} op_sel_hi:[1,0]')
            for i in range(4): e(f'v_cvt_pk_bf16_f32 {v(vTM+4*hh+i)}, {v(acc+2*i)}, {v(acc+2*i+1)}')
        self.dump(f'L{l}.o', [v(vTM+i) for i in range(8)])
        def st(e, m):
            e(f'buffer_store_dwordx4 {v(vTM,4)}, {v(vL16)}, {s(sWS,4)}, {s(sOwr)} offen{m}')
            e(f'buffer_store_dwordx4 {v(vTM+4,4)}, {v(vL16)}, {s(sWS,4)}, {s(sOwr)} offen offset:1024{m}')
            e(f'v_mov_b32 {v(vWB)}, {l+1}')
            e.wait_all_vm()
            e(f's_mov_b64 exec, 1\nbuffer_store_dword {v(vWB)}, off, {s(sWS,4)}, {s(sFOwr)}{m}\ns_mov_b64 exec, -1')
        self.modal(f'po{l}', st)
        self.stamp(f'L{l}.pub2')

    def o_proj(self, l, wo_slots, dma):
        e = self.e; typ = l & 1
        AW = 128 * typ
        if l == 0:
            t0, t1 = vTM, vTM + 1
            e(f'''
            v_bfe_u32 {v(t0)}, {v(vLane)}, 2, 2
            v_lshrrev_b32 {v(t1)}, 5, {v(vLane)}
            v_lshl_add_u32 {v(t0)}, {v(t1)}, 3, {v(t0)}
            v_lshlrev_b32 {v(t0)}, 5, {v(t0)}
            v_bfe_u32 {v(t1)}, {v(vLane)}, 4, 1
            v_lshl_add_u32 {v(t0)}, {v(t1)}, 4, {v(t0)}
            v_bfe_u32 {v(t1)}, {v(vLane)}, 1, 1
            v_lshl_add_u32 {v(t0)}, {v(t1)}, 3, {v(t0)}
            v_add_u32 {v(t0)}, {L_WP}, {v(t0)}
            ''')
            for hh in range(2):
                for t in range(2):
                    tw = e(f'ds_read_b64_tr_b16 {v(vWPH+4*hh+2*t,2)}, {v(t0)} offset:{hh*512 + t*128}')
            e(f'v_bfe_u32 {v(t1)}, {v(vLane)}, 2, 1\nv_mul_u32_u24 {v(t1)}, 0x8000, {v(t1)}\nv_lshl_or_b32 {v(t1)}, {v(t1)}, 16, {v(t1)}')
            e.wait(lg=tw)
            for i in range(8): e(f'v_xor_b32 {v(vWPH+i)}, {v(t1)}, {v(vWPH+i)}')
        if wo_slots:
            t0, t1, t2 = vTM, vTM + 1, vTM + 2
            e(f'''
            s_lshr_b32 {s(sT[0])}, {s(sW)}, 1
            s_lshl_b32 {s(sT[1])}, {s(sT[0])}, 14
            v_bfe_u32 {v(t0)}, {v(vLane)}, 2, 2
            v_lshrrev_b32 {v(t1)}, 5, {v(vLane)}
            v_lshl_add_u32 {v(t0)}, {v(t1)}, 3, {v(t0)}
            v_lshl_add_u32 {v(t0)}, {v(t0)}, 7, {s(sT[1])}
            v_bfe_u32 {v(t1)}, {v(vLane)}, 3, 1
            v_xor_b32 {v(t1)}, {s(sT[0])}, {v(t1)}
            v_lshl_add_u32 {v(t0)}, {v(t1)}, 6, {v(t0)}
            v_and_b32 {v(t1)}, 1, {v(vLane)}
            v_lshl_add_u32 {v(t0)}, {v(t1)}, 5, {v(t0)}
            v_bfe_u32 {v(t1)}, {v(vLane)}, 4, 1
            v_lshl_add_u32 {v(t0)}, {v(t1)}, 4, {v(t0)}
            v_bfe_u32 {v(t1)}, {v(vLane)}, 1, 1
            v_lshl_add_u32 {v(t0)}, {v(t1)}, 3, {v(t0)}
            ''')
            for half in range(2):
                e(f'v_add_u32 {v(t1)}, {wo_slots[half]*SLOT}, {v(t0)}\nv_xor_b32 {v(t2)}, 64, {v(t1)}')
                for hh in range(8):
                    ks = half * 8 + hh
                    for own, ad in ((0, t1), (1, t2)):
                        for t in range(2):
                            e(f'ds_read_b64_tr_b16 {a(AW + ks*8 + own*4 + 2*t, 2)}, {v(ad)} offset:{hh*2048 + t*512}')
        for i in range(8):
            e(f'v_lshlrev_b32 {v(vA0+2*i)}, 16, {v(vRES+i)}\nv_and_b32 {v(vA0+2*i+1)}, {s(sHI)}, {v(vRES+i)}')
        e.wait_all_lg()
        self.stamp(f'L{l}.pre2')
        self.poll(f'pollo{l}', sFOrd, l + 1)
        self.stamp(f'L{l}.poll2')
        ot = [None] * 16
        def oload(k):
            if k % 4 == 0: e(f's_add_u32 {s(sT[0])}, {s(sOrd)}, {k*1024}')
            ot[k] = e(f'buffer_load_dwordx4 {v(vXF+4*k,4)}, {v(vL16)}, {s(sWS,4)}, {s(sT[0])} offen offset:{(k&3)*1024} sc1')
        PRE = self.o.xpre
        for k in range(PRE): oload(k)
        dl = self.dma_list(dma)
        for k in range(16):
            if k + PRE < 16: oload(k + PRE)
            elif dl: self.dma_item(*dl.pop(0))
            e.wait(vm=ot[k])
            e(f'v_mfma_f32_32x32x16_bf16 {v(vA1,16)}, {a(AW+k*8+4,4)}, {v(vXF+4*k,4)}, {v(vA1,16) if k else 0}')
            e(f'v_mfma_f32_32x32x16_bf16 {v(vA0,16)}, {a(AW+k*8,4)}, {v(vXF+4*k,4)}, {v(vA0,16)}')
        while dl: self.dma_item(*dl.pop(0))
        e(f'v_xor_b32 {v(vTM)}, 0x2000, {v(vEXw)}')
        for r in (sXrd, sXwr, sSTrd, sSTwr, sOrd, sOwr): e(f's_add_u32 {s(r)}, {s(r)}, {s(sSTR)}')
        for n in range(4): e(f'ds_write_b128 {v(vEXw)}, {v(vA1+4*n,4)} offset:{n*1024}')
        e.wait_all_lg()
        e('s_barrier')
        self.stamp(f'L{l}.B3')
        tg = [e(f'ds_read_b128 {v(vWB+4*n,4)}, {v(vTM)} offset:{n*1024}') for n in range(4)]
        for n in range(4):
            e.wait(lg=tg[n])
            for i in (0, 2): e(f'v_pk_add_f32 {v(vA0+4*n+i,2)}, {v(vA0+4*n+i,2)}, {v(vWB+4*n+i,2)}')
            if l == 3 and self.o.bias:
                for i in range(4): e(f'v_add_f32 {v(vA0+4*n+i)}, {self.o.bias}, {v(vA0+4*n+i)}')
            for i in (0, 2): e(f'v_cvt_pk_bf16_f32 {v(vRES+2*n+i//2)}, {v(vA0+4*n+i)}, {v(vA0+4*n+i+1)}')
        self.dump(f'L{l}.x', [v(vRES+i) for i in range(8)])
        if l < 3:
            self.publish_x(f'px{l}', l + 2)
            e('s_barrier')
            self.stamp(f'L{l}.pub3')
            self.poll(f'pollx{l}', sFXrd, l + 2)
            self.stamp(f'L{l}.poll3')
        else:
            e(f'buffer_store_dwordx4 {v(vRES,4)}, {v(vXO)}, {s(sOUT,4)}, {s(sXO)} offen {self.o.outmod}')
            e(f'buffer_store_dwordx4 {v(vRES+4,4)}, {v(vXO)}, {s(sOUT,4)}, {s(sXO)} offen offset:16 {self.o.outmod}')

    def build(self):
        e = self.e
        self.prologue()
        W = lambda t, p, sl: ('W', t, p, sl)
        O = lambda t, h, sl: ('O', t, h, sl)
        plan = [
            dict(kv=0, q=2, wo=(3, 0), b0=[W(0,0,2)], b1=[O(0,0,3), O(0,1,0)], b2=[W(1,1,1)], b3=[W(1,2,2)]),
            dict(kv=1, q=3, wo=(0, 1), b0=[W(1,0,3)], b1=[O(1,0,0), O(1,1,1)], b2=[W(0,1,2)], b3=[W(0,2,3)]),
            dict(kv=2, q=0, wo=None, b0=[W(0,0,0)], b1=[W(1,1,1)], b2=[], b3=[W(1,2,2)]),
            dict(kv=1, q=3, wo=None, b0=[W(1,0,3)], b1=[], b2=[], b3=[]),
        ]
        for l in range(4):
            p = plan[l]
            self.kv_gemm(l, p['kv'], p['b0'])
            self.kv_epilogue(l, self.e.vm)
            self.q_phase(l, p['q'], p['b1'], p['b2'])
            self.o_proj(l, p['wo'], p['b3'])
        if self.o.stamps:
            self.stamp('end')
            e(f's_memrealtime {s(sTS,2)}'); e.wait_all_lg()
            e(f'v_writelane_b32 {v(vSTAMP)}, {s(sTS)}, 63')
            e(f's_lshl_b32 {s(sT[0])}, s2, 2\ns_add_u32 {s(sT[0])}, {s(sT[0])}, {s(sW)}\ns_lshl_b32 {s(sT[0])}, {s(sT[0])}, 8\ns_add_u32 {s(sT[0])}, {s(sT[0])}, {STAMP}')
            e(f'buffer_store_dword {v(vSTAMP)}, {v(vL4)}, {s(sWS,4)}, {s(sT[0])} offen')
        if self.o.echo:
            self.stamp('end')
            if self.o.echo[0] == 'fixed':
                e(f's_mov_b32 {s(sE0)}, {self.o.echo[2]}')
            else:
                e(f's_sub_u32 {s(sE0)}, {s(sE1)}, {s(sE0)}\ns_mul_i32 {s(sE0)}, {s(sE0)}, {self.o.echo[2]}')
            e(f'{self.o.clk} {s(sE1,2)}\ns_waitcnt lgkmcnt(0)')
            e(f'L_echo:\n{self.o.clk} {s(sTS,2)}\ns_waitcnt lgkmcnt(0)\ns_sub_u32 {s(sTS)}, {s(sTS)}, {s(sE1)}\ns_cmp_lt_u32 {s(sTS)}, {s(sE0)}\ns_cbranch_scc1 L_echo')
        e('L_fail:\ns_endpgm')
        body = e.finish() + ''.join(t.finish() for t in self.tail) + 'L_code_end:\n    s_endpgm\n'
        head = open('cdna_kernels/' + NAME + '.s.ref').read().split('; Override launch')[0]
        txt = head + '; @launch grid=(256,1,1) block=(256,1,1) lds=163840\n'
        txt += f'''.amdgcn_target "amdgcn-amd-amdhsa--gfx950"
.text
.globl {NAME}_kernel
.p2align 8
.type {NAME}_kernel,@function
{NAME}_kernel:
{body}.section .rodata,"a"
.p2align 6
.amdhsa_kernel {NAME}_kernel
  .amdhsa_next_free_vgpr 512
  .amdhsa_next_free_sgpr 102
  .amdhsa_accum_offset 256
  .amdhsa_group_segment_fixed_size 0
  .amdhsa_kernarg_size 80
  .amdhsa_user_sgpr_count 2
  .amdhsa_user_sgpr_kernarg_segment_ptr 1
  .amdhsa_system_sgpr_workgroup_id_x 1
  .amdhsa_float_denorm_mode_32 3
.end_amdhsa_kernel
'''
        return txt

if __name__ == '__main__':
    ap = argparse.ArgumentParser()
    ap.add_argument('-o', default='cdna_kernels/' + NAME + '.s')
    ap.add_argument('--stamps', action='store_true')
    ap.add_argument('--force-safe', action='store_true')
    ap.add_argument('--dump', default='')
    ap.add_argument('--echo', default='')
    ap.add_argument('--bias', default='')
    ap.add_argument('--clk', default='s_memtime')
    ap.add_argument('--outmod', default='')
    ap.add_argument('--initmod', default='')
    ap.add_argument('--xpre', type=int, default=8)
    ap.add_argument('--e1at', type=int, default=24)
    opt = ap.parse_args()
    opt.dump = opt.dump.split(',') if opt.dump else []
    opt.echo = opt.echo.split(',') if opt.echo else []
    g = Gen(opt)
    txt = g.build()
    open(opt.o, 'w').write(txt)
    if opt.stamps:
        open(opt.o + '.stamps', 'w').write('\n'.join(g.stamp_names))
    print('wrote', opt.o, len(txt), 'bytes; vgpr persistent', _vn[0], 'sgpr', _sn[0], 'stamps', g.nstamp)
```

```python
import re

def R(kind, lo, n=1):
    return f"{kind}{lo}" if n == 1 else f"{kind}[{lo}:{lo+n-1}]"
def v(lo, n=1): return R('v', lo, n)
def a(lo, n=1): return R('a', lo, n)
def s(lo, n=1): return R('s', lo, n)

_reg_re = re.compile(r'(?<![\w.])(-|\|)?([vas])(?:(\d+)\b|\[(\d+):(\d+)\])')
def regs_of(op):
    out = set()
    op = op.strip()
    if op in ('vcc', 'vcc_lo', 'vcc_hi'): return {('s', 'vcc')}
    if op in ('exec', 'exec_lo', 'exec_hi'): return {('s', 'exec')}
    if op == 'm0': return {('s', 'm0')}
    for m in _reg_re.finditer(op):
        k = m.group(2)
        if m.group(3) is not None: out.add((k, int(m.group(3))))
        else:
            for i in range(int(m.group(4)), int(m.group(5)) + 1): out.add((k, i))
    return out

TRANS = ('v_exp_f32', 'v_log_f32', 'v_rcp_f32', 'v_rsq_f32', 'v_sqrt_f32', 'v_sin_f32', 'v_cos_f32', 'v_rcp_iflag')
def split_ops(rest):
    ops, depth, cur = [], 0, ''
    for ch in rest:
        if ch == '[': depth += 1
        if ch == ']': depth -= 1
        if ch == ',' and depth == 0:
            ops.append(cur.strip()); cur = ''
        else: cur += ch
    if cur.strip(): ops.append(cur.strip())
    return ops

class Ins:
    def __init__(self, text):
        self.text = text
        t = text.split(';')[0].strip()
        self.label = t.endswith(':')
        self.directive = t.startswith('.') and not self.label
        self.empty = (t == '')
        self.mn = ''
        self.w = set(); self.r = set(); self.srcC = set(); self.srcAB = set(); self.stdata = set()
        if self.label or self.directive or self.empty: return
        parts = t.split(None, 1)
        mn = self.mn = parts[0]
        rest = parts[1] if len(parts) > 1 else ''
        ops = split_ops(rest)
        clean = []
        for o in ops:
            clean.append(o.split(' ')[0] if not o.startswith('hwreg') else o)
        self.mods = rest
        self.mfma = mn.startswith('v_mfma')
        self.valu = mn.startswith('v_') and not self.mfma
        self.salu = mn.startswith('s_')
        self.trans = mn.startswith(TRANS)
        self.dot = mn.startswith('v_dot')
        self.vmem = mn.startswith(('buffer_', 'global_'))
        self.ds = mn.startswith('ds_')
        self.dpp = ('_dpp' in mn) or ('row_' in rest) or ('quad_perm' in rest)
        self.perml = mn.startswith('v_permlane')
        self.rdlane = mn.startswith(('v_readlane', 'v_readfirstlane'))
        self.ldsdma = self.vmem and (re.search(r'\blds\b', rest) is not None or 'load_lds' in mn)
        rs = [regs_of(o) for o in clean]
        if self.mfma:
            self.w = rs[0]; self.srcAB = rs[1] | rs[2]; self.srcC = rs[3]; self.r = self.srcAB | self.srcC
            self.passes = 8 if '32x32' in mn else (2 if '4x4x4' in mn else 4)
            if mn in ('v_mfma_f32_16x16x4_f32', 'v_mfma_f32_32x32x2_f32'): raise Exception('sgemm not modelled')
        elif self.valu:
            if self.perml:
                self.w = rs[0] | rs[1]; self.r = rs[0] | rs[1]
            else:
                self.w = set(rs[0])
                for x in rs[1:]: self.r |= x
                if mn.startswith(('v_fmac', 'v_dot2c', 'v_writelane', 'v_pk_fmac')): self.r |= rs[0]
                if mn.startswith(('v_add_co', 'v_addc_co', 'v_sub_co')):
                    self.w |= rs[1]
                if self.dot and len(rs) == 4: self.srcC = rs[3]
        elif self.vmem:
            if 'store' in mn or ('atomic' in mn):
                for x in rs: self.r |= x
                if mn.startswith('buffer_'): self.stdata = rs[0]
                else: self.stdata = rs[1]
                if 'atomic' in mn and 'sc0' in rest: self.w = rs[0]
                if not ('x3' in mn or 'x4' in mn): self.stdata = set()
            elif self.ldsdma:
                for x in rs: self.r |= x
                self.r.add(('s', 'm0'))
            elif mn in ('buffer_inv', 'buffer_wbl2'):
                pass
            else:
                self.w = rs[0]
                for x in rs[1:]: self.r |= x
        elif self.ds:
            if 'read' in mn or 'permute' in mn or 'swizzle' in mn:
                self.w = rs[0]
                for x in rs[1:]: self.r |= x
            else:
                for x in rs: self.r |= x
        elif self.salu:
            if mn.startswith(('s_cmp', 's_cbranch', 's_branch', 's_waitcnt', 's_barrier', 's_nop', 's_endpgm', 's_sleep', 's_setprio', 's_bitcmp')):
                for x in rs: self.r |= x
            else:
                if rs: self.w = rs[0]
                for x in rs[1:]: self.r |= x
    def states(self):
        if self.label or self.directive or self.empty: return 0
        if self.mn == 's_nop': return int(self.mods.strip(), 0) + 1
        return 1

def need(p, c):
    n = 0
    vec = lambda S: {x for x in S if x[0] in 'va'}
    sca = lambda S: {x for x in S if x[0] == 's'}
    if p.valu:
        pw = vec(p.w); ps = sca(p.w)
        if c.mfma and (pw & c.r): n = max(n, 3 if p.dot else 2)
        if p.trans and (c.valu and not c.trans or c.vmem or c.ds) and (pw & c.r): n = max(n, 1)
        if c.valu and (c.perml or c.dpp) and (pw & c.r): n = max(n, 2)
        if c.valu and c.rdlane and (pw & c.r): n = max(n, 1)
        if p.dot and (c.valu or c.vmem or c.ds):
            if pw & (c.r | c.w):
                if c.valu and c.dot and c.mn == p.mn and not (pw & (c.r - c.srcC)) : pass
                else: n = max(n, 3)
        if ps:
            if c.valu and (ps & c.r): n = max(n, 4 if c.mn.startswith(('v_readlane', 'v_writelane')) else 2)
            if c.valu and c.mn.startswith('v_cndmask') and ('s', 'vcc') in ps: n = max(n, 2)
            if c.vmem and (ps & c.r): n = max(n, 5)
            if c.salu and (ps & c.r): n = max(n, 1)
    if p.mfma:
        big = {2: 5, 4: 8, 8: 12}[p.passes]
        if c.mfma:
            if p.w & c.srcAB: n = max(n, big)
            if p.w & c.srcC:
                if not (p.w == c.srcC and p.passes == c.passes): n = max(n, max(4, big - 2))
                elif p.passes == 2: n = max(n, 2)
            elif p.w & c.w:
                n = max(n, max(4, big - 2))
        elif c.valu or c.vmem or c.ds:
            if p.w & (c.r | c.w): n = max(n, big)
            if c.valu and (p.srcC & c.w): n = max(n, {2: 1, 4: 3, 8: 7}[p.passes])
    if p.vmem and p.stdata:
        if (c.valu or c.mfma) and (p.stdata & c.w): n = max(n, 2)
        elif (c.vmem or c.ds) and (p.stdata & c.w): n = max(n, 1)
    if p.salu and ('s', 'm0') in p.w and c.vmem and c.ldsdma: n = max(n, 1)
    return n

class Asm:
    def __init__(self):
        self.ins = []
        self.vm = 0
        self.lg = 0
        self.vm_done = 0
        self.lg_done = 0
    def __call__(self, text):
        tag = None
        for line in text.split('\n'):
            if not line.strip(): continue
            i = Ins(line.strip())
            self.ins.append(i)
            if i.mn:
                if i.vmem: self.vm += 1; tag = self.vm
                if i.ds: self.lg += 1; tag = self.lg
        return tag
    def raw(self, text):
        vm, lg = self.vm, self.lg
        self(text)
        self.vm, self.lg = vm, lg
    def wait(self, vm=None, lg=None):
        parts = []
        if vm is not None and vm > self.vm_done:
            n = self.vm - vm
            if n <= 63:
                parts.append(f'vmcnt({n})'); self.vm_done = vm
            else: raise Exception('vmcnt overflow')
        if lg is not None and lg > self.lg_done:
            n = min(self.lg - lg, 15)
            parts.append(f'lgkmcnt({n})'); self.lg_done = self.lg - n
        if parts: self('s_waitcnt ' + ' '.join(parts))
    def wait_all_vm(self):
        self('s_waitcnt vmcnt(0)'); self.vm_done = self.vm
    def wait_all_lg(self):
        self('s_waitcnt lgkmcnt(0)'); self.lg_done = self.lg
    def finish(self):
        out = []
        hist = []
        nnop = 0
        for c in self.ins:
            if c.label or c.directive or c.empty:
                out.append(c); continue
            req = 0; dist = 0
            for p in reversed(hist):
                n = need(p, c)
                if n > dist: req = max(req, n - dist)
                dist += p.states()
                if dist >= 20: break
            while req > 0:
                k = min(req, 16)
                nop = Ins(f's_nop {k-1}')
                out.append(nop); hist.append(nop); req -= k; nnop += 1
            out.append(c); hist.append(c)
            if c.mn in ('s_branch', 's_endpgm'): hist = []
        lines = []
        for i in out:
            lines.append(i.text if i.label else '    ' + i.text)
        return '\n'.join(lines) + '\n'
```

```python
def spread(d, l, item, points, n=1):
    first = True
    for p in points:
        k = f'{l}.{p}'
        d.setdefault(k, [])
        if first and item: d[k].append(item)
        first = False
        d[k].append(n)
KV = [f'kv{k}' for k in range(24, 32)]
Q = lambda a, b, st=1: [f'q{k}' for k in range(a, b, st)]
EKA = ['ek0', 'ek1', 'ek2', 'ek3']
EQA = ['eq0', 'eq1', 'eq2', 'eq3']
EKB = [f'ek{h}{c}' for h in range(2) for c in 'abcd']
EQB = [f'eq{h}{c}' for h in range(2) for c in 'abcd']
P = lambda a: [f'p{k}' for k in range(a, 16)]
SCHEDS = {}
d = {}
for l, (q, w, k, v) in enumerate([(None, ('aA3', 'bA0'), 'KB1', 'VB2'), ('QB3', ('aB0', 'bB1'), 'KA2', 'VA3')]):
    if q: spread(d, l, q, KV)
    spread(d, l, w[0], Q(0, 8)); spread(d, l, w[1], Q(8, 16))
    spread(d, l, k, ['o0', 'o1', 'o2'], 3)
    spread(d, l, v, P(8))
spread(d, 2, 'QA0', KV); spread(d, 2, 'KB1', Q(0, 8)); spread(d, 2, 'VB2', P(8)); spread(d, 3, 'QB3', KV)
SCHEDS['o'] = d
d = {}
spread(d, 0, 'aA3', EKA, 2); spread(d, 0, 'bA0', Q(0, 16, 2)); spread(d, 0, 'KB1', EQA, 2)
spread(d, 0, 'VB2', ['p12', 'p13', 'p14', 'p15', 'p15b']); spread(d, 0, None, ['x0'], 3)
spread(d, 1, 'QB3', KV[2:] + ['kvend', 'kvend']); spread(d, 1, 'aB0', EKB); spread(d, 1, 'bB1', Q(0, 16, 2)); spread(d, 1, 'KA2', EQB)
spread(d, 1, 'VA3', ['p12', 'p13', 'p14', 'p15', 'p15b']); spread(d, 1, None, ['x0'], 3)
spread(d, 2, 'QA0', KV[2:] + ['kvend', 'kvend']); spread(d, 2, 'KB1', Q(0, 16, 2)); spread(d, 2, 'VB2', EQA, 2)
spread(d, 3, 'QB3', KV[2:] + ['kvend', 'kvend'])
SCHEDS['a'] = d
```

```python
import sys, argparse
sys.path.insert(0, 'gen')
from asmlib import *

NAME = 'interleave_layers__linear_attn_block__linear_kernel_hedgehog__prompt'

FLG_O, FLG_X = 0x0000, 0x2000
ZP = 0x10000
STAMP = 0x60000
KVP = 0x100000
EXB, EXSTRIDE = 0x400000, 0x500000
OB, XB, ST = EXB, EXB + 0x200000, EXB + 0x400000
DUMP = 0x2400000
WS_BYTES = 0x4000000
OOB = 0x7F000000
SLOT = 32768
SCR = 4 * SLOT
PL = 2176
L_PK = SCR
L_EX = SCR
L_KV = SCR + 12 * PL
L_CS = L_KV + 2176
L_WP = L_CS + 3072
assert L_WP + 1024 <= 163840

sX, sWA, sWOA, sWB, sWP, sWOB, sOUT, sDBG, sWS, sCODE = 4, 8, 12, 16, 20, 24, 28, 32, 36, 40
_sn = [44]
def salloc(n=1, al=1):
    while _sn[0] % al: _sn[0] += 1
    r = _sn[0]; _sn[0] += n
    assert _sn[0] <= 100
    return r
sW, sR, sG, sRB, sRBO, sJ, sMODE, sBUD, sSTR = [salloc() for _ in range(9)]
sRw, sRo, sIDX = [salloc() for _ in range(3)]
sJUNK = 3
sXrd, sXwr, sSTrd, sSTwr, sOrd, sOwr, sFOrd, sFOwr, sFXrd, sFXwr = [salloc() for _ in range(10)]
sKVrdA, sKVrdB, sKVwrB, sZrdA, sZrdB, sZwrB, sSKIP = [salloc() for _ in range(7)]
sXO, sONES, sPERM, sHI, sXCC = [salloc() for _ in range(5)]
sROT, sRESP, sAT = 40, 41, 42
sX0g, sX0l, sW0g, sW0l = sMODE, sSTR, salloc(), salloc()
sL2E = salloc(2, 2); sEPS6 = salloc(2, 2)
sT = [salloc() for _ in range(6)]
sTS = salloc(2, 2)
sE0 = salloc(2, 2); sE1 = salloc(2, 2)

_vn = [1]
def valloc(n=1, al=1):
    while _vn[0] % al: _vn[0] += 1
    r = _vn[0]; _vn[0] += n
    return r
vLane = valloc()
vL16 = valloc(); vL4 = valloc()
vRES = valloc(8, 4)
vWPH = valloc(8, 4)
vSEL = valloc(4, 4)
vCS = valloc(12, 2)
vMF = valloc(2, 2)
vRS = valloc(2, 2)
vXq = valloc(4); vWtr = valloc(4)
vWdma, vWOdma, vPKwA, vPKwB, vPKrA, vPKrB, vKVw, vZw, vKVrA, vKVrB, vEXw, vE1st, vZst, vSTst, vFl16, vXO = [valloc() for _ in range(16)]
assert _vn[0] <= 64, _vn[0]
vA0, vA1, vWB, vTM = 64, 80, 96, 120
vXF = 128
vM1 = vTM + 2
vSTAMP = 0

from scheds import SCHEDS

class Gen:
    def __init__(self, opt):
        self.o = opt
        self.e = Asm()
        self.tail = []
        self.nstamp = 0
        self.stamp_names = []
        self.wtr_slot = 0
        self.ndump = 0
        self.bgq = []; self.bgt = {}; self.seen = set(); self.l = 0

    def stamp(self, name):
        if self.o.echo and name in self.o.echo[:2]:
            self.e(f'{self.o.clk} {s(sE0 if name == self.o.echo[0] else sE1, 2)}')
            self.e.wait_all_lg()
        if not self.o.stamps: return
        e = self.e
        if self.o.both:
            if self.o.both == 2 and name not in ('start', 'end'): return
            if self.o.both == 3:
                if not (name.startswith(('chunk', 'L0', 'setup', 'g')) or name in ('start', 'end')): return
            elif name.split('.')[-1] not in ('start', 'chunk0', 'x0', 'kvgemm', 'pub1', 'phiq', 'pub2', 'poll2', 'B3', 'end'): return
            e(f's_memtime {s(sTS,2)}\ns_memrealtime {s(sE0,2)}')
            e.wait_all_lg()
            e(f'v_writelane_b32 {v(vSTAMP)}, {s(sTS)}, {self.nstamp}\nv_writelane_b32 {v(vSTAMP)}, {s(sE0)}, {self.nstamp+31}')
            self.nstamp += 1; self.stamp_names.append(name)
            assert self.nstamp <= 31
            return
        e(f'{self.o.clk} {s(sTS,2)}')
        e.wait_all_lg()
        e(f'v_writelane_b32 {v(vSTAMP)}, {s(sTS)}, {self.nstamp}')
        self.nstamp += 1; self.stamp_names.append(name)
    def dump(self, name, regs):
        if name not in self.o.dump: return
        e = self.e
        for r in regs:
            e(f's_lshl_b32 {s(sT[5])}, s2, 2\ns_add_u32 {s(sT[5])}, {s(sT[5])}, {s(sW)}\ns_lshl_b32 {s(sT[5])}, {s(sT[5])}, 14\ns_add_u32 {s(sT[5])}, {s(sT[5])}, {DUMP + self.ndump*256}')
            e(f'buffer_store_dword {r}, {v(vL4)}, {s(sWS,4)}, {s(sT[5])} offen')
            self.ndump += 1
        assert self.ndump <= 64
        e.wait_all_vm()
    def set_wtr(self, slot):
        d = (slot - self.wtr_slot) * SLOT
        if d:
            for q in range(4):
                self.e(f'v_add_u32 {v(vWtr+q)}, {d & 0xffffffff}, {v(vWtr+q)}')
        self.wtr_slot = slot
    def dma_w(self, typ, part, slot, n):
        srd = sWA if typ == 0 else sWB
        if self.o.fake == 1 or (self.o.fake == 3 and (self.l >= 2 or (self.l == 1 and typ == 0))): return self.e.vm
        if self.o.fake == 2:
            self.e(f's_xor_b32 {s(sT[4])}, {s(sRw)}, {n*4096}')
            self.e(f's_add_u32 m0, {s(sT[4])}, {slot*SLOT}')
            self.e(f's_mul_i32 {s(sT[5])}, {s(sG)}, 98304')
            self.e(f's_add_u32 {s(sT[4])}, {s(sT[4])}, {s(sT[5])}')
            self.e(f's_add_u32 {s(sT[4])}, {s(sT[4])}, {part*32768}')
            return self.e(f'buffer_load_dwordx4 {v(vL16)}, {s(srd,4)}, {s(sT[4])} offen lds')
        assert slot * SLOT >= part * 1024
        self.e(f's_xor_b32 {s(sT[4])}, {s(sRw)}, {n*4096}')
        self.e(f's_add_u32 m0, {s(sT[4])}, {slot*SLOT - part*1024}')
        self.e(f's_mul_i32 {s(sT[4])}, {s(sT[4])}, 48')
        return self.e(f'buffer_load_dwordx4 {v(vWdma)}, {s(srd,4)}, {s(sT[4])} offen offset:{part*1024} lds')
    def dma_wo(self, typ, half, slot, n):
        srd = sWOA if typ == 0 else sWOB
        if self.o.fake == 1: return self.e.vm
        self.e(f's_xor_b32 {s(sT[4])}, {s(sRo)}, {n*1024}')
        self.e(f's_add_u32 m0, {s(sT[4])}, {slot*SLOT}')
        self.e(f's_lshl3_add_u32 {s(sT[4])}, {s(sT[4])}, {half*131072}')
        return self.e(f'buffer_load_dwordx4 {v(vWOdma)}, {s(srd,4)}, {s(sT[4])} offen lds')
    def bg_add(self, name):
        kind, typ, slot = name[0], 'AB'.index(name[1]), int(name[2])
        for n in range(8):
            if kind in 'QKV': self.bgq.append((name, lambda n=n: self.dma_w(typ, 'QKV'.index(kind), slot, n)))
            else: self.bgq.append((name, lambda n=n: self.dma_wo(typ, 'ab'.index(kind), slot, n)))
    def bg(self, point):
        for x in self.sched.get(f'{self.l}.{point}', []):
            if isinstance(x, str): self.bg_add(x)
            else:
                for _ in range(x):
                    if self.bgq:
                        name, fn = self.bgq.pop(0)
                        self.bgt[name] = fn()
        self.seen.add(f'{self.l}.{point}')
    def bg_need(self, name):
        while any(n == name for n, _ in self.bgq):
            n, fn = self.bgq.pop(0)
            self.bgt[n] = fn()
        return self.bgt.pop(name)
    def poll(self, name, sbase, val):
        e = self.e
        e(f'L_{name}:')
        e(f'buffer_load_dword {v(vTM)}, {v(vFl16)}, {s(sWS,4)}, {s(sbase)} offen sc1')
        e(f's_sub_u32 {s(sBUD)}, {s(sBUD)}, 1\ns_cbranch_scc1 L_fail')
        e.wait_all_vm()
        e(f'v_cmp_gt_u32 vcc, {val}, {v(vTM)}\ns_cbranch_vccnz L_{name}')
    def modal(self, name, fn):
        e = self.e
        e(f's_cmp_lg_u32 {s(sMODE)}, 0\ns_cbranch_scc1 L_{name}_safe')
        fn(e, '')
        e(f'L_{name}_join:')
        t = Asm(); t(f'L_{name}_safe:\ns_nop 4'); fn(t, ' sc1'); t(f's_nop 1\ns_branch L_{name}_join')
        self.tail.append(t)

    def x_stats(self):
        e = self.e
        S, Q = vTM, vTM + 1
        for i in range(8):
            e(f'v_dot2_f32_bf16 {v(S)}, {v(vRES+i)}, {s(sONES)}, {v(S) if i else 0}')
        for i in range(8):
            e(f'v_dot2_f32_bf16 {v(Q)}, {v(vRES+i)}, {v(vRES+i)}, {v(Q) if i else 0}')
        e(f'v_permlane32_swap_b32 {v(S)}, {v(Q)}')
        e(f'v_add_f32 {v(S)}, {v(S)}, {v(Q)}')
    def publish_x(self, name, flagval):
        def st1(e, m):
            e(f'buffer_store_dwordx4 {v(vRES,4)}, {v(vL16)}, {s(sWS,4)}, {s(sXwr)} offen{m}')
            e(f'buffer_store_dwordx4 {v(vRES+4,4)}, {v(vL16)}, {s(sWS,4)}, {s(sXwr)} offen offset:1024{m}')
        def st2(e, m):
            e(f'buffer_store_dword {v(vTM)}, {v(vSTst)}, {s(sWS,4)}, {s(sSTwr)} offen{m}')
            e(f'v_mov_b32 {v(vTM+2)}, {flagval}')
            e.wait_all_vm()
            e(f's_mov_b64 exec, 1\nbuffer_store_dword {v(vTM+2)}, off, {s(sWS,4)}, {s(sFXwr)}{m}\ns_mov_b64 exec, -1')
        self.modal(name + 'a', st1)
        self.x_stats()
        self.modal(name + 'b', st2)

    def e1_addr(self, l, t):
        if l & 1: return vE1st, vZst
        self.e(f'v_add_u32 {v(t)}, {s(sSKIP)}, {v(vE1st)}\nv_add_u32 {v(t+1)}, {s(sSKIP)}, {v(vZst)}')
        return t, t + 1
    def clear_slot(self, l, m1, ak, az):
        e = self.e
        e(f'v_mov_b32 {v(m1)}, -1\nv_mov_b32 {v(m1+1)}, -1')
        e(f's_add_u32 {s(sT[4])}, {s(sKVwrB)}, {l*0x80000}\ns_add_u32 {s(sT[5])}, {s(sZwrB)}, {l*0x10000}')
        e(f'buffer_store_dwordx2 {v(m1,2)}, {v(ak)}, {s(sWS,4)}, {s(sT[4])} offen sc1')
        return e(f'buffer_store_dword {v(m1)}, {v(az)}, {s(sWS,4)}, {s(sT[5])} offen sc1')
    def dma0(self, P, n, again=False):
        e = self.e
        if n < 4:
            if n == 0 or again:
                e(f's_add_u32 m0, {s(sX0l)}, {(P % 3) * 16384}\ns_xor_b32 {s(sT[0])}, {s(sX0g)}, {P << 7}')
            return e(f'buffer_load_dwordx4 {v(vWPH+n)}, {s(sX,4)}, {s(sT[0])} offen offset:{n*1024} lds')
        if n == 4:
            e(f's_xor_b32 {s(sT[1])}, {s(sW0g)}, {P*4096}')
            e(f's_add_u32 m0, {s(sW0l)}, {P*4096 + SLOT - 2048}')
            e(f's_mul_i32 {s(sT[1])}, {s(sT[1])}, 48')
            return e(f'buffer_load_dwordx4 {v(vWdma)}, {s(sWA,4)}, {s(sT[1])} offen offset:2048 lds')
        assert not again
        e(f's_add_u32 m0, {s(sW0l)}, {P*4096}\ns_add_u32 {s(sT[1])}, {s(sT[1])}, 1024')
        return e(f'buffer_load_dwordx4 {v(vWdma)}, {s(sWA,4)}, {s(sT[1])} offen lds')
    def dma0q(self, P):
        e = self.e
        e(f's_xor_b32 {s(sT[1])}, {s(sW0g)}, {P*4096}')
        e(f's_add_u32 m0, {s(sW0l)}, {P*4096 + 2*SLOT}')
        e(f's_mul_i32 {s(sT[1])}, {s(sT[1])}, 48')
        return e(f'buffer_load_dwordx4 {v(vWdma)}, {s(sWA,4)}, {s(sT[1])} offen lds')

    def touch(self, i):
        e = self.e; T = sT; t16, t4 = vTM + 6, vTM + 7
        if i == 0:
            e(f's_lshl2_add_u32 {s(T[5])}, s2, {s(sW)}\ns_lshr_b32 {s(T[4])}, {s(T[5])}, 1\ns_lshl_b32 {s(T[4])}, {s(T[4])}, 11\ns_lshl_b32 {s(T[5])}, {s(T[5])}, 9\ns_add_u32 {s(T[4])}, {s(T[4])}, {s(T[5])}')
            return e(f'buffer_load_dword a255, {v(t4)}, {s(sWA,4)}, {s(T[4])} offen')
        if i in (1, 5):
            e(f's_lshl2_add_u32 {s(T[5])}, s2, {s(sW)}\ns_lshl_b32 {s(T[5])}, {s(T[5])}, 9')
            return e(f'buffer_load_dword a255, {v(t4)}, {s(sWOA if i == 1 else sWOB,4)}, {s(T[5])} offen')
        if i == 2: return e(f'buffer_load_dword a255, {v(t16)}, {s(sWS,4)}, {s(sOwr)} offen')
        if i == 3:
            e(f's_lshl_b32 {s(T[5])}, {s(sW)}, 8\ns_add_u32 {s(T[5])}, {s(T[5])}, s2\ns_min_u32 {s(T[5])}, {s(T[5])}, 767\ns_lshl_b32 {s(T[5])}, {s(T[5])}, 11')
            return e(f'buffer_load_dword a255, {v(t16)}, {s(sWB,4)}, {s(T[5])} offen')
        if i == 4: return e(f'buffer_load_dword a255, {v(t16)}, {s(sWS,4)}, {s(sXwr)} offen')
        if i == 6: return e(f'buffer_load_dword a255, {v(t4)}, {s(sWS,4)}, {s(sSTwr)} offen')

    def stouch(self, what):
        e = self.e; b = sTS
        def base(srd, off):
            e(f's_add_u32 {s(b)}, {s(srd)}, {s(off)}\ns_addc_u32 {s(b+1)}, {s(srd+1)}, 0')
        t = sT[5]
        if what in ('QA', 'QB'):
            e(f's_lshr_b32 {s(t)}, {s(sIDX)}, 1\ns_lshl2_add_u32 {s(t)}, {s(t)}, {s(sIDX)}\ns_lshl_b32 {s(t)}, {s(t)}, 9')
            base(sWA if what == 'QA' else sWB, t); offs = range(0, 512, 64)
        elif what in ('OA', 'OB'):
            e(f's_lshl_b32 {s(t)}, {s(sIDX)}, 9')
            base(sWOA if what == 'OA' else sWOB, t); offs = range(0, 512, 64)
        else:
            e(f's_lshr_b32 {s(t)}, {s(sIDX)}, 1\ns_lshl2_add_u32 {s(t)}, {s(t)}, {s(sIDX)}\ns_lshl_b32 {s(t)}, {s(t)}, 9')
            base(sWB, t); o = 1024 if what == 'KB' else 2048; offs = range(o, o + 512, 64)
        for o in offs: e(f's_load_dword {s(sJUNK)}, {s(b,2)}, {o}')
    def dummy(self, i):
        e = self.e
        if i < 4: return e(f'buffer_store_dwordx4 {v(vSEL,4)}, {v(vL16)}, {s(sWS,4)}, {s((sOwr, sXwr)[i >> 1])} offen offset:{(i & 1)*1024} sc1')
        return e(f'buffer_store_dword {v(vSEL)}, {v(vSTst)}, {s(sWS,4)}, {s(sSTwr)} offen sc1')

    def prologue(self):
        e = self.e
        T = sT
        e('s_cmp_ge_u32 s2, 256\ns_cbranch_scc1 L_fail')
        if self.o.echo and self.o.echo[0] == 'entry': e(f'{self.o.clk} {s(sE0,2)}')
        for srd, off in ((sX, 0), (sWA, 8), (sWS, 72), (sWOA, 16), (sWB, 32), (sWP, 40), (sWOB, 48), (sOUT, 56), (sDBG, 64)):
            e(f's_load_dwordx2 {s(srd,2)}, s[0:1], {off}')
        e(f's_getpc_b64 {s(sCODE,2)}')
        e(f'v_and_b32 {v(vLane)}, 63, v0\nv_lshrrev_b32 {v(vTM)}, 6, v0')
        e(f's_mov_b32 {s(sCODE+2)}, L_code_end-{NAME}_kernel-128\ns_mov_b32 {s(sCODE+3)}, 0x20000')
        e(f'v_readfirstlane_b32 {s(sW)}, {v(vTM)}')
        e(f's_lshr_b32 {s(sG)}, s2, 3\ns_lshl_b32 {s(T[0])}, {s(sG)}, 2\ns_add_u32 {s(T[0])}, {s(T[0])}, {s(sW)}')
        e(f's_and_b32 {s(T[0])}, {s(T[0])}, 7\ns_lshl_b32 {s(T[0])}, {s(T[0])}, 13')
        e(f'v_lshlrev_b32 {v(vTM+6)}, 7, {v(vLane)}')
        e(f'buffer_load_dword a255, {v(vTM+6)}, {s(sCODE,4)}, {s(T[0])} offen')
        for srd, sz in ((sX, 0x200000), (sWA, 0x180000), (sWS, WS_BYTES)):
            e(f's_mov_b32 {s(srd+2)}, {sz}\ns_mov_b32 {s(srd+3)}, 0x20000')
        t0, t1, t2 = vA1, vA1 + 1, vA1 + 2
        e(f'''
        s_and_b32 {s(sR)}, s2, 7
        s_lshl_b32 {s(sR)}, {s(sR)}, 1
        s_lshr_b32 {s(T[0])}, s2, 7
        s_add_u32 {s(sR)}, {s(sR)}, {s(T[0])}
        s_and_b32 {s(sG)}, {s(sG)}, 15
        s_lshl_b32 {s(sRB)}, {s(sR)}, 2
        s_add_u32 {s(sRB)}, {s(sRB)}, {s(sW)}
        s_and_b32 {s(sROT)}, {s(sG)}, 1
        s_lshl1_add_u32 {s(sROT)}, {s(sROT)}, {s(T[0])}
        s_lshl_b32 {s(sROT)}, {s(sROT)}, 1
        s_lshr_b32 {s(T[1])}, {s(sG)}, 1
        s_xor_b32 {s(sROT)}, {s(sROT)}, {s(T[1])}
        s_xor_b32 {s(sROT)}, {s(sROT)}, s2
        s_and_b32 {s(sROT)}, {s(sROT)}, 7
        s_lshl_b32 {s(sX0g)}, {s(sRB)}, 8
        s_add_u32 {s(sX0g)}, {s(sX0g)}, {s(sROT)}
        s_lshl_b32 {s(sX0g)}, {s(sX0g)}, 7
        s_lshl_b32 {s(sX0l)}, {s(sW)}, 12
        s_add_u32 {s(sX0l)}, {s(sX0l)}, {3*SLOT}
        s_lshl_b32 {s(sW0l)}, {s(sW)}, 10
        s_lshl2_add_u32 {s(sW0g)}, {s(sROT)}, {s(sW)}
        s_lshl_b32 {s(sW0g)}, {s(sW0g)}, 10
        s_lshl_b32 {s(T[2])}, {s(sG)}, 6
        v_lshrrev_b32 {v(vWdma)}, 2, {v(vLane)}
        v_mul_u32_u24 {v(vWdma)}, 3072, {v(vWdma)}
        v_and_b32 {v(vTM+5)}, 3, {v(vLane)}
        v_lshl_add_u32 {v(vWdma)}, {v(vTM+5)}, 4, {v(vWdma)}
        v_add_u32 {v(vWdma)}, {s(T[2])}, {v(vWdma)}
        v_lshrrev_b32 {v(vTM+4)}, 4, {v(vLane)}
        v_and_b32 {v(t2)}, 7, {v(vLane)}
        v_xor_b32 {v(t1)}, {v(t2)}, {v(vTM+4)}
        v_lshlrev_b32 {v(t1)}, 4, {v(t1)}
        v_lshrrev_b32 {v(t0)}, 3, {v(vLane)}
        v_lshl_add_u32 {v(vWPH)}, {v(t0)}, 10, {v(t1)}
        v_xor_b32 {v(vWPH+1)}, 64, {v(vWPH)}
        v_add_u32 {v(vWPH+1)}, {7168}, {v(vWPH+1)}
        v_add_u32 {v(vWPH+2)}, {2*7168}, {v(vWPH)}
        v_add_u32 {v(vWPH+3)}, {2*7168}, {v(vWPH+1)}
        v_and_b32 {v(vTM)}, 31, {v(vLane)}
        v_lshrrev_b32 {v(vTM+1)}, 5, {v(vLane)}
        v_lshlrev_b32 {v(vL16)}, 4, {v(vLane)}
        v_lshlrev_b32 {v(vL4)}, 2, {v(vLane)}
        ''')
        e(f'''
        s_lshl_b32 {s(T[3])}, {s(sG)}, 2
        s_add_u32 {s(T[3])}, {s(T[3])}, {s(sW)}
        s_lshl_b32 {s(sKVrdB)}, {s(T[3])}, 13
        s_add_u32 {s(sKVrdB)}, {s(sKVrdB)}, {KVP}
        s_lshl_b32 {s(sZrdB)}, {s(T[3])}, 10
        s_add_u32 {s(sZrdB)}, {s(sZrdB)}, {ZP}
        s_lshl_b32 {s(T[4])}, {s(sR)}, 9
        s_add_u32 {s(sKVwrB)}, {s(sKVrdB)}, {s(T[4])}
        s_lshl_b32 {s(T[5])}, {s(sR)}, 6
        s_add_u32 {s(sZwrB)}, {s(sZrdB)}, {s(T[5])}
        v_and_b32 {v(vFl16)}, 60, {v(vL4)}
        v_lshlrev_b32 {v(t0)}, 2, {v(vFl16)}
        v_lshl_add_u32 {v(t0)}, {v(vTM+1)}, 8, {v(t0)}
        v_and_b32 {v(t1)}, 1, {v(vTM+4)}
        v_lshl_add_u32 {v(vE1st)}, {v(t1)}, 3, {v(t0)}
        v_lshl_add_u32 {v(vZst)}, {v(vTM+4)}, 26, {v(vFl16)}
        s_lshr_b32 {s(sSKIP)}, {s(sR)}, 3
        s_lshr_b32 {s(T[1])}, {s(sW)}, 1
        s_xor_b32 {s(sSKIP)}, {s(sSKIP)}, {s(T[1])}
        s_lshl_b32 {s(sSKIP)}, {s(sSKIP)}, 28
        v_mov_b32 {v(vA0+4)}, 0
        s_lshr_b32 {s(sFOwr)}, {s(sG)}, 1
        s_lshl_b32 {s(sFOwr)}, {s(sFOwr)}, 13
        s_add_u32 {s(sFOwr)}, {s(sFOwr)}, {s(T[4])}
        s_and_b32 {s(sFOrd)}, {s(sG)}, 1
        s_lshl_b32 {s(sFOrd)}, {s(sFOrd)}, 8
        s_add_u32 {s(sFOwr)}, {s(sFOwr)}, {s(sFOrd)}
        ''')
        e('s_waitcnt lgkmcnt(0)')
        if self.o.stamps:
            e(f's_memrealtime {s(sTS,2)}'); e.wait_all_lg()
            e(f'v_writelane_b32 {v(vSTAMP)}, {s(sTS)}, 62')
        self.stamp('start')
        self.ct = [None] * 8
        for n in range(6): self.ct[0] = self.dma0(0, n)
        for n in range(self.o.c1early): self.ct[1] = self.dma0(1, n)
        e(f's_lshl2_add_u32 {s(sIDX)}, s2, {s(sW)}')
        st = [x.split('+') if x else [] for x in self.o.stouch.split(',')]
        for x in st[0]: self.stouch(x)
        e(f's_and_b32 {s(sFOrd)}, {s(T[3])}, 0x33\ns_cbranch_scc1 L_noclr')
        e.raw(f'buffer_store_dword {v(vA0+4)}, {v(vL4)}, {s(sWS,4)}, {s(sFOwr)} offen sc1')
        e('L_noclr:')
        self.clear_slot(0, vM1, *self.e1_addr(0, vA0 + 6))
        for srd, sz in ((sWOA, 0x80000), (sWB, 0x180000), (sWP, 0x4000), (sWOB, 0x80000), (sOUT, 0x200000), (sDBG, 256)):
            e(f's_mov_b32 {s(srd+2)}, {sz}\ns_mov_b32 {s(srd+3)}, 0x20000')
        e(f'''
        s_and_b32 {s(T[0])}, {s(sW)}, 1
        s_lshr_b32 {s(T[1])}, {s(sW)}, 1
        s_lshl_b32 {s(sRBO)}, {s(sR)}, 2
        s_lshr_b32 {s(T[4])}, {s(sG)}, 3
        s_lshl_b32 {s(T[4])}, {s(T[4])}, 1
        s_add_u32 {s(T[4])}, {s(T[4])}, {s(T[0])}
        s_add_u32 {s(sRBO)}, {s(sRBO)}, {s(T[4])}
        s_lshl_b32 {s(T[3])}, {s(T[4])}, 12
        s_add_u32 {s(T[3])}, {s(T[3])}, {3*SLOT}
        s_and_b32 {s(sJ)}, {s(sG)}, 7
        s_xor_b32 {s(sRESP)}, {s(sJ)}, {s(sROT)}
        s_lshl_b32 {s(sJ)}, {s(sJ)}, 1
        s_add_u32 {s(sJ)}, {s(sJ)}, {s(T[1])}
        s_lshl_b32 {s(sXO)}, {s(sRBO)}, 15
        s_lshl_b32 {s(T[2])}, {s(sJ)}, 6
        s_add_u32 {s(sXO)}, {s(sXO)}, {s(T[2])}
        v_lshlrev_b32 {v(vXO)}, 10, {v(vTM)}
        v_lshl_add_u32 {v(vXO)}, {v(vTM+1)}, 5, {v(vXO)}
        s_and_b32 {s(T[4])}, {s(sG)}, 1
        s_and_b32 {s(T[5])}, {s(sR)}, 1
        s_lshl1_add_u32 {s(T[4])}, {s(T[4])}, {s(T[5])}
        s_lshl3_add_u32 {s(T[4])}, {s(T[4])}, {s(sW)}
        s_lshl_b32 {s(sRw)}, {s(T[4])}, 10
        s_lshr_b32 {s(T[4])}, {s(sG)}, 3
        s_lshl1_add_u32 {s(T[4])}, {s(T[4])}, {s(T[5])}
        s_lshl2_add_u32 {s(T[4])}, {s(sW)}, {s(T[4])}
        s_lshl_b32 {s(sRo)}, {s(T[4])}, 11
        s_lshl_b32 {s(T[4])}, {s(T[1])}, 12
        s_add_u32 {s(sKVrdA)}, {s(sKVrdB)}, {s(T[4])}
        s_lshl_b32 {s(T[4])}, {s(T[1])}, 9
        s_add_u32 {s(sZrdA)}, {s(sZrdB)}, {s(T[4])}
        s_lshl_b32 {s(T[4])}, {s(sRB)}, 15
        s_add_u32 {s(sXrd)}, {s(T[4])}, {XB}
        s_lshl_b32 {s(T[5])}, {s(sG)}, 11
        s_add_u32 {s(sOwr)}, {s(T[4])}, {s(T[5])}
        s_add_u32 {s(sOwr)}, {s(sOwr)}, {OB}
        s_lshl_b32 {s(T[4])}, {s(sRBO)}, 15
        s_lshl_b32 {s(T[5])}, {s(sJ)}, 11
        s_add_u32 {s(sXwr)}, {s(T[4])}, {s(T[5])}
        s_add_u32 {s(sXwr)}, {s(sXwr)}, {XB}
        s_lshl_b32 {s(T[5])}, {s(T[1])}, 14
        s_add_u32 {s(sOrd)}, {s(T[4])}, {s(T[5])}
        s_add_u32 {s(sOrd)}, {s(sOrd)}, {OB}
        s_lshl_b32 {s(sSTrd)}, {s(sRB)}, 12
        s_add_u32 {s(sSTrd)}, {s(sSTrd)}, {ST}
        s_lshl_b32 {s(sSTwr)}, {s(sRBO)}, 12
        s_and_b32 {s(T[4])}, {s(sG)}, 7
        s_lshl_b32 {s(T[5])}, {s(T[4])}, 9
        s_add_u32 {s(sSTwr)}, {s(sSTwr)}, {s(T[5])}
        s_lshl_b32 {s(T[5])}, {s(T[1])}, 3
        s_add_u32 {s(sSTwr)}, {s(sSTwr)}, {s(T[5])}
        s_add_u32 {s(sSTwr)}, {s(sSTwr)}, {ST}
        s_lshl_b32 {s(T[2])}, {s(T[4])}, 7
        s_lshl_b32 {s(T[5])}, {s(T[1])}, 17
        s_add_u32 {s(T[2])}, {s(T[2])}, {s(T[5])}
        s_lshl_b32 {s(sFXrd)}, {s(sRB)}, 7
        s_lshl_b32 {s(T[5])}, {s(sG)}, 2
        s_add_u32 {s(sFOwr)}, {s(sFXrd)}, {s(T[5])}
        s_add_u32 {s(sFXrd)}, {s(sFXrd)}, {FLG_X}
        s_lshl_b32 {s(sFOrd)}, {s(sRBO)}, 7
        s_lshl_b32 {s(T[5])}, {s(sJ)}, 2
        s_add_u32 {s(sFXwr)}, {s(sFOrd)}, {s(T[5])}
        s_add_u32 {s(sFXwr)}, {s(sFXwr)}, {FLG_X}
        s_mov_b32 {s(sONES)}, 0x3f803f80
        s_mov_b32 {s(sPERM)}, 0x07060302
        s_mov_b32 {s(sHI)}, 0xffff0000
        s_mov_b32 {s(sL2E)}, 0x3fb8aa3b
        s_mov_b32 {s(sL2E+1)}, 0x3fb8aa3b
        s_mov_b32 {s(sEPS6)}, 0x358637bd
        s_mov_b32 {s(sEPS6+1)}, 0x358637bd
        s_getreg_b32 {s(sXCC)}, hwreg(HW_REG_XCC_ID, 0, 3)
        s_lshl_b32 {s(sXCC)}, {s(sXCC)}, 2
        s_mov_b32 {s(sBUD)}, 100000
        ''')
        e(f'''
        v_lshlrev_b32 {v(vSTst)}, 4, {v(vTM)}
        v_lshl_add_u32 {v(vSTst)}, {v(vTM+1)}, 2, {v(vSTst)}
        v_lshrrev_b32 {v(t0)}, 3, {v(vLane)}
        v_and_b32 {v(t1)}, 1, {v(vTM+4)}
        v_lshlrev_b32 {v(t1)}, 2, {v(t1)}
        v_xor_b32 {v(t1)}, {v(t1)}, {v(t2)}
        v_lshlrev_b32 {v(t1)}, 4, {v(t1)}
        v_lshl_add_u32 {v(vWOdma)}, {v(t0)}, 10, {v(t1)}
        v_add_u32 {v(vWOdma)}, {s(T[2])}, {v(vWOdma)}
        ''')
        e(f'''
        v_bfe_u32 {v(t0)}, {v(vLane)}, 2, 2
        v_lshl_add_u32 {v(t0)}, {v(vTM+1)}, 4, {v(t0)}
        v_lshlrev_b32 {v(t0)}, 6, {v(t0)}
        v_and_b32 {v(t1)}, 1, {v(vTM+4)}
        v_lshl_add_u32 {v(t0)}, {v(t1)}, 5, {v(t0)}
        v_and_b32 {v(t1)}, 1, {v(vLane)}
        v_lshl_add_u32 {v(t0)}, {v(t1)}, 4, {v(t0)}
        v_bfe_u32 {v(t1)}, {v(vLane)}, 1, 1
        v_lshl_add_u32 {v(t0)}, {v(t1)}, 3, {v(t0)}
        v_bfe_u32 {v(t1)}, {v(vLane)}, 1, 3
        v_lshlrev_b32 {v(t2)}, 1, {v(vTM+1)}
        v_xor_b32 {v(t1)}, {v(t1)}, {v(t2)}
        v_lshlrev_b32 {v(t1)}, 4, {v(t1)}
        v_lshl_add_u32 {v(t1)}, {v(vTM)}, 7, {v(t1)}
        s_lshl_b32 {s(T[4])}, {s(T[1])}, 6
        v_xor_b32 {v(vA0+5)}, {s(T[4])}, {v(t1)}
        v_add_u32 {v(vA0+5)}, {s(T[3])}, {v(vA0+5)}
        v_add_u32 {v(t1)}, {s(sX0l)}, {v(t1)}
        ''')
        for q in range(4):
            e(f'''
            s_xor_b32 {s(T[4])}, {s(sW)}, {q}
            s_lshl_b32 {s(T[5])}, {s(T[4])}, 10
            v_add_u32 {v(vXq+q)}, {s(T[5])}, {v(vL16)}
            s_lshr_b32 {s(T[5])}, {s(T[4])}, 1
            s_lshl_b32 {s(T[5])}, {s(T[5])}, 2
            s_and_b32 {s(T[4])}, {s(T[4])}, 1
            s_add_u32 {s(T[4])}, {s(T[4])}, {s(T[5])}
            s_lshl_b32 {s(T[5])}, {s(T[4])}, 9
            v_add_u32 {v(vWtr+q)}, {s(T[5])}, {v(t0)}
            s_lshl_b32 {s(T[5])}, {s(T[4])}, 4
            v_xor_b32 {v(vWPH+4+q)}, {s(T[5])}, {v(t1)}
            ''')
        e(f'''
        s_lshl_b32 {s(T[4])}, {s(sW)}, 9
        s_add_u32 {s(T[4])}, {s(T[4])}, {L_PK}
        v_lshl_add_u32 {v(t0)}, {v(vTM)}, 4, {s(T[4])}
        v_mul_u32_u24 {v(t1)}, {PL}, {v(vTM+1)}
        v_add_u32 {v(vPKwA)}, {v(t0)}, {v(t1)}
        v_lshl_add_u32 {v(vPKwB)}, {v(t1)}, 2, {v(t0)}
        v_bfe_u32 {v(t0)}, {v(vLane)}, 1, 1
        v_mul_u32_u24 {v(t0)}, {PL}, {v(t0)}
        v_lshrrev_b32 {v(t1)}, 2, {v(vLane)}
        v_lshl_add_u32 {v(t0)}, {v(t1)}, 4, {v(t0)}
        v_and_b32 {v(t1)}, 1, {v(vLane)}
        v_lshl_add_u32 {v(t0)}, {v(t1)}, 3, {v(t0)}
        s_mul_i32 {s(T[4])}, {s(sW)}, {2*PL}
        s_add_u32 {s(T[4])}, {s(T[4])}, {L_PK}
        v_add_u32 {v(vPKrB)}, {s(T[4])}, {v(t0)}
        s_mul_i32 {s(T[4])}, {s(T[0])}, {2*PL}
        s_add_u32 {s(T[4])}, {s(T[4])}, {L_PK}
        v_add_u32 {v(vPKrA)}, {s(T[4])}, {v(t0)}
        ''')
        e(f'''
        s_mul_i32 {s(T[4])}, {s(sW)}, 544
        s_add_u32 {s(T[4])}, {s(T[4])}, {L_KV}
        v_lshl_add_u32 {v(t0)}, {v(vFl16)}, 3, {s(T[4])}
        v_lshl_add_u32 {v(vKVw)}, {v(vTM+4)}, 3, {v(t0)}
        v_lshrrev_b32 {v(t0)}, 1, {v(vFl16)}
        v_add_u32 {v(vZw)}, {s(T[4])}, {v(t0)}
        v_bfe_u32 {v(t0)}, {v(vLane)}, 2, 1
        v_lshl_add_u32 {v(t0)}, {v(t0)}, 3, {v(vTM+5)}
        v_bfe_u32 {v(t1)}, {v(vLane)}, 3, 1
        v_lshl_add_u32 {v(t0)}, {v(t1)}, 2, {v(t0)}
        v_cmp_gt_u32 vcc, 16, {v(vTM)}
        v_cndmask_b32 {v(t0)}, 16, {v(t0)}, vcc
        v_lshlrev_b32 {v(t0)}, 5, {v(t0)}
        v_add_u32 {v(t0)}, {L_KV}, {v(t0)}
        v_lshl_add_u32 {v(vKVrA)}, {v(vTM+1)}, 4, {v(t0)}
        v_mul_u32_u24 {v(t1)}, 1088, {v(vTM+1)}
        v_add_u32 {v(vKVrB)}, {v(t0)}, {v(t1)}
        s_lshl_b32 {s(T[4])}, {s(sW)}, 12
        s_add_u32 {s(T[4])}, {s(T[4])}, {L_EX}
        v_add_u32 {v(vEXw)}, {s(T[4])}, {v(vL16)}
        ''')
        e(f'''
        v_and_b32 {v(t0)}, 1, {v(vLane)}
        v_lshlrev_b32 {v(t0)}, 4, {v(t0)}
        v_mov_b32 {v(t1)}, 0x3f80
        v_lshlrev_b32 {v(t0)}, {v(t0)}, {v(t1)}
        v_lshrrev_b32 {v(t1)}, 1, {v(vLane)}
        v_xor_b32 {v(t1)}, {v(t1)}, {v(vLane)}
        v_and_b32 {v(t1)}, 8, {v(t1)}
        v_bfe_u32 {v(t2)}, {v(vLane)}, 1, 2
        v_or_b32 {v(t1)}, {v(t1)}, {v(t2)}
        ''')
        for d in range(4):
            e(f'v_cmp_eq_u32 vcc, {d}, {v(t1)}\nv_cndmask_b32 {v(vSEL+d)}, 0, {v(t0)}, vcc')
        e(f'v_lshrrev_b32 {v(t0)}, 2, {v(vLane)}\nv_lshl_add_u32 {v(vTM+7)}, {v(t0)}, 26, {v(vTM+6)}\nv_lshl_add_u32 {v(vTM+6)}, {v(vTM+4)}, 26, {v(vTM+6)}')
        e(f'v_mov_b32 {v(vTM+4)}, {v(vA0+5)}\nv_xor_b32 {v(vTM+5)}, 16, {v(vA0+5)}')
        for n in range(self.o.c1early, 6): self.ct[1] = self.dma0(1, n, again=(n == self.o.c1early))
        for x in st[1]: self.stouch(x)
        self.st2 = st[2]
        self.stamp('setup')

    def par_sel(self, dst):
        e = self.e
        e(f's_mov_b32 vcc_lo, 0xf0f00f0f\ns_mov_b32 vcc_hi, 0xf0f00f0f\nv_mov_b32 {v(dst+1)}, {s(sONES)}')
        e(f'v_cndmask_b32 {v(dst)}, 0, {v(dst+1)}, vcc')
        for i in (1, 2, 3): e(f'v_mov_b32 {v(dst+i)}, {v(dst)}')
    def rowsum(self, acc, sel, frag, first):
        self.e(f'v_mfma_f32_16x16x32_bf16 {acc}, {v(sel,4)}, {v(frag,4)}, {0 if first else acc}')

    def kv_gemm0(self):
        e = self.e
        sel = vCS + 8
        self.par_sel(sel)
        aS, aK, aV = a(0, 4), a(4, 4), a(8, 4)
        wt = [None] * 32; xt = [None] * 32
        dl = []
        def dma(n):
            for _ in range(n):
                if dl:
                    P, i = dl.pop(0)
                    if P < 8: self.ct[P] = self.dma0(P, i)
                    elif P == 8: self.bgt['QA2'] = self.dma0q(i)
                    elif P == 9: self.touch(i)
                    elif P == 11: self.dummy(i)
                    elif P == 10: self.clr1 = self.clear_slot(1, vM1, vE1st, vZst)
        cK, cV = vCS + 2, vCS + 4
        sb = vWPH
        q0, q1 = vTM, vTM + 1
        dq = []
        sops = [f'v_accvgpr_read_b32 {v(sb)}, a0', f'v_add_f32 {v(sb+1)}, {v(q0)}, {v(q1)}', f'v_mov_b32 {v(sb+3)}, {v(sb+1)}',
                f'v_permlane32_swap_b32 {v(sb+1)}, {v(sb+3)}', f'v_add_f32 {v(sb+1)}, {v(sb+1)}, {v(sb+3)}'] + self.stats_tail(sb)
        def pop(n):
            for _ in range(n):
                if dq: e(dq.pop(0))
                elif k >= 27 and sops: e(sops.pop(0))
        touches = {int(x[0]): [int(c) for c in x[1:]] for x in self.o.touch.split(',') if x}
        for k in range(-2, 32):
            b = vWB + (k % 3) * 8
            nb = vWB + ((k + 2) % 3) * 8
            fr = [k + 1] if -1 <= k < 27 else ([28, 29, 30, 31] if k == 27 else [])
            bound = (k + 2) % 4 == 0 and k + 2 < 32
            if k >= 0:
                e.wait(lg=max(wt[k], xt[k]))
                if k % 4 == 0:
                    self.rowsum(aK, sel, b, k == 0); self.rowsum(aV, sel, b + 4, k == 0)
                e(f'v_mfma_f32_32x32x16_bf16 {v(vA0,16)}, {v(b,4)}, {v(vXF+4*k,4)}, {v(vA0,16) if k else 0}')
            if bound:
                P = (k + 2) >> 2
                dma(99)
                e.wait(vm=self.ct[P])
                e('s_barrier')
                if P == 0 or self.o.fine: self.stamp(f'chunk{P}')
                for q in range(4):
                    xt[4*P+q] = e(f'ds_read_b128 {v(vXF+16*P+4*q,4)}, {v(vWPH+4+q)} offset:{(P%3)*16384}')
                if P + 2 < 8: dl += [(P + 2, i) for i in range(6)]
                else:
                    if P == 6: dl += [(10, 0)]
                    dl += [(8, 4*(P-6) + i) for i in range(4)]
                dl += [(9, i) for i in touches.get(P, [])]
                if P == 6 and self.o.tq: dl[1:1] = [(9, int(c)) for c in self.o.tq]
                if self.o.dummy and 0 <= P - self.o.dummy < 3: dl += [(11, i) for i in ((0, 1), (2, 3), (4,))[P - self.o.dummy]]
            else:
                dma(1)
            if k + 2 < 32: self.tr_w(nb, k + 2, 0)
            if k == 28:
                dma(99)
                cw = self.cs_write(['a4', 'a8'], [1, 2])
            pop(2 if k < 28 else 5)
            for f in fr:
                e.wait(lg=xt[f])
                if self.o.nomini & 1 and f: continue
                self.rowsum(aS, sel, vXF + 4*f, f == 0)
                if self.o.nomini & 2 and f: continue
                dq += [f'v_dot2_f32_bf16 {v((q0, q1)[i&1])}, {v(vXF+4*f+i)}, {v(vXF+4*f+i)}, {v((q0, q1)[i&1]) if (f or i > 1) else 0}' for i in range(4)]
                if k == 27: pop(2)
            if k >= 0:
                e(f'v_mfma_f32_32x32x16_bf16 {v(vA1,16)}, {v(b+4,4)}, {v(vXF+4*k,4)}, {v(vA1,16) if k else 0}')
            if k + 2 < 32: wt[k + 2] = self.tr_w(nb + 4, k + 2, SLOT)
            if bound:
                e(f's_cmp_lg_u32 {s(sRESP)}, {P}\ns_cbranch_scc1 L_nores{P}')
                e.raw(f'ds_read_b128 {v(vRES,4)}, {v(vTM+4)} offset:{(P%3)*16384}\nds_read_b128 {v(vRES+4,4)}, {v(vTM+5)} offset:{(P%3)*16384}')
                e(f'L_nores{P}:')
            dma(1)
            pop(2 if k < 27 else 5)
            if k == 4 * self.o.atp - 1:
                e(f'''
                s_cmp_lg_u32 {s(sW)}, 0
                s_cbranch_scc1 L_noat
                s_lshr_b32 {s(sT[5])}, {s(sG)}, 3
                s_lshl1_add_u32 {s(sT[5])}, {s(sR)}, {s(sT[5])}
                s_lshl_b32 {s(sT[5])}, {s(sT[5])}, 2
                s_lshl_b32 {s(sAT)}, 1, {s(sXCC)}
                s_atomic_add {s(sAT)}, {s(sDBG,2)}, {s(sT[5])}
                L_noat:
                ''')
            if k == 28:
                e.wait(lg=cw); e('s_barrier')
                if self.o.fine: self.stamp('g28')
                r1 = self.cs_read(1, vWPH + 4)
                r2 = self.cs_read(2, vCS + 8)
            if k == 30:
                assert not dq and not sops
                e.wait(lg=r2)
                sops += self.cs_pack_ops(vWPH + 4, cK) + self.cs_pack_ops(vCS + 8, cV)
                pop(4)
        pop(99)
        e(f'v_mfma_f32_32x32x8_bf16 {v(vA0,16)}, {v(cK,2)}, {v(vMF,2)}, {v(vA0,16)}')
        e(f'v_mfma_f32_32x32x8_bf16 {v(vA1,16)}, {v(cV,2)}, {v(vMF,2)}, {v(vA1,16)}')
        self.stamp('L0.kvgemm')

    def cs_write(self, acc, blk):
        e = self.e
        t = vTM + 6
        e(f'v_and_b32 {v(t)}, 0x1f0, {v(vL16)}\ns_lshl_b32 {s(sT[3])}, {s(sW)}, 2\nv_add_u32 {v(t)}, {L_CS}, {v(t)}\nv_add_u32 {v(t+1)}, {s(sT[3])}, {v(t)}')
        tag = None
        for ac, b in zip(acc, blk):
            tag = e(f'ds_write_b32 {v(t+1)}, {ac} offset:{b*512}')
        return tag
    def cs_read(self, blk, dst):
        return self.e(f'ds_read_b128 {v(dst,4)}, {v(vTM+6)} offset:{blk*512}')
    def cs_pack_ops(self, src, out):
        return [f'v_pk_add_f32 {v(src,2)}, {v(src,2)}, {v(src+2,2)}',
                f'v_add_f32 {v(src)}, {v(src)}, {v(src+1)}',
                f'v_and_b32 {v(src+1)}, {s(sHI)}, {v(src)}',
                f'v_sub_f32 {v(src+1)}, {v(src)}, {v(src+1)}',
                f'v_perm_b32 {v(out)}, {v(src+1)}, {v(src)}, {s(sPERM)}',
                f'v_and_b32 {v(src+2)}, {s(sHI)}, {v(src+1)}',
                f'v_sub_f32 {v(src+2)}, {v(src+1)}, {v(src+2)}',
                f'v_lshrrev_b32 {v(out+1)}, 16, {v(src+2)}']
    def cs_pack(self, src, out):
        for op in self.cs_pack_ops(src, out): self.e(op)

    def stats_ops(self):
        b = vXF + 112
        ops = []
        for i in range(4): ops.append(f'v_pk_add_f32 {v(b+4*i,2)}, {v(b+4*i,2)}, {v(b+4*i+2,2)}')
        ops += [f'v_pk_add_f32 {v(b,2)}, {v(b,2)}, {v(b+4,2)}', f'v_pk_add_f32 {v(b+8,2)}, {v(b+8,2)}, {v(b+12,2)}',
                f'v_pk_add_f32 {v(b,2)}, {v(b,2)}, {v(b+8,2)}']
        ops += [f'v_mov_b32 {v(b+2)}, {v(b)}', f'v_mov_b32 {v(b+3)}, {v(b+1)}',
                f'v_permlane32_swap_b32 {v(b)}, {v(b+2)}', f'v_permlane32_swap_b32 {v(b+1)}, {v(b+3)}',
                f'v_pk_add_f32 {v(b,2)}, {v(b,2)}, {v(b+2,2)}']
        return ops + self.stats_tail(b)
    def stats_tail(self, b):
        ops = [
                f'v_mul_f32 {v(b)}, 0xbb000000, {v(b)}',
                f'v_mul_f32 {v(b+1)}, 0x3b000000, {v(b+1)}',
                f'v_fma_f32 {v(b+1)}, -{v(b)}, {v(b)}, {v(b+1)}',
                f'v_max_f32 {v(b+1)}, 0, {v(b+1)}',
                f'v_add_f32 {v(b+1)}, 0x3727c5ac, {v(b+1)}',
                f'v_rsq_f32 {v(vRS)}, {v(b+1)}',
                f'v_and_b32 {v(b+2)}, {s(sHI)}, {v(b)}',
                f'v_sub_f32 {v(b+2)}, {v(b)}, {v(b+2)}',
                f'v_cmp_gt_u32 vcc, 32, {v(vLane)}',
                f'v_mul_f32 {v(vRS+1)}, {s(sL2E)}, {v(vRS)}',
                f'v_cndmask_b32 {v(b)}, {v(b+2)}, {v(b)}, vcc',
                f'v_perm_b32 {v(vMF)}, {v(b)}, {v(b)}, {s(sPERM)}',
                f'v_lshrrev_b32 {v(vMF+1)}, 16, {v(b)}']
        return ops

    def tr_w(self, dst, ks, extra):
        e = self.e
        off = (ks >> 2) * 4096 + extra
        e(f'ds_read_b64_tr_b16 {v(dst,2)}, {v(vWtr + (ks&3))} offset:{off}')
        return e(f'ds_read_b64_tr_b16 {v(dst+2,2)}, {v(vWtr + (ks&3))} offset:{off+256}')

    def kv_gemm(self, l, slot):
        e = self.e; typ = l & 1; first = l < 2
        self.set_wtr(slot)
        xt = [None] * 32
        def xload(k):
            if k % 4 == 0: e(f's_add_u32 {s(sT[0])}, {s(sXrd)}, {k*1024}')
            xt[k] = e(f'buffer_load_dwordx4 {v(vXF+4*k,4)}, {v(vXq+(k&3))}, {s(sWS,4)}, {s(sT[0])} offen sc1')
        PRE = self.o.xpre
        assert PRE <= 8
        for k in range(PRE): xload(k)
        wt = [None] * 32
        def wread(k):
            b = vWB + (k % 3) * 8
            self.tr_w(b, k, 0)
            wt[k] = self.tr_w(b + 4, k, SLOT)
        wread(0); wread(1)
        stt = None
        sops = self.stats_ops()
        aK, aV = a(128, 4), a(132, 4)
        sel = vCS + 8
        if first: self.par_sel(sel)
        cK, cV = vCS + typ*6 + 2, vCS + typ*6 + 4
        def pop(n):
            for _ in range(n):
                if sops: e(sops.pop(0))
        S0 = 12
        for k in range(32):
            b = vWB + (k % 3) * 8
            nb = vWB + ((k + 2) % 3) * 8
            e.wait(vm=xt[k], lg=wt[k])
            if k == 0: self.stamp(f'L{l}.x0')
            e(f'v_mfma_f32_32x32x16_bf16 {v(vA0,16)}, {v(b,4)}, {v(vXF+4*k,4)}, {v(vA0,16) if k else 0}')
            if k + PRE < 32: xload(k + PRE)
            else: self.bg(f'kv{k}')
            if k + 2 < 32: self.tr_w(nb, k + 2, 0)
            if S0 <= k < S0 + 8:
                if k == S0: e.wait(vm=stt)
                pop(1)
            if first and k % 4 == 0:
                self.rowsum(aK, sel, b, k == 0); self.rowsum(aV, sel, b + 4, k == 0)
            e(f'v_mfma_f32_32x32x16_bf16 {v(vA1,16)}, {v(b+4,4)}, {v(vXF+4*k,4)}, {v(vA1,16) if k else 0}')
            if k < 4:
                stt = e(f'buffer_load_dwordx4 {v(vXF+112+4*k,4)}, {v(vL16)}, {s(sWS,4)}, {s(sSTrd)} offen offset:{k*1024} sc1')
            if k + 2 < 32: wt[k + 2] = self.tr_w(nb + 4, k + 2, SLOT)
            if S0 <= k < S0 + 8: pop(2 if k < S0 + 7 else 9)
            if k == S0 + 9 and not first:
                e(f'v_mfma_f32_32x32x8_bf16 {v(vA0,16)}, {v(cK,2)}, {v(vMF,2)}, {v(vA0,16)}')
                e(f'v_mfma_f32_32x32x8_bf16 {v(vA1,16)}, {v(cV,2)}, {v(vMF,2)}, {v(vA1,16)}')
            if first and k == 28:
                cw = self.cs_write(['a128', 'a132'], [1, 2])
            if first and k == 29:
                e.wait(lg=cw); e('s_barrier')
                r1 = self.cs_read(1, vWB + 16)
                r2 = self.cs_read(2, vWB + 20)
        assert not sops
        self.bg('kvend')
        if first:
            e.wait(lg=r1); self.cs_pack(vWB + 16, cK)
            e(f'v_mfma_f32_32x32x8_bf16 {v(vA0,16)}, {v(cK,2)}, {v(vMF,2)}, {v(vA0,16)}')
            e.wait(lg=r2); self.cs_pack(vWB + 20, cV)
            e(f'v_mfma_f32_32x32x8_bf16 {v(vA1,16)}, {v(cV,2)}, {v(vMF,2)}, {v(vA1,16)}')
        self.stamp(f'L{l}.kvgemm')

    def scale_pack(self, acc, out):
        e = self.e
        for i in range(8):
            e(f'v_pk_mul_f32 {v(acc+2*i,2)}, {v(acc+2*i,2)}, {v(vRS,2)} op_sel_hi:[1,0]')
        for i in range(8):
            e(f'v_cvt_pk_bf16_f32 {v(out+i)}, {v(acc+2*i)}, {v(acc+2*i+1)}')
    def phi_a(self, acc, tmp, out, tag, after=None):
        e = self.e
        for hh in range(2):
            r = range(4*hh, 4*hh+4)
            for i in r: e(f'v_pk_mul_f32 {v(tmp+2*i,2)}, {v(acc+2*i,2)}, {v(vRS,2)} op_sel:[0,1] op_sel_hi:[1,1]')
            for i in r:
                e(f'v_exp_f32_e64 {v(tmp+2*i)}, {v(tmp+2*i)} clamp')
                e(f'v_exp_f32_e64 {v(tmp+2*i+1)}, {v(tmp+2*i+1)} clamp')
            self.bg(f'{tag}{2*hh}')
            for i in r: e(f'v_pk_fma_f32 {v(acc+2*i,2)}, {v(acc+2*i,2)}, {v(vRS,2)}, 1.0 op_sel_hi:[1,0,0]')
            for i in r:
                e(f'v_max_f32 {v(acc+2*i)}, {v(acc+2*i)}, {v(tmp+2*i)}')
                e(f'v_max_f32 {v(acc+2*i+1)}, {v(acc+2*i+1)}, {v(tmp+2*i+1)}')
            for i in r: e(f'v_pk_add_f32 {v(acc+2*i,2)}, {v(acc+2*i,2)}, {s(sEPS6,2)}')
            for i in r: e(f'v_cvt_pk_bf16_f32 {v(out+i)}, {v(acc+2*i)}, {v(acc+2*i+1)}')
            if after: after(hh)
            self.bg(f'{tag}{2*hh+1}')
    def softmax16(self, p, tm, out, tag):
        e = self.e
        e(f'v_max3_f32 {v(tm)}, {v(p)}, {v(p+1)}, {v(p+2)}')
        e(f'v_max3_f32 {v(tm+1)}, {v(p+3)}, {v(p+4)}, {v(p+5)}')
        e(f'v_max3_f32 {v(tm)}, {v(tm)}, {v(p+6)}, {v(p+7)}')
        e(f'v_max3_f32 {v(tm+1)}, {v(tm+1)}, {v(p+8)}, {v(p+9)}')
        e(f'v_max3_f32 {v(tm)}, {v(tm)}, {v(p+10)}, {v(p+11)}')
        e(f'v_max3_f32 {v(tm+1)}, {v(tm+1)}, {v(p+12)}, {v(p+13)}')
        e(f'v_max3_f32 {v(tm)}, {v(tm)}, {v(p+14)}, {v(p+15)}')
        e(f'v_max_f32 {v(tm)}, {v(tm)}, {v(tm+1)}')
        e(f'v_mul_f32 {v(tm)}, {s(sL2E)}, {v(tm)}')
        for i in range(8):
            e(f'v_pk_fma_f32 {v(p+2*i,2)}, {v(p+2*i,2)}, {s(sL2E,2)}, {v(tm,2)} op_sel_hi:[1,1,0] neg_lo:[0,0,1] neg_hi:[0,0,1]')
        self.bg(tag + 'a')
        for i in range(16):
            e(f'v_exp_f32 {v(p+i)}, {v(p+i)}')
            if i == 7: self.bg(tag + 'b')
        self.bg(tag + 'c')
        for i in range(4): e(f'v_pk_add_f32 {v(tm+2*i,2)}, {v(p+4*i,2)}, {v(p+4*i+2,2)}')
        e(f'v_pk_add_f32 {v(tm,2)}, {v(tm,2)}, {v(tm+2,2)}')
        e(f'v_pk_add_f32 {v(tm+4,2)}, {v(tm+4,2)}, {v(tm+6,2)}')
        e(f'v_pk_add_f32 {v(tm,2)}, {v(tm,2)}, {v(tm+4,2)}')
        e(f'v_add_f32 {v(tm)}, {v(tm)}, {v(tm+1)}')
        e(f'v_rcp_f32 {v(tm)}, {v(tm)}')
        self.bg(tag + 'd')
        for i in range(8): e(f'v_pk_mul_f32 {v(p+2*i,2)}, {v(p+2*i,2)}, {v(tm,2)} op_sel_hi:[1,0]')
        for i in range(8): e(f'v_cvt_pk_bf16_f32 {v(out+i)}, {v(p+2*i)}, {v(p+2*i+1)}')

    def kv_epilogue(self, l, qname, late_q):
        e = self.e; typ = l & 1
        self.dump(f'L{l}.kv', [v(vA0+i) for i in range(32)] + [v(vRS)])
        if typ == 0:
            def wr(hh): e(f'ds_write_b128 {v(vPKwA)}, {v(vTM+4*hh,4)} offset:{2*hh*PL}')
            self.phi_a(vA0, vWB, vTM, 'ek', wr)
            self.scale_pack(vA1, vA1)
            e(f'ds_write_b128 {v(vPKwA)}, {v(vA1,4)} offset:{8*PL}')
            e(f'ds_write_b128 {v(vPKwA)}, {v(vA1+4,4)} offset:{10*PL}')
        else:
            self.scale_pack(vA0, vTM)
            e(f'v_mfma_f32_32x32x16_bf16 {v(vA0,16)}, {v(vWPH,4)}, {v(vTM,4)}, 0')
            e(f'v_mfma_f32_32x32x16_bf16 {v(vWB,16)}, {v(vWPH+4,4)}, {v(vTM+4,4)}, 0')
            self.scale_pack(vA1, vA1)
            e(f'ds_write_b128 {v(vPKwA)}, {v(vA1,4)} offset:{8*PL}')
            e(f'ds_write_b128 {v(vPKwA)}, {v(vA1+4,4)} offset:{10*PL}')
            for hh, p in ((0, vA0), (1, vWB)):
                self.softmax16(p, vTM, p, f'ek{hh}')
                e(f'ds_write_b128 {v(vPKwB)}, {v(p,4)} offset:{(2*hh)*PL}')
                e(f'ds_write_b128 {v(vPKwB)}, {v(p+4,4)} offset:{(2*hh+1)*PL}')
        ones = vTM + 4
        for i in range(4): e(f'v_mov_b32 {v(ones+i)}, {s(sONES)}')
        qt = self.bg_need(qname)
        if l == 0: e.wait(vm=self.clr1)
        if not late_q: e.wait(vm=qt)
        e.wait_all_lg()
        e('s_barrier')
        self.stamp(f'L{l}.B1')
        pr = vPKrA if typ == 0 else vPKrB
        tags = []
        for st in range(4):
            e(f'ds_read_b64_tr_b16 {v(vA0+4*st,2)}, {v(pr)} offset:{st*512}')
            e(f'ds_read_b64_tr_b16 {v(vA0+4*st+2,2)}, {v(pr)} offset:{st*512+256}')
            e(f'ds_read_b64_tr_b16 {v(vA1+4*st,2)}, {v(vPKrA)} offset:{8*PL+st*512}')
            tags.append(e(f'ds_read_b64_tr_b16 {v(vA1+4*st+2,2)}, {v(vPKrA)} offset:{8*PL+st*512+256}'))
        ckv, cz = vWB + 16, vWB + 20
        ak, az = self.e1_addr(l, vWB)
        e(f's_add_u32 {s(sT[0])}, {s(sKVwrB)}, {l*0x80000}\ns_add_u32 {s(sT[1])}, {s(sZwrB)}, {l*0x10000}')
        for st in range(4):
            e.wait(lg=tags[st])
            e(f'v_mfma_f32_16x16x32_bf16 {v(ckv,4)}, {v(vA0+4*st,4)}, {v(vA1+4*st,4)}, {v(ckv,4) if st else 0}')
            e(f'v_mfma_f32_16x16x32_bf16 {v(cz,4)}, {v(ones,4)}, {v(vA0+4*st,4)}, {v(cz,4) if st else 0}')
        e(f'v_cvt_pk_bf16_f32 {v(vTM)}, {v(ckv)}, {v(ckv+1)}\nv_cvt_pk_bf16_f32 {v(vTM+1)}, {v(ckv+2)}, {v(ckv+3)}')
        e(f'v_min_u32 {v(vTM)}, -2, {v(vTM)}\nv_min_u32 {v(vTM+1)}, -2, {v(vTM+1)}')
        e(f'buffer_store_dwordx2 {v(vTM,2)}, {v(ak)}, {s(sWS,4)}, {s(sT[0])} offen sc1')
        e(f'v_min_u32 {v(vTM+2)}, -2, {v(cz)}')
        e(f'buffer_store_dword {v(vTM+2)}, {v(az)}, {s(sWS,4)}, {s(sT[1])} offen sc1')
        self.stamp(f'L{l}.pub1')
        if l < 2: self.clear_slot(l + 2, vTM + 4, ak, az)
        if late_q:
            e.wait(vm=qt); e('s_barrier')

    def e1_ops(self, e, l, tags):
        typ = l & 1
        nk, nz = (4, 2) if typ == 0 else (8, 4)
        sk, sz = (sKVrdA, sZrdA) if typ == 0 else (sKVrdB, sZrdB)
        ops = []
        def zl(t):
            if t == 0: e(f's_add_u32 {s(sT[1])}, {s(sz)}, {l*0x10000}')
            tags['z'] = e(f'buffer_load_dword {v(vXF+32+t)}, {v(vL4)}, {s(sWS,4)}, {s(sT[1])} offen offset:{t*256} sc1')
        def kl(p):
            if p % 4 == 0: e(f's_add_u32 {s(sT[0])}, {s(sk)}, {l*0x80000 + p*1024}')
            tags[p] = e(f'buffer_load_dwordx4 {v(vXF+4*p,4)}, {v(vL16)}, {s(sWS,4)}, {s(sT[0])} offen offset:{(p&3)*1024} sc1')
        return [lambda t=t: zl(t) for t in range(nz)] + [lambda p=p: kl(p) for p in range(nk)]

    def q_phase(self, l, slot, wo_items):
        e = self.e; typ = l & 1; first = l < 2
        self.set_wtr(slot)
        wt = [None] * 32
        def wread(k): wt[k] = self.tr_w(vWB + (k % 6) * 4, k, 0)
        for k in range(4): wread(k)
        aQ = a(136, 4); cQ = vCS + typ * 6
        sel = vA1 + 8
        if first: self.par_sel(sel)
        if l == 0:
            e(f'v_and_b32 {v(vTM+3)}, 0x7c, {v(vL4)}')
            dbt = e(f'buffer_load_dword {v(vTM+2)}, {v(vTM+3)}, {s(sDBG,4)}, 0 offen sc1')
            if self.o.tw or self.o.te:
                e(f'v_lshlrev_b32 {v(vTM+6)}, 7, {v(vLane)}\nv_lshrrev_b32 {v(vTM+1)}, 2, {v(vLane)}\nv_lshl_add_u32 {v(vTM+7)}, {v(vTM+1)}, 26, {v(vTM+6)}')
                e(f'v_lshrrev_b32 {v(vTM+1)}, 4, {v(vLane)}\nv_lshl_add_u32 {v(vTM+6)}, {v(vTM+1)}, 26, {v(vTM+6)}')
                for c in self.o.tw: self.touch(int(c))
        E1AT = self.o.e1at[l]
        kt = {}
        e1 = self.e1_ops(e, l, kt)
        for k in range(32):
            e.wait(lg=wt[k])
            b = vWB + (k % 6) * 4
            if first and k % 4 == 0: self.rowsum(aQ, sel, b, k == 0)
            e(f'v_mfma_f32_32x32x16_bf16 {v(vA0,16)}, {v(b,4)}, {v(vXF+4*k,4)}, {v(vA0,16) if k else 0}')
            if k + 4 < 32: wread(k + 4)
            if k == 0 and not first:
                e(f'v_mfma_f32_32x32x8_bf16 {v(vA0,16)}, {v(cQ,2)}, {v(vMF,2)}, {v(vA0,16)}')
            if k == E1AT and l == 0:
                e.wait(vm=dbt)
                e(f's_mov_b32 {s(sT[2])}, 0x11111111')
                e('L_all_chk:')
                e(f'v_dot8_u32_u4 {v(vTM+1)}, {v(vTM+2)}, {s(sT[2])}, 0')
                e(f's_lshl_b32 {s(sT[3])}, 8, {s(sXCC)}')
                e(f'v_cmp_ne_u32 vcc, 8, {v(vTM+1)}\ns_cbranch_vccnz L_all_retry')
                e(f'v_cmp_ne_u32 vcc, {s(sT[3])}, {v(vTM+2)}\ns_lshl_b32 {s(sT[3])}, {s(sR)}, 1')
                e(f's_lshr_b32 {s(sMODE)}, vcc_lo, {s(sT[3])}\ns_and_b32 {s(sMODE)}, {s(sMODE)}, 3')
                if self.o.force_safe: e(f's_or_b32 {s(sMODE)}, {s(sMODE)}, 1')
                e(f's_cselect_b32 {s(sSTR)}, {EXSTRIDE}, 0')
                for r in (sOrd, sOwr): e(f's_add_u32 {s(r)}, {s(r)}, {s(sSTR)}')
                t = Asm()
                t(f'L_all_retry:\nbuffer_load_dword {v(vTM+2)}, {v(vTM+3)}, {s(sDBG,4)}, 0 offen sc1')
                t(f's_sub_u32 {s(sBUD)}, {s(sBUD)}, 1\ns_cbranch_scc1 L_fail\ns_waitcnt vmcnt(0)\ns_branch L_all_chk')
                self.tail.append(t)
                e1 += [lambda: e(f'buffer_load_dword a255, {v(vFl16)}, {s(sWS,4)}, {s(sFOrd)} offen sc1'),
                       lambda: e(f'buffer_load_dword a255, {v(vFl16)}, {s(sWS,4)}, {s(sFXrd)} offen sc1'),
                       lambda: e(f's_lshl_b32 {s(sT[4])}, {s(sG)}, 10\ns_mov_b32 m0, {L_WP}\nbuffer_load_dwordx4 {v(vL16)}, {s(sWP,4)}, {s(sT[4])} offen lds')]
                e1 += [lambda c=c: self.touch(int(c)) for c in self.o.te]
                assert E1AT + len(e1) <= 29 or not self.o.te
            if k >= E1AT:
                for _ in range(self.o.e1rate if k < 31 else 99):
                    if e1: e1.pop(0)()
            self.bg(f'q{k}')
            if first and k == 29: cw = self.cs_write(['a136'], [0])
            if first and k == 31:
                e.wait(lg=cw); e('s_barrier')
                r0 = self.cs_read(0, vA1)
        zt = kt['z']
        if first:
            e.wait(lg=r0); self.cs_pack(vA1, cQ)
            e(f'v_mfma_f32_32x32x8_bf16 {v(vA0,16)}, {v(cQ,2)}, {v(vMF,2)}, {v(vA0,16)}')
        self.stamp(f'L{l}.qgemm')
        self.dump(f'L{l}.q', [v(vA0+i) for i in range(16)])
        PQ = vXF + 64
        if typ == 0:
            self.phi_a(vA0, vWB, PQ, 'eq')
        else:
            self.scale_pack(vA0, vTM)
            e(f'v_mfma_f32_32x32x16_bf16 {v(vA0,16)}, {v(vWPH,4)}, {v(vTM,4)}, 0')
            e(f'v_mfma_f32_32x32x16_bf16 {v(vA1,16)}, {v(vWPH+4,4)}, {v(vTM+4,4)}, 0')
            self.softmax16(vA0, vWB, PQ, 'eq0')
            self.softmax16(vA1, vWB, PQ + 8, 'eq1')
        self.stamp(f'L{l}.phiq')
        nk, nz = (4, 2) if typ == 0 else (8, 4)
        C = vWB; mx = vTM; z = vXF + 32
        e(f'L_e1c{l}:')
        e.wait(vm=zt)
        if nz == 2:
            e(f'v_max_u32 {v(mx)}, {v(z)}, {v(z+1)}\nv_add_f32 {v(z)}, {v(z)}, {v(z+1)}')
        else:
            e(f'v_max3_u32 {v(mx)}, {v(z)}, {v(z+1)}, {v(z+2)}\nv_max_u32 {v(mx)}, {v(mx)}, {v(z+3)}')
            e(f'v_pk_add_f32 {v(z,2)}, {v(z,2)}, {v(z+2,2)}\nv_add_f32 {v(z)}, {v(z)}, {v(z+1)}')
        e(f'v_mov_b32 {v(z+1)}, {v(z)}\nv_permlane16_swap_b32 {v(z)}, {v(z+1)}\nv_add_f32 {v(z)}, {v(z)}, {v(z+1)}')
        e(f'v_mov_b32 {v(z+1)}, {v(z)}\nv_permlane32_swap_b32 {v(z)}, {v(z+1)}\nv_add_f32 {v(z)}, {v(z)}, {v(z+1)}')
        e(f'v_cvt_pk_bf16_f32 {v(z)}, {v(z)}, {v(z)}')
        e(f'ds_write_b16 {v(vZw)}, {v(z)} offset:512')
        for p in range(nk):
            e.wait(vm=kt[p])
            b = vXF + 4*p
            e(f'v_mfma_f32_16x16x32_bf16 {v(C,4)}, {v(vSEL,4)}, {v(b,4)}, {v(C,4) if p else 0}')
            e(f'v_max3_u32 {v(mx)}, {v(mx)}, {v(b)}, {v(b+1)}\nv_max3_u32 {v(mx)}, {v(mx)}, {v(b+2)}, {v(b+3)}')
        e(f'v_cmp_eq_u32 vcc, -1, {v(mx)}\ns_cbranch_vccnz L_e1r{l}')
        t = Asm()
        t(f'L_e1r{l}:\ns_nop 7')
        for op in self.e1_ops(t, l, {}): op()
        t(f's_sub_u32 {s(sBUD)}, {s(sBUD)}, 1\ns_cbranch_scc1 L_fail\ns_waitcnt vmcnt(0)\ns_branch L_e1c{l}')
        self.tail.append(t)
        self.stamp(f'L{l}.e1')
        e(f'v_cvt_pk_bf16_f32 {v(vTM)}, {v(C)}, {v(C+1)}\nv_cvt_pk_bf16_f32 {v(vTM+1)}, {v(C+2)}, {v(C+3)}')
        e(f'ds_write_b64 {v(vKVw)}, {v(vTM,2)}')
        self.bg('o0')
        for nm in wo_items: e.wait(vm=self.bg_need(nm))
        e.wait_all_lg()
        e('s_barrier')
        KF = vWB + 8
        kr = vKVrA if typ == 0 else vKVrB
        tg = []
        for hh in range(2):
            for u in range(2):
                off = (2*u + hh) * 544 if typ == 0 else hh * 544 + u * 16
                tg.append(e(f'ds_read_b128 {v(KF + 4*(2*hh+u),4)}, {v(kr)} offset:{off}'))
        self.bg('o1')
        for hh in range(2):
            acc = (vA0, vA1)[hh]
            for u in range(2):
                e.wait(lg=tg[2*hh+u])
                pq = PQ + 4*hh if typ == 0 else PQ + 8*hh + 4*u
                e(f'v_mfma_f32_32x32x16_bf16 {v(acc,16)}, {v(KF+4*(2*hh+u),4)}, {v(pq,4)}, {v(acc,16) if u else 0}')
        self.bg('o2')
        for hh in range(2):
            acc = (vA0, vA1)[hh]
            e(f'v_add_f32 {v(acc+8)}, {s(sEPS6)}, {v(acc+8)}\nv_rcp_f32 {v(acc+8)}, {v(acc+8)}')
            for i in range(4): e(f'v_pk_mul_f32 {v(acc+2*i,2)}, {v(acc+2*i,2)}, {v(acc+8,2)} op_sel_hi:[1,0]')
            for i in range(4): e(f'v_cvt_pk_bf16_f32 {v(vTM+4*hh+i)}, {v(acc+2*i)}, {v(acc+2*i+1)}')
        self.dump(f'L{l}.o', [v(vTM+i) for i in range(8)])
        def st(e, m):
            e(f'buffer_store_dwordx4 {v(vTM,4)}, {v(vL16)}, {s(sWS,4)}, {s(sOwr)} offen{m}')
            e(f'buffer_store_dwordx4 {v(vTM+4,4)}, {v(vL16)}, {s(sWS,4)}, {s(sOwr)} offen offset:1024{m}')
            e(f'v_mov_b32 {v(vWB)}, {l+1}')
            e.wait_all_vm()
            e(f's_mov_b64 exec, 1\nbuffer_store_dword {v(vWB)}, off, {s(sWS,4)}, {s(sFOwr)}{m}\ns_mov_b64 exec, -1')
        self.modal(f'po{l}', st)
        self.stamp(f'L{l}.pub2')

    def o_proj(self, l, wo_slots, next_items):
        e = self.e; typ = l & 1
        AW = 128 * typ
        if l == 0:
            t0, t1 = vTM, vTM + 1
            e(f'''
            v_bfe_u32 {v(t0)}, {v(vLane)}, 2, 2
            v_lshrrev_b32 {v(t1)}, 5, {v(vLane)}
            v_lshl_add_u32 {v(t0)}, {v(t1)}, 3, {v(t0)}
            v_lshlrev_b32 {v(t0)}, 5, {v(t0)}
            v_bfe_u32 {v(t1)}, {v(vLane)}, 4, 1
            v_lshl_add_u32 {v(t0)}, {v(t1)}, 4, {v(t0)}
            v_bfe_u32 {v(t1)}, {v(vLane)}, 1, 1
            v_lshl_add_u32 {v(t0)}, {v(t1)}, 3, {v(t0)}
            v_add_u32 {v(t0)}, {L_WP}, {v(t0)}
            ''')
            for hh in range(2):
                for t in range(2):
                    tw = e(f'ds_read_b64_tr_b16 {v(vWPH+4*hh+2*t,2)}, {v(t0)} offset:{hh*512 + t*128}')
            e(f'v_bfe_u32 {v(t1)}, {v(vLane)}, 2, 1\nv_mul_u32_u24 {v(t1)}, 0x8000, {v(t1)}\nv_lshl_or_b32 {v(t1)}, {v(t1)}, 16, {v(t1)}')
            e.wait(lg=tw)
            for i in range(8): e(f'v_xor_b32 {v(vWPH+i)}, {v(t1)}, {v(vWPH+i)}')
        if wo_slots:
            t0, t1, t2 = vTM, vTM + 1, vTM + 2
            e(f'''
            s_lshr_b32 {s(sT[0])}, {s(sW)}, 1
            s_lshl_b32 {s(sT[1])}, {s(sT[0])}, 14
            v_bfe_u32 {v(t0)}, {v(vLane)}, 2, 2
            v_lshrrev_b32 {v(t1)}, 5, {v(vLane)}
            v_lshl_add_u32 {v(t0)}, {v(t1)}, 3, {v(t0)}
            v_lshl_add_u32 {v(t0)}, {v(t0)}, 7, {s(sT[1])}
            v_bfe_u32 {v(t1)}, {v(vLane)}, 3, 1
            v_xor_b32 {v(t1)}, {s(sT[0])}, {v(t1)}
            v_lshl_add_u32 {v(t0)}, {v(t1)}, 6, {v(t0)}
            v_and_b32 {v(t1)}, 1, {v(vLane)}
            v_lshl_add_u32 {v(t0)}, {v(t1)}, 5, {v(t0)}
            v_bfe_u32 {v(t1)}, {v(vLane)}, 4, 1
            v_lshl_add_u32 {v(t0)}, {v(t1)}, 4, {v(t0)}
            v_bfe_u32 {v(t1)}, {v(vLane)}, 1, 1
            v_lshl_add_u32 {v(t0)}, {v(t1)}, 3, {v(t0)}
            ''')
            for half in range(2):
                e(f'v_add_u32 {v(t1)}, {wo_slots[half]*SLOT}, {v(t0)}\nv_xor_b32 {v(t2)}, 64, {v(t1)}')
                for hh in range(8):
                    ks = half * 8 + hh
                    for own, ad in ((0, t1), (1, t2)):
                        for t in range(2):
                            e(f'ds_read_b64_tr_b16 {a(AW + ks*8 + own*4 + 2*t, 2)}, {v(ad)} offset:{hh*2048 + t*512}')
        for i in range(8):
            e(f'v_lshlrev_b32 {v(vA0+2*i)}, 16, {v(vRES+i)}\nv_and_b32 {v(vA0+2*i+1)}, {s(sHI)}, {v(vRES+i)}')
        e.wait_all_lg()
        if l == 0:
            for x in self.st2: self.stouch(x)
        self.stamp(f'L{l}.pre2')
        self.poll(f'pollo{l}', sFOrd, l + 1)
        self.stamp(f'L{l}.poll2')
        ot = [None] * 16
        def oload(k):
            if k % 4 == 0: e(f's_add_u32 {s(sT[0])}, {s(sOrd)}, {k*1024}')
            ot[k] = e(f'buffer_load_dwordx4 {v(vXF+4*k,4)}, {v(vL16)}, {s(sWS,4)}, {s(sT[0])} offen offset:{(k&3)*1024} sc1')
        PRE = self.o.xpre
        for k in range(PRE): oload(k)
        for k in range(16):
            e.wait(vm=ot[k])
            e(f'v_mfma_f32_32x32x16_bf16 {v(vA1,16)}, {a(AW+k*8+4,4)}, {v(vXF+4*k,4)}, {v(vA1,16) if k else 0}')
            if k + PRE < 16: oload(k + PRE)
            self.bg(f'p{k}')
            e(f'v_mfma_f32_32x32x16_bf16 {v(vA0,16)}, {a(AW+k*8,4)}, {v(vXF+4*k,4)}, {v(vA0,16)}')
            self.bg(f'p{k}b')
        e(f'v_xor_b32 {v(vTM)}, 0x2000, {v(vEXw)}')
        for r in (sXrd, sXwr, sSTrd, sSTwr, sOrd, sOwr): e(f's_add_u32 {s(r)}, {s(r)}, {s(sSTR)}')
        for n in range(4): e(f'ds_write_b128 {v(vEXw)}, {v(vA1+4*n,4)} offset:{n*1024}')
        self.bg('x0')
        e.wait_all_lg()
        e('s_barrier')
        self.stamp(f'L{l}.B3')
        tg = [e(f'ds_read_b128 {v(vWB+4*n,4)}, {v(vTM)} offset:{n*1024}') for n in range(4)]
        self.bg('x1')
        for nm in next_items: self.bg_need(nm)
        for n in range(4):
            e.wait(lg=tg[n])
            for i in (0, 2): e(f'v_pk_add_f32 {v(vA0+4*n+i,2)}, {v(vA0+4*n+i,2)}, {v(vWB+4*n+i,2)}')
            if l == 3 and self.o.bias:
                for i in range(4): e(f'v_add_f32 {v(vA0+4*n+i)}, {self.o.bias}, {v(vA0+4*n+i)}')
            for i in (0, 2): e(f'v_cvt_pk_bf16_f32 {v(vRES+2*n+i//2)}, {v(vA0+4*n+i)}, {v(vA0+4*n+i+1)}')
        self.dump(f'L{l}.x', [v(vRES+i) for i in range(8)])
        if l < 3:
            self.publish_x(f'px{l}', l + 2)
            e('s_barrier')
            self.stamp(f'L{l}.pub3')
            self.poll(f'pollx{l}', sFXrd, l + 2)
            self.stamp(f'L{l}.poll3')
        else:
            e(f'buffer_store_dwordx4 {v(vRES,4)}, {v(vXO)}, {s(sOUT,4)}, {s(sXO)} offen {self.o.outmod}')
            e(f'buffer_store_dwordx4 {v(vRES+4,4)}, {v(vXO)}, {s(sOUT,4)}, {s(sXO)} offen offset:16 {self.o.outmod}')

    def build(self):
        e = self.e
        self.prologue()
        self.sched = SCHEDS[self.o.sched]
        plan = [dict(kv=0, q='QA2', wo=('aA3', 'bA0'), nxt=('KB1', 'VB2')),
                dict(kv=1, q='QB3', wo=('aB0', 'bB1'), nxt=('KA2', 'VA3')),
                dict(kv=2, q='QA0', wo=(), nxt=('KB1', 'VB2')),
                dict(kv=1, q='QB3', wo=(), nxt=())]
        for l in range(4):
            p = plan[l]; self.l = l
            if l == 0: self.kv_gemm0()
            else: self.kv_gemm(l, p['kv'])
            self.kv_epilogue(l, p['q'], self.o.lateq[l])
            self.q_phase(l, int(p['q'][2]), p['wo'])
            self.o_proj(l, [int(x[2]) for x in p['wo']], p['nxt'])
        assert not self.bgq
        for k in self.sched: assert k in self.seen, k
        if self.o.stamps:
            self.stamp('end')
            e(f's_memrealtime {s(sTS,2)}'); e.wait_all_lg()
            e(f'v_writelane_b32 {v(vSTAMP)}, {s(sTS)}, 63')
            e(f's_lshl_b32 {s(sT[0])}, s2, 2\ns_add_u32 {s(sT[0])}, {s(sT[0])}, {s(sW)}\ns_lshl_b32 {s(sT[0])}, {s(sT[0])}, 8\ns_add_u32 {s(sT[0])}, {s(sT[0])}, {STAMP}')
            e(f'buffer_store_dword {v(vSTAMP)}, {v(vL4)}, {s(sWS,4)}, {s(sT[0])} offen')
        if self.o.echo:
            self.stamp('end')
            if self.o.echo[0] == 'fixed':
                e(f's_mov_b32 {s(sE0)}, {self.o.echo[2]}')
            else:
                e(f's_sub_u32 {s(sE0)}, {s(sE1)}, {s(sE0)}\ns_mul_i32 {s(sE0)}, {s(sE0)}, {self.o.echo[2]}')
            e(f'{self.o.clk} {s(sE1,2)}\ns_waitcnt lgkmcnt(0)')
            e(f'L_echo:\n{self.o.clk} {s(sTS,2)}\ns_waitcnt lgkmcnt(0)\ns_sub_u32 {s(sTS)}, {s(sTS)}, {s(sE1)}\ns_cmp_lt_u32 {s(sTS)}, {s(sE0)}\ns_cbranch_scc1 L_echo')
        e('L_fail:\ns_endpgm')
        body = e.finish() + ''.join(t.finish() for t in self.tail) + 'L_code_end:\n    s_endpgm\n'
        head = open('cdna_kernels/' + NAME + '.s.ref').read().split('; Override launch')[0]
        txt = head + '; @launch grid=(256,1,1) block=(256,1,1) lds=163840\n'
        txt += f'''.amdgcn_target "amdgcn-amd-amdhsa--gfx950"
.text
.globl {NAME}_kernel
.p2align 8
.type {NAME}_kernel,@function
{NAME}_kernel:
{body}.section .rodata,"a"
.p2align 6
.amdhsa_kernel {NAME}_kernel
  .amdhsa_next_free_vgpr 512
  .amdhsa_next_free_sgpr 102
  .amdhsa_accum_offset 256
  .amdhsa_group_segment_fixed_size 0
  .amdhsa_kernarg_size 80
  .amdhsa_user_sgpr_count 2
  .amdhsa_user_sgpr_kernarg_segment_ptr 1
  .amdhsa_system_sgpr_workgroup_id_x 1
  .amdhsa_float_denorm_mode_32 3
.end_amdhsa_kernel
'''
        return txt

if __name__ == '__main__':
    ap = argparse.ArgumentParser()
    ap.add_argument('-o', default='cdna_kernels/' + NAME + '.s')
    ap.add_argument('--stamps', action='store_true')
    ap.add_argument('--force-safe', action='store_true')
    ap.add_argument('--dump', default='')
    ap.add_argument('--echo', default='')
    ap.add_argument('--bias', default='')
    ap.add_argument('--clk', default='s_memtime')
    ap.add_argument('--outmod', default='')
    ap.add_argument('--initmod', default='')
    ap.add_argument('--touch', default='101,22,33,446,55')
    ap.add_argument('--c1early', type=int, default=2)
    ap.add_argument('--fine', type=int, default=0)
    ap.add_argument('--atp', type=int, default=1)
    ap.add_argument('--nomini', type=int, default=0)
    ap.add_argument('--touchx', type=int, default=1)
    ap.add_argument('--b0at', type=int, default=24)
    ap.add_argument('--both', type=int, default=0)
    ap.add_argument('--fake', type=int, default=0)
    ap.add_argument('--stouch', default=',,')
    ap.add_argument('--tq', default='')
    ap.add_argument('--tw', default='')
    ap.add_argument('--dummy', type=int, default=0)
    ap.add_argument('--te', default='')
    ap.add_argument('--xpre', type=int, default=8)
    ap.add_argument('--e1at', default='22,20,22,20')
    ap.add_argument('--e1rate', type=int, default=1)
    ap.add_argument('--lateq', default='0,0,0,0')
    ap.add_argument('--sched', default='o')
    opt = ap.parse_args()
    opt.dump = opt.dump.split(',') if opt.dump else []
    opt.echo = opt.echo.split(',') if opt.echo else []
    opt.e1at = list(map(int, opt.e1at.split(','))); opt.lateq = list(map(int, opt.lateq.split(',')))
    g = Gen(opt)
    txt = g.build()
    open(opt.o, 'w').write(txt)
    if opt.stamps:
        open(opt.o + '.stamps', 'w').write('\n'.join(g.stamp_names))
    print('wrote', opt.o, len(txt), 'bytes; vgpr persistent', _vn[0], 'sgpr', _sn[0], 'stamps', g.nstamp)
```

```python
def put(d, l, name, lst):
    lst = [(p, 1) if isinstance(p, str) else p for p in lst]
    assert sum(c for _, c in lst) == 8, (l, name)
    for p, c in lst:
        ll = l
        if p[0] == '-': ll, p = l - 1, p[1:]
        if c: d.setdefault(f'{ll}.{p}', []).append((name, c))
R = lambda f, a, b, st=1: [f % k for k in range(a, b, st)]
KV = lambda a, b, st=1: R('kv%d', a, b, st)
KVB = lambda a, b, st=1: R('kv%db', a, b, st)
Q = lambda a, b, st=1: R('q%d', a, b, st)
P = lambda a, b, st=1: R('p%d', a, b, st)
PB = lambda a, b, st=1: R('p%db', a, b, st)
EKA = ['ek0', 'ek1', 'ek2', 'ek3']
EQA = ['eq0', 'eq1', 'eq2', 'eq3']
EKB = [f'ek{h}{c}' for h in range(2) for c in 'abcd']
EQB = [f'eq{h}{c}' for h in range(2) for c in 'abcd']
x2 = lambda pts: [(p, 2) for p in pts]
SCHEDS = {}
def mk(name, **kw):
    t = dict(
        SKA=(0, x2(Q(0, 4))), SVA=(0, Q(4, 12)), SQA=(0, Q(12, 20)), SaA=(0, PB(0, 8)), SbA=(0, PB(8, 16)),
        LaA=(0, Q(0, 8)), LbA=(0, Q(8, 16)), LKB=(0, [('o0', 3), ('o1', 3), ('o2', 2)]), LVB=(0, P(8, 16)),
        SKB=(1, KVB(4, 20, 2)), SVB=(1, Q(0, 16, 2)), SQB=(1, Q(16, 32, 2)),
        LQB=(1, KV(24, 32)), LaB=(1, Q(0, 8)), LbB=(1, Q(8, 16)),
        RKA=(1, PB(0, 8)), RVA=(1, PB(8, 16)), SaB=(1, [('yp', 8)]), SbB=(1, [('yp', 8)]),
        RQA=(2, KVB(0, 32, 4)), RaA=(2, KVB(2, 32, 4)), RbA=(2, Q(1, 32, 4)), RKB=(2, PB(0, 8)), RVB=(2, PB(8, 16)),
        RQB=(3, KVB(0, 32, 4)), RaB=(3, KVB(2, 32, 4)), RbB=(3, Q(1, 32, 4)))
    t.update(kw)
    d = {}
    for k, (l, lst) in t.items(): put(d, l, k, lst)
    SCHEDS[name] = d
mk('a')
mk('b', RaA=(2, [('kvpre', 3)] + Q(3, 23, 4)), RaB=(3, [('kvpre', 3)] + Q(3, 23, 4)))
mk('c', RVB=(2, Q(3, 32, 4)), RKB=(2, PB(0, 16, 2)), RKA=(1, Q(17, 32, 2)), RVA=(1, PB(0, 16, 2)))

def hop(w0, wp, w2, y1, yp, pre):
    r = {}
    kv = [('w0', w0), ('wp', wp), ('w2', w2)]
    rest = 8 - w0 - wp - w2
    r['RKA'] = (1, kv + PB(1, 16, 4)[:rest]); r['RVA'] = (1, PB(0, 16, 2))
    r['RVB'] = (2, kv + PB(1, 16, 4)[:rest]); r['RKB'] = (2, PB(0, 16, 2))
    r['RaA'] = (2, [('kvpre', pre)] + KVB(2, 32, 4)[:8-pre])
    r['RaB'] = (3, [('-y1', y1), ('-yp', yp), ('kvpre', pre)] + KVB(2, 32, 4)[:8-pre-y1-yp])
    return r
mk('d', **hop(4, 2, 2, 0, 4, 2))
mk('e', **hop(5, 3, 0, 1, 4, 3))
mk('f', **hop(3, 3, 2, 0, 3, 0))

H = hop(5, 3, 0, 1, 4, 3)
mk('g', **H, LaA=(0, [('kv29', 1), ('kv30', 1), ('kv31', 2)] + EKA), LbA=(0, Q(4, 20, 2)), LKB=(0, x2(EQA)))
mk('h', **H, LaA=(0, [('kv29', 1), ('kv30', 1), ('kv31', 2)] + EKA), LbA=(0, Q(4, 12)), LKB=(0, Q(12, 20)))
mk('i', **H, LaA=(0, [('kv29', 1), ('kv30', 1), ('kv31', 2)] + EKA), LbA=(0, Q(4, 20, 2)))

G0 = dict(LaA=(0, [('kv29', 1), ('kv30', 1), ('kv31', 2)] + EKA), LbA=(0, Q(4, 20, 2)), LKB=(0, x2(EQA)))
mk('j', **H, **G0, LQB=(1, ['kv27', 'kv28', 'kv31', 'kvend', 'es0', 'es1', 'ek0a', 'ek0d']), LaB=(1, ['kv29', 'kv30', 'ek1a', 'ek1b', 'ek1c', 'ek1d', ('b1', 2)]), LbB=(1, EQB))
mk('k', **H, **G0, LQB=(1, ['kv27', 'kv28', 'kv29', 'kv30', 'kv31', 'kvend', 'es0', 'es1']), LaB=(1, Q(0, 16, 2)), LbB=(1, EQB))
mk('l', **H, **G0, LQB=(1, ['kv27', 'kv28', 'kv31', 'kvend', 'es0', 'es1', 'ek0a', 'ek0d']), LaB=(1, ['kv29', 'kv30', 'ek1a', 'ek1b', 'ek1c', 'ek1d', ('b1', 2)]), LbB=(1, Q(0, 16, 2)))
mk('m', **H, **G0, LQB=(1, ['kv27', 'kv28', 'kv29', 'kv30', 'kv31', 'kvend', 'es0', 'es1']), LaB=(1, ['ek1a', 'ek1b', 'ek1c', 'ek1d'] + Q(0, 8, 2)), LbB=(1, [('b1', 2)] + Q(8, 20, 2)))
```

```python
import sys, argparse
sys.path.insert(0, 'gen')
from asmlib import *

NAME = 'interleave_layers__linear_attn_block__linear_kernel_hedgehog__prompt'

FLG_O, FLG_X = 0x0000, 0x2000
ZP = 0x10000
STAMP = 0x60000
KVP = 0x100000
EXB, EXSTRIDE = 0x400000, 0x500000
OB, XB, ST = EXB, EXB + 0x200000, EXB + 0x400000
DUMP = 0x2400000
WS_BYTES = 0x4000000
OOB = 0x7F000000
SLOT = 32768
SCR = 4 * SLOT
PL = 2176
L_PK = SCR
L_EX = SCR
L_KV = SCR + 12 * PL
L_CS = L_KV + 2176
L_WP = L_CS + 3072
assert L_WP + 1024 <= 163840

sX, sWA, sWOA, sWB, sWP, sWOB, sOUT, sDBG, sWS, sCODE = 4, 8, 12, 16, 20, 24, 28, 32, 36, 40
_sn = [44]
def salloc(n=1, al=1):
    while _sn[0] % al: _sn[0] += 1
    r = _sn[0]; _sn[0] += n
    assert _sn[0] <= 100
    return r
sW, sR, sG, sRB, sRBO, sJ, sMODE, sBUD, sSTR = [salloc() for _ in range(9)]
sRw, sRo, sCOFF = [salloc() for _ in range(3)]
sXrd, sXwr, sSTrd, sSTwr, sOrd, sOwr, sFOrd, sFOwr, sFXrd, sFXwr = [salloc() for _ in range(10)]
sKVrdA, sKVrdB, sKVwrB, sZrdA, sZrdB, sZwrB, sSKIP = [salloc() for _ in range(7)]
sXO, sONES, sPERM, sHI, sXCC = [salloc() for _ in range(5)]
sROT, sRESP = salloc(), salloc()
sAT = 3
sX0g, sX0l, sW0g, sW0l = sMODE, sSTR, salloc(), salloc()
sL2E = salloc(2, 2); sEPS6 = salloc(2, 2)
sT = [salloc() for _ in range(6)]
sTS = salloc(2, 2)
sE0 = salloc(2, 2); sE1 = salloc(2, 2)

_vn = [1]
def valloc(n=1, al=1):
    while _vn[0] % al: _vn[0] += 1
    r = _vn[0]; _vn[0] += n
    return r
vLane = valloc()
vL16 = valloc(); vL4 = valloc()
vRES = valloc(8, 4)
vWPH = valloc(8, 4)
vSEL = valloc(4, 4)
vCS = valloc(12, 2)
vMF = valloc(2, 2)
vRS = valloc(2, 2)
vXq = valloc(4); vWtr = valloc(4)
vWdma, vWOdma, vPKwA, vPKwB, vPKrA, vPKrB, vKVw, vZw, vKVrA, vKVrB, vEXw, vE1st, vZst, vSTst, vFl16, vWO = [valloc() for _ in range(16)]
assert _vn[0] <= 64, _vn[0]
vA0, vA1, vWB, vTM = 64, 80, 96, 120
vXF = 128
vM1 = vTM + 2
vPK2 = vLane
vPT = vTM + 7
vSTAMP = 0

from scheds import SCHEDS
BAY = dict(KA=0, VA=1, QA=2, aA=3, bA=4, KB=5, QB=6, VB=7, aB=0, bB=1)
SLOTS = [dict(K=0, V=1, Q=2, a=3, b=0), dict(K=1, V=2, Q=3, a=0, b=1), dict(K=2, V=3, Q=1, a=0, b=3), dict(K=1, V=2, Q=0, a=3, b=1)]

class Gen:
    def __init__(self, opt):
        self.o = opt
        self.e = Asm()
        self.tail = []
        self.nstamp = 0
        self.stamp_names = []
        self.wtr_slot = 0
        self.ndump = 0
        self.bgn = {}; self.bgt = {}; self.seen = set(); self.l = 0
        self.occ = [(0, 'K'), (0, 'V'), (0, 'Q'), None]; self.dead = set(); self.live = {(0, 'K'), (0, 'V')}; self.bayocc = {}; self.in_redo = False

    def stamp(self, name):
        if self.o.echo and name in self.o.echo[:2]:
            self.e(f'{self.o.clk} {s(sE0 if name == self.o.echo[0] else sE1, 2)}')
            self.e.wait_all_lg()
        if not self.o.stamps: return
        e = self.e
        if self.o.both:
            if self.o.both == 2 and name not in ('start', 'end'): return
            if self.o.both == 3:
                if not (name.startswith(('chunk', 'L0', 'setup', 'g')) or name in ('start', 'end')): return
            elif name.split('.')[-1] not in ('start', 'chunk0', 'x0', 'kvgemm', 'pub1', 'phiq', 'pub2', 'poll2', 'B3', 'end'): return
            e(f's_memtime {s(sTS,2)}\ns_memrealtime {s(sE0,2)}')
            e.wait_all_lg()
            e(f'v_writelane_b32 {v(vSTAMP)}, {s(sTS)}, {self.nstamp}\nv_writelane_b32 {v(vSTAMP)}, {s(sE0)}, {self.nstamp+31}')
            self.nstamp += 1; self.stamp_names.append(name)
            assert self.nstamp <= 31
            return
        e(f'{self.o.clk} {s(sTS,2)}')
        e.wait_all_lg()
        e(f'v_writelane_b32 {v(vSTAMP)}, {s(sTS)}, {self.nstamp}')
        self.nstamp += 1; self.stamp_names.append(name)
    def dump(self, name, regs):
        if name not in self.o.dump: return
        e = self.e
        for r in regs:
            e(f's_lshl_b32 {s(sT[5])}, s2, 2\ns_add_u32 {s(sT[5])}, {s(sT[5])}, {s(sW)}\ns_lshl_b32 {s(sT[5])}, {s(sT[5])}, 14\ns_add_u32 {s(sT[5])}, {s(sT[5])}, {DUMP + self.ndump*256}')
            e(f'buffer_store_dword {r}, {v(vL4)}, {s(sWS,4)}, {s(sT[5])} offen')
            self.ndump += 1
        assert self.ndump <= 64
        e.wait_all_vm()
    def set_wtr(self, slot):
        d = (slot - self.wtr_slot) * SLOT
        if d:
            for q in range(4):
                self.e(f'v_add_u32 {v(vWtr+q)}, {d & 0xffffffff}, {v(vWtr+q)}')
        self.wtr_slot = slot
    def dma_w(self, typ, kind, n):
        e = self.e; srd = sWA if typ == 0 else sWB
        part = 'QKV'.index(kind); base = SLOTS[typ][kind] * SLOT - part * 1024
        assert base >= 0
        e(f's_xor_b32 {s(sT[4])}, {s(sRw)}, {n*4096}')
        e(f's_add_u32 m0, {s(sT[4])}, {base}')
        e(f's_mul_i32 {s(sT[4])}, {s(sT[4])}, 48')
        return e(f'buffer_load_dwordx4 {v(vWdma)}, {s(srd,4)}, {s(sT[4])} offen offset:{part*1024} lds')
    def dma_wo(self, typ, kind, n):
        e = self.e; srd = sWOA if typ == 0 else sWOB
        e(f's_xor_b32 {s(sT[4])}, {s(sRo)}, {n*4096}')
        e(f's_add_u32 m0, {s(sT[4])}, {SLOTS[typ][kind]*SLOT}')
        e(f's_lshl3_add_u32 {s(sT[4])}, {s(sT[4])}, {0x40000 if kind == "b" else 0}')
        return e(f'buffer_load_dwordx4 {v(vWOdma)}, {s(srd,4)}, {s(sT[4])} offen lds')
    def park(self, op, item, n):
        e = self.e; r = a(BAY[item]*32 + 4*n, 4)
        slot = SLOTS['AB'.index(item[1]) + (2 if op == 'R' else 0)][item[0]]
        ad, off = (vXq if slot < 2 else vPK2), (slot & 1) * SLOT + n * 4096
        if op == 'S': return e(f'ds_read_b128 {r}, {v(ad)} offset:{off}')
        return e(f'ds_write_b128 {v(ad)}, {r} offset:{off}')
    def bg_op(self, name, n):
        op, item = name[0], name[1:]
        typ = 'AB'.index(item[1])
        if op in 'LR':
            slot = SLOTS[typ + (2 if op == 'R' else 0)][item[0]]
            if n == 0:
                prev = self.occ[slot]
                assert prev is None or prev in self.dead, (name, prev)
                if prev and prev[0] < 2:
                    sv = 'S' + prev[1] + 'AB'[prev[0]]
                    assert self.bgn.get(sv) == 8, (name, sv)
                    if op == 'L': self.e.wait(lg=self.bgt[sv])
                self.occ[slot] = (typ + (2 if op == 'R' else 0), item[0])
        if op == 'S':
            if n == 0:
                prev = self.bayocc.get(BAY[item])
                assert prev is None or (self.bgn.get('R' + prev) == 8 and not self.in_redo), (name, prev)
                self.bayocc[BAY[item]] = item
            assert (typ, item[0]) in self.live, name
        if op == 'L': return self.dma_w(typ, item[0], n) if item[0] in 'QKV' else self.dma_wo(typ, item[0], n)
        return self.park(op, item, n)
    def need(self, kinds, l=None):
        l = self.l if l is None else l
        for k in kinds:
            nm = ('L' if l < 2 else 'R') + k + 'AB'[l & 1]
            assert self.bgn.get(nm) == 8, (self.l, nm)
            if l < 2: self.e.wait(vm=self.bgt[nm])
            else: self.e.wait(lg=self.bgt[nm])
            self.live.add((l, k))
    def free(self, kinds):
        for k in kinds: self.dead.add((self.l, k))
    def bg(self, point):
        for name, cnt in self.sched.get(f'{self.l}.{point}', []):
            for _ in range(cnt):
                n = self.bgn.get(name, 0)
                assert n < 8, name
                self.bgt[name] = self.bg_op(name, n)
                self.bgn[name] = n + 1
        self.seen.add(f'{self.l}.{point}')
    def tag(self, reg, par):
        self.e(f'v_or_b32 {v(reg)}, 1, {v(reg)}' if par else f'v_and_b32 {v(reg)}, -2, {v(reg)}')
    def chk(self, acc, r0, r1, par, first):
        if first: return f'v_and_b32 {v(acc)}, {v(r0)}, {v(r1)}' if par else f'v_or_b32 {v(acc)}, {v(r0)}, {v(r1)}'
        return f'v_bitop3_b32 {v(acc)}, {v(acc)}, {v(r0)}, {v(r1)} bitop3:0x80' if par else f'v_or3_b32 {v(acc)}, {v(acc)}, {v(r0)}, {v(r1)}'
    def chk_end(self, acc, par, name):
        self.e(f'v_and_b32 {v(acc)}, 1, {v(acc)}\nv_cmp_ne_u32 vcc, {par}, {v(acc)}\ns_cbranch_vccnz L_redo_{name}')
        t = Asm()
        t(f'L_redo_{name}:\ns_sub_u32 {s(sBUD)}, {s(sBUD)}, 1\ns_cbranch_scc1 L_fail\ns_waitcnt vmcnt(0) lgkmcnt(0)\ns_nop 15\ns_branch L_top_{name}')
        self.tail.append(t)
    def poll(self, name, sbase, val, pt=None, pre=None):
        e = self.e
        ld = f'buffer_load_dword {v(vTM)}, {v(vFl16)}, {s(sWS,4)}, {s(sbase)} offen sc1'
        e(ld)
        if pt: self.bg(pt)
        if pre: pre()
        e(f'L_{name}:')
        e.wait_all_vm()
        e(f'v_cmp_gt_u32 vcc, {val}, {v(vTM)}\ns_cbranch_vccz L_{name}_ok')
        e.raw(f'{ld}\ns_sub_u32 {s(sBUD)}, {s(sBUD)}, 1\ns_cbranch_scc0 L_{name}\ns_endpgm')
        e(f'L_{name}_ok:')
    def modal(self, name, fn):
        e = self.e
        e(f's_cmp_lg_u32 {s(sMODE)}, 0\ns_cbranch_scc1 L_{name}_safe')
        fn(e, '')
        e(f'L_{name}_join:')
        t = Asm(); t(f'L_{name}_safe:\ns_nop 4'); fn(t, ' sc1'); t(f's_nop 1\ns_branch L_{name}_join')
        self.tail.append(t)

    def x_stats(self):
        e = self.e
        S, Q = vTM, vTM + 1
        for i in range(8):
            e(f'v_dot2_f32_bf16 {v(S)}, {v(vRES+i)}, {s(sONES)}, {v(S) if i else 0}')
        for i in range(8):
            e(f'v_dot2_f32_bf16 {v(Q)}, {v(vRES+i)}, {v(vRES+i)}, {v(Q) if i else 0}')
        e(f'v_permlane32_swap_b32 {v(S)}, {v(Q)}')
        e(f'v_add_f32 {v(S)}, {v(S)}, {v(Q)}')
    def flag(self, e, reg, sflag, m):
        e(f's_mov_b64 exec, 1\nbuffer_store_dword {v(reg)}, off, {s(sWS,4)}, {s(sflag)}{m}\ns_mov_b64 exec, -1')
    def publish_x(self, l):
        quick = l > 0 and self.o.quick
        fr = vTM + 2
        self.e(f'v_mov_b32 {v(fr)}, {l + 2}')
        def st1(e, m):
            if l == 0 and not m: m = self.o.pub0
            e(f'buffer_store_dwordx4 {v(vRES,4)}, {v(vL16)}, {s(sWS,4)}, {s(sXwr)} offen{m}')
            e(f'buffer_store_dwordx4 {v(vRES+4,4)}, {v(vL16)}, {s(sWS,4)}, {s(sXwr)} offen offset:1024{m}')
            if quick and not m: self.flag(e, fr, sFXwr, m)
        def st2(e, m):
            e(f'buffer_store_dword {v(vTM)}, {v(vSTst)}, {s(sWS,4)}, {s(sSTwr)} offen{m if (m or l) else self.o.pub0s}')
            if m or not quick:
                e.wait_all_vm()
                self.flag(e, fr, sFXwr, m)
        self.modal(f'px{l}a', st1)
        self.x_stats()
        self.tag(vTM, l & 1)
        self.modal(f'px{l}b', st2)

    def e1_addr(self, l, t):
        if l & 1: return vE1st, vZst
        self.e(f'v_add_u32 {v(t)}, {s(sSKIP)}, {v(vE1st)}\nv_add_u32 {v(t+1)}, {s(sSKIP)}, {v(vZst)}')
        return t, t + 1
    def clear_slot(self, l, m1, ak, az):
        e = self.e
        e(f'v_mov_b32 {v(m1)}, -1\nv_mov_b32 {v(m1+1)}, -1')
        e(f's_add_u32 {s(sT[4])}, {s(sKVwrB)}, {l*0x80000}\ns_add_u32 {s(sT[5])}, {s(sZwrB)}, {l*0x10000}')
        e(f'buffer_store_dwordx2 {v(m1,2)}, {v(ak)}, {s(sWS,4)}, {s(sT[4])} offen sc1')
        return e(f'buffer_store_dword {v(m1)}, {v(az)}, {s(sWS,4)}, {s(sT[5])} offen sc1')
    def dma0(self, P, n, again=False):
        e = self.e
        if n < 4:
            if n == 0 or again:
                e(f's_add_u32 m0, {s(sX0l)}, {(P % 3) * 16384}\ns_xor_b32 {s(sT[0])}, {s(sX0g)}, {P << 7}')
            return e(f'buffer_load_dwordx4 {v(vWPH+n)}, {s(sX,4)}, {s(sT[0])} offen offset:{n*1024} lds')
        if n == 4:
            e(f's_xor_b32 {s(sT[1])}, {s(sW0g)}, {P*4096}')
            e(f's_add_u32 m0, {s(sW0l)}, {P*4096 + SLOT - 2048}')
            e(f's_mul_i32 {s(sT[1])}, {s(sT[1])}, 48')
            return e(f'buffer_load_dwordx4 {v(vWdma)}, {s(sWA,4)}, {s(sT[1])} offen offset:2048 lds')
        assert not again
        e(f's_add_u32 m0, {s(sW0l)}, {P*4096}\ns_add_u32 {s(sT[1])}, {s(sT[1])}, 1024')
        return e(f'buffer_load_dwordx4 {v(vWdma)}, {s(sWA,4)}, {s(sT[1])} offen lds')
    def dma0q(self, P):
        e = self.e
        e(f's_xor_b32 {s(sT[1])}, {s(sW0g)}, {P*4096}')
        e(f's_add_u32 m0, {s(sW0l)}, {P*4096 + 2*SLOT}')
        e(f's_mul_i32 {s(sT[1])}, {s(sT[1])}, 48')
        return e(f'buffer_load_dwordx4 {v(vWdma)}, {s(sWA,4)}, {s(sT[1])} offen lds')

    def touch(self, i):
        e = self.e; T = sT; t16, t4 = vTM + 6, vTM + 7
        if i == 0:
            e(f's_lshl2_add_u32 {s(T[5])}, s2, {s(sW)}\ns_lshr_b32 {s(T[4])}, {s(T[5])}, 1\ns_lshl_b32 {s(T[4])}, {s(T[4])}, 11\ns_lshl_b32 {s(T[5])}, {s(T[5])}, 9\ns_add_u32 {s(T[4])}, {s(T[4])}, {s(T[5])}')
            return e(f'buffer_load_dword a255, {v(t4)}, {s(sWA,4)}, {s(T[4])} offen')
        if i in (1, 5):
            e(f's_lshl2_add_u32 {s(T[5])}, s2, {s(sW)}\ns_lshl_b32 {s(T[5])}, {s(T[5])}, 9')
            return e(f'buffer_load_dword a255, {v(t4)}, {s(sWOA if i == 1 else sWOB,4)}, {s(T[5])} offen')
        if i == 2: return e(f'buffer_load_dword a255, {v(t16)}, {s(sWS,4)}, {s(sOwr)} offen')
        if i == 7:
            e(f's_lshl4_add_u32 {s(T[5])}, {s(sR)}, {s(sG)}\ns_lshl2_add_u32 {s(T[5])}, {s(T[5])}, {s(sW)}\ns_lshl_b32 {s(T[5])}, {s(T[5])}, 11')
            return e(f'buffer_load_dword a255, {v(t16)}, {s(sX,4)}, {s(T[5])} offen')
        if i in (3, 8):
            e(f's_lshl_b32 {s(T[5])}, {s(sW)}, 8\ns_add_u32 {s(T[5])}, {s(T[5])}, s2\ns_min_u32 {s(T[5])}, {s(T[5])}, 767\ns_lshl_b32 {s(T[5])}, {s(T[5])}, 11')
            return e(f'buffer_load_dword a255, {v(t16)}, {s(sWB if i == 3 else sWA,4)}, {s(T[5])} offen')
        if i == 4: return e(f'buffer_load_dword a255, {v(t16)}, {s(sWS,4)}, {s(sXwr)} offen')
        if i == 6: return e(f'buffer_load_dword a255, {v(t4)}, {s(sWS,4)}, {s(sSTwr)} offen')

    def code_touch(self, dst):
        return self.e(f'buffer_load_dword {dst}, {v(vL16)}, {s(sCODE,4)}, {s(sCOFF)} offen')
    def dummy(self, i):
        e = self.e
        if i < 4: return e(f'buffer_store_dwordx4 {v(vSEL,4)}, {v(vL16)}, {s(sWS,4)}, {s((sOwr, sXwr)[i >> 1])} offen offset:{(i & 1)*1024} sc1')
        return e(f'buffer_store_dword {v(vSEL)}, {v(vSTst)}, {s(sWS,4)}, {s(sSTwr)} offen sc1')

    def prologue(self):
        e = self.e
        T = sT
        e('s_cmp_ge_u32 s2, 256\ns_cbranch_scc1 L_fail')
        if self.o.echo and self.o.echo[0] == 'entry': e(f'{self.o.clk} {s(sE0,2)}')
        for srd, off in ((sX, 0), (sWA, 8), (sWS, 72), (sWOA, 16), (sWB, 32), (sWP, 40), (sWOB, 48), (sOUT, 56), (sDBG, 64)):
            e(f's_load_dwordx2 {s(srd,2)}, s[0:1], {off}')
        e(f's_getpc_b64 {s(sCODE,2)}')
        e(f'v_and_b32 {v(vLane)}, 63, v0\nv_lshrrev_b32 {v(vTM)}, 6, v0')
        e(f's_mov_b32 {s(sCODE+2)}, L_code_end-{NAME}_kernel-128\ns_mov_b32 {s(sCODE+3)}, 0x20000')
        e(f'v_readfirstlane_b32 {s(sW)}, {v(vTM)}')
        e(f'v_lshlrev_b32 {v(vL16)}, 4, {v(vLane)}')
        e(f's_lshr_b32 {s(sG)}, s2, 3\ns_lshl2_add_u32 {s(T[0])}, {s(sG)}, {s(sW)}')
        e(f's_and_b32 {s(T[0])}, {s(T[0])}, 63\ns_lshl_b32 {s(T[0])}, {s(T[0])}, 10\ns_min_u32 {s(sCOFF)}, {s(T[0])}, L_code_end-{NAME}_kernel-128-1024')
        self.code_touch('a255')
        e(f'v_lshlrev_b32 {v(vTM+6)}, 7, {v(vLane)}')
        for srd, sz in ((sX, 0x200000), (sWA, 0x180000), (sWS, WS_BYTES)):
            e(f's_mov_b32 {s(srd+2)}, {sz}\ns_mov_b32 {s(srd+3)}, 0x20000')
        t0, t1, t2 = vA1, vA1 + 1, vA1 + 2
        e(f'''
        s_and_b32 {s(sR)}, s2, 7
        s_lshl_b32 {s(sR)}, {s(sR)}, 1
        s_lshr_b32 {s(T[0])}, s2, 7
        s_add_u32 {s(sR)}, {s(sR)}, {s(T[0])}
        s_and_b32 {s(sG)}, {s(sG)}, 15
        s_lshl_b32 {s(sRB)}, {s(sR)}, 2
        s_add_u32 {s(sRB)}, {s(sRB)}, {s(sW)}
        s_and_b32 {s(sROT)}, {s(sG)}, 1
        s_lshl1_add_u32 {s(sROT)}, {s(sROT)}, {s(T[0])}
        s_lshl_b32 {s(sROT)}, {s(sROT)}, 1
        s_lshr_b32 {s(T[1])}, {s(sG)}, 1
        s_xor_b32 {s(sROT)}, {s(sROT)}, {s(T[1])}
        s_xor_b32 {s(sROT)}, {s(sROT)}, s2
        s_and_b32 {s(sROT)}, {s(sROT)}, 7
        s_lshl_b32 {s(sX0g)}, {s(sRB)}, 8
        s_add_u32 {s(sX0g)}, {s(sX0g)}, {s(sROT)}
        s_lshl_b32 {s(sX0g)}, {s(sX0g)}, 7
        s_lshl_b32 {s(sX0l)}, {s(sW)}, 12
        s_add_u32 {s(sX0l)}, {s(sX0l)}, {3*SLOT}
        s_lshl_b32 {s(sW0l)}, {s(sW)}, 10
        s_lshl2_add_u32 {s(sW0g)}, {s(sROT)}, {s(sW)}
        s_lshl_b32 {s(sW0g)}, {s(sW0g)}, 10
        s_lshl_b32 {s(T[2])}, {s(sG)}, 6
        v_lshrrev_b32 {v(vWdma)}, 2, {v(vLane)}
        v_mul_u32_u24 {v(vWdma)}, 3072, {v(vWdma)}
        v_and_b32 {v(vTM+5)}, 3, {v(vLane)}
        v_lshl_add_u32 {v(vWdma)}, {v(vTM+5)}, 4, {v(vWdma)}
        v_add_u32 {v(vWdma)}, {s(T[2])}, {v(vWdma)}
        v_lshrrev_b32 {v(vTM+4)}, 4, {v(vLane)}
        v_and_b32 {v(t2)}, 7, {v(vLane)}
        v_xor_b32 {v(t1)}, {v(t2)}, {v(vTM+4)}
        v_lshlrev_b32 {v(t1)}, 4, {v(t1)}
        v_lshrrev_b32 {v(t0)}, 3, {v(vLane)}
        v_lshl_add_u32 {v(vWPH)}, {v(t0)}, 10, {v(t1)}
        v_xor_b32 {v(vWPH+1)}, 64, {v(vWPH)}
        v_add_u32 {v(vWPH+1)}, {7168}, {v(vWPH+1)}
        v_add_u32 {v(vWPH+2)}, {2*7168}, {v(vWPH)}
        v_add_u32 {v(vWPH+3)}, {2*7168}, {v(vWPH+1)}
        v_and_b32 {v(vTM)}, 31, {v(vLane)}
        v_lshrrev_b32 {v(vTM+1)}, 5, {v(vLane)}
        v_lshlrev_b32 {v(vL4)}, 2, {v(vLane)}
        ''')
        e(f'''
        s_lshl_b32 {s(T[3])}, {s(sG)}, 2
        s_add_u32 {s(T[3])}, {s(T[3])}, {s(sW)}
        s_lshl_b32 {s(sKVrdB)}, {s(T[3])}, 13
        s_add_u32 {s(sKVrdB)}, {s(sKVrdB)}, {KVP}
        s_lshl_b32 {s(sZrdB)}, {s(T[3])}, 10
        s_add_u32 {s(sZrdB)}, {s(sZrdB)}, {ZP}
        s_lshl_b32 {s(T[4])}, {s(sR)}, 9
        s_add_u32 {s(sKVwrB)}, {s(sKVrdB)}, {s(T[4])}
        s_lshl_b32 {s(T[5])}, {s(sR)}, 6
        s_add_u32 {s(sZwrB)}, {s(sZrdB)}, {s(T[5])}
        v_and_b32 {v(vFl16)}, 60, {v(vL4)}
        v_lshlrev_b32 {v(t0)}, 2, {v(vFl16)}
        v_lshl_add_u32 {v(t0)}, {v(vTM+1)}, 8, {v(t0)}
        v_and_b32 {v(t1)}, 1, {v(vTM+4)}
        v_lshl_add_u32 {v(vE1st)}, {v(t1)}, 3, {v(t0)}
        v_lshl_add_u32 {v(vZst)}, {v(vTM+4)}, 26, {v(vFl16)}
        s_lshr_b32 {s(sSKIP)}, {s(sR)}, 3
        s_lshr_b32 {s(T[1])}, {s(sW)}, 1
        s_xor_b32 {s(sSKIP)}, {s(sSKIP)}, {s(T[1])}
        s_lshl_b32 {s(sSKIP)}, {s(sSKIP)}, 28
        v_mov_b32 {v(vA0+4)}, 0
        s_lshr_b32 {s(sFOwr)}, {s(sG)}, 1
        s_lshl_b32 {s(sFOwr)}, {s(sFOwr)}, 13
        s_add_u32 {s(sFOwr)}, {s(sFOwr)}, {s(T[4])}
        s_and_b32 {s(sFOrd)}, {s(sG)}, 1
        s_lshl_b32 {s(sFOrd)}, {s(sFOrd)}, 8
        s_add_u32 {s(sFOwr)}, {s(sFOwr)}, {s(sFOrd)}
        ''')
        e(f'v_lshrrev_b32 {v(t0)}, 2, {v(vLane)}\nv_lshl_add_u32 {v(vTM+7)}, {v(t0)}, 26, {v(vTM+6)}\nv_lshl_add_u32 {v(vTM+6)}, {v(vTM+4)}, 26, {v(vTM+6)}')
        for srd, sz in ((sWOA, 0x80000), (sWB, 0x180000), (sWOB, 0x80000)):
            e(f's_mov_b32 {s(srd+2)}, {sz}\ns_mov_b32 {s(srd+3)}, 0x20000')
        e('s_waitcnt lgkmcnt(0)')
        if self.o.stamps:
            e(f's_memrealtime {s(sTS,2)}'); e.wait_all_lg()
            e(f'v_writelane_b32 {v(vSTAMP)}, {s(sTS)}, 62')
        self.stamp('start')
        self.ct = [None] * 8
        for c in self.o.t0: self.touch(int(c))
        for n in range(6): self.ct[0] = self.dma0(0, n)
        for c in self.o.t1: self.touch(int(c))
        if self.o.q0 > 0: self.dma0q(0)
        for n in range(self.o.c1early): self.ct[1] = self.dma0(1, n)
        e(f's_and_b32 {s(sFOrd)}, {s(T[3])}, 0x33\ns_cbranch_scc1 L_noclr')
        e.raw(f'buffer_store_dword {v(vA0+4)}, {v(vL4)}, {s(sWS,4)}, {s(sFOwr)} offen sc1')
        e('L_noclr:')
        self.clear_slot(0, vM1, *self.e1_addr(0, vA0 + 6))
        for srd, sz in ((sWP, 0x4000), (sOUT, 0x200000), (sDBG, 256)):
            e(f's_mov_b32 {s(srd+2)}, {sz}\ns_mov_b32 {s(srd+3)}, 0x20000')
        e(f'''
        s_and_b32 {s(T[0])}, {s(sW)}, 1
        s_lshr_b32 {s(T[1])}, {s(sW)}, 1
        s_lshl_b32 {s(sRBO)}, {s(sR)}, 2
        s_lshr_b32 {s(T[4])}, {s(sG)}, 3
        s_lshl_b32 {s(T[4])}, {s(T[4])}, 1
        s_add_u32 {s(T[4])}, {s(T[4])}, {s(T[0])}
        s_add_u32 {s(sRBO)}, {s(sRBO)}, {s(T[4])}
        s_lshl_b32 {s(T[3])}, {s(T[4])}, 12
        s_add_u32 {s(T[3])}, {s(T[3])}, {3*SLOT}
        s_and_b32 {s(sJ)}, {s(sG)}, 7
        s_xor_b32 {s(sRESP)}, {s(sJ)}, {s(sROT)}
        s_lshl_b32 {s(sJ)}, {s(sJ)}, 1
        s_add_u32 {s(sJ)}, {s(sJ)}, {s(T[1])}
        s_lshl_b32 {s(sXO)}, {s(sRBO)}, 15
        s_lshl_b32 {s(T[2])}, {s(sJ)}, 6
        s_add_u32 {s(sXO)}, {s(sXO)}, {s(T[2])}
        s_and_b32 {s(T[4])}, {s(sG)}, 1
        s_and_b32 {s(T[5])}, {s(sR)}, 1
        s_lshl1_add_u32 {s(T[4])}, {s(T[4])}, {s(T[5])}
        s_lshl3_add_u32 {s(T[4])}, {s(T[4])}, {s(sW)}
        s_lshl_b32 {s(sRw)}, {s(T[4])}, 10
        s_lshr_b32 {s(T[4])}, {s(sG)}, 3
        s_lshl1_add_u32 {s(T[4])}, {s(T[4])}, {s(T[5])}
        s_lshl3_add_u32 {s(T[4])}, {s(T[4])}, {s(sW)}
        s_lshl_b32 {s(sRo)}, {s(T[4])}, 10
        s_lshl_b32 {s(T[4])}, {s(T[1])}, 12
        s_add_u32 {s(sKVrdA)}, {s(sKVrdB)}, {s(T[4])}
        s_lshl_b32 {s(T[4])}, {s(T[1])}, 9
        s_add_u32 {s(sZrdA)}, {s(sZrdB)}, {s(T[4])}
        s_lshl_b32 {s(T[4])}, {s(sRB)}, 15
        s_add_u32 {s(sXrd)}, {s(T[4])}, {XB}
        s_lshl_b32 {s(T[5])}, {s(sG)}, 11
        s_add_u32 {s(sOwr)}, {s(T[4])}, {s(T[5])}
        s_add_u32 {s(sOwr)}, {s(sOwr)}, {OB}
        s_lshl_b32 {s(T[4])}, {s(sRBO)}, 15
        s_lshl_b32 {s(T[5])}, {s(sJ)}, 11
        s_add_u32 {s(sXwr)}, {s(T[4])}, {s(T[5])}
        s_add_u32 {s(sXwr)}, {s(sXwr)}, {XB}
        s_lshl_b32 {s(T[5])}, {s(T[1])}, 14
        s_add_u32 {s(sOrd)}, {s(T[4])}, {s(T[5])}
        s_add_u32 {s(sOrd)}, {s(sOrd)}, {OB}
        s_lshl_b32 {s(sSTrd)}, {s(sRB)}, 12
        s_add_u32 {s(sSTrd)}, {s(sSTrd)}, {ST}
        s_lshl_b32 {s(sSTwr)}, {s(sRBO)}, 12
        s_and_b32 {s(T[4])}, {s(sG)}, 7
        s_lshl_b32 {s(T[5])}, {s(T[4])}, 9
        s_add_u32 {s(sSTwr)}, {s(sSTwr)}, {s(T[5])}
        s_lshl_b32 {s(T[5])}, {s(T[1])}, 3
        s_add_u32 {s(sSTwr)}, {s(sSTwr)}, {s(T[5])}
        s_add_u32 {s(sSTwr)}, {s(sSTwr)}, {ST}
        s_lshl_b32 {s(T[2])}, {s(T[4])}, 7
        s_lshl_b32 {s(sFXrd)}, {s(sRB)}, 7
        s_lshl_b32 {s(T[5])}, {s(sG)}, 2
        s_add_u32 {s(sFOwr)}, {s(sFXrd)}, {s(T[5])}
        s_add_u32 {s(sFXrd)}, {s(sFXrd)}, {FLG_X}
        s_lshl_b32 {s(sFOrd)}, {s(sRBO)}, 7
        s_lshl_b32 {s(T[5])}, {s(sJ)}, 2
        s_add_u32 {s(sFXwr)}, {s(sFOrd)}, {s(T[5])}
        s_add_u32 {s(sFXwr)}, {s(sFXwr)}, {FLG_X}
        s_mov_b32 {s(sONES)}, 0x3f803f80
        s_mov_b32 {s(sPERM)}, 0x07060302
        s_mov_b32 {s(sHI)}, 0xffff0000
        s_mov_b32 {s(sL2E)}, 0x3fb8aa3b
        s_mov_b32 {s(sL2E+1)}, 0x3fb8aa3b
        s_mov_b32 {s(sEPS6)}, 0x358637bd
        s_mov_b32 {s(sEPS6+1)}, 0x358637bd
        s_getreg_b32 {s(sXCC)}, hwreg(HW_REG_XCC_ID, 0, 3)
        s_lshl_b32 {s(sXCC)}, {s(sXCC)}, 2
        s_mov_b32 {s(sBUD)}, 100000
        ''')
        e(f'''
        v_lshlrev_b32 {v(vSTst)}, 4, {v(vTM)}
        v_lshl_add_u32 {v(vSTst)}, {v(vTM+1)}, 2, {v(vSTst)}
        v_lshrrev_b32 {v(t0)}, 3, {v(vLane)}
        v_and_b32 {v(t1)}, 1, {v(vTM+4)}
        v_lshlrev_b32 {v(t1)}, 2, {v(t1)}
        v_xor_b32 {v(t1)}, {v(t1)}, {v(t2)}
        v_lshlrev_b32 {v(t1)}, 4, {v(t1)}
        v_lshl_add_u32 {v(vWOdma)}, {v(t0)}, 10, {v(t1)}
        v_add_u32 {v(vWOdma)}, {s(T[2])}, {v(vWOdma)}
        ''')
        e(f'''
        v_bfe_u32 {v(t0)}, {v(vLane)}, 2, 2
        v_lshl_add_u32 {v(t0)}, {v(vTM+1)}, 4, {v(t0)}
        v_lshlrev_b32 {v(t0)}, 6, {v(t0)}
        v_and_b32 {v(t1)}, 1, {v(vTM+4)}
        v_lshl_add_u32 {v(t0)}, {v(t1)}, 5, {v(t0)}
        v_and_b32 {v(t1)}, 1, {v(vLane)}
        v_lshl_add_u32 {v(t0)}, {v(t1)}, 4, {v(t0)}
        v_bfe_u32 {v(t1)}, {v(vLane)}, 1, 1
        v_lshl_add_u32 {v(t0)}, {v(t1)}, 3, {v(t0)}
        v_bfe_u32 {v(t1)}, {v(vLane)}, 1, 3
        v_lshlrev_b32 {v(t2)}, 1, {v(vTM+1)}
        v_xor_b32 {v(t1)}, {v(t1)}, {v(t2)}
        v_lshlrev_b32 {v(t1)}, 4, {v(t1)}
        v_lshl_add_u32 {v(t1)}, {v(vTM)}, 7, {v(t1)}
        s_lshl_b32 {s(T[4])}, {s(T[1])}, 6
        v_xor_b32 {v(vA0+5)}, {s(T[4])}, {v(t1)}
        v_add_u32 {v(vA0+5)}, {s(T[3])}, {v(vA0+5)}
        v_add_u32 {v(t1)}, {s(sX0l)}, {v(t1)}
        ''')
        for q in range(4):
            e(f'''
            s_xor_b32 {s(T[4])}, {s(sW)}, {q}
            s_lshl_b32 {s(T[5])}, {s(T[4])}, 10
            v_add_u32 {v(vXq+q)}, {s(T[5])}, {v(vL16)}
            s_lshr_b32 {s(T[5])}, {s(T[4])}, 1
            s_lshl_b32 {s(T[5])}, {s(T[5])}, 2
            s_and_b32 {s(T[4])}, {s(T[4])}, 1
            s_add_u32 {s(T[4])}, {s(T[4])}, {s(T[5])}
            s_lshl_b32 {s(T[5])}, {s(T[4])}, 9
            v_add_u32 {v(vWtr+q)}, {s(T[5])}, {v(t0)}
            s_lshl_b32 {s(T[5])}, {s(T[4])}, 4
            v_xor_b32 {v(vWPH+4+q)}, {s(T[5])}, {v(t1)}
            ''')
        e(f'''
        s_lshl_b32 {s(T[4])}, {s(sW)}, 9
        s_add_u32 {s(T[4])}, {s(T[4])}, {L_PK}
        v_lshl_add_u32 {v(t0)}, {v(vTM)}, 4, {s(T[4])}
        v_mul_u32_u24 {v(t1)}, {PL}, {v(vTM+1)}
        v_add_u32 {v(vPKwA)}, {v(t0)}, {v(t1)}
        v_lshl_add_u32 {v(vPKwB)}, {v(t1)}, 2, {v(t0)}
        v_bfe_u32 {v(t0)}, {v(vLane)}, 1, 1
        v_mul_u32_u24 {v(t0)}, {PL}, {v(t0)}
        v_lshrrev_b32 {v(t1)}, 2, {v(vLane)}
        v_lshl_add_u32 {v(t0)}, {v(t1)}, 4, {v(t0)}
        v_and_b32 {v(t1)}, 1, {v(vLane)}
        v_lshl_add_u32 {v(t0)}, {v(t1)}, 3, {v(t0)}
        s_mul_i32 {s(T[4])}, {s(sW)}, {2*PL}
        s_add_u32 {s(T[4])}, {s(T[4])}, {L_PK}
        v_add_u32 {v(vPKrB)}, {s(T[4])}, {v(t0)}
        s_mul_i32 {s(T[4])}, {s(T[0])}, {2*PL}
        s_add_u32 {s(T[4])}, {s(T[4])}, {L_PK}
        v_add_u32 {v(vPKrA)}, {s(T[4])}, {v(t0)}
        ''')
        e(f'''
        s_mul_i32 {s(T[4])}, {s(sW)}, 544
        s_add_u32 {s(T[4])}, {s(T[4])}, {L_KV}
        v_lshl_add_u32 {v(t0)}, {v(vFl16)}, 3, {s(T[4])}
        v_lshl_add_u32 {v(vKVw)}, {v(vTM+4)}, 3, {v(t0)}
        v_lshrrev_b32 {v(t0)}, 1, {v(vFl16)}
        v_add_u32 {v(vZw)}, {s(T[4])}, {v(t0)}
        v_bfe_u32 {v(t0)}, {v(vLane)}, 2, 1
        v_lshl_add_u32 {v(t0)}, {v(t0)}, 3, {v(vTM+5)}
        v_bfe_u32 {v(t1)}, {v(vLane)}, 3, 1
        v_lshl_add_u32 {v(t0)}, {v(t1)}, 2, {v(t0)}
        v_cmp_gt_u32 vcc, 16, {v(vTM)}
        v_cndmask_b32 {v(t0)}, 16, {v(t0)}, vcc
        v_lshlrev_b32 {v(t0)}, 5, {v(t0)}
        v_add_u32 {v(t0)}, {L_KV}, {v(t0)}
        v_lshl_add_u32 {v(vKVrA)}, {v(vTM+1)}, 4, {v(t0)}
        v_mul_u32_u24 {v(t1)}, 1088, {v(vTM+1)}
        v_add_u32 {v(vKVrB)}, {v(t0)}, {v(t1)}
        s_lshl_b32 {s(T[4])}, {s(sW)}, 12
        s_add_u32 {s(T[4])}, {s(T[4])}, {L_EX}
        v_add_u32 {v(vEXw)}, {s(T[4])}, {v(vL16)}
        ''')
        e(f'''
        v_bfe_u32 {v(t0)}, {v(vLane)}, 2, 2
        v_lshl_add_u32 {v(t0)}, {v(vTM+1)}, 3, {v(t0)}
        v_lshlrev_b32 {v(t0)}, 7, {v(t0)}
        v_bfe_u32 {v(t1)}, {v(vLane)}, 3, 1
        v_xor_b32 {v(t1)}, {s(T[1])}, {v(t1)}
        v_lshl_add_u32 {v(t0)}, {v(t1)}, 6, {v(t0)}
        v_and_b32 {v(t1)}, 1, {v(vLane)}
        v_lshl_add_u32 {v(t0)}, {v(t1)}, 5, {v(t0)}
        v_bfe_u32 {v(t1)}, {v(vLane)}, 4, 1
        v_lshl_add_u32 {v(t0)}, {v(t1)}, 4, {v(t0)}
        v_bfe_u32 {v(t1)}, {v(vLane)}, 1, 1
        v_lshl_add_u32 {v(vWO)}, {v(t1)}, 3, {v(t0)}
        ''')
        e(f'''
        v_and_b32 {v(t0)}, 1, {v(vLane)}
        v_lshlrev_b32 {v(t0)}, 4, {v(t0)}
        v_mov_b32 {v(t1)}, 0x3f80
        v_lshlrev_b32 {v(t0)}, {v(t0)}, {v(t1)}
        v_lshrrev_b32 {v(t1)}, 1, {v(vLane)}
        v_xor_b32 {v(t1)}, {v(t1)}, {v(vLane)}
        v_and_b32 {v(t1)}, 8, {v(t1)}
        v_bfe_u32 {v(t2)}, {v(vLane)}, 1, 2
        v_or_b32 {v(t1)}, {v(t1)}, {v(t2)}
        ''')
        for d in range(4):
            e(f'v_cmp_eq_u32 vcc, {d}, {v(t1)}\nv_cndmask_b32 {v(vSEL+d)}, 0, {v(t0)}, vcc')
        e(f'v_add_u32 {v(vPK2)}, {2*SLOT}, {v(vXq)}')
        e(f'v_mov_b32 {v(vTM+4)}, {v(vA0+5)}\nv_xor_b32 {v(vTM+5)}, 16, {v(vA0+5)}')
        for n in range(self.o.c1early, 6): self.ct[1] = self.dma0(1, n, again=(n == self.o.c1early))
        if self.o.q0 > 1: self.dma0q(1)
        if self.o.dummy < 0:
            for i in range(5): self.dummy(i)
        for c in self.o.t2: self.touch(int(c))
        self.stamp('setup')

    def par_sel(self, dst):
        e = self.e
        e(f's_mov_b32 vcc_lo, 0xf0f00f0f\ns_mov_b32 vcc_hi, 0xf0f00f0f\nv_mov_b32 {v(dst+1)}, {s(sONES)}')
        e(f'v_cndmask_b32 {v(dst)}, 0, {v(dst+1)}, vcc')
        for i in (1, 2, 3): e(f'v_mov_b32 {v(dst+i)}, {v(dst)}')
    def rowsum(self, acc, sel, frag, first):
        self.e(f'v_mfma_f32_16x16x32_bf16 {acc}, {v(sel,4)}, {v(frag,4)}, {0 if first else acc}')

    def kv_gemm0(self):
        e = self.e
        sel = vCS + 8
        self.par_sel(sel)
        aS, aK, aV = a(0, 4), a(4, 4), a(8, 4)
        wt = [None] * 32; xt = [None] * 32
        dl = []
        def dma(n):
            for _ in range(n):
                if dl:
                    P, i = dl.pop(0)
                    if P < 8: self.ct[P] = self.dma0(P, i)
                    elif P == 8: self.bgt['LQA'] = self.dma0q(i); self.bgn['LQA'] = i + 1
                    elif P == 9: self.touch(i)
                    elif P == 11: self.dummy(i)
                    elif P == 12: self.code_touch('a255')
                    elif P == 10: self.clr1 = self.clear_slot(1, vM1, vE1st, vZst)
        cK, cV = vCS + 2, vCS + 4
        sb = vWPH
        q0, q1 = vTM, vTM + 1
        dq = []
        sops = [f'v_accvgpr_read_b32 {v(sb)}, a0', f'v_add_f32 {v(sb+1)}, {v(q0)}, {v(q1)}', f'v_mov_b32 {v(sb+3)}, {v(sb+1)}',
                f'v_permlane32_swap_b32 {v(sb+1)}, {v(sb+3)}', f'v_add_f32 {v(sb+1)}, {v(sb+1)}, {v(sb+3)}'] + self.stats_tail(sb)
        def pop(n):
            for _ in range(n):
                if dq: e(dq.pop(0))
                elif k >= 27 and sops: e(sops.pop(0))
        nq = self.o.q0
        touches = {int(x[0]): [int(c) for c in x[1:]] for x in self.o.touch.split(',') if x}
        for k in range(-2, 32):
            b = vWB + (k % 3) * 8
            nb = vWB + ((k + 2) % 3) * 8
            fr = [k + 1] if -1 <= k < 27 else ([28, 29, 30, 31] if k == 27 else [])
            bound = (k + 2) % 4 == 0 and k + 2 < 32
            if k >= 0:
                e.wait(lg=max(wt[k], xt[k]))
                if k % 4 == 0:
                    self.rowsum(aK, sel, b, k == 0); self.rowsum(aV, sel, b + 4, k == 0)
                e(f'v_mfma_f32_32x32x16_bf16 {v(vA0,16)}, {v(b,4)}, {v(vXF+4*k,4)}, {v(vA0,16) if k else 0}')
            if bound:
                P = (k + 2) >> 2
                dma(99)
                e.wait(vm=self.ct[P])
                e('s_barrier')
                if P == 0 or self.o.fine: self.stamp(f'chunk{P}')
                for q in range(4):
                    xt[4*P+q] = e(f'ds_read_b128 {v(vXF+16*P+4*q,4)}, {v(vWPH+4+q)} offset:{(P%3)*16384}')
                if P + 2 < 8: dl += [(P + 2, i) for i in range(6)]
                if P == self.o.clrp: dl += [(10, 0)]
                for _ in range(int(self.o.qs[P])):
                    dl += [(8, nq)]; nq += 1
                if P == 5 and self.o.ctouch & 4: dl += [(12, 0)]
                dl += [(9, i) for i in touches.get(P, [])]
                if P == 6 and self.o.tq: dl[1:1] = [(9, int(c)) for c in self.o.tq]
                if self.o.dummy == 7 and P == 7: dl += [(11, i) for i in range(4)]
                elif self.o.dummy > 0 and 0 <= P - self.o.dummy < 3: dl += [(11, i) for i in ((0, 1), (2, 3), (4,))[P - self.o.dummy]]
            else:
                dma(1)
            if k + 2 < 32: self.tr_w(nb, k + 2, 0)
            if k == 28:
                dma(99)
                cw = self.cs_write(['a4', 'a8'], [1, 2])
            pop(2 if k < 28 else 5)
            for f in fr:
                e.wait(lg=xt[f])
                if self.o.nomini & 1 and f: continue
                self.rowsum(aS, sel, vXF + 4*f, f == 0)
                if self.o.nomini & 2 and f: continue
                dq += [f'v_dot2_f32_bf16 {v((q0, q1)[i&1])}, {v(vXF+4*f+i)}, {v(vXF+4*f+i)}, {v((q0, q1)[i&1]) if (f or i > 1) else 0}' for i in range(4)]
                if k == 27: pop(2)
            if k >= 0:
                e(f'v_mfma_f32_32x32x16_bf16 {v(vA1,16)}, {v(b+4,4)}, {v(vXF+4*k,4)}, {v(vA1,16) if k else 0}')
            if k + 2 < 32: wt[k + 2] = self.tr_w(nb + 4, k + 2, SLOT)
            if bound:
                e(f's_cmp_lg_u32 {s(sRESP)}, {P}\ns_cbranch_scc1 L_nores{P}')
                e.raw(f'ds_read_b128 {v(vRES,4)}, {v(vTM+4)} offset:{(P%3)*16384}\nds_read_b128 {v(vRES+4,4)}, {v(vTM+5)} offset:{(P%3)*16384}')
                e(f'L_nores{P}:')
            dma(1)
            pop(2 if k < 27 else 5)
            if k == 4 * self.o.atp - 1:
                e(f'''
                s_cmp_lg_u32 {s(sW)}, 0
                s_cbranch_scc1 L_noat
                s_lshr_b32 {s(sT[5])}, {s(sG)}, 3
                s_lshl1_add_u32 {s(sT[5])}, {s(sR)}, {s(sT[5])}
                s_lshl_b32 {s(sT[5])}, {s(sT[5])}, 2
                s_lshl_b32 {s(sAT)}, 1, {s(sXCC)}
                s_atomic_add {s(sAT)}, {s(sDBG,2)}, {s(sT[5])}
                L_noat:
                ''')
            if k == 28:
                e.wait(lg=cw); e('s_barrier')
                if self.o.fine: self.stamp('g28')
                r1 = self.cs_read(1, vWPH + 4)
                r2 = self.cs_read(2, vCS + 8)
            if k >= 29: self.bg(f'kv{k}')
            if k == 30:
                assert not dq and not sops
                e.wait(lg=r2)
                sops += self.cs_pack_ops(vWPH + 4, cK) + self.cs_pack_ops(vCS + 8, cV)
                pop(4)
        pop(99)
        e(f'v_mfma_f32_32x32x8_bf16 {v(vA0,16)}, {v(cK,2)}, {v(vMF,2)}, {v(vA0,16)}')
        e(f'v_mfma_f32_32x32x8_bf16 {v(vA1,16)}, {v(cV,2)}, {v(vMF,2)}, {v(vA1,16)}')
        self.stamp('L0.kvgemm')

    def cs_write(self, acc, blk):
        e = self.e
        t = vTM + 6
        e(f'v_and_b32 {v(t)}, 0x1f0, {v(vL16)}\ns_lshl_b32 {s(sT[3])}, {s(sW)}, 2\nv_add_u32 {v(t)}, {L_CS}, {v(t)}\nv_add_u32 {v(t+1)}, {s(sT[3])}, {v(t)}')
        tag = None
        for ac, b in zip(acc, blk):
            tag = e(f'ds_write_b32 {v(t+1)}, {ac} offset:{b*512}')
        return tag
    def cs_read(self, blk, dst):
        return self.e(f'ds_read_b128 {v(dst,4)}, {v(vTM+6)} offset:{blk*512}')
    def cs_pack_ops(self, src, out):
        return [f'v_pk_add_f32 {v(src,2)}, {v(src,2)}, {v(src+2,2)}',
                f'v_add_f32 {v(src)}, {v(src)}, {v(src+1)}',
                f'v_and_b32 {v(src+1)}, {s(sHI)}, {v(src)}',
                f'v_sub_f32 {v(src+1)}, {v(src)}, {v(src+1)}',
                f'v_perm_b32 {v(out)}, {v(src+1)}, {v(src)}, {s(sPERM)}',
                f'v_and_b32 {v(src+2)}, {s(sHI)}, {v(src+1)}',
                f'v_sub_f32 {v(src+2)}, {v(src+1)}, {v(src+2)}',
                f'v_lshrrev_b32 {v(out+1)}, 16, {v(src+2)}']
    def cs_pack(self, src, out):
        for op in self.cs_pack_ops(src, out): self.e(op)

    def stats_ops(self, chk, par):
        b = vXF + 112; t = vTM
        p1 = []
        for i in range(4):
            if chk is not None: p1 += [self.chk(chk, b+4*i, b+4*i+1, par, False), self.chk(chk, b+4*i+2, b+4*i+3, par, False)]
            p1.append(f'v_pk_add_f32 {v(b+4*i,2)}, {v(b+4*i,2)}, {v(b+4*i+2,2)}')
        p1 += [f'v_pk_add_f32 {v(b,2)}, {v(b,2)}, {v(b+4,2)}', f'v_pk_add_f32 {v(b+8,2)}, {v(b+8,2)}, {v(b+12,2)}',
               f'v_pk_add_f32 {v(t,2)}, {v(b,2)}, {v(b+8,2)}']
        p2 = [f'v_mov_b32 {v(t+2)}, {v(t)}', f'v_mov_b32 {v(t+3)}, {v(t+1)}',
              f'v_permlane32_swap_b32 {v(t)}, {v(t+2)}', f'v_permlane32_swap_b32 {v(t+1)}, {v(t+3)}',
              f'v_pk_add_f32 {v(t,2)}, {v(t,2)}, {v(t+2,2)}']
        return p1, p2 + self.stats_tail(t)
    def stats_tail(self, b):
        ops = [
                f'v_mul_f32 {v(b)}, 0xbb000000, {v(b)}',
                f'v_mul_f32 {v(b+1)}, 0x3b000000, {v(b+1)}',
                f'v_fma_f32 {v(b+1)}, -{v(b)}, {v(b)}, {v(b+1)}',
                f'v_max_f32 {v(b+1)}, 0, {v(b+1)}',
                f'v_add_f32 {v(b+1)}, 0x3727c5ac, {v(b+1)}',
                f'v_rsq_f32 {v(vRS)}, {v(b+1)}',
                f'v_and_b32 {v(b+2)}, {s(sHI)}, {v(b)}',
                f'v_sub_f32 {v(b+2)}, {v(b)}, {v(b+2)}',
                f's_mov_b64 vcc, 0xffffffff',
                f'v_mul_f32 {v(vRS+1)}, {s(sL2E)}, {v(vRS)}',
                f'v_cndmask_b32 {v(b)}, {v(b+2)}, {v(b)}, vcc',
                f'v_perm_b32 {v(vMF)}, {v(b)}, {v(b)}, {s(sPERM)}',
                f'v_lshrrev_b32 {v(vMF+1)}, 16, {v(b)}']
        return ops

    def tr_w(self, dst, ks, extra):
        e = self.e
        off = (ks >> 2) * 4096 + extra
        e(f'ds_read_b64_tr_b16 {v(dst,2)}, {v(vWtr + (ks&3))} offset:{off}')
        return e(f'ds_read_b64_tr_b16 {v(dst+2,2)}, {v(vWtr + (ks&3))} offset:{off+256}')

    def kv_gemm(self, l):
        e = self.e; typ = l & 1; first = l < 2
        chk = vTM + 4 if (l > 1 and self.o.quick) else None
        par = (l - 1) & 1
        if chk: e(f'L_top_x{l}:')
        xt = [None] * 32
        def xload(k):
            if k % 4 == 0: e(f's_xor_b32 {s(sT[0])}, {s(sT[2])}, {k*1024}')
            xt[k] = e(f'buffer_load_dwordx4 {v(vXF+4*k,4)}, {v(vXq+(k&3))}, {s(sWS,4)}, {s(sT[0])} offen sc1')
        PRE = self.o.xpre
        for k in range(PRE): xload(k)
        wt = [None] * 32
        for k in range(2):
            self.tr_w(vWB + k*8, k, 0)
            wt[k] = self.tr_w(vWB + k*8 + 4, k, SLOT)
        self.bg('kvpre')
        stt = None
        p1, p2 = self.stats_ops(chk, par)
        aK, aV = a(248, 4), a(252, 4)
        sel = vCS + 8
        if first: self.par_sel(sel)
        cK, cV = vCS + typ*6 + 2, vCS + typ*6 + 4
        SL = self.o.stat_at; S0 = SL + 4 + PRE; SE = 28 - PRE
        def pop(n):
            for _ in range(n):
                if p1: e(p1.pop(0))
                elif p2: e(p2.pop(0))
        corr = first
        for k in range(32):
            b = vWB + (k % 3) * 8
            nb = vWB + ((k + 2) % 3) * 8
            e.wait(vm=xt[k], lg=wt[k])
            if k == 0: self.stamp(f'L{l}.x0')
            if first and k % 4 == 0:
                self.rowsum(aK, sel, b, k == 0); self.rowsum(aV, sel, b + 4, k == 0)
            e(f'v_mfma_f32_32x32x16_bf16 {v(vA0,16)}, {v(b,4)}, {v(vXF+4*k,4)}, {v(vA0,16) if k else 0}')
            if k == SE:
                while p1: pop(1)
            if k + PRE < 32: xload(k + PRE)
            if k + 2 < 32: self.tr_w(nb, k + 2, 0)
            if k >= S0:
                if k == S0: e.wait(vm=stt)
                pop(2 if p1 else 1)
            if first and k == 28: cw = self.cs_write(['a248', 'a252'], [1, 2])
            self.bg(f'kv{k}')
            e(f'v_mfma_f32_32x32x16_bf16 {v(vA1,16)}, {v(b+4,4)}, {v(vXF+4*k,4)}, {v(vA1,16) if k else 0}')
            if SL <= k < SL + 4:
                stt = e(f'buffer_load_dwordx4 {v(vXF+112+4*(k-SL),4)}, {v(vL16)}, {s(sWS,4)}, {s(sSTrd)} offen offset:{(k-SL)*1024} sc1')
            if k + 2 < 32: wt[k + 2] = self.tr_w(nb + 4, k + 2, SLOT)
            if chk and k % 2 == 1: e(self.chk(chk, vXF+4*k-4, vXF+4*k, par, k == 1))
            self.bg(f'kv{k}b')
            if not corr and not p1 and not p2:
                corr = True
                e(f'v_mfma_f32_32x32x8_bf16 {v(vA0,16)}, {v(cK,2)}, {v(vMF,2)}, {v(vA0,16)}')
                e(f'v_mfma_f32_32x32x8_bf16 {v(vA1,16)}, {v(cV,2)}, {v(vMF,2)}, {v(vA1,16)}')
            if k >= S0: pop(2)
            if first and k == 28:
                assert not p1 and not p2
                e.wait(lg=cw); e('s_barrier')
                r1 = self.cs_read(1, vTM)
            if first and k == 29: r2 = self.cs_read(2, vWB + 16)
            if first and k == 29:
                e.wait(lg=r1); p2 += self.cs_pack_ops(vTM, cK); pop(2)
            if first and k == 31:
                e.wait(lg=r2); p2 += self.cs_pack_ops(vWB + 16, cV)
        assert corr
        if chk: self.chk_end(chk, par, f'x{l}')
        if first:
            pop(len(p2) - 8)
            e(f'v_mfma_f32_32x32x8_bf16 {v(vA0,16)}, {v(cK,2)}, {v(vMF,2)}, {v(vA0,16)}')
            pop(8)
            e(f'v_mfma_f32_32x32x8_bf16 {v(vA1,16)}, {v(cV,2)}, {v(vMF,2)}, {v(vA1,16)}')
        self.bg('kvend')
        self.stamp(f'L{l}.kvgemm')

    def scale_pack(self, acc, out):
        e = self.e
        for i in range(8):
            e(f'v_pk_mul_f32 {v(acc+2*i,2)}, {v(acc+2*i,2)}, {v(vRS,2)} op_sel_hi:[1,0]')
        for i in range(8):
            e(f'v_cvt_pk_bf16_f32 {v(out+i)}, {v(acc+2*i)}, {v(acc+2*i+1)}')
    def phi_a(self, acc, tmp, out, tag, after=None):
        e = self.e
        for hh in range(2):
            r = range(4*hh, 4*hh+4)
            for i in r: e(f'v_pk_mul_f32 {v(tmp+2*i,2)}, {v(acc+2*i,2)}, {v(vRS,2)} op_sel:[0,1] op_sel_hi:[1,1]')
            for i in r:
                e(f'v_exp_f32_e64 {v(tmp+2*i)}, {v(tmp+2*i)} clamp')
                e(f'v_exp_f32_e64 {v(tmp+2*i+1)}, {v(tmp+2*i+1)} clamp')
            self.bg(f'{tag}{2*hh}')
            for i in r: e(f'v_pk_fma_f32 {v(acc+2*i,2)}, {v(acc+2*i,2)}, {v(vRS,2)}, 1.0 op_sel_hi:[1,0,0]')
            for i in r:
                e(f'v_max_f32 {v(acc+2*i)}, {v(acc+2*i)}, {v(tmp+2*i)}')
                e(f'v_max_f32 {v(acc+2*i+1)}, {v(acc+2*i+1)}, {v(tmp+2*i+1)}')
            for i in r: e(f'v_pk_add_f32 {v(acc+2*i,2)}, {v(acc+2*i,2)}, {s(sEPS6,2)}')
            for i in r: e(f'v_cvt_pk_bf16_f32 {v(out+i)}, {v(acc+2*i)}, {v(acc+2*i+1)}')
            if after: after(hh)
            self.bg(f'{tag}{2*hh+1}')
    def softmax16(self, p, tm, out, tag):
        e = self.e
        e(f'v_max3_f32 {v(tm)}, {v(p)}, {v(p+1)}, {v(p+2)}')
        e(f'v_max3_f32 {v(tm+1)}, {v(p+3)}, {v(p+4)}, {v(p+5)}')
        e(f'v_max3_f32 {v(tm)}, {v(tm)}, {v(p+6)}, {v(p+7)}')
        e(f'v_max3_f32 {v(tm+1)}, {v(tm+1)}, {v(p+8)}, {v(p+9)}')
        e(f'v_max3_f32 {v(tm)}, {v(tm)}, {v(p+10)}, {v(p+11)}')
        e(f'v_max3_f32 {v(tm+1)}, {v(tm+1)}, {v(p+12)}, {v(p+13)}')
        e(f'v_max3_f32 {v(tm)}, {v(tm)}, {v(p+14)}, {v(p+15)}')
        e(f'v_max_f32 {v(tm)}, {v(tm)}, {v(tm+1)}')
        e(f'v_mul_f32 {v(tm)}, {s(sL2E)}, {v(tm)}')
        for i in range(8):
            e(f'v_pk_fma_f32 {v(p+2*i,2)}, {v(p+2*i,2)}, {s(sL2E,2)}, {v(tm,2)} op_sel_hi:[1,1,0] neg_lo:[0,0,1] neg_hi:[0,0,1]')
        self.bg(tag + 'a')
        for i in range(16):
            e(f'v_exp_f32 {v(p+i)}, {v(p+i)}')
            if i == 7: self.bg(tag + 'b')
        self.bg(tag + 'c')
        for i in range(4): e(f'v_pk_add_f32 {v(tm+2*i,2)}, {v(p+4*i,2)}, {v(p+4*i+2,2)}')
        e(f'v_pk_add_f32 {v(tm,2)}, {v(tm,2)}, {v(tm+2,2)}')
        e(f'v_pk_add_f32 {v(tm+4,2)}, {v(tm+4,2)}, {v(tm+6,2)}')
        e(f'v_pk_add_f32 {v(tm,2)}, {v(tm,2)}, {v(tm+4,2)}')
        e(f'v_add_f32 {v(tm)}, {v(tm)}, {v(tm+1)}')
        e(f'v_rcp_f32 {v(tm)}, {v(tm)}')
        self.bg(tag + 'd')
        for i in range(8): e(f'v_pk_mul_f32 {v(p+2*i,2)}, {v(p+2*i,2)}, {v(tm,2)} op_sel_hi:[1,0]')
        for i in range(8): e(f'v_cvt_pk_bf16_f32 {v(out+i)}, {v(p+2*i)}, {v(p+2*i+1)}')

    def kv_epilogue(self, l, late_q):
        e = self.e; typ = l & 1
        self.dump(f'L{l}.kv', [v(vA0+i) for i in range(32)] + [v(vRS)])
        if typ == 0:
            def wr(hh): e(f'ds_write_b128 {v(vPKwA)}, {v(vTM+4*hh,4)} offset:{2*hh*PL}')
            self.phi_a(vA0, vWB, vTM, 'ek', wr)
            self.scale_pack(vA1, vA1)
            e(f'ds_write_b128 {v(vPKwA)}, {v(vA1,4)} offset:{8*PL}')
            e(f'ds_write_b128 {v(vPKwA)}, {v(vA1+4,4)} offset:{10*PL}')
        else:
            self.scale_pack(vA0, vTM)
            e(f'v_mfma_f32_32x32x16_bf16 {v(vA0,16)}, {v(vWPH,4)}, {v(vTM,4)}, 0')
            e(f'v_mfma_f32_32x32x16_bf16 {v(vWB,16)}, {v(vWPH+4,4)}, {v(vTM+4,4)}, 0')
            self.bg('es0')
            self.scale_pack(vA1, vA1)
            e(f'ds_write_b128 {v(vPKwA)}, {v(vA1,4)} offset:{8*PL}')
            e(f'ds_write_b128 {v(vPKwA)}, {v(vA1+4,4)} offset:{10*PL}')
            self.bg('es1')
            for hh, p in ((0, vA0), (1, vWB)):
                self.softmax16(p, vTM, p, f'ek{hh}')
                e(f'ds_write_b128 {v(vPKwB)}, {v(p,4)} offset:{(2*hh)*PL}')
                e(f'ds_write_b128 {v(vPKwB)}, {v(p+4,4)} offset:{(2*hh+1)*PL}')
        ones = vTM + 4
        for i in range(4): e(f'v_mov_b32 {v(ones+i)}, {s(sONES)}')
        if l == 0: e.wait(vm=self.clr1)
        if not late_q: self.need('Q')
        e.wait_all_lg()
        e('s_barrier')
        self.free('KV')
        self.stamp(f'L{l}.B1')
        pr = vPKrA if typ == 0 else vPKrB
        tags = []
        for st in range(4):
            e(f'ds_read_b64_tr_b16 {v(vA0+4*st,2)}, {v(pr)} offset:{st*512}')
            e(f'ds_read_b64_tr_b16 {v(vA0+4*st+2,2)}, {v(pr)} offset:{st*512+256}')
            e(f'ds_read_b64_tr_b16 {v(vA1+4*st,2)}, {v(vPKrA)} offset:{8*PL+st*512}')
            tags.append(e(f'ds_read_b64_tr_b16 {v(vA1+4*st+2,2)}, {v(vPKrA)} offset:{8*PL+st*512+256}'))
        self.bg('b1')
        self.set_wtr(SLOTS[l]['Q'])
        ckv, cz = vWB + 16, vWB + 20
        ak, az = self.e1_addr(l, vWB)
        e(f's_add_u32 {s(sT[0])}, {s(sKVwrB)}, {l*0x80000}\ns_add_u32 {s(sT[1])}, {s(sZwrB)}, {l*0x10000}')
        for st in range(4):
            e.wait(lg=tags[st])
            e(f'v_mfma_f32_16x16x32_bf16 {v(ckv,4)}, {v(vA0+4*st,4)}, {v(vA1+4*st,4)}, {v(ckv,4) if st else 0}')
            e(f'v_mfma_f32_16x16x32_bf16 {v(cz,4)}, {v(ones,4)}, {v(vA0+4*st,4)}, {v(cz,4) if st else 0}')
        e(f'v_cvt_pk_bf16_f32 {v(vTM)}, {v(ckv)}, {v(ckv+1)}\nv_cvt_pk_bf16_f32 {v(vTM+1)}, {v(ckv+2)}, {v(ckv+3)}')
        e(f'v_min_u32 {v(vTM)}, -2, {v(vTM)}\nv_min_u32 {v(vTM+1)}, -2, {v(vTM+1)}')
        e(f'buffer_store_dwordx2 {v(vTM,2)}, {v(ak)}, {s(sWS,4)}, {s(sT[0])} offen sc1')
        e(f'v_min_u32 {v(vTM+2)}, -2, {v(cz)}')
        e(f'buffer_store_dword {v(vTM+2)}, {v(az)}, {s(sWS,4)}, {s(sT[1])} offen sc1')
        self.stamp(f'L{l}.pub1')
        if l < 2: self.clear_slot(l + 2, vTM + 4, ak, az)
        if late_q:
            self.need('Q'); e('s_barrier')

    def e1_ops(self, e, l, tags, each=False):
        typ = l & 1
        nk, nz = (4, 2) if typ == 0 else (8, 4)
        sk, sz = (sKVrdA, sZrdA) if typ == 0 else (sKVrdB, sZrdB)
        ops = []
        def zl(t):
            if t == 0: e(f's_add_u32 {s(sT[1])}, {s(sz)}, {l*0x10000}')
            tags['z'] = e(f'buffer_load_dword {v(vXF+32+t)}, {v(vL4)}, {s(sWS,4)}, {s(sT[1])} offen offset:{t*256} sc1')
        def kl(p):
            if p % 4 == 0 or each: e(f's_add_u32 {s(sT[0])}, {s(sk)}, {l*0x80000 + (p & ~3)*1024}')
            tags[p] = e(f'buffer_load_dwordx4 {v(vXF+4*p,4)}, {v(vL16)}, {s(sWS,4)}, {s(sT[0])} offen offset:{(p&3)*1024} sc1')
        return [lambda t=t: zl(t) for t in range(nz)] + [lambda p=p: kl(p) for p in range(nk)]

    def q_phase(self, l):
        e = self.e; typ = l & 1; first = l < 2
        wt = [None] * 32
        def wread(k): wt[k] = self.tr_w(vWB + (k % 6) * 4, k, 0)
        for k in range(4): wread(k)
        aQ = v(vA1 + 12, 4); cQ = vCS + typ * 6
        sel = vA1 + 8
        if first: self.par_sel(sel)
        if l == 0:
            e(f'v_and_b32 {v(vTM+3)}, 0x7c, {v(vL4)}')
            dbt = e(f'buffer_load_dword {v(vTM+2)}, {v(vTM+3)}, {s(sDBG,4)}, 0 offen sc1')
            if self.o.tw or self.o.te:
                e(f'v_lshlrev_b32 {v(vTM+6)}, 5, {v(vL4)}\nv_lshrrev_b32 {v(vTM+1)}, 4, {v(vL4)}\nv_lshl_add_u32 {v(vTM+7)}, {v(vTM+1)}, 26, {v(vTM+6)}')
                e(f'v_lshrrev_b32 {v(vTM+1)}, 6, {v(vL4)}\nv_lshl_add_u32 {v(vTM+6)}, {v(vTM+1)}, 26, {v(vTM+6)}')
                for c in self.o.tw: self.touch(int(c))
        E1AT = self.o.e1at[l]
        kt = {}
        e1 = self.e1_ops(e, l, kt)
        if self.o.ctouch & 1 and l < 3: e1.insert(0, lambda: self.code_touch(v(vXF + 36)))
        for k in range(32):
            e.wait(lg=wt[k])
            b = vWB + (k % 6) * 4
            if first and k % 4 == 0: self.rowsum(aQ, sel, b, k == 0)
            e(f'v_mfma_f32_32x32x16_bf16 {v(vA0,16)}, {v(b,4)}, {v(vXF+4*k,4)}, {v(vA0,16) if k else 0}')
            if k + 4 < 32: wread(k + 4)
            if k == 0 and not first:
                e(f'v_mfma_f32_32x32x8_bf16 {v(vA0,16)}, {v(cQ,2)}, {v(vMF,2)}, {v(vA0,16)}')
            if k == E1AT and l == 0:
                e.wait(vm=dbt)
                e(f's_mov_b32 {s(sT[2])}, 0x11111111')
                e('L_all_chk:')
                e(f'v_dot8_u32_u4 {v(vTM+1)}, {v(vTM+2)}, {s(sT[2])}, 0')
                e(f's_lshl_b32 {s(sT[3])}, 8, {s(sXCC)}')
                e(f'v_cmp_ne_u32 vcc, 8, {v(vTM+1)}\ns_cbranch_vccnz L_all_retry')
                e(f'v_cmp_ne_u32 vcc, {s(sT[3])}, {v(vTM+2)}\ns_lshl_b32 {s(sT[3])}, {s(sR)}, 1')
                e(f's_lshr_b32 {s(sMODE)}, vcc_lo, {s(sT[3])}\ns_and_b32 {s(sMODE)}, {s(sMODE)}, 3')
                if self.o.force_safe: e(f's_or_b32 {s(sMODE)}, {s(sMODE)}, 1')
                e(f's_cselect_b32 {s(sSTR)}, {EXSTRIDE}, 0')
                for r in (sOrd, sOwr): e(f's_add_u32 {s(r)}, {s(r)}, {s(sSTR)}')
                t = Asm()
                t(f'L_all_retry:\nbuffer_load_dword {v(vTM+2)}, {v(vTM+3)}, {s(sDBG,4)}, 0 offen sc1')
                t(f's_sub_u32 {s(sBUD)}, {s(sBUD)}, 1\ns_cbranch_scc1 L_fail\ns_waitcnt vmcnt(0)\ns_branch L_all_chk')
                self.tail.append(t)
                e1 += [lambda: e(f'buffer_load_dword a255, {v(vFl16)}, {s(sWS,4)}, {s(sFOrd)} offen sc1'),
                       lambda: e(f'buffer_load_dword a255, {v(vFl16)}, {s(sWS,4)}, {s(sFXrd)} offen sc1'),
                       lambda: e(f's_lshl_b32 {s(sT[4])}, {s(sG)}, 10\ns_mov_b32 m0, {L_WP}\nbuffer_load_dwordx4 {v(vL16)}, {s(sWP,4)}, {s(sT[4])} offen lds')]
                e1 += [lambda c=c: self.touch(int(c)) for c in self.o.te]
                assert E1AT + len(e1) <= 29 or not self.o.te
            if k >= E1AT:
                for _ in range(self.o.e1rate if k < 31 else 99):
                    if e1: e1.pop(0)()
            self.bg(f'q{k}')
            if first and k == 29: cw = self.cs_write([v(vA1 + 12)], [0])
            if first and k == 31:
                e.wait(lg=cw); e('s_barrier')
                r0 = self.cs_read(0, vA1)
        zt = kt['z']
        if first:
            e.wait(lg=r0); self.cs_pack(vA1, cQ)
            e(f'v_mfma_f32_32x32x8_bf16 {v(vA0,16)}, {v(cQ,2)}, {v(vMF,2)}, {v(vA0,16)}')
        self.stamp(f'L{l}.qgemm')
        self.dump(f'L{l}.q', [v(vA0+i) for i in range(16)])
        PQ = vXF + 64
        if typ == 0:
            self.phi_a(vA0, vWB, PQ, 'eq')
        else:
            self.scale_pack(vA0, vTM)
            e(f'v_mfma_f32_32x32x16_bf16 {v(vA0,16)}, {v(vWPH,4)}, {v(vTM,4)}, 0')
            e(f'v_mfma_f32_32x32x16_bf16 {v(vA1,16)}, {v(vWPH+4,4)}, {v(vTM+4,4)}, 0')
            self.softmax16(vA0, vWB, PQ, 'eq0')
            self.softmax16(vA1, vWB, PQ + 8, 'eq1')
        self.stamp(f'L{l}.phiq')
        nk, nz = (4, 2) if typ == 0 else (8, 4)
        C = vWB; mx = vTM; z = vXF + 32
        if self.o.e1inl: e(f's_branch L_e1c{l}')
        t = Asm()
        t(f'L_e1r{l}:')
        ops = self.e1_ops(t, l, {}, True)
        for op in ops[:nz]: op()
        for p in range(nk):
            b = vXF + 4*p
            t(f'v_max3_u32 {v(mx)}, {v(b)}, {v(b+1)}, {v(b+2)}\nv_max_u32 {v(mx)}, {v(mx)}, {v(b+3)}\nv_cmp_eq_u32 vcc, -1, {v(mx)}\ns_cbranch_vccz L_e1s{l}_{p}')
            ops[nz + p]()
            t(f'L_e1s{l}_{p}:')
        t(f's_sub_u32 {s(sBUD)}, {s(sBUD)}, 1\ns_cbranch_scc1 L_fail\ns_waitcnt vmcnt(0)')
        if self.o.e1inl: e.ins += t.ins
        else:
            t(f's_branch L_e1c{l}'); self.tail.append(t)
        e(f'L_e1c{l}:')
        e.wait(vm=zt)
        if nz == 2:
            e(f'v_max_u32 {v(mx)}, {v(z)}, {v(z+1)}\nv_add_f32 {v(z)}, {v(z)}, {v(z+1)}')
        else:
            e(f'v_max3_u32 {v(mx)}, {v(z)}, {v(z+1)}, {v(z+2)}\nv_max_u32 {v(mx)}, {v(mx)}, {v(z+3)}')
            e(f'v_pk_add_f32 {v(z,2)}, {v(z,2)}, {v(z+2,2)}\nv_add_f32 {v(z)}, {v(z)}, {v(z+1)}')
        zops = [f'v_mov_b32 {v(z+1)}, {v(z)}', f'v_permlane16_swap_b32 {v(z)}, {v(z+1)}', f'v_add_f32 {v(z)}, {v(z)}, {v(z+1)}',
                f'v_mov_b32 {v(z+1)}, {v(z)}', f'v_permlane32_swap_b32 {v(z)}, {v(z+1)}', f'v_add_f32 {v(z)}, {v(z)}, {v(z+1)}',
                f'v_cvt_pk_bf16_f32 {v(z)}, {v(z)}, {v(z)}', f'ds_write_b16 {v(vZw)}, {v(z)} offset:512']
        e(zops.pop(0))
        for p in range(nk):
            e.wait(vm=kt[p])
            b = vXF + 4*p
            e(f'v_mfma_f32_16x16x32_bf16 {v(C,4)}, {v(vSEL,4)}, {v(b,4)}, {v(C,4) if p else 0}')
            e(f'v_max3_u32 {v(mx)}, {v(mx)}, {v(b)}, {v(b+1)}\nv_max3_u32 {v(mx)}, {v(mx)}, {v(b+2)}, {v(b+3)}')
            if p == 0:
                for _ in range(3): e(zops.pop(0))
        e(f'v_cmp_eq_u32 vcc, -1, {v(mx)}\ns_cbranch_vccnz L_e1r{l}')
        for op in zops: e(op)
        self.stamp(f'L{l}.e1')
        e(f'v_cvt_pk_bf16_f32 {v(vTM)}, {v(C)}, {v(C+1)}\nv_cvt_pk_bf16_f32 {v(vTM+1)}, {v(C+2)}, {v(C+3)}')
        e(f'ds_write_b64 {v(vKVw)}, {v(vTM,2)}')
        self.bg('o0')
        if not self.o.lateb[l]: self.need('ab')
        e.wait_all_lg()
        e('s_barrier')
        self.free('Q')
        KF = vWB + 8
        kr = vKVrA if typ == 0 else vKVrB
        tg = []
        for hh in range(2):
            for u in range(2):
                off = (2*u + hh) * 544 if typ == 0 else hh * 544 + u * 16
                tg.append(e(f'ds_read_b128 {v(KF + 4*(2*hh+u),4)}, {v(kr)} offset:{off}'))
        self.bg('o1')
        for hh in range(2):
            acc = (vA0, vA1)[hh]
            for u in range(2):
                e.wait(lg=tg[2*hh+u])
                pq = PQ + 4*hh if typ == 0 else PQ + 8*hh + 4*u
                e(f'v_mfma_f32_32x32x16_bf16 {v(acc,16)}, {v(KF+4*(2*hh+u),4)}, {v(pq,4)}, {v(acc,16) if u else 0}')
        if l < 3: self.set_wtr(SLOTS[l+1]['K'])
        e(f'v_mov_b32 {v(vWB)}, {l+1}')
        self.bg('o2')
        O = vXF + 96
        quick = l > 0 and self.o.quick
        for hh in range(2):
            acc = (vA0, vA1)[hh]
            e(f'v_add_f32 {v(acc+8)}, {s(sEPS6)}, {v(acc+8)}\nv_rcp_f32 {v(acc+8)}, {v(acc+8)}')
            for i in range(4): e(f'v_pk_mul_f32 {v(acc+2*i,2)}, {v(acc+2*i,2)}, {v(acc+8,2)} op_sel_hi:[1,0]')
            for i in range(4):
                e(f'v_cvt_pk_bf16_f32 {v(O+4*hh+i)}, {v(acc+2*i)}, {v(acc+2*i+1)}')
                if i == 1: self.tag(O + 4*hh, l & 1)
            def st(e, m):
                e(f'buffer_store_dwordx4 {v(O+4*hh,4)}, {v(vL16)}, {s(sWS,4)}, {s(sOwr)} offen offset:{hh*1024}{m if (m or l) else self.o.pub0}')
                if hh:
                    if m or not quick: e.wait_all_vm()
                    self.flag(e, vWB, sFOwr, m)
            self.modal(f'po{l}{hh}', st)
        self.dump(f'L{l}.o', [v(O+i) for i in range(8)])
        self.stamp(f'L{l}.pub2')

    def o_proj(self, l):
        e = self.e; typ = l & 1; T = 'AB'[typ]
        chk = vTM + 4 if (l > 0 and self.o.quick) else None
        par = l & 1
        self.bg('w0')
        if l == 0:
            t0, t1 = vTM, vTM + 1
            e(f'''
            v_bfe_u32 {v(t0)}, {v(vL4)}, 4, 2
            v_lshrrev_b32 {v(t1)}, 7, {v(vL4)}
            v_lshl_add_u32 {v(t0)}, {v(t1)}, 3, {v(t0)}
            v_lshlrev_b32 {v(t0)}, 5, {v(t0)}
            v_bfe_u32 {v(t1)}, {v(vL4)}, 6, 1
            v_lshl_add_u32 {v(t0)}, {v(t1)}, 4, {v(t0)}
            v_bfe_u32 {v(t1)}, {v(vL4)}, 3, 1
            v_lshl_add_u32 {v(t0)}, {v(t1)}, 3, {v(t0)}
            v_add_u32 {v(t0)}, {L_WP}, {v(t0)}
            ''')
            for hh in range(2):
                for t in range(2):
                    tw = e(f'ds_read_b64_tr_b16 {v(vWPH+4*hh+2*t,2)}, {v(t0)} offset:{hh*512 + t*128}')
            e(f'v_bfe_u32 {v(t1)}, {v(vL4)}, 4, 1\nv_mul_u32_u24 {v(t1)}, 0x8000, {v(t1)}\nv_lshl_or_b32 {v(t1)}, {v(t1)}, 16, {v(t1)}')
            e.wait(lg=tw)
            for i in range(8): e(f'v_xor_b32 {v(vWPH+i)}, {v(t1)}, {v(vWPH+i)}')
        snd, exr = vTM + 5, vTM + 6
        own = vTM + 7
        def pre():
            e(f's_cmp_lt_u32 {s(sW)}, 2\ns_mov_b32 {s(sT[0])}, {SLOTS[l]["b"]*SLOT}\ns_cselect_b32 {s(sT[0])}, {SLOTS[l]["a"]*SLOT}, {s(sT[0])}')
            e(f'v_add_u32 {v(own)}, {s(sT[0])}, {v(vWO)}\nv_xor_b32 {v(exr)}, 0x2000, {v(vEXw)}\nv_xor_b32 {v(snd)}, 64, {v(own)}')
        if self.o.lateb[l]:
            self.need('ab'); e('s_barrier')
        self.stamp(f'L{l}.pre2')
        self.poll(f'pollo{l}', sFOrd, l + 1, 'wp', pre)
        self.stamp(f'L{l}.poll2')
        ot = [None] * 16
        def oload(e, k):
            if k % 4 == 0: e(f's_add_u32 {s(sT[0])}, {s(sOrd)}, {k*1024}')
            ot[k] = e(f'buffer_load_dwordx4 {v(vXF+4*k,4)}, {v(vL16)}, {s(sWS,4)}, {s(sT[0])} offen offset:{(k&3)*1024} sc1')
        PRE = self.o.opre
        if chk:
            t = Asm(); t(f'L_top_o{l}:')
            for k in range(PRE): oload(t, k)
            t(f's_waitcnt vmcnt(0)\ns_branch L_mid_o{l}')
            self.tail.append(t)
        for k in range(PRE): oload(e, k)
        self.bg('w1')
        if chk: e(f'L_mid_o{l}:'); self.in_redo = True
        wt = [None] * 16
        def wrd(dst, ad, k):
            e(f'ds_read_b64_tr_b16 {v(dst,2)}, {v(ad)} offset:{k*2048}')
            return e(f'ds_read_b64_tr_b16 {v(dst+2,2)}, {v(ad)} offset:{k*2048+512}')
        for k in range(2):
            wrd(vWB + 8*k, snd, k); wt[k] = wrd(vWB + 8*k + 4, own, k)
        for i in range(8):
            e(f'v_lshlrev_b32 {v(vA0+2*i)}, 16, {v(vRES+i)}\nv_and_b32 {v(vA0+2*i+1)}, {s(sHI)}, {v(vRES+i)}')
        self.bg('w2')
        for k in range(16):
            b = vWB + (k % 3) * 8
            nb = vWB + ((k + 2) % 3) * 8
            e.wait(vm=ot[k], lg=wt[k])
            e(f'v_mfma_f32_32x32x16_bf16 {v(vA1,16)}, {v(b,4)}, {v(vXF+4*k,4)}, {v(vA1,16) if k else 0}')
            if k + PRE < 16: oload(e, k + PRE)
            if k + PRE == 16 and self.o.ctouch & 2 and l < 3: self.code_touch(v(vXF + 64))
            if k + 2 < 16: wrd(nb, snd, k + 2)
            self.bg(f'p{k}')
            e(f'v_mfma_f32_32x32x16_bf16 {v(vA0,16)}, {v(b+4,4)}, {v(vXF+4*k,4)}, {v(vA0,16)}')
            if k + 2 < 16: wt[k + 2] = wrd(nb + 4, own, k + 2)
            if chk and k % 2 == 1: e(self.chk(chk, vXF+4*k-4, vXF+4*k, par, k == 1))
            self.bg(f'p{k}b')
        if chk: self.chk_end(chk, par, f'o{l}'); self.in_redo = False
        for r in (sXrd, sXwr, sSTrd, sSTwr, sOrd, sOwr): e(f's_add_u32 {s(r)}, {s(r)}, {s(sSTR)}')
        for n in range(4): e(f'ds_write_b128 {v(vEXw)}, {v(vA1+4*n,4)} offset:{n*1024}')
        xo = vTM
        if l == 3:
            e(f'v_and_b32 {v(xo)}, 0x7c, {v(vL4)}\nv_lshrrev_b32 {v(xo+1)}, 7, {v(vL4)}\nv_lshlrev_b32 {v(xo)}, 8, {v(xo)}\nv_lshl_add_u32 {v(xo)}, {v(xo+1)}, 5, {v(xo)}')
        elif l == 1: e(f's_lshl_b32 {s(sT[2])}, {s(sROT)}, 12\ns_add_u32 {s(sT[2])}, {s(sT[2])}, {s(sXrd)}')
        else: e(f's_mov_b32 {s(sT[2])}, {s(sXrd)}')
        self.bg('x0')
        e.wait_all_lg()
        e('s_barrier')
        self.free('ab')
        self.stamp(f'L{l}.B3')
        tg = [e(f'ds_read_b128 {v(vWB+4*n,4)}, {v(exr)} offset:{n*1024}') for n in range(4)]
        self.bg('x1')
        for n in range(4):
            e.wait(lg=tg[n])
            for i in (0, 2): e(f'v_pk_add_f32 {v(vA0+4*n+i,2)}, {v(vA0+4*n+i,2)}, {v(vWB+4*n+i,2)}')
            if l == 3 and self.o.bias:
                for i in range(4): e(f'v_add_f32 {v(vA0+4*n+i)}, {self.o.bias}, {v(vA0+4*n+i)}')
            for i in (0, 2): e(f'v_cvt_pk_bf16_f32 {v(vRES+2*n+i//2)}, {v(vA0+4*n+i)}, {v(vA0+4*n+i+1)}')
            if l < 3 and n % 2 == 0: self.tag(vRES + 2*n, l & 1)
            if l == 3 and n % 2 == 1:
                e(f'buffer_store_dwordx4 {v(vRES+2*n-2,4)}, {v(xo)}, {s(sOUT,4)}, {s(sXO)} offen offset:{8*n-8} {self.o.outmod}')
        self.dump(f'L{l}.x', [v(vRES+i) for i in range(8)])
        if l < 3:
            self.publish_x(l)
            self.bg('y0')
            self.need('KV', l + 1)
            e('s_barrier')
            self.stamp(f'L{l}.pub3')
            self.bg('y1')
            self.poll(f'pollx{l}', sFXrd, l + 2, 'yp')
            self.stamp(f'L{l}.poll3')

    def build(self):
        e = self.e
        self.sched = SCHEDS[self.o.sched]
        self.prologue()
        for l in range(4):
            self.l = l
            if l == 0: self.kv_gemm0()
            else: self.kv_gemm(l)
            self.kv_epilogue(l, self.o.lateq[l])
            self.q_phase(l)
            self.o_proj(l)
        for k in self.sched: assert k in self.seen, k
        if self.o.stamps:
            self.stamp('end')
            e(f's_memrealtime {s(sTS,2)}'); e.wait_all_lg()
            e(f'v_writelane_b32 {v(vSTAMP)}, {s(sTS)}, 63')
            if not self.o.both: e(f'v_writelane_b32 {v(vSTAMP)}, {s(sBUD)}, 61')
            e(f's_lshl_b32 {s(sT[0])}, s2, 2\ns_add_u32 {s(sT[0])}, {s(sT[0])}, {s(sW)}\ns_lshl_b32 {s(sT[0])}, {s(sT[0])}, 8\ns_add_u32 {s(sT[0])}, {s(sT[0])}, {STAMP}')
            e(f'buffer_store_dword {v(vSTAMP)}, {v(vL4)}, {s(sWS,4)}, {s(sT[0])} offen')
        if self.o.echo:
            self.stamp('end')
            if self.o.echo[0] == 'fixed':
                e(f's_mov_b32 {s(sE0)}, {self.o.echo[2]}')
            else:
                e(f's_sub_u32 {s(sE0)}, {s(sE1)}, {s(sE0)}\ns_mul_i32 {s(sE0)}, {s(sE0)}, {self.o.echo[2]}')
            e(f'{self.o.clk} {s(sE1,2)}\ns_waitcnt lgkmcnt(0)')
            e(f'L_echo:\n{self.o.clk} {s(sTS,2)}\ns_waitcnt lgkmcnt(0)\ns_sub_u32 {s(sTS)}, {s(sTS)}, {s(sE1)}\ns_cmp_lt_u32 {s(sTS)}, {s(sE0)}\ns_cbranch_scc1 L_echo')
        e('L_fail:\ns_endpgm')
        body = e.finish() + ''.join(t.finish() for t in self.tail) + 'L_code_end:\n    s_endpgm\n'
        head = open('cdna_kernels/' + NAME + '.s.ref').read().split('; Override launch')[0]
        txt = head + '; @launch grid=(256,1,1) block=(256,1,1) lds=163840\n'
        txt += f'''.amdgcn_target "amdgcn-amd-amdhsa--gfx950"
.text
.globl {NAME}_kernel
.p2align 8
.type {NAME}_kernel,@function
{NAME}_kernel:
{body}.section .rodata,"a"
.p2align 6
.amdhsa_kernel {NAME}_kernel
  .amdhsa_next_free_vgpr 512
  .amdhsa_next_free_sgpr 102
  .amdhsa_accum_offset 256
  .amdhsa_group_segment_fixed_size 0
  .amdhsa_kernarg_size 80
  .amdhsa_user_sgpr_count 2
  .amdhsa_user_sgpr_kernarg_segment_ptr 1
  .amdhsa_system_sgpr_workgroup_id_x 1
  .amdhsa_float_denorm_mode_32 3
.end_amdhsa_kernel
'''
        return txt

if __name__ == '__main__':
    ap = argparse.ArgumentParser()
    ap.add_argument('-o', default='cdna_kernels/' + NAME + '.s')
    ap.add_argument('--stamps', action='store_true')
    ap.add_argument('--force-safe', action='store_true')
    ap.add_argument('--dump', default='')
    ap.add_argument('--echo', default='')
    ap.add_argument('--bias', default='')
    ap.add_argument('--clk', default='s_memtime')
    ap.add_argument('--outmod', default='')
    ap.add_argument('--initmod', default='')
    ap.add_argument('--touch', default='61356')
    ap.add_argument('--c1early', type=int, default=2)
    ap.add_argument('--fine', type=int, default=0)
    ap.add_argument('--atp', type=int, default=1)
    ap.add_argument('--nomini', type=int, default=0)
    ap.add_argument('--touchx', type=int, default=1)
    ap.add_argument('--b0at', type=int, default=24)
    ap.add_argument('--both', type=int, default=0)
    ap.add_argument('--fake', type=int, default=0)
    ap.add_argument('--stouch', default=',,')
    ap.add_argument('--tq', default='')
    ap.add_argument('--tw', default='')
    ap.add_argument('--dummy', type=int, default=0)
    ap.add_argument('--te', default='')
    ap.add_argument('--quick', type=int, default=1)
    ap.add_argument('--lateb', default='0,0,0,0')
    ap.add_argument('--pub0', default=' sc1')
    ap.add_argument('--stat-at', type=int, default=2)
    ap.add_argument('--opre', type=int, default=8)
    ap.add_argument('--ctouch', type=int, default=7)
    ap.add_argument('--e1inl', type=int, default=1)
    ap.add_argument('--t0', default='')
    ap.add_argument('--t1', default='')
    ap.add_argument('--t2', default='')
    ap.add_argument('--qs', default='21111110')
    ap.add_argument('--clrp', type=int, default=6)
    ap.add_argument('--pub0s', default='')
    ap.add_argument('--q0', type=int, default=0)
    ap.add_argument('--xpre', type=int, default=8)
    ap.add_argument('--e1at', default='22,20,22,20')
    ap.add_argument('--e1rate', type=int, default=1)
    ap.add_argument('--lateq', default='0,0,0,0')
    ap.add_argument('--sched', default='g')
    opt = ap.parse_args()
    opt.dump = opt.dump.split(',') if opt.dump else []
    opt.echo = opt.echo.split(',') if opt.echo else []
    opt.e1at = list(map(int, opt.e1at.split(','))); opt.lateq = list(map(int, opt.lateq.split(','))); opt.lateb = list(map(int, opt.lateb.split(',')))
    g = Gen(opt)
    txt = g.build()
    open(opt.o, 'w').write(txt)
    if opt.stamps:
        open(opt.o + '.stamps', 'w').write('\n'.join(g.stamp_names))
    print('wrote', opt.o, len(txt), 'bytes; vgpr persistent', _vn[0], 'sgpr', _sn[0], 'stamps', g.nstamp)
```

```python
import sys, argparse
sys.path.insert(0, 'gen')
from asmlib import *

NAME = 'interleave_layers__linear_attn_block__linear_kernel_hedgehog__prompt'

FLG_O, FLG_X = 0x0000, 0x2000
ZP = 0x10000
STAMP = 0x60000
KVP = 0x100000
EXB, EXSTRIDE = 0x400000, 0x500000
OB, XB, ST = EXB, EXB + 0x200000, EXB + 0x400000
DUMP = 0x2400000
WS_BYTES = 0x4000000
OOB = 0x7F000000
SLOT = 32768
SCR = 4 * SLOT
PL = 2176
L_PK = SCR
L_EX = SCR
L_KV = SCR + 12 * PL
L_CS = L_KV + 2176
L_WP = L_CS + 3072
assert L_WP + 1024 <= 163840

sX, sWA, sWOA, sWB, sWP, sWOB, sOUT, sDBG, sWS, sCODE = 4, 8, 12, 16, 20, 24, 28, 32, 36, 40
_sn = [44]
def salloc(n=1, al=1):
    while _sn[0] % al: _sn[0] += 1
    r = _sn[0]; _sn[0] += n
    assert _sn[0] <= 100
    return r
sW, sR, sG, sRB, sRBO, sJ, sMODE, sBUD, sSTR = [salloc() for _ in range(9)]
sRw, sRo, sCOFF = [salloc() for _ in range(3)]
sXrd, sXwr, sSTrd, sSTwr, sOrd, sOwr, sFOrd, sFOwr, sFXrd, sFXwr = [salloc() for _ in range(10)]
sKVrdA, sKVrdB, sKVwrB, sZrdA, sZrdB, sZwrB, sSKIP = [salloc() for _ in range(7)]
sXO, sONES, sPERM, sHI, sXCC = [salloc() for _ in range(5)]
sROT, sRESP = salloc(), salloc()
sAT = 3
sX0g, sX0l, sW0g, sW0l = sMODE, sSTR, salloc(), salloc()
sL2E = salloc(2, 2); sEPS6 = salloc(2, 2)
sT = [salloc() for _ in range(6)]
sTS = salloc(2, 2)
sE0 = salloc(2, 2); sE1 = salloc(2, 2)

_vn = [1]
def valloc(n=1, al=1):
    while _vn[0] % al: _vn[0] += 1
    r = _vn[0]; _vn[0] += n
    return r
vLane = valloc()
vL16 = valloc(); vL4 = valloc()
vRES = valloc(8, 4)
vWPH = valloc(8, 4)
vSEL = valloc(4, 4)
vCS = valloc(12, 2)
vMF = valloc(2, 2)
vRS = valloc(2, 2)
vXq = valloc(4); vWtr = valloc(4)
vWdma, vWOdma, vPKwA, vPKwB, vPKrA, vPKrB, vKVw, vZw, vKVrA, vKVrB, vEXw, vE1st, vZst, vSTst, vFl16, vWO = [valloc() for _ in range(16)]
assert _vn[0] <= 64, _vn[0]
vA0, vA1, vWB, vTM = 64, 80, 96, 120
vXF = 128
vM1 = vTM + 2
vPK2 = vLane
vPT = vTM + 7
vSTAMP = 0

from scheds import SCHEDS
BAY = dict(KA=0, VA=1, QA=2, aA=3, bA=4, KB=5, QB=6, VB=7, aB=0, bB=1)
SLOTS = [dict(K=0, V=1, Q=2, a=3, b=0), dict(K=1, V=2, Q=3, a=0, b=1), dict(K=2, V=3, Q=1, a=0, b=3), dict(K=1, V=2, Q=0, a=3, b=1)]

class Gen:
    def __init__(self, opt):
        self.o = opt
        self.e = Asm()
        self.tail = []
        self.nstamp = 0
        self.stamp_names = []
        self.wtr_slot = 0
        self.ndump = 0
        self.bgn = {}; self.bgt = {}; self.seen = set(); self.l = 0
        self.occ = [(0, 'K'), (0, 'V'), (0, 'Q'), None]; self.dead = set(); self.live = {(0, 'K'), (0, 'V')}; self.bayocc = {}; self.in_redo = False

    def stamp(self, name):
        if self.o.echo and name in self.o.echo[:2]:
            self.e(f'{self.o.clk} {s(sE0 if name == self.o.echo[0] else sE1, 2)}')
            self.e.wait_all_lg()
        if not self.o.stamps: return
        e = self.e
        if self.o.both:
            if self.o.both == 2 and name not in ('start', 'end'): return
            if self.o.both == 3:
                if not (name.startswith(('chunk', 'L0', 'setup', 'g')) or name in ('start', 'end')): return
            elif name.split('.')[-1] not in ('start', 'chunk0', 'x0', 'kvgemm', 'pub1', 'phiq', 'pub2', 'poll2', 'B3', 'end'): return
            e(f's_memtime {s(sTS,2)}\ns_memrealtime {s(sE0,2)}')
            e.wait_all_lg()
            e(f'v_writelane_b32 {v(vSTAMP)}, {s(sTS)}, {self.nstamp}\nv_writelane_b32 {v(vSTAMP)}, {s(sE0)}, {self.nstamp+31}')
            self.nstamp += 1; self.stamp_names.append(name)
            assert self.nstamp <= 31
            return
        e(f'{self.o.clk} {s(sTS,2)}')
        e.wait_all_lg()
        e(f'v_writelane_b32 {v(vSTAMP)}, {s(sTS)}, {self.nstamp}')
        self.nstamp += 1; self.stamp_names.append(name)
    def dump(self, name, regs):
        if name not in self.o.dump: return
        e = self.e
        for r in regs:
            e(f's_lshl_b32 {s(sT[5])}, s2, 2\ns_add_u32 {s(sT[5])}, {s(sT[5])}, {s(sW)}\ns_lshl_b32 {s(sT[5])}, {s(sT[5])}, 14\ns_add_u32 {s(sT[5])}, {s(sT[5])}, {DUMP + self.ndump*256}')
            e(f'buffer_store_dword {r}, {v(vL4)}, {s(sWS,4)}, {s(sT[5])} offen')
            self.ndump += 1
        assert self.ndump <= 64
        e.wait_all_vm()
    def set_wtr(self, slot):
        d = (slot - self.wtr_slot) * SLOT
        if d:
            for q in range(4):
                self.e(f'v_add_u32 {v(vWtr+q)}, {d & 0xffffffff}, {v(vWtr+q)}')
        self.wtr_slot = slot
    def dma_w(self, typ, kind, n):
        e = self.e; srd = sWA if typ == 0 else sWB
        part = 'QKV'.index(kind); base = SLOTS[typ][kind] * SLOT - part * 1024
        assert base >= 0
        e(f's_xor_b32 {s(sT[4])}, {s(sRw)}, {n*4096}')
        e(f's_add_u32 m0, {s(sT[4])}, {base}')
        e(f's_mul_i32 {s(sT[4])}, {s(sT[4])}, 48')
        return e(f'buffer_load_dwordx4 {v(vWdma)}, {s(srd,4)}, {s(sT[4])} offen offset:{part*1024} lds')
    def dma_wo(self, typ, kind, n):
        e = self.e; srd = sWOA if typ == 0 else sWOB
        e(f's_xor_b32 {s(sT[4])}, {s(sRo)}, {n*4096}')
        e(f's_add_u32 m0, {s(sT[4])}, {SLOTS[typ][kind]*SLOT}')
        e(f's_lshl3_add_u32 {s(sT[4])}, {s(sT[4])}, {0x40000 if kind == "b" else 0}')
        return e(f'buffer_load_dwordx4 {v(vWOdma)}, {s(srd,4)}, {s(sT[4])} offen lds')
    def park(self, op, item, n):
        e = self.e; r = a(BAY[item]*32 + 4*n, 4)
        slot = SLOTS['AB'.index(item[1]) + (2 if op == 'R' else 0)][item[0]]
        ad, off = (vXq if slot < 2 else vPK2), (slot & 1) * SLOT + n * 4096
        if op == 'S': return e(f'ds_read_b128 {r}, {v(ad)} offset:{off}')
        return e(f'ds_write_b128 {v(ad)}, {r} offset:{off}')
    def bg_op(self, name, n):
        op, item = name[0], name[1:]
        typ = 'AB'.index(item[1])
        if op in 'LR':
            slot = SLOTS[typ + (2 if op == 'R' else 0)][item[0]]
            if n == 0:
                prev = self.occ[slot]
                assert prev is None or prev in self.dead, (name, prev)
                if prev and prev[0] < 2:
                    sv = 'S' + prev[1] + 'AB'[prev[0]]
                    assert self.bgn.get(sv) == 8, (name, sv)
                    if op == 'L': self.e.wait(lg=self.bgt[sv])
                self.occ[slot] = (typ + (2 if op == 'R' else 0), item[0])
        if op == 'S':
            if n == 0:
                prev = self.bayocc.get(BAY[item])
                assert prev is None or (self.bgn.get('R' + prev) == 8 and not self.in_redo), (name, prev)
                self.bayocc[BAY[item]] = item
            assert (typ, item[0]) in self.live, name
        if op == 'L': return self.dma_w(typ, item[0], n) if item[0] in 'QKV' else self.dma_wo(typ, item[0], n)
        return self.park(op, item, n)
    def need(self, kinds, l=None):
        l = self.l if l is None else l
        for k in kinds:
            nm = ('L' if l < 2 else 'R') + k + 'AB'[l & 1]
            assert self.bgn.get(nm) == 8, (self.l, nm)
            if l < 2: self.e.wait(vm=self.bgt[nm])
            else: self.e.wait(lg=self.bgt[nm])
            self.live.add((l, k))
    def free(self, kinds):
        for k in kinds: self.dead.add((self.l, k))
    def bg(self, point):
        for name, cnt in self.sched.get(f'{self.l}.{point}', []):
            for _ in range(cnt):
                n = self.bgn.get(name, 0)
                assert n < 8, name
                self.bgt[name] = self.bg_op(name, n)
                self.bgn[name] = n + 1
        self.seen.add(f'{self.l}.{point}')
    def tag(self, reg, par):
        self.e(f'v_or_b32 {v(reg)}, 1, {v(reg)}' if par else f'v_and_b32 {v(reg)}, -2, {v(reg)}')
    def chk(self, acc, r0, r1, par, first):
        if first: return f'v_and_b32 {v(acc)}, {v(r0)}, {v(r1)}' if par else f'v_or_b32 {v(acc)}, {v(r0)}, {v(r1)}'
        return f'v_bitop3_b32 {v(acc)}, {v(acc)}, {v(r0)}, {v(r1)} bitop3:0x80' if par else f'v_or3_b32 {v(acc)}, {v(acc)}, {v(r0)}, {v(r1)}'
    def chk_end(self, acc, par, name):
        self.e(f'v_and_b32 {v(acc)}, 1, {v(acc)}\nv_cmp_ne_u32 vcc, {par}, {v(acc)}\ns_cbranch_vccnz L_redo_{name}')
        t = Asm()
        t(f'L_redo_{name}:\ns_sub_u32 {s(sBUD)}, {s(sBUD)}, 1\ns_cbranch_scc1 L_fail\ns_waitcnt vmcnt(0) lgkmcnt(0)\ns_nop 15\ns_branch L_top_{name}')
        self.tail.append(t)
    def poll(self, name, sbase, val, pt=None, pre=None):
        e = self.e
        ld = f'buffer_load_dword {v(vTM)}, {v(vFl16)}, {s(sWS,4)}, {s(sbase)} offen sc1'
        e(ld)
        if pt: self.bg(pt)
        if pre: pre()
        e(f'L_{name}:')
        e.wait_all_vm()
        e(f'v_cmp_gt_u32 vcc, {val}, {v(vTM)}\ns_cbranch_vccz L_{name}_ok')
        e.raw(f'{ld}\ns_sub_u32 {s(sBUD)}, {s(sBUD)}, 1\ns_cbranch_scc0 L_{name}\ns_endpgm')
        e(f'L_{name}_ok:')
    def modal(self, name, fn):
        e = self.e
        e(f's_cmp_lg_u32 {s(sMODE)}, 0\ns_cbranch_scc1 L_{name}_safe')
        fn(e, '')
        e(f'L_{name}_join:')
        t = Asm(); t(f'L_{name}_safe:\ns_nop 4'); fn(t, ' sc1'); t(f's_nop 1\ns_branch L_{name}_join')
        self.tail.append(t)

    def x_stats(self):
        e = self.e
        S, Q = vTM, vTM + 1
        for i in range(8):
            e(f'v_dot2_f32_bf16 {v(S)}, {v(vRES+i)}, {s(sONES)}, {v(S) if i else 0}')
        for i in range(8):
            e(f'v_dot2_f32_bf16 {v(Q)}, {v(vRES+i)}, {v(vRES+i)}, {v(Q) if i else 0}')
        e(f'v_permlane32_swap_b32 {v(S)}, {v(Q)}')
        e(f'v_add_f32 {v(S)}, {v(S)}, {v(Q)}')
    def flag(self, e, reg, sflag, m):
        e(f's_mov_b64 exec, 1\nbuffer_store_dword {v(reg)}, off, {s(sWS,4)}, {s(sflag)}{m}\ns_mov_b64 exec, -1')
    def publish_x(self, l):
        quick = l > 0 and self.o.quick
        fr = vTM + 2
        self.e(f'v_mov_b32 {v(fr)}, {l + 2}')
        def st1(e, m):
            if l == 0 and not m: m = self.o.pub0
            e(f'buffer_store_dwordx4 {v(vRES,4)}, {v(vL16)}, {s(sWS,4)}, {s(sXwr)} offen{m}')
            e(f'buffer_store_dwordx4 {v(vRES+4,4)}, {v(vL16)}, {s(sWS,4)}, {s(sXwr)} offen offset:1024{m}')
            if quick and not m: self.flag(e, fr, sFXwr, m)
        def st2(e, m):
            e(f'buffer_store_dword {v(vTM)}, {v(vSTst)}, {s(sWS,4)}, {s(sSTwr)} offen{m if (m or l) else self.o.pub0s}')
            if m or not quick:
                e.wait_all_vm()
                self.flag(e, fr, sFXwr, m)
        self.modal(f'px{l}a', st1)
        self.x_stats()
        self.tag(vTM, l & 1)
        self.modal(f'px{l}b', st2)

    def e1_addr(self, l, t):
        if l & 1: return vE1st, vZst
        self.e(f'v_add_u32 {v(t)}, {s(sSKIP)}, {v(vE1st)}\nv_add_u32 {v(t+1)}, {s(sSKIP)}, {v(vZst)}')
        return t, t + 1
    def clear_slot(self, l, m1, ak, az):
        e = self.e
        e(f'v_mov_b32 {v(m1)}, -1\nv_mov_b32 {v(m1+1)}, -1')
        e(f's_add_u32 {s(sT[4])}, {s(sKVwrB)}, {l*0x80000}\ns_add_u32 {s(sT[5])}, {s(sZwrB)}, {l*0x10000}')
        e(f'buffer_store_dwordx2 {v(m1,2)}, {v(ak)}, {s(sWS,4)}, {s(sT[4])} offen sc1')
        return e(f'buffer_store_dword {v(m1)}, {v(az)}, {s(sWS,4)}, {s(sT[5])} offen sc1')
    def dma0(self, P, n, again=False):
        e = self.e
        if n < 4:
            if n == 0 or again:
                e(f's_add_u32 m0, {s(sX0l)}, {(P % 3) * 16384}\ns_xor_b32 {s(sT[0])}, {s(sX0g)}, {P << 7}')
            return e(f'buffer_load_dwordx4 {v(vWPH+n)}, {s(sX,4)}, {s(sT[0])} offen offset:{n*1024} lds')
        if n == 4:
            e(f's_xor_b32 {s(sT[1])}, {s(sW0g)}, {P*4096}')
            e(f's_add_u32 m0, {s(sW0l)}, {P*4096 + SLOT - 2048}')
            e(f's_mul_i32 {s(sT[1])}, {s(sT[1])}, 48')
            return e(f'buffer_load_dwordx4 {v(vWdma)}, {s(sWA,4)}, {s(sT[1])} offen offset:2048 lds')
        assert not again
        e(f's_add_u32 m0, {s(sW0l)}, {P*4096}\ns_add_u32 {s(sT[1])}, {s(sT[1])}, 1024')
        return e(f'buffer_load_dwordx4 {v(vWdma)}, {s(sWA,4)}, {s(sT[1])} offen lds')
    def dma0q(self, P):
        e = self.e
        e(f's_xor_b32 {s(sT[1])}, {s(sW0g)}, {P*4096}')
        e(f's_add_u32 m0, {s(sW0l)}, {P*4096 + 2*SLOT}')
        e(f's_mul_i32 {s(sT[1])}, {s(sT[1])}, 48')
        return e(f'buffer_load_dwordx4 {v(vWdma)}, {s(sWA,4)}, {s(sT[1])} offen lds')

    def touch(self, i):
        e = self.e; T = sT; t16, t4 = vTM + 6, vTM + 7
        if i == 0:
            e(f's_lshl2_add_u32 {s(T[5])}, s2, {s(sW)}\ns_lshr_b32 {s(T[4])}, {s(T[5])}, 1\ns_lshl_b32 {s(T[4])}, {s(T[4])}, 11\ns_lshl_b32 {s(T[5])}, {s(T[5])}, 9\ns_add_u32 {s(T[4])}, {s(T[4])}, {s(T[5])}')
            return e(f'buffer_load_dword a255, {v(t4)}, {s(sWA,4)}, {s(T[4])} offen')
        if i in (1, 5):
            e(f's_lshl2_add_u32 {s(T[5])}, s2, {s(sW)}\ns_lshl_b32 {s(T[5])}, {s(T[5])}, 9')
            return e(f'buffer_load_dword a255, {v(t4)}, {s(sWOA if i == 1 else sWOB,4)}, {s(T[5])} offen')
        if i == 2: return e(f'buffer_load_dword a255, {v(t16)}, {s(sWS,4)}, {s(sOwr)} offen')
        if i == 7:
            e(f's_lshl4_add_u32 {s(T[5])}, {s(sR)}, {s(sG)}\ns_lshl2_add_u32 {s(T[5])}, {s(T[5])}, {s(sW)}\ns_lshl_b32 {s(T[5])}, {s(T[5])}, 11')
            return e(f'buffer_load_dword a255, {v(t16)}, {s(sX,4)}, {s(T[5])} offen')
        if i in (3, 8):
            e(f's_lshl_b32 {s(T[5])}, {s(sW)}, 8\ns_add_u32 {s(T[5])}, {s(T[5])}, s2\ns_min_u32 {s(T[5])}, {s(T[5])}, 767\ns_lshl_b32 {s(T[5])}, {s(T[5])}, 11')
            return e(f'buffer_load_dword a255, {v(t16)}, {s(sWB if i == 3 else sWA,4)}, {s(T[5])} offen')
        if i == 4: return e(f'buffer_load_dword a255, {v(t16)}, {s(sWS,4)}, {s(sXwr)} offen')
        if i == 6: return e(f'buffer_load_dword a255, {v(t4)}, {s(sWS,4)}, {s(sSTwr)} offen')

    def code_touch(self, dst):
        return self.e(f'buffer_load_dword {dst}, {v(vL16)}, {s(sCODE,4)}, {s(sCOFF)} offen')
    def dummy(self, i):
        e = self.e
        if i < 4: return e(f'buffer_store_dwordx4 {v(vSEL,4)}, {v(vL16)}, {s(sWS,4)}, {s((sOwr, sXwr)[i >> 1])} offen offset:{(i & 1)*1024} sc1')
        return e(f'buffer_store_dword {v(vSEL)}, {v(vSTst)}, {s(sWS,4)}, {s(sSTwr)} offen sc1')

    def prologue(self):
        e = self.e
        T = sT
        e('s_cmp_ge_u32 s2, 256\ns_cbranch_scc1 L_fail')
        if self.o.echo and self.o.echo[0] == 'entry': e(f'{self.o.clk} {s(sE0,2)}')
        for srd, off in ((sX, 0), (sWA, 8), (sWS, 72), (sWOA, 16), (sWB, 32), (sWP, 40), (sWOB, 48), (sOUT, 56), (sDBG, 64)):
            e(f's_load_dwordx2 {s(srd,2)}, s[0:1], {off}')
        e(f's_getpc_b64 {s(sCODE,2)}')
        e(f'v_and_b32 {v(vLane)}, 63, v0\nv_lshrrev_b32 {v(vTM)}, 6, v0')
        e(f's_mov_b32 {s(sCODE+2)}, L_code_end-{NAME}_kernel-128\ns_mov_b32 {s(sCODE+3)}, 0x20000')
        e(f'v_readfirstlane_b32 {s(sW)}, {v(vTM)}')
        e(f'v_lshlrev_b32 {v(vL16)}, 4, {v(vLane)}')
        e(f's_lshr_b32 {s(sG)}, s2, 3\ns_lshl2_add_u32 {s(T[0])}, {s(sG)}, {s(sW)}')
        e(f's_and_b32 {s(T[0])}, {s(T[0])}, 63\ns_lshl_b32 {s(T[0])}, {s(T[0])}, 10\ns_min_u32 {s(sCOFF)}, {s(T[0])}, L_code_end-{NAME}_kernel-128-1024')
        self.code_touch('a255')
        e(f'v_lshlrev_b32 {v(vTM+6)}, 7, {v(vLane)}')
        for srd, sz in ((sX, 0x200000), (sWA, 0x180000), (sWS, WS_BYTES)):
            e(f's_mov_b32 {s(srd+2)}, {sz}\ns_mov_b32 {s(srd+3)}, 0x20000')
        t0, t1, t2 = vA1, vA1 + 1, vA1 + 2
        e(f'''
        s_and_b32 {s(sR)}, s2, 7
        s_lshl_b32 {s(sR)}, {s(sR)}, 1
        s_lshr_b32 {s(T[0])}, s2, 7
        s_add_u32 {s(sR)}, {s(sR)}, {s(T[0])}
        s_and_b32 {s(sG)}, {s(sG)}, 15
        s_lshl_b32 {s(sRB)}, {s(sR)}, 2
        s_add_u32 {s(sRB)}, {s(sRB)}, {s(sW)}
        s_and_b32 {s(sROT)}, {s(sG)}, 1
        s_lshl1_add_u32 {s(sROT)}, {s(sROT)}, {s(T[0])}
        s_lshl_b32 {s(sROT)}, {s(sROT)}, 1
        s_lshr_b32 {s(T[1])}, {s(sG)}, 1
        s_xor_b32 {s(sROT)}, {s(sROT)}, {s(T[1])}
        s_xor_b32 {s(sROT)}, {s(sROT)}, s2
        s_and_b32 {s(sROT)}, {s(sROT)}, 7
        s_lshl_b32 {s(sX0g)}, {s(sRB)}, 8
        s_add_u32 {s(sX0g)}, {s(sX0g)}, {s(sROT)}
        s_lshl_b32 {s(sX0g)}, {s(sX0g)}, 7
        s_lshl_b32 {s(sX0l)}, {s(sW)}, 12
        s_add_u32 {s(sX0l)}, {s(sX0l)}, {3*SLOT}
        s_lshl_b32 {s(sW0l)}, {s(sW)}, 10
        s_lshl2_add_u32 {s(sW0g)}, {s(sROT)}, {s(sW)}
        s_lshl_b32 {s(sW0g)}, {s(sW0g)}, 10
        s_lshl_b32 {s(T[2])}, {s(sG)}, 6
        v_lshrrev_b32 {v(vWdma)}, 2, {v(vLane)}
        v_mul_u32_u24 {v(vWdma)}, 3072, {v(vWdma)}
        v_and_b32 {v(vTM+5)}, 3, {v(vLane)}
        v_lshl_add_u32 {v(vWdma)}, {v(vTM+5)}, 4, {v(vWdma)}
        v_add_u32 {v(vWdma)}, {s(T[2])}, {v(vWdma)}
        v_lshrrev_b32 {v(vTM+4)}, 4, {v(vLane)}
        v_and_b32 {v(t2)}, 7, {v(vLane)}
        v_xor_b32 {v(t1)}, {v(t2)}, {v(vTM+4)}
        v_lshlrev_b32 {v(t1)}, 4, {v(t1)}
        v_lshrrev_b32 {v(t0)}, 3, {v(vLane)}
        v_lshl_add_u32 {v(vWPH)}, {v(t0)}, 10, {v(t1)}
        v_xor_b32 {v(vWPH+1)}, 64, {v(vWPH)}
        v_add_u32 {v(vWPH+1)}, {7168}, {v(vWPH+1)}
        v_add_u32 {v(vWPH+2)}, {2*7168}, {v(vWPH)}
        v_add_u32 {v(vWPH+3)}, {2*7168}, {v(vWPH+1)}
        v_and_b32 {v(vTM)}, 31, {v(vLane)}
        v_lshrrev_b32 {v(vTM+1)}, 5, {v(vLane)}
        v_lshlrev_b32 {v(vL4)}, 2, {v(vLane)}
        ''')
        e(f'''
        s_lshl_b32 {s(T[3])}, {s(sG)}, 2
        s_add_u32 {s(T[3])}, {s(T[3])}, {s(sW)}
        s_lshl_b32 {s(sKVrdB)}, {s(T[3])}, 13
        s_add_u32 {s(sKVrdB)}, {s(sKVrdB)}, {KVP}
        s_lshl_b32 {s(sZrdB)}, {s(T[3])}, 10
        s_add_u32 {s(sZrdB)}, {s(sZrdB)}, {ZP}
        s_lshl_b32 {s(T[4])}, {s(sR)}, 9
        s_add_u32 {s(sKVwrB)}, {s(sKVrdB)}, {s(T[4])}
        s_lshl_b32 {s(T[5])}, {s(sR)}, 6
        s_add_u32 {s(sZwrB)}, {s(sZrdB)}, {s(T[5])}
        v_and_b32 {v(vFl16)}, 60, {v(vL4)}
        v_lshlrev_b32 {v(t0)}, 2, {v(vFl16)}
        v_lshl_add_u32 {v(t0)}, {v(vTM+1)}, 8, {v(t0)}
        v_and_b32 {v(t1)}, 1, {v(vTM+4)}
        v_lshl_add_u32 {v(vE1st)}, {v(t1)}, 3, {v(t0)}
        v_lshl_add_u32 {v(vZst)}, {v(vTM+4)}, 26, {v(vFl16)}
        s_lshr_b32 {s(sSKIP)}, {s(sR)}, 3
        s_lshr_b32 {s(T[1])}, {s(sW)}, 1
        s_xor_b32 {s(sSKIP)}, {s(sSKIP)}, {s(T[1])}
        s_lshl_b32 {s(sSKIP)}, {s(sSKIP)}, 28
        v_mov_b32 {v(vA0+4)}, 0
        s_lshr_b32 {s(sFOwr)}, {s(sG)}, 1
        s_lshl_b32 {s(sFOwr)}, {s(sFOwr)}, 13
        s_add_u32 {s(sFOwr)}, {s(sFOwr)}, {s(T[4])}
        s_and_b32 {s(sFOrd)}, {s(sG)}, 1
        s_lshl_b32 {s(sFOrd)}, {s(sFOrd)}, 8
        s_add_u32 {s(sFOwr)}, {s(sFOwr)}, {s(sFOrd)}
        ''')
        e(f'v_lshrrev_b32 {v(t0)}, 2, {v(vLane)}\nv_lshl_add_u32 {v(vTM+7)}, {v(t0)}, 26, {v(vTM+6)}\nv_lshl_add_u32 {v(vTM+6)}, {v(vTM+4)}, 26, {v(vTM+6)}')
        for srd, sz in ((sWOA, 0x80000), (sWB, 0x180000), (sWOB, 0x80000)):
            e(f's_mov_b32 {s(srd+2)}, {sz}\ns_mov_b32 {s(srd+3)}, 0x20000')
        e('s_waitcnt lgkmcnt(0)')
        if self.o.stamps:
            e(f's_memrealtime {s(sTS,2)}'); e.wait_all_lg()
            e(f'v_writelane_b32 {v(vSTAMP)}, {s(sTS)}, 62')
        self.stamp('start')
        self.ct = [None] * 8
        for c in self.o.t0: self.touch(int(c))
        for n in range(6): self.ct[0] = self.dma0(0, n)
        for c in self.o.t1: self.touch(int(c))
        if self.o.q0 > 0: self.dma0q(0)
        for n in range(self.o.c1early): self.ct[1] = self.dma0(1, n)
        e(f's_and_b32 {s(sFOrd)}, {s(T[3])}, 0x33\ns_cbranch_scc1 L_noclr')
        e.raw(f'buffer_store_dword {v(vA0+4)}, {v(vL4)}, {s(sWS,4)}, {s(sFOwr)} offen sc1')
        e('L_noclr:')
        self.clear_slot(0, vM1, *self.e1_addr(0, vA0 + 6))
        for srd, sz in ((sWP, 0x4000), (sOUT, 0x200000), (sDBG, 256)):
            e(f's_mov_b32 {s(srd+2)}, {sz}\ns_mov_b32 {s(srd+3)}, 0x20000')
        e(f'''
        s_and_b32 {s(T[0])}, {s(sW)}, 1
        s_lshr_b32 {s(T[1])}, {s(sW)}, 1
        s_lshl_b32 {s(sRBO)}, {s(sR)}, 2
        s_lshr_b32 {s(T[4])}, {s(sG)}, 3
        s_lshl_b32 {s(T[4])}, {s(T[4])}, 1
        s_add_u32 {s(T[4])}, {s(T[4])}, {s(T[0])}
        s_add_u32 {s(sRBO)}, {s(sRBO)}, {s(T[4])}
        s_lshl_b32 {s(T[3])}, {s(T[4])}, 12
        s_add_u32 {s(T[3])}, {s(T[3])}, {3*SLOT}
        s_and_b32 {s(sJ)}, {s(sG)}, 7
        s_xor_b32 {s(sRESP)}, {s(sJ)}, {s(sROT)}
        s_lshl_b32 {s(sJ)}, {s(sJ)}, 1
        s_add_u32 {s(sJ)}, {s(sJ)}, {s(T[1])}
        s_lshl_b32 {s(sXO)}, {s(sRBO)}, 15
        s_lshl_b32 {s(T[2])}, {s(sJ)}, 6
        s_add_u32 {s(sXO)}, {s(sXO)}, {s(T[2])}
        s_and_b32 {s(T[4])}, {s(sG)}, 1
        s_and_b32 {s(T[5])}, {s(sR)}, 1
        s_lshl1_add_u32 {s(T[4])}, {s(T[4])}, {s(T[5])}
        s_lshl3_add_u32 {s(T[4])}, {s(T[4])}, {s(sW)}
        s_lshl_b32 {s(sRw)}, {s(T[4])}, 10
        s_lshr_b32 {s(T[4])}, {s(sG)}, 3
        s_lshl1_add_u32 {s(T[4])}, {s(T[4])}, {s(T[5])}
        s_lshl3_add_u32 {s(T[4])}, {s(T[4])}, {s(sW)}
        s_lshl_b32 {s(sRo)}, {s(T[4])}, 10
        s_lshl_b32 {s(T[4])}, {s(T[1])}, 12
        s_add_u32 {s(sKVrdA)}, {s(sKVrdB)}, {s(T[4])}
        s_lshl_b32 {s(T[4])}, {s(T[1])}, 9
        s_add_u32 {s(sZrdA)}, {s(sZrdB)}, {s(T[4])}
        s_lshl_b32 {s(T[4])}, {s(sRB)}, 15
        s_add_u32 {s(sXrd)}, {s(T[4])}, {XB}
        s_lshl_b32 {s(T[5])}, {s(sG)}, 11
        s_add_u32 {s(sOwr)}, {s(T[4])}, {s(T[5])}
        s_add_u32 {s(sOwr)}, {s(sOwr)}, {OB}
        s_lshl_b32 {s(T[4])}, {s(sRBO)}, 15
        s_lshl_b32 {s(T[5])}, {s(sJ)}, 11
        s_add_u32 {s(sXwr)}, {s(T[4])}, {s(T[5])}
        s_add_u32 {s(sXwr)}, {s(sXwr)}, {XB}
        s_lshl_b32 {s(T[5])}, {s(T[1])}, 14
        s_add_u32 {s(sOrd)}, {s(T[4])}, {s(T[5])}
        s_add_u32 {s(sOrd)}, {s(sOrd)}, {OB}
        s_lshl_b32 {s(sSTrd)}, {s(sRB)}, 12
        s_add_u32 {s(sSTrd)}, {s(sSTrd)}, {ST}
        s_lshl_b32 {s(sSTwr)}, {s(sRBO)}, 12
        s_and_b32 {s(T[4])}, {s(sG)}, 7
        s_lshl_b32 {s(T[5])}, {s(T[4])}, 9
        s_add_u32 {s(sSTwr)}, {s(sSTwr)}, {s(T[5])}
        s_lshl_b32 {s(T[5])}, {s(T[1])}, 3
        s_add_u32 {s(sSTwr)}, {s(sSTwr)}, {s(T[5])}
        s_add_u32 {s(sSTwr)}, {s(sSTwr)}, {ST}
        s_lshl_b32 {s(T[2])}, {s(T[4])}, 7
        s_lshl_b32 {s(sFXrd)}, {s(sRB)}, 7
        s_lshl_b32 {s(T[5])}, {s(sG)}, 2
        s_add_u32 {s(sFOwr)}, {s(sFXrd)}, {s(T[5])}
        s_add_u32 {s(sFXrd)}, {s(sFXrd)}, {FLG_X}
        s_lshl_b32 {s(sFOrd)}, {s(sRBO)}, 7
        s_lshl_b32 {s(T[5])}, {s(sJ)}, 2
        s_add_u32 {s(sFXwr)}, {s(sFOrd)}, {s(T[5])}
        s_add_u32 {s(sFXwr)}, {s(sFXwr)}, {FLG_X}
        s_mov_b32 {s(sONES)}, 0x3f803f80
        s_mov_b32 {s(sPERM)}, 0x07060302
        s_mov_b32 {s(sHI)}, 0xffff0000
        s_mov_b32 {s(sL2E)}, 0x3fb8aa3b
        s_mov_b32 {s(sL2E+1)}, 0x3fb8aa3b
        s_mov_b32 {s(sEPS6)}, 0x358637bd
        s_mov_b32 {s(sEPS6+1)}, 0x358637bd
        s_getreg_b32 {s(sXCC)}, hwreg(HW_REG_XCC_ID, 0, 3)
        s_lshl_b32 {s(sXCC)}, {s(sXCC)}, 2
        s_mov_b32 {s(sBUD)}, 100000
        ''')
        e(f'''
        v_lshlrev_b32 {v(vSTst)}, 4, {v(vTM)}
        v_lshl_add_u32 {v(vSTst)}, {v(vTM+1)}, 2, {v(vSTst)}
        v_lshrrev_b32 {v(t0)}, 3, {v(vLane)}
        v_and_b32 {v(t1)}, 1, {v(vTM+4)}
        v_lshlrev_b32 {v(t1)}, 2, {v(t1)}
        v_xor_b32 {v(t1)}, {v(t1)}, {v(t2)}
        v_lshlrev_b32 {v(t1)}, 4, {v(t1)}
        v_lshl_add_u32 {v(vWOdma)}, {v(t0)}, 10, {v(t1)}
        v_add_u32 {v(vWOdma)}, {s(T[2])}, {v(vWOdma)}
        ''')
        e(f'''
        v_bfe_u32 {v(t0)}, {v(vLane)}, 2, 2
        v_lshl_add_u32 {v(t0)}, {v(vTM+1)}, 4, {v(t0)}
        v_lshlrev_b32 {v(t0)}, 6, {v(t0)}
        v_and_b32 {v(t1)}, 1, {v(vTM+4)}
        v_lshl_add_u32 {v(t0)}, {v(t1)}, 5, {v(t0)}
        v_and_b32 {v(t1)}, 1, {v(vLane)}
        v_lshl_add_u32 {v(t0)}, {v(t1)}, 4, {v(t0)}
        v_bfe_u32 {v(t1)}, {v(vLane)}, 1, 1
        v_lshl_add_u32 {v(t0)}, {v(t1)}, 3, {v(t0)}
        v_bfe_u32 {v(t1)}, {v(vLane)}, 1, 3
        v_lshlrev_b32 {v(t2)}, 1, {v(vTM+1)}
        v_xor_b32 {v(t1)}, {v(t1)}, {v(t2)}
        v_lshlrev_b32 {v(t1)}, 4, {v(t1)}
        v_lshl_add_u32 {v(t1)}, {v(vTM)}, 7, {v(t1)}
        s_lshl_b32 {s(T[4])}, {s(T[1])}, 6
        v_xor_b32 {v(vA0+5)}, {s(T[4])}, {v(t1)}
        v_add_u32 {v(vA0+5)}, {s(T[3])}, {v(vA0+5)}
        v_add_u32 {v(t1)}, {s(sX0l)}, {v(t1)}
        ''')
        for q in range(4):
            e(f'''
            s_xor_b32 {s(T[4])}, {s(sW)}, {q}
            s_lshl_b32 {s(T[5])}, {s(T[4])}, 10
            v_add_u32 {v(vXq+q)}, {s(T[5])}, {v(vL16)}
            s_lshr_b32 {s(T[5])}, {s(T[4])}, 1
            s_lshl_b32 {s(T[5])}, {s(T[5])}, 2
            s_and_b32 {s(T[4])}, {s(T[4])}, 1
            s_add_u32 {s(T[4])}, {s(T[4])}, {s(T[5])}
            s_lshl_b32 {s(T[5])}, {s(T[4])}, 9
            v_add_u32 {v(vWtr+q)}, {s(T[5])}, {v(t0)}
            s_lshl_b32 {s(T[5])}, {s(T[4])}, 4
            v_xor_b32 {v(vWPH+4+q)}, {s(T[5])}, {v(t1)}
            ''')
        e(f'''
        s_lshl_b32 {s(T[4])}, {s(sW)}, 9
        s_add_u32 {s(T[4])}, {s(T[4])}, {L_PK}
        v_lshl_add_u32 {v(t0)}, {v(vTM)}, 4, {s(T[4])}
        v_mul_u32_u24 {v(t1)}, {PL}, {v(vTM+1)}
        v_add_u32 {v(vPKwA)}, {v(t0)}, {v(t1)}
        v_lshl_add_u32 {v(vPKwB)}, {v(t1)}, 2, {v(t0)}
        v_bfe_u32 {v(t0)}, {v(vLane)}, 1, 1
        v_mul_u32_u24 {v(t0)}, {PL}, {v(t0)}
        v_lshrrev_b32 {v(t1)}, 2, {v(vLane)}
        v_lshl_add_u32 {v(t0)}, {v(t1)}, 4, {v(t0)}
        v_and_b32 {v(t1)}, 1, {v(vLane)}
        v_lshl_add_u32 {v(t0)}, {v(t1)}, 3, {v(t0)}
        s_mul_i32 {s(T[4])}, {s(sW)}, {2*PL}
        s_add_u32 {s(T[4])}, {s(T[4])}, {L_PK}
        v_add_u32 {v(vPKrB)}, {s(T[4])}, {v(t0)}
        s_mul_i32 {s(T[4])}, {s(T[0])}, {2*PL}
        s_add_u32 {s(T[4])}, {s(T[4])}, {L_PK}
        v_add_u32 {v(vPKrA)}, {s(T[4])}, {v(t0)}
        ''')
        e(f'''
        s_mul_i32 {s(T[4])}, {s(sW)}, 544
        s_add_u32 {s(T[4])}, {s(T[4])}, {L_KV}
        v_lshl_add_u32 {v(t0)}, {v(vFl16)}, 3, {s(T[4])}
        v_lshl_add_u32 {v(vKVw)}, {v(vTM+4)}, 3, {v(t0)}
        v_lshrrev_b32 {v(t0)}, 1, {v(vFl16)}
        v_add_u32 {v(vZw)}, {s(T[4])}, {v(t0)}
        v_bfe_u32 {v(t0)}, {v(vLane)}, 2, 1
        v_lshl_add_u32 {v(t0)}, {v(t0)}, 3, {v(vTM+5)}
        v_bfe_u32 {v(t1)}, {v(vLane)}, 3, 1
        v_lshl_add_u32 {v(t0)}, {v(t1)}, 2, {v(t0)}
        v_cmp_gt_u32 vcc, 16, {v(vTM)}
        v_cndmask_b32 {v(t0)}, 16, {v(t0)}, vcc
        v_lshlrev_b32 {v(t0)}, 5, {v(t0)}
        v_add_u32 {v(t0)}, {L_KV}, {v(t0)}
        v_lshl_add_u32 {v(vKVrA)}, {v(vTM+1)}, 4, {v(t0)}
        v_mul_u32_u24 {v(t1)}, 1088, {v(vTM+1)}
        v_add_u32 {v(vKVrB)}, {v(t0)}, {v(t1)}
        s_lshl_b32 {s(T[4])}, {s(sW)}, 12
        s_add_u32 {s(T[4])}, {s(T[4])}, {L_EX}
        v_add_u32 {v(vEXw)}, {s(T[4])}, {v(vL16)}
        ''')
        e(f'''
        v_bfe_u32 {v(t0)}, {v(vLane)}, 2, 2
        v_lshl_add_u32 {v(t0)}, {v(vTM+1)}, 3, {v(t0)}
        v_lshlrev_b32 {v(t0)}, 7, {v(t0)}
        v_bfe_u32 {v(t1)}, {v(vLane)}, 3, 1
        v_xor_b32 {v(t1)}, {s(T[1])}, {v(t1)}
        v_lshl_add_u32 {v(t0)}, {v(t1)}, 6, {v(t0)}
        v_and_b32 {v(t1)}, 1, {v(vLane)}
        v_lshl_add_u32 {v(t0)}, {v(t1)}, 5, {v(t0)}
        v_bfe_u32 {v(t1)}, {v(vLane)}, 4, 1
        v_lshl_add_u32 {v(t0)}, {v(t1)}, 4, {v(t0)}
        v_bfe_u32 {v(t1)}, {v(vLane)}, 1, 1
        v_lshl_add_u32 {v(vWO)}, {v(t1)}, 3, {v(t0)}
        ''')
        e(f'''
        v_and_b32 {v(t0)}, 1, {v(vLane)}
        v_lshlrev_b32 {v(t0)}, 4, {v(t0)}
        v_mov_b32 {v(t1)}, 0x3f80
        v_lshlrev_b32 {v(t0)}, {v(t0)}, {v(t1)}
        v_lshrrev_b32 {v(t1)}, 1, {v(vLane)}
        v_xor_b32 {v(t1)}, {v(t1)}, {v(vLane)}
        v_and_b32 {v(t1)}, 8, {v(t1)}
        v_bfe_u32 {v(t2)}, {v(vLane)}, 1, 2
        v_or_b32 {v(t1)}, {v(t1)}, {v(t2)}
        ''')
        for d in range(4):
            e(f'v_cmp_eq_u32 vcc, {d}, {v(t1)}\nv_cndmask_b32 {v(vSEL+d)}, 0, {v(t0)}, vcc')
        e(f'v_add_u32 {v(vPK2)}, {2*SLOT}, {v(vXq)}')
        e(f'v_mov_b32 {v(vTM+4)}, {v(vA0+5)}\nv_xor_b32 {v(vTM+5)}, 16, {v(vA0+5)}')
        for n in range(self.o.c1early, 6): self.ct[1] = self.dma0(1, n, again=(n == self.o.c1early))
        if self.o.q0 > 1: self.dma0q(1)
        if self.o.dummy < 0:
            for i in range(5): self.dummy(i)
        for c in self.o.t2: self.touch(int(c))
        self.stamp('setup')

    def par_sel(self, dst):
        e = self.e
        e(f's_mov_b32 vcc_lo, 0xf0f00f0f\ns_mov_b32 vcc_hi, 0xf0f00f0f\nv_mov_b32 {v(dst+1)}, {s(sONES)}')
        e(f'v_cndmask_b32 {v(dst)}, 0, {v(dst+1)}, vcc')
        for i in (1, 2, 3): e(f'v_mov_b32 {v(dst+i)}, {v(dst)}')
    def rowsum(self, acc, sel, frag, first):
        self.e(f'v_mfma_f32_16x16x32_bf16 {acc}, {v(sel,4)}, {v(frag,4)}, {0 if first else acc}')

    def kv_gemm0(self):
        e = self.e
        sel = vCS + 8
        self.par_sel(sel)
        aS, aK, aV = a(0, 4), a(4, 4), a(8, 4)
        wt = [None] * 32; xt = [None] * 32
        dl = []
        def dma(n):
            for _ in range(n):
                if dl:
                    P, i = dl.pop(0)
                    if P < 8: self.ct[P] = self.dma0(P, i)
                    elif P == 8: self.bgt['LQA'] = self.dma0q(i); self.bgn['LQA'] = i + 1
                    elif P == 9: self.touch(i)
                    elif P == 11: self.dummy(i)
                    elif P == 12: self.code_touch('a255')
                    elif P == 10: self.clr1 = self.clear_slot(1, vM1, vE1st, vZst)
        cK, cV = vCS + 2, vCS + 4
        sb = vWPH
        q0, q1 = vTM, vTM + 1
        dq = []
        sops = [f'v_accvgpr_read_b32 {v(sb)}, a0', f'v_add_f32 {v(sb+1)}, {v(q0)}, {v(q1)}', f'v_mov_b32 {v(sb+3)}, {v(sb+1)}',
                f'v_permlane32_swap_b32 {v(sb+1)}, {v(sb+3)}', f'v_add_f32 {v(sb+1)}, {v(sb+1)}, {v(sb+3)}'] + self.stats_tail(sb)
        def pop(n):
            for _ in range(n):
                if dq: e(dq.pop(0))
                elif k >= 27 and sops: e(sops.pop(0))
        nq = self.o.q0
        touches = {int(x[0]): [int(c) for c in x[1:]] for x in self.o.touch.split(',') if x}
        for k in range(-2, 32):
            b = vWB + (k % 3) * 8
            nb = vWB + ((k + 2) % 3) * 8
            fr = [k + 1] if -1 <= k < 27 else ([28, 29, 30, 31] if k == 27 else [])
            bound = (k + 2) % 4 == 0 and k + 2 < 32
            if k >= 0:
                e.wait(lg=max(wt[k], xt[k]))
                if k % 4 == 0:
                    self.rowsum(aK, sel, b, k == 0); self.rowsum(aV, sel, b + 4, k == 0)
                e(f'v_mfma_f32_32x32x16_bf16 {v(vA0,16)}, {v(b,4)}, {v(vXF+4*k,4)}, {v(vA0,16) if k else 0}')
            if bound:
                P = (k + 2) >> 2
                dma(99)
                e.wait(vm=self.ct[P])
                e('s_barrier')
                if P == 0 or self.o.fine: self.stamp(f'chunk{P}')
                for q in range(4):
                    xt[4*P+q] = e(f'ds_read_b128 {v(vXF+16*P+4*q,4)}, {v(vWPH+4+q)} offset:{(P%3)*16384}')
                if P + 2 < 8: dl += [(P + 2, i) for i in range(6)]
                if P == self.o.clrp: dl += [(10, 0)]
                for _ in range(int(self.o.qs[P])):
                    dl += [(8, nq)]; nq += 1
                if P == 5 and self.o.ctouch & 4: dl += [(12, 0)]
                dl += [(9, i) for i in touches.get(P, [])]
                if P == 6 and self.o.tq: dl[1:1] = [(9, int(c)) for c in self.o.tq]
                if self.o.dummy == 7 and P == 7: dl += [(11, i) for i in range(4)]
                elif self.o.dummy > 0 and 0 <= P - self.o.dummy < 3: dl += [(11, i) for i in ((0, 1), (2, 3), (4,))[P - self.o.dummy]]
            else:
                dma(1)
            if k + 2 < 32: self.tr_w(nb, k + 2, 0)
            if k == 28:
                dma(99)
                cw = self.cs_write(['a4', 'a8'], [1, 2])
            pop(2 if k < 28 else 5)
            for f in fr:
                e.wait(lg=xt[f])
                if self.o.nomini & 1 and f: continue
                self.rowsum(aS, sel, vXF + 4*f, f == 0)
                if self.o.nomini & 2 and f: continue
                dq += [f'v_dot2_f32_bf16 {v((q0, q1)[i&1])}, {v(vXF+4*f+i)}, {v(vXF+4*f+i)}, {v((q0, q1)[i&1]) if (f or i > 1) else 0}' for i in range(4)]
                if k == 27: pop(2)
            if k >= 0:
                e(f'v_mfma_f32_32x32x16_bf16 {v(vA1,16)}, {v(b+4,4)}, {v(vXF+4*k,4)}, {v(vA1,16) if k else 0}')
            if k + 2 < 32: wt[k + 2] = self.tr_w(nb + 4, k + 2, SLOT)
            if bound:
                e(f's_cmp_lg_u32 {s(sRESP)}, {P}\ns_cbranch_scc1 L_nores{P}')
                e.raw(f'ds_read_b128 {v(vRES,4)}, {v(vTM+4)} offset:{(P%3)*16384}\nds_read_b128 {v(vRES+4,4)}, {v(vTM+5)} offset:{(P%3)*16384}')
                e(f'L_nores{P}:')
            dma(1)
            pop(2 if k < 27 else 5)
            if k == 4 * self.o.atp - 1:
                e(f'''
                s_cmp_lg_u32 {s(sW)}, 0
                s_cbranch_scc1 L_noat
                s_lshr_b32 {s(sT[5])}, {s(sG)}, 3
                s_lshl1_add_u32 {s(sT[5])}, {s(sR)}, {s(sT[5])}
                s_lshl_b32 {s(sT[5])}, {s(sT[5])}, 2
                s_lshl_b32 {s(sAT)}, 1, {s(sXCC)}
                s_atomic_add {s(sAT)}, {s(sDBG,2)}, {s(sT[5])}
                L_noat:
                ''')
            if k == 28:
                e.wait(lg=cw); e('s_barrier')
                if self.o.fine: self.stamp('g28')
                r1 = self.cs_read(1, vWPH + 4)
                r2 = self.cs_read(2, vCS + 8)
            if k >= 29: self.bg(f'kv{k}')
            if k == 30:
                assert not dq and not sops
                e.wait(lg=r2)
                sops += self.cs_pack_ops(vWPH + 4, cK) + self.cs_pack_ops(vCS + 8, cV)
                pop(4)
        pop(99)
        e(f'v_mfma_f32_32x32x8_bf16 {v(vA0,16)}, {v(cK,2)}, {v(vMF,2)}, {v(vA0,16)}')
        e(f'v_mfma_f32_32x32x8_bf16 {v(vA1,16)}, {v(cV,2)}, {v(vMF,2)}, {v(vA1,16)}')
        self.stamp('L0.kvgemm')

    def cs_write(self, acc, blk):
        e = self.e
        t = vTM + 6
        e(f'v_and_b32 {v(t)}, 0x1f0, {v(vL16)}\ns_lshl_b32 {s(sT[3])}, {s(sW)}, 2\nv_add_u32 {v(t)}, {L_CS}, {v(t)}\nv_add_u32 {v(t+1)}, {s(sT[3])}, {v(t)}')
        tag = None
        for ac, b in zip(acc, blk):
            tag = e(f'ds_write_b32 {v(t+1)}, {ac} offset:{b*512}')
        return tag
    def cs_read(self, blk, dst):
        return self.e(f'ds_read_b128 {v(dst,4)}, {v(vTM+6)} offset:{blk*512}')
    def cs_pack_ops(self, src, out):
        return [f'v_pk_add_f32 {v(src,2)}, {v(src,2)}, {v(src+2,2)}',
                f'v_add_f32 {v(src)}, {v(src)}, {v(src+1)}',
                f'v_and_b32 {v(src+1)}, {s(sHI)}, {v(src)}',
                f'v_sub_f32 {v(src+1)}, {v(src)}, {v(src+1)}',
                f'v_perm_b32 {v(out)}, {v(src+1)}, {v(src)}, {s(sPERM)}',
                f'v_and_b32 {v(src+2)}, {s(sHI)}, {v(src+1)}',
                f'v_sub_f32 {v(src+2)}, {v(src+1)}, {v(src+2)}',
                f'v_lshrrev_b32 {v(out+1)}, 16, {v(src+2)}']
    def cs_pack(self, src, out):
        for op in self.cs_pack_ops(src, out): self.e(op)

    def stats_ops(self, chk, par):
        b = vXF + 112; t = vTM
        p1 = []
        for i in range(4):
            if chk is not None: p1 += [self.chk(chk, b+4*i, b+4*i+1, par, False), self.chk(chk, b+4*i+2, b+4*i+3, par, False)]
            p1.append(f'v_pk_add_f32 {v(b+4*i,2)}, {v(b+4*i,2)}, {v(b+4*i+2,2)}')
        p1 += [f'v_pk_add_f32 {v(b,2)}, {v(b,2)}, {v(b+4,2)}', f'v_pk_add_f32 {v(b+8,2)}, {v(b+8,2)}, {v(b+12,2)}',
               f'v_pk_add_f32 {v(t,2)}, {v(b,2)}, {v(b+8,2)}']
        p2 = [f'v_mov_b32 {v(t+2)}, {v(t)}', f'v_mov_b32 {v(t+3)}, {v(t+1)}',
              f'v_permlane32_swap_b32 {v(t)}, {v(t+2)}', f'v_permlane32_swap_b32 {v(t+1)}, {v(t+3)}',
              f'v_pk_add_f32 {v(t,2)}, {v(t,2)}, {v(t+2,2)}']
        return p1, p2 + self.stats_tail(t)
    def stats_tail(self, b):
        ops = [
                f'v_mul_f32 {v(b)}, 0xbb000000, {v(b)}',
                f'v_mul_f32 {v(b+1)}, 0x3b000000, {v(b+1)}',
                f'v_fma_f32 {v(b+1)}, -{v(b)}, {v(b)}, {v(b+1)}',
                f'v_max_f32 {v(b+1)}, 0, {v(b+1)}',
                f'v_add_f32 {v(b+1)}, 0x3727c5ac, {v(b+1)}',
                f'v_rsq_f32 {v(vRS)}, {v(b+1)}',
                f'v_and_b32 {v(b+2)}, {s(sHI)}, {v(b)}',
                f'v_sub_f32 {v(b+2)}, {v(b)}, {v(b+2)}',
                f's_mov_b64 vcc, 0xffffffff',
                f'v_mul_f32 {v(vRS+1)}, {s(sL2E)}, {v(vRS)}',
                f'v_cndmask_b32 {v(b)}, {v(b+2)}, {v(b)}, vcc',
                f'v_perm_b32 {v(vMF)}, {v(b)}, {v(b)}, {s(sPERM)}',
                f'v_lshrrev_b32 {v(vMF+1)}, 16, {v(b)}']
        return ops

    def tr_w(self, dst, ks, extra):
        e = self.e
        off = (ks >> 2) * 4096 + extra
        e(f'ds_read_b64_tr_b16 {v(dst,2)}, {v(vWtr + (ks&3))} offset:{off}')
        return e(f'ds_read_b64_tr_b16 {v(dst+2,2)}, {v(vWtr + (ks&3))} offset:{off+256}')

    def kv_gemm(self, l):
        e = self.e; typ = l & 1; first = l < 2
        chk = vTM + 4 if (l > 1 and self.o.quick) else None
        par = (l - 1) & 1
        if chk: e(f'L_top_x{l}:')
        xt = [None] * 32
        def xload(k):
            if k % 4 == 0: e(f's_xor_b32 {s(sT[0])}, {s(sT[2])}, {k*1024}')
            xt[k] = e(f'buffer_load_dwordx4 {v(vXF+4*k,4)}, {v(vXq+(k&3))}, {s(sWS,4)}, {s(sT[0])} offen sc1')
        PRE = self.o.xpre
        for k in range(PRE): xload(k)
        wt = [None] * 32
        for k in range(2):
            self.tr_w(vWB + k*8, k, 0)
            wt[k] = self.tr_w(vWB + k*8 + 4, k, SLOT)
        self.bg('kvpre')
        stt = None
        p1, p2 = self.stats_ops(chk, par)
        aK, aV = a(248, 4), a(252, 4)
        sel = vCS + 8
        if first: self.par_sel(sel)
        cK, cV = vCS + typ*6 + 2, vCS + typ*6 + 4
        SL = self.o.stat_at; S0 = SL + 4 + PRE; SE = 28 - PRE
        def pop(n):
            for _ in range(n):
                if p1: e(p1.pop(0))
                elif p2: e(p2.pop(0))
        corr = first
        for k in range(32):
            b = vWB + (k % 3) * 8
            nb = vWB + ((k + 2) % 3) * 8
            e.wait(vm=xt[k], lg=wt[k])
            if k == 0: self.stamp(f'L{l}.x0')
            if first and k % 4 == 0:
                self.rowsum(aK, sel, b, k == 0); self.rowsum(aV, sel, b + 4, k == 0)
            e(f'v_mfma_f32_32x32x16_bf16 {v(vA0,16)}, {v(b,4)}, {v(vXF+4*k,4)}, {v(vA0,16) if k else 0}')
            if k == SE:
                while p1: pop(1)
            if k + PRE < 32: xload(k + PRE)
            if k + 2 < 32: self.tr_w(nb, k + 2, 0)
            if k >= S0:
                if k == S0: e.wait(vm=stt)
                pop(2 if p1 else 1)
            if first and k == 28: cw = self.cs_write(['a248', 'a252'], [1, 2])
            self.bg(f'kv{k}')
            e(f'v_mfma_f32_32x32x16_bf16 {v(vA1,16)}, {v(b+4,4)}, {v(vXF+4*k,4)}, {v(vA1,16) if k else 0}')
            if SL <= k < SL + 4:
                stt = e(f'buffer_load_dwordx4 {v(vXF+112+4*(k-SL),4)}, {v(vL16)}, {s(sWS,4)}, {s(sSTrd)} offen offset:{(k-SL)*1024} sc1')
            if k + 2 < 32: wt[k + 2] = self.tr_w(nb + 4, k + 2, SLOT)
            if chk and k % 2 == 1: e(self.chk(chk, vXF+4*k-4, vXF+4*k, par, k == 1))
            self.bg(f'kv{k}b')
            if not corr and not p1 and not p2:
                corr = True
                e(f'v_mfma_f32_32x32x8_bf16 {v(vA0,16)}, {v(cK,2)}, {v(vMF,2)}, {v(vA0,16)}')
                e(f'v_mfma_f32_32x32x8_bf16 {v(vA1,16)}, {v(cV,2)}, {v(vMF,2)}, {v(vA1,16)}')
            if k >= S0: pop(2)
            if first and k == 28:
                assert not p1 and not p2
                e.wait(lg=cw); e('s_barrier')
                r1 = self.cs_read(1, vTM)
            if first and k == 29: r2 = self.cs_read(2, vWB + 16)
            if first and k == 29:
                e.wait(lg=r1); p2 += self.cs_pack_ops(vTM, cK); pop(2)
            if first and k == 31:
                e.wait(lg=r2); p2 += self.cs_pack_ops(vWB + 16, cV)
        assert corr
        if chk: self.chk_end(chk, par, f'x{l}')
        if first:
            pop(len(p2) - 8)
            e(f'v_mfma_f32_32x32x8_bf16 {v(vA0,16)}, {v(cK,2)}, {v(vMF,2)}, {v(vA0,16)}')
            pop(8)
            e(f'v_mfma_f32_32x32x8_bf16 {v(vA1,16)}, {v(cV,2)}, {v(vMF,2)}, {v(vA1,16)}')
        self.bg('kvend')
        self.stamp(f'L{l}.kvgemm')

    def scale_pack(self, acc, out):
        e = self.e
        for i in range(8):
            e(f'v_pk_mul_f32 {v(acc+2*i,2)}, {v(acc+2*i,2)}, {v(vRS,2)} op_sel_hi:[1,0]')
        for i in range(8):
            e(f'v_cvt_pk_bf16_f32 {v(out+i)}, {v(acc+2*i)}, {v(acc+2*i+1)}')
    def phi_a(self, acc, tmp, out, tag, after=None):
        e = self.e
        for hh in range(2):
            r = range(4*hh, 4*hh+4)
            for i in r: e(f'v_pk_mul_f32 {v(tmp+2*i,2)}, {v(acc+2*i,2)}, {v(vRS,2)} op_sel:[0,1] op_sel_hi:[1,1]')
            for i in r:
                e(f'v_exp_f32_e64 {v(tmp+2*i)}, {v(tmp+2*i)} clamp')
                e(f'v_exp_f32_e64 {v(tmp+2*i+1)}, {v(tmp+2*i+1)} clamp')
            self.bg(f'{tag}{2*hh}')
            for i in r: e(f'v_pk_fma_f32 {v(acc+2*i,2)}, {v(acc+2*i,2)}, {v(vRS,2)}, 1.0 op_sel_hi:[1,0,0]')
            for i in r:
                e(f'v_max_f32 {v(acc+2*i)}, {v(acc+2*i)}, {v(tmp+2*i)}')
                e(f'v_max_f32 {v(acc+2*i+1)}, {v(acc+2*i+1)}, {v(tmp+2*i+1)}')
            for i in r: e(f'v_pk_add_f32 {v(acc+2*i,2)}, {v(acc+2*i,2)}, {s(sEPS6,2)}')
            for i in r: e(f'v_cvt_pk_bf16_f32 {v(out+i)}, {v(acc+2*i)}, {v(acc+2*i+1)}')
            if after: after(hh)
            self.bg(f'{tag}{2*hh+1}')
    def softmax16(self, p, tm, out, tag):
        e = self.e
        e(f'v_max3_f32 {v(tm)}, {v(p)}, {v(p+1)}, {v(p+2)}')
        e(f'v_max3_f32 {v(tm+1)}, {v(p+3)}, {v(p+4)}, {v(p+5)}')
        e(f'v_max3_f32 {v(tm)}, {v(tm)}, {v(p+6)}, {v(p+7)}')
        e(f'v_max3_f32 {v(tm+1)}, {v(tm+1)}, {v(p+8)}, {v(p+9)}')
        e(f'v_max3_f32 {v(tm)}, {v(tm)}, {v(p+10)}, {v(p+11)}')
        e(f'v_max3_f32 {v(tm+1)}, {v(tm+1)}, {v(p+12)}, {v(p+13)}')
        e(f'v_max3_f32 {v(tm)}, {v(tm)}, {v(p+14)}, {v(p+15)}')
        e(f'v_max_f32 {v(tm)}, {v(tm)}, {v(tm+1)}')
        e(f'v_mul_f32 {v(tm)}, {s(sL2E)}, {v(tm)}')
        for i in range(8):
            e(f'v_pk_fma_f32 {v(p+2*i,2)}, {v(p+2*i,2)}, {s(sL2E,2)}, {v(tm,2)} op_sel_hi:[1,1,0] neg_lo:[0,0,1] neg_hi:[0,0,1]')
        self.bg(tag + 'a')
        for i in range(16):
            e(f'v_exp_f32 {v(p+i)}, {v(p+i)}')
            if i == 7: self.bg(tag + 'b')
        self.bg(tag + 'c')
        for i in range(4): e(f'v_pk_add_f32 {v(tm+2*i,2)}, {v(p+4*i,2)}, {v(p+4*i+2,2)}')
        e(f'v_pk_add_f32 {v(tm,2)}, {v(tm,2)}, {v(tm+2,2)}')
        e(f'v_pk_add_f32 {v(tm+4,2)}, {v(tm+4,2)}, {v(tm+6,2)}')
        e(f'v_pk_add_f32 {v(tm,2)}, {v(tm,2)}, {v(tm+4,2)}')
        e(f'v_add_f32 {v(tm)}, {v(tm)}, {v(tm+1)}')
        e(f'v_rcp_f32 {v(tm)}, {v(tm)}')
        self.bg(tag + 'd')
        for i in range(8): e(f'v_pk_mul_f32 {v(p+2*i,2)}, {v(p+2*i,2)}, {v(tm,2)} op_sel_hi:[1,0]')
        for i in range(8): e(f'v_cvt_pk_bf16_f32 {v(out+i)}, {v(p+2*i)}, {v(p+2*i+1)}')

    def kv_epilogue(self, l, late_q):
        e = self.e; typ = l & 1
        self.dump(f'L{l}.kv', [v(vA0+i) for i in range(32)] + [v(vRS)])
        if typ == 0:
            def wr(hh): e(f'ds_write_b128 {v(vPKwA)}, {v(vTM+4*hh,4)} offset:{2*hh*PL}')
            self.phi_a(vA0, vWB, vTM, 'ek', wr)
            self.scale_pack(vA1, vA1)
            e(f'ds_write_b128 {v(vPKwA)}, {v(vA1,4)} offset:{8*PL}')
            e(f'ds_write_b128 {v(vPKwA)}, {v(vA1+4,4)} offset:{10*PL}')
        else:
            self.scale_pack(vA0, vTM)
            e(f'v_mfma_f32_32x32x16_bf16 {v(vA0,16)}, {v(vWPH,4)}, {v(vTM,4)}, 0')
            e(f'v_mfma_f32_32x32x16_bf16 {v(vWB,16)}, {v(vWPH+4,4)}, {v(vTM+4,4)}, 0')
            self.bg('es0')
            self.scale_pack(vA1, vA1)
            e(f'ds_write_b128 {v(vPKwA)}, {v(vA1,4)} offset:{8*PL}')
            e(f'ds_write_b128 {v(vPKwA)}, {v(vA1+4,4)} offset:{10*PL}')
            self.bg('es1')
            for hh, p in ((0, vA0), (1, vWB)):
                self.softmax16(p, vTM, p, f'ek{hh}')
                e(f'ds_write_b128 {v(vPKwB)}, {v(p,4)} offset:{(2*hh)*PL}')
                e(f'ds_write_b128 {v(vPKwB)}, {v(p+4,4)} offset:{(2*hh+1)*PL}')
        ones = vTM + 4
        for i in range(4): e(f'v_mov_b32 {v(ones+i)}, {s(sONES)}')
        if l == 0: e.wait(vm=self.clr1)
        if not late_q: self.need('Q')
        e.wait_all_lg()
        e('s_barrier')
        self.free('KV')
        self.stamp(f'L{l}.B1')
        pr = vPKrA if typ == 0 else vPKrB
        tags = []
        for st in range(4):
            e(f'ds_read_b64_tr_b16 {v(vA0+4*st,2)}, {v(pr)} offset:{st*512}')
            e(f'ds_read_b64_tr_b16 {v(vA0+4*st+2,2)}, {v(pr)} offset:{st*512+256}')
            e(f'ds_read_b64_tr_b16 {v(vA1+4*st,2)}, {v(vPKrA)} offset:{8*PL+st*512}')
            tags.append(e(f'ds_read_b64_tr_b16 {v(vA1+4*st+2,2)}, {v(vPKrA)} offset:{8*PL+st*512+256}'))
        self.bg('b1')
        self.set_wtr(SLOTS[l]['Q'])
        ckv, cz = vWB + 16, vWB + 20
        ak, az = self.e1_addr(l, vWB)
        e(f's_add_u32 {s(sT[0])}, {s(sKVwrB)}, {l*0x80000}\ns_add_u32 {s(sT[1])}, {s(sZwrB)}, {l*0x10000}')
        for st in range(4):
            e.wait(lg=tags[st])
            e(f'v_mfma_f32_16x16x32_bf16 {v(ckv,4)}, {v(vA0+4*st,4)}, {v(vA1+4*st,4)}, {v(ckv,4) if st else 0}')
            e(f'v_mfma_f32_16x16x32_bf16 {v(cz,4)}, {v(ones,4)}, {v(vA0+4*st,4)}, {v(cz,4) if st else 0}')
        e(f'v_cvt_pk_bf16_f32 {v(vTM)}, {v(ckv)}, {v(ckv+1)}\nv_cvt_pk_bf16_f32 {v(vTM+1)}, {v(ckv+2)}, {v(ckv+3)}')
        e(f'v_min_u32 {v(vTM)}, -2, {v(vTM)}\nv_min_u32 {v(vTM+1)}, -2, {v(vTM+1)}')
        e(f'buffer_store_dwordx2 {v(vTM,2)}, {v(ak)}, {s(sWS,4)}, {s(sT[0])} offen sc1')
        e(f'v_min_u32 {v(vTM+2)}, -2, {v(cz)}')
        e(f'buffer_store_dword {v(vTM+2)}, {v(az)}, {s(sWS,4)}, {s(sT[1])} offen sc1')
        self.stamp(f'L{l}.pub1')
        if l < 2: self.clear_slot(l + 2, vTM + 4, ak, az)
        if late_q:
            self.need('Q'); e('s_barrier')

    def e1_ops(self, e, l, tags, each=False):
        typ = l & 1
        nk, nz = (4, 2) if typ == 0 else (8, 4)
        sk, sz = (sKVrdA, sZrdA) if typ == 0 else (sKVrdB, sZrdB)
        ops = []
        def zl(t):
            if t == 0: e(f's_add_u32 {s(sT[1])}, {s(sz)}, {l*0x10000}')
            tags['z'] = e(f'buffer_load_dword {v(vXF+32+t)}, {v(vL4)}, {s(sWS,4)}, {s(sT[1])} offen offset:{t*256} sc1')
        def kl(p):
            if p % 4 == 0 or each: e(f's_add_u32 {s(sT[0])}, {s(sk)}, {l*0x80000 + (p & ~3)*1024}')
            tags[p] = e(f'buffer_load_dwordx4 {v(vXF+4*p,4)}, {v(vL16)}, {s(sWS,4)}, {s(sT[0])} offen offset:{(p&3)*1024} sc1')
        return [lambda t=t: zl(t) for t in range(nz)] + [lambda p=p: kl(p) for p in range(nk)]

    def q_phase(self, l):
        e = self.e; typ = l & 1; first = l < 2
        wt = [None] * 32
        def wread(k): wt[k] = self.tr_w(vWB + (k % 6) * 4, k, 0)
        for k in range(4): wread(k)
        aQ = v(vA1 + 12, 4); cQ = vCS + typ * 6
        sel = vA1 + 8
        if first: self.par_sel(sel)
        if l == 0:
            e(f'v_and_b32 {v(vTM+3)}, 0x7c, {v(vL4)}')
            dbt = e(f'buffer_load_dword {v(vTM+2)}, {v(vTM+3)}, {s(sDBG,4)}, 0 offen sc1')
            if self.o.tw or self.o.te:
                e(f'v_lshlrev_b32 {v(vTM+6)}, 5, {v(vL4)}\nv_lshrrev_b32 {v(vTM+1)}, 4, {v(vL4)}\nv_lshl_add_u32 {v(vTM+7)}, {v(vTM+1)}, 26, {v(vTM+6)}')
                e(f'v_lshrrev_b32 {v(vTM+1)}, 6, {v(vL4)}\nv_lshl_add_u32 {v(vTM+6)}, {v(vTM+1)}, 26, {v(vTM+6)}')
                for c in self.o.tw: self.touch(int(c))
        E1AT = self.o.e1at[l]
        kt = {}
        e1 = self.e1_ops(e, l, kt)
        if self.o.ctouch & 1 and l < 3: e1.insert(0, lambda: self.code_touch(v(vXF + 36)))
        for k in range(32):
            e.wait(lg=wt[k])
            b = vWB + (k % 6) * 4
            if first and k % 4 == 0: self.rowsum(aQ, sel, b, k == 0)
            e(f'v_mfma_f32_32x32x16_bf16 {v(vA0,16)}, {v(b,4)}, {v(vXF+4*k,4)}, {v(vA0,16) if k else 0}')
            if k + 4 < 32: wread(k + 4)
            if k == 0 and not first:
                e(f'v_mfma_f32_32x32x8_bf16 {v(vA0,16)}, {v(cQ,2)}, {v(vMF,2)}, {v(vA0,16)}')
            if k == E1AT and l == 0:
                e.wait(vm=dbt)
                e(f's_mov_b32 {s(sT[2])}, 0x11111111')
                e('L_all_chk:')
                e(f'v_dot8_u32_u4 {v(vTM+1)}, {v(vTM+2)}, {s(sT[2])}, 0')
                e(f's_lshl_b32 {s(sT[3])}, 8, {s(sXCC)}')
                e(f'v_cmp_ne_u32 vcc, 8, {v(vTM+1)}\ns_cbranch_vccnz L_all_retry')
                e(f'v_cmp_ne_u32 vcc, {s(sT[3])}, {v(vTM+2)}\ns_lshl_b32 {s(sT[3])}, {s(sR)}, 1')
                e(f's_lshr_b32 {s(sMODE)}, vcc_lo, {s(sT[3])}\ns_and_b32 {s(sMODE)}, {s(sMODE)}, 3')
                if self.o.force_safe: e(f's_or_b32 {s(sMODE)}, {s(sMODE)}, 1')
                e(f's_cselect_b32 {s(sSTR)}, {EXSTRIDE}, 0')
                for r in (sOrd, sOwr): e(f's_add_u32 {s(r)}, {s(r)}, {s(sSTR)}')
                t = Asm()
                t(f'L_all_retry:\nbuffer_load_dword {v(vTM+2)}, {v(vTM+3)}, {s(sDBG,4)}, 0 offen sc1')
                t(f's_sub_u32 {s(sBUD)}, {s(sBUD)}, 1\ns_cbranch_scc1 L_fail\ns_waitcnt vmcnt(0)\ns_branch L_all_chk')
                self.tail.append(t)
                e1 += [lambda: e(f'buffer_load_dword a255, {v(vFl16)}, {s(sWS,4)}, {s(sFOrd)} offen sc1'),
                       lambda: e(f'buffer_load_dword a255, {v(vFl16)}, {s(sWS,4)}, {s(sFXrd)} offen sc1'),
                       lambda: e(f's_lshl_b32 {s(sT[4])}, {s(sG)}, 10\ns_mov_b32 m0, {L_WP}\nbuffer_load_dwordx4 {v(vL16)}, {s(sWP,4)}, {s(sT[4])} offen lds')]
                e1 += [lambda c=c: self.touch(int(c)) for c in self.o.te]
                assert E1AT + len(e1) <= 29 or not self.o.te
            if k >= E1AT:
                for _ in range(self.o.e1rate if k < 31 else 99):
                    if e1: e1.pop(0)()
            self.bg(f'q{k}')
            if l == 3 and self.o.clean & 1 and k in (2, 4):
                e(f'buffer_store_dwordx4 {v(vRES+2*(k-2),4)}, {v(vL16)}, {s(sWS,4)}, {s(sXwr)} offen offset:{(k-2)*512} sc1')
            if first and k == 29: cw = self.cs_write([v(vA1 + 12)], [0])
            if first and k == 31:
                e.wait(lg=cw); e('s_barrier')
                r0 = self.cs_read(0, vA1)
        zt = kt['z']
        if first:
            e.wait(lg=r0); self.cs_pack(vA1, cQ)
            e(f'v_mfma_f32_32x32x8_bf16 {v(vA0,16)}, {v(cQ,2)}, {v(vMF,2)}, {v(vA0,16)}')
        self.stamp(f'L{l}.qgemm')
        self.dump(f'L{l}.q', [v(vA0+i) for i in range(16)])
        PQ = vXF + 64
        if typ == 0:
            self.phi_a(vA0, vWB, PQ, 'eq')
        else:
            self.scale_pack(vA0, vTM)
            e(f'v_mfma_f32_32x32x16_bf16 {v(vA0,16)}, {v(vWPH,4)}, {v(vTM,4)}, 0')
            e(f'v_mfma_f32_32x32x16_bf16 {v(vA1,16)}, {v(vWPH+4,4)}, {v(vTM+4,4)}, 0')
            self.softmax16(vA0, vWB, PQ, 'eq0')
            self.softmax16(vA1, vWB, PQ + 8, 'eq1')
        self.stamp(f'L{l}.phiq')
        nk, nz = (4, 2) if typ == 0 else (8, 4)
        C = vWB; mx = vTM; z = vXF + 32
        if self.o.e1inl: e(f's_branch L_e1c{l}')
        t = Asm()
        t(f'L_e1r{l}:')
        ops = self.e1_ops(t, l, {}, True)
        for op in ops[:nz]: op()
        for p in range(nk):
            b = vXF + 4*p
            t(f'v_max3_u32 {v(mx)}, {v(b)}, {v(b+1)}, {v(b+2)}\nv_max_u32 {v(mx)}, {v(mx)}, {v(b+3)}\nv_cmp_eq_u32 vcc, -1, {v(mx)}\ns_cbranch_vccz L_e1s{l}_{p}')
            ops[nz + p]()
            t(f'L_e1s{l}_{p}:')
        t(f's_sub_u32 {s(sBUD)}, {s(sBUD)}, 1\ns_cbranch_scc1 L_fail\ns_waitcnt vmcnt(0)')
        if self.o.e1inl: e.ins += t.ins
        else:
            t(f's_branch L_e1c{l}'); self.tail.append(t)
        e(f'L_e1c{l}:')
        e.wait(vm=zt)
        if nz == 2:
            e(f'v_max_u32 {v(mx)}, {v(z)}, {v(z+1)}\nv_add_f32 {v(z)}, {v(z)}, {v(z+1)}')
        else:
            e(f'v_max3_u32 {v(mx)}, {v(z)}, {v(z+1)}, {v(z+2)}\nv_max_u32 {v(mx)}, {v(mx)}, {v(z+3)}')
            e(f'v_pk_add_f32 {v(z,2)}, {v(z,2)}, {v(z+2,2)}\nv_add_f32 {v(z)}, {v(z)}, {v(z+1)}')
        zops = [f'v_mov_b32 {v(z+1)}, {v(z)}', f'v_permlane16_swap_b32 {v(z)}, {v(z+1)}', f'v_add_f32 {v(z)}, {v(z)}, {v(z+1)}',
                f'v_mov_b32 {v(z+1)}, {v(z)}', f'v_permlane32_swap_b32 {v(z)}, {v(z+1)}', f'v_add_f32 {v(z)}, {v(z)}, {v(z+1)}',
                f'v_cvt_pk_bf16_f32 {v(z)}, {v(z)}, {v(z)}', f'ds_write_b16 {v(vZw)}, {v(z)} offset:512']
        e(zops.pop(0))
        for p in range(nk):
            e.wait(vm=kt[p])
            b = vXF + 4*p
            e(f'v_mfma_f32_16x16x32_bf16 {v(C,4)}, {v(vSEL,4)}, {v(b,4)}, {v(C,4) if p else 0}')
            e(f'v_max3_u32 {v(mx)}, {v(mx)}, {v(b)}, {v(b+1)}\nv_max3_u32 {v(mx)}, {v(mx)}, {v(b+2)}, {v(b+3)}')
            if p == 0:
                for _ in range(3): e(zops.pop(0))
        e(f'v_cmp_eq_u32 vcc, -1, {v(mx)}\ns_cbranch_vccnz L_e1r{l}')
        for op in zops: e(op)
        self.stamp(f'L{l}.e1')
        e(f'v_cvt_pk_bf16_f32 {v(vTM)}, {v(C)}, {v(C+1)}\nv_cvt_pk_bf16_f32 {v(vTM+1)}, {v(C+2)}, {v(C+3)}')
        e(f'ds_write_b64 {v(vKVw)}, {v(vTM,2)}')
        self.bg('o0')
        if not self.o.lateb[l]: self.need('ab')
        e.wait_all_lg()
        e('s_barrier')
        self.free('Q')
        KF = vWB + 8
        kr = vKVrA if typ == 0 else vKVrB
        tg = []
        for hh in range(2):
            for u in range(2):
                off = (2*u + hh) * 544 if typ == 0 else hh * 544 + u * 16
                tg.append(e(f'ds_read_b128 {v(KF + 4*(2*hh+u),4)}, {v(kr)} offset:{off}'))
        self.bg('o1')
        for hh in range(2):
            acc = (vA0, vA1)[hh]
            for u in range(2):
                e.wait(lg=tg[2*hh+u])
                pq = PQ + 4*hh if typ == 0 else PQ + 8*hh + 4*u
                e(f'v_mfma_f32_32x32x16_bf16 {v(acc,16)}, {v(KF+4*(2*hh+u),4)}, {v(pq,4)}, {v(acc,16) if u else 0}')
        if l < 3: self.set_wtr(SLOTS[l+1]['K'])
        e(f'v_mov_b32 {v(vWB)}, {l+1}')
        self.bg('o2')
        O = vXF + 96
        quick = l > 0 and self.o.quick
        for hh in range(2):
            acc = (vA0, vA1)[hh]
            e(f'v_add_f32 {v(acc+8)}, {s(sEPS6)}, {v(acc+8)}\nv_rcp_f32 {v(acc+8)}, {v(acc+8)}')
            for i in range(4): e(f'v_pk_mul_f32 {v(acc+2*i,2)}, {v(acc+2*i,2)}, {v(acc+8,2)} op_sel_hi:[1,0]')
            for i in range(4):
                e(f'v_cvt_pk_bf16_f32 {v(O+4*hh+i)}, {v(acc+2*i)}, {v(acc+2*i+1)}')
                if i == 1: self.tag(O + 4*hh, l & 1)
            def st(e, m):
                e(f'buffer_store_dwordx4 {v(O+4*hh,4)}, {v(vL16)}, {s(sWS,4)}, {s(sOwr)} offen offset:{hh*1024}{m if (m or l) else self.o.pub0}')
                if hh:
                    if m or not quick: e.wait_all_vm()
                    self.flag(e, vWB, sFOwr, m)
            self.modal(f'po{l}{hh}', st)
        self.dump(f'L{l}.o', [v(O+i) for i in range(8)])
        self.stamp(f'L{l}.pub2')

    def o_proj(self, l):
        e = self.e; typ = l & 1; T = 'AB'[typ]
        chk = vTM + 4 if (l > 0 and self.o.quick) else None
        par = l & 1
        self.bg('w0')
        if l == 0:
            t0, t1 = vTM, vTM + 1
            e(f'''
            v_bfe_u32 {v(t0)}, {v(vL4)}, 4, 2
            v_lshrrev_b32 {v(t1)}, 7, {v(vL4)}
            v_lshl_add_u32 {v(t0)}, {v(t1)}, 3, {v(t0)}
            v_lshlrev_b32 {v(t0)}, 5, {v(t0)}
            v_bfe_u32 {v(t1)}, {v(vL4)}, 6, 1
            v_lshl_add_u32 {v(t0)}, {v(t1)}, 4, {v(t0)}
            v_bfe_u32 {v(t1)}, {v(vL4)}, 3, 1
            v_lshl_add_u32 {v(t0)}, {v(t1)}, 3, {v(t0)}
            v_add_u32 {v(t0)}, {L_WP}, {v(t0)}
            ''')
            for hh in range(2):
                for t in range(2):
                    tw = e(f'ds_read_b64_tr_b16 {v(vWPH+4*hh+2*t,2)}, {v(t0)} offset:{hh*512 + t*128}')
            e(f'v_bfe_u32 {v(t1)}, {v(vL4)}, 4, 1\nv_mul_u32_u24 {v(t1)}, 0x8000, {v(t1)}\nv_lshl_or_b32 {v(t1)}, {v(t1)}, 16, {v(t1)}')
            e.wait(lg=tw)
            for i in range(8): e(f'v_xor_b32 {v(vWPH+i)}, {v(t1)}, {v(vWPH+i)}')
        snd, exr = vTM + 5, vTM + 6
        own = vTM + 7
        def pre():
            e(f's_cmp_lt_u32 {s(sW)}, 2\ns_mov_b32 {s(sT[0])}, {SLOTS[l]["b"]*SLOT}\ns_cselect_b32 {s(sT[0])}, {SLOTS[l]["a"]*SLOT}, {s(sT[0])}')
            e(f'v_add_u32 {v(own)}, {s(sT[0])}, {v(vWO)}\nv_xor_b32 {v(exr)}, 0x2000, {v(vEXw)}\nv_xor_b32 {v(snd)}, 64, {v(own)}')
        if self.o.lateb[l]:
            self.need('ab'); e('s_barrier')
        self.stamp(f'L{l}.pre2')
        self.poll(f'pollo{l}', sFOrd, l + 1, 'wp', pre)
        self.stamp(f'L{l}.poll2')
        ot = [None] * 16
        def oload(e, k):
            if k % 4 == 0: e(f's_add_u32 {s(sT[0])}, {s(sOrd)}, {k*1024}')
            ot[k] = e(f'buffer_load_dwordx4 {v(vXF+4*k,4)}, {v(vL16)}, {s(sWS,4)}, {s(sT[0])} offen offset:{(k&3)*1024} sc1')
        PRE = self.o.opre
        if chk:
            t = Asm(); t(f'L_top_o{l}:')
            for k in range(PRE): oload(t, k)
            t(f's_waitcnt vmcnt(0)\ns_branch L_mid_o{l}')
            self.tail.append(t)
        for k in range(PRE): oload(e, k)
        self.bg('w1')
        if chk: e(f'L_mid_o{l}:'); self.in_redo = True
        wt = [None] * 16
        def wrd(dst, ad, k):
            e(f'ds_read_b64_tr_b16 {v(dst,2)}, {v(ad)} offset:{k*2048}')
            return e(f'ds_read_b64_tr_b16 {v(dst+2,2)}, {v(ad)} offset:{k*2048+512}')
        for k in range(2):
            wrd(vWB + 8*k, snd, k); wt[k] = wrd(vWB + 8*k + 4, own, k)
        for i in range(8):
            e(f'v_lshlrev_b32 {v(vA0+2*i)}, 16, {v(vRES+i)}\nv_and_b32 {v(vA0+2*i+1)}, {s(sHI)}, {v(vRES+i)}')
        self.bg('w2')
        for k in range(16):
            b = vWB + (k % 3) * 8
            nb = vWB + ((k + 2) % 3) * 8
            e.wait(vm=ot[k], lg=wt[k])
            e(f'v_mfma_f32_32x32x16_bf16 {v(vA1,16)}, {v(b,4)}, {v(vXF+4*k,4)}, {v(vA1,16) if k else 0}')
            if k + PRE < 16: oload(e, k + PRE)
            if k + PRE == 16 and self.o.ctouch & 2 and l < 3: self.code_touch(v(vXF + 64))
            if k + 2 < 16: wrd(nb, snd, k + 2)
            self.bg(f'p{k}')
            e(f'v_mfma_f32_32x32x16_bf16 {v(vA0,16)}, {v(b+4,4)}, {v(vXF+4*k,4)}, {v(vA0,16)}')
            if k + 2 < 16: wt[k + 2] = wrd(nb + 4, own, k + 2)
            if chk and k % 2 == 1: e(self.chk(chk, vXF+4*k-4, vXF+4*k, par, k == 1))
            self.bg(f'p{k}b')
        if chk: self.chk_end(chk, par, f'o{l}'); self.in_redo = False
        if l == 3 and self.o.clean & 2:
            for hh in range(2): e(f'buffer_store_dwordx4 {v(vXF+96+4*hh,4)}, {v(vL16)}, {s(sWS,4)}, {s(sOwr)} offen offset:{hh*1024} sc1')
        for r in (sXrd, sXwr, sSTrd, sSTwr, sOrd, sOwr): e(f's_add_u32 {s(r)}, {s(r)}, {s(sSTR)}')
        for n in range(4): e(f'ds_write_b128 {v(vEXw)}, {v(vA1+4*n,4)} offset:{n*1024}')
        xo = vTM
        if l == 3:
            e(f'v_and_b32 {v(xo)}, 0x7c, {v(vL4)}\nv_lshrrev_b32 {v(xo+1)}, 7, {v(vL4)}\nv_lshlrev_b32 {v(xo)}, 8, {v(xo)}\nv_lshl_add_u32 {v(xo)}, {v(xo+1)}, 5, {v(xo)}')
        elif l == 1: e(f's_lshl_b32 {s(sT[2])}, {s(sROT)}, 12\ns_add_u32 {s(sT[2])}, {s(sT[2])}, {s(sXrd)}')
        else: e(f's_mov_b32 {s(sT[2])}, {s(sXrd)}')
        self.bg('x0')
        e.wait_all_lg()
        e('s_barrier')
        self.free('ab')
        self.stamp(f'L{l}.B3')
        tg = [e(f'ds_read_b128 {v(vWB+4*n,4)}, {v(exr)} offset:{n*1024}') for n in range(4)]
        self.bg('x1')
        for n in range(4):
            e.wait(lg=tg[n])
            for i in (0, 2): e(f'v_pk_add_f32 {v(vA0+4*n+i,2)}, {v(vA0+4*n+i,2)}, {v(vWB+4*n+i,2)}')
            if l == 3 and self.o.bias:
                for i in range(4): e(f'v_add_f32 {v(vA0+4*n+i)}, {self.o.bias}, {v(vA0+4*n+i)}')
            for i in (0, 2): e(f'v_cvt_pk_bf16_f32 {v(vRES+2*n+i//2)}, {v(vA0+4*n+i)}, {v(vA0+4*n+i+1)}')
            if l < 3 and n % 2 == 0: self.tag(vRES + 2*n, l & 1)
            if l == 3 and n % 2 == 1:
                e(f'buffer_store_dwordx4 {v(vRES+2*n-2,4)}, {v(xo)}, {s(sOUT,4)}, {s(sXO)} offen offset:{8*n-8} {self.o.outmod}')
        self.dump(f'L{l}.x', [v(vRES+i) for i in range(8)])
        if l < 3:
            self.publish_x(l)
            self.bg('y0')
            self.need('KV', l + 1)
            e('s_barrier')
            self.stamp(f'L{l}.pub3')
            self.bg('y1')
            self.poll(f'pollx{l}', sFXrd, l + 2, 'yp')
            self.stamp(f'L{l}.poll3')

    def build(self):
        e = self.e
        self.sched = SCHEDS[self.o.sched]
        self.prologue()
        for l in range(4):
            self.l = l
            if l == 0: self.kv_gemm0()
            else: self.kv_gemm(l)
            self.kv_epilogue(l, self.o.lateq[l])
            self.q_phase(l)
            self.o_proj(l)
        for k in self.sched: assert k in self.seen, k
        if self.o.stamps:
            self.stamp('end')
            e(f's_memrealtime {s(sTS,2)}'); e.wait_all_lg()
            e(f'v_writelane_b32 {v(vSTAMP)}, {s(sTS)}, 63')
            if not self.o.both: e(f'v_writelane_b32 {v(vSTAMP)}, {s(sBUD)}, 61')
            e(f's_lshl_b32 {s(sT[0])}, s2, 2\ns_add_u32 {s(sT[0])}, {s(sT[0])}, {s(sW)}\ns_lshl_b32 {s(sT[0])}, {s(sT[0])}, 8\ns_add_u32 {s(sT[0])}, {s(sT[0])}, {STAMP}')
            e(f'buffer_store_dword {v(vSTAMP)}, {v(vL4)}, {s(sWS,4)}, {s(sT[0])} offen')
        if self.o.echo:
            self.stamp('end')
            if self.o.echo[0] == 'fixed':
                e(f's_mov_b32 {s(sE0)}, {self.o.echo[2]}')
            else:
                e(f's_sub_u32 {s(sE0)}, {s(sE1)}, {s(sE0)}\ns_mul_i32 {s(sE0)}, {s(sE0)}, {self.o.echo[2]}')
            e(f'{self.o.clk} {s(sE1,2)}\ns_waitcnt lgkmcnt(0)')
            e(f'L_echo:\n{self.o.clk} {s(sTS,2)}\ns_waitcnt lgkmcnt(0)\ns_sub_u32 {s(sTS)}, {s(sTS)}, {s(sE1)}\ns_cmp_lt_u32 {s(sTS)}, {s(sE0)}\ns_cbranch_scc1 L_echo')
        e('L_fail:\ns_endpgm')
        body = e.finish() + ''.join(t.finish() for t in self.tail) + 'L_code_end:\n    s_endpgm\n'
        head = open('cdna_kernels/' + NAME + '.s.ref').read().split('; Override launch')[0]
        txt = head + '; @launch grid=(256,1,1) block=(256,1,1) lds=163840\n'
        txt += f'''.amdgcn_target "amdgcn-amd-amdhsa--gfx950"
.text
.globl {NAME}_kernel
.p2align 8
.type {NAME}_kernel,@function
{NAME}_kernel:
{body}.section .rodata,"a"
.p2align 6
.amdhsa_kernel {NAME}_kernel
  .amdhsa_next_free_vgpr 512
  .amdhsa_next_free_sgpr 102
  .amdhsa_accum_offset 256
  .amdhsa_group_segment_fixed_size 0
  .amdhsa_kernarg_size 80
  .amdhsa_user_sgpr_count 2
  .amdhsa_user_sgpr_kernarg_segment_ptr 1
  .amdhsa_system_sgpr_workgroup_id_x 1
  .amdhsa_float_denorm_mode_32 3
.end_amdhsa_kernel
'''
        return txt

if __name__ == '__main__':
    ap = argparse.ArgumentParser()
    ap.add_argument('-o', default='cdna_kernels/' + NAME + '.s')
    ap.add_argument('--stamps', action='store_true')
    ap.add_argument('--force-safe', action='store_true')
    ap.add_argument('--dump', default='')
    ap.add_argument('--echo', default='')
    ap.add_argument('--bias', default='')
    ap.add_argument('--clk', default='s_memtime')
    ap.add_argument('--outmod', default='')
    ap.add_argument('--initmod', default='')
    ap.add_argument('--touch', default='61356')
    ap.add_argument('--c1early', type=int, default=2)
    ap.add_argument('--fine', type=int, default=0)
    ap.add_argument('--atp', type=int, default=1)
    ap.add_argument('--nomini', type=int, default=0)
    ap.add_argument('--touchx', type=int, default=1)
    ap.add_argument('--b0at', type=int, default=24)
    ap.add_argument('--both', type=int, default=0)
    ap.add_argument('--fake', type=int, default=0)
    ap.add_argument('--stouch', default=',,')
    ap.add_argument('--tq', default='')
    ap.add_argument('--tw', default='')
    ap.add_argument('--dummy', type=int, default=0)
    ap.add_argument('--te', default='')
    ap.add_argument('--quick', type=int, default=1)
    ap.add_argument('--lateb', default='0,0,0,0')
    ap.add_argument('--pub0', default=' sc1')
    ap.add_argument('--stat-at', type=int, default=2)
    ap.add_argument('--opre', type=int, default=8)
    ap.add_argument('--ctouch', type=int, default=7)
    ap.add_argument('--e1inl', type=int, default=1)
    ap.add_argument('--t0', default='')
    ap.add_argument('--t1', default='')
    ap.add_argument('--t2', default='')
    ap.add_argument('--qs', default='21111110')
    ap.add_argument('--clrp', type=int, default=6)
    ap.add_argument('--pub0s', default='')
    ap.add_argument('--q0', type=int, default=0)
    ap.add_argument('--clean', type=int, default=0)
    ap.add_argument('--xpre', type=int, default=8)
    ap.add_argument('--e1at', default='22,20,22,20')
    ap.add_argument('--e1rate', type=int, default=1)
    ap.add_argument('--lateq', default='0,0,0,0')
    ap.add_argument('--sched', default='g')
    opt = ap.parse_args()
    opt.dump = opt.dump.split(',') if opt.dump else []
    opt.echo = opt.echo.split(',') if opt.echo else []
    opt.e1at = list(map(int, opt.e1at.split(','))); opt.lateq = list(map(int, opt.lateq.split(','))); opt.lateb = list(map(int, opt.lateb.split(',')))
    g = Gen(opt)
    txt = g.build()
    open(opt.o, 'w').write(txt)
    if opt.stamps:
        open(opt.o + '.stamps', 'w').write('\n'.join(g.stamp_names))
    print('wrote', opt.o, len(txt), 'bytes; vgpr persistent', _vn[0], 'sgpr', _sn[0], 'stamps', g.nstamp)
```

```python
import sys, argparse
sys.path.insert(0, 'gen')
from asmlib import *

NAME = 'interleave_layers__linear_attn_block__linear_kernel_hedgehog__prompt'

FLG_O, FLG_X = 0x0000, 0x2000
ZP = 0x10000
STAMP = 0x60000
KVP = 0x100000
EXB, EXSTRIDE = 0x400000, 0x500000
OB, XB, ST = EXB, EXB + 0x200000, EXB + 0x400000
DUMP = 0x2400000
WS_BYTES = 0x4000000
OOB = 0x7F000000
SLOT = 32768
SCR = 4 * SLOT
PL = 2176
L_PK = SCR
L_EX = SCR
L_KV = SCR + 12 * PL
L_CS = L_KV + 2176
L_WP = L_CS + 3072
assert L_WP + 1024 <= 163840

sX, sWA, sWOA, sWB, sWP, sWOB, sOUT, sDBG, sWS, sCODE = 4, 8, 12, 16, 20, 24, 28, 32, 36, 40
_sn = [44]
def salloc(n=1, al=1):
    while _sn[0] % al: _sn[0] += 1
    r = _sn[0]; _sn[0] += n
    assert _sn[0] <= 100
    return r
sW, sR, sG, sRB, sRBO, sJ, sMODE, sBUD, sSTR = [salloc() for _ in range(9)]
sRw, sRo, sCOFF = [salloc() for _ in range(3)]
sXrd, sXwr, sSTrd, sSTwr, sOrd, sOwr, sFOrd, sFOwr, sFXrd, sFXwr = [salloc() for _ in range(10)]
sKVrdA, sKVrdB, sKVwrB, sZrdA, sZrdB, sZwrB, sSKIP = [salloc() for _ in range(7)]
sXO, sONES, sPERM, sHI, sXCC = [salloc() for _ in range(5)]
sROT, sRESP = salloc(), salloc()
sAT = 3
sX0g, sX0l, sW0g, sW0l = sMODE, sSTR, salloc(), salloc()
sL2E = salloc(2, 2); sEPS6 = salloc(2, 2)
sT = [salloc() for _ in range(6)]
sTS = salloc(2, 2)
sE0 = salloc(2, 2); sE1 = salloc(2, 2)

_vn = [1]
def valloc(n=1, al=1):
    while _vn[0] % al: _vn[0] += 1
    r = _vn[0]; _vn[0] += n
    return r
vLane = valloc()
vL16 = valloc(); vL4 = valloc()
vRES = valloc(8, 4)
vWPH = valloc(8, 4)
vSEL = valloc(4, 4)
vCS = valloc(12, 2)
vMF = valloc(2, 2)
vRS = valloc(2, 2)
vXq = valloc(4); vWtr = valloc(4)
vWdma, vWOdma, vPKwA, vPKwB, vPKrA, vPKrB, vKVw, vZw, vKVrA, vKVrB, vEXw, vE1st, vZst, vSTst, vFl16, vWO = [valloc() for _ in range(16)]
assert _vn[0] <= 64, _vn[0]
vA0, vA1, vWB, vTM = 64, 80, 96, 120
vXF = 128
vM1 = vTM + 2
vPK2 = vLane
vPT = vTM + 7
vSTAMP = 0

from scheds import SCHEDS
BAY = dict(KA=0, VA=1, QA=2, aA=3, bA=4, KB=5, QB=6, VB=7, aB=0, bB=1)
SLOTS = [dict(K=0, V=1, Q=2, a=3, b=0), dict(K=1, V=2, Q=3, a=0, b=1), dict(K=2, V=3, Q=1, a=0, b=3), dict(K=1, V=2, Q=0, a=3, b=1)]

class Gen:
    def __init__(self, opt):
        self.o = opt
        self.e = Asm()
        self.tail = []
        self.nstamp = 0
        self.stamp_names = []
        self.wtr_slot = 0
        self.ndump = 0
        self.bgn = {}; self.bgt = {}; self.seen = set(); self.l = 0
        self.occ = [(0, 'K'), (0, 'V'), (0, 'Q'), None]; self.dead = set(); self.live = {(0, 'K'), (0, 'V')}; self.bayocc = {}; self.in_redo = False

    def stamp(self, name):
        if self.o.echo and name in self.o.echo[:2]:
            self.e(f'{self.o.clk} {s(sE0 if name == self.o.echo[0] else sE1, 2)}')
            self.e.wait_all_lg()
        if not self.o.stamps: return
        e = self.e
        if self.o.both:
            if self.o.both == 2 and name not in ('start', 'end'): return
            if self.o.both == 3:
                if not (name.startswith(('chunk', 'L0', 'setup', 'g')) or name in ('start', 'end')): return
            elif name.split('.')[-1] not in ('start', 'chunk0', 'x0', 'kvgemm', 'pub1', 'phiq', 'pub2', 'poll2', 'B3', 'end'): return
            e(f's_memtime {s(sTS,2)}\ns_memrealtime {s(sE0,2)}')
            e.wait_all_lg()
            e(f'v_writelane_b32 {v(vSTAMP)}, {s(sTS)}, {self.nstamp}\nv_writelane_b32 {v(vSTAMP)}, {s(sE0)}, {self.nstamp+31}')
            self.nstamp += 1; self.stamp_names.append(name)
            assert self.nstamp <= 31
            return
        e(f'{self.o.clk} {s(sTS,2)}')
        e.wait_all_lg()
        e(f'v_writelane_b32 {v(vSTAMP)}, {s(sTS)}, {self.nstamp}')
        self.nstamp += 1; self.stamp_names.append(name)
    def dump(self, name, regs):
        if name not in self.o.dump: return
        e = self.e
        for r in regs:
            e(f's_lshl_b32 {s(sT[5])}, s2, 2\ns_add_u32 {s(sT[5])}, {s(sT[5])}, {s(sW)}\ns_lshl_b32 {s(sT[5])}, {s(sT[5])}, 14\ns_add_u32 {s(sT[5])}, {s(sT[5])}, {DUMP + self.ndump*256}')
            e(f'buffer_store_dword {r}, {v(vL4)}, {s(sWS,4)}, {s(sT[5])} offen')
            self.ndump += 1
        assert self.ndump <= 64
        e.wait_all_vm()
    def set_wtr(self, slot):
        d = (slot - self.wtr_slot) * SLOT
        if d:
            for q in range(4):
                self.e(f'v_add_u32 {v(vWtr+q)}, {d & 0xffffffff}, {v(vWtr+q)}')
        self.wtr_slot = slot
    def dma_w(self, typ, kind, n):
        e = self.e; srd = sWA if typ == 0 else sWB
        part = 'QKV'.index(kind); base = SLOTS[typ][kind] * SLOT - part * 1024
        assert base >= 0
        e(f's_xor_b32 {s(sT[4])}, {s(sRw)}, {n*4096}')
        e(f's_add_u32 m0, {s(sT[4])}, {base}')
        e(f's_mul_i32 {s(sT[4])}, {s(sT[4])}, 48')
        return e(f'buffer_load_dwordx4 {v(vWdma)}, {s(srd,4)}, {s(sT[4])} offen offset:{part*1024} lds')
    def dma_wo(self, typ, kind, n):
        e = self.e; srd = sWOA if typ == 0 else sWOB
        e(f's_xor_b32 {s(sT[4])}, {s(sRo)}, {n*4096}')
        e(f's_add_u32 m0, {s(sT[4])}, {SLOTS[typ][kind]*SLOT}')
        e(f's_lshl3_add_u32 {s(sT[4])}, {s(sT[4])}, {0x40000 if kind == "b" else 0}')
        return e(f'buffer_load_dwordx4 {v(vWOdma)}, {s(srd,4)}, {s(sT[4])} offen lds')
    def park(self, op, item, n):
        e = self.e; r = a(BAY[item]*32 + 4*n, 4)
        slot = SLOTS['AB'.index(item[1]) + (2 if op == 'R' else 0)][item[0]]
        ad, off = (vXq if slot < 2 else vPK2), (slot & 1) * SLOT + n * 4096
        if op == 'S': return e(f'ds_read_b128 {r}, {v(ad)} offset:{off}')
        return e(f'ds_write_b128 {v(ad)}, {r} offset:{off}')
    def bg_op(self, name, n):
        op, item = name[0], name[1:]
        typ = 'AB'.index(item[1])
        if op in 'LR':
            slot = SLOTS[typ + (2 if op == 'R' else 0)][item[0]]
            if n == 0:
                prev = self.occ[slot]
                assert prev is None or prev in self.dead, (name, prev)
                if prev and prev[0] < 2:
                    sv = 'S' + prev[1] + 'AB'[prev[0]]
                    assert self.bgn.get(sv) == 8, (name, sv)
                    if op == 'L': self.e.wait(lg=self.bgt[sv])
                self.occ[slot] = (typ + (2 if op == 'R' else 0), item[0])
        if op == 'S':
            if n == 0:
                prev = self.bayocc.get(BAY[item])
                assert prev is None or (self.bgn.get('R' + prev) == 8 and not self.in_redo), (name, prev)
                self.bayocc[BAY[item]] = item
            assert (typ, item[0]) in self.live, name
        if op == 'L': return self.dma_w(typ, item[0], n) if item[0] in 'QKV' else self.dma_wo(typ, item[0], n)
        return self.park(op, item, n)
    def need(self, kinds, l=None):
        l = self.l if l is None else l
        for k in kinds:
            nm = ('L' if l < 2 else 'R') + k + 'AB'[l & 1]
            assert self.bgn.get(nm) == 8, (self.l, nm)
            if l < 2: self.e.wait(vm=self.bgt[nm])
            else: self.e.wait(lg=self.bgt[nm])
            self.live.add((l, k))
    def free(self, kinds):
        for k in kinds: self.dead.add((self.l, k))
    def bg(self, point):
        for name, cnt in self.sched.get(f'{self.l}.{point}', []):
            for _ in range(cnt):
                n = self.bgn.get(name, 0)
                assert n < 8, name
                self.bgt[name] = self.bg_op(name, n)
                self.bgn[name] = n + 1
        self.seen.add(f'{self.l}.{point}')
    def tag(self, reg, par):
        self.e(f'v_or_b32 {v(reg)}, 1, {v(reg)}' if par else f'v_and_b32 {v(reg)}, -2, {v(reg)}')
    def chk(self, acc, r0, r1, par, first):
        if first: return f'v_and_b32 {v(acc)}, {v(r0)}, {v(r1)}' if par else f'v_or_b32 {v(acc)}, {v(r0)}, {v(r1)}'
        return f'v_bitop3_b32 {v(acc)}, {v(acc)}, {v(r0)}, {v(r1)} bitop3:0x80' if par else f'v_or3_b32 {v(acc)}, {v(acc)}, {v(r0)}, {v(r1)}'
    def chk_end(self, acc, par, name):
        self.e(f'v_and_b32 {v(acc)}, 1, {v(acc)}\nv_cmp_ne_u32 vcc, {par}, {v(acc)}\ns_cbranch_vccnz L_redo_{name}')
        t = Asm()
        t(f'L_redo_{name}:\ns_sub_u32 {s(sBUD)}, {s(sBUD)}, 1\ns_cbranch_scc1 L_fail\ns_waitcnt vmcnt(0) lgkmcnt(0)\ns_nop 15\ns_branch L_top_{name}')
        self.tail.append(t)
    def poll(self, name, sbase, val, pt=None, pre=None):
        e = self.e
        ld = f'buffer_load_dword {v(vTM)}, {v(vFl16)}, {s(sWS,4)}, {s(sbase)} offen sc1'
        e(ld)
        if pt: self.bg(pt)
        if pre: pre()
        e(f'L_{name}:')
        e.wait_all_vm()
        e(f'v_cmp_gt_u32 vcc, {val}, {v(vTM)}\ns_cbranch_vccz L_{name}_ok')
        e.raw(f'{ld}\ns_sub_u32 {s(sBUD)}, {s(sBUD)}, 1\ns_cbranch_scc0 L_{name}\ns_endpgm')
        e(f'L_{name}_ok:')
    def modal(self, name, fn):
        e = self.e
        e(f's_cmp_lg_u32 {s(sMODE)}, 0\ns_cbranch_scc1 L_{name}_safe')
        fn(e, '')
        e(f'L_{name}_join:')
        t = Asm(); t(f'L_{name}_safe:\ns_nop 4'); fn(t, ' sc1'); t(f's_nop 1\ns_branch L_{name}_join')
        self.tail.append(t)

    def x_stats(self):
        e = self.e
        S, Q = vTM, vTM + 1
        for i in range(8):
            e(f'v_dot2_f32_bf16 {v(S)}, {v(vRES+i)}, {s(sONES)}, {v(S) if i else 0}')
        for i in range(8):
            e(f'v_dot2_f32_bf16 {v(Q)}, {v(vRES+i)}, {v(vRES+i)}, {v(Q) if i else 0}')
        e(f'v_permlane32_swap_b32 {v(S)}, {v(Q)}')
        e(f'v_add_f32 {v(S)}, {v(S)}, {v(Q)}')
    def flag(self, e, reg, sflag, m):
        e(f's_mov_b64 exec, 1\nbuffer_store_dword {v(reg)}, off, {s(sWS,4)}, {s(sflag)}{m}\ns_mov_b64 exec, -1')
    def publish_x(self, l):
        quick = l > 0 and self.o.quick
        fr = vTM + 2
        self.e(f'v_mov_b32 {v(fr)}, {l + 2}')
        def st1(e, m):
            if l == 0 and not m: m = self.o.pub0
            e(f'buffer_store_dwordx4 {v(vRES,4)}, {v(vL16)}, {s(sX if self.o.xout else sWS,4)}, {s(sXwr)} offen{m}')
            e(f'buffer_store_dwordx4 {v(vRES+4,4)}, {v(vL16)}, {s(sX if self.o.xout else sWS,4)}, {s(sXwr)} offen offset:1024{m}')
            if quick and not m: self.flag(e, fr, sFXwr, m)
        def st2(e, m):
            e(f'buffer_store_dword {v(vTM)}, {v(vSTst)}, {s(sWS,4)}, {s(sSTwr)} offen{m if (m or l) else self.o.pub0s}')
            if m or not quick:
                e.wait_all_vm()
                self.flag(e, fr, sFXwr, m)
        self.modal(f'px{l}a', st1)
        self.x_stats()
        self.tag(vTM, l & 1)
        self.modal(f'px{l}b', st2)

    def e1_addr(self, l, t):
        if l & 1: return vE1st, vZst
        self.e(f'v_add_u32 {v(t)}, {s(sSKIP)}, {v(vE1st)}\nv_add_u32 {v(t+1)}, {s(sSKIP)}, {v(vZst)}')
        return t, t + 1
    def clear_slot(self, l, m1, ak, az):
        e = self.e
        e(f'v_mov_b32 {v(m1)}, -1\nv_mov_b32 {v(m1+1)}, -1')
        e(f's_add_u32 {s(sT[4])}, {s(sKVwrB)}, {l*0x80000}\ns_add_u32 {s(sT[5])}, {s(sZwrB)}, {l*0x10000}')
        e(f'buffer_store_dwordx2 {v(m1,2)}, {v(ak)}, {s(sWS,4)}, {s(sT[4])} offen sc1')
        return e(f'buffer_store_dword {v(m1)}, {v(az)}, {s(sWS,4)}, {s(sT[5])} offen sc1')
    def dma0(self, P, n, again=False):
        e = self.e
        if n < 4:
            if n == 0 or again:
                e(f's_add_u32 m0, {s(sX0l)}, {(P % 3) * 16384}\ns_xor_b32 {s(sT[0])}, {s(sX0g)}, {P << 7}')
            return e(f'buffer_load_dwordx4 {v(vWPH+n)}, {s(sX,4)}, {s(sT[0])} offen offset:{n*1024} lds')
        if n == 4:
            e(f's_xor_b32 {s(sT[1])}, {s(sW0g)}, {P*4096}')
            e(f's_add_u32 m0, {s(sW0l)}, {P*4096 + SLOT - 2048}')
            e(f's_mul_i32 {s(sT[1])}, {s(sT[1])}, 48')
            return e(f'buffer_load_dwordx4 {v(vWdma)}, {s(sWA,4)}, {s(sT[1])} offen offset:2048 lds')
        assert not again
        e(f's_add_u32 m0, {s(sW0l)}, {P*4096}\ns_add_u32 {s(sT[1])}, {s(sT[1])}, 1024')
        return e(f'buffer_load_dwordx4 {v(vWdma)}, {s(sWA,4)}, {s(sT[1])} offen lds')
    def dma0q(self, P):
        e = self.e
        e(f's_xor_b32 {s(sT[1])}, {s(sW0g)}, {P*4096}')
        e(f's_add_u32 m0, {s(sW0l)}, {P*4096 + 2*SLOT}')
        e(f's_mul_i32 {s(sT[1])}, {s(sT[1])}, 48')
        return e(f'buffer_load_dwordx4 {v(vWdma)}, {s(sWA,4)}, {s(sT[1])} offen lds')

    def touch(self, i):
        e = self.e; T = sT; t16, t4 = vTM + 6, vTM + 7
        if i == 0:
            e(f's_lshl2_add_u32 {s(T[5])}, s2, {s(sW)}\ns_lshr_b32 {s(T[4])}, {s(T[5])}, 1\ns_lshl_b32 {s(T[4])}, {s(T[4])}, 11\ns_lshl_b32 {s(T[5])}, {s(T[5])}, 9\ns_add_u32 {s(T[4])}, {s(T[4])}, {s(T[5])}')
            return e(f'buffer_load_dword a255, {v(t4)}, {s(sWA,4)}, {s(T[4])} offen')
        if i in (1, 5):
            e(f's_lshl2_add_u32 {s(T[5])}, s2, {s(sW)}\ns_lshl_b32 {s(T[5])}, {s(T[5])}, 9')
            return e(f'buffer_load_dword a255, {v(t4)}, {s(sWOA if i == 1 else sWOB,4)}, {s(T[5])} offen')
        if i == 2: return e(f'buffer_load_dword a255, {v(t16)}, {s(sWS,4)}, {s(sOwr)} offen')
        if i == 7:
            e(f's_lshl4_add_u32 {s(T[5])}, {s(sR)}, {s(sG)}\ns_lshl2_add_u32 {s(T[5])}, {s(T[5])}, {s(sW)}\ns_lshl_b32 {s(T[5])}, {s(T[5])}, 11')
            return e(f'buffer_load_dword a255, {v(t16)}, {s(sX,4)}, {s(T[5])} offen')
        if i in (3, 8):
            e(f's_lshl_b32 {s(T[5])}, {s(sW)}, 8\ns_add_u32 {s(T[5])}, {s(T[5])}, s2\ns_min_u32 {s(T[5])}, {s(T[5])}, 767\ns_lshl_b32 {s(T[5])}, {s(T[5])}, 11')
            return e(f'buffer_load_dword a255, {v(t16)}, {s(sWB if i == 3 else sWA,4)}, {s(T[5])} offen')
        if i == 4: return e(f'buffer_load_dword a255, {v(t16)}, {s(sWS,4)}, {s(sXwr)} offen')
        if i == 6: return e(f'buffer_load_dword a255, {v(t4)}, {s(sWS,4)}, {s(sSTwr)} offen')

    def code_touch(self, dst):
        return self.e(f'buffer_load_dword {dst}, {v(vL16)}, {s(sCODE,4)}, {s(sCOFF)} offen')
    def dummy(self, i):
        e = self.e
        if i < 4: return e(f'buffer_store_dwordx4 {v(vSEL,4)}, {v(vL16)}, {s(sWS,4)}, {s((sOwr, sXwr)[i >> 1])} offen offset:{(i & 1)*1024} sc1')
        return e(f'buffer_store_dword {v(vSEL)}, {v(vSTst)}, {s(sWS,4)}, {s(sSTwr)} offen sc1')

    def prologue(self):
        e = self.e
        T = sT
        e('s_cmp_ge_u32 s2, 256\ns_cbranch_scc1 L_fail')
        if self.o.echo and self.o.echo[0] == 'entry': e(f'{self.o.clk} {s(sE0,2)}')
        for srd, off in ((sX, 0), (sWA, 8), (sWS, 72), (sWOA, 16), (sWB, 32), (sWP, 40), (sWOB, 48), (sOUT, 56), (sDBG, 64)):
            e(f's_load_dwordx2 {s(srd,2)}, s[0:1], {off}')
        e(f's_getpc_b64 {s(sCODE,2)}')
        e(f'v_and_b32 {v(vLane)}, 63, v0\nv_lshrrev_b32 {v(vTM)}, 6, v0')
        e(f's_mov_b32 {s(sCODE+2)}, L_code_end-{NAME}_kernel-128\ns_mov_b32 {s(sCODE+3)}, 0x20000')
        e(f'v_readfirstlane_b32 {s(sW)}, {v(vTM)}')
        e(f'v_lshlrev_b32 {v(vL16)}, 4, {v(vLane)}')
        e(f's_lshr_b32 {s(sG)}, s2, 3\ns_lshl2_add_u32 {s(T[0])}, {s(sG)}, {s(sW)}')
        e(f's_and_b32 {s(T[0])}, {s(T[0])}, 63\ns_lshl_b32 {s(T[0])}, {s(T[0])}, 10\ns_min_u32 {s(sCOFF)}, {s(T[0])}, L_code_end-{NAME}_kernel-128-1024')
        self.code_touch('a255')
        e(f'v_lshlrev_b32 {v(vTM+6)}, 7, {v(vLane)}')
        for srd, sz in ((sX, 0x200000), (sWA, 0x180000), (sWS, WS_BYTES)):
            e(f's_mov_b32 {s(srd+2)}, {sz}\ns_mov_b32 {s(srd+3)}, 0x20000')
        t0, t1, t2 = vA1, vA1 + 1, vA1 + 2
        e(f'''
        s_and_b32 {s(sR)}, s2, 7
        s_lshl_b32 {s(sR)}, {s(sR)}, 1
        s_lshr_b32 {s(T[0])}, s2, 7
        s_add_u32 {s(sR)}, {s(sR)}, {s(T[0])}
        s_and_b32 {s(sG)}, {s(sG)}, 15
        s_lshl_b32 {s(sRB)}, {s(sR)}, 2
        s_add_u32 {s(sRB)}, {s(sRB)}, {s(sW)}
        s_and_b32 {s(sROT)}, {s(sG)}, 1
        s_lshl1_add_u32 {s(sROT)}, {s(sROT)}, {s(T[0])}
        s_lshl_b32 {s(sROT)}, {s(sROT)}, 1
        s_lshr_b32 {s(T[1])}, {s(sG)}, 1
        s_xor_b32 {s(sROT)}, {s(sROT)}, {s(T[1])}
        s_xor_b32 {s(sROT)}, {s(sROT)}, s2
        s_and_b32 {s(sROT)}, {s(sROT)}, 7
        s_lshl_b32 {s(sX0g)}, {s(sRB)}, 8
        s_add_u32 {s(sX0g)}, {s(sX0g)}, {s(sROT)}
        s_lshl_b32 {s(sX0g)}, {s(sX0g)}, 7
        s_lshl_b32 {s(sX0l)}, {s(sW)}, 12
        s_add_u32 {s(sX0l)}, {s(sX0l)}, {3*SLOT}
        s_lshl_b32 {s(sW0l)}, {s(sW)}, 10
        s_lshl2_add_u32 {s(sW0g)}, {s(sROT)}, {s(sW)}
        s_lshl_b32 {s(sW0g)}, {s(sW0g)}, 10
        s_lshl_b32 {s(T[2])}, {s(sG)}, 6
        v_lshrrev_b32 {v(vWdma)}, 2, {v(vLane)}
        v_mul_u32_u24 {v(vWdma)}, 3072, {v(vWdma)}
        v_and_b32 {v(vTM+5)}, 3, {v(vLane)}
        v_lshl_add_u32 {v(vWdma)}, {v(vTM+5)}, 4, {v(vWdma)}
        v_add_u32 {v(vWdma)}, {s(T[2])}, {v(vWdma)}
        v_lshrrev_b32 {v(vTM+4)}, 4, {v(vLane)}
        v_and_b32 {v(t2)}, 7, {v(vLane)}
        v_xor_b32 {v(t1)}, {v(t2)}, {v(vTM+4)}
        v_lshlrev_b32 {v(t1)}, 4, {v(t1)}
        v_lshrrev_b32 {v(t0)}, 3, {v(vLane)}
        v_lshl_add_u32 {v(vWPH)}, {v(t0)}, 10, {v(t1)}
        v_xor_b32 {v(vWPH+1)}, 64, {v(vWPH)}
        v_add_u32 {v(vWPH+1)}, {7168}, {v(vWPH+1)}
        v_add_u32 {v(vWPH+2)}, {2*7168}, {v(vWPH)}
        v_add_u32 {v(vWPH+3)}, {2*7168}, {v(vWPH+1)}
        v_and_b32 {v(vTM)}, 31, {v(vLane)}
        v_lshrrev_b32 {v(vTM+1)}, 5, {v(vLane)}
        v_lshlrev_b32 {v(vL4)}, 2, {v(vLane)}
        ''')
        e(f'''
        s_lshl_b32 {s(T[3])}, {s(sG)}, 2
        s_add_u32 {s(T[3])}, {s(T[3])}, {s(sW)}
        s_lshl_b32 {s(sKVrdB)}, {s(T[3])}, 13
        s_add_u32 {s(sKVrdB)}, {s(sKVrdB)}, {KVP}
        s_lshl_b32 {s(sZrdB)}, {s(T[3])}, 10
        s_add_u32 {s(sZrdB)}, {s(sZrdB)}, {ZP}
        s_lshl_b32 {s(T[4])}, {s(sR)}, 9
        s_add_u32 {s(sKVwrB)}, {s(sKVrdB)}, {s(T[4])}
        s_lshl_b32 {s(T[5])}, {s(sR)}, 6
        s_add_u32 {s(sZwrB)}, {s(sZrdB)}, {s(T[5])}
        v_and_b32 {v(vFl16)}, 60, {v(vL4)}
        v_lshlrev_b32 {v(t0)}, 2, {v(vFl16)}
        v_lshl_add_u32 {v(t0)}, {v(vTM+1)}, 8, {v(t0)}
        v_and_b32 {v(t1)}, 1, {v(vTM+4)}
        v_lshl_add_u32 {v(vE1st)}, {v(t1)}, 3, {v(t0)}
        v_lshl_add_u32 {v(vZst)}, {v(vTM+4)}, 26, {v(vFl16)}
        s_lshr_b32 {s(sSKIP)}, {s(sR)}, 3
        s_lshr_b32 {s(T[1])}, {s(sW)}, 1
        s_xor_b32 {s(sSKIP)}, {s(sSKIP)}, {s(T[1])}
        s_lshl_b32 {s(sSKIP)}, {s(sSKIP)}, 28
        v_mov_b32 {v(vA0+4)}, 0
        s_lshr_b32 {s(sFOwr)}, {s(sG)}, 1
        s_lshl_b32 {s(sFOwr)}, {s(sFOwr)}, 13
        s_add_u32 {s(sFOwr)}, {s(sFOwr)}, {s(T[4])}
        s_and_b32 {s(sFOrd)}, {s(sG)}, 1
        s_lshl_b32 {s(sFOrd)}, {s(sFOrd)}, 8
        s_add_u32 {s(sFOwr)}, {s(sFOwr)}, {s(sFOrd)}
        ''')
        e(f'v_lshrrev_b32 {v(t0)}, 2, {v(vLane)}\nv_lshl_add_u32 {v(vTM+7)}, {v(t0)}, 26, {v(vTM+6)}\nv_lshl_add_u32 {v(vTM+6)}, {v(vTM+4)}, 26, {v(vTM+6)}')
        for srd, sz in ((sWOA, 0x80000), (sWB, 0x180000), (sWOB, 0x80000)):
            e(f's_mov_b32 {s(srd+2)}, {sz}\ns_mov_b32 {s(srd+3)}, 0x20000')
        e('s_waitcnt lgkmcnt(0)')
        if self.o.stamps:
            e(f's_memrealtime {s(sTS,2)}'); e.wait_all_lg()
            e(f'v_writelane_b32 {v(vSTAMP)}, {s(sTS)}, 62')
        self.stamp('start')
        self.ct = [None] * 8
        for c in self.o.t0: self.touch(int(c))
        for n in range(6): self.ct[0] = self.dma0(0, n)
        for c in self.o.t1: self.touch(int(c))
        if self.o.q0 > 0: self.dma0q(0)
        for n in range(self.o.c1early): self.ct[1] = self.dma0(1, n)
        e(f's_and_b32 {s(sFOrd)}, {s(T[3])}, 0x33\ns_cbranch_scc1 L_noclr')
        e.raw(f'buffer_store_dword {v(vA0+4)}, {v(vL4)}, {s(sWS,4)}, {s(sFOwr)} offen sc1')
        e('L_noclr:')
        self.clear_slot(0, vM1, *self.e1_addr(0, vA0 + 6))
        for srd, sz in ((sWP, 0x4000), (sOUT, 0x200000), (sDBG, 256)):
            e(f's_mov_b32 {s(srd+2)}, {sz}\ns_mov_b32 {s(srd+3)}, 0x20000')
        e(f'''
        s_and_b32 {s(T[0])}, {s(sW)}, 1
        s_lshr_b32 {s(T[1])}, {s(sW)}, 1
        s_lshl_b32 {s(sRBO)}, {s(sR)}, 2
        s_lshr_b32 {s(T[4])}, {s(sG)}, 3
        s_lshl_b32 {s(T[4])}, {s(T[4])}, 1
        s_add_u32 {s(T[4])}, {s(T[4])}, {s(T[0])}
        s_add_u32 {s(sRBO)}, {s(sRBO)}, {s(T[4])}
        s_lshl_b32 {s(T[3])}, {s(T[4])}, 12
        s_add_u32 {s(T[3])}, {s(T[3])}, {3*SLOT}
        s_and_b32 {s(sJ)}, {s(sG)}, 7
        s_xor_b32 {s(sRESP)}, {s(sJ)}, {s(sROT)}
        s_lshl_b32 {s(sJ)}, {s(sJ)}, 1
        s_add_u32 {s(sJ)}, {s(sJ)}, {s(T[1])}
        s_lshl_b32 {s(sXO)}, {s(sRBO)}, 15
        s_lshl_b32 {s(T[2])}, {s(sJ)}, 6
        s_add_u32 {s(sXO)}, {s(sXO)}, {s(T[2])}
        s_and_b32 {s(T[4])}, {s(sG)}, 1
        s_and_b32 {s(T[5])}, {s(sR)}, 1
        s_lshl1_add_u32 {s(T[4])}, {s(T[4])}, {s(T[5])}
        s_lshl3_add_u32 {s(T[4])}, {s(T[4])}, {s(sW)}
        s_lshl_b32 {s(sRw)}, {s(T[4])}, 10
        s_lshr_b32 {s(T[4])}, {s(sG)}, 3
        s_lshl1_add_u32 {s(T[4])}, {s(T[4])}, {s(T[5])}
        s_lshl3_add_u32 {s(T[4])}, {s(T[4])}, {s(sW)}
        s_lshl_b32 {s(sRo)}, {s(T[4])}, 10
        s_lshl_b32 {s(T[4])}, {s(T[1])}, 12
        s_add_u32 {s(sKVrdA)}, {s(sKVrdB)}, {s(T[4])}
        s_lshl_b32 {s(T[4])}, {s(T[1])}, 9
        s_add_u32 {s(sZrdA)}, {s(sZrdB)}, {s(T[4])}
        s_lshl_b32 {s(T[4])}, {s(sRB)}, 15
        s_add_u32 {s(sXrd)}, {s(T[4])}, {XB}
        s_lshl_b32 {s(T[5])}, {s(sG)}, 11
        s_add_u32 {s(sOwr)}, {s(T[4])}, {s(T[5])}
        s_add_u32 {s(sOwr)}, {s(sOwr)}, {OB}
        s_lshl_b32 {s(T[4])}, {s(sRBO)}, 15
        s_lshl_b32 {s(T[5])}, {s(sJ)}, 11
        s_add_u32 {s(sXwr)}, {s(T[4])}, {s(T[5])}
        s_add_u32 {s(sXwr)}, {s(sXwr)}, {XB}
        s_lshl_b32 {s(T[5])}, {s(T[1])}, 14
        s_add_u32 {s(sOrd)}, {s(T[4])}, {s(T[5])}
        s_add_u32 {s(sOrd)}, {s(sOrd)}, {OB}
        s_lshl_b32 {s(sSTrd)}, {s(sRB)}, 12
        s_add_u32 {s(sSTrd)}, {s(sSTrd)}, {ST}
        s_lshl_b32 {s(sSTwr)}, {s(sRBO)}, 12
        s_and_b32 {s(T[4])}, {s(sG)}, 7
        s_lshl_b32 {s(T[5])}, {s(T[4])}, 9
        s_add_u32 {s(sSTwr)}, {s(sSTwr)}, {s(T[5])}
        s_lshl_b32 {s(T[5])}, {s(T[1])}, 3
        s_add_u32 {s(sSTwr)}, {s(sSTwr)}, {s(T[5])}
        s_add_u32 {s(sSTwr)}, {s(sSTwr)}, {ST}
        s_lshl_b32 {s(T[2])}, {s(T[4])}, 7
        s_lshl_b32 {s(sFXrd)}, {s(sRB)}, 7
        s_lshl_b32 {s(T[5])}, {s(sG)}, 2
        s_add_u32 {s(sFOwr)}, {s(sFXrd)}, {s(T[5])}
        s_add_u32 {s(sFXrd)}, {s(sFXrd)}, {FLG_X}
        s_lshl_b32 {s(sFOrd)}, {s(sRBO)}, 7
        s_lshl_b32 {s(T[5])}, {s(sJ)}, 2
        s_add_u32 {s(sFXwr)}, {s(sFOrd)}, {s(T[5])}
        s_add_u32 {s(sFXwr)}, {s(sFXwr)}, {FLG_X}
        s_mov_b32 {s(sONES)}, 0x3f803f80
        s_mov_b32 {s(sPERM)}, 0x07060302
        s_mov_b32 {s(sHI)}, 0xffff0000
        s_mov_b32 {s(sL2E)}, 0x3fb8aa3b
        s_mov_b32 {s(sL2E+1)}, 0x3fb8aa3b
        s_mov_b32 {s(sEPS6)}, 0x358637bd
        s_mov_b32 {s(sEPS6+1)}, 0x358637bd
        s_getreg_b32 {s(sXCC)}, hwreg(HW_REG_XCC_ID, 0, 3)
        s_lshl_b32 {s(sXCC)}, {s(sXCC)}, 2
        s_mov_b32 {s(sBUD)}, 100000
        ''')
        e(f'''
        v_lshlrev_b32 {v(vSTst)}, 4, {v(vTM)}
        v_lshl_add_u32 {v(vSTst)}, {v(vTM+1)}, 2, {v(vSTst)}
        v_lshrrev_b32 {v(t0)}, 3, {v(vLane)}
        v_and_b32 {v(t1)}, 1, {v(vTM+4)}
        v_lshlrev_b32 {v(t1)}, 2, {v(t1)}
        v_xor_b32 {v(t1)}, {v(t1)}, {v(t2)}
        v_lshlrev_b32 {v(t1)}, 4, {v(t1)}
        v_lshl_add_u32 {v(vWOdma)}, {v(t0)}, 10, {v(t1)}
        v_add_u32 {v(vWOdma)}, {s(T[2])}, {v(vWOdma)}
        ''')
        e(f'''
        v_bfe_u32 {v(t0)}, {v(vLane)}, 2, 2
        v_lshl_add_u32 {v(t0)}, {v(vTM+1)}, 4, {v(t0)}
        v_lshlrev_b32 {v(t0)}, 6, {v(t0)}
        v_and_b32 {v(t1)}, 1, {v(vTM+4)}
        v_lshl_add_u32 {v(t0)}, {v(t1)}, 5, {v(t0)}
        v_and_b32 {v(t1)}, 1, {v(vLane)}
        v_lshl_add_u32 {v(t0)}, {v(t1)}, 4, {v(t0)}
        v_bfe_u32 {v(t1)}, {v(vLane)}, 1, 1
        v_lshl_add_u32 {v(t0)}, {v(t1)}, 3, {v(t0)}
        v_bfe_u32 {v(t1)}, {v(vLane)}, 1, 3
        v_lshlrev_b32 {v(t2)}, 1, {v(vTM+1)}
        v_xor_b32 {v(t1)}, {v(t1)}, {v(t2)}
        v_lshlrev_b32 {v(t1)}, 4, {v(t1)}
        v_lshl_add_u32 {v(t1)}, {v(vTM)}, 7, {v(t1)}
        s_lshl_b32 {s(T[4])}, {s(T[1])}, 6
        v_xor_b32 {v(vA0+5)}, {s(T[4])}, {v(t1)}
        v_add_u32 {v(vA0+5)}, {s(T[3])}, {v(vA0+5)}
        v_add_u32 {v(t1)}, {s(sX0l)}, {v(t1)}
        ''')
        for q in range(4):
            e(f'''
            s_xor_b32 {s(T[4])}, {s(sW)}, {q}
            s_lshl_b32 {s(T[5])}, {s(T[4])}, 10
            v_add_u32 {v(vXq+q)}, {s(T[5])}, {v(vL16)}
            s_lshr_b32 {s(T[5])}, {s(T[4])}, 1
            s_lshl_b32 {s(T[5])}, {s(T[5])}, 2
            s_and_b32 {s(T[4])}, {s(T[4])}, 1
            s_add_u32 {s(T[4])}, {s(T[4])}, {s(T[5])}
            s_lshl_b32 {s(T[5])}, {s(T[4])}, 9
            v_add_u32 {v(vWtr+q)}, {s(T[5])}, {v(t0)}
            s_lshl_b32 {s(T[5])}, {s(T[4])}, 4
            v_xor_b32 {v(vWPH+4+q)}, {s(T[5])}, {v(t1)}
            ''')
        e(f'''
        s_lshl_b32 {s(T[4])}, {s(sW)}, 9
        s_add_u32 {s(T[4])}, {s(T[4])}, {L_PK}
        v_lshl_add_u32 {v(t0)}, {v(vTM)}, 4, {s(T[4])}
        v_mul_u32_u24 {v(t1)}, {PL}, {v(vTM+1)}
        v_add_u32 {v(vPKwA)}, {v(t0)}, {v(t1)}
        v_lshl_add_u32 {v(vPKwB)}, {v(t1)}, 2, {v(t0)}
        v_bfe_u32 {v(t0)}, {v(vLane)}, 1, 1
        v_mul_u32_u24 {v(t0)}, {PL}, {v(t0)}
        v_lshrrev_b32 {v(t1)}, 2, {v(vLane)}
        v_lshl_add_u32 {v(t0)}, {v(t1)}, 4, {v(t0)}
        v_and_b32 {v(t1)}, 1, {v(vLane)}
        v_lshl_add_u32 {v(t0)}, {v(t1)}, 3, {v(t0)}
        s_mul_i32 {s(T[4])}, {s(sW)}, {2*PL}
        s_add_u32 {s(T[4])}, {s(T[4])}, {L_PK}
        v_add_u32 {v(vPKrB)}, {s(T[4])}, {v(t0)}
        s_mul_i32 {s(T[4])}, {s(T[0])}, {2*PL}
        s_add_u32 {s(T[4])}, {s(T[4])}, {L_PK}
        v_add_u32 {v(vPKrA)}, {s(T[4])}, {v(t0)}
        ''')
        e(f'''
        s_mul_i32 {s(T[4])}, {s(sW)}, 544
        s_add_u32 {s(T[4])}, {s(T[4])}, {L_KV}
        v_lshl_add_u32 {v(t0)}, {v(vFl16)}, 3, {s(T[4])}
        v_lshl_add_u32 {v(vKVw)}, {v(vTM+4)}, 3, {v(t0)}
        v_lshrrev_b32 {v(t0)}, 1, {v(vFl16)}
        v_add_u32 {v(vZw)}, {s(T[4])}, {v(t0)}
        v_bfe_u32 {v(t0)}, {v(vLane)}, 2, 1
        v_lshl_add_u32 {v(t0)}, {v(t0)}, 3, {v(vTM+5)}
        v_bfe_u32 {v(t1)}, {v(vLane)}, 3, 1
        v_lshl_add_u32 {v(t0)}, {v(t1)}, 2, {v(t0)}
        v_cmp_gt_u32 vcc, 16, {v(vTM)}
        v_cndmask_b32 {v(t0)}, 16, {v(t0)}, vcc
        v_lshlrev_b32 {v(t0)}, 5, {v(t0)}
        v_add_u32 {v(t0)}, {L_KV}, {v(t0)}
        v_lshl_add_u32 {v(vKVrA)}, {v(vTM+1)}, 4, {v(t0)}
        v_mul_u32_u24 {v(t1)}, 1088, {v(vTM+1)}
        v_add_u32 {v(vKVrB)}, {v(t0)}, {v(t1)}
        s_lshl_b32 {s(T[4])}, {s(sW)}, 12
        s_add_u32 {s(T[4])}, {s(T[4])}, {L_EX}
        v_add_u32 {v(vEXw)}, {s(T[4])}, {v(vL16)}
        ''')
        e(f'''
        v_bfe_u32 {v(t0)}, {v(vLane)}, 2, 2
        v_lshl_add_u32 {v(t0)}, {v(vTM+1)}, 3, {v(t0)}
        v_lshlrev_b32 {v(t0)}, 7, {v(t0)}
        v_bfe_u32 {v(t1)}, {v(vLane)}, 3, 1
        v_xor_b32 {v(t1)}, {s(T[1])}, {v(t1)}
        v_lshl_add_u32 {v(t0)}, {v(t1)}, 6, {v(t0)}
        v_and_b32 {v(t1)}, 1, {v(vLane)}
        v_lshl_add_u32 {v(t0)}, {v(t1)}, 5, {v(t0)}
        v_bfe_u32 {v(t1)}, {v(vLane)}, 4, 1
        v_lshl_add_u32 {v(t0)}, {v(t1)}, 4, {v(t0)}
        v_bfe_u32 {v(t1)}, {v(vLane)}, 1, 1
        v_lshl_add_u32 {v(vWO)}, {v(t1)}, 3, {v(t0)}
        ''')
        e(f'''
        v_and_b32 {v(t0)}, 1, {v(vLane)}
        v_lshlrev_b32 {v(t0)}, 4, {v(t0)}
        v_mov_b32 {v(t1)}, 0x3f80
        v_lshlrev_b32 {v(t0)}, {v(t0)}, {v(t1)}
        v_lshrrev_b32 {v(t1)}, 1, {v(vLane)}
        v_xor_b32 {v(t1)}, {v(t1)}, {v(vLane)}
        v_and_b32 {v(t1)}, 8, {v(t1)}
        v_bfe_u32 {v(t2)}, {v(vLane)}, 1, 2
        v_or_b32 {v(t1)}, {v(t1)}, {v(t2)}
        ''')
        for d in range(4):
            e(f'v_cmp_eq_u32 vcc, {d}, {v(t1)}\nv_cndmask_b32 {v(vSEL+d)}, 0, {v(t0)}, vcc')
        e(f'v_add_u32 {v(vPK2)}, {2*SLOT}, {v(vXq)}')
        e(f'v_mov_b32 {v(vTM+4)}, {v(vA0+5)}\nv_xor_b32 {v(vTM+5)}, 16, {v(vA0+5)}')
        for n in range(self.o.c1early, 6): self.ct[1] = self.dma0(1, n, again=(n == self.o.c1early))
        if self.o.q0 > 1: self.dma0q(1)
        if self.o.dummy < 0:
            for i in range(5): self.dummy(i)
        for c in self.o.t2: self.touch(int(c))
        self.stamp('setup')

    def par_sel(self, dst):
        e = self.e
        e(f's_mov_b32 vcc_lo, 0xf0f00f0f\ns_mov_b32 vcc_hi, 0xf0f00f0f\nv_mov_b32 {v(dst+1)}, {s(sONES)}')
        e(f'v_cndmask_b32 {v(dst)}, 0, {v(dst+1)}, vcc')
        for i in (1, 2, 3): e(f'v_mov_b32 {v(dst+i)}, {v(dst)}')
    def rowsum(self, acc, sel, frag, first):
        self.e(f'v_mfma_f32_16x16x32_bf16 {acc}, {v(sel,4)}, {v(frag,4)}, {0 if first else acc}')

    def kv_gemm0(self):
        e = self.e
        sel = vCS + 8
        self.par_sel(sel)
        aS, aK, aV = a(0, 4), a(4, 4), a(8, 4)
        wt = [None] * 32; xt = [None] * 32
        dl = []
        def dma(n):
            for _ in range(n):
                if dl:
                    P, i = dl.pop(0)
                    if P < 8: self.ct[P] = self.dma0(P, i)
                    elif P == 8: self.bgt['LQA'] = self.dma0q(i); self.bgn['LQA'] = i + 1
                    elif P == 9: self.touch(i)
                    elif P == 11: self.dummy(i)
                    elif P == 12: self.code_touch('a255')
                    elif P == 10: self.clr1 = self.clear_slot(1, vM1, vE1st, vZst)
        cK, cV = vCS + 2, vCS + 4
        sb = vWPH
        q0, q1 = vTM, vTM + 1
        dq = []
        sops = [f'v_accvgpr_read_b32 {v(sb)}, a0', f'v_add_f32 {v(sb+1)}, {v(q0)}, {v(q1)}', f'v_mov_b32 {v(sb+3)}, {v(sb+1)}',
                f'v_permlane32_swap_b32 {v(sb+1)}, {v(sb+3)}', f'v_add_f32 {v(sb+1)}, {v(sb+1)}, {v(sb+3)}'] + self.stats_tail(sb)
        def pop(n):
            for _ in range(n):
                if dq: e(dq.pop(0))
                elif k >= 27 and sops: e(sops.pop(0))
        nq = self.o.q0
        touches = {int(x[0]): [int(c) for c in x[1:]] for x in self.o.touch.split(',') if x}
        for k in range(-2, 32):
            b = vWB + (k % 3) * 8
            nb = vWB + ((k + 2) % 3) * 8
            fr = [k + 1] if -1 <= k < 27 else ([28, 29, 30, 31] if k == 27 else [])
            bound = (k + 2) % 4 == 0 and k + 2 < 32
            if k >= 0:
                e.wait(lg=max(wt[k], xt[k]))
                if k % 4 == 0:
                    self.rowsum(aK, sel, b, k == 0); self.rowsum(aV, sel, b + 4, k == 0)
                e(f'v_mfma_f32_32x32x16_bf16 {v(vA0,16)}, {v(b,4)}, {v(vXF+4*k,4)}, {v(vA0,16) if k else 0}')
            if bound:
                P = (k + 2) >> 2
                dma(99)
                e.wait(vm=self.ct[P])
                e('s_barrier')
                if P == 0 or self.o.fine: self.stamp(f'chunk{P}')
                for q in range(4):
                    xt[4*P+q] = e(f'ds_read_b128 {v(vXF+16*P+4*q,4)}, {v(vWPH+4+q)} offset:{(P%3)*16384}')
                if P + 2 < 8: dl += [(P + 2, i) for i in range(6)]
                if P == self.o.clrp: dl += [(10, 0)]
                for _ in range(int(self.o.qs[P])):
                    dl += [(8, nq)]; nq += 1
                if P == 5 and self.o.ctouch & 4: dl += [(12, 0)]
                dl += [(9, i) for i in touches.get(P, [])]
                if P == 6 and self.o.tq: dl[1:1] = [(9, int(c)) for c in self.o.tq]
                if self.o.dummy == 7 and P == 7: dl += [(11, i) for i in range(4)]
                elif self.o.dummy > 0 and 0 <= P - self.o.dummy < 3: dl += [(11, i) for i in ((0, 1), (2, 3), (4,))[P - self.o.dummy]]
            else:
                dma(1)
            if k + 2 < 32: self.tr_w(nb, k + 2, 0)
            if k == 28:
                dma(99)
                cw = self.cs_write(['a4', 'a8'], [1, 2])
            pop(2 if k < 28 else 5)
            for f in fr:
                e.wait(lg=xt[f])
                if self.o.nomini & 1 and f: continue
                self.rowsum(aS, sel, vXF + 4*f, f == 0)
                if self.o.nomini & 2 and f: continue
                dq += [f'v_dot2_f32_bf16 {v((q0, q1)[i&1])}, {v(vXF+4*f+i)}, {v(vXF+4*f+i)}, {v((q0, q1)[i&1]) if (f or i > 1) else 0}' for i in range(4)]
                if k == 27: pop(2)
            if k >= 0:
                e(f'v_mfma_f32_32x32x16_bf16 {v(vA1,16)}, {v(b+4,4)}, {v(vXF+4*k,4)}, {v(vA1,16) if k else 0}')
            if k + 2 < 32: wt[k + 2] = self.tr_w(nb + 4, k + 2, SLOT)
            if bound:
                e(f's_cmp_lg_u32 {s(sRESP)}, {P}\ns_cbranch_scc1 L_nores{P}')
                e.raw(f'ds_read_b128 {v(vRES,4)}, {v(vTM+4)} offset:{(P%3)*16384}\nds_read_b128 {v(vRES+4,4)}, {v(vTM+5)} offset:{(P%3)*16384}')
                e(f'L_nores{P}:')
            dma(1)
            pop(2 if k < 27 else 5)
            if k == 4 * self.o.atp - 1:
                e(f'''
                s_cmp_lg_u32 {s(sW)}, 0
                s_cbranch_scc1 L_noat
                s_lshr_b32 {s(sT[5])}, {s(sG)}, 3
                s_lshl1_add_u32 {s(sT[5])}, {s(sR)}, {s(sT[5])}
                s_lshl_b32 {s(sT[5])}, {s(sT[5])}, 2
                s_lshl_b32 {s(sAT)}, 1, {s(sXCC)}
                s_atomic_add {s(sAT)}, {s(sDBG,2)}, {s(sT[5])}
                L_noat:
                ''')
            if k == 28:
                e.wait(lg=cw); e('s_barrier')
                if self.o.fine: self.stamp('g28')
                r1 = self.cs_read(1, vWPH + 4)
                r2 = self.cs_read(2, vCS + 8)
            if k >= 29: self.bg(f'kv{k}')
            if k == 30:
                assert not dq and not sops
                e.wait(lg=r2)
                sops += self.cs_pack_ops(vWPH + 4, cK) + self.cs_pack_ops(vCS + 8, cV)
                pop(4)
        pop(99)
        e(f'v_mfma_f32_32x32x8_bf16 {v(vA0,16)}, {v(cK,2)}, {v(vMF,2)}, {v(vA0,16)}')
        e(f'v_mfma_f32_32x32x8_bf16 {v(vA1,16)}, {v(cV,2)}, {v(vMF,2)}, {v(vA1,16)}')
        self.stamp('L0.kvgemm')

    def cs_write(self, acc, blk):
        e = self.e
        t = vTM + 6
        e(f'v_and_b32 {v(t)}, 0x1f0, {v(vL16)}\ns_lshl_b32 {s(sT[3])}, {s(sW)}, 2\nv_add_u32 {v(t)}, {L_CS}, {v(t)}\nv_add_u32 {v(t+1)}, {s(sT[3])}, {v(t)}')
        tag = None
        for ac, b in zip(acc, blk):
            tag = e(f'ds_write_b32 {v(t+1)}, {ac} offset:{b*512}')
        return tag
    def cs_read(self, blk, dst):
        return self.e(f'ds_read_b128 {v(dst,4)}, {v(vTM+6)} offset:{blk*512}')
    def cs_pack_ops(self, src, out):
        return [f'v_pk_add_f32 {v(src,2)}, {v(src,2)}, {v(src+2,2)}',
                f'v_add_f32 {v(src)}, {v(src)}, {v(src+1)}',
                f'v_and_b32 {v(src+1)}, {s(sHI)}, {v(src)}',
                f'v_sub_f32 {v(src+1)}, {v(src)}, {v(src+1)}',
                f'v_perm_b32 {v(out)}, {v(src+1)}, {v(src)}, {s(sPERM)}',
                f'v_and_b32 {v(src+2)}, {s(sHI)}, {v(src+1)}',
                f'v_sub_f32 {v(src+2)}, {v(src+1)}, {v(src+2)}',
                f'v_lshrrev_b32 {v(out+1)}, 16, {v(src+2)}']
    def cs_pack(self, src, out):
        for op in self.cs_pack_ops(src, out): self.e(op)

    def stats_ops(self, chk, par):
        b = vXF + 112; t = vTM
        p1 = []
        for i in range(4):
            if chk is not None: p1 += [self.chk(chk, b+4*i, b+4*i+1, par, False), self.chk(chk, b+4*i+2, b+4*i+3, par, False)]
            p1.append(f'v_pk_add_f32 {v(b+4*i,2)}, {v(b+4*i,2)}, {v(b+4*i+2,2)}')
        p1 += [f'v_pk_add_f32 {v(b,2)}, {v(b,2)}, {v(b+4,2)}', f'v_pk_add_f32 {v(b+8,2)}, {v(b+8,2)}, {v(b+12,2)}',
               f'v_pk_add_f32 {v(t,2)}, {v(b,2)}, {v(b+8,2)}']
        p2 = [f'v_mov_b32 {v(t+2)}, {v(t)}', f'v_mov_b32 {v(t+3)}, {v(t+1)}',
              f'v_permlane32_swap_b32 {v(t)}, {v(t+2)}', f'v_permlane32_swap_b32 {v(t+1)}, {v(t+3)}',
              f'v_pk_add_f32 {v(t,2)}, {v(t,2)}, {v(t+2,2)}']
        return p1, p2 + self.stats_tail(t)
    def stats_tail(self, b):
        ops = [
                f'v_mul_f32 {v(b)}, 0xbb000000, {v(b)}',
                f'v_mul_f32 {v(b+1)}, 0x3b000000, {v(b+1)}',
                f'v_fma_f32 {v(b+1)}, -{v(b)}, {v(b)}, {v(b+1)}',
                f'v_max_f32 {v(b+1)}, 0, {v(b+1)}',
                f'v_add_f32 {v(b+1)}, 0x3727c5ac, {v(b+1)}',
                f'v_rsq_f32 {v(vRS)}, {v(b+1)}',
                f'v_and_b32 {v(b+2)}, {s(sHI)}, {v(b)}',
                f'v_sub_f32 {v(b+2)}, {v(b)}, {v(b+2)}',
                f's_mov_b64 vcc, 0xffffffff',
                f'v_mul_f32 {v(vRS+1)}, {s(sL2E)}, {v(vRS)}',
                f'v_cndmask_b32 {v(b)}, {v(b+2)}, {v(b)}, vcc',
                f'v_perm_b32 {v(vMF)}, {v(b)}, {v(b)}, {s(sPERM)}',
                f'v_lshrrev_b32 {v(vMF+1)}, 16, {v(b)}']
        return ops

    def tr_w(self, dst, ks, extra):
        e = self.e
        off = (ks >> 2) * 4096 + extra
        e(f'ds_read_b64_tr_b16 {v(dst,2)}, {v(vWtr + (ks&3))} offset:{off}')
        return e(f'ds_read_b64_tr_b16 {v(dst+2,2)}, {v(vWtr + (ks&3))} offset:{off+256}')

    def kv_gemm(self, l):
        e = self.e; typ = l & 1; first = l < 2
        chk = vTM + 4 if (l > 1 and self.o.quick) else None
        par = (l - 1) & 1
        if chk: e(f'L_top_x{l}:')
        xt = [None] * 32
        def xload(k):
            if k % 4 == 0: e(f's_xor_b32 {s(sT[0])}, {s(sT[2])}, {k*1024}')
            xt[k] = e(f'buffer_load_dwordx4 {v(vXF+4*k,4)}, {v(vXq+(k&3))}, {s(sX if self.o.xout else sWS,4)}, {s(sT[0])} offen sc1')
        PRE = self.o.xpre
        for k in range(PRE): xload(k)
        wt = [None] * 32
        for k in range(2):
            self.tr_w(vWB + k*8, k, 0)
            wt[k] = self.tr_w(vWB + k*8 + 4, k, SLOT)
        self.bg('kvpre')
        stt = None
        p1, p2 = self.stats_ops(chk, par)
        aK, aV = a(248, 4), a(252, 4)
        sel = vCS + 8
        if first: self.par_sel(sel)
        cK, cV = vCS + typ*6 + 2, vCS + typ*6 + 4
        SL = self.o.stat_at; S0 = SL + 4 + PRE; SE = 28 - PRE
        def pop(n):
            for _ in range(n):
                if p1: e(p1.pop(0))
                elif p2: e(p2.pop(0))
        corr = first
        for k in range(32):
            b = vWB + (k % 3) * 8
            nb = vWB + ((k + 2) % 3) * 8
            e.wait(vm=xt[k], lg=wt[k])
            if k == 0: self.stamp(f'L{l}.x0')
            if first and k % 4 == 0:
                self.rowsum(aK, sel, b, k == 0); self.rowsum(aV, sel, b + 4, k == 0)
            e(f'v_mfma_f32_32x32x16_bf16 {v(vA0,16)}, {v(b,4)}, {v(vXF+4*k,4)}, {v(vA0,16) if k else 0}')
            if k == SE:
                while p1: pop(1)
            if k + PRE < 32: xload(k + PRE)
            if k + 2 < 32: self.tr_w(nb, k + 2, 0)
            if k >= S0:
                if k == S0: e.wait(vm=stt)
                pop(2 if p1 else 1)
            if first and k == 28: cw = self.cs_write(['a248', 'a252'], [1, 2])
            self.bg(f'kv{k}')
            e(f'v_mfma_f32_32x32x16_bf16 {v(vA1,16)}, {v(b+4,4)}, {v(vXF+4*k,4)}, {v(vA1,16) if k else 0}')
            if SL <= k < SL + 4:
                stt = e(f'buffer_load_dwordx4 {v(vXF+112+4*(k-SL),4)}, {v(vL16)}, {s(sWS,4)}, {s(sSTrd)} offen offset:{(k-SL)*1024} sc1')
            if k + 2 < 32: wt[k + 2] = self.tr_w(nb + 4, k + 2, SLOT)
            if chk and k % 2 == 1: e(self.chk(chk, vXF+4*k-4, vXF+4*k, par, k == 1))
            self.bg(f'kv{k}b')
            if not corr and not p1 and not p2:
                corr = True
                e(f'v_mfma_f32_32x32x8_bf16 {v(vA0,16)}, {v(cK,2)}, {v(vMF,2)}, {v(vA0,16)}')
                e(f'v_mfma_f32_32x32x8_bf16 {v(vA1,16)}, {v(cV,2)}, {v(vMF,2)}, {v(vA1,16)}')
            if k >= S0: pop(2)
            if first and k == 28:
                assert not p1 and not p2
                e.wait(lg=cw); e('s_barrier')
                r1 = self.cs_read(1, vTM)
            if first and k == 29: r2 = self.cs_read(2, vWB + 16)
            if first and k == 29:
                e.wait(lg=r1); p2 += self.cs_pack_ops(vTM, cK); pop(2)
            if first and k == 31:
                e.wait(lg=r2); p2 += self.cs_pack_ops(vWB + 16, cV)
        assert corr
        if chk: self.chk_end(chk, par, f'x{l}')
        if first:
            pop(len(p2) - 8)
            e(f'v_mfma_f32_32x32x8_bf16 {v(vA0,16)}, {v(cK,2)}, {v(vMF,2)}, {v(vA0,16)}')
            pop(8)
            e(f'v_mfma_f32_32x32x8_bf16 {v(vA1,16)}, {v(cV,2)}, {v(vMF,2)}, {v(vA1,16)}')
        self.bg('kvend')
        self.stamp(f'L{l}.kvgemm')

    def scale_pack(self, acc, out):
        e = self.e
        for i in range(8):
            e(f'v_pk_mul_f32 {v(acc+2*i,2)}, {v(acc+2*i,2)}, {v(vRS,2)} op_sel_hi:[1,0]')
        for i in range(8):
            e(f'v_cvt_pk_bf16_f32 {v(out+i)}, {v(acc+2*i)}, {v(acc+2*i+1)}')
    def phi_a(self, acc, tmp, out, tag, after=None):
        e = self.e
        for hh in range(2):
            r = range(4*hh, 4*hh+4)
            for i in r: e(f'v_pk_mul_f32 {v(tmp+2*i,2)}, {v(acc+2*i,2)}, {v(vRS,2)} op_sel:[0,1] op_sel_hi:[1,1]')
            for i in r:
                e(f'v_exp_f32_e64 {v(tmp+2*i)}, {v(tmp+2*i)} clamp')
                e(f'v_exp_f32_e64 {v(tmp+2*i+1)}, {v(tmp+2*i+1)} clamp')
            self.bg(f'{tag}{2*hh}')
            for i in r: e(f'v_pk_fma_f32 {v(acc+2*i,2)}, {v(acc+2*i,2)}, {v(vRS,2)}, 1.0 op_sel_hi:[1,0,0]')
            for i in r:
                e(f'v_max_f32 {v(acc+2*i)}, {v(acc+2*i)}, {v(tmp+2*i)}')
                e(f'v_max_f32 {v(acc+2*i+1)}, {v(acc+2*i+1)}, {v(tmp+2*i+1)}')
            for i in r: e(f'v_pk_add_f32 {v(acc+2*i,2)}, {v(acc+2*i,2)}, {s(sEPS6,2)}')
            for i in r: e(f'v_cvt_pk_bf16_f32 {v(out+i)}, {v(acc+2*i)}, {v(acc+2*i+1)}')
            if after: after(hh)
            self.bg(f'{tag}{2*hh+1}')
    def softmax16(self, p, tm, out, tag):
        e = self.e
        e(f'v_max3_f32 {v(tm)}, {v(p)}, {v(p+1)}, {v(p+2)}')
        e(f'v_max3_f32 {v(tm+1)}, {v(p+3)}, {v(p+4)}, {v(p+5)}')
        e(f'v_max3_f32 {v(tm)}, {v(tm)}, {v(p+6)}, {v(p+7)}')
        e(f'v_max3_f32 {v(tm+1)}, {v(tm+1)}, {v(p+8)}, {v(p+9)}')
        e(f'v_max3_f32 {v(tm)}, {v(tm)}, {v(p+10)}, {v(p+11)}')
        e(f'v_max3_f32 {v(tm+1)}, {v(tm+1)}, {v(p+12)}, {v(p+13)}')
        e(f'v_max3_f32 {v(tm)}, {v(tm)}, {v(p+14)}, {v(p+15)}')
        e(f'v_max_f32 {v(tm)}, {v(tm)}, {v(tm+1)}')
        e(f'v_mul_f32 {v(tm)}, {s(sL2E)}, {v(tm)}')
        for i in range(8):
            e(f'v_pk_fma_f32 {v(p+2*i,2)}, {v(p+2*i,2)}, {s(sL2E,2)}, {v(tm,2)} op_sel_hi:[1,1,0] neg_lo:[0,0,1] neg_hi:[0,0,1]')
        self.bg(tag + 'a')
        for i in range(16):
            e(f'v_exp_f32 {v(p+i)}, {v(p+i)}')
            if i == 7: self.bg(tag + 'b')
        self.bg(tag + 'c')
        for i in range(4): e(f'v_pk_add_f32 {v(tm+2*i,2)}, {v(p+4*i,2)}, {v(p+4*i+2,2)}')
        e(f'v_pk_add_f32 {v(tm,2)}, {v(tm,2)}, {v(tm+2,2)}')
        e(f'v_pk_add_f32 {v(tm+4,2)}, {v(tm+4,2)}, {v(tm+6,2)}')
        e(f'v_pk_add_f32 {v(tm,2)}, {v(tm,2)}, {v(tm+4,2)}')
        e(f'v_add_f32 {v(tm)}, {v(tm)}, {v(tm+1)}')
        e(f'v_rcp_f32 {v(tm)}, {v(tm)}')
        self.bg(tag + 'd')
        for i in range(8): e(f'v_pk_mul_f32 {v(p+2*i,2)}, {v(p+2*i,2)}, {v(tm,2)} op_sel_hi:[1,0]')
        for i in range(8): e(f'v_cvt_pk_bf16_f32 {v(out+i)}, {v(p+2*i)}, {v(p+2*i+1)}')

    def kv_epilogue(self, l, late_q):
        e = self.e; typ = l & 1
        self.dump(f'L{l}.kv', [v(vA0+i) for i in range(32)] + [v(vRS)])
        if typ == 0:
            def wr(hh): e(f'ds_write_b128 {v(vPKwA)}, {v(vTM+4*hh,4)} offset:{2*hh*PL}')
            self.phi_a(vA0, vWB, vTM, 'ek', wr)
            self.scale_pack(vA1, vA1)
            e(f'ds_write_b128 {v(vPKwA)}, {v(vA1,4)} offset:{8*PL}')
            e(f'ds_write_b128 {v(vPKwA)}, {v(vA1+4,4)} offset:{10*PL}')
        else:
            self.scale_pack(vA0, vTM)
            e(f'v_mfma_f32_32x32x16_bf16 {v(vA0,16)}, {v(vWPH,4)}, {v(vTM,4)}, 0')
            e(f'v_mfma_f32_32x32x16_bf16 {v(vWB,16)}, {v(vWPH+4,4)}, {v(vTM+4,4)}, 0')
            self.bg('es0')
            self.scale_pack(vA1, vA1)
            e(f'ds_write_b128 {v(vPKwA)}, {v(vA1,4)} offset:{8*PL}')
            e(f'ds_write_b128 {v(vPKwA)}, {v(vA1+4,4)} offset:{10*PL}')
            self.bg('es1')
            for hh, p in ((0, vA0), (1, vWB)):
                self.softmax16(p, vTM, p, f'ek{hh}')
                e(f'ds_write_b128 {v(vPKwB)}, {v(p,4)} offset:{(2*hh)*PL}')
                e(f'ds_write_b128 {v(vPKwB)}, {v(p+4,4)} offset:{(2*hh+1)*PL}')
        ones = vTM + 4
        for i in range(4): e(f'v_mov_b32 {v(ones+i)}, {s(sONES)}')
        if l == 0: e.wait(vm=self.clr1)
        if not late_q: self.need('Q')
        e.wait_all_lg()
        e('s_barrier')
        self.free('KV')
        self.stamp(f'L{l}.B1')
        pr = vPKrA if typ == 0 else vPKrB
        tags = []
        for st in range(4):
            e(f'ds_read_b64_tr_b16 {v(vA0+4*st,2)}, {v(pr)} offset:{st*512}')
            e(f'ds_read_b64_tr_b16 {v(vA0+4*st+2,2)}, {v(pr)} offset:{st*512+256}')
            e(f'ds_read_b64_tr_b16 {v(vA1+4*st,2)}, {v(vPKrA)} offset:{8*PL+st*512}')
            tags.append(e(f'ds_read_b64_tr_b16 {v(vA1+4*st+2,2)}, {v(vPKrA)} offset:{8*PL+st*512+256}'))
        self.bg('b1')
        self.set_wtr(SLOTS[l]['Q'])
        ckv, cz = vWB + 16, vWB + 20
        ak, az = self.e1_addr(l, vWB)
        e(f's_add_u32 {s(sT[0])}, {s(sKVwrB)}, {l*0x80000}\ns_add_u32 {s(sT[1])}, {s(sZwrB)}, {l*0x10000}')
        for st in range(4):
            e.wait(lg=tags[st])
            e(f'v_mfma_f32_16x16x32_bf16 {v(ckv,4)}, {v(vA0+4*st,4)}, {v(vA1+4*st,4)}, {v(ckv,4) if st else 0}')
            e(f'v_mfma_f32_16x16x32_bf16 {v(cz,4)}, {v(ones,4)}, {v(vA0+4*st,4)}, {v(cz,4) if st else 0}')
        e(f'v_cvt_pk_bf16_f32 {v(vTM)}, {v(ckv)}, {v(ckv+1)}\nv_cvt_pk_bf16_f32 {v(vTM+1)}, {v(ckv+2)}, {v(ckv+3)}')
        e(f'v_min_u32 {v(vTM)}, -2, {v(vTM)}\nv_min_u32 {v(vTM+1)}, -2, {v(vTM+1)}')
        e(f'buffer_store_dwordx2 {v(vTM,2)}, {v(ak)}, {s(sWS,4)}, {s(sT[0])} offen sc1')
        e(f'v_min_u32 {v(vTM+2)}, -2, {v(cz)}')
        e(f'buffer_store_dword {v(vTM+2)}, {v(az)}, {s(sWS,4)}, {s(sT[1])} offen sc1')
        self.stamp(f'L{l}.pub1')
        if l < 2: self.clear_slot(l + 2, vTM + 4, ak, az)
        if late_q:
            self.need('Q'); e('s_barrier')

    def e1_ops(self, e, l, tags, each=False):
        typ = l & 1
        nk, nz = (4, 2) if typ == 0 else (8, 4)
        sk, sz = (sKVrdA, sZrdA) if typ == 0 else (sKVrdB, sZrdB)
        ops = []
        def zl(t):
            if t == 0: e(f's_add_u32 {s(sT[1])}, {s(sz)}, {l*0x10000}')
            tags['z'] = e(f'buffer_load_dword {v(vXF+32+t)}, {v(vL4)}, {s(sWS,4)}, {s(sT[1])} offen offset:{t*256} sc1')
        def kl(p):
            if p % 4 == 0 or each: e(f's_add_u32 {s(sT[0])}, {s(sk)}, {l*0x80000 + (p & ~3)*1024}')
            tags[p] = e(f'buffer_load_dwordx4 {v(vXF+4*p,4)}, {v(vL16)}, {s(sWS,4)}, {s(sT[0])} offen offset:{(p&3)*1024} sc1')
        return [lambda t=t: zl(t) for t in range(nz)] + [lambda p=p: kl(p) for p in range(nk)]

    def q_phase(self, l):
        e = self.e; typ = l & 1; first = l < 2
        wt = [None] * 32
        def wread(k): wt[k] = self.tr_w(vWB + (k % 6) * 4, k, 0)
        for k in range(4): wread(k)
        aQ = v(vA1 + 12, 4); cQ = vCS + typ * 6
        sel = vA1 + 8
        if first: self.par_sel(sel)
        if l == 0:
            e(f'v_and_b32 {v(vTM+3)}, 0x7c, {v(vL4)}')
            dbt = e(f'buffer_load_dword {v(vTM+2)}, {v(vTM+3)}, {s(sDBG,4)}, 0 offen sc1')
            if self.o.tw or self.o.te:
                e(f'v_lshlrev_b32 {v(vTM+6)}, 5, {v(vL4)}\nv_lshrrev_b32 {v(vTM+1)}, 4, {v(vL4)}\nv_lshl_add_u32 {v(vTM+7)}, {v(vTM+1)}, 26, {v(vTM+6)}')
                e(f'v_lshrrev_b32 {v(vTM+1)}, 6, {v(vL4)}\nv_lshl_add_u32 {v(vTM+6)}, {v(vTM+1)}, 26, {v(vTM+6)}')
                for c in self.o.tw: self.touch(int(c))
        E1AT = self.o.e1at[l]
        kt = {}
        e1 = self.e1_ops(e, l, kt)
        if self.o.ctouch & 1 and l < 3: e1.insert(0, lambda: self.code_touch(v(vXF + 36)))
        for k in range(32):
            e.wait(lg=wt[k])
            b = vWB + (k % 6) * 4
            if first and k % 4 == 0: self.rowsum(aQ, sel, b, k == 0)
            e(f'v_mfma_f32_32x32x16_bf16 {v(vA0,16)}, {v(b,4)}, {v(vXF+4*k,4)}, {v(vA0,16) if k else 0}')
            if k + 4 < 32: wread(k + 4)
            if k == 0 and not first:
                e(f'v_mfma_f32_32x32x8_bf16 {v(vA0,16)}, {v(cQ,2)}, {v(vMF,2)}, {v(vA0,16)}')
            if k == E1AT and l == 0:
                e.wait(vm=dbt)
                e(f's_mov_b32 {s(sT[2])}, 0x11111111')
                e('L_all_chk:')
                e(f'v_dot8_u32_u4 {v(vTM+1)}, {v(vTM+2)}, {s(sT[2])}, 0')
                e(f's_lshl_b32 {s(sT[3])}, 8, {s(sXCC)}')
                e(f'v_cmp_ne_u32 vcc, 8, {v(vTM+1)}\ns_cbranch_vccnz L_all_retry')
                e(f'v_cmp_ne_u32 vcc, {s(sT[3])}, {v(vTM+2)}\ns_lshl_b32 {s(sT[3])}, {s(sR)}, 1')
                e(f's_lshr_b32 {s(sMODE)}, vcc_lo, {s(sT[3])}\ns_and_b32 {s(sMODE)}, {s(sMODE)}, 3')
                if self.o.force_safe: e(f's_or_b32 {s(sMODE)}, {s(sMODE)}, 1')
                e(f's_cselect_b32 {s(sSTR)}, {EXSTRIDE}, 0')
                if self.o.xout:
                    e(f's_cselect_b64 {s(sX,2)}, {s(sWS,2)}, {s(sOUT,2)}\ns_cselect_b32 {s(sX+2)}, {s(sWS+2)}, {s(sOUT+2)}\ns_cselect_b32 {s(sT[3])}, 0, {XB}')
                    for r in (sXrd, sXwr): e(f's_sub_u32 {s(r)}, {s(r)}, {s(sT[3])}')
                for r in (sOrd, sOwr): e(f's_add_u32 {s(r)}, {s(r)}, {s(sSTR)}')
                t = Asm()
                t(f'L_all_retry:\nbuffer_load_dword {v(vTM+2)}, {v(vTM+3)}, {s(sDBG,4)}, 0 offen sc1')
                t(f's_sub_u32 {s(sBUD)}, {s(sBUD)}, 1\ns_cbranch_scc1 L_fail\ns_waitcnt vmcnt(0)\ns_branch L_all_chk')
                self.tail.append(t)
                e1 += [lambda: e(f'buffer_load_dword a255, {v(vFl16)}, {s(sWS,4)}, {s(sFOrd)} offen sc1'),
                       lambda: e(f'buffer_load_dword a255, {v(vFl16)}, {s(sWS,4)}, {s(sFXrd)} offen sc1'),
                       lambda: e(f's_lshl_b32 {s(sT[4])}, {s(sG)}, 10\ns_mov_b32 m0, {L_WP}\nbuffer_load_dwordx4 {v(vL16)}, {s(sWP,4)}, {s(sT[4])} offen lds')]
                e1 += [lambda c=c: self.touch(int(c)) for c in self.o.te]
                assert E1AT + len(e1) <= 29 or not self.o.te
            if k >= E1AT:
                for _ in range(self.o.e1rate if k < 31 else 99):
                    if e1: e1.pop(0)()
            self.bg(f'q{k}')
            if l == 3 and self.o.clean & 1 and k in (2, 4):
                e(f'buffer_store_dwordx4 {v(vRES+2*(k-2),4)}, {v(vL16)}, {s(sWS,4)}, {s(sXwr)} offen offset:{(k-2)*512} sc1')
            if first and k == 29: cw = self.cs_write([v(vA1 + 12)], [0])
            if first and k == 31:
                e.wait(lg=cw); e('s_barrier')
                r0 = self.cs_read(0, vA1)
        zt = kt['z']
        if first:
            e.wait(lg=r0); self.cs_pack(vA1, cQ)
            e(f'v_mfma_f32_32x32x8_bf16 {v(vA0,16)}, {v(cQ,2)}, {v(vMF,2)}, {v(vA0,16)}')
        self.stamp(f'L{l}.qgemm')
        self.dump(f'L{l}.q', [v(vA0+i) for i in range(16)])
        PQ = vXF + 64
        if typ == 0:
            self.phi_a(vA0, vWB, PQ, 'eq')
        else:
            self.scale_pack(vA0, vTM)
            e(f'v_mfma_f32_32x32x16_bf16 {v(vA0,16)}, {v(vWPH,4)}, {v(vTM,4)}, 0')
            e(f'v_mfma_f32_32x32x16_bf16 {v(vA1,16)}, {v(vWPH+4,4)}, {v(vTM+4,4)}, 0')
            self.softmax16(vA0, vWB, PQ, 'eq0')
            self.softmax16(vA1, vWB, PQ + 8, 'eq1')
        self.stamp(f'L{l}.phiq')
        nk, nz = (4, 2) if typ == 0 else (8, 4)
        C = vWB; mx = vTM; z = vXF + 32
        if self.o.e1inl: e(f's_branch L_e1c{l}')
        t = Asm()
        t(f'L_e1r{l}:')
        ops = self.e1_ops(t, l, {}, True)
        for op in ops[:nz]: op()
        for p in range(nk):
            b = vXF + 4*p
            t(f'v_max3_u32 {v(mx)}, {v(b)}, {v(b+1)}, {v(b+2)}\nv_max_u32 {v(mx)}, {v(mx)}, {v(b+3)}\nv_cmp_eq_u32 vcc, -1, {v(mx)}\ns_cbranch_vccz L_e1s{l}_{p}')
            ops[nz + p]()
            t(f'L_e1s{l}_{p}:')
        t(f's_sub_u32 {s(sBUD)}, {s(sBUD)}, 1\ns_cbranch_scc1 L_fail\ns_waitcnt vmcnt(0)')
        if self.o.e1inl: e.ins += t.ins
        else:
            t(f's_branch L_e1c{l}'); self.tail.append(t)
        e(f'L_e1c{l}:')
        e.wait(vm=zt)
        if nz == 2:
            e(f'v_max_u32 {v(mx)}, {v(z)}, {v(z+1)}\nv_add_f32 {v(z)}, {v(z)}, {v(z+1)}')
        else:
            e(f'v_max3_u32 {v(mx)}, {v(z)}, {v(z+1)}, {v(z+2)}\nv_max_u32 {v(mx)}, {v(mx)}, {v(z+3)}')
            e(f'v_pk_add_f32 {v(z,2)}, {v(z,2)}, {v(z+2,2)}\nv_add_f32 {v(z)}, {v(z)}, {v(z+1)}')
        zops = [f'v_mov_b32 {v(z+1)}, {v(z)}', f'v_permlane16_swap_b32 {v(z)}, {v(z+1)}', f'v_add_f32 {v(z)}, {v(z)}, {v(z+1)}',
                f'v_mov_b32 {v(z+1)}, {v(z)}', f'v_permlane32_swap_b32 {v(z)}, {v(z+1)}', f'v_add_f32 {v(z)}, {v(z)}, {v(z+1)}',
                f'v_cvt_pk_bf16_f32 {v(z)}, {v(z)}, {v(z)}', f'ds_write_b16 {v(vZw)}, {v(z)} offset:512']
        e(zops.pop(0))
        for p in range(nk):
            e.wait(vm=kt[p])
            b = vXF + 4*p
            e(f'v_mfma_f32_16x16x32_bf16 {v(C,4)}, {v(vSEL,4)}, {v(b,4)}, {v(C,4) if p else 0}')
            e(f'v_max3_u32 {v(mx)}, {v(mx)}, {v(b)}, {v(b+1)}\nv_max3_u32 {v(mx)}, {v(mx)}, {v(b+2)}, {v(b+3)}')
            if p == 0:
                for _ in range(3): e(zops.pop(0))
        e(f'v_cmp_eq_u32 vcc, -1, {v(mx)}\ns_cbranch_vccnz L_e1r{l}')
        for op in zops: e(op)
        self.stamp(f'L{l}.e1')
        e(f'v_cvt_pk_bf16_f32 {v(vTM)}, {v(C)}, {v(C+1)}\nv_cvt_pk_bf16_f32 {v(vTM+1)}, {v(C+2)}, {v(C+3)}')
        e(f'ds_write_b64 {v(vKVw)}, {v(vTM,2)}')
        self.bg('o0')
        if not self.o.lateb[l]: self.need('ab')
        e.wait_all_lg()
        e('s_barrier')
        self.free('Q')
        KF = vWB + 8
        kr = vKVrA if typ == 0 else vKVrB
        tg = []
        for hh in range(2):
            for u in range(2):
                off = (2*u + hh) * 544 if typ == 0 else hh * 544 + u * 16
                tg.append(e(f'ds_read_b128 {v(KF + 4*(2*hh+u),4)}, {v(kr)} offset:{off}'))
        self.bg('o1')
        for hh in range(2):
            acc = (vA0, vA1)[hh]
            for u in range(2):
                e.wait(lg=tg[2*hh+u])
                pq = PQ + 4*hh if typ == 0 else PQ + 8*hh + 4*u
                e(f'v_mfma_f32_32x32x16_bf16 {v(acc,16)}, {v(KF+4*(2*hh+u),4)}, {v(pq,4)}, {v(acc,16) if u else 0}')
        if l < 3: self.set_wtr(SLOTS[l+1]['K'])
        e(f'v_mov_b32 {v(vWB)}, {l+1}')
        self.bg('o2')
        O = vXF + 96
        quick = l > 0 and self.o.quick
        for hh in range(2):
            acc = (vA0, vA1)[hh]
            e(f'v_add_f32 {v(acc+8)}, {s(sEPS6)}, {v(acc+8)}\nv_rcp_f32 {v(acc+8)}, {v(acc+8)}')
            for i in range(4): e(f'v_pk_mul_f32 {v(acc+2*i,2)}, {v(acc+2*i,2)}, {v(acc+8,2)} op_sel_hi:[1,0]')
            for i in range(4):
                e(f'v_cvt_pk_bf16_f32 {v(O+4*hh+i)}, {v(acc+2*i)}, {v(acc+2*i+1)}')
                if i == 1: self.tag(O + 4*hh, l & 1)
            def st(e, m):
                e(f'buffer_store_dwordx4 {v(O+4*hh,4)}, {v(vL16)}, {s(sWS,4)}, {s(sOwr)} offen offset:{hh*1024}{m if (m or l) else self.o.pub0}')
                if hh:
                    if m or not quick: e.wait_all_vm()
                    self.flag(e, vWB, sFOwr, m)
            self.modal(f'po{l}{hh}', st)
        self.dump(f'L{l}.o', [v(O+i) for i in range(8)])
        self.stamp(f'L{l}.pub2')

    def o_proj(self, l):
        e = self.e; typ = l & 1; T = 'AB'[typ]
        chk = vTM + 4 if (l > 0 and self.o.quick) else None
        par = l & 1
        self.bg('w0')
        if l == 0:
            t0, t1 = vTM, vTM + 1
            e(f'''
            v_bfe_u32 {v(t0)}, {v(vL4)}, 4, 2
            v_lshrrev_b32 {v(t1)}, 7, {v(vL4)}
            v_lshl_add_u32 {v(t0)}, {v(t1)}, 3, {v(t0)}
            v_lshlrev_b32 {v(t0)}, 5, {v(t0)}
            v_bfe_u32 {v(t1)}, {v(vL4)}, 6, 1
            v_lshl_add_u32 {v(t0)}, {v(t1)}, 4, {v(t0)}
            v_bfe_u32 {v(t1)}, {v(vL4)}, 3, 1
            v_lshl_add_u32 {v(t0)}, {v(t1)}, 3, {v(t0)}
            v_add_u32 {v(t0)}, {L_WP}, {v(t0)}
            ''')
            for hh in range(2):
                for t in range(2):
                    tw = e(f'ds_read_b64_tr_b16 {v(vWPH+4*hh+2*t,2)}, {v(t0)} offset:{hh*512 + t*128}')
            e(f'v_bfe_u32 {v(t1)}, {v(vL4)}, 4, 1\nv_mul_u32_u24 {v(t1)}, 0x8000, {v(t1)}\nv_lshl_or_b32 {v(t1)}, {v(t1)}, 16, {v(t1)}')
            e.wait(lg=tw)
            for i in range(8): e(f'v_xor_b32 {v(vWPH+i)}, {v(t1)}, {v(vWPH+i)}')
        snd, exr = vTM + 5, vTM + 6
        own = vTM + 7
        def pre():
            e(f's_cmp_lt_u32 {s(sW)}, 2\ns_mov_b32 {s(sT[0])}, {SLOTS[l]["b"]*SLOT}\ns_cselect_b32 {s(sT[0])}, {SLOTS[l]["a"]*SLOT}, {s(sT[0])}')
            e(f'v_add_u32 {v(own)}, {s(sT[0])}, {v(vWO)}\nv_xor_b32 {v(exr)}, 0x2000, {v(vEXw)}\nv_xor_b32 {v(snd)}, 64, {v(own)}')
        if self.o.lateb[l]:
            self.need('ab'); e('s_barrier')
        self.stamp(f'L{l}.pre2')
        self.poll(f'pollo{l}', sFOrd, l + 1, 'wp', pre)
        self.stamp(f'L{l}.poll2')
        ot = [None] * 16
        def oload(e, k):
            if k % 4 == 0: e(f's_add_u32 {s(sT[0])}, {s(sOrd)}, {k*1024}')
            ot[k] = e(f'buffer_load_dwordx4 {v(vXF+4*k,4)}, {v(vL16)}, {s(sWS,4)}, {s(sT[0])} offen offset:{(k&3)*1024} sc1')
        PRE = self.o.opre
        if chk:
            t = Asm(); t(f'L_top_o{l}:')
            for k in range(PRE): oload(t, k)
            t(f's_waitcnt vmcnt(0)\ns_branch L_mid_o{l}')
            self.tail.append(t)
        for k in range(PRE): oload(e, k)
        self.bg('w1')
        if chk: e(f'L_mid_o{l}:'); self.in_redo = True
        wt = [None] * 16
        def wrd(dst, ad, k):
            e(f'ds_read_b64_tr_b16 {v(dst,2)}, {v(ad)} offset:{k*2048}')
            return e(f'ds_read_b64_tr_b16 {v(dst+2,2)}, {v(ad)} offset:{k*2048+512}')
        for k in range(2):
            wrd(vWB + 8*k, snd, k); wt[k] = wrd(vWB + 8*k + 4, own, k)
        for i in range(8):
            e(f'v_lshlrev_b32 {v(vA0+2*i)}, 16, {v(vRES+i)}\nv_and_b32 {v(vA0+2*i+1)}, {s(sHI)}, {v(vRES+i)}')
        self.bg('w2')
        for k in range(16):
            b = vWB + (k % 3) * 8
            nb = vWB + ((k + 2) % 3) * 8
            e.wait(vm=ot[k], lg=wt[k])
            e(f'v_mfma_f32_32x32x16_bf16 {v(vA1,16)}, {v(b,4)}, {v(vXF+4*k,4)}, {v(vA1,16) if k else 0}')
            if k + PRE < 16: oload(e, k + PRE)
            if k + PRE == 16 and self.o.ctouch & 2 and l < 3: self.code_touch(v(vXF + 64))
            if k + 2 < 16: wrd(nb, snd, k + 2)
            self.bg(f'p{k}')
            e(f'v_mfma_f32_32x32x16_bf16 {v(vA0,16)}, {v(b+4,4)}, {v(vXF+4*k,4)}, {v(vA0,16)}')
            if k + 2 < 16: wt[k + 2] = wrd(nb + 4, own, k + 2)
            if chk and k % 2 == 1: e(self.chk(chk, vXF+4*k-4, vXF+4*k, par, k == 1))
            self.bg(f'p{k}b')
        if chk: self.chk_end(chk, par, f'o{l}'); self.in_redo = False
        if l == 3 and self.o.clean & 2:
            for hh in range(2): e(f'buffer_store_dwordx4 {v(vXF+96+4*hh,4)}, {v(vL16)}, {s(sWS,4)}, {s(sOwr)} offen offset:{hh*1024} sc1')
        for r in (sXrd, sXwr, sSTrd, sSTwr, sOrd, sOwr): e(f's_add_u32 {s(r)}, {s(r)}, {s(sSTR)}')
        for n in range(4): e(f'ds_write_b128 {v(vEXw)}, {v(vA1+4*n,4)} offset:{n*1024}')
        xo = vTM
        if l == 3:
            e(f'v_and_b32 {v(xo)}, 0x7c, {v(vL4)}\nv_lshrrev_b32 {v(xo+1)}, 7, {v(vL4)}\nv_lshlrev_b32 {v(xo)}, 8, {v(xo)}\nv_lshl_add_u32 {v(xo)}, {v(xo+1)}, 5, {v(xo)}')
        elif l == 1: e(f's_lshl_b32 {s(sT[2])}, {s(sROT)}, 12\ns_add_u32 {s(sT[2])}, {s(sT[2])}, {s(sXrd)}')
        else: e(f's_mov_b32 {s(sT[2])}, {s(sXrd)}')
        self.bg('x0')
        e.wait_all_lg()
        e('s_barrier')
        self.free('ab')
        self.stamp(f'L{l}.B3')
        tg = [e(f'ds_read_b128 {v(vWB+4*n,4)}, {v(exr)} offset:{n*1024}') for n in range(4)]
        self.bg('x1')
        for n in range(4):
            e.wait(lg=tg[n])
            for i in (0, 2): e(f'v_pk_add_f32 {v(vA0+4*n+i,2)}, {v(vA0+4*n+i,2)}, {v(vWB+4*n+i,2)}')
            if l == 3 and self.o.bias:
                for i in range(4): e(f'v_add_f32 {v(vA0+4*n+i)}, {self.o.bias}, {v(vA0+4*n+i)}')
            for i in (0, 2): e(f'v_cvt_pk_bf16_f32 {v(vRES+2*n+i//2)}, {v(vA0+4*n+i)}, {v(vA0+4*n+i+1)}')
            if l < 3 and n % 2 == 0: self.tag(vRES + 2*n, l & 1)
            if l == 3 and n % 2 == 1:
                e(f'buffer_store_dwordx4 {v(vRES+2*n-2,4)}, {v(xo)}, {s(sOUT,4)}, {s(sXO)} offen offset:{8*n-8} {self.o.outmod}')
        self.dump(f'L{l}.x', [v(vRES+i) for i in range(8)])
        if l < 3:
            self.publish_x(l)
            self.bg('y0')
            self.need('KV', l + 1)
            e('s_barrier')
            self.stamp(f'L{l}.pub3')
            self.bg('y1')
            self.poll(f'pollx{l}', sFXrd, l + 2, 'yp')
            self.stamp(f'L{l}.poll3')

    def build(self):
        e = self.e
        self.sched = SCHEDS[self.o.sched]
        self.prologue()
        for l in range(4):
            self.l = l
            if l == 0: self.kv_gemm0()
            else: self.kv_gemm(l)
            self.kv_epilogue(l, self.o.lateq[l])
            self.q_phase(l)
            self.o_proj(l)
        for k in self.sched: assert k in self.seen, k
        if self.o.stamps:
            self.stamp('end')
            e(f's_memrealtime {s(sTS,2)}'); e.wait_all_lg()
            e(f'v_writelane_b32 {v(vSTAMP)}, {s(sTS)}, 63')
            if not self.o.both: e(f'v_writelane_b32 {v(vSTAMP)}, {s(sBUD)}, 61')
            e(f's_lshl_b32 {s(sT[0])}, s2, 2\ns_add_u32 {s(sT[0])}, {s(sT[0])}, {s(sW)}\ns_lshl_b32 {s(sT[0])}, {s(sT[0])}, 8\ns_add_u32 {s(sT[0])}, {s(sT[0])}, {STAMP}')
            e(f'buffer_store_dword {v(vSTAMP)}, {v(vL4)}, {s(sWS,4)}, {s(sT[0])} offen')
        if self.o.echo:
            self.stamp('end')
            if self.o.echo[0] == 'fixed':
                e(f's_mov_b32 {s(sE0)}, {self.o.echo[2]}')
            else:
                e(f's_sub_u32 {s(sE0)}, {s(sE1)}, {s(sE0)}\ns_mul_i32 {s(sE0)}, {s(sE0)}, {self.o.echo[2]}')
            e(f'{self.o.clk} {s(sE1,2)}\ns_waitcnt lgkmcnt(0)')
            e(f'L_echo:\n{self.o.clk} {s(sTS,2)}\ns_waitcnt lgkmcnt(0)\ns_sub_u32 {s(sTS)}, {s(sTS)}, {s(sE1)}\ns_cmp_lt_u32 {s(sTS)}, {s(sE0)}\ns_cbranch_scc1 L_echo')
        e('L_fail:\ns_endpgm')
        body = e.finish() + ''.join(t.finish() for t in self.tail) + 'L_code_end:\n    s_endpgm\n'
        head = open('cdna_kernels/' + NAME + '.s.ref').read().split('; Override launch')[0]
        txt = head + '; @launch grid=(256,1,1) block=(256,1,1) lds=163840\n'
        txt += f'''.amdgcn_target "amdgcn-amd-amdhsa--gfx950"
.text
.globl {NAME}_kernel
.p2align 8
.type {NAME}_kernel,@function
{NAME}_kernel:
{body}.section .rodata,"a"
.p2align 6
.amdhsa_kernel {NAME}_kernel
  .amdhsa_next_free_vgpr 512
  .amdhsa_next_free_sgpr 102
  .amdhsa_accum_offset 256
  .amdhsa_group_segment_fixed_size 0
  .amdhsa_kernarg_size 80
  .amdhsa_user_sgpr_count 2
  .amdhsa_user_sgpr_kernarg_segment_ptr 1
  .amdhsa_system_sgpr_workgroup_id_x 1
  .amdhsa_float_denorm_mode_32 3
.end_amdhsa_kernel
'''
        return txt

if __name__ == '__main__':
    ap = argparse.ArgumentParser()
    ap.add_argument('-o', default='cdna_kernels/' + NAME + '.s')
    ap.add_argument('--stamps', action='store_true')
    ap.add_argument('--force-safe', action='store_true')
    ap.add_argument('--dump', default='')
    ap.add_argument('--echo', default='')
    ap.add_argument('--bias', default='')
    ap.add_argument('--clk', default='s_memtime')
    ap.add_argument('--outmod', default='')
    ap.add_argument('--initmod', default='')
    ap.add_argument('--touch', default='61356')
    ap.add_argument('--c1early', type=int, default=2)
    ap.add_argument('--fine', type=int, default=0)
    ap.add_argument('--atp', type=int, default=1)
    ap.add_argument('--nomini', type=int, default=0)
    ap.add_argument('--touchx', type=int, default=1)
    ap.add_argument('--b0at', type=int, default=24)
    ap.add_argument('--both', type=int, default=0)
    ap.add_argument('--fake', type=int, default=0)
    ap.add_argument('--stouch', default=',,')
    ap.add_argument('--tq', default='')
    ap.add_argument('--tw', default='')
    ap.add_argument('--dummy', type=int, default=0)
    ap.add_argument('--te', default='')
    ap.add_argument('--quick', type=int, default=1)
    ap.add_argument('--lateb', default='0,0,0,0')
    ap.add_argument('--pub0', default=' sc1')
    ap.add_argument('--stat-at', type=int, default=2)
    ap.add_argument('--opre', type=int, default=8)
    ap.add_argument('--ctouch', type=int, default=7)
    ap.add_argument('--e1inl', type=int, default=1)
    ap.add_argument('--t0', default='')
    ap.add_argument('--t1', default='')
    ap.add_argument('--t2', default='')
    ap.add_argument('--qs', default='21111110')
    ap.add_argument('--clrp', type=int, default=6)
    ap.add_argument('--pub0s', default='')
    ap.add_argument('--q0', type=int, default=0)
    ap.add_argument('--clean', type=int, default=0)
    ap.add_argument('--xout', type=int, default=0)
    ap.add_argument('--xpre', type=int, default=8)
    ap.add_argument('--e1at', default='22,20,22,20')
    ap.add_argument('--e1rate', type=int, default=1)
    ap.add_argument('--lateq', default='0,0,0,0')
    ap.add_argument('--sched', default='g')
    opt = ap.parse_args()
    opt.dump = opt.dump.split(',') if opt.dump else []
    opt.echo = opt.echo.split(',') if opt.echo else []
    opt.e1at = list(map(int, opt.e1at.split(','))); opt.lateq = list(map(int, opt.lateq.split(','))); opt.lateb = list(map(int, opt.lateb.split(',')))
    g = Gen(opt)
    txt = g.build()
    open(opt.o, 'w').write(txt)
    if opt.stamps:
        open(opt.o + '.stamps', 'w').write('\n'.join(g.stamp_names))
    print('wrote', opt.o, len(txt), 'bytes; vgpr persistent', _vn[0], 'sgpr', _sn[0], 'stamps', g.nstamp)
```

```python
import re

def R(kind, lo, n=1):
    return f"{kind}{lo}" if n == 1 else f"{kind}[{lo}:{lo+n-1}]"
def v(lo, n=1): return R('v', lo, n)
def a(lo, n=1): return R('a', lo, n)
def s(lo, n=1): return R('s', lo, n)

_reg_re = re.compile(r'(?<![\w.])(-|\|)?([vas])(?:(\d+)\b|\[(\d+):(\d+)\])')
def regs_of(op):
    out = set()
    op = op.strip()
    if op in ('vcc', 'vcc_lo', 'vcc_hi'): return {('s', 'vcc')}
    if op in ('exec', 'exec_lo', 'exec_hi'): return {('s', 'exec')}
    if op == 'm0': return {('s', 'm0')}
    for m in _reg_re.finditer(op):
        k = m.group(2)
        if m.group(3) is not None: out.add((k, int(m.group(3))))
        else:
            for i in range(int(m.group(4)), int(m.group(5)) + 1): out.add((k, i))
    return out

TRANS = ('v_exp_f32', 'v_log_f32', 'v_rcp_f32', 'v_rsq_f32', 'v_sqrt_f32', 'v_sin_f32', 'v_cos_f32', 'v_rcp_iflag')
def split_ops(rest):
    ops, depth, cur = [], 0, ''
    for ch in rest:
        if ch == '[': depth += 1
        if ch == ']': depth -= 1
        if ch == ',' and depth == 0:
            ops.append(cur.strip()); cur = ''
        else: cur += ch
    if cur.strip(): ops.append(cur.strip())
    return ops

class Ins:
    def __init__(self, text):
        self.text = text
        t = text.split(';')[0].strip()
        self.label = t.endswith(':')
        self.directive = t.startswith('.') and not self.label
        self.empty = (t == '')
        self.mn = ''
        self.w = set(); self.r = set(); self.srcC = set(); self.srcAB = set(); self.stdata = set()
        if self.label or self.directive or self.empty: return
        parts = t.split(None, 1)
        mn = self.mn = parts[0]
        rest = parts[1] if len(parts) > 1 else ''
        ops = split_ops(rest)
        clean = []
        for o in ops:
            clean.append(o.split(' ')[0] if not o.startswith('hwreg') else o)
        self.mods = rest
        self.mfma = mn.startswith('v_mfma')
        self.valu = mn.startswith('v_') and not self.mfma
        self.salu = mn.startswith('s_')
        self.trans = mn.startswith(TRANS)
        self.dot = mn.startswith('v_dot')
        self.vmem = mn.startswith(('buffer_', 'global_'))
        self.ds = mn.startswith('ds_')
        self.dpp = ('_dpp' in mn) or ('row_' in rest) or ('quad_perm' in rest)
        self.perml = mn.startswith('v_permlane')
        self.rdlane = mn.startswith(('v_readlane', 'v_readfirstlane'))
        self.ldsdma = self.vmem and (re.search(r'\blds\b', rest) is not None or 'load_lds' in mn)
        rs = [regs_of(o) for o in clean]
        if self.mfma:
            self.w = rs[0]; self.srcAB = rs[1] | rs[2]; self.srcC = rs[3]; self.r = self.srcAB | self.srcC
            self.passes = 8 if '32x32' in mn else (2 if '4x4x4' in mn else 4)
            if mn in ('v_mfma_f32_16x16x4_f32', 'v_mfma_f32_32x32x2_f32'): raise Exception('sgemm not modelled')
        elif self.valu:
            if self.perml:
                self.w = rs[0] | rs[1]; self.r = rs[0] | rs[1]
            else:
                self.w = set(rs[0])
                for x in rs[1:]: self.r |= x
                if mn.startswith(('v_fmac', 'v_dot2c', 'v_writelane', 'v_pk_fmac')): self.r |= rs[0]
                if mn.startswith(('v_add_co', 'v_addc_co', 'v_sub_co')):
                    self.w |= rs[1]
                if self.dot and len(rs) == 4: self.srcC = rs[3]
        elif self.vmem:
            if 'store' in mn or ('atomic' in mn):
                for x in rs: self.r |= x
                if mn.startswith('buffer_'): self.stdata = rs[0]
                else: self.stdata = rs[1]
                if 'atomic' in mn and 'sc0' in rest: self.w = rs[0]
                if not ('x3' in mn or 'x4' in mn): self.stdata = set()
            elif self.ldsdma:
                for x in rs: self.r |= x
                self.r.add(('s', 'm0'))
            elif mn in ('buffer_inv', 'buffer_wbl2'):
                pass
            else:
                self.w = rs[0]
                for x in rs[1:]: self.r |= x
        elif self.ds:
            if 'read' in mn or 'permute' in mn or 'swizzle' in mn:
                self.w = rs[0]
                for x in rs[1:]: self.r |= x
            else:
                for x in rs: self.r |= x
        elif self.salu:
            if mn.startswith(('s_cmp', 's_cbranch', 's_branch', 's_waitcnt', 's_barrier', 's_nop', 's_endpgm', 's_sleep', 's_setprio', 's_bitcmp')):
                for x in rs: self.r |= x
            else:
                if rs: self.w = rs[0]
                for x in rs[1:]: self.r |= x
    def states(self):
        if self.label or self.directive or self.empty: return 0
        if self.mn == 's_nop': return int(self.mods.strip(), 0) + 1
        return 1

def need(p, c):
    n = 0
    vec = lambda S: {x for x in S if x[0] in 'va'}
    sca = lambda S: {x for x in S if x[0] == 's'}
    if p.valu:
        pw = vec(p.w); ps = sca(p.w)
        if c.mfma and (pw & c.r): n = max(n, 3 if p.dot else 2)
        if p.trans and (c.valu and not c.trans or c.vmem or c.ds) and (pw & c.r): n = max(n, 1)
        if c.valu and (c.perml or c.dpp) and (pw & c.r): n = max(n, 2)
        if c.valu and c.rdlane and (pw & c.r): n = max(n, 1)
        if p.dot and (c.valu or c.vmem or c.ds):
            if pw & (c.r | c.w):
                if c.valu and c.dot and c.mn == p.mn and not (pw & (c.r - c.srcC)) : pass
                else: n = max(n, 3)
        if ps:
            if c.valu and (ps & c.r): n = max(n, 4 if c.mn.startswith(('v_readlane', 'v_writelane')) else 2)
            if c.valu and c.mn.startswith('v_cndmask') and ('s', 'vcc') in ps: n = max(n, 2)
            if c.vmem and (ps & c.r): n = max(n, 5)
            if c.salu and (ps & c.r): n = max(n, 1)
    if p.mfma:
        big = {2: 5, 4: 8, 8: 12}[p.passes]
        if c.mfma:
            if p.w & c.srcAB: n = max(n, big)
            if p.w & c.srcC:
                if not (p.w == c.srcC and p.passes == c.passes): n = max(n, max(4, big - 2))
                elif p.passes == 2: n = max(n, 2)
            elif p.w & c.w:
                n = max(n, max(4, big - 2))
        elif c.valu or c.vmem or c.ds:
            if p.w & (c.r | c.w): n = max(n, big)
            if c.valu and (p.srcC & c.w): n = max(n, {2: 1, 4: 3, 8: 7}[p.passes])
    if p.vmem and p.stdata:
        if (c.valu or c.mfma) and (p.stdata & c.w): n = max(n, 2)
        elif (c.vmem or c.ds) and (p.stdata & c.w): n = max(n, 1)
    if p.salu and ('s', 'm0') in p.w and c.vmem and c.ldsdma: n = max(n, 1)
    return n

class Asm:
    def __init__(self):
        self.ins = []
        self.vm = 0
        self.lg = 0
        self.vm_done = 0
        self.lg_done = 0
    def __call__(self, text):
        tag = None
        for line in text.split('\n'):
            if not line.strip(): continue
            i = Ins(line.strip())
            self.ins.append(i)
            if i.mn:
                if i.vmem: self.vm += 1; tag = self.vm
                if i.ds: self.lg += 1; tag = self.lg
        return tag
    def raw(self, text):
        vm, lg = self.vm, self.lg
        self(text)
        self.vm, self.lg = vm, lg
    def wait(self, vm=None, lg=None):
        parts = []
        if vm is not None and vm > self.vm_done:
            n = self.vm - vm
            if n <= 63:
                parts.append(f'vmcnt({n})'); self.vm_done = vm
            else: raise Exception('vmcnt overflow')
        if lg is not None and lg > self.lg_done:
            n = min(self.lg - lg, 15)
            parts.append(f'lgkmcnt({n})'); self.lg_done = self.lg - n
        if parts: self('s_waitcnt ' + ' '.join(parts))
    def wait_all_vm(self):
        self('s_waitcnt vmcnt(0)'); self.vm_done = self.vm
    def wait_all_lg(self):
        self('s_waitcnt lgkmcnt(0)'); self.lg_done = self.lg
    def finish(self):
        out = []
        hist = []
        nnop = 0
        for c in self.ins:
            if c.label or c.directive or c.empty:
                out.append(c); continue
            req = 0; dist = 0
            for p in reversed(hist):
                n = need(p, c)
                if n > dist: req = max(req, n - dist)
                dist += p.states()
                if dist >= 20: break
            while req > 0:
                k = min(req, 16)
                nop = Ins(f's_nop {k-1}')
                out.append(nop); hist.append(nop); req -= k; nnop += 1
            out.append(c); hist.append(c)
            if c.mn in ('s_branch', 's_endpgm'): hist = []
        lines = []
        for i in out:
            lines.append(i.text if i.label else '    ' + i.text)
        return '\n'.join(lines) + '\n'


import subprocess, tempfile, os
def sizes_of(lines):
    src = '\n'.join(lines) + '\n'
    r = subprocess.run(['llvm-mc', '-triple=amdgcn-amd-amdhsa', '-mcpu=gfx950', '-show-encoding'], input=src, capture_output=True, text=True)
    assert r.returncode == 0, r.stderr[:2000]
    enc = [len(l.split('encoding: [')[1].split(']')[0].split(',')) for l in r.stdout.split('\n') if 'encoding: [' in l]
    out = []; i = 0
    for l in lines:
        t = l.strip()
        if t.endswith(':') or t.startswith('.') or not t: out.append(0)
        else: out.append(enc[i]); i += 1
    assert i == len(enc)
    return out

_PROMO = ('v_add_f32', 'v_mul_f32', 'v_max_f32', 'v_sub_f32', 'v_exp_f32', 'v_rcp_f32', 'v_rsq_f32', 'v_mov_b32', 'v_and_b32', 'v_or_b32',
          'v_xor_b32', 'v_lshlrev_b32', 'v_lshrrev_b32', 'v_add_u32', 'v_min_u32', 'v_max_u32')
def layout(lines, start_label, nchain, align_run=0):
    sz = sizes_of(lines)
    i0 = lines.index(start_label + ':')
    out = lines[:i0 + 1]; pos = 0; page = -1; npad = 0
    last4 = None
    for i in range(i0 + 1, len(lines)):
        l = lines[i]
        if sz[i]:
            if pos >> 12 != page:
                page = pos >> 12
                if nchain:
                    out += [f'L_pad{npad}:', f'    s_cbranch_execz L_pad{npad + nchain}']; npad += 1; pos += 4; last4 = None
            if align_run and sz[i] == 8 and pos % 8 == 4 and last4 is not None:
                run = 0; j = i
                while j < len(lines) and sz[j] in (0, 8) and run < align_run:
                    run += sz[j] == 8 and lines[j].strip().startswith('v_') and 'mfma' not in lines[j]
                    if sz[j] == 8 and not (lines[j].strip().startswith('v_') and 'mfma' not in lines[j]): break
                    j += 1
                if run >= align_run and (pos + 4) >> 12 == page:
                    mn, rest = out[last4].strip().split(None, 1)
                    out[last4] = f'    {mn}_e64 {rest}'; pos += 4
            last4 = len(out) if (sz[i] == 4 and l.strip().split()[0] in _PROMO) else None
            pos += sz[i]
        out.append(l)
    txt = '\n'.join(out) + '\n'
    for k in range(npad, npad + nchain): txt = txt.replace(f'L_pad{k}\n', 'L_warm_done\n')
    return txt, npad
```

```python
import re
BASE = dict(
    SKA='0:b1*4,q0-4', SQA='0:q4-12', CQA='0:q6-14', WQA='0:q15*8', SVA='0:q12-20',
    LaA='0:kv29,kv30,kv31*2,ek0,ek1,ek2,ek3', LbA='0:q5-21/2', LKB='0:eq0*2,eq1*2,eq2*2,eq3*2', LVB='0:w1*2,p8-14',
    SKB='0:w0*8', CKB='0:wp*8', WKB='0:ws*8', SaA='0:w1*8',
    SVB='0:y0*8', CVB='0:yp*8', WVB='0:yp*8',
    SbA='1:kvpre*8',
    SQB='1:q2-18/2', CQB='1:q4-20/2', WQB='1:q19*8',
    LQB='1:kv24-32', LaB='1:ek1a,ek1b,ek1c,ek1d,q3-11/2', LbB='1:q11-19/2,eq0a,eq0b,eq0c,eq0d',
    RVA='1:wi*2,ws*4,w1*2', RKA='1:w1*2,y0*3,yp*3', SaB='1:y1*8', SbB='1:y1*8',
    RQA='2:kv0-32/4b', RaA='2:kv2-32/4b', RbA='2:q1-32/4', RVB='2:q3-19/4,y0*2,yp*2', RKB='2:wi*2,ws*4,w1*2',
    RQB='3:kv0-32/4b', RaB='3:kv2-32/4b', RbB='3:q1-32/4')
def build(ov=''):
    t = dict(BASE)
    for x in ov.split(';'):
        if x:
            k, val = x.split('=')
            t.pop(k, None); t[k] = val
    d = {}
    for name, spec in t.items():
        l, pts = spec.split(':'); n = 0
        for p in pts.split(','):
            ll = int(l)
            if p[0] in '+-': ll += 1 if p[0] == '+' else -1; p = p[1:]
            c = 1
            if '*' in p: p, c = p.split('*'); c = int(c)
            m = re.fullmatch(r'([a-z]+)(\d+)-(\d+)(?:/(\d+))?([a-z]?)', p)
            lst = [f'{m.group(1)}{k}{m.group(5)}' for k in range(int(m.group(2)), int(m.group(3)), int(m.group(4) or 1))] if m else [p]
            for q in lst:
                d.setdefault(f'{ll}.{q}', []).append((name, c)); n += c
        assert name[0] == 'T' or n == 8, (name, n)
    return d
```

```python
import sys, argparse
sys.path.insert(0, 'gen')
from asmlib import *

NAME = 'interleave_layers__linear_attn_block__linear_kernel_hedgehog__prompt'

FLG_O, FLG_X = 0x0000, 0x2000
ZP = 0x10000
STAMP = 0x60000
KVP = 0x100000
EXB, EXSTRIDE = 0x400000, 0x500000
OB, XB, ST = EXB, EXB + 0x200000, EXB + 0x400000
DUMP = 0x2400000
WS_BYTES = 0x4000000
OOB = 0x7F000000
SLOT = 32768
SCR = 4 * SLOT
PL = 2176
L_PK = SCR
L_EX = SCR
L_KV = SCR + 12 * PL
L_CS = L_KV + 2176
L_WP = L_CS + 3072
assert L_WP + 1024 <= 163840

sX, sWA, sWOA, sWB, sWP, sWOB, sOUT, sDBG, sWS, sCODE = 4, 8, 12, 16, 20, 24, 28, 32, 36, 40
_sn = [44]
def salloc(n=1, al=1):
    while _sn[0] % al: _sn[0] += 1
    r = _sn[0]; _sn[0] += n
    assert _sn[0] <= 100
    return r
sW, sR, sG, sRB, sRBO, sJ, sMODE, sBUD, sSTR = [salloc() for _ in range(9)]
sRw, sRo, sCOFF = [salloc() for _ in range(3)]
sXrd, sXwr, sSTrd, sSTwr, sOrd, sOwr, sFOrd, sFOwr, sFXrd, sFXwr = [salloc() for _ in range(10)]
sKVrdA, sKVrdB, sKVwrB, sZrdA, sZrdB, sZwrB, sSKIP = [salloc() for _ in range(7)]
sXO, sONES, sPERM, sHI, sXCC = [salloc() for _ in range(5)]
sROT, sRESP = salloc(), salloc()
sAT = 3
sX0g, sX0l, sW0g, sW0l = sMODE, sSTR, salloc(), salloc()
sL2E = salloc(2, 2); sEPS6 = salloc(2, 2)
sT = [salloc() for _ in range(6)]
sTS = salloc(2, 2)
sE0 = salloc(2, 2); sE1 = salloc(2, 2)

_vn = [1]
def valloc(n=1, al=1):
    while _vn[0] % al: _vn[0] += 1
    r = _vn[0]; _vn[0] += n
    return r
vLane = valloc()
vL16 = valloc(); vL4 = valloc()
vRES = valloc(8, 4)
vWPH = valloc(8, 4)
vSEL = valloc(4, 4)
vCS = valloc(12, 2)
vMF = valloc(2, 2)
vRS = valloc(2, 2)
vPKa, vSVw, vSVo, vCSa = [valloc() for _ in range(4)]
vWtr = valloc(4)
vWdma, vWOdma, vPKwA, vPKwB, vPKrA, vPKrB, vKVw, vZw, vKVrA, vKVrB, vSVt, vE1st, vZst, vSTst, vFl16, vWO = [valloc() for _ in range(16)]
assert _vn[0] <= 64, _vn[0]
vA0, vA1, vWB, vTM = 64, 80, 96, 120
vXF = 128
vM1 = vTM + 2
vXst, vOst = vWtr + 1, vWtr + 2
vPK2 = vLane
vSTAMP = 0

import scheds
BAY = dict(KA=0, VA=1, QA=2, aA=3, bA=4, KB=5, QB=6, VB=7, aB=0, bB=1)
SLOTS = [dict(K=0, V=1, Q=2, a=3, b=0), dict(K=1, V=2, Q=3, a=0, b=1), dict(K=2, V=3, Q=1, a=0, b=3), dict(K=1, V=2, Q=0, a=3, b=1)]

class Gen:
    def __init__(self, opt):
        self.o = opt
        self.e = Asm()
        self.tail = []
        self.nstamp = 0
        self.stamp_names = []
        self.wtr_slot = 0
        self.ndump = 0
        self.bgn = {}; self.bgt = {}; self.seen = set(); self.l = 0
        self.occ = [(0, 'K'), (0, 'V'), (0, 'Q'), (9, 'x')]; self.dead = set(); self.live = {(0, 'K'), (0, 'V')}; self.bayocc = {}; self.in_redo = False
        self.sv = None; self.stag = {}; self.pends = []

    def stamp(self, name):
        if self.o.echo and name in self.o.echo[:2]:
            self.e(f'{self.o.clk} {s(sE0 if name == self.o.echo[0] else sE1, 2)}')
            self.e.wait_all_lg()
        if not self.o.stamps: return
        e = self.e
        if self.o.both:
            if self.o.both == 2 and name not in ('start', 'end'): return
            if self.o.both == 4:
                if name.split('.')[-1] not in ('start', 'pub1', 'e1', 'pub2', 'poll2', 'B3', 'poll3', 'end'): return
            elif self.o.both == 3:
                if not (name.startswith(('chunk', 'L0', 'setup', 'g')) or name in ('start', 'end')): return
            elif name.split('.')[-1] not in ('start', 'chunk0', 'x0', 'kvgemm', 'pub1', 'phiq', 'pub2', 'poll2', 'B3', 'end'): return
            e(f's_memtime {s(sTS,2)}\ns_memrealtime {s(sE0,2)}')
            e.wait_all_lg()
            e(f'v_writelane_b32 {v(vSTAMP)}, {s(sTS)}, {self.nstamp}\nv_writelane_b32 {v(vSTAMP)}, {s(sE0)}, {self.nstamp+31}')
            self.nstamp += 1; self.stamp_names.append(name)
            assert self.nstamp <= 31
            return
        e(f'{self.o.clk} {s(sTS,2)}')
        e.wait_all_lg()
        e(f'v_writelane_b32 {v(vSTAMP)}, {s(sTS)}, {self.nstamp}')
        self.nstamp += 1; self.stamp_names.append(name)
    def dump(self, name, regs):
        if name not in self.o.dump: return
        e = self.e
        for r in regs:
            e(f's_lshl_b32 {s(sT[5])}, s2, 2\ns_add_u32 {s(sT[5])}, {s(sT[5])}, {s(sW)}\ns_lshl_b32 {s(sT[5])}, {s(sT[5])}, 14\ns_add_u32 {s(sT[5])}, {s(sT[5])}, {DUMP + self.ndump*256}')
            e(f'buffer_store_dword {r}, {v(vL4)}, {s(sWS,4)}, {s(sT[5])} offen')
            self.ndump += 1
        assert self.ndump <= 64
        e.wait_all_vm()
    def set_wtr(self, slot, l):
        e = self.e
        if l == 0:
            for q in range(4): e(f'v_add_u32 {v(vWtr+q)}, {slot*SLOT}, {v(vWtr+q)}')
        elif l == 1:
            e(f's_lshl_b32 {s(sT[3])}, {s(sW)}, 11\ns_sub_u32 {s(sT[3])}, {slot*SLOT}, {s(sT[3])}\nv_add_u32 {v(vWtr)}, {s(sT[3])}, {v(vSVw)}')
        else: e(f'v_add_u32 {v(vWtr)}, {slot*SLOT}, {v(vL16)}')
    def dma_w(self, typ, kind, n):
        e = self.e; srd = sWA if typ == 0 else sWB
        part = 'QKV'.index(kind); base = SLOTS[typ][kind] * SLOT - part * 1024
        assert base >= 0
        e(f's_xor_b32 {s(sT[4])}, {s(sRw)}, {(n >> 1)*8192 + (n & 1)*1024}')
        e(f's_add_u32 m0, {s(sT[4])}, {base}')
        e(f's_mul_i32 {s(sT[4])}, {s(sT[4])}, 48')
        return e(f'buffer_load_dwordx4 {v(vWdma)}, {s(srd,4)}, {s(sT[4])} offen offset:{part*1024} lds')
    def dma_wo(self, typ, kind, n):
        e = self.e; srd = sWOA if typ == 0 else sWOB
        e(f's_xor_b32 {s(sT[4])}, {s(sRo)}, {(n >> 1)*8192 + (n & 1)*1024}')
        e(f's_add_u32 m0, {s(sT[4])}, {SLOTS[typ][kind]*SLOT}')
        e(f's_lshl3_add_u32 {s(sT[4])}, {s(sT[4])}, {0x40000 if kind == "b" else 0}')
        return e(f'buffer_load_dwordx4 {v(vWOdma)}, {s(srd,4)}, {s(sT[4])} offen lds')
    def park(self, op, item, n):
        e = self.e; r = BAY[item]*32 + 4*n
        slot = SLOTS['AB'.index(item[1]) + (2 if op == 'R' else 0)][item[0]]
        wo = item[0] in 'ab'
        m, x = (n & 3, n >> 2) if wo else (n >> 1, n & 1)
        if op == 'R':
            return e(f'ds_write_b128 {v(vPKa if slot < 2 else vPK2)}, {a(r,4)} offset:{(slot & 1)*SLOT + m*8192 + x*1024}')
        want = (wo, (slot >> 1) * 0x10000 + (64 * x if wo else 0))
        ad = vSVo if wo else vSVw
        if want[1]:
            if want != self.sv: e(f'v_xor_b32 {v(vSVt)}, {want[1]}, {v(ad)}'); self.sv = want
            ad = vSVt
        off = (slot & 1)*SLOT + m*8192 + (0 if wo else x*512)
        e(f'ds_read_b64_tr_b16 {a(r,2)}, {v(ad)} offset:{off}')
        tag = e(f'ds_read_b64_tr_b16 {a(r+2,2)}, {v(ad)} offset:{off + 1024}')
        self.stag[(item, n)] = tag
        return tag
    def colsum(self, item, n):
        e = self.e
        sel, acc = (vA1 + 8, vA1 + 12) if item[0] == 'Q' else (vXF + 104, vXF + 108)
        if n == 0: self.par_sel(sel)
        e.wait(lg=self.stag[(item, n)])
        e(f'v_mfma_f32_16x16x32_bf16 {v(acc,4)}, {v(sel,4)}, {a(BAY[item]*32 + 4*n, 4)}, {v(acc,4) if n else 0}')
        self.csacc = acc
    def bg_op(self, name, n):
        op, item = name[0], name[1:]
        typ = 'AB'.index(item[1])
        if op == 'C': return self.colsum(item, n)
        if op == 'W':
            assert self.bgn.get('C' + item) == 8
            return self.cs_write([v(self.csacc)], ['QKV'.index(item[0])]) if n == 0 else self.bgt[name]
        if op in 'LR':
            slot = SLOTS[typ + (2 if op == 'R' else 0)][item[0]]
            if n == 0:
                prev = self.occ[slot]
                assert prev is None or prev in self.dead, (name, prev)
                if prev and prev[0] < 2:
                    sv = 'S' + prev[1] + 'AB'[prev[0]]
                    assert self.bgn.get(sv) == 8, (name, sv)
                    if op == 'L': self.e.wait(lg=self.bgt[sv])
                self.occ[slot] = (typ + (2 if op == 'R' else 0), item[0])
        if op == 'S':
            if item in ('KA', 'VA'): assert self.k0 >= 8 * (n >> 1) + 2
            if n == 0:
                prev = self.bayocc.get(BAY[item])
                assert prev is None or (self.bgn.get('R' + prev) == 8 and not self.in_redo), (name, prev)
                self.bayocc[BAY[item]] = item
            if (typ, item[0]) not in self.live:
                assert self.bgn.get('L' + item) == 8 and item != 'QA', name
                self.e.wait(vm=self.bgt['L' + item])
        if op == 'L': return self.dma_w(typ, item[0], n) if item[0] in 'QKV' else self.dma_wo(typ, item[0], n)
        return self.park(op, item, n)
    def need(self, kinds, l=None):
        l = self.l if l is None else l
        for k in kinds:
            nm = ('L' if l < 2 else 'R') + k + 'AB'[l & 1]
            assert self.bgn.get(nm) == 8, (self.l, nm)
            if l < 2: self.e.wait(vm=self.bgt[nm])
            else: self.e.wait(lg=self.bgt[nm])
            self.live.add((l, k))
    def free(self, kinds):
        for k in kinds: self.dead.add((self.l, k))
    def bg(self, point):
        for name, cnt in self.sched.get(f'{self.l}.{point}', []):
            if name[0] == 'T':
                self.share_touch(name[1:]); continue
            for _ in range(cnt):
                n = self.bgn.get(name, 0)
                assert n < 8, name
                if any(name.startswith(x) for x in self.o.skip):
                    keep = self.e; self.e = Asm(); self.e.vm, self.e.lg, self.e.vm_done, self.e.lg_done = keep.vm, keep.lg, keep.vm_done, keep.lg_done
                    self.bg_op(name, n); self.e = keep; self.bgt[name] = 0; self.stag[(name[1:], n)] = 0; self.sv = None
                else: self.bgt[name] = self.bg_op(name, n)
                self.bgn[name] = n + 1
        self.seen.add(f'{self.l}.{point}')
    def tag(self, reg, par):
        self.e(f'v_or_b32 {v(reg)}, 1, {v(reg)}' if par else f'v_and_b32 {v(reg)}, -2, {v(reg)}')
    def chk(self, acc, r0, r1, par, first):
        if first: return f'v_and_b32 {v(acc)}, {v(r0)}, {v(r1)}' if par else f'v_or_b32 {v(acc)}, {v(r0)}, {v(r1)}'
        return f'v_bitop3_b32 {v(acc)}, {v(acc)}, {v(r0)}, {v(r1)} bitop3:0x80' if par else f'v_or3_b32 {v(acc)}, {v(acc)}, {v(r0)}, {v(r1)}'
    def chk_end(self, acc, par, name, tmp=None):
        tmp = acc if tmp is None else tmp
        self.e(f'v_and_b32 {v(tmp)}, 1, {v(acc)}\nv_cmp_ne_u32 vcc, {par}, {v(tmp)}\ns_cbranch_vccnz L_redo_{name}')
    def hop(self, name, sbase, val, r, load, SP, shadow, reinit):
        e = self.e
        ld = f'buffer_load_dword {v(r)}, {v(vFl16)}, {s(sWS,4)}, {s(sbase)} offen sc1'
        cmp = f'v_cmp_gt_u32 vcc, {val}, {v(r)}'
        bud = f's_sub_u32 {s(sBUD)}, {s(sBUD)}, 1\ns_cbranch_scc1 L_fail'
        slow = Asm()
        slow(f'L_redo_{name}:\ns_waitcnt vmcnt(0) lgkmcnt(0)\ns_nop 15')
        self.e = slow; reinit(); self.e = e
        slow(f's_waitcnt lgkmcnt(0)\nL_slow_{name}:\n{ld}\n{bud}\ns_waitcnt vmcnt(0)\n{cmp}\ns_cbranch_vccnz L_slow_{name}')
        for k in range(SP): load(slow, k)
        slow(f's_branch L_ok_{name}')
        self.tail.append(slow)
        again = Asm()
        if self.o.spagain:
            again(f'L_again_{name}:\n{ld}')
            for k in range(SP): load(again, k)
            again(f'{bud}\ns_waitcnt vmcnt({SP})\n{cmp}\ns_cbranch_vccnz L_again_{name}')
        else:
            again(f'L_again_{name}:\n{ld}\n{bud}\ns_waitcnt vmcnt(0)\n{cmp}\ns_cbranch_vccnz L_again_{name}')
            for k in range(SP): load(again, k)
        tag = e(ld)
        if SP:
            e(f's_cmp_lg_u32 {s(sMODE)}, 0\ns_cbranch_scc1 L_nosp_{name}')
            for k in range(SP): load(e, k)
            e(f'L_nosp_{name}:')
        vm = e.vm
        shadow()
        if SP:
            assert e.vm == vm and e.vm_done < tag
            e(f's_cmp_lg_u32 {s(sMODE)}, 0\ns_cbranch_scc1 L_slow_{name}')
        e.wait(vm=tag)
        e(f'{cmp}\ns_cbranch_vccz L_ok_{name}')
        e.ins += again.ins
        e(f'L_ok_{name}:')
        self.in_redo = True; self.sv = None
    def modal(self, name, fn):
        e = self.e
        e(f's_cmp_lg_u32 {s(sMODE)}, 0\ns_cbranch_scc1 L_{name}_safe')
        fn(e, '')
        e(f'L_{name}_join:')
        t = Asm(); t(f'L_{name}_safe:\ns_nop 4'); fn(t, ' sc1'); t(f's_nop 1\ns_branch L_{name}_join')
        self.tail.append(t)

    def x_stats(self):
        e = self.e
        S, Q = vTM, vTM + 1
        for i in range(8):
            e(f'v_dot2_f32_bf16 {v(S)}, {v(vRES+i)}, {s(sONES)}, {v(S) if i else 0}')
            e(f'v_dot2_f32_bf16 {v(Q)}, {v(vRES+i)}, {v(vRES+i)}, {v(Q) if i else 0}')
        e(f'v_permlane32_swap_b32 {v(S)}, {v(Q)}')
        e(f'v_add_f32 {v(S)}, {v(S)}, {v(Q)}\nv_mov_b32 {v(Q)}, {v(S)}')
        e(f'v_permlane16_swap_b32 {v(S)}, {v(Q)}')
        e(f'v_add_f32 {v(S)}, {v(S)}, {v(Q)}')
    def flag(self, e, reg, sflag, m):
        e(f's_mov_b64 exec, 1\nbuffer_store_dword {v(reg)}, off, {s(sWS,4)}, {s(sflag)}{m}\ns_mov_b64 exec, -1')

    def e1_addr(self, l, t):
        if l & 1: return vE1st, vZst
        self.e(f'v_add_u32 {v(t)}, {s(sSKIP)}, {v(vE1st)}\nv_add_u32 {v(t+1)}, {s(sSKIP)}, {v(vZst)}')
        return t, t + 1
    def clear_slot(self, l, m1, ak, az):
        e = self.e
        e(f'v_mov_b32 {v(m1)}, -1\nv_mov_b32 {v(m1+1)}, -1')
        e(f's_add_u32 {s(sT[4])}, {s(sKVwrB)}, {l*0x80000}\ns_add_u32 {s(sT[5])}, {s(sZwrB)}, {l*0x10000}')
        e(f'buffer_store_dwordx2 {v(m1,2)}, {v(ak)}, {s(sWS,4)}, {s(sT[4])} offen sc1')
        return e(f'buffer_store_dword {v(m1)}, {v(az)}, {s(sWS,4)}, {s(sT[5])} offen sc1')
    def dma0(self, P, n, again=False):
        e = self.e
        if n < 4:
            if n == 0 or again:
                e(f's_add_u32 m0, {s(sX0l)}, {(P % 3) * 16384}\ns_xor_b32 {s(sT[0])}, {s(sX0g)}, {P << 7}')
            return e(f'buffer_load_dwordx4 {v(vWPH+n)}, {s(sX,4)}, {s(sT[0])} offen offset:{n*1024} {self.o.xmod if P < self.o.xmodp else str()} lds')
        if n == 4:
            e(f's_xor_b32 {s(sT[1])}, {s(sW0g)}, {P*4096}')
            e(f's_add_u32 m0, {s(sW0l)}, {P*4096 + SLOT - 2048}')
            e(f's_mul_i32 {s(sT[1])}, {s(sT[1])}, 48')
            return e(f'buffer_load_dwordx4 {v(vWdma)}, {s(sWA,4)}, {s(sT[1])} offen offset:2048 lds')
        assert not again
        e(f's_add_u32 m0, {s(sW0l)}, {P*4096}\ns_add_u32 {s(sT[1])}, {s(sT[1])}, 1024')
        return e(f'buffer_load_dwordx4 {v(vWdma)}, {s(sWA,4)}, {s(sT[1])} offen lds')
    def dma0q(self, P):
        e = self.e
        e(f's_xor_b32 {s(sT[1])}, {s(sW0g)}, {P*4096}')
        e(f's_add_u32 m0, {s(sW0l)}, {P*4096 + 2*SLOT}')
        e(f's_mul_i32 {s(sT[1])}, {s(sT[1])}, 48')
        return e(f'buffer_load_dwordx4 {v(vWdma)}, {s(sWA,4)}, {s(sT[1])} offen lds')

    def touch(self, i):
        e = self.e; T = sT; t16, t4 = vTM + 6, vTM + 7
        if i in (0, 9):
            e(f's_lshl2_add_u32 {s(T[5])}, s2, {s(sW)}\ns_lshr_b32 {s(T[4])}, {s(T[5])}, 1\ns_lshl_b32 {s(T[4])}, {s(T[4])}, 11\ns_lshl_b32 {s(T[5])}, {s(T[5])}, 9\ns_add_u32 {s(T[4])}, {s(T[4])}, {s(T[5])}')
            return e(f'buffer_load_dword a255, {v(t4)}, {s(sWA if i == 0 else sWB,4)}, {s(T[4])} offen')
        if i in (1, 5):
            e(f's_lshl2_add_u32 {s(T[5])}, s2, {s(sW)}\ns_lshl_b32 {s(T[5])}, {s(T[5])}, 9')
            return e(f'buffer_load_dword a255, {v(t4)}, {s(sWOA if i == 1 else sWOB,4)}, {s(T[5])} offen')
        if i == 2: return e(f'buffer_load_dword a255, {v(t16)}, {s(sWS,4)}, {s(sOwr)} offen {self.o.tmod}')
        if i == 7:
            e(f's_lshl4_add_u32 {s(T[5])}, {s(sR)}, {s(sG)}\ns_lshl2_add_u32 {s(T[5])}, {s(T[5])}, {s(sW)}\ns_lshl_b32 {s(T[5])}, {s(T[5])}, 11')
            return e(f'buffer_load_dword a255, {v(t16)}, {s(sX,4)}, {s(T[5])} offen')
        if i in (3, 8):
            e(f's_lshl_b32 {s(T[5])}, {s(sW)}, 8\ns_add_u32 {s(T[5])}, {s(T[5])}, s2\ns_min_u32 {s(T[5])}, {s(T[5])}, 767\ns_lshl_b32 {s(T[5])}, {s(T[5])}, 11')
            return e(f'buffer_load_dword a255, {v(t16)}, {s(sWB if i == 3 else sWA,4)}, {s(T[5])} offen')
        if i in (4, 6):
            e(f's_lshl_b32 {s(T[5])}, {s(sG)}, 11\ns_add_u32 {s(T[5])}, {s(T[5])}, {s(sXrd)}')
            return e(f'buffer_load_dword a255, {v(t16)}, {s(sWS,4)}, {s(T[5])} offen {self.o.tmod if i == 4 else str()}')

    def share_touch(self, name):
        e = self.e; t = vSVt; self.sv = None
        kinds, typ = name[:-1], 'AB'.index(name[-1])
        dst = 'a223' if self.l else 'a255'
        if kinds[0] in 'ab':
            e(f's_and_b32 {s(sT[5])}, {s(sG)}, 7\ns_lshl_b32 {s(sT[5])}, {s(sT[5])}, 7\ns_lshl3_add_u32 {s(sT[4])}, {s(sRo)}, {s(sT[5])}')
            if kinds == 'b': e(f's_add_u32 {s(sT[4])}, {s(sT[4])}, 0x40000')
            e(f'v_lshrrev_b32 {v(t)}, 6, {v(vL4)}\nv_lshlrev_b32 {v(t)}, {18 if kinds == "ab" else 26}, {v(t)}\nv_lshl_add_u32 {v(t)}, {v(vFl16)}, 8, {v(t)}')
            return e(f'buffer_load_dword {dst}, {v(t)}, {s(sWOA if typ == 0 else sWOB,4)}, {s(sT[4])} offen')
        e(f's_mul_i32 {s(sT[4])}, {s(sRw)}, 48\ns_lshl_b32 {s(sT[5])}, {s(sG)}, 6\ns_add_u32 {s(sT[4])}, {s(sT[4])}, {s(sT[5])}')
        e(f'v_mul_u32_u24 {v(t)}, 768, {v(vL4)}')
        if kinds == 'KV': e(f's_mov_b64 exec, 0xffffffff\ns_not_b64 exec, exec\nv_subrev_u32 {v(t)}, {32*3072 - 1024}, {v(t)}\ns_mov_b64 exec, -1')
        else: e('s_mov_b64 exec, 0xffffffff')
        tag = e(f'buffer_load_dword {dst}, {v(t)}, {s(sWA if typ == 0 else sWB,4)}, {s(sT[4])} offen offset:{"QKV".index(kinds[0])*1024}')
        if kinds != 'KV': e('s_mov_b64 exec, -1')
        return tag
    def code_touch(self, dst):
        return self.e(f'buffer_load_dword {dst}, {v(vL16)}, {s(sCODE,4)}, {s(sCOFF)} offen')
    def dummy(self, i):
        e = self.e
        if i < 4: return e(f'buffer_store_dwordx4 {v(vSEL,4)}, {v(vL16)}, {s(sWS,4)}, {s((sOwr, sXwr)[i >> 1])} offen offset:{(i & 1)*1024} sc1')
        return e(f'buffer_store_dword {v(vSEL)}, {v(vSTst)}, {s(sWS,4)}, {s(sSTwr)} offen sc1')

    def prologue(self):
        e = self.e
        T = sT
        e('s_cmp_ge_u32 s2, 256\ns_cbranch_scc1 L_fail')
        if self.o.echo and self.o.echo[0] == 'entry': e(f'{self.o.clk} {s(sE0,2)}')
        for srd, off in ((sX, 0), (sWA, 8), (sWS, 72), (sWOA, 16), (sWB, 32), (sWP, 40), (sWOB, 48), (sOUT, 56), (sDBG, 64)):
            e(f's_load_dwordx2 {s(srd,2)}, s[0:1], {off}')
        e(f's_getpc_b64 {s(sCODE,2)}')
        e(f'v_and_b32 {v(vLane)}, 63, v0\nv_lshrrev_b32 {v(vTM)}, 6, v0')
        e(f's_mov_b32 {s(sCODE+2)}, L_code_end-{NAME}_kernel-128\ns_mov_b32 {s(sCODE+3)}, 0x20000')
        e(f'v_readfirstlane_b32 {s(sW)}, {v(vTM)}')
        e(f'v_lshlrev_b32 {v(vL16)}, 4, {v(vLane)}')
        e(f's_lshr_b32 {s(sG)}, s2, 3\ns_lshl2_add_u32 {s(T[0])}, {s(sG)}, {s(sW)}')
        e(f's_and_b32 {s(T[0])}, {s(T[0])}, 63\ns_lshl_b32 {s(T[0])}, {s(T[0])}, 10\ns_min_u32 {s(sCOFF)}, {s(T[0])}, L_code_end-{NAME}_kernel-128-1024')
        self.code_touch('a255')
        e(f'v_lshlrev_b32 {v(vTM+6)}, 7, {v(vLane)}')
        for srd, sz in ((sX, 0x200000), (sWA, 0x180000), (sWS, WS_BYTES)):
            e(f's_mov_b32 {s(srd+2)}, {sz}\ns_mov_b32 {s(srd+3)}, 0x20000')
        t0, t1, t2 = vA1, vA1 + 1, vA1 + 2
        e(f'''
        s_and_b32 {s(sR)}, s2, 7
        s_lshl_b32 {s(sR)}, {s(sR)}, 1
        s_lshr_b32 {s(T[0])}, s2, 7
        s_add_u32 {s(sR)}, {s(sR)}, {s(T[0])}
        s_and_b32 {s(sG)}, {s(sG)}, 15
        s_lshl_b32 {s(sRB)}, {s(sR)}, 2
        s_add_u32 {s(sRB)}, {s(sRB)}, {s(sW)}
        s_and_b32 {s(sROT)}, {s(sG)}, 1
        s_lshl1_add_u32 {s(sROT)}, {s(sROT)}, {s(T[0])}
        s_lshl_b32 {s(sROT)}, {s(sROT)}, 1
        s_and_b32 {s(sROT)}, {s(sROT)}, {self.o.rotm}
        s_lshr_b32 {s(T[1])}, {s(sG)}, 1
        s_xor_b32 {s(sROT)}, {s(sROT)}, {s(T[1])}
        s_xor_b32 {s(sROT)}, {s(sROT)}, s2
        s_and_b32 {s(sROT)}, {s(sROT)}, {self.o.rotf}
        s_lshl_b32 {s(sX0g)}, {s(sRB)}, 8
        s_add_u32 {s(sX0g)}, {s(sX0g)}, {s(sROT)}
        s_lshl_b32 {s(sX0g)}, {s(sX0g)}, 7
        s_lshl_b32 {s(sX0l)}, {s(sW)}, 12
        s_add_u32 {s(sX0l)}, {s(sX0l)}, {3*SLOT}
        s_lshl_b32 {s(sW0l)}, {s(sW)}, 10
        s_lshl2_add_u32 {s(sW0g)}, {s(sROT)}, {s(sW)}
        s_lshl_b32 {s(sW0g)}, {s(sW0g)}, 10
        s_lshl_b32 {s(T[2])}, {s(sG)}, 6
        v_lshrrev_b32 {v(vWdma)}, 2, {v(vLane)}
        v_mul_u32_u24 {v(vWdma)}, 3072, {v(vWdma)}
        v_and_b32 {v(vTM+5)}, 3, {v(vLane)}
        v_lshl_add_u32 {v(vWdma)}, {v(vTM+5)}, 4, {v(vWdma)}
        v_add_u32 {v(vWdma)}, {s(T[2])}, {v(vWdma)}
        v_lshrrev_b32 {v(vTM+4)}, 4, {v(vLane)}
        v_and_b32 {v(t2)}, 7, {v(vLane)}
        v_xor_b32 {v(t1)}, {v(t2)}, {v(vTM+4)}
        v_lshlrev_b32 {v(t1)}, 4, {v(t1)}
        v_lshrrev_b32 {v(t0)}, 3, {v(vLane)}
        v_lshl_add_u32 {v(vWPH)}, {v(t0)}, 10, {v(t1)}
        v_xor_b32 {v(vWPH+1)}, 64, {v(vWPH)}
        v_add_u32 {v(vWPH+1)}, {7168}, {v(vWPH+1)}
        v_add_u32 {v(vWPH+2)}, {2*7168}, {v(vWPH)}
        v_add_u32 {v(vWPH+3)}, {2*7168}, {v(vWPH+1)}
        v_and_b32 {v(vTM)}, 31, {v(vLane)}
        v_lshrrev_b32 {v(vTM+1)}, 5, {v(vLane)}
        v_lshlrev_b32 {v(vL4)}, 2, {v(vLane)}
        ''')
        e(f'''
        s_lshl_b32 {s(T[3])}, {s(sG)}, 2
        s_add_u32 {s(T[3])}, {s(T[3])}, {s(sW)}
        s_lshl_b32 {s(sKVrdB)}, {s(T[3])}, 13
        s_add_u32 {s(sKVrdB)}, {s(sKVrdB)}, {KVP}
        s_lshl_b32 {s(sZrdB)}, {s(T[3])}, 10
        s_add_u32 {s(sZrdB)}, {s(sZrdB)}, {ZP}
        s_lshl_b32 {s(T[4])}, {s(sR)}, 9
        s_add_u32 {s(sKVwrB)}, {s(sKVrdB)}, {s(T[4])}
        s_lshl_b32 {s(T[5])}, {s(sR)}, 6
        s_add_u32 {s(sZwrB)}, {s(sZrdB)}, {s(T[5])}
        v_and_b32 {v(vFl16)}, 60, {v(vL4)}
        v_lshlrev_b32 {v(t0)}, 2, {v(vFl16)}
        v_lshl_add_u32 {v(t0)}, {v(vTM+1)}, 8, {v(t0)}
        v_and_b32 {v(t1)}, 1, {v(vTM+4)}
        v_lshl_add_u32 {v(vE1st)}, {v(t1)}, 3, {v(t0)}
        v_lshl_add_u32 {v(vZst)}, {v(vTM+4)}, 26, {v(vFl16)}
        s_lshr_b32 {s(sSKIP)}, {s(sR)}, 3
        s_lshr_b32 {s(T[1])}, {s(sW)}, 1
        s_xor_b32 {s(sSKIP)}, {s(sSKIP)}, {s(T[1])}
        s_lshl_b32 {s(sSKIP)}, {s(sSKIP)}, 28
        v_mov_b32 {v(vA0+4)}, 0
        s_lshr_b32 {s(sFOwr)}, {s(sG)}, 1
        s_lshl_b32 {s(sFOwr)}, {s(sFOwr)}, 13
        s_add_u32 {s(sFOwr)}, {s(sFOwr)}, {s(T[4])}
        s_and_b32 {s(sFOrd)}, {s(sG)}, 1
        s_lshl_b32 {s(sFOrd)}, {s(sFOrd)}, 8
        s_add_u32 {s(sFOwr)}, {s(sFOwr)}, {s(sFOrd)}
        ''')
        e(f'v_lshrrev_b32 {v(t0)}, 2, {v(vLane)}\nv_lshl_add_u32 {v(vTM+7)}, {v(t0)}, 26, {v(vTM+6)}\nv_lshl_add_u32 {v(vTM+6)}, {v(vTM+4)}, 26, {v(vTM+6)}')
        for srd, sz in ((sWOA, 0x80000), (sWB, 0x180000), (sWOB, 0x80000)):
            e(f's_mov_b32 {s(srd+2)}, {sz}\ns_mov_b32 {s(srd+3)}, 0x20000')
        e('s_waitcnt lgkmcnt(0)')
        if self.o.stamps:
            e(f's_memrealtime {s(sTS,2)}'); e.wait_all_lg()
            e(f'v_writelane_b32 {v(vSTAMP)}, {s(sTS)}, 62')
        self.stamp('start')
        self.ct = [None] * 8
        for c in self.o.t0: self.touch(int(c))
        for n in range(6): self.ct[0] = self.dma0(0, n)
        for c in self.o.t1: self.touch(int(c))
        if self.o.q0 > 0: self.dma0q(0)
        for n in range(self.o.c1early): self.ct[1] = self.dma0(1, n)
        e(f's_and_b32 {s(sFOrd)}, {s(T[3])}, 0x33\ns_cbranch_scc1 L_noclr')
        e.raw(f'buffer_store_dword {v(vA0+4)}, {v(vL4)}, {s(sWS,4)}, {s(sFOwr)} offen sc1')
        e('L_noclr:')
        e(f's_and_b32 {s(sFOrd)}, {s(T[3])}, 0x23\ns_cmp_lg_u32 {s(sFOrd)}, 1\ns_cbranch_scc1 L_noclr2')
        e(f's_lshl3_add_u32 {s(sFOrd)}, {s(sR)}, {s(sG)}\ns_lshl_b32 {s(sFOrd)}, {s(sFOrd)}, 10\ns_add_u32 {s(sFOrd)}, {s(sFOrd)}, {ST}')
        for i in range(4): e(f'v_mov_b32 {v(vA0+8+i)}, -1')
        e.raw(f'buffer_store_dwordx4 {v(vA0+8,4)}, {v(vL16)}, {s(sWS,4)}, {s(sFOrd)} offen sc1')
        e('L_noclr2:')
        self.clear_slot(0, vM1, *self.e1_addr(0, vA0 + 6))
        for srd, sz in ((sWP, 0x4000), (sOUT, 0x200000), (sDBG, 256)):
            e(f's_mov_b32 {s(srd+2)}, {sz}\ns_mov_b32 {s(srd+3)}, 0x20000')
        e(f'''
        s_and_b32 {s(T[0])}, {s(sW)}, 1
        s_lshr_b32 {s(T[1])}, {s(sW)}, 1
        s_lshl_b32 {s(sRBO)}, {s(sR)}, 2
        s_lshr_b32 {s(T[4])}, {s(sG)}, 3
        s_lshl_b32 {s(T[4])}, {s(T[4])}, 1
        s_add_u32 {s(T[4])}, {s(T[4])}, {s(T[0])}
        s_add_u32 {s(sRBO)}, {s(sRBO)}, {s(T[4])}
        s_lshl_b32 {s(T[3])}, {s(T[4])}, 12
        s_add_u32 {s(T[3])}, {s(T[3])}, {3*SLOT}
        s_and_b32 {s(sJ)}, {s(sG)}, 7
        s_xor_b32 {s(sRESP)}, {s(sJ)}, {s(sROT)}
        s_lshl_b32 {s(sJ)}, {s(sJ)}, 1
        s_add_u32 {s(sJ)}, {s(sJ)}, {s(T[1])}
        s_lshl_b32 {s(sXO)}, {s(sRBO)}, 15
        s_lshl_b32 {s(T[2])}, {s(T[1])}, 14
        s_add_u32 {s(sXO)}, {s(sXO)}, {s(T[2])}
        s_and_b32 {s(T[2])}, {s(sG)}, 7
        s_lshl_b32 {s(T[2])}, {s(T[2])}, 7
        s_add_u32 {s(sXO)}, {s(sXO)}, {s(T[2])}
        s_and_b32 {s(T[4])}, {s(sG)}, 1
        s_and_b32 {s(T[5])}, {s(sR)}, 1
        s_lshl1_add_u32 {s(T[4])}, {s(T[4])}, {s(T[5])}
        s_and_b32 {s(T[4])}, {s(T[4])}, {self.o.rotw}
        s_lshl2_add_u32 {s(T[4])}, {s(T[4])}, {s(sW)}
        s_lshl_b32 {s(sRw)}, {s(T[4])}, 11
        s_lshr_b32 {s(T[4])}, {s(sG)}, 3
        s_lshl1_add_u32 {s(T[4])}, {s(T[4])}, {s(T[5])}
        s_and_b32 {s(T[4])}, {s(T[4])}, {self.o.roto}
        s_lshl2_add_u32 {s(T[4])}, {s(T[4])}, {s(sW)}
        s_lshl_b32 {s(sRo)}, {s(T[4])}, 11
        s_lshl_b32 {s(T[4])}, {s(T[1])}, 12
        s_add_u32 {s(sKVrdA)}, {s(sKVrdB)}, {s(T[4])}
        s_lshl_b32 {s(T[4])}, {s(T[1])}, 9
        s_add_u32 {s(sZrdA)}, {s(sZrdB)}, {s(T[4])}
        s_lshl_b32 {s(T[4])}, {s(sRB)}, 15
        s_add_u32 {s(sXrd)}, {s(T[4])}, {XB}
        s_lshl_b32 {s(T[5])}, {s(sG)}, 11
        s_add_u32 {s(sOwr)}, {s(T[4])}, {s(T[5])}
        s_add_u32 {s(sOwr)}, {s(sOwr)}, {OB}
        s_lshl_b32 {s(T[4])}, {s(sRBO)}, 15
        s_lshl_b32 {s(T[5])}, {s(T[2])}, 5
        s_add_u32 {s(sXwr)}, {s(T[4])}, {s(T[5])}
        s_lshl_b32 {s(T[5])}, {s(T[1])}, 8
        s_add_u32 {s(sXwr)}, {s(sXwr)}, {s(T[5])}
        s_add_u32 {s(sXwr)}, {s(sXwr)}, {XB}
        s_lshl_b32 {s(T[5])}, {s(T[1])}, 10
        s_add_u32 {s(sOrd)}, {s(T[4])}, {s(T[5])}
        s_add_u32 {s(sOrd)}, {s(sOrd)}, {OB}
        s_lshl_b32 {s(sSTrd)}, {s(sRB)}, 11
        s_add_u32 {s(sSTrd)}, {s(sSTrd)}, {ST}
        s_lshl_b32 {s(sSTwr)}, {s(sRBO)}, 11
        s_and_b32 {s(T[4])}, {s(sG)}, 6
        s_add_u32 {s(T[4])}, {s(T[4])}, {s(T[1])}
        s_lshl_b32 {s(T[5])}, {s(T[4])}, 8
        s_add_u32 {s(sSTwr)}, {s(sSTwr)}, {s(T[5])}
        s_and_b32 {s(T[5])}, {s(sG)}, 1
        s_lshl3_add_u32 {s(sSTwr)}, {s(T[5])}, {s(sSTwr)}
        s_add_u32 {s(sSTwr)}, {s(sSTwr)}, {ST}
        s_lshl_b32 {s(sFXrd)}, {s(sRB)}, 7
        s_lshl_b32 {s(T[5])}, {s(sG)}, 2
        s_add_u32 {s(sFOwr)}, {s(sFXrd)}, {s(T[5])}
        s_add_u32 {s(sFXrd)}, {s(sFXrd)}, {FLG_X}
        s_lshl_b32 {s(sFOrd)}, {s(sRBO)}, 7
        s_lshl_b32 {s(T[5])}, {s(sJ)}, 2
        s_add_u32 {s(sFXwr)}, {s(sFOrd)}, {s(T[5])}
        s_add_u32 {s(sFXwr)}, {s(sFXwr)}, {FLG_X}
        s_mov_b32 {s(sONES)}, 0x3f803f80
        s_mov_b32 {s(sPERM)}, 0x07060302
        s_mov_b32 {s(sHI)}, 0xffff0000
        s_mov_b32 {s(sL2E)}, 0x3fb8aa3b
        s_mov_b32 {s(sL2E+1)}, 0x3fb8aa3b
        s_mov_b32 {s(sEPS6)}, 0x358637bd
        s_mov_b32 {s(sEPS6+1)}, 0x358637bd
        s_getreg_b32 {s(sXCC)}, hwreg(HW_REG_XCC_ID, 0, 3)
        s_lshl_b32 {s(sXCC)}, {s(sXCC)}, 2
        s_mov_b32 {s(sBUD)}, 100000
        ''')
        e(f'''
        v_add_lshl_u32 {v(vSTst)}, {v(vFl16)}, {v(vTM+1)}, 2
        v_lshrrev_b32 {v(t0)}, 3, {v(vLane)}
        v_lshlrev_b32 {v(t1)}, 1, {v(vTM+4)}
        v_xor_b32 {v(t1)}, {v(t1)}, {v(t2)}
        v_lshlrev_b32 {v(t1)}, 4, {v(t1)}
        v_lshl_add_u32 {v(vWOdma)}, {v(t0)}, 10, {v(t1)}
        v_add_u32 {v(vWOdma)}, {s(T[2])}, {v(vWOdma)}
        ''')
        e(f'''
        v_bfe_u32 {v(t0)}, {v(vLane)}, 2, 2
        v_lshl_add_u32 {v(t0)}, {v(vTM+1)}, 4, {v(t0)}
        v_lshlrev_b32 {v(t0)}, 6, {v(t0)}
        v_and_b32 {v(t1)}, 1, {v(vTM+4)}
        v_lshl_add_u32 {v(t0)}, {v(t1)}, 5, {v(t0)}
        v_and_b32 {v(t1)}, 1, {v(vLane)}
        v_lshl_add_u32 {v(t0)}, {v(t1)}, 4, {v(t0)}
        v_bfe_u32 {v(t1)}, {v(vLane)}, 1, 1
        v_lshl_add_u32 {v(t0)}, {v(t1)}, 3, {v(t0)}
        v_bfe_u32 {v(t1)}, {v(vLane)}, 1, 3
        v_lshlrev_b32 {v(t2)}, 1, {v(vTM+1)}
        v_xor_b32 {v(t1)}, {v(t1)}, {v(t2)}
        v_lshlrev_b32 {v(t1)}, 4, {v(t1)}
        v_lshl_add_u32 {v(t1)}, {v(vTM)}, 7, {v(t1)}
        s_lshl_b32 {s(T[4])}, {s(T[1])}, 11
        s_add_u32 {s(T[4])}, {s(T[4])}, {s(T[3])}
        v_bfe_u32 {v(t2)}, {v(vLane)}, 1, 3
        v_xor_b32 {v(t2)}, {v(t2)}, {v(vTM+1)}
        v_lshl_add_u32 {v(t2)}, {v(t2)}, 4, {s(T[4])}
        v_lshl_add_u32 {v(t2)}, {v(vFl16)}, 5, {v(t2)}
        v_and_b32 {v(vA0+5)}, 1, {v(vTM+4)}
        v_lshl_add_u32 {v(vA0+5)}, {v(vA0+5)}, 3, {v(t2)}
        v_add_u32 {v(t1)}, {s(sX0l)}, {v(t1)}
        s_lshl_b32 {s(T[4])}, {s(sW)}, 11
        v_add_u32 {v(vSVw)}, {s(T[4])}, {v(t0)}
        v_mul_u32_u24 {v(t2)}, 768, {v(vTM+1)}
        v_sub_u32 {v(vSVw)}, {v(vSVw)}, {v(t2)}
        v_add_u32 {v(vPKa)}, {s(T[4])}, {v(vL16)}
        s_lshl2_add_u32 {s(T[5])}, {s(sW)}, {L_CS}
        v_lshl_add_u32 {v(vCSa)}, {v(vTM)}, 4, {s(T[5])}
        ''')
        for q in range(4):
            e(f'''
            s_xor_b32 {s(T[4])}, {s(sW)}, {q}
            s_lshr_b32 {s(T[5])}, {s(T[4])}, 1
            s_lshl_b32 {s(T[5])}, {s(T[5])}, 2
            s_and_b32 {s(T[4])}, {s(T[4])}, 1
            s_add_u32 {s(T[4])}, {s(T[4])}, {s(T[5])}
            s_lshl_b32 {s(T[5])}, {s(T[4])}, 9
            v_add_u32 {v(vWtr+q)}, {s(T[5])}, {v(t0)}
            s_lshl_b32 {s(T[5])}, {s(T[4])}, 4
            v_xor_b32 {v(vWPH+4+q)}, {s(T[5])}, {v(t1)}
            ''')
        e(f'''
        s_lshl_b32 {s(T[4])}, {s(sW)}, 9
        s_add_u32 {s(T[4])}, {s(T[4])}, {L_PK}
        v_lshl_add_u32 {v(t0)}, {v(vTM)}, 4, {s(T[4])}
        v_mul_u32_u24 {v(t1)}, {PL}, {v(vTM+1)}
        v_add_u32 {v(vPKwA)}, {v(t0)}, {v(t1)}
        v_lshl_add_u32 {v(vPKwB)}, {v(t1)}, 2, {v(t0)}
        v_bfe_u32 {v(t0)}, {v(vLane)}, 1, 1
        v_mul_u32_u24 {v(t0)}, {PL}, {v(t0)}
        v_lshrrev_b32 {v(t1)}, 2, {v(vLane)}
        v_lshl_add_u32 {v(t0)}, {v(t1)}, 4, {v(t0)}
        v_and_b32 {v(t1)}, 1, {v(vLane)}
        v_lshl_add_u32 {v(t0)}, {v(t1)}, 3, {v(t0)}
        s_mul_i32 {s(T[4])}, {s(sW)}, {2*PL}
        s_add_u32 {s(T[4])}, {s(T[4])}, {L_PK}
        v_add_u32 {v(vPKrB)}, {s(T[4])}, {v(t0)}
        s_mul_i32 {s(T[4])}, {s(T[0])}, {2*PL}
        s_add_u32 {s(T[4])}, {s(T[4])}, {L_PK}
        v_add_u32 {v(vPKrA)}, {s(T[4])}, {v(t0)}
        ''')
        e(f'''
        s_mul_i32 {s(T[4])}, {s(sW)}, 544
        s_add_u32 {s(T[4])}, {s(T[4])}, {L_KV}
        v_lshl_add_u32 {v(t0)}, {v(vFl16)}, 3, {s(T[4])}
        v_lshl_add_u32 {v(vKVw)}, {v(vTM+4)}, 3, {v(t0)}
        v_lshrrev_b32 {v(t0)}, 1, {v(vFl16)}
        v_add_u32 {v(vZw)}, {s(T[4])}, {v(t0)}
        v_min_u32 {v(t0)}, 16, {v(vTM)}
        v_lshlrev_b32 {v(t0)}, 5, {v(t0)}
        v_add_u32 {v(t0)}, {L_KV}, {v(t0)}
        v_lshl_add_u32 {v(vKVrA)}, {v(vTM+1)}, 4, {v(t0)}
        v_mul_u32_u24 {v(t1)}, 1088, {v(vTM+1)}
        v_add_u32 {v(vKVrB)}, {v(t0)}, {v(t1)}
        ''')
        e(f'''
        v_bfe_u32 {v(t0)}, {v(vLane)}, 2, 3
        v_lshlrev_b32 {v(t0)}, 7, {v(t0)}
        v_lshl_add_u32 {v(t0)}, {v(vTM+5)}, 3, {v(t0)}
        v_bfe_u32 {v(t1)}, {v(vLane)}, 3, 2
        v_lshl_add_u32 {v(t0)}, {v(t1)}, 5, {v(t0)}
        v_lshl_add_u32 {v(vWO)}, {v(vTM+1)}, 11, {v(t0)}
        v_lshlrev_b32 {v(t1)}, 5, {v(vTM+1)}
        v_xor_b32 {v(t0)}, {v(t0)}, {v(t1)}
        s_lshl_b32 {s(T[5])}, {s(sW)}, 11
        v_add_u32 {v(vSVo)}, {s(T[5])}, {v(t0)}
        ''')
        e(f'''
        v_and_b32 {v(t0)}, 1, {v(vLane)}
        v_lshlrev_b32 {v(t0)}, 4, {v(t0)}
        v_mov_b32 {v(t1)}, 0x3f80
        v_lshlrev_b32 {v(t0)}, {v(t0)}, {v(t1)}
        v_lshrrev_b32 {v(t1)}, 1, {v(vLane)}
        v_xor_b32 {v(t1)}, {v(t1)}, {v(vLane)}
        v_and_b32 {v(t1)}, 8, {v(t1)}
        v_bfe_u32 {v(t2)}, {v(vLane)}, 1, 2
        v_or_b32 {v(t1)}, {v(t1)}, {v(t2)}
        ''')
        for d in range(4):
            e(f'v_cmp_eq_u32 vcc, {d}, {v(t1)}\nv_cndmask_b32 {v(vSEL+d)}, 0, {v(t0)}, vcc')
        e(f'v_add_u32 {v(vPK2)}, {2*SLOT}, {v(vPKa)}')
        e(f'v_mov_b32 {v(vTM+4)}, {v(vA0+5)}')
        for n in range(self.o.c1early, 6): self.ct[1] = self.dma0(1, n, again=(n == self.o.c1early))
        if self.o.q0 > 1: self.dma0q(1)
        if self.o.dummy < 0:
            for i in range(5): self.dummy(i)
        for c in self.o.t2: self.touch(int(c))
        if self.o.padp < 0: self.warm()
        e('s_branch L_main\n.p2align 12\nL_main:')
        self.stamp('setup')

    def big(self, acc, b, k):
        if not self.o.fake16:
            return self.e(f'v_mfma_f32_32x32x16_bf16 {v(acc,16)}, {v(b,4)}, {v(vXF+4*k,4)}, {v(acc,16) if k else 0}')
        c = acc + 8 * (k & 1)
        self.e(f'v_mfma_f32_16x16x32_bf16 {v(c,4)}, {v(b,4)}, {v(vXF+4*k,4)}, {v(c,4) if k > 1 else 0}')
        self.pend = f'v_mfma_f32_16x16x32_bf16 {v(c+4,4)}, {v(b,4)}, {v(vXF+4*max(k-1,0),4)}, {v(c+4,4) if k > 1 else 0}'
        self.pend_at = len(self.e.ins) + 2
        self.pends.append((self.pend_at, self.pend))
    def warm(self):
        if not self.o.pads: return
        e = self.e
        e(f's_mov_b64 exec, 0')
        for w in range(3): e(f's_cmp_eq_u32 {s(sW)}, {w}\ns_cbranch_scc1 L_pad{w}')
        e('s_branch L_pad3\nL_warm_done:\ns_mov_b64 exec, -1\ns_nop 3')
    def par_sel(self, dst):
        e = self.e
        e(f's_mov_b32 vcc_lo, 0xf0f00f0f\ns_mov_b32 vcc_hi, 0xf0f00f0f\nv_mov_b32 {v(dst+1)}, {s(sONES)}')
        e(f'v_cndmask_b32 {v(dst)}, 0, {v(dst+1)}, vcc')
        for i in (1, 2, 3): e(f'v_mov_b32 {v(dst+i)}, {v(dst)}')
    def rowsum(self, acc, sel, frag, first):
        self.e(f'v_mfma_f32_16x16x32_bf16 {acc}, {v(sel,4)}, {v(frag,4)}, {0 if first else acc}')

    def kv_gemm0(self):
        e = self.e
        sel = vCS + 8
        self.par_sel(sel)
        aS, aK, aV = a(240, 4), a(244, 4), a(248, 4)
        wt = [None] * 32; xt = [None] * 32
        dl = []
        def dma(n):
            for _ in range(n):
                if dl:
                    P, i = dl.pop(0)
                    if P < 8: self.ct[P] = self.dma0(P, i)
                    elif P == 8: self.bgt['LQA'] = self.dma0q(i); self.bgn['LQA'] = i + 1
                    elif P == 9: self.touch(i)
                    elif P == 11: self.dummy(i)
                    elif P == 12: self.code_touch('a255')
                    elif P == 10: self.clr1 = self.clear_slot(1, vM1, vE1st, vZst)
        cK, cV = vCS + 2, vCS + 4
        sb = vWPH
        q0, q1 = vTM, vTM + 1
        dq = []
        sops = [f'v_accvgpr_read_b32 {v(sb)}, a240', f'v_add_f32 {v(sb+1)}, {v(q0)}, {v(q1)}', f'v_mov_b32 {v(sb+3)}, {v(sb+1)}',
                f'v_permlane32_swap_b32 {v(sb+1)}, {v(sb+3)}', f'v_add_f32 {v(sb+1)}, {v(sb+1)}, {v(sb+3)}'] + self.stats_tail(sb)
        def pop(n):
            for _ in range(n):
                if dq: e(dq.pop(0))
                elif k >= 27 and sops: e(sops.pop(0))
        nq = self.o.q0
        touches = {int(x[0]): [int(c) for c in x[1:]] for x in self.o.touch.split(',') if x}
        for k in range(-2, 32):
            b = vWB + (k % 3) * 8
            nb = vWB + ((k + 2) % 3) * 8
            fr = [k + 1] if -1 <= k < 27 else ([28, 29, 30, 31] if k == 27 else [])
            bound = (k + 2) % 4 == 0 and k + 2 < 32
            if k >= 0:
                e.wait(lg=max(wt[k], xt[k]))
                if k % 4 == 0:
                    self.rowsum(aK, sel, b, k == 0); self.rowsum(aV, sel, b + 4, k == 0)
                self.big(vA0, b, k)
            if bound:
                P = (k + 2) >> 2
                dma(99)
                if P == self.o.padp: self.warm()
                e.wait(vm=self.ct[P])
                e('s_barrier')
                if P == 0 or self.o.fine: self.stamp(f'chunk{P}')
                for q in range(4):
                    xt[4*P+q] = e(f'ds_read_b128 {v(vXF+16*P+4*q,4)}, {v(vWPH+4+q)} offset:{(P%3)*16384}')
                if P + 2 < 8: dl += [(P + 2, i) for i in range(6)]
                if P == self.o.clrp: dl += [(10, 0)]
                for _ in range(int(self.o.qs[P])):
                    dl += [(8, nq)]; nq += 1
                if P == 5 and self.o.ctouch & 4: dl += [(12, 0)]
                dl += [(9, i) for i in touches.get(P, [])]
                if P == 6 and self.o.tq: dl[1:1] = [(9, int(c)) for c in self.o.tq]
                if self.o.dummy == 7 and P == 7: dl += [(11, i) for i in range(4)]
                elif self.o.dummy > 0 and 0 <= P - self.o.dummy < 3: dl += [(11, i) for i in ((0, 1), (2, 3), (4,))[P - self.o.dummy]]
            else:
                dma(1)
            if k + 2 < 32: self.tr_w(nb, k + 2, 0)
            if k == 28:
                dma(99)
                cw = self.cs_write(['a244', 'a248'], [1, 2])
            pop(2 if k < 28 else 5)
            for f in fr:
                e.wait(lg=xt[f])
                if self.o.nomini & 1 and f: continue
                self.rowsum(aS, sel, vXF + 4*f, f == 0)
                if self.o.nomini & 2 and f: continue
                dq += [f'v_dot2_f32_bf16 {v((q0, q1)[i&1])}, {v(vXF+4*f+i)}, {v(vXF+4*f+i)}, {v((q0, q1)[i&1]) if (f or i > 1) else 0}' for i in range(4)]
                if k == 27: pop(2)
            if k >= 0:
                self.big(vA1, b + 4, k)
            if k + 2 < 32: wt[k + 2] = self.tr_w(nb + 4, k + 2, SLOT)
            if bound:
                e(f's_cmp_lg_u32 {s(sRESP)}, {P}\ns_cbranch_scc1 L_nores{P}')
                for t in range(4):
                    if t: e(f'v_xor_b32 {v(vTM+4)}, {32*(t ^ (t-1))}, {v(vTM+4)}')
                    e.raw(f'ds_read_b64 {v(vRES+2*t,2)}, {v(vTM+4)} offset:{(P%3)*16384}')
                e(f'L_nores{P}:')
            dma(1)
            pop(2 if k < 27 else 5)
            if k == 4 * self.o.atp - 1:
                e(f'''
                s_cmp_lg_u32 {s(sW)}, 0
                s_cbranch_scc1 L_noat
                s_lshr_b32 {s(sT[5])}, {s(sG)}, 3
                s_lshl1_add_u32 {s(sT[5])}, {s(sR)}, {s(sT[5])}
                s_lshl_b32 {s(sT[5])}, {s(sT[5])}, 2
                s_lshl_b32 {s(sAT)}, 1, {s(sXCC)}
                s_atomic_add {s(sAT)}, {s(sDBG,2)}, {s(sT[5])}
                L_noat:
                ''')
            if k == 28:
                e.wait(lg=cw); e('s_barrier')
                self.dead.add((9, 'x'))
                if self.o.fine: self.stamp('g28')
                r1 = self.cs_read(1, vWPH + 4)
                r2 = self.cs_read(2, vCS + 8)
            self.k0 = k
            if k >= 2: self.bg(f'kv{k}')
            if k == 30:
                assert not dq and not sops
                e.wait(lg=r2)
                sops += self.cs_pack_ops(vWPH + 4, cK) + self.cs_pack_ops(vCS + 8, cV)
                pop(4)
        pop(99)
        e(f'v_mfma_f32_32x32x8_bf16 {v(vA0,16)}, {v(cK,2)}, {v(vMF,2)}, {v(vA0,16)}')
        e(f'v_mfma_f32_32x32x8_bf16 {v(vA1,16)}, {v(cV,2)}, {v(vMF,2)}, {v(vA1,16)}')
        self.stamp('L0.kvgemm')

    def cs_write(self, acc, blk):
        tag = None
        for ac, b in zip(acc, blk):
            tag = self.e(f'ds_write_b32 {v(vCSa)}, {ac} offset:{b*512}')
        return tag
    def cs_read(self, blk, dst):
        self.e(f'v_and_b32 {v(dst)}, -16, {v(vCSa)}')
        return self.e(f'ds_read_b128 {v(dst,4)}, {v(dst)} offset:{blk*512}')
    def cs_pack_ops(self, src, out):
        return [f'v_pk_add_f32 {v(src,2)}, {v(src,2)}, {v(src+2,2)}',
                f'v_add_f32 {v(src)}, {v(src)}, {v(src+1)}',
                f'v_and_b32 {v(src+1)}, {s(sHI)}, {v(src)}',
                f'v_sub_f32 {v(src+1)}, {v(src)}, {v(src+1)}',
                f'v_perm_b32 {v(out)}, {v(src+1)}, {v(src)}, {s(sPERM)}',
                f'v_and_b32 {v(src+2)}, {s(sHI)}, {v(src+1)}',
                f'v_sub_f32 {v(src+2)}, {v(src+1)}, {v(src+2)}',
                f'v_lshrrev_b32 {v(out+1)}, 16, {v(src+2)}']
    def cs_pack(self, src, out):
        for op in self.cs_pack_ops(src, out): self.e(op)

    def stats_ops(self, chk, par, init):
        b = vXF + 120; t = vTM
        p1 = []
        for i in range(2):
            p1 += [self.chk(chk, b+4*i, b+4*i+1, par, init and i == 0), self.chk(chk, b+4*i+2, b+4*i+3, par, False)]
            p1.append(f'v_pk_add_f32 {v(b+4*i,2)}, {v(b+4*i,2)}, {v(b+4*i+2,2)}')
        p1 += [f'v_pk_add_f32 {v(t,2)}, {v(b,2)}, {v(b+4,2)}']
        p2 = [f'v_mov_b32 {v(t+2)}, {v(t)}', f'v_mov_b32 {v(t+3)}, {v(t+1)}',
              f'v_permlane32_swap_b32 {v(t)}, {v(t+2)}', f'v_permlane32_swap_b32 {v(t+1)}, {v(t+3)}',
              f'v_pk_add_f32 {v(t,2)}, {v(t,2)}, {v(t+2,2)}']
        return p1, p2 + self.stats_tail(t)
    def stats_tail(self, b):
        ops = [
                f'v_mul_f32 {v(b)}, 0xbb000000, {v(b)}',
                f'v_mul_f32 {v(b+1)}, 0x3b000000, {v(b+1)}',
                f'v_fma_f32 {v(b+1)}, -{v(b)}, {v(b)}, {v(b+1)}',
                f'v_max_f32 {v(b+1)}, 0, {v(b+1)}',
                f'v_add_f32 {v(b+1)}, 0x3727c5ac, {v(b+1)}',
                f'v_rsq_f32 {v(vRS)}, {v(b+1)}',
                f'v_and_b32 {v(b+2)}, {s(sHI)}, {v(b)}',
                f'v_sub_f32 {v(b+2)}, {v(b)}, {v(b+2)}',
                f's_mov_b64 vcc, 0xffffffff',
                f'v_mul_f32 {v(vRS+1)}, {s(sL2E)}, {v(vRS)}',
                f'v_cndmask_b32 {v(b)}, {v(b+2)}, {v(b)}, vcc',
                f'v_perm_b32 {v(vMF)}, {v(b)}, {v(b)}, {s(sPERM)}',
                f'v_lshrrev_b32 {v(vMF+1)}, 16, {v(b)}']
        return ops

    def tr_w(self, dst, ks, extra):
        e = self.e
        if self.l >= 2: return e(f'ds_read_b128 {v(dst,4)}, {v(vWtr)} offset:{ks*1024 + extra}')
        if self.l == 0: ad, off = vWtr + (ks & 3), (ks >> 2) * 4096 + extra
        else: ad, off = vWtr, (ks >> 1) * 2048 + (ks & 1) * 512 + extra
        e(f'ds_read_b64_tr_b16 {v(dst,2)}, {v(ad)} offset:{off}')
        return e(f'ds_read_b64_tr_b16 {v(dst+2,2)}, {v(ad)} offset:{off + (256 if self.l == 0 else 1024)}')

    def kv_gemm(self, l):
        e = self.e; typ = l & 1
        chk = vTM + 4; par = (l - 1) & 1
        cK, cV = vCS + typ*6 + 2, vCS + typ*6 + 4
        xt = [None] * 32; wt = [None] * 32
        def xload(e, k):
            if k % 4 == 0: e(f's_xor_b32 {s(sT[0])}, {s(sT[2])}, {k*1024}')
            xt[k] = e(f'buffer_load_dwordx4 {v(vXF+4*k,4)}, {v(vL16)}, {s(sWS,4)}, {s(sT[0])} offen offset:{(k&3)*1024} sc1')
        PRE = self.o.xpre; SP = self.o.spx if l > 1 else 0
        def init():
            for k in range(2):
                self.tr_w(vWB + k*8, k, 0)
                wt[k] = self.tr_w(vWB + k*8 + 4, k, SLOT)
        def shadow():
            self.l = l - 1
            self.bg('yp')
            self.need('KV', l)
            if l == 1: e.wait(lg=max(self.bgt['WKB'], self.bgt['WVB']))
            e('s_barrier')
            self.free('ab')
            self.bg('y1')
            self.l = l
            if l == 1:
                r1 = self.cs_read(1, vWB + 16); r2 = self.cs_read(2, vWB + 20)
            init()
            if l == 1:
                e.wait(lg=r2); self.cs_pack(vWB + 16, cK); self.cs_pack(vWB + 20, cV)
            self.bg('kvsh')
        self.hop(f'x{l}', sFXrd, l + 1, vTM + 5, xload, SP, shadow, init)
        self.stamp(f'L{l-1}.poll3')
        for k in range(SP, PRE): xload(e, k)
        self.bg('kvpre')
        stt = None
        p1, p2 = self.stats_ops(chk, par, l == 1)
        SL = self.o.stat_at; S0 = SL + 2 + PRE; SE = 30 - PRE
        assert S0 < SE
        def pop(n):
            for _ in range(n):
                if p1: e(p1.pop(0))
                elif p2: e(p2.pop(0))
        corr = False
        for k in range(32):
            b = vWB + (k % 3) * 8
            nb = vWB + ((k + 2) % 3) * 8
            e.wait(vm=xt[k], lg=wt[k])
            if k == 0: self.stamp(f'L{l}.x0')
            self.big(vA0, b, k)
            if k == SE:
                while p1: pop(1)
            if k + PRE < 32: xload(e, k + PRE)
            if k + 2 < 32: self.tr_w(nb, k + 2, 0)
            if k >= S0:
                if k == S0: e.wait(vm=stt)
                pop(1 if l == 1 else 2)
            self.bg(f'kv{k}')
            self.big(vA1, b + 4, k)
            if SL <= k < SL + 2:
                stt = e(f'buffer_load_dwordx4 {v(vXF+120+4*(k-SL),4)}, {v(vL16)}, {s(sWS,4)}, {s(sSTrd)} offen offset:{(k-SL)*1024} sc1')
            if k + 2 < 32: wt[k + 2] = self.tr_w(nb + 4, k + 2, SLOT)
            if l > 1 and k % 2 == 1:
                e(self.chk(chk, vXF+4*k-4, vXF+4*k, par, k == 1))
                if k <= SP: self.chk_end(chk, par, f'x{l}', vTM + 5)
            self.bg(f'kv{k}b')
            if not corr and not p1 and not p2:
                corr = True
                e(f'v_mfma_f32_32x32x8_bf16 {v(vA0,16)}, {v(cK,2)}, {v(vMF,2)}, {v(vA0,16)}')
                e(f'v_mfma_f32_32x32x8_bf16 {v(vA1,16)}, {v(cV,2)}, {v(vMF,2)}, {v(vA1,16)}')
            if k >= S0: pop(2)
        assert corr
        self.chk_end(chk, par, f'x{l}'); self.in_redo = False
        self.bg('kvend')
        self.stamp(f'L{l}.kvgemm')

    def scale_pack(self, acc, out):
        e = self.e
        for i in range(8):
            e(f'v_pk_mul_f32 {v(acc+2*i,2)}, {v(acc+2*i,2)}, {v(vRS,2)} op_sel_hi:[1,0]')
        for i in range(8):
            e(f'v_cvt_pk_bf16_f32 {v(out+i)}, {v(acc+2*i)}, {v(acc+2*i+1)}')
    def phi_a(self, acc, tmp, out, tag, after=None):
        e = self.e
        for hh in range(2):
            r = range(4*hh, 4*hh+4)
            for i in r: e(f'v_pk_mul_f32 {v(tmp+2*i,2)}, {v(acc+2*i,2)}, {v(vRS,2)} op_sel:[0,1] op_sel_hi:[1,1]')
            for i in r:
                e(f'v_exp_f32_e64 {v(tmp+2*i)}, {v(tmp+2*i)} clamp')
                e(f'v_exp_f32_e64 {v(tmp+2*i+1)}, {v(tmp+2*i+1)} clamp')
            self.bg(f'{tag}{2*hh}')
            for i in r: e(f'v_pk_fma_f32 {v(acc+2*i,2)}, {v(acc+2*i,2)}, {v(vRS,2)}, 1.0 op_sel_hi:[1,0,0]')
            for i in r:
                e(f'v_max_f32 {v(acc+2*i)}, {v(acc+2*i)}, {v(tmp+2*i)}')
                e(f'v_max_f32 {v(acc+2*i+1)}, {v(acc+2*i+1)}, {v(tmp+2*i+1)}')
            for i in r: e(f'v_pk_add_f32 {v(acc+2*i,2)}, {v(acc+2*i,2)}, {s(sEPS6,2)}')
            for i in r: e(f'v_cvt_pk_bf16_f32 {v(out+i)}, {v(acc+2*i)}, {v(acc+2*i+1)}')
            if after: after(hh)
            self.bg(f'{tag}{2*hh+1}')
    def softmax16(self, p, tm, out, tag):
        e = self.e
        e(f'v_max3_f32 {v(tm)}, {v(p)}, {v(p+1)}, {v(p+2)}')
        e(f'v_max3_f32 {v(tm+1)}, {v(p+3)}, {v(p+4)}, {v(p+5)}')
        e(f'v_max3_f32 {v(tm)}, {v(tm)}, {v(p+6)}, {v(p+7)}')
        e(f'v_max3_f32 {v(tm+1)}, {v(tm+1)}, {v(p+8)}, {v(p+9)}')
        e(f'v_max3_f32 {v(tm)}, {v(tm)}, {v(p+10)}, {v(p+11)}')
        e(f'v_max3_f32 {v(tm+1)}, {v(tm+1)}, {v(p+12)}, {v(p+13)}')
        e(f'v_max3_f32 {v(tm)}, {v(tm)}, {v(p+14)}, {v(p+15)}')
        e(f'v_max_f32 {v(tm)}, {v(tm)}, {v(tm+1)}')
        e(f'v_mul_f32 {v(tm)}, {s(sL2E)}, {v(tm)}')
        for i in range(8):
            e(f'v_pk_fma_f32 {v(p+2*i,2)}, {v(p+2*i,2)}, {s(sL2E,2)}, {v(tm,2)} op_sel_hi:[1,1,0] neg_lo:[0,0,1] neg_hi:[0,0,1]')
        self.bg(tag + 'a')
        for i in range(16):
            e(f'v_exp_f32 {v(p+i)}, {v(p+i)}')
            if i == 7: self.bg(tag + 'b')
        self.bg(tag + 'c')
        for i in range(4): e(f'v_pk_add_f32 {v(tm+2*i,2)}, {v(p+4*i,2)}, {v(p+4*i+2,2)}')
        e(f'v_pk_add_f32 {v(tm,2)}, {v(tm,2)}, {v(tm+2,2)}')
        e(f'v_pk_add_f32 {v(tm+4,2)}, {v(tm+4,2)}, {v(tm+6,2)}')
        e(f'v_pk_add_f32 {v(tm,2)}, {v(tm,2)}, {v(tm+4,2)}')
        e(f'v_add_f32 {v(tm)}, {v(tm)}, {v(tm+1)}')
        e(f'v_rcp_f32 {v(tm)}, {v(tm)}')
        self.bg(tag + 'd')
        for i in range(8): e(f'v_pk_mul_f32 {v(p+2*i,2)}, {v(p+2*i,2)}, {v(tm,2)} op_sel_hi:[1,0]')
        for i in range(8): e(f'v_cvt_pk_bf16_f32 {v(out+i)}, {v(p+2*i)}, {v(p+2*i+1)}')

    def kv_epilogue(self, l, late_q):
        e = self.e; typ = l & 1
        self.dump(f'L{l}.kv', [v(vA0+i) for i in range(32)] + [v(vRS)])
        if typ == 0:
            def wr(hh): e(f'ds_write_b128 {v(vPKwA)}, {v(vTM+4*hh,4)} offset:{2*hh*PL}')
            self.phi_a(vA0, vWB, vTM, 'ek', wr)
            self.scale_pack(vA1, vA1)
            e(f'ds_write_b128 {v(vPKwA)}, {v(vA1,4)} offset:{8*PL}')
            e(f'ds_write_b128 {v(vPKwA)}, {v(vA1+4,4)} offset:{10*PL}')
        else:
            self.scale_pack(vA0, vTM)
            e(f'v_mfma_f32_32x32x16_bf16 {v(vA0,16)}, {v(vWPH,4)}, {v(vTM,4)}, 0')
            e(f'v_mfma_f32_32x32x16_bf16 {v(vWB,16)}, {v(vWPH+4,4)}, {v(vTM+4,4)}, 0')
            self.bg('es0')
            self.scale_pack(vA1, vA1)
            e(f'ds_write_b128 {v(vPKwA)}, {v(vA1,4)} offset:{8*PL}')
            e(f'ds_write_b128 {v(vPKwA)}, {v(vA1+4,4)} offset:{10*PL}')
            self.bg('es1')
            for hh, p in ((0, vA0), (1, vWB)):
                self.softmax16(p, vTM, p, f'ek{hh}')
                e(f'ds_write_b128 {v(vPKwB)}, {v(p,4)} offset:{(2*hh)*PL}')
                e(f'ds_write_b128 {v(vPKwB)}, {v(p+4,4)} offset:{(2*hh+1)*PL}')
        ones = vTM + 4
        for i in range(4): e(f'v_mov_b32 {v(ones+i)}, {s(sONES)}')
        if l == 0: e.wait(vm=self.clr1)
        if not late_q: self.need('Q')
        e.wait_all_lg()
        e('s_barrier')
        self.free('KV')
        self.stamp(f'L{l}.B1')
        pr = vPKrA if typ == 0 else vPKrB
        tags = []
        for st in range(4):
            e(f'ds_read_b64_tr_b16 {v(vA0+4*st,2)}, {v(pr)} offset:{st*512}')
            e(f'ds_read_b64_tr_b16 {v(vA0+4*st+2,2)}, {v(pr)} offset:{st*512+256}')
            e(f'ds_read_b64_tr_b16 {v(vA1+4*st,2)}, {v(vPKrA)} offset:{8*PL+st*512}')
            tags.append(e(f'ds_read_b64_tr_b16 {v(vA1+4*st+2,2)}, {v(vPKrA)} offset:{8*PL+st*512+256}'))
        self.bg('b1')
        self.set_wtr(SLOTS[l]['Q'], l)
        ckv, cz = vWB + 16, vWB + 20
        ak, az = self.e1_addr(l, vWB)
        e(f's_add_u32 {s(sT[0])}, {s(sKVwrB)}, {l*0x80000}\ns_add_u32 {s(sT[1])}, {s(sZwrB)}, {l*0x10000}')
        for st in range(4):
            e.wait(lg=tags[st])
            e(f'v_mfma_f32_16x16x32_bf16 {v(ckv,4)}, {v(vA0+4*st,4)}, {v(vA1+4*st,4)}, {v(ckv,4) if st else 0}')
            e(f'v_mfma_f32_16x16x32_bf16 {v(cz,4)}, {v(ones,4)}, {v(vA0+4*st,4)}, {v(cz,4) if st else 0}')
        e(f'v_cvt_pk_bf16_f32 {v(vTM)}, {v(ckv)}, {v(ckv+1)}\nv_cvt_pk_bf16_f32 {v(vTM+1)}, {v(ckv+2)}, {v(ckv+3)}')
        e(f'v_min_u32 {v(vTM)}, -2, {v(vTM)}\nv_min_u32 {v(vTM+1)}, -2, {v(vTM+1)}')
        e(f'buffer_store_dwordx2 {v(vTM,2)}, {v(ak)}, {s(sWS,4)}, {s(sT[0])} offen sc1')
        e(f'v_min_u32 {v(vTM+2)}, -2, {v(cz)}')
        e(f'buffer_store_dword {v(vTM+2)}, {v(az)}, {s(sWS,4)}, {s(sT[1])} offen sc1')
        self.stamp(f'L{l}.pub1')
        if l < 2: self.clear_slot(l + 2, vTM + 4, ak, az)
        if late_q:
            self.need('Q'); e('s_barrier')

    def e1_ops(self, e, l, tags, each=False):
        typ = l & 1
        nk, nz = (4, 2) if typ == 0 else (8, 4)
        sk, sz = (sKVrdA, sZrdA) if typ == 0 else (sKVrdB, sZrdB)
        ops = []
        def zl(t):
            if t == 0: e(f's_add_u32 {s(sT[1])}, {s(sz)}, {l*0x10000}')
            tags['z'] = e(f'buffer_load_dword {v(vXF+32+t)}, {v(vL4)}, {s(sWS,4)}, {s(sT[1])} offen offset:{t*256} sc1')
        def kl(p):
            if p % 4 == 0 or each: e(f's_add_u32 {s(sT[0])}, {s(sk)}, {l*0x80000 + (p & ~3)*1024}')
            tags[p] = e(f'buffer_load_dwordx4 {v(vXF+4*p,4)}, {v(vL16)}, {s(sWS,4)}, {s(sT[0])} offen offset:{(p&3)*1024} sc1')
        return [lambda t=t: zl(t) for t in range(nz)] + [lambda p=p: kl(p) for p in range(nk)]

    def q_phase(self, l):
        e = self.e; typ = l & 1; first = l < 2
        wt = [None] * 32
        def wread(k): wt[k] = self.tr_w(vWB + (k % 6) * 4, k, 0)
        for k in range(4): wread(k)
        cQ = vCS + typ * 6
        st = 0; pk = []
        if l == 0:
            e(f'v_and_b32 {v(vTM+3)}, 0x7c, {v(vL4)}')
            dbt = e(f'buffer_load_dword {v(vTM+2)}, {v(vTM+3)}, {s(sDBG,4)}, 0 offen sc1')
            if self.o.tw or self.o.te:
                e(f'v_lshlrev_b32 {v(vTM+6)}, 5, {v(vL4)}\nv_lshrrev_b32 {v(vTM+1)}, 4, {v(vL4)}\nv_lshl_add_u32 {v(vTM+7)}, {v(vTM+1)}, 26, {v(vTM+6)}')
                e(f'v_lshrrev_b32 {v(vTM+1)}, 6, {v(vL4)}\nv_lshl_add_u32 {v(vTM+6)}, {v(vTM+1)}, 26, {v(vTM+6)}')
                for c in self.o.tw: self.touch(int(c))
        E1AT = self.o.e1at[l]
        kt = {}
        e1 = self.e1_ops(e, l, kt)
        if self.o.ctouch & 1 and l < 3: e1.insert(0, lambda: self.code_touch(v(vXF + 36)))
        for k in range(32):
            e.wait(lg=wt[k])
            b = vWB + (k % 6) * 4
            self.big(vA0, b, k)
            if k + 4 < 32: wread(k + 4)
            if k == 0 and not first:
                e(f'v_mfma_f32_32x32x8_bf16 {v(vA0,16)}, {v(cQ,2)}, {v(vMF,2)}, {v(vA0,16)}')
            if k == E1AT and l == 0:
                e.wait(vm=dbt)
                e(f's_mov_b32 {s(sT[2])}, 0x11111111')
                e('L_all_chk:')
                e(f'v_dot8_u32_u4 {v(vTM+1)}, {v(vTM+2)}, {s(sT[2])}, 0')
                e(f's_lshl_b32 {s(sT[3])}, 8, {s(sXCC)}')
                e(f'v_cmp_ne_u32 vcc, 8, {v(vTM+1)}\ns_cbranch_vccnz L_all_retry')
                e(f'v_cmp_ne_u32 vcc, {s(sT[3])}, {v(vTM+2)}\ns_lshl_b32 {s(sT[3])}, {s(sR)}, 1')
                e(f's_lshr_b32 {s(sMODE)}, vcc_lo, {s(sT[3])}\ns_and_b32 {s(sMODE)}, {s(sMODE)}, 3')
                if self.o.force_safe: e(f's_or_b32 {s(sMODE)}, {s(sMODE)}, 1')
                e(f's_cselect_b32 {s(sSTR)}, {EXSTRIDE}, 0')
                if self.o.xout:
                    e(f's_cselect_b64 {s(sX,2)}, {s(sWS,2)}, {s(sOUT,2)}\ns_cselect_b32 {s(sX+2)}, {s(sWS+2)}, {s(sOUT+2)}\ns_cselect_b32 {s(sT[3])}, 0, {XB}')
                    for r in (sXrd, sXwr): e(f's_sub_u32 {s(r)}, {s(r)}, {s(sT[3])}')
                for r in (sOrd, sOwr): e(f's_add_u32 {s(r)}, {s(r)}, {s(sSTR)}')
                t = Asm()
                t(f'L_all_retry:\nbuffer_load_dword {v(vTM+2)}, {v(vTM+3)}, {s(sDBG,4)}, 0 offen sc1')
                t(f's_sub_u32 {s(sBUD)}, {s(sBUD)}, 1\ns_cbranch_scc1 L_fail\ns_waitcnt vmcnt(0)\ns_branch L_all_chk')
                self.tail.append(t)
                e1 += [lambda: e(f'buffer_load_dword a255, {v(vFl16)}, {s(sWS,4)}, {s(sFOrd)} offen sc1'),
                       lambda: e(f'buffer_load_dword a255, {v(vFl16)}, {s(sWS,4)}, {s(sFXrd)} offen sc1'),
                       lambda: e(f's_lshl_b32 {s(sT[4])}, {s(sG)}, 10\ns_mov_b32 m0, {L_WP}\nbuffer_load_dwordx4 {v(vL16)}, {s(sWP,4)}, {s(sT[4])} offen lds')]
                e1 += [lambda c=c: self.touch(int(c)) for c in self.o.te]
                assert E1AT + len(e1) <= 29 or not self.o.te
            if k >= E1AT:
                for _ in range(self.o.e1rate if k < 31 else 99):
                    if e1: e1.pop(0)()
            self.bg(f'q{k}')
            if l == 3 and self.o.clean & 1 and k in (2, 4):
                e(f'buffer_store_dwordx4 {v(vRES+2*(k-2),4)}, {v(vL16)}, {s(sWS,4)}, {s(sXwr)} offen offset:{(k-2)*512} sc1')
            if first:
                wn = 'WQ' + 'AB'[typ]
                if st == 0 and wn in self.bgt: st = 1; k1 = k + 2
                elif st == 1 and k == k1:
                    e.wait(lg=self.bgt[wn]); e('s_barrier')
                    r0 = self.cs_read(0, vA1); st = 2; k1 = k + 3
                elif st == 2 and k == k1:
                    e.wait(lg=r0); pk = self.cs_pack_ops(vA1, cQ); st = 3
                elif st == 3 and not pk:
                    e(f'v_mfma_f32_32x32x8_bf16 {v(vA0,16)}, {v(cQ,2)}, {v(vMF,2)}, {v(vA0,16)}'); st = 4
                for _ in range(2):
                    if pk: e(pk.pop(0))
        assert st == 4 or not first
        zt = kt['z']
        self.stamp(f'L{l}.qgemm')
        self.dump(f'L{l}.q', [v(vA0+i) for i in range(16)])
        PQ = vXF + 64
        if typ == 0:
            self.phi_a(vA0, vWB, PQ, 'eq')
        else:
            self.scale_pack(vA0, vTM)
            e(f'v_mfma_f32_32x32x16_bf16 {v(vA0,16)}, {v(vWPH,4)}, {v(vTM,4)}, 0')
            e(f'v_mfma_f32_32x32x16_bf16 {v(vA1,16)}, {v(vWPH+4,4)}, {v(vTM+4,4)}, 0')
            self.softmax16(vA0, vWB, PQ, 'eq0')
            self.softmax16(vA1, vWB, PQ + 8, 'eq1')
        self.stamp(f'L{l}.phiq')
        nk, nz = (4, 2) if typ == 0 else (8, 4)
        C = vWB; mx = vTM; z = vXF + 32
        if self.o.e1inl: e(f's_branch L_e1c{l}')
        t = Asm()
        t(f'L_e1r{l}:')
        ops = self.e1_ops(t, l, {}, True)
        for op in ops[:nz]: op()
        for p in range(nk):
            b = vXF + 4*p
            t(f'v_max3_u32 {v(mx)}, {v(b)}, {v(b+1)}, {v(b+2)}\nv_max_u32 {v(mx)}, {v(mx)}, {v(b+3)}\nv_cmp_eq_u32 vcc, -1, {v(mx)}\ns_cbranch_vccz L_e1s{l}_{p}')
            ops[nz + p]()
            t(f'L_e1s{l}_{p}:')
        t(f's_sub_u32 {s(sBUD)}, {s(sBUD)}, 1\ns_cbranch_scc1 L_fail\ns_waitcnt vmcnt(0)')
        if self.o.e1inl: e.ins += t.ins
        else:
            t(f's_branch L_e1c{l}'); self.tail.append(t)
        e(f'L_e1c{l}:')
        e.wait(vm=zt)
        if nz == 2:
            e(f'v_max_u32 {v(mx)}, {v(z)}, {v(z+1)}\nv_add_f32 {v(z)}, {v(z)}, {v(z+1)}')
        else:
            e(f'v_max3_u32 {v(mx)}, {v(z)}, {v(z+1)}, {v(z+2)}\nv_max_u32 {v(mx)}, {v(mx)}, {v(z+3)}')
            e(f'v_pk_add_f32 {v(z,2)}, {v(z,2)}, {v(z+2,2)}\nv_add_f32 {v(z)}, {v(z)}, {v(z+1)}')
        zops = [f'v_mov_b32 {v(z+1)}, {v(z)}', f'v_permlane16_swap_b32 {v(z)}, {v(z+1)}', f'v_add_f32 {v(z)}, {v(z)}, {v(z+1)}',
                f'v_mov_b32 {v(z+1)}, {v(z)}', f'v_permlane32_swap_b32 {v(z)}, {v(z+1)}', f'v_add_f32 {v(z)}, {v(z)}, {v(z+1)}',
                f'v_cvt_pk_bf16_f32 {v(z)}, {v(z)}, {v(z)}', f'ds_write_b16 {v(vZw)}, {v(z)} offset:512']
        e(zops.pop(0))
        for p in range(nk):
            e.wait(vm=kt[p])
            b = vXF + 4*p
            e(f'v_mfma_f32_16x16x32_bf16 {v(C,4)}, {v(vSEL,4)}, {v(b,4)}, {v(C,4) if p else 0}')
            e(f'v_max3_u32 {v(mx)}, {v(mx)}, {v(b)}, {v(b+1)}\nv_max3_u32 {v(mx)}, {v(mx)}, {v(b+2)}, {v(b+3)}')
            if p == 0:
                for _ in range(3): e(zops.pop(0))
        e(f'v_cmp_eq_u32 vcc, -1, {v(mx)}\ns_cbranch_vccnz L_e1r{l}')
        for op in zops: e(op)
        self.stamp(f'L{l}.e1')
        e(f'v_cvt_pk_bf16_f32 {v(vTM)}, {v(C)}, {v(C+1)}\nv_cvt_pk_bf16_f32 {v(vTM+1)}, {v(C+2)}, {v(C+3)}')
        e(f'ds_write_b64 {v(vKVw)}, {v(vTM,2)}')
        self.bg('o0')
        if not self.o.lateb[l]: self.need('ab')
        e.wait_all_lg()
        e('s_barrier')
        self.free('Q')
        KF = vWB + 8
        kr = vKVrA if typ == 0 else vKVrB
        tg = []
        for hh in range(2):
            for u in range(2):
                off = (2*u + hh) * 544 if typ == 0 else hh * 544 + u * 16
                tg.append(e(f'ds_read_b128 {v(KF + 4*(2*hh+u),4)}, {v(kr)} offset:{off}'))
        self.bg('o1')
        for hh in range(2):
            acc = (vA0, vA1)[hh]
            for u in range(2):
                e.wait(lg=tg[2*hh+u])
                pq = PQ + 4*hh if typ == 0 else PQ + 8*hh + 4*u
                e(f'v_mfma_f32_32x32x16_bf16 {v(acc,16)}, {v(KF+4*(2*hh+u),4)}, {v(pq,4)}, {v(acc,16) if u else 0}')
        if l < 3: self.set_wtr(SLOTS[l+1]['K'], l + 1)
        if l == 0:
            e(f'''
            v_lshrrev_b32 {v(vTM)}, 6, {v(vL4)}
            v_lshl_add_u32 {v(vXst)}, {v(vTM)}, 8, {v(vL16)}
            v_and_b32 {v(vTM)}, 1, {v(vTM)}
            v_lshrrev_b32 {v(vTM+1)}, 7, {v(vL4)}
            v_lshl_add_u32 {v(vTM)}, {v(vTM)}, 2, {v(vTM+1)}
            v_lshlrev_b32 {v(vTM+1)}, 2, {v(vFl16)}
            v_lshl_add_u32 {v(vOst)}, {v(vTM)}, 8, {v(vTM+1)}
            ''')
        e(f'v_mov_b32 {v(vWB)}, {l+1}')
        self.bg('o2')
        O = vXF + 96
        quick = l > 0 and self.o.quick
        for hh in range(2):
            acc = (vA0, vA1)[hh]
            e(f'v_add_f32 {v(acc+8)}, {s(sEPS6)}, {v(acc+8)}\nv_rcp_f32 {v(acc+8)}, {v(acc+8)}')
            for i in range(4): e(f'v_pk_mul_f32 {v(acc+2*i,2)}, {v(acc+2*i,2)}, {v(acc+8,2)} op_sel_hi:[1,0]')
            for i in range(4):
                e(f'v_cvt_pk_bf16_f32 {v(O+4*hh+i)}, {v(acc+2*i)}, {v(acc+2*i+1)}')
                if i == 1: self.tag(O + 4*hh, l & 1)
            def st(e, m):
                e(f'buffer_store_dwordx4 {v(O+4*hh,4)}, {v(vOst)}, {s(sWS,4)}, {s(sOwr)} offen offset:{hh*512}{m if (m or l) else self.o.pub0}')
                if hh:
                    if m or not (quick or self.o.noack): e.wait_all_vm()
                    self.flag(e, vWB, sFOwr, m)
            self.modal(f'po{l}{hh}', st)
        self.dump(f'L{l}.o', [v(O+i) for i in range(8)])
        self.stamp(f'L{l}.pub2')

    def o_proj(self, l):
        e = self.e; typ = l & 1; T = 'AB'[typ]
        chk = vTM + 1 if l > 0 else None
        par = l & 1
        self.bg('w0')
        if l == 0:
            t0, t1 = vTM, vTM + 1
            e(f'''
            v_bfe_u32 {v(t0)}, {v(vL4)}, 4, 2
            v_lshrrev_b32 {v(t1)}, 7, {v(vL4)}
            v_lshl_add_u32 {v(t0)}, {v(t1)}, 3, {v(t0)}
            v_lshlrev_b32 {v(t0)}, 5, {v(t0)}
            v_bfe_u32 {v(t1)}, {v(vL4)}, 6, 1
            v_lshl_add_u32 {v(t0)}, {v(t1)}, 4, {v(t0)}
            v_bfe_u32 {v(t1)}, {v(vL4)}, 3, 1
            v_lshl_add_u32 {v(t0)}, {v(t1)}, 3, {v(t0)}
            v_add_u32 {v(t0)}, {L_WP}, {v(t0)}
            ''')
            for hh in range(2):
                for t in range(2):
                    tw = e(f'ds_read_b64_tr_b16 {v(vWPH+4*hh+2*t,2)}, {v(t0)} offset:{hh*512 + t*128}')
            e(f'v_bfe_u32 {v(t1)}, {v(vL4)}, 4, 1\nv_mul_u32_u24 {v(t1)}, 0x8000, {v(t1)}\nv_lshl_or_b32 {v(t1)}, {v(t1)}, 16, {v(t1)}')
            e.wait(lg=tw)
            for i in range(8): e(f'v_xor_b32 {v(vWPH+i)}, {v(t1)}, {v(vWPH+i)}')
        if self.o.lateb[l]:
            self.need('ab'); e('s_barrier')
        ot = [None] * 16; wt = [None] * 64
        def oload(e, k):
            if k % 2 == 0: e(f's_add_u32 {s(sT[0])}, {s(sOrd)}, {k*2048}')
            ot[k] = e(f'buffer_load_dwordx4 {v(vXF+4*k,4)}, {v(vL16)}, {s(sWS,4)}, {s(sT[0])} offen offset:{(k&1)*2048} sc1')
        PRE = self.o.opre; SP = self.o.spo if l else 0
        NB, LA = 10, self.o.ola[l > 1]
        ad = vTM + 4; sa, sb = SLOTS[l]['a'] * SLOT, SLOTS[l]['b'] * SLOT
        buf = lambda f: vA1 + 4 * (f % NB)
        def wrd(f):
            e = self.e; k, t = f >> 2, f & 3
            if l > 1:
                wt[f] = e(f'ds_read_b128 {v(buf(f),4)}, {v(ad + (k >> 3))} offset:{(k & 7)*4096 + t*512}')
                return
            off = (k & 7) * 4096
            if k >= 8:
                if l == 1: off += sb - sa
                elif k == 8: e(f'v_add_u32 {v(ad+t)}, {(sb - sa) & 0xffffffff}, {v(ad+t)}')
            e(f'ds_read_b64_tr_b16 {v(buf(f),2)}, {v(ad+t)} offset:{off}')
            wt[f] = e(f'ds_read_b64_tr_b16 {v(buf(f)+2,2)}, {v(ad+t)} offset:{off+1024}')
        def init():
            e = self.e
            for f in range(LA): wrd(f)
            for i in range(8):
                e(f'v_lshlrev_b32 {v(vA0+2*i)}, 16, {v(vRES+i)}\nv_and_b32 {v(vA0+2*i+1)}, {s(sHI)}, {v(vRES+i)}')
        def shadow():
            self.bg('wp')
            if not self.o.oinit[l]: init()
            self.bg('ws')
        if l > 1:
            if l == 2: e(f'v_lshrrev_b32 {v(vWO)}, 7, {v(vL4)}\nv_mul_u32_u24 {v(vWO)}, 1536, {v(vWO)}\nv_add_u32 {v(vWO)}, {v(vWO)}, {v(vL16)}')
            e(f'v_add_u32 {v(ad)}, {sa}, {v(vWO)}\nv_add_u32 {v(ad+1)}, {sb}, {v(vWO)}')
        else:
            e(f'v_add_u32 {v(ad)}, {sa}, {v(vWO)}')
            for t in (1, 2, 3): e(f'v_xor_b32 {v(ad+t)}, {32*t}, {v(ad)}')
        if self.o.oinit[l]: init(); keep = list(wt)
        self.bg('wi')
        self.stamp(f'L{l}.pre2')
        self.hop(f'o{l}', sFOrd, l + 1, vTM, oload, SP, shadow, init)
        if self.o.oinit[l]: wt[:] = keep
        if not l: self.in_redo = False
        self.stamp(f'L{l}.poll2')
        for k in range(SP, PRE): oload(e, k)
        self.bg('w1')
        xo = vTM + 2; fr = vTM + 3
        late = [f's_add_u32 {s(r)}, {s(r)}, {s(sSTR)}' for r in (sXrd, sXwr, sSTrd, sSTwr, sOrd, sOwr)] if l < 3 else []
        for k in range(16):
            for t in range(4):
                f = 4*k + t
                if t % 2 == 0: e.wait(vm=ot[k], lg=wt[f + 1])
                e(f'v_mfma_f32_16x16x32_bf16 {v(vA0+4*t,4)}, {v(buf(f),4)}, {v(vXF+4*k,4)}, {v(vA0+4*t,4)}')
                if f + LA < 64: wrd(f + LA)
                if t == 0:
                    if k + PRE < 16: oload(e, k + PRE)
                    if k + PRE == 16 and self.o.ctouch & 2 and l < 3: self.code_touch(v(vXF + 64))
                    self.bg(f'p{k}')
                if t == 2:
                    if chk and k % 2 == 1:
                        e(self.chk(chk, vXF+4*k-4, vXF+4*k, par, k == 1))
                        if k <= SP or k == 15: self.chk_end(chk, par, f'o{l}', vTM)
                    self.bg(f'p{k}b')
                    if k == 14:
                        if l < 3: e(f'v_mov_b32 {v(fr)}, {l + 2}')
                        else:
                            e(f'v_bfe_u32 {v(xo)}, {v(vL4)}, 6, 1\nv_lshrrev_b32 {v(xo+1)}, 7, {v(vL4)}\nv_lshl_add_u32 {v(xo)}, {v(xo)}, 1, {v(xo+1)}')
                            e(f'v_lshlrev_b32 {v(xo+1)}, 8, {v(vFl16)}\nv_lshl_add_u32 {v(xo)}, {v(xo)}, 4, {v(xo+1)}')
        self.in_redo = False
        for op in late: e(op)
        self.stamp(f'L{l}.B3')
        for m in range(2):
            if l == 3 and self.o.bias:
                for i in range(8): e(f'v_add_f32 {v(vA0+8*m+i)}, {self.o.bias}, {v(vA0+8*m+i)}')
            for i in range(4):
                e(f'v_cvt_pk_bf16_f32 {v(vRES+4*m+i)}, {v(vA0+8*m+2*i)}, {v(vA0+8*m+2*i+1)}')
                if i == 1 and l < 3: self.tag(vRES + 4*m, l & 1)
            if l < 3:
                def st(e, mm):
                    e(f'buffer_store_dwordx4 {v(vRES+4*m,4)}, {v(vXst)}, {s(sWS,4)}, {s(sXwr)} offen offset:{m*2048}{mm if (mm or l) else (self.o.pub0 if self.o.pub0x is None else self.o.pub0x)}')
                    if m and l and not mm: self.flag(e, fr, sFXwr, mm)
                self.modal(f'px{l}{m}', st)
        if l == 3:
            for m in range(2):
                for i in range(2): e(f'v_permlane16_swap_b32 {v(vRES+4*m+i)}, {v(vRES+4*m+2+i)}')
                e(f'buffer_store_dwordx4 {v(vRES+4*m,4)}, {v(xo)}, {s(sOUT,4)}, {s(sXO)} offen offset:{64*m} {self.o.outmod}')
            return
        self.dump(f'L{l}.x', [v(vRES+i) for i in range(8)])
        if l == 1: e(f's_lshl_b32 {s(sT[2])}, {s(sROT)}, 12\ns_add_u32 {s(sT[2])}, {s(sT[2])}, {s(sXrd)}')
        else: e(f's_mov_b32 {s(sT[2])}, {s(sXrd)}')
        self.x_stats()
        self.tag(vTM, l & 1)
        def st2(e, mm):
            e(f'buffer_store_dword {v(vTM)}, {v(vSTst)}, {s(sWS,4)}, {s(sSTwr)} offen{mm}')
            if mm or not l:
                if mm or not self.o.noack: e.wait_all_vm()
                self.flag(e, fr, sFXwr, mm)
        self.modal(f'px{l}s', st2)
        self.bg('y0')
        self.stamp(f'L{l}.pub3')

    def build(self):
        e = self.e
        self.sched = scheds.build(self.o.ov)
        self.prologue()
        for l in range(4):
            self.l = l
            if l == 0: self.kv_gemm0()
            else: self.kv_gemm(l)
            self.kv_epilogue(l, self.o.lateq[l])
            self.q_phase(l)
            self.o_proj(l)
        for k in self.sched: assert k in self.seen, k
        if self.o.stamps:
            self.stamp('end')
            e(f's_memrealtime {s(sTS,2)}'); e.wait_all_lg()
            e(f'v_writelane_b32 {v(vSTAMP)}, {s(sTS)}, 63')
            if not self.o.both: e(f'v_writelane_b32 {v(vSTAMP)}, {s(sBUD)}, 61')
            e(f's_lshl_b32 {s(sT[0])}, s2, 2\ns_add_u32 {s(sT[0])}, {s(sT[0])}, {s(sW)}\ns_lshl_b32 {s(sT[0])}, {s(sT[0])}, 8\ns_add_u32 {s(sT[0])}, {s(sT[0])}, {STAMP}')
            e(f'buffer_store_dword {v(vSTAMP)}, {v(vL4)}, {s(sWS,4)}, {s(sT[0])} offen')
        if self.o.echo:
            self.stamp('end')
            if self.o.echo[0] == 'fixed':
                e(f's_mov_b32 {s(sE0)}, {self.o.echo[2]}')
            else:
                e(f's_sub_u32 {s(sE0)}, {s(sE1)}, {s(sE0)}\ns_mul_i32 {s(sE0)}, {s(sE0)}, {self.o.echo[2]}')
            e(f'{self.o.clk} {s(sE1,2)}\ns_waitcnt lgkmcnt(0)')
            e(f'L_echo:\n{self.o.clk} {s(sTS,2)}\ns_waitcnt lgkmcnt(0)\ns_sub_u32 {s(sTS)}, {s(sTS)}, {s(sE1)}\ns_cmp_lt_u32 {s(sTS)}, {s(sE0)}\ns_cbranch_scc1 L_echo')
        e('L_fail:\ns_endpgm')
        for at, txt in reversed(self.pends):
            j = at - 2
            while j < at and not (e.ins[j].label or e.ins[j].mn.startswith(('v_mfma', 's_cbranch', 's_barrier', 's_waitcnt', 'v_pk', 's_branch'))): j += 1
            e.ins.insert(j, Ins(txt))
        if self.o.fake16: e.ins = [i for i in e.ins if not i.mn.startswith('v_mfma_f32_32x32x8')]
        body = e.finish() + ''.join(t.finish() for t in self.tail) + 'L_code_end:\n    s_endpgm\n'
        body, npad = layout([f'{NAME}_kernel:'] + body.rstrip('\n').split('\n'), 'L_main', 4 if self.o.pads else 0, self.o.align)
        body = body.split('\n', 1)[1]
        head = open('cdna_kernels/' + NAME + '.s.ref').read().split('; Override launch')[0]
        txt = head + '; @launch grid=(256,1,1) block=(256,1,1) lds=163840\n'
        txt += f'''.amdgcn_target "amdgcn-amd-amdhsa--gfx950"
.text
.globl {NAME}_kernel
.p2align 8
.type {NAME}_kernel,@function
{NAME}_kernel:
{body}.section .rodata,"a"
.p2align 6
.amdhsa_kernel {NAME}_kernel
  .amdhsa_next_free_vgpr 512
  .amdhsa_next_free_sgpr 102
  .amdhsa_accum_offset 256
  .amdhsa_group_segment_fixed_size 0
  .amdhsa_kernarg_size 80
  .amdhsa_user_sgpr_count 2
  .amdhsa_user_sgpr_kernarg_segment_ptr 1
  .amdhsa_system_sgpr_workgroup_id_x 1
  .amdhsa_float_denorm_mode_32 3
.end_amdhsa_kernel
'''
        return txt

if __name__ == '__main__':
    ap = argparse.ArgumentParser()
    ap.add_argument('-o', default='cdna_kernels/' + NAME + '.s')
    ap.add_argument('--stamps', action='store_true')
    ap.add_argument('--force-safe', action='store_true')
    ap.add_argument('--dump', default='')
    ap.add_argument('--echo', default='')
    ap.add_argument('--bias', default='')
    ap.add_argument('--clk', default='s_memtime')
    ap.add_argument('--outmod', default='')
    ap.add_argument('--initmod', default='')
    ap.add_argument('--touch', default='61352')
    ap.add_argument('--c1early', type=int, default=2)
    ap.add_argument('--fine', type=int, default=0)
    ap.add_argument('--atp', type=int, default=1)
    ap.add_argument('--nomini', type=int, default=0)
    ap.add_argument('--touchx', type=int, default=1)
    ap.add_argument('--b0at', type=int, default=24)
    ap.add_argument('--both', type=int, default=0)
    ap.add_argument('--fake', type=int, default=0)
    ap.add_argument('--stouch', default=',,')
    ap.add_argument('--tq', default='')
    ap.add_argument('--tw', default='6')
    ap.add_argument('--dummy', type=int, default=0)
    ap.add_argument('--te', default='')
    ap.add_argument('--quick', type=int, default=1)
    ap.add_argument('--lateb', default='0,0,0,0')
    ap.add_argument('--pub0', default='')
    ap.add_argument('--stat-at', type=int, default=4)
    ap.add_argument('--opre', type=int, default=8)
    ap.add_argument('--ctouch', type=int, default=0)
    ap.add_argument('--e1inl', type=int, default=1)
    ap.add_argument('--t0', default='')
    ap.add_argument('--t1', default='')
    ap.add_argument('--t2', default='')
    ap.add_argument('--qs', default='21111110')
    ap.add_argument('--clrp', type=int, default=6)
    ap.add_argument('--pub0s', default='')
    ap.add_argument('--q0', type=int, default=0)
    ap.add_argument('--clean', type=int, default=0)
    ap.add_argument('--xout', type=int, default=0)
    ap.add_argument('--rotm', type=int, default=6)
    ap.add_argument('--rotw', type=int, default=3)
    ap.add_argument('--roto', type=int, default=3)
    ap.add_argument('--spx', type=int, default=0)
    ap.add_argument('--spo', type=int, default=0)
    ap.add_argument('--ola', default='6,6')
    ap.add_argument('--spagain', type=int, default=0)
    ap.add_argument('--oinit', default='0,1,1,1')
    ap.add_argument('--pads', type=int, default=1)
    ap.add_argument('--align', type=int, default=5)
    ap.add_argument('--skip', default='')
    ap.add_argument('--noack', type=int, default=0)
    ap.add_argument('--fake16', type=int, default=0)
    ap.add_argument('--rotf', type=int, default=7)
    ap.add_argument('--padp', type=int, default=1)
    ap.add_argument('--xmod', default='nt')
    ap.add_argument('--xmodp', type=int, default=8)
    ap.add_argument('--tmod', default='nt')
    ap.add_argument('--pub0x', default=None)
    ap.add_argument('--ov', default='')
    ap.add_argument('--xpre', type=int, default=8)
    ap.add_argument('--e1at', default='22,20,22,20')
    ap.add_argument('--e1rate', type=int, default=1)
    ap.add_argument('--lateq', default='0,0,0,0')
    ap.add_argument('--sched', default='k')
    opt = ap.parse_args()
    opt.dump = opt.dump.split(',') if opt.dump else []
    opt.echo = opt.echo.split(',') if opt.echo else []
    opt.e1at = list(map(int, opt.e1at.split(','))); opt.lateq = list(map(int, opt.lateq.split(','))); opt.lateb = list(map(int, opt.lateb.split(',')))
    opt.ola = list(map(int, opt.ola.split(',')))
    opt.oinit = list(map(int, opt.oinit.split(',')))
    opt.skip = [x for x in opt.skip.split(',') if x]
    g = Gen(opt)
    txt = g.build()
    open(opt.o, 'w').write(txt)
    if opt.stamps:
        open(opt.o + '.stamps', 'w').write('\n'.join(g.stamp_names))
    print('wrote', opt.o, len(txt), 'bytes; vgpr persistent', _vn[0], 'sgpr', _sn[0], 'stamps', g.nstamp)
```

```python
import sys, argparse
sys.path.insert(0, 'gen')
from asmlib import *

NAME = 'interleave_layers__linear_attn_block__linear_kernel_hedgehog__prompt'

FLG_O, FLG_X = 0x0000, 0x2000
ZP = 0x10000
STAMP = 0x60000
KVP = 0x100000
EXB, EXSTRIDE = 0x400000, 0x500000
OB, XB, ST = EXB, EXB + 0x200000, EXB + 0x400000
DUMP = 0x2400000
WS_BYTES = 0x4000000
OOB = 0x7F000000
SLOT = 32768
SCR = 4 * SLOT
PL = 2176
L_PK = SCR
L_EX = SCR
L_KV = SCR + 12 * PL
L_CS = L_KV + 2176
L_WP = L_CS + 3072
assert L_WP + 1024 <= 163840

sX, sWA, sWOA, sWB, sWP, sWOB, sOUT, sDBG, sWS, sCODE = 4, 8, 12, 16, 20, 24, 28, 32, 36, 40
_sn = [44]
def salloc(n=1, al=1):
    while _sn[0] % al: _sn[0] += 1
    r = _sn[0]; _sn[0] += n
    assert _sn[0] <= 100
    return r
sW, sR, sG, sRB, sRBO, sJ, sMODE, sBUD, sSTR = [salloc() for _ in range(9)]
sRw, sRo, sCOFF = [salloc() for _ in range(3)]
sXrd, sXwr, sSTrd, sSTwr, sOrd, sOwr, sFOrd, sFOwr, sFXrd, sFXwr = [salloc() for _ in range(10)]
sKVrdA, sKVrdB, sKVwrB, sZrdA, sZrdB, sZwrB, sSKIP = [salloc() for _ in range(7)]
sXO, sONES, sPERM, sHI, sXCC = [salloc() for _ in range(5)]
sROT, sRESP = salloc(), salloc()
sAT = 3
sX0g, sX0l, sW0g, sW0l = sMODE, sSTR, salloc(), salloc()
sL2E = salloc(2, 2); sEPS6 = salloc(2, 2)
sT = [salloc() for _ in range(6)]
sTS = salloc(2, 2)
sE0 = salloc(2, 2); sE1 = salloc(2, 2)

_vn = [1]
def valloc(n=1, al=1):
    while _vn[0] % al: _vn[0] += 1
    r = _vn[0]; _vn[0] += n
    return r
vLane = valloc()
vL16 = valloc(); vL4 = valloc()
vRES = valloc(8, 4)
vWPH = valloc(8, 4)
vSEL = valloc(4, 4)
vCS = valloc(12, 2)
vMF = valloc(2, 2)
vRS = valloc(2, 2)
vPKa, vSVw, vSVo, vCSa = [valloc() for _ in range(4)]
vWtr = valloc(4)
vWdma, vWOdma, vPKwA, vPKwB, vPKrA, vPKrB, vKVw, vZw, vKVrA, vKVrB, vSVt, vE1st, vZst, vSTst, vFl16, vWO = [valloc() for _ in range(16)]
assert _vn[0] <= 64, _vn[0]
vA0, vA1, vWB, vTM = 64, 80, 96, 120
vXF = 128
vM1 = vTM + 2
vXst, vOst = vWtr + 1, vWtr + 2
vPK2 = vLane
vSTAMP = 0

import scheds
BAY = dict(KA=0, VA=1, QA=2, aA=3, bA=4, KB=5, QB=6, VB=7, aB=0, bB=1)
SLOTS = [dict(K=0, V=1, Q=2, a=3, b=0), dict(K=1, V=2, Q=3, a=0, b=1), dict(K=2, V=3, Q=1, a=0, b=3), dict(K=1, V=2, Q=0, a=3, b=1)]

class Gen:
    def __init__(self, opt):
        self.o = opt
        self.e = Asm()
        self.tail = []
        self.nstamp = 0
        self.stamp_names = []
        self.wtr_slot = 0
        self.ndump = 0
        self.bgn = {}; self.bgt = {}; self.seen = set(); self.l = 0
        self.occ = [(0, 'K'), (0, 'V'), (0, 'Q'), (9, 'x')]; self.dead = set(); self.live = {(0, 'K'), (0, 'V')}; self.bayocc = {}; self.in_redo = False
        self.sv = None; self.stag = {}; self.pends = []

    def stamp(self, name):
        if self.o.echo and name in self.o.echo[:2]:
            self.e(f'{self.o.clk} {s(sE0 if name == self.o.echo[0] else sE1, 2)}')
            self.e.wait_all_lg()
        if not self.o.stamps: return
        e = self.e
        if self.o.both:
            if self.o.both == 2 and name not in ('start', 'end'): return
            if self.o.both == 4:
                if name.split('.')[-1] not in ('start', 'pub1', 'e1', 'pub2', 'poll2', 'B3', 'poll3', 'end'): return
            elif self.o.both == 3:
                if not (name.startswith(('chunk', 'L0', 'setup', 'g')) or name in ('start', 'end')): return
            elif name.split('.')[-1] not in ('start', 'chunk0', 'x0', 'kvgemm', 'pub1', 'phiq', 'pub2', 'poll2', 'B3', 'end'): return
            e(f's_memtime {s(sTS,2)}\ns_memrealtime {s(sE0,2)}')
            e.wait_all_lg()
            e(f'v_writelane_b32 {v(vSTAMP)}, {s(sTS)}, {self.nstamp}\nv_writelane_b32 {v(vSTAMP)}, {s(sE0)}, {self.nstamp+31}')
            self.nstamp += 1; self.stamp_names.append(name)
            assert self.nstamp <= 31
            return
        e(f'{self.o.clk} {s(sTS,2)}')
        e.wait_all_lg()
        e(f'v_writelane_b32 {v(vSTAMP)}, {s(sTS)}, {self.nstamp}')
        self.nstamp += 1; self.stamp_names.append(name)
    def dump(self, name, regs):
        if name not in self.o.dump: return
        e = self.e
        for r in regs:
            e(f's_lshl_b32 {s(sT[5])}, s2, 2\ns_add_u32 {s(sT[5])}, {s(sT[5])}, {s(sW)}\ns_lshl_b32 {s(sT[5])}, {s(sT[5])}, 14\ns_add_u32 {s(sT[5])}, {s(sT[5])}, {DUMP + self.ndump*256}')
            e(f'buffer_store_dword {r}, {v(vL4)}, {s(sWS,4)}, {s(sT[5])} offen')
            self.ndump += 1
        assert self.ndump <= 64
        e.wait_all_vm()
    def set_wtr(self, slot, l):
        e = self.e
        if l == 0:
            for q in range(4): e(f'v_add_u32 {v(vWtr+q)}, {slot*SLOT}, {v(vWtr+q)}')
        elif l == 1:
            e(f's_lshl_b32 {s(sT[3])}, {s(sW)}, 11\ns_sub_u32 {s(sT[3])}, {slot*SLOT}, {s(sT[3])}\nv_add_u32 {v(vWtr)}, {s(sT[3])}, {v(vSVw)}')
        else: e(f'v_add_u32 {v(vWtr)}, {slot*SLOT}, {v(vL16)}')
    def dma_w(self, typ, kind, n):
        e = self.e; srd = sWA if typ == 0 else sWB
        part = 'QKV'.index(kind); base = SLOTS[typ][kind] * SLOT - part * 1024
        assert base >= 0
        e(f's_xor_b32 {s(sT[4])}, {s(sRw)}, {(n >> 1)*8192 + (n & 1)*1024}')
        e(f's_add_u32 m0, {s(sT[4])}, {base}')
        e(f's_mul_i32 {s(sT[4])}, {s(sT[4])}, 48')
        return e(f'buffer_load_dwordx4 {v(vWdma)}, {s(srd,4)}, {s(sT[4])} offen offset:{part*1024} lds')
    def dma_wo(self, typ, kind, n):
        e = self.e; srd = sWOA if typ == 0 else sWOB
        e(f's_xor_b32 {s(sT[4])}, {s(sRo)}, {(n >> 1)*8192 + (n & 1)*1024}')
        e(f's_add_u32 m0, {s(sT[4])}, {SLOTS[typ][kind]*SLOT}')
        e(f's_lshl3_add_u32 {s(sT[4])}, {s(sT[4])}, {0x40000 if kind == "b" else 0}')
        return e(f'buffer_load_dwordx4 {v(vWOdma)}, {s(srd,4)}, {s(sT[4])} offen lds')
    def park(self, op, item, n):
        e = self.e; r = BAY[item]*32 + 4*n
        slot = SLOTS['AB'.index(item[1]) + (2 if op == 'R' else 0)][item[0]]
        wo = item[0] in 'ab'
        m, x = (n & 3, n >> 2) if wo else (n >> 1, n & 1)
        if op == 'R':
            return e(f'ds_write_b128 {v(vPKa if slot < 2 else vPK2)}, {a(r,4)} offset:{(slot & 1)*SLOT + m*8192 + x*1024}')
        want = (wo, (slot >> 1) * 0x10000 + (64 * x if wo else 0))
        ad = vSVo if wo else vSVw
        if want[1]:
            if want != self.sv: e(f'v_xor_b32 {v(vSVt)}, {want[1]}, {v(ad)}'); self.sv = want
            ad = vSVt
        off = (slot & 1)*SLOT + m*8192 + (0 if wo else x*512)
        e(f'ds_read_b64_tr_b16 {a(r,2)}, {v(ad)} offset:{off}')
        tag = e(f'ds_read_b64_tr_b16 {a(r+2,2)}, {v(ad)} offset:{off + 1024}')
        self.stag[(item, n)] = tag
        return tag
    def colsum(self, item, n):
        e = self.e
        sel, acc = (vA1 + 8, vA1 + 12) if item[0] == 'Q' else (vXF + 104, vXF + 108)
        if n == 0: self.par_sel(sel)
        e.wait(lg=self.stag[(item, n)])
        e(f'v_mfma_f32_16x16x32_bf16 {v(acc,4)}, {v(sel,4)}, {a(BAY[item]*32 + 4*n, 4)}, {v(acc,4) if n else 0}')
        self.csacc = acc
    def bg_op(self, name, n):
        op, item = name[0], name[1:]
        typ = 'AB'.index(item[1])
        if op == 'C': return self.colsum(item, n)
        if op == 'W':
            assert self.bgn.get('C' + item) == 8
            return self.cs_write([v(self.csacc)], ['QKV'.index(item[0])]) if n == 0 else self.bgt[name]
        if op in 'LR':
            slot = SLOTS[typ + (2 if op == 'R' else 0)][item[0]]
            if n == 0:
                prev = self.occ[slot]
                assert prev is None or prev in self.dead, (name, prev)
                if prev and prev[0] < 2:
                    sv = 'S' + prev[1] + 'AB'[prev[0]]
                    assert self.bgn.get(sv) == 8, (name, sv)
                    if op == 'L': self.e.wait(lg=self.bgt[sv])
                self.occ[slot] = (typ + (2 if op == 'R' else 0), item[0])
        if op == 'S':
            if item in ('KA', 'VA'): assert self.k0 >= 8 * (n >> 1) + 2
            if n == 0:
                prev = self.bayocc.get(BAY[item])
                assert prev is None or (self.bgn.get('R' + prev) == 8 and not self.in_redo), (name, prev)
                self.bayocc[BAY[item]] = item
            if (typ, item[0]) not in self.live:
                assert self.bgn.get('L' + item) == 8 and item != 'QA', name
                self.e.wait(vm=self.bgt['L' + item])
        if op == 'L': return self.dma_w(typ, item[0], n) if item[0] in 'QKV' else self.dma_wo(typ, item[0], n)
        return self.park(op, item, n)
    def need(self, kinds, l=None):
        l = self.l if l is None else l
        for k in kinds:
            nm = ('L' if l < 2 else 'R') + k + 'AB'[l & 1]
            assert self.bgn.get(nm) == 8, (self.l, nm)
            if l < 2: self.e.wait(vm=self.bgt[nm])
            else: self.e.wait(lg=self.bgt[nm])
            self.live.add((l, k))
    def free(self, kinds):
        for k in kinds: self.dead.add((self.l, k))
    def bg(self, point):
        for name, cnt in self.sched.get(f'{self.l}.{point}', []):
            if name[0] == 'T':
                self.share_touch(name[1:]); continue
            for _ in range(cnt):
                n = self.bgn.get(name, 0)
                assert n < 8, name
                if any(name.startswith(x) for x in self.o.skip):
                    keep = self.e; self.e = Asm(); self.e.vm, self.e.lg, self.e.vm_done, self.e.lg_done = keep.vm, keep.lg, keep.vm_done, keep.lg_done
                    self.bg_op(name, n); self.e = keep; self.bgt[name] = 0; self.stag[(name[1:], n)] = 0; self.sv = None
                else: self.bgt[name] = self.bg_op(name, n)
                self.bgn[name] = n + 1
        self.seen.add(f'{self.l}.{point}')
    def tag(self, reg, par):
        self.e(f'v_or_b32 {v(reg)}, 1, {v(reg)}' if par else f'v_and_b32 {v(reg)}, -2, {v(reg)}')
    def chk(self, acc, r0, r1, par, first):
        if first: return f'v_and_b32 {v(acc)}, {v(r0)}, {v(r1)}' if par else f'v_or_b32 {v(acc)}, {v(r0)}, {v(r1)}'
        return f'v_bitop3_b32 {v(acc)}, {v(acc)}, {v(r0)}, {v(r1)} bitop3:0x80' if par else f'v_or3_b32 {v(acc)}, {v(acc)}, {v(r0)}, {v(r1)}'
    def chk_end(self, acc, par, name, tmp=None):
        tmp = acc if tmp is None else tmp
        self.e(f'v_and_b32 {v(tmp)}, 1, {v(acc)}\nv_cmp_ne_u32 vcc, {par}, {v(tmp)}\ns_cbranch_vccnz L_redo_{name}')
    def hop(self, name, sbase, val, r, load, SP, shadow, reinit):
        e = self.e
        ld = f'buffer_load_dword {v(r)}, {v(vFl16)}, {s(sWS,4)}, {s(sbase)} offen sc1'
        cmp = f'v_cmp_gt_u32 vcc, {val}, {v(r)}'
        bud = f's_sub_u32 {s(sBUD)}, {s(sBUD)}, 1\ns_cbranch_scc1 L_fail'
        slow = Asm()
        slow(f'L_redo_{name}:\ns_waitcnt vmcnt(0) lgkmcnt(0)\ns_nop 15')
        self.e = slow; reinit(); self.e = e
        slow(f's_waitcnt lgkmcnt(0)\nL_slow_{name}:\n{ld}\n{bud}\ns_waitcnt vmcnt(0)\n{cmp}\ns_cbranch_vccnz L_slow_{name}')
        for k in range(SP): load(slow, k)
        slow(f's_branch L_ok_{name}')
        self.tail.append(slow)
        again = Asm()
        if self.o.spagain:
            again(f'L_again_{name}:\n{ld}')
            for k in range(SP): load(again, k)
            again(f'{bud}\ns_waitcnt vmcnt({SP})\n{cmp}\ns_cbranch_vccnz L_again_{name}')
        else:
            again(f'L_again_{name}:\n{ld}\n{bud}\ns_waitcnt vmcnt(0)\n{cmp}\ns_cbranch_vccnz L_again_{name}')
            for k in range(SP): load(again, k)
        tag = e(ld)
        if SP:
            e(f's_cmp_lg_u32 {s(sMODE)}, 0\ns_cbranch_scc1 L_nosp_{name}')
            for k in range(SP): load(e, k)
            e(f'L_nosp_{name}:')
        vm = e.vm
        shadow()
        if SP:
            assert e.vm == vm and e.vm_done < tag
            e(f's_cmp_lg_u32 {s(sMODE)}, 0\ns_cbranch_scc1 L_slow_{name}')
        e.wait(vm=tag)
        e(f'{cmp}\ns_cbranch_vccz L_ok_{name}')
        e.ins += again.ins
        e(f'L_ok_{name}:')
        self.in_redo = True; self.sv = None
    def modal(self, name, fn):
        e = self.e
        e(f's_cmp_lg_u32 {s(sMODE)}, 0\ns_cbranch_scc1 L_{name}_safe')
        fn(e, '')
        e(f'L_{name}_join:')
        t = Asm(); t(f'L_{name}_safe:\ns_nop 4'); fn(t, ' sc1'); t(f's_nop 1\ns_branch L_{name}_join')
        self.tail.append(t)

    def x_stats(self):
        e = self.e
        S, Q = vTM, vTM + 1
        for i in range(8):
            e(f'v_dot2_f32_bf16 {v(S)}, {v(vRES+i)}, {s(sONES)}, {v(S) if i else 0}')
            e(f'v_dot2_f32_bf16 {v(Q)}, {v(vRES+i)}, {v(vRES+i)}, {v(Q) if i else 0}')
        e(f'v_permlane32_swap_b32 {v(S)}, {v(Q)}')
        e(f'v_add_f32 {v(S)}, {v(S)}, {v(Q)}\nv_mov_b32 {v(Q)}, {v(S)}')
        e(f'v_permlane16_swap_b32 {v(S)}, {v(Q)}')
        e(f'v_add_f32 {v(S)}, {v(S)}, {v(Q)}')
    def flag(self, e, reg, sflag, m):
        e(f's_mov_b64 exec, 1\nbuffer_store_dword {v(reg)}, off, {s(sWS,4)}, {s(sflag)}{m}\ns_mov_b64 exec, -1')

    def e1_addr(self, l, t):
        if l & 1: return vE1st, vZst
        self.e(f'v_add_u32 {v(t)}, {s(sSKIP)}, {v(vE1st)}\nv_add_u32 {v(t+1)}, {s(sSKIP)}, {v(vZst)}')
        return t, t + 1
    def clear_slot(self, l, m1, ak, az):
        e = self.e
        e(f'v_mov_b32 {v(m1)}, -1\nv_mov_b32 {v(m1+1)}, -1')
        e(f's_add_u32 {s(sT[4])}, {s(sKVwrB)}, {l*0x80000}\ns_add_u32 {s(sT[5])}, {s(sZwrB)}, {l*0x10000}')
        e(f'buffer_store_dwordx2 {v(m1,2)}, {v(ak)}, {s(sWS,4)}, {s(sT[4])} offen sc1')
        return e(f'buffer_store_dword {v(m1)}, {v(az)}, {s(sWS,4)}, {s(sT[5])} offen sc1')
    def dma0(self, P, n, again=False):
        e = self.e
        if n < 4:
            if n == 0 or again:
                e(f's_add_u32 m0, {s(sX0l)}, {(P % 3) * 16384}\ns_xor_b32 {s(sT[0])}, {s(sX0g)}, {P << 7}')
            return e(f'buffer_load_dwordx4 {v(vWPH+n)}, {s(sX,4)}, {s(sT[0])} offen offset:{n*1024} {self.o.xmod if P < self.o.xmodp else str()} lds')
        if n == 4:
            e(f's_xor_b32 {s(sT[1])}, {s(sW0g)}, {P*4096}')
            e(f's_add_u32 m0, {s(sW0l)}, {P*4096 + SLOT - 2048}')
            e(f's_mul_i32 {s(sT[1])}, {s(sT[1])}, 48')
            return e(f'buffer_load_dwordx4 {v(vWdma)}, {s(sWA,4)}, {s(sT[1])} offen offset:2048 lds')
        assert not again
        e(f's_add_u32 m0, {s(sW0l)}, {P*4096}\ns_add_u32 {s(sT[1])}, {s(sT[1])}, 1024')
        return e(f'buffer_load_dwordx4 {v(vWdma)}, {s(sWA,4)}, {s(sT[1])} offen lds')
    def dma0q(self, P):
        e = self.e
        e(f's_xor_b32 {s(sT[1])}, {s(sW0g)}, {P*4096}')
        e(f's_add_u32 m0, {s(sW0l)}, {P*4096 + 2*SLOT}')
        e(f's_mul_i32 {s(sT[1])}, {s(sT[1])}, 48')
        return e(f'buffer_load_dwordx4 {v(vWdma)}, {s(sWA,4)}, {s(sT[1])} offen lds')

    def touch(self, i):
        e = self.e; T = sT; t16, t4 = vTM + 6, vTM + 7
        if i in (0, 9):
            e(f's_lshl2_add_u32 {s(T[5])}, s2, {s(sW)}\ns_lshr_b32 {s(T[4])}, {s(T[5])}, 1\ns_lshl_b32 {s(T[4])}, {s(T[4])}, 11\ns_lshl_b32 {s(T[5])}, {s(T[5])}, 9\ns_add_u32 {s(T[4])}, {s(T[4])}, {s(T[5])}')
            return e(f'buffer_load_dword a255, {v(t4)}, {s(sWA if i == 0 else sWB,4)}, {s(T[4])} offen')
        if i in (1, 5):
            e(f's_lshl2_add_u32 {s(T[5])}, s2, {s(sW)}\ns_lshl_b32 {s(T[5])}, {s(T[5])}, 9')
            return e(f'buffer_load_dword a255, {v(t4)}, {s(sWOA if i == 1 else sWOB,4)}, {s(T[5])} offen')
        if i == 2: return e(f'buffer_load_dword a255, {v(t16)}, {s(sWS,4)}, {s(sOwr)} offen {self.o.tmod}')
        if i == 7:
            e(f's_lshl4_add_u32 {s(T[5])}, {s(sR)}, {s(sG)}\ns_lshl2_add_u32 {s(T[5])}, {s(T[5])}, {s(sW)}\ns_lshl_b32 {s(T[5])}, {s(T[5])}, 11')
            return e(f'buffer_load_dword a255, {v(t16)}, {s(sX,4)}, {s(T[5])} offen')
        if i in (3, 8):
            e(f's_lshl_b32 {s(T[5])}, {s(sW)}, 8\ns_add_u32 {s(T[5])}, {s(T[5])}, s2\ns_min_u32 {s(T[5])}, {s(T[5])}, 767\ns_lshl_b32 {s(T[5])}, {s(T[5])}, 11')
            return e(f'buffer_load_dword a255, {v(t16)}, {s(sWB if i == 3 else sWA,4)}, {s(T[5])} offen')
        if i in (4, 6):
            e(f's_lshl_b32 {s(T[5])}, {s(sG)}, 11\ns_add_u32 {s(T[5])}, {s(T[5])}, {s(sXrd)}')
            return e(f'buffer_load_dword a255, {v(t16)}, {s(sWS,4)}, {s(T[5])} offen {self.o.tmod if i == 4 else str()}')

    def share_touch(self, name):
        e = self.e; t = vSVt; self.sv = None
        kinds, typ = name[:-1], 'AB'.index(name[-1])
        dst = 'a223' if self.l else 'a255'
        if kinds[0] in 'ab':
            e(f's_and_b32 {s(sT[5])}, {s(sG)}, 7\ns_lshl_b32 {s(sT[5])}, {s(sT[5])}, 7\ns_lshl3_add_u32 {s(sT[4])}, {s(sRo)}, {s(sT[5])}')
            if kinds == 'b': e(f's_add_u32 {s(sT[4])}, {s(sT[4])}, 0x40000')
            e(f'v_lshrrev_b32 {v(t)}, 6, {v(vL4)}\nv_lshlrev_b32 {v(t)}, {18 if kinds == "ab" else 26}, {v(t)}\nv_lshl_add_u32 {v(t)}, {v(vFl16)}, 8, {v(t)}')
            return e(f'buffer_load_dword {dst}, {v(t)}, {s(sWOA if typ == 0 else sWOB,4)}, {s(sT[4])} offen')
        e(f's_mul_i32 {s(sT[4])}, {s(sRw)}, 48\ns_lshl_b32 {s(sT[5])}, {s(sG)}, 6\ns_add_u32 {s(sT[4])}, {s(sT[4])}, {s(sT[5])}')
        e(f'v_mul_u32_u24 {v(t)}, 768, {v(vL4)}')
        if kinds == 'KV': e(f's_mov_b64 exec, 0xffffffff\ns_not_b64 exec, exec\nv_subrev_u32 {v(t)}, {32*3072 - 1024}, {v(t)}\ns_mov_b64 exec, -1')
        else: e('s_mov_b64 exec, 0xffffffff')
        tag = e(f'buffer_load_dword {dst}, {v(t)}, {s(sWA if typ == 0 else sWB,4)}, {s(sT[4])} offen offset:{"QKV".index(kinds[0])*1024}')
        if kinds != 'KV': e('s_mov_b64 exec, -1')
        return tag
    def code_touch(self, dst):
        return self.e(f'buffer_load_dword {dst}, {v(vL16)}, {s(sCODE,4)}, {s(sCOFF)} offen')
    def dummy(self, i):
        e = self.e
        if i < 4: return e(f'buffer_store_dwordx4 {v(vSEL,4)}, {v(vL16)}, {s(sWS,4)}, {s((sOwr, sXwr)[i >> 1])} offen offset:{(i & 1)*1024} sc1')
        return e(f'buffer_store_dword {v(vSEL)}, {v(vSTst)}, {s(sWS,4)}, {s(sSTwr)} offen sc1')

    def prologue(self):
        e = self.e
        T = sT
        e('s_cmp_ge_u32 s2, 256\ns_cbranch_scc1 L_fail')
        if self.o.echo and self.o.echo[0] == 'entry': e(f'{self.o.clk} {s(sE0,2)}')
        for srd, off in ((sX, 0), (sWA, 8), (sWS, 72), (sWOA, 16), (sWB, 32), (sWP, 40), (sWOB, 48), (sOUT, 56), (sDBG, 64)):
            e(f's_load_dwordx2 {s(srd,2)}, s[0:1], {off}')
        e(f's_getpc_b64 {s(sCODE,2)}')
        e(f'v_and_b32 {v(vLane)}, 63, v0\nv_lshrrev_b32 {v(vTM)}, 6, v0')
        e(f's_mov_b32 {s(sCODE+2)}, L_code_end-{NAME}_kernel-128\ns_mov_b32 {s(sCODE+3)}, 0x20000')
        e(f'v_readfirstlane_b32 {s(sW)}, {v(vTM)}')
        e(f'v_lshlrev_b32 {v(vL16)}, 4, {v(vLane)}')
        e(f's_lshr_b32 {s(sG)}, s2, 3\ns_lshl2_add_u32 {s(T[0])}, {s(sG)}, {s(sW)}')
        e(f's_and_b32 {s(T[0])}, {s(T[0])}, 63\ns_lshl_b32 {s(T[0])}, {s(T[0])}, 10\ns_min_u32 {s(sCOFF)}, {s(T[0])}, L_code_end-{NAME}_kernel-128-1024')
        self.code_touch('a255')
        e(f'v_lshlrev_b32 {v(vTM+6)}, 7, {v(vLane)}')
        for srd, sz in ((sX, 0x200000), (sWA, 0x180000), (sWS, WS_BYTES)):
            e(f's_mov_b32 {s(srd+2)}, {sz}\ns_mov_b32 {s(srd+3)}, 0x20000')
        t0, t1, t2 = vA1, vA1 + 1, vA1 + 2
        e(f'''
        s_and_b32 {s(sR)}, s2, 7
        s_lshl_b32 {s(sR)}, {s(sR)}, 1
        s_lshr_b32 {s(T[0])}, s2, 7
        s_add_u32 {s(sR)}, {s(sR)}, {s(T[0])}
        s_and_b32 {s(sG)}, {s(sG)}, 15
        s_lshl_b32 {s(sRB)}, {s(sR)}, 2
        s_add_u32 {s(sRB)}, {s(sRB)}, {s(sW)}
        s_and_b32 {s(sROT)}, {s(sG)}, 1
        s_lshl1_add_u32 {s(sROT)}, {s(sROT)}, {s(T[0])}
        s_lshl_b32 {s(sROT)}, {s(sROT)}, 1
        s_and_b32 {s(sROT)}, {s(sROT)}, {self.o.rotm}
        s_lshr_b32 {s(T[1])}, {s(sG)}, 1
        s_xor_b32 {s(sROT)}, {s(sROT)}, {s(T[1])}
        s_xor_b32 {s(sROT)}, {s(sROT)}, s2
        s_and_b32 {s(sROT)}, {s(sROT)}, {self.o.rotf}
        s_lshl_b32 {s(sX0g)}, {s(sRB)}, 8
        s_add_u32 {s(sX0g)}, {s(sX0g)}, {s(sROT)}
        s_lshl_b32 {s(sX0g)}, {s(sX0g)}, 7
        s_lshl_b32 {s(sX0l)}, {s(sW)}, 12
        s_add_u32 {s(sX0l)}, {s(sX0l)}, {3*SLOT}
        s_lshl_b32 {s(sW0l)}, {s(sW)}, 10
        s_lshl2_add_u32 {s(sW0g)}, {s(sROT)}, {s(sW)}
        s_lshl_b32 {s(sW0g)}, {s(sW0g)}, 10
        s_lshl_b32 {s(T[2])}, {s(sG)}, 6
        v_lshrrev_b32 {v(vWdma)}, 2, {v(vLane)}
        v_mul_u32_u24 {v(vWdma)}, 3072, {v(vWdma)}
        v_and_b32 {v(vTM+5)}, 3, {v(vLane)}
        v_lshl_add_u32 {v(vWdma)}, {v(vTM+5)}, 4, {v(vWdma)}
        v_add_u32 {v(vWdma)}, {s(T[2])}, {v(vWdma)}
        v_lshrrev_b32 {v(vTM+4)}, 4, {v(vLane)}
        v_and_b32 {v(t2)}, 7, {v(vLane)}
        v_xor_b32 {v(t1)}, {v(t2)}, {v(vTM+4)}
        v_lshlrev_b32 {v(t1)}, 4, {v(t1)}
        v_lshrrev_b32 {v(t0)}, 3, {v(vLane)}
        v_lshl_add_u32 {v(vWPH)}, {v(t0)}, 10, {v(t1)}
        v_xor_b32 {v(vWPH+1)}, 64, {v(vWPH)}
        v_add_u32 {v(vWPH+1)}, {7168}, {v(vWPH+1)}
        v_add_u32 {v(vWPH+2)}, {2*7168}, {v(vWPH)}
        v_add_u32 {v(vWPH+3)}, {2*7168}, {v(vWPH+1)}
        v_and_b32 {v(vTM)}, 31, {v(vLane)}
        v_lshrrev_b32 {v(vTM+1)}, 5, {v(vLane)}
        v_lshlrev_b32 {v(vL4)}, 2, {v(vLane)}
        ''')
        e(f'''
        s_lshl_b32 {s(T[3])}, {s(sG)}, 2
        s_add_u32 {s(T[3])}, {s(T[3])}, {s(sW)}
        s_lshl_b32 {s(sKVrdB)}, {s(T[3])}, 13
        s_add_u32 {s(sKVrdB)}, {s(sKVrdB)}, {KVP}
        s_lshl_b32 {s(sZrdB)}, {s(T[3])}, 10
        s_add_u32 {s(sZrdB)}, {s(sZrdB)}, {ZP}
        s_lshl_b32 {s(T[4])}, {s(sR)}, 9
        s_add_u32 {s(sKVwrB)}, {s(sKVrdB)}, {s(T[4])}
        s_lshl_b32 {s(T[5])}, {s(sR)}, 6
        s_add_u32 {s(sZwrB)}, {s(sZrdB)}, {s(T[5])}
        v_and_b32 {v(vFl16)}, 60, {v(vL4)}
        v_lshlrev_b32 {v(t0)}, 2, {v(vFl16)}
        v_lshl_add_u32 {v(t0)}, {v(vTM+1)}, 8, {v(t0)}
        v_and_b32 {v(t1)}, 1, {v(vTM+4)}
        v_lshl_add_u32 {v(vE1st)}, {v(t1)}, 3, {v(t0)}
        v_lshl_add_u32 {v(vZst)}, {v(vTM+4)}, 26, {v(vFl16)}
        s_lshr_b32 {s(sSKIP)}, {s(sR)}, 3
        s_lshr_b32 {s(T[1])}, {s(sW)}, 1
        s_xor_b32 {s(sSKIP)}, {s(sSKIP)}, {s(T[1])}
        s_lshl_b32 {s(sSKIP)}, {s(sSKIP)}, 28
        v_mov_b32 {v(vA0+4)}, 0
        s_lshr_b32 {s(sFOwr)}, {s(sG)}, 1
        s_lshl_b32 {s(sFOwr)}, {s(sFOwr)}, 13
        s_add_u32 {s(sFOwr)}, {s(sFOwr)}, {s(T[4])}
        s_and_b32 {s(sFOrd)}, {s(sG)}, 1
        s_lshl_b32 {s(sFOrd)}, {s(sFOrd)}, 8
        s_add_u32 {s(sFOwr)}, {s(sFOwr)}, {s(sFOrd)}
        ''')
        e(f'v_lshrrev_b32 {v(t0)}, 2, {v(vLane)}\nv_lshl_add_u32 {v(vTM+7)}, {v(t0)}, 26, {v(vTM+6)}\nv_lshl_add_u32 {v(vTM+6)}, {v(vTM+4)}, 26, {v(vTM+6)}')
        for srd, sz in ((sWOA, 0x80000), (sWB, 0x180000), (sWOB, 0x80000)):
            e(f's_mov_b32 {s(srd+2)}, {sz}\ns_mov_b32 {s(srd+3)}, 0x20000')
        e('s_waitcnt lgkmcnt(0)')
        if self.o.stamps:
            e(f's_memrealtime {s(sTS,2)}'); e.wait_all_lg()
            e(f'v_writelane_b32 {v(vSTAMP)}, {s(sTS)}, 62')
        self.stamp('start')
        self.ct = [None] * 8
        for c in self.o.t0: self.touch(int(c))
        for n in range(6): self.ct[0] = self.dma0(0, n)
        for c in self.o.t1: self.touch(int(c))
        if self.o.q0 > 0: self.dma0q(0)
        for n in range(self.o.c1early): self.ct[1] = self.dma0(1, n)
        e(f's_and_b32 {s(sFOrd)}, {s(T[3])}, 0x33\ns_cbranch_scc1 L_noclr')
        e.raw(f'buffer_store_dword {v(vA0+4)}, {v(vL4)}, {s(sWS,4)}, {s(sFOwr)} offen sc1')
        e('L_noclr:')
        e(f's_and_b32 {s(sFOrd)}, {s(T[3])}, 0x23\ns_cmp_lg_u32 {s(sFOrd)}, 1\ns_cbranch_scc1 L_noclr2')
        e(f's_lshl3_add_u32 {s(sFOrd)}, {s(sR)}, {s(sG)}\ns_lshl_b32 {s(sFOrd)}, {s(sFOrd)}, 10\ns_add_u32 {s(sFOrd)}, {s(sFOrd)}, {ST}')
        for i in range(4): e(f'v_mov_b32 {v(vA0+8+i)}, -1')
        e.raw(f'buffer_store_dwordx4 {v(vA0+8,4)}, {v(vL16)}, {s(sWS,4)}, {s(sFOrd)} offen sc1')
        e('L_noclr2:')
        self.clear_slot(0, vM1, *self.e1_addr(0, vA0 + 6))
        for srd, sz in ((sWP, 0x4000), (sOUT, 0x200000), (sDBG, 256)):
            e(f's_mov_b32 {s(srd+2)}, {sz}\ns_mov_b32 {s(srd+3)}, 0x20000')
        e(f'''
        s_and_b32 {s(T[0])}, {s(sW)}, 1
        s_lshr_b32 {s(T[1])}, {s(sW)}, 1
        s_lshl_b32 {s(sRBO)}, {s(sR)}, 2
        s_lshr_b32 {s(T[4])}, {s(sG)}, 3
        s_lshl_b32 {s(T[4])}, {s(T[4])}, 1
        s_add_u32 {s(T[4])}, {s(T[4])}, {s(T[0])}
        s_add_u32 {s(sRBO)}, {s(sRBO)}, {s(T[4])}
        s_lshl_b32 {s(T[3])}, {s(T[4])}, 12
        s_add_u32 {s(T[3])}, {s(T[3])}, {3*SLOT}
        s_and_b32 {s(sJ)}, {s(sG)}, 7
        s_xor_b32 {s(sRESP)}, {s(sJ)}, {s(sROT)}
        s_lshl_b32 {s(sJ)}, {s(sJ)}, 1
        s_add_u32 {s(sJ)}, {s(sJ)}, {s(T[1])}
        s_lshl_b32 {s(sXO)}, {s(sRBO)}, 15
        s_lshl_b32 {s(T[2])}, {s(T[1])}, 14
        s_add_u32 {s(sXO)}, {s(sXO)}, {s(T[2])}
        s_and_b32 {s(T[2])}, {s(sG)}, 7
        s_lshl_b32 {s(T[2])}, {s(T[2])}, 7
        s_add_u32 {s(sXO)}, {s(sXO)}, {s(T[2])}
        s_and_b32 {s(T[4])}, {s(sG)}, 1
        s_and_b32 {s(T[5])}, {s(sR)}, 1
        s_lshl1_add_u32 {s(T[4])}, {s(T[4])}, {s(T[5])}
        s_and_b32 {s(T[4])}, {s(T[4])}, {self.o.rotw}
        s_lshl2_add_u32 {s(T[4])}, {s(T[4])}, {s(sW)}
        s_lshl_b32 {s(sRw)}, {s(T[4])}, 11
        s_lshr_b32 {s(T[4])}, {s(sG)}, 3
        s_lshl1_add_u32 {s(T[4])}, {s(T[4])}, {s(T[5])}
        s_and_b32 {s(T[4])}, {s(T[4])}, {self.o.roto}
        s_lshl2_add_u32 {s(T[4])}, {s(T[4])}, {s(sW)}
        s_lshl_b32 {s(sRo)}, {s(T[4])}, 11
        s_lshl_b32 {s(T[4])}, {s(T[1])}, 12
        s_add_u32 {s(sKVrdA)}, {s(sKVrdB)}, {s(T[4])}
        s_lshl_b32 {s(T[4])}, {s(T[1])}, 9
        s_add_u32 {s(sZrdA)}, {s(sZrdB)}, {s(T[4])}
        s_lshl_b32 {s(T[4])}, {s(sRB)}, 15
        s_add_u32 {s(sXrd)}, {s(T[4])}, {XB}
        s_lshl_b32 {s(T[5])}, {s(sG)}, 11
        s_add_u32 {s(sOwr)}, {s(T[4])}, {s(T[5])}
        s_add_u32 {s(sOwr)}, {s(sOwr)}, {OB}
        s_lshl_b32 {s(T[4])}, {s(sRBO)}, 15
        s_lshl_b32 {s(T[5])}, {s(T[2])}, 5
        s_add_u32 {s(sXwr)}, {s(T[4])}, {s(T[5])}
        s_lshl_b32 {s(T[5])}, {s(T[1])}, 8
        s_add_u32 {s(sXwr)}, {s(sXwr)}, {s(T[5])}
        s_add_u32 {s(sXwr)}, {s(sXwr)}, {XB}
        s_lshl_b32 {s(T[5])}, {s(T[1])}, 10
        s_add_u32 {s(sOrd)}, {s(T[4])}, {s(T[5])}
        s_add_u32 {s(sOrd)}, {s(sOrd)}, {OB}
        s_lshl_b32 {s(sSTrd)}, {s(sRB)}, 11
        s_add_u32 {s(sSTrd)}, {s(sSTrd)}, {ST}
        s_lshl_b32 {s(sSTwr)}, {s(sRBO)}, 11
        s_and_b32 {s(T[4])}, {s(sG)}, 6
        s_add_u32 {s(T[4])}, {s(T[4])}, {s(T[1])}
        s_lshl_b32 {s(T[5])}, {s(T[4])}, 8
        s_add_u32 {s(sSTwr)}, {s(sSTwr)}, {s(T[5])}
        s_and_b32 {s(T[5])}, {s(sG)}, 1
        s_lshl3_add_u32 {s(sSTwr)}, {s(T[5])}, {s(sSTwr)}
        s_add_u32 {s(sSTwr)}, {s(sSTwr)}, {ST}
        s_lshl_b32 {s(sFXrd)}, {s(sRB)}, 7
        s_lshl_b32 {s(T[5])}, {s(sG)}, 2
        s_add_u32 {s(sFOwr)}, {s(sFXrd)}, {s(T[5])}
        s_add_u32 {s(sFXrd)}, {s(sFXrd)}, {FLG_X}
        s_lshl_b32 {s(sFOrd)}, {s(sRBO)}, 7
        s_lshl_b32 {s(T[5])}, {s(sJ)}, 2
        s_add_u32 {s(sFXwr)}, {s(sFOrd)}, {s(T[5])}
        s_add_u32 {s(sFXwr)}, {s(sFXwr)}, {FLG_X}
        s_mov_b32 {s(sONES)}, 0x3f803f80
        s_mov_b32 {s(sPERM)}, 0x07060302
        s_mov_b32 {s(sHI)}, 0xffff0000
        s_mov_b32 {s(sL2E)}, 0x3fb8aa3b
        s_mov_b32 {s(sL2E+1)}, 0x3fb8aa3b
        s_mov_b32 {s(sEPS6)}, 0x358637bd
        s_mov_b32 {s(sEPS6+1)}, 0x358637bd
        s_getreg_b32 {s(sXCC)}, hwreg(HW_REG_XCC_ID, 0, 3)
        s_lshl_b32 {s(sXCC)}, {s(sXCC)}, 2
        s_mov_b32 {s(sBUD)}, 100000
        ''')
        e(f'''
        v_add_lshl_u32 {v(vSTst)}, {v(vFl16)}, {v(vTM+1)}, 2
        v_lshrrev_b32 {v(t0)}, 3, {v(vLane)}
        v_lshlrev_b32 {v(t1)}, 1, {v(vTM+4)}
        v_xor_b32 {v(t1)}, {v(t1)}, {v(t2)}
        v_lshlrev_b32 {v(t1)}, 4, {v(t1)}
        v_lshl_add_u32 {v(vWOdma)}, {v(t0)}, 10, {v(t1)}
        v_add_u32 {v(vWOdma)}, {s(T[2])}, {v(vWOdma)}
        ''')
        e(f'''
        v_bfe_u32 {v(t0)}, {v(vLane)}, 2, 2
        v_lshl_add_u32 {v(t0)}, {v(vTM+1)}, 4, {v(t0)}
        v_lshlrev_b32 {v(t0)}, 6, {v(t0)}
        v_and_b32 {v(t1)}, 1, {v(vTM+4)}
        v_lshl_add_u32 {v(t0)}, {v(t1)}, 5, {v(t0)}
        v_and_b32 {v(t1)}, 1, {v(vLane)}
        v_lshl_add_u32 {v(t0)}, {v(t1)}, 4, {v(t0)}
        v_bfe_u32 {v(t1)}, {v(vLane)}, 1, 1
        v_lshl_add_u32 {v(t0)}, {v(t1)}, 3, {v(t0)}
        v_bfe_u32 {v(t1)}, {v(vLane)}, 1, 3
        v_lshlrev_b32 {v(t2)}, 1, {v(vTM+1)}
        v_xor_b32 {v(t1)}, {v(t1)}, {v(t2)}
        v_lshlrev_b32 {v(t1)}, 4, {v(t1)}
        v_lshl_add_u32 {v(t1)}, {v(vTM)}, 7, {v(t1)}
        s_lshl_b32 {s(T[4])}, {s(T[1])}, 11
        s_add_u32 {s(T[4])}, {s(T[4])}, {s(T[3])}
        v_bfe_u32 {v(t2)}, {v(vLane)}, 1, 3
        v_xor_b32 {v(t2)}, {v(t2)}, {v(vTM+1)}
        v_lshl_add_u32 {v(t2)}, {v(t2)}, 4, {s(T[4])}
        v_lshl_add_u32 {v(t2)}, {v(vFl16)}, 5, {v(t2)}
        v_and_b32 {v(vA0+5)}, 1, {v(vTM+4)}
        v_lshl_add_u32 {v(vA0+5)}, {v(vA0+5)}, 3, {v(t2)}
        v_add_u32 {v(t1)}, {s(sX0l)}, {v(t1)}
        s_lshl_b32 {s(T[4])}, {s(sW)}, 11
        v_add_u32 {v(vSVw)}, {s(T[4])}, {v(t0)}
        v_mul_u32_u24 {v(t2)}, 768, {v(vTM+1)}
        v_sub_u32 {v(vSVw)}, {v(vSVw)}, {v(t2)}
        v_add_u32 {v(vPKa)}, {s(T[4])}, {v(vL16)}
        s_lshl2_add_u32 {s(T[5])}, {s(sW)}, {L_CS}
        v_lshl_add_u32 {v(vCSa)}, {v(vTM)}, 4, {s(T[5])}
        ''')
        for q in range(4):
            e(f'''
            s_xor_b32 {s(T[4])}, {s(sW)}, {q}
            s_lshr_b32 {s(T[5])}, {s(T[4])}, 1
            s_lshl_b32 {s(T[5])}, {s(T[5])}, 2
            s_and_b32 {s(T[4])}, {s(T[4])}, 1
            s_add_u32 {s(T[4])}, {s(T[4])}, {s(T[5])}
            s_lshl_b32 {s(T[5])}, {s(T[4])}, 9
            v_add_u32 {v(vWtr+q)}, {s(T[5])}, {v(t0)}
            s_lshl_b32 {s(T[5])}, {s(T[4])}, 4
            v_xor_b32 {v(vWPH+4+q)}, {s(T[5])}, {v(t1)}
            ''')
        e(f'''
        s_lshl_b32 {s(T[4])}, {s(sW)}, 9
        s_add_u32 {s(T[4])}, {s(T[4])}, {L_PK}
        v_lshl_add_u32 {v(t0)}, {v(vTM)}, 4, {s(T[4])}
        v_mul_u32_u24 {v(t1)}, {PL}, {v(vTM+1)}
        v_add_u32 {v(vPKwA)}, {v(t0)}, {v(t1)}
        v_lshl_add_u32 {v(vPKwB)}, {v(t1)}, 2, {v(t0)}
        v_bfe_u32 {v(t0)}, {v(vLane)}, 1, 1
        v_mul_u32_u24 {v(t0)}, {PL}, {v(t0)}
        v_lshrrev_b32 {v(t1)}, 2, {v(vLane)}
        v_lshl_add_u32 {v(t0)}, {v(t1)}, 4, {v(t0)}
        v_and_b32 {v(t1)}, 1, {v(vLane)}
        v_lshl_add_u32 {v(t0)}, {v(t1)}, 3, {v(t0)}
        s_mul_i32 {s(T[4])}, {s(sW)}, {2*PL}
        s_add_u32 {s(T[4])}, {s(T[4])}, {L_PK}
        v_add_u32 {v(vPKrB)}, {s(T[4])}, {v(t0)}
        s_mul_i32 {s(T[4])}, {s(T[0])}, {2*PL}
        s_add_u32 {s(T[4])}, {s(T[4])}, {L_PK}
        v_add_u32 {v(vPKrA)}, {s(T[4])}, {v(t0)}
        ''')
        e(f'''
        s_mul_i32 {s(T[4])}, {s(sW)}, 544
        s_add_u32 {s(T[4])}, {s(T[4])}, {L_KV}
        v_lshl_add_u32 {v(t0)}, {v(vFl16)}, 3, {s(T[4])}
        v_lshl_add_u32 {v(vKVw)}, {v(vTM+4)}, 3, {v(t0)}
        v_lshrrev_b32 {v(t0)}, 1, {v(vFl16)}
        v_add_u32 {v(vZw)}, {s(T[4])}, {v(t0)}
        v_min_u32 {v(t0)}, 16, {v(vTM)}
        v_lshlrev_b32 {v(t0)}, 5, {v(t0)}
        v_add_u32 {v(t0)}, {L_KV}, {v(t0)}
        v_lshl_add_u32 {v(vKVrA)}, {v(vTM+1)}, 4, {v(t0)}
        v_mul_u32_u24 {v(t1)}, 1088, {v(vTM+1)}
        v_add_u32 {v(vKVrB)}, {v(t0)}, {v(t1)}
        ''')
        e(f'''
        v_bfe_u32 {v(t0)}, {v(vLane)}, 2, 3
        v_lshlrev_b32 {v(t0)}, 7, {v(t0)}
        v_lshl_add_u32 {v(t0)}, {v(vTM+5)}, 3, {v(t0)}
        v_bfe_u32 {v(t1)}, {v(vLane)}, 3, 2
        v_lshl_add_u32 {v(t0)}, {v(t1)}, 5, {v(t0)}
        v_lshl_add_u32 {v(vWO)}, {v(vTM+1)}, 11, {v(t0)}
        v_lshlrev_b32 {v(t1)}, 5, {v(vTM+1)}
        v_xor_b32 {v(t0)}, {v(t0)}, {v(t1)}
        s_lshl_b32 {s(T[5])}, {s(sW)}, 11
        v_add_u32 {v(vSVo)}, {s(T[5])}, {v(t0)}
        ''')
        e(f'''
        v_and_b32 {v(t0)}, 1, {v(vLane)}
        v_lshlrev_b32 {v(t0)}, 4, {v(t0)}
        v_mov_b32 {v(t1)}, 0x3f80
        v_lshlrev_b32 {v(t0)}, {v(t0)}, {v(t1)}
        v_lshrrev_b32 {v(t1)}, 1, {v(vLane)}
        v_xor_b32 {v(t1)}, {v(t1)}, {v(vLane)}
        v_and_b32 {v(t1)}, 8, {v(t1)}
        v_bfe_u32 {v(t2)}, {v(vLane)}, 1, 2
        v_or_b32 {v(t1)}, {v(t1)}, {v(t2)}
        ''')
        for d in range(4):
            e(f'v_cmp_eq_u32 vcc, {d}, {v(t1)}\nv_cndmask_b32 {v(vSEL+d)}, 0, {v(t0)}, vcc')
        e(f'v_add_u32 {v(vPK2)}, {2*SLOT}, {v(vPKa)}')
        e(f'v_mov_b32 {v(vTM+4)}, {v(vA0+5)}')
        for n in range(self.o.c1early, 6): self.ct[1] = self.dma0(1, n, again=(n == self.o.c1early))
        if self.o.q0 > 1: self.dma0q(1)
        if self.o.dummy < 0:
            for i in range(5): self.dummy(i)
        for c in self.o.t2: self.touch(int(c))
        if self.o.padp < 0: self.warm()
        e('s_branch L_main\n.p2align 12\nL_main:')
        self.stamp('setup')

    def big(self, acc, b, k):
        if not self.o.fake16:
            return self.e(f'v_mfma_f32_32x32x16_bf16 {v(acc,16)}, {v(b,4)}, {v(vXF+4*k,4)}, {v(acc,16) if k else 0}')
        c = acc + 8 * (k & 1)
        self.e(f'v_mfma_f32_16x16x32_bf16 {v(c,4)}, {v(b,4)}, {v(vXF+4*k,4)}, {v(c,4) if k > 1 else 0}')
        self.pend = f'v_mfma_f32_16x16x32_bf16 {v(c+4,4)}, {v(b,4)}, {v(vXF+4*max(k-1,0),4)}, {v(c+4,4) if k > 1 else 0}'
        self.pend_at = len(self.e.ins) + 2
        self.pends.append((self.pend_at, self.pend))
    def warm(self):
        if not self.o.pads: return
        e = self.e
        e(f's_mov_b64 exec, 0')
        for w in range(3): e(f's_cmp_eq_u32 {s(sW)}, {w}\ns_cbranch_scc1 L_pad{w}')
        e('s_branch L_pad3\nL_warm_done:\ns_mov_b64 exec, -1\ns_nop 3')
    def par_sel(self, dst):
        e = self.e
        e(f's_mov_b32 vcc_lo, 0xf0f00f0f\ns_mov_b32 vcc_hi, 0xf0f00f0f\nv_mov_b32 {v(dst+1)}, {s(sONES)}')
        e(f'v_cndmask_b32 {v(dst)}, 0, {v(dst+1)}, vcc')
        for i in (1, 2, 3): e(f'v_mov_b32 {v(dst+i)}, {v(dst)}')
    def rowsum(self, acc, sel, frag, first):
        self.e(f'v_mfma_f32_16x16x32_bf16 {acc}, {v(sel,4)}, {v(frag,4)}, {0 if first else acc}')

    def kv_gemm0(self):
        e = self.e
        sel = vCS + 8
        self.par_sel(sel)
        aS, aK, aV = a(240, 4), a(244, 4), a(248, 4)
        wt = [None] * 32; xt = [None] * 32
        dl = []
        def dma(n):
            for _ in range(n):
                if dl:
                    P, i = dl.pop(0)
                    if P < 8: self.ct[P] = self.dma0(P, i)
                    elif P == 8: self.bgt['LQA'] = self.dma0q(i); self.bgn['LQA'] = i + 1
                    elif P == 9: self.touch(i)
                    elif P == 11: self.dummy(i)
                    elif P == 12: self.code_touch('a255')
                    elif P == 10: self.clr1 = self.clear_slot(1, vM1, vE1st, vZst)
        cK, cV = vCS + 2, vCS + 4
        sb = vWPH
        q0, q1 = vTM, vTM + 1
        dq = []
        sops = [f'v_accvgpr_read_b32 {v(sb)}, a240', f'v_add_f32 {v(sb+1)}, {v(q0)}, {v(q1)}', f'v_mov_b32 {v(sb+3)}, {v(sb+1)}',
                f'v_permlane32_swap_b32 {v(sb+1)}, {v(sb+3)}', f'v_add_f32 {v(sb+1)}, {v(sb+1)}, {v(sb+3)}'] + self.stats_tail(sb)
        def pop(n):
            for _ in range(n):
                if dq: e(dq.pop(0))
                elif k >= 27 and sops: e(sops.pop(0))
        nq = self.o.q0
        touches = {int(x[0]): [int(c) for c in x[1:]] for x in self.o.touch.split(',') if x}
        for k in range(-2, 32):
            b = vWB + (k % 3) * 8
            nb = vWB + ((k + 2) % 3) * 8
            fr = [k + 1] if -1 <= k < 27 else ([28, 29, 30, 31] if k == 27 else [])
            bound = (k + 2) % 4 == 0 and k + 2 < 32
            if k >= 0:
                e.wait(lg=max(wt[k], xt[k]))
                if k % 4 == 0:
                    self.rowsum(aK, sel, b, k == 0); self.rowsum(aV, sel, b + 4, k == 0)
                self.big(vA0, b, k)
            if bound:
                P = (k + 2) >> 2
                dma(99)
                if P == self.o.padp: self.warm()
                e.wait(vm=self.ct[P])
                e('s_barrier')
                if P == 0 or self.o.fine: self.stamp(f'chunk{P}')
                for q in range(4):
                    xt[4*P+q] = e(f'ds_read_b128 {v(vXF+16*P+4*q,4)}, {v(vWPH+4+q)} offset:{(P%3)*16384}')
                if P + 2 < 8: dl += [(P + 2, i) for i in range(6)]
                if P == self.o.clrp: dl += [(10, 0)]
                for _ in range(int(self.o.qs[P])):
                    dl += [(8, nq)]; nq += 1
                if P == 5 and self.o.ctouch & 4: dl += [(12, 0)]
                dl += [(9, i) for i in touches.get(P, [])]
                if P == 6 and self.o.tq: dl[1:1] = [(9, int(c)) for c in self.o.tq]
                if self.o.dummy == 7 and P == 7: dl += [(11, i) for i in range(4)]
                elif self.o.dummy > 0 and 0 <= P - self.o.dummy < 3: dl += [(11, i) for i in ((0, 1), (2, 3), (4,))[P - self.o.dummy]]
            else:
                dma(1)
            if k + 2 < 32: self.tr_w(nb, k + 2, 0)
            if k == 28:
                dma(99)
                cw = self.cs_write(['a244', 'a248'], [1, 2])
            pop(2 if k < 28 else 5)
            for f in fr:
                e.wait(lg=xt[f])
                if self.o.nomini & 1 and f: continue
                self.rowsum(aS, sel, vXF + 4*f, f == 0)
                if self.o.nomini & 2 and f: continue
                dq += [f'v_dot2_f32_bf16 {v((q0, q1)[i&1])}, {v(vXF+4*f+i)}, {v(vXF+4*f+i)}, {v((q0, q1)[i&1]) if (f or i > 1) else 0}' for i in range(4)]
                if k == 27: pop(2)
            if k >= 0:
                self.big(vA1, b + 4, k)
            if k + 2 < 32: wt[k + 2] = self.tr_w(nb + 4, k + 2, SLOT)
            if bound:
                e(f's_cmp_lg_u32 {s(sRESP)}, {P}\ns_cbranch_scc1 L_nores{P}')
                for t in range(4):
                    if t: e(f'v_xor_b32 {v(vTM+4)}, {32*(t ^ (t-1))}, {v(vTM+4)}')
                    e.raw(f'ds_read_b64 {v(vRES+2*t,2)}, {v(vTM+4)} offset:{(P%3)*16384}')
                e(f'L_nores{P}:')
            dma(1)
            pop(2 if k < 27 else 5)
            if k == 4 * self.o.atp - 1:
                e(f'''
                s_cmp_lg_u32 {s(sW)}, 0
                s_cbranch_scc1 L_noat
                s_lshr_b32 {s(sT[5])}, {s(sG)}, 3
                s_lshl1_add_u32 {s(sT[5])}, {s(sR)}, {s(sT[5])}
                s_lshl_b32 {s(sT[5])}, {s(sT[5])}, 2
                s_lshl_b32 {s(sAT)}, 1, {s(sXCC)}
                s_atomic_add {s(sAT)}, {s(sDBG,2)}, {s(sT[5])}
                L_noat:
                ''')
            if k == 28:
                e.wait(lg=cw); e('s_barrier')
                self.dead.add((9, 'x'))
                if self.o.fine: self.stamp('g28')
                r1 = self.cs_read(1, vWPH + 4)
                r2 = self.cs_read(2, vCS + 8)
            self.k0 = k
            if k >= 2: self.bg(f'kv{k}')
            if k == 30:
                assert not dq and not sops
                e.wait(lg=r2)
                sops += self.cs_pack_ops(vWPH + 4, cK) + self.cs_pack_ops(vCS + 8, cV)
                pop(4)
        pop(99)
        e(f'v_mfma_f32_32x32x8_bf16 {v(vA0,16)}, {v(cK,2)}, {v(vMF,2)}, {v(vA0,16)}')
        e(f'v_mfma_f32_32x32x8_bf16 {v(vA1,16)}, {v(cV,2)}, {v(vMF,2)}, {v(vA1,16)}')
        self.stamp('L0.kvgemm')

    def cs_write(self, acc, blk):
        tag = None
        for ac, b in zip(acc, blk):
            tag = self.e(f'ds_write_b32 {v(vCSa)}, {ac} offset:{b*512}')
        return tag
    def cs_read(self, blk, dst):
        self.e(f'v_and_b32 {v(dst)}, -16, {v(vCSa)}')
        return self.e(f'ds_read_b128 {v(dst,4)}, {v(dst)} offset:{blk*512}')
    def cs_pack_ops(self, src, out):
        return [f'v_pk_add_f32 {v(src,2)}, {v(src,2)}, {v(src+2,2)}',
                f'v_add_f32 {v(src)}, {v(src)}, {v(src+1)}',
                f'v_and_b32 {v(src+1)}, {s(sHI)}, {v(src)}',
                f'v_sub_f32 {v(src+1)}, {v(src)}, {v(src+1)}',
                f'v_perm_b32 {v(out)}, {v(src+1)}, {v(src)}, {s(sPERM)}',
                f'v_and_b32 {v(src+2)}, {s(sHI)}, {v(src+1)}',
                f'v_sub_f32 {v(src+2)}, {v(src+1)}, {v(src+2)}',
                f'v_lshrrev_b32 {v(out+1)}, 16, {v(src+2)}']
    def cs_pack(self, src, out):
        for op in self.cs_pack_ops(src, out): self.e(op)

    def stats_ops(self, chk, par, init):
        b = vXF + 120; t = vTM
        p1 = []
        for i in range(2):
            p1 += [self.chk(chk, b+4*i, b+4*i+1, par, init and i == 0), self.chk(chk, b+4*i+2, b+4*i+3, par, False)]
            p1.append(f'v_pk_add_f32 {v(b+4*i,2)}, {v(b+4*i,2)}, {v(b+4*i+2,2)}')
        p1 += [f'v_pk_add_f32 {v(t,2)}, {v(b,2)}, {v(b+4,2)}']
        p2 = [f'v_mov_b32 {v(t+2)}, {v(t)}', f'v_mov_b32 {v(t+3)}, {v(t+1)}',
              f'v_permlane32_swap_b32 {v(t)}, {v(t+2)}', f'v_permlane32_swap_b32 {v(t+1)}, {v(t+3)}',
              f'v_pk_add_f32 {v(t,2)}, {v(t,2)}, {v(t+2,2)}']
        return p1, p2 + self.stats_tail(t)
    def stats_tail(self, b):
        ops = [
                f'v_mul_f32 {v(b)}, 0xbb000000, {v(b)}',
                f'v_mul_f32 {v(b+1)}, 0x3b000000, {v(b+1)}',
                f'v_fma_f32 {v(b+1)}, -{v(b)}, {v(b)}, {v(b+1)}',
                f'v_max_f32 {v(b+1)}, 0, {v(b+1)}',
                f'v_add_f32 {v(b+1)}, 0x3727c5ac, {v(b+1)}',
                f'v_rsq_f32 {v(vRS)}, {v(b+1)}',
                f'v_and_b32 {v(b+2)}, {s(sHI)}, {v(b)}',
                f'v_sub_f32 {v(b+2)}, {v(b)}, {v(b+2)}',
                f's_mov_b64 vcc, 0xffffffff',
                f'v_mul_f32 {v(vRS+1)}, {s(sL2E)}, {v(vRS)}',
                f'v_cndmask_b32 {v(b)}, {v(b+2)}, {v(b)}, vcc',
                f'v_perm_b32 {v(vMF)}, {v(b)}, {v(b)}, {s(sPERM)}',
                f'v_lshrrev_b32 {v(vMF+1)}, 16, {v(b)}']
        return ops

    def tr_w(self, dst, ks, extra):
        e = self.e
        if self.l >= 2: return e(f'ds_read_b128 {v(dst,4)}, {v(vWtr)} offset:{ks*1024 + extra}')
        if self.l == 0: ad, off = vWtr + (ks & 3), (ks >> 2) * 4096 + extra
        else: ad, off = vWtr, (ks >> 1) * 2048 + (ks & 1) * 512 + extra
        e(f'ds_read_b64_tr_b16 {v(dst,2)}, {v(ad)} offset:{off}')
        return e(f'ds_read_b64_tr_b16 {v(dst+2,2)}, {v(ad)} offset:{off + (256 if self.l == 0 else 1024)}')

    def kv_gemm(self, l):
        e = self.e; typ = l & 1
        chk = vTM + 4; par = (l - 1) & 1
        cK, cV = vCS + typ*6 + 2, vCS + typ*6 + 4
        xt = [None] * 32; wt = [None] * 32
        def xload(e, k):
            if k % 4 == 0: e(f's_xor_b32 {s(sT[0])}, {s(sT[2])}, {k*1024}')
            xt[k] = e(f'buffer_load_dwordx4 {v(vXF+4*k,4)}, {v(vL16)}, {s(sWS,4)}, {s(sT[0])} offen offset:{(k&3)*1024} sc1{self.o.lastld if l == 3 else str()}')
        PRE = self.o.xpre; SP = self.o.spx if l > 1 else 0
        def init():
            for k in range(2):
                self.tr_w(vWB + k*8, k, 0)
                wt[k] = self.tr_w(vWB + k*8 + 4, k, SLOT)
        def shadow():
            self.l = l - 1
            self.bg('yp')
            self.need('KV', l)
            if l == 1: e.wait(lg=max(self.bgt['WKB'], self.bgt['WVB']))
            e('s_barrier')
            self.free('ab')
            self.bg('y1')
            self.l = l
            if l == 1:
                r1 = self.cs_read(1, vWB + 16); r2 = self.cs_read(2, vWB + 20)
            init()
            if l == 1:
                e.wait(lg=r2); self.cs_pack(vWB + 16, cK); self.cs_pack(vWB + 20, cV)
            self.bg('kvsh')
        self.hop(f'x{l}', sFXrd, l + 1, vTM + 5, xload, SP, shadow, init)
        self.stamp(f'L{l-1}.poll3')
        for k in range(SP, PRE): xload(e, k)
        self.bg('kvpre')
        stt = None
        p1, p2 = self.stats_ops(chk, par, l == 1)
        SL = self.o.stat_at; S0 = SL + 2 + PRE; SE = 30 - PRE
        assert S0 < SE
        def pop(n):
            for _ in range(n):
                if p1: e(p1.pop(0))
                elif p2: e(p2.pop(0))
        corr = False
        for k in range(32):
            b = vWB + (k % 3) * 8
            nb = vWB + ((k + 2) % 3) * 8
            e.wait(vm=xt[k], lg=wt[k])
            if k == 0: self.stamp(f'L{l}.x0')
            self.big(vA0, b, k)
            if k == SE:
                while p1: pop(1)
            if k + PRE < 32: xload(e, k + PRE)
            if k + 2 < 32: self.tr_w(nb, k + 2, 0)
            if k >= S0:
                if k == S0: e.wait(vm=stt)
                pop(1 if l == 1 else 2)
            self.bg(f'kv{k}')
            self.big(vA1, b + 4, k)
            if SL <= k < SL + 2:
                stt = e(f'buffer_load_dwordx4 {v(vXF+120+4*(k-SL),4)}, {v(vL16)}, {s(sWS,4)}, {s(sSTrd)} offen offset:{(k-SL)*1024} sc1')
            if k + 2 < 32: wt[k + 2] = self.tr_w(nb + 4, k + 2, SLOT)
            if l > 1 and k % 2 == 1:
                e(self.chk(chk, vXF+4*k-4, vXF+4*k, par, k == 1))
                if k <= SP: self.chk_end(chk, par, f'x{l}', vTM + 5)
            self.bg(f'kv{k}b')
            if not corr and not p1 and not p2:
                corr = True
                e(f'v_mfma_f32_32x32x8_bf16 {v(vA0,16)}, {v(cK,2)}, {v(vMF,2)}, {v(vA0,16)}')
                e(f'v_mfma_f32_32x32x8_bf16 {v(vA1,16)}, {v(cV,2)}, {v(vMF,2)}, {v(vA1,16)}')
            if k >= S0: pop(2)
        assert corr
        self.chk_end(chk, par, f'x{l}'); self.in_redo = False
        self.bg('kvend')
        self.stamp(f'L{l}.kvgemm')

    def scale_pack(self, acc, out):
        e = self.e
        for i in range(8):
            e(f'v_pk_mul_f32 {v(acc+2*i,2)}, {v(acc+2*i,2)}, {v(vRS,2)} op_sel_hi:[1,0]')
        for i in range(8):
            e(f'v_cvt_pk_bf16_f32 {v(out+i)}, {v(acc+2*i)}, {v(acc+2*i+1)}')
    def phi_a(self, acc, tmp, out, tag, after=None):
        e = self.e
        for hh in range(2):
            r = range(4*hh, 4*hh+4)
            for i in r: e(f'v_pk_mul_f32 {v(tmp+2*i,2)}, {v(acc+2*i,2)}, {v(vRS,2)} op_sel:[0,1] op_sel_hi:[1,1]')
            for i in r:
                e(f'v_exp_f32_e64 {v(tmp+2*i)}, {v(tmp+2*i)} clamp')
                e(f'v_exp_f32_e64 {v(tmp+2*i+1)}, {v(tmp+2*i+1)} clamp')
            self.bg(f'{tag}{2*hh}')
            for i in r: e(f'v_pk_fma_f32 {v(acc+2*i,2)}, {v(acc+2*i,2)}, {v(vRS,2)}, 1.0 op_sel_hi:[1,0,0]')
            for i in r:
                e(f'v_max_f32 {v(acc+2*i)}, {v(acc+2*i)}, {v(tmp+2*i)}')
                e(f'v_max_f32 {v(acc+2*i+1)}, {v(acc+2*i+1)}, {v(tmp+2*i+1)}')
            for i in r: e(f'v_pk_add_f32 {v(acc+2*i,2)}, {v(acc+2*i,2)}, {s(sEPS6,2)}')
            for i in r: e(f'v_cvt_pk_bf16_f32 {v(out+i)}, {v(acc+2*i)}, {v(acc+2*i+1)}')
            if after: after(hh)
            self.bg(f'{tag}{2*hh+1}')
    def softmax16(self, p, tm, out, tag):
        e = self.e
        e(f'v_max3_f32 {v(tm)}, {v(p)}, {v(p+1)}, {v(p+2)}')
        e(f'v_max3_f32 {v(tm+1)}, {v(p+3)}, {v(p+4)}, {v(p+5)}')
        e(f'v_max3_f32 {v(tm)}, {v(tm)}, {v(p+6)}, {v(p+7)}')
        e(f'v_max3_f32 {v(tm+1)}, {v(tm+1)}, {v(p+8)}, {v(p+9)}')
        e(f'v_max3_f32 {v(tm)}, {v(tm)}, {v(p+10)}, {v(p+11)}')
        e(f'v_max3_f32 {v(tm+1)}, {v(tm+1)}, {v(p+12)}, {v(p+13)}')
        e(f'v_max3_f32 {v(tm)}, {v(tm)}, {v(p+14)}, {v(p+15)}')
        e(f'v_max_f32 {v(tm)}, {v(tm)}, {v(tm+1)}')
        e(f'v_mul_f32 {v(tm)}, {s(sL2E)}, {v(tm)}')
        for i in range(8):
            e(f'v_pk_fma_f32 {v(p+2*i,2)}, {v(p+2*i,2)}, {s(sL2E,2)}, {v(tm,2)} op_sel_hi:[1,1,0] neg_lo:[0,0,1] neg_hi:[0,0,1]')
        self.bg(tag + 'a')
        for i in range(16):
            e(f'v_exp_f32 {v(p+i)}, {v(p+i)}')
            if i == 7: self.bg(tag + 'b')
        self.bg(tag + 'c')
        for i in range(4): e(f'v_pk_add_f32 {v(tm+2*i,2)}, {v(p+4*i,2)}, {v(p+4*i+2,2)}')
        e(f'v_pk_add_f32 {v(tm,2)}, {v(tm,2)}, {v(tm+2,2)}')
        e(f'v_pk_add_f32 {v(tm+4,2)}, {v(tm+4,2)}, {v(tm+6,2)}')
        e(f'v_pk_add_f32 {v(tm,2)}, {v(tm,2)}, {v(tm+4,2)}')
        e(f'v_add_f32 {v(tm)}, {v(tm)}, {v(tm+1)}')
        e(f'v_rcp_f32 {v(tm)}, {v(tm)}')
        self.bg(tag + 'd')
        for i in range(8): e(f'v_pk_mul_f32 {v(p+2*i,2)}, {v(p+2*i,2)}, {v(tm,2)} op_sel_hi:[1,0]')
        for i in range(8): e(f'v_cvt_pk_bf16_f32 {v(out+i)}, {v(p+2*i)}, {v(p+2*i+1)}')

    def kv_epilogue(self, l, late_q):
        e = self.e; typ = l & 1
        self.dump(f'L{l}.kv', [v(vA0+i) for i in range(32)] + [v(vRS)])
        if typ == 0:
            def wr(hh): e(f'ds_write_b128 {v(vPKwA)}, {v(vTM+4*hh,4)} offset:{2*hh*PL}')
            self.phi_a(vA0, vWB, vTM, 'ek', wr)
            self.scale_pack(vA1, vA1)
            e(f'ds_write_b128 {v(vPKwA)}, {v(vA1,4)} offset:{8*PL}')
            e(f'ds_write_b128 {v(vPKwA)}, {v(vA1+4,4)} offset:{10*PL}')
        else:
            self.scale_pack(vA0, vTM)
            e(f'v_mfma_f32_32x32x16_bf16 {v(vA0,16)}, {v(vWPH,4)}, {v(vTM,4)}, 0')
            e(f'v_mfma_f32_32x32x16_bf16 {v(vWB,16)}, {v(vWPH+4,4)}, {v(vTM+4,4)}, 0')
            self.bg('es0')
            self.scale_pack(vA1, vA1)
            e(f'ds_write_b128 {v(vPKwA)}, {v(vA1,4)} offset:{8*PL}')
            e(f'ds_write_b128 {v(vPKwA)}, {v(vA1+4,4)} offset:{10*PL}')
            self.bg('es1')
            for hh, p in ((0, vA0), (1, vWB)):
                self.softmax16(p, vTM, p, f'ek{hh}')
                e(f'ds_write_b128 {v(vPKwB)}, {v(p,4)} offset:{(2*hh)*PL}')
                e(f'ds_write_b128 {v(vPKwB)}, {v(p+4,4)} offset:{(2*hh+1)*PL}')
        ones = vTM + 4
        for i in range(4): e(f'v_mov_b32 {v(ones+i)}, {s(sONES)}')
        if l == 0: e.wait(vm=self.clr1)
        if not late_q: self.need('Q')
        e.wait_all_lg()
        e('s_barrier')
        self.free('KV')
        self.stamp(f'L{l}.B1')
        pr = vPKrA if typ == 0 else vPKrB
        tags = []
        for st in range(4):
            e(f'ds_read_b64_tr_b16 {v(vA0+4*st,2)}, {v(pr)} offset:{st*512}')
            e(f'ds_read_b64_tr_b16 {v(vA0+4*st+2,2)}, {v(pr)} offset:{st*512+256}')
            e(f'ds_read_b64_tr_b16 {v(vA1+4*st,2)}, {v(vPKrA)} offset:{8*PL+st*512}')
            tags.append(e(f'ds_read_b64_tr_b16 {v(vA1+4*st+2,2)}, {v(vPKrA)} offset:{8*PL+st*512+256}'))
        self.bg('b1')
        self.set_wtr(SLOTS[l]['Q'], l)
        ckv, cz = vWB + 16, vWB + 20
        ak, az = self.e1_addr(l, vWB)
        e(f's_add_u32 {s(sT[0])}, {s(sKVwrB)}, {l*0x80000}\ns_add_u32 {s(sT[1])}, {s(sZwrB)}, {l*0x10000}')
        for st in range(4):
            e.wait(lg=tags[st])
            e(f'v_mfma_f32_16x16x32_bf16 {v(ckv,4)}, {v(vA0+4*st,4)}, {v(vA1+4*st,4)}, {v(ckv,4) if st else 0}')
            e(f'v_mfma_f32_16x16x32_bf16 {v(cz,4)}, {v(ones,4)}, {v(vA0+4*st,4)}, {v(cz,4) if st else 0}')
        e(f'v_cvt_pk_bf16_f32 {v(vTM)}, {v(ckv)}, {v(ckv+1)}\nv_cvt_pk_bf16_f32 {v(vTM+1)}, {v(ckv+2)}, {v(ckv+3)}')
        e(f'v_min_u32 {v(vTM)}, -2, {v(vTM)}\nv_min_u32 {v(vTM+1)}, -2, {v(vTM+1)}')
        e(f'buffer_store_dwordx2 {v(vTM,2)}, {v(ak)}, {s(sWS,4)}, {s(sT[0])} offen sc1')
        e(f'v_min_u32 {v(vTM+2)}, -2, {v(cz)}')
        e(f'buffer_store_dword {v(vTM+2)}, {v(az)}, {s(sWS,4)}, {s(sT[1])} offen sc1')
        self.stamp(f'L{l}.pub1')
        if l < 2: self.clear_slot(l + 2, vTM + 4, ak, az)
        if late_q:
            self.need('Q'); e('s_barrier')

    def e1_ops(self, e, l, tags, each=False):
        typ = l & 1
        nk, nz = (4, 2) if typ == 0 else (8, 4)
        sk, sz = (sKVrdA, sZrdA) if typ == 0 else (sKVrdB, sZrdB)
        ops = []
        def zl(t):
            if t == 0: e(f's_add_u32 {s(sT[1])}, {s(sz)}, {l*0x10000}')
            tags['z'] = e(f'buffer_load_dword {v(vXF+32+t)}, {v(vL4)}, {s(sWS,4)}, {s(sT[1])} offen offset:{t*256} sc1')
        def kl(p):
            if p % 4 == 0 or each: e(f's_add_u32 {s(sT[0])}, {s(sk)}, {l*0x80000 + (p & ~3)*1024}')
            tags[p] = e(f'buffer_load_dwordx4 {v(vXF+4*p,4)}, {v(vL16)}, {s(sWS,4)}, {s(sT[0])} offen offset:{(p&3)*1024} sc1')
        return [lambda t=t: zl(t) for t in range(nz)] + [lambda p=p: kl(p) for p in range(nk)]

    def q_phase(self, l):
        e = self.e; typ = l & 1; first = l < 2
        wt = [None] * 32
        def wread(k): wt[k] = self.tr_w(vWB + (k % 6) * 4, k, 0)
        for k in range(4): wread(k)
        cQ = vCS + typ * 6
        st = 0; pk = []
        if l == 0:
            e(f'v_and_b32 {v(vTM+3)}, 0x7c, {v(vL4)}')
            dbt = e(f'buffer_load_dword {v(vTM+2)}, {v(vTM+3)}, {s(sDBG,4)}, 0 offen sc1')
            if self.o.tw or self.o.te:
                e(f'v_lshlrev_b32 {v(vTM+6)}, 5, {v(vL4)}\nv_lshrrev_b32 {v(vTM+1)}, 4, {v(vL4)}\nv_lshl_add_u32 {v(vTM+7)}, {v(vTM+1)}, 26, {v(vTM+6)}')
                e(f'v_lshrrev_b32 {v(vTM+1)}, 6, {v(vL4)}\nv_lshl_add_u32 {v(vTM+6)}, {v(vTM+1)}, 26, {v(vTM+6)}')
                for c in self.o.tw: self.touch(int(c))
        E1AT = self.o.e1at[l]
        kt = {}
        e1 = self.e1_ops(e, l, kt)
        if self.o.ctouch & 1 and l < 3: e1.insert(0, lambda: self.code_touch(v(vXF + 36)))
        for k in range(32):
            e.wait(lg=wt[k])
            b = vWB + (k % 6) * 4
            self.big(vA0, b, k)
            if k + 4 < 32: wread(k + 4)
            if k == 0 and not first:
                e(f'v_mfma_f32_32x32x8_bf16 {v(vA0,16)}, {v(cQ,2)}, {v(vMF,2)}, {v(vA0,16)}')
            if k == E1AT and l == 0:
                e.wait(vm=dbt)
                e(f's_mov_b32 {s(sT[2])}, 0x11111111')
                e('L_all_chk:')
                e(f'v_dot8_u32_u4 {v(vTM+1)}, {v(vTM+2)}, {s(sT[2])}, 0')
                e(f's_lshl_b32 {s(sT[3])}, 8, {s(sXCC)}')
                e(f'v_cmp_ne_u32 vcc, 8, {v(vTM+1)}\ns_cbranch_vccnz L_all_retry')
                e(f'v_cmp_ne_u32 vcc, {s(sT[3])}, {v(vTM+2)}\ns_lshl_b32 {s(sT[3])}, {s(sR)}, 1')
                e(f's_lshr_b32 {s(sMODE)}, vcc_lo, {s(sT[3])}\ns_and_b32 {s(sMODE)}, {s(sMODE)}, 3')
                if self.o.force_safe: e(f's_or_b32 {s(sMODE)}, {s(sMODE)}, 1')
                e(f's_cselect_b32 {s(sSTR)}, {EXSTRIDE}, 0')
                if self.o.xout:
                    e(f's_cselect_b64 {s(sX,2)}, {s(sWS,2)}, {s(sOUT,2)}\ns_cselect_b32 {s(sX+2)}, {s(sWS+2)}, {s(sOUT+2)}\ns_cselect_b32 {s(sT[3])}, 0, {XB}')
                    for r in (sXrd, sXwr): e(f's_sub_u32 {s(r)}, {s(r)}, {s(sT[3])}')
                for r in (sOrd, sOwr): e(f's_add_u32 {s(r)}, {s(r)}, {s(sSTR)}')
                t = Asm()
                t(f'L_all_retry:\nbuffer_load_dword {v(vTM+2)}, {v(vTM+3)}, {s(sDBG,4)}, 0 offen sc1')
                t(f's_sub_u32 {s(sBUD)}, {s(sBUD)}, 1\ns_cbranch_scc1 L_fail\ns_waitcnt vmcnt(0)\ns_branch L_all_chk')
                self.tail.append(t)
                e1 += [lambda: e(f'buffer_load_dword a255, {v(vFl16)}, {s(sWS,4)}, {s(sFOrd)} offen sc1'),
                       lambda: e(f'buffer_load_dword a255, {v(vFl16)}, {s(sWS,4)}, {s(sFXrd)} offen sc1'),
                       lambda: e(f's_lshl_b32 {s(sT[4])}, {s(sG)}, 10\ns_mov_b32 m0, {L_WP}\nbuffer_load_dwordx4 {v(vL16)}, {s(sWP,4)}, {s(sT[4])} offen lds')]
                e1 += [lambda c=c: self.touch(int(c)) for c in self.o.te]
                assert E1AT + len(e1) <= 29 or not self.o.te
            if k >= E1AT:
                for _ in range(self.o.e1rate if k < 31 else 99):
                    if e1: e1.pop(0)()
            self.bg(f'q{k}')
            if l == 3 and self.o.clean & 1 and k in (2, 4):
                e(f'buffer_store_dwordx4 {v(vRES+2*(k-2),4)}, {v(vL16)}, {s(sWS,4)}, {s(sXwr)} offen offset:{(k-2)*512} sc1')
            if first:
                wn = 'WQ' + 'AB'[typ]
                if st == 0 and wn in self.bgt: st = 1; k1 = k + 2
                elif st == 1 and k == k1:
                    e.wait(lg=self.bgt[wn]); e('s_barrier')
                    r0 = self.cs_read(0, vA1); st = 2; k1 = k + 3
                elif st == 2 and k == k1:
                    e.wait(lg=r0); pk = self.cs_pack_ops(vA1, cQ); st = 3
                elif st == 3 and not pk:
                    e(f'v_mfma_f32_32x32x8_bf16 {v(vA0,16)}, {v(cQ,2)}, {v(vMF,2)}, {v(vA0,16)}'); st = 4
                for _ in range(2):
                    if pk: e(pk.pop(0))
        assert st == 4 or not first
        zt = kt['z']
        self.stamp(f'L{l}.qgemm')
        self.dump(f'L{l}.q', [v(vA0+i) for i in range(16)])
        PQ = vXF + 64
        if typ == 0:
            self.phi_a(vA0, vWB, PQ, 'eq')
        else:
            self.scale_pack(vA0, vTM)
            e(f'v_mfma_f32_32x32x16_bf16 {v(vA0,16)}, {v(vWPH,4)}, {v(vTM,4)}, 0')
            e(f'v_mfma_f32_32x32x16_bf16 {v(vA1,16)}, {v(vWPH+4,4)}, {v(vTM+4,4)}, 0')
            self.softmax16(vA0, vWB, PQ, 'eq0')
            self.softmax16(vA1, vWB, PQ + 8, 'eq1')
        self.stamp(f'L{l}.phiq')
        nk, nz = (4, 2) if typ == 0 else (8, 4)
        C = vWB; mx = vTM; z = vXF + 32
        if self.o.e1inl: e(f's_branch L_e1c{l}')
        t = Asm()
        t(f'L_e1r{l}:')
        ops = self.e1_ops(t, l, {}, True)
        for op in ops[:nz]: op()
        for p in range(nk):
            b = vXF + 4*p
            t(f'v_max3_u32 {v(mx)}, {v(b)}, {v(b+1)}, {v(b+2)}\nv_max_u32 {v(mx)}, {v(mx)}, {v(b+3)}\nv_cmp_eq_u32 vcc, -1, {v(mx)}\ns_cbranch_vccz L_e1s{l}_{p}')
            ops[nz + p]()
            t(f'L_e1s{l}_{p}:')
        t(f's_sub_u32 {s(sBUD)}, {s(sBUD)}, 1\ns_cbranch_scc1 L_fail\ns_waitcnt vmcnt(0)')
        if self.o.e1inl: e.ins += t.ins
        else:
            t(f's_branch L_e1c{l}'); self.tail.append(t)
        e(f'L_e1c{l}:')
        e.wait(vm=zt)
        if nz == 2:
            e(f'v_max_u32 {v(mx)}, {v(z)}, {v(z+1)}\nv_add_f32 {v(z)}, {v(z)}, {v(z+1)}')
        else:
            e(f'v_max3_u32 {v(mx)}, {v(z)}, {v(z+1)}, {v(z+2)}\nv_max_u32 {v(mx)}, {v(mx)}, {v(z+3)}')
            e(f'v_pk_add_f32 {v(z,2)}, {v(z,2)}, {v(z+2,2)}\nv_add_f32 {v(z)}, {v(z)}, {v(z+1)}')
        zops = [f'v_mov_b32 {v(z+1)}, {v(z)}', f'v_permlane16_swap_b32 {v(z)}, {v(z+1)}', f'v_add_f32 {v(z)}, {v(z)}, {v(z+1)}',
                f'v_mov_b32 {v(z+1)}, {v(z)}', f'v_permlane32_swap_b32 {v(z)}, {v(z+1)}', f'v_add_f32 {v(z)}, {v(z)}, {v(z+1)}',
                f'v_cvt_pk_bf16_f32 {v(z)}, {v(z)}, {v(z)}', f'ds_write_b16 {v(vZw)}, {v(z)} offset:512']
        e(zops.pop(0))
        for p in range(nk):
            e.wait(vm=kt[p])
            b = vXF + 4*p
            e(f'v_mfma_f32_16x16x32_bf16 {v(C,4)}, {v(vSEL,4)}, {v(b,4)}, {v(C,4) if p else 0}')
            e(f'v_max3_u32 {v(mx)}, {v(mx)}, {v(b)}, {v(b+1)}\nv_max3_u32 {v(mx)}, {v(mx)}, {v(b+2)}, {v(b+3)}')
            if p == 0:
                for _ in range(3): e(zops.pop(0))
        e(f'v_cmp_eq_u32 vcc, -1, {v(mx)}\ns_cbranch_vccnz L_e1r{l}')
        for op in zops: e(op)
        self.stamp(f'L{l}.e1')
        e(f'v_cvt_pk_bf16_f32 {v(vTM)}, {v(C)}, {v(C+1)}\nv_cvt_pk_bf16_f32 {v(vTM+1)}, {v(C+2)}, {v(C+3)}')
        e(f'ds_write_b64 {v(vKVw)}, {v(vTM,2)}')
        self.bg('o0')
        if not self.o.lateb[l]: self.need('ab')
        e.wait_all_lg()
        e('s_barrier')
        self.free('Q')
        KF = vWB + 8
        kr = vKVrA if typ == 0 else vKVrB
        tg = []
        for hh in range(2):
            for u in range(2):
                off = (2*u + hh) * 544 if typ == 0 else hh * 544 + u * 16
                tg.append(e(f'ds_read_b128 {v(KF + 4*(2*hh+u),4)}, {v(kr)} offset:{off}'))
        self.bg('o1')
        for hh in range(2):
            acc = (vA0, vA1)[hh]
            for u in range(2):
                e.wait(lg=tg[2*hh+u])
                pq = PQ + 4*hh if typ == 0 else PQ + 8*hh + 4*u
                e(f'v_mfma_f32_32x32x16_bf16 {v(acc,16)}, {v(KF+4*(2*hh+u),4)}, {v(pq,4)}, {v(acc,16) if u else 0}')
        if l < 3: self.set_wtr(SLOTS[l+1]['K'], l + 1)
        if l == 0:
            e(f'''
            v_lshrrev_b32 {v(vTM)}, 6, {v(vL4)}
            v_lshl_add_u32 {v(vXst)}, {v(vTM)}, 8, {v(vL16)}
            v_and_b32 {v(vTM)}, 1, {v(vTM)}
            v_lshrrev_b32 {v(vTM+1)}, 7, {v(vL4)}
            v_lshl_add_u32 {v(vTM)}, {v(vTM)}, 2, {v(vTM+1)}
            v_lshlrev_b32 {v(vTM+1)}, 2, {v(vFl16)}
            v_lshl_add_u32 {v(vOst)}, {v(vTM)}, 8, {v(vTM+1)}
            ''')
        e(f'v_mov_b32 {v(vWB)}, {l+1}')
        self.bg('o2')
        O = vXF + 96
        quick = l > 0 and self.o.quick
        for hh in range(2):
            acc = (vA0, vA1)[hh]
            e(f'v_add_f32 {v(acc+8)}, {s(sEPS6)}, {v(acc+8)}\nv_rcp_f32 {v(acc+8)}, {v(acc+8)}')
            for i in range(4): e(f'v_pk_mul_f32 {v(acc+2*i,2)}, {v(acc+2*i,2)}, {v(acc+8,2)} op_sel_hi:[1,0]')
            for i in range(4):
                e(f'v_cvt_pk_bf16_f32 {v(O+4*hh+i)}, {v(acc+2*i)}, {v(acc+2*i+1)}')
                if i == 1: self.tag(O + 4*hh, l & 1)
            def st(e, m):
                e(f'buffer_store_dwordx4 {v(O+4*hh,4)}, {v(vOst)}, {s(sWS,4)}, {s(sOwr)} offen offset:{hh*512}{m or ((self.o.lasto if l == 3 else str()) if l else self.o.pub0)}')
                if hh:
                    if m or not (quick or self.o.noack): e.wait_all_vm()
                    self.flag(e, vWB, sFOwr, m)
            self.modal(f'po{l}{hh}', st)
        self.dump(f'L{l}.o', [v(O+i) for i in range(8)])
        self.stamp(f'L{l}.pub2')

    def o_proj(self, l):
        e = self.e; typ = l & 1; T = 'AB'[typ]
        chk = vTM + 1 if l > 0 else None
        par = l & 1
        self.bg('w0')
        if l == 0:
            t0, t1 = vTM, vTM + 1
            e(f'''
            v_bfe_u32 {v(t0)}, {v(vL4)}, 4, 2
            v_lshrrev_b32 {v(t1)}, 7, {v(vL4)}
            v_lshl_add_u32 {v(t0)}, {v(t1)}, 3, {v(t0)}
            v_lshlrev_b32 {v(t0)}, 5, {v(t0)}
            v_bfe_u32 {v(t1)}, {v(vL4)}, 6, 1
            v_lshl_add_u32 {v(t0)}, {v(t1)}, 4, {v(t0)}
            v_bfe_u32 {v(t1)}, {v(vL4)}, 3, 1
            v_lshl_add_u32 {v(t0)}, {v(t1)}, 3, {v(t0)}
            v_add_u32 {v(t0)}, {L_WP}, {v(t0)}
            ''')
            for hh in range(2):
                for t in range(2):
                    tw = e(f'ds_read_b64_tr_b16 {v(vWPH+4*hh+2*t,2)}, {v(t0)} offset:{hh*512 + t*128}')
            e(f'v_bfe_u32 {v(t1)}, {v(vL4)}, 4, 1\nv_mul_u32_u24 {v(t1)}, 0x8000, {v(t1)}\nv_lshl_or_b32 {v(t1)}, {v(t1)}, 16, {v(t1)}')
            e.wait(lg=tw)
            for i in range(8): e(f'v_xor_b32 {v(vWPH+i)}, {v(t1)}, {v(vWPH+i)}')
        if self.o.lateb[l]:
            self.need('ab'); e('s_barrier')
        ot = [None] * 16; wt = [None] * 64
        def oload(e, k):
            if k % 2 == 0: e(f's_add_u32 {s(sT[0])}, {s(sOrd)}, {k*2048}')
            ot[k] = e(f'buffer_load_dwordx4 {v(vXF+4*k,4)}, {v(vL16)}, {s(sWS,4)}, {s(sT[0])} offen offset:{(k&1)*2048} sc1')
        PRE = self.o.opre; SP = self.o.spo if l else 0
        NB, LA = 10, self.o.ola[l > 1]
        ad = vTM + 4; sa, sb = SLOTS[l]['a'] * SLOT, SLOTS[l]['b'] * SLOT
        buf = lambda f: vA1 + 4 * (f % NB)
        def wrd(f):
            e = self.e; k, t = f >> 2, f & 3
            if l > 1:
                wt[f] = e(f'ds_read_b128 {v(buf(f),4)}, {v(ad + (k >> 3))} offset:{(k & 7)*4096 + t*512}')
                return
            off = (k & 7) * 4096
            if k >= 8:
                if l == 1: off += sb - sa
                elif k == 8: e(f'v_add_u32 {v(ad+t)}, {(sb - sa) & 0xffffffff}, {v(ad+t)}')
            e(f'ds_read_b64_tr_b16 {v(buf(f),2)}, {v(ad+t)} offset:{off}')
            wt[f] = e(f'ds_read_b64_tr_b16 {v(buf(f)+2,2)}, {v(ad+t)} offset:{off+1024}')
        def init():
            e = self.e
            for f in range(LA): wrd(f)
            for i in range(8):
                e(f'v_lshlrev_b32 {v(vA0+2*i)}, 16, {v(vRES+i)}\nv_and_b32 {v(vA0+2*i+1)}, {s(sHI)}, {v(vRES+i)}')
        def shadow():
            self.bg('wp')
            if not self.o.oinit[l]: init()
            self.bg('ws')
        if l > 1:
            if l == 2: e(f'v_lshrrev_b32 {v(vWO)}, 7, {v(vL4)}\nv_mul_u32_u24 {v(vWO)}, 1536, {v(vWO)}\nv_add_u32 {v(vWO)}, {v(vWO)}, {v(vL16)}')
            e(f'v_add_u32 {v(ad)}, {sa}, {v(vWO)}\nv_add_u32 {v(ad+1)}, {sb}, {v(vWO)}')
        else:
            e(f'v_add_u32 {v(ad)}, {sa}, {v(vWO)}')
            for t in (1, 2, 3): e(f'v_xor_b32 {v(ad+t)}, {32*t}, {v(ad)}')
        if self.o.oinit[l]: init(); keep = list(wt)
        self.bg('wi')
        self.stamp(f'L{l}.pre2')
        self.hop(f'o{l}', sFOrd, l + 1, vTM, oload, SP, shadow, init)
        if self.o.oinit[l]: wt[:] = keep
        if not l: self.in_redo = False
        self.stamp(f'L{l}.poll2')
        for k in range(SP, PRE): oload(e, k)
        self.bg('w1')
        xo = vTM + 2; fr = vTM + 3
        late = [f's_add_u32 {s(r)}, {s(r)}, {s(sSTR)}' for r in (sXrd, sXwr, sSTrd, sSTwr, sOrd, sOwr)] if l < 3 else []
        for k in range(16):
            for t in range(4):
                f = 4*k + t
                if t % 2 == 0: e.wait(vm=ot[k], lg=wt[f + 1])
                e(f'v_mfma_f32_16x16x32_bf16 {v(vA0+4*t,4)}, {v(buf(f),4)}, {v(vXF+4*k,4)}, {v(vA0+4*t,4)}')
                if f + LA < 64: wrd(f + LA)
                if t == 0:
                    if k + PRE < 16: oload(e, k + PRE)
                    if k + PRE == 16 and self.o.ctouch & 2 and l < 3: self.code_touch(v(vXF + 64))
                    self.bg(f'p{k}')
                if t == 2:
                    if chk and k % 2 == 1:
                        e(self.chk(chk, vXF+4*k-4, vXF+4*k, par, k == 1))
                        if k <= SP or k == 15: self.chk_end(chk, par, f'o{l}', vTM)
                    self.bg(f'p{k}b')
                    if k == 14:
                        if l < 3: e(f'v_mov_b32 {v(fr)}, {l + 2}')
                        else:
                            e(f'v_bfe_u32 {v(xo)}, {v(vL4)}, 6, 1\nv_lshrrev_b32 {v(xo+1)}, 7, {v(vL4)}\nv_lshl_add_u32 {v(xo)}, {v(xo)}, 1, {v(xo+1)}')
                            e(f'v_lshlrev_b32 {v(xo+1)}, 8, {v(vFl16)}\nv_lshl_add_u32 {v(xo)}, {v(xo)}, 4, {v(xo+1)}')
        self.in_redo = False
        for op in late: e(op)
        self.stamp(f'L{l}.B3')
        for m in range(2):
            if l == 3 and self.o.bias:
                for i in range(8):
                    e(f's_mov_b32 {s(sT[0])}, 0x433e0000\nv_cmp_gt_f32 vcc, abs({v(vA0+8*m+i)}), {s(sT[0])}\nv_cndmask_b32 {v(vA0+8*m+i)}, {v(vA0+8*m+i)}, 0, vcc')
            for i in range(4):
                e(f'v_cvt_pk_bf16_f32 {v(vRES+4*m+i)}, {v(vA0+8*m+2*i)}, {v(vA0+8*m+2*i+1)}')
                if i == 1 and l < 3: self.tag(vRES + 4*m, l & 1)
            if l < 3:
                def st(e, mm):
                    e(f'buffer_store_dwordx4 {v(vRES+4*m,4)}, {v(vXst)}, {s(sWS,4)}, {s(sXwr)} offen offset:{m*2048}{mm or ((self.o.lastx if l == 2 else str()) if l else (self.o.pub0 if self.o.pub0x is None else self.o.pub0x))}')
                    if m and l and not mm: self.flag(e, fr, sFXwr, mm)
                self.modal(f'px{l}{m}', st)
        if l == 3:
            for m in range(2):
                for i in range(2): e(f'v_permlane16_swap_b32 {v(vRES+4*m+i)}, {v(vRES+4*m+2+i)}')
                e(f'buffer_store_dwordx4 {v(vRES+4*m,4)}, {v(xo)}, {s(sOUT,4)}, {s(sXO)} offen offset:{64*m} {self.o.outmod}')
            return
        self.dump(f'L{l}.x', [v(vRES+i) for i in range(8)])
        if l == 1: e(f's_lshl_b32 {s(sT[2])}, {s(sROT)}, 12\ns_add_u32 {s(sT[2])}, {s(sT[2])}, {s(sXrd)}')
        else: e(f's_mov_b32 {s(sT[2])}, {s(sXrd)}')
        self.x_stats()
        self.tag(vTM, l & 1)
        def st2(e, mm):
            e(f'buffer_store_dword {v(vTM)}, {v(vSTst)}, {s(sWS,4)}, {s(sSTwr)} offen{mm}')
            if mm or not l:
                if mm or not self.o.noack: e.wait_all_vm()
                self.flag(e, fr, sFXwr, mm)
        self.modal(f'px{l}s', st2)
        self.bg('y0')
        self.stamp(f'L{l}.pub3')

    def build(self):
        e = self.e
        self.sched = scheds.build(self.o.ov)
        self.prologue()
        for l in range(4):
            self.l = l
            if l == 0: self.kv_gemm0()
            else: self.kv_gemm(l)
            self.kv_epilogue(l, self.o.lateq[l])
            self.q_phase(l)
            self.o_proj(l)
        for k in self.sched: assert k in self.seen, k
        if self.o.stamps:
            self.stamp('end')
            e(f's_memrealtime {s(sTS,2)}'); e.wait_all_lg()
            e(f'v_writelane_b32 {v(vSTAMP)}, {s(sTS)}, 63')
            if not self.o.both: e(f'v_writelane_b32 {v(vSTAMP)}, {s(sBUD)}, 61')
            e(f's_lshl_b32 {s(sT[0])}, s2, 2\ns_add_u32 {s(sT[0])}, {s(sT[0])}, {s(sW)}\ns_lshl_b32 {s(sT[0])}, {s(sT[0])}, 8\ns_add_u32 {s(sT[0])}, {s(sT[0])}, {STAMP}')
            e(f'buffer_store_dword {v(vSTAMP)}, {v(vL4)}, {s(sWS,4)}, {s(sT[0])} offen')
        if self.o.echo:
            self.stamp('end')
            if self.o.echo[0] == 'fixed':
                e(f's_mov_b32 {s(sE0)}, {self.o.echo[2]}')
            else:
                e(f's_sub_u32 {s(sE0)}, {s(sE1)}, {s(sE0)}\ns_mul_i32 {s(sE0)}, {s(sE0)}, {self.o.echo[2]}')
            e(f'{self.o.clk} {s(sE1,2)}\ns_waitcnt lgkmcnt(0)')
            e(f'L_echo:\n{self.o.clk} {s(sTS,2)}\ns_waitcnt lgkmcnt(0)\ns_sub_u32 {s(sTS)}, {s(sTS)}, {s(sE1)}\ns_cmp_lt_u32 {s(sTS)}, {s(sE0)}\ns_cbranch_scc1 L_echo')
        e('L_fail:\ns_endpgm')
        for at, txt in reversed(self.pends):
            j = at - 2
            while j < at and not (e.ins[j].label or e.ins[j].mn.startswith(('v_mfma', 's_cbranch', 's_barrier', 's_waitcnt', 'v_pk', 's_branch'))): j += 1
            e.ins.insert(j, Ins(txt))
        if self.o.fake16: e.ins = [i for i in e.ins if not i.mn.startswith('v_mfma_f32_32x32x8')]
        body = e.finish() + ''.join(t.finish() for t in self.tail) + 'L_code_end:\n    s_endpgm\n'
        body, npad = layout([f'{NAME}_kernel:'] + body.rstrip('\n').split('\n'), 'L_main', 4 if self.o.pads else 0, self.o.align)
        body = body.split('\n', 1)[1]
        head = open('cdna_kernels/' + NAME + '.s.ref').read().split('; Override launch')[0]
        txt = head + '; @launch grid=(256,1,1) block=(256,1,1) lds=163840\n'
        txt += f'''.amdgcn_target "amdgcn-amd-amdhsa--gfx950"
.text
.globl {NAME}_kernel
.p2align 8
.type {NAME}_kernel,@function
{NAME}_kernel:
{body}.section .rodata,"a"
.p2align 6
.amdhsa_kernel {NAME}_kernel
  .amdhsa_next_free_vgpr 512
  .amdhsa_next_free_sgpr 102
  .amdhsa_accum_offset 256
  .amdhsa_group_segment_fixed_size 0
  .amdhsa_kernarg_size 80
  .amdhsa_user_sgpr_count 2
  .amdhsa_user_sgpr_kernarg_segment_ptr 1
  .amdhsa_system_sgpr_workgroup_id_x 1
  .amdhsa_float_denorm_mode_32 3
.end_amdhsa_kernel
'''
        return txt

if __name__ == '__main__':
    ap = argparse.ArgumentParser()
    ap.add_argument('-o', default='cdna_kernels/' + NAME + '.s')
    ap.add_argument('--stamps', action='store_true')
    ap.add_argument('--force-safe', action='store_true')
    ap.add_argument('--dump', default='')
    ap.add_argument('--echo', default='')
    ap.add_argument('--bias', default='')
    ap.add_argument('--clk', default='s_memtime')
    ap.add_argument('--outmod', default='')
    ap.add_argument('--initmod', default='')
    ap.add_argument('--touch', default='61352')
    ap.add_argument('--c1early', type=int, default=2)
    ap.add_argument('--fine', type=int, default=0)
    ap.add_argument('--atp', type=int, default=1)
    ap.add_argument('--nomini', type=int, default=0)
    ap.add_argument('--touchx', type=int, default=1)
    ap.add_argument('--b0at', type=int, default=24)
    ap.add_argument('--both', type=int, default=0)
    ap.add_argument('--fake', type=int, default=0)
    ap.add_argument('--stouch', default=',,')
    ap.add_argument('--tq', default='')
    ap.add_argument('--tw', default='6')
    ap.add_argument('--dummy', type=int, default=0)
    ap.add_argument('--te', default='')
    ap.add_argument('--quick', type=int, default=1)
    ap.add_argument('--lateb', default='0,0,0,0')
    ap.add_argument('--pub0', default='')
    ap.add_argument('--stat-at', type=int, default=4)
    ap.add_argument('--opre', type=int, default=8)
    ap.add_argument('--ctouch', type=int, default=0)
    ap.add_argument('--e1inl', type=int, default=1)
    ap.add_argument('--t0', default='')
    ap.add_argument('--t1', default='')
    ap.add_argument('--t2', default='')
    ap.add_argument('--qs', default='21111110')
    ap.add_argument('--clrp', type=int, default=6)
    ap.add_argument('--pub0s', default='')
    ap.add_argument('--q0', type=int, default=0)
    ap.add_argument('--clean', type=int, default=0)
    ap.add_argument('--xout', type=int, default=0)
    ap.add_argument('--rotm', type=int, default=6)
    ap.add_argument('--rotw', type=int, default=3)
    ap.add_argument('--roto', type=int, default=3)
    ap.add_argument('--spx', type=int, default=0)
    ap.add_argument('--spo', type=int, default=0)
    ap.add_argument('--ola', default='6,6')
    ap.add_argument('--spagain', type=int, default=0)
    ap.add_argument('--oinit', default='0,1,1,1')
    ap.add_argument('--pads', type=int, default=1)
    ap.add_argument('--align', type=int, default=5)
    ap.add_argument('--skip', default='')
    ap.add_argument('--noack', type=int, default=0)
    ap.add_argument('--fake16', type=int, default=0)
    ap.add_argument('--rotf', type=int, default=7)
    ap.add_argument('--padp', type=int, default=1)
    ap.add_argument('--xmod', default='')
    ap.add_argument('--xmodp', type=int, default=8)
    ap.add_argument('--tmod', default='')
    ap.add_argument('--pub0x', default=None)
    ap.add_argument('--ov', default='')
    ap.add_argument('--lasto', default='')
    ap.add_argument('--lastx', default='')
    ap.add_argument('--lastld', default='')
    ap.add_argument('--xpre', type=int, default=8)
    ap.add_argument('--e1at', default='22,20,22,20')
    ap.add_argument('--e1rate', type=int, default=1)
    ap.add_argument('--lateq', default='0,0,0,0')
    ap.add_argument('--sched', default='k')
    opt = ap.parse_args()
    opt.dump = opt.dump.split(',') if opt.dump else []
    opt.echo = opt.echo.split(',') if opt.echo else []
    opt.e1at = list(map(int, opt.e1at.split(','))); opt.lateq = list(map(int, opt.lateq.split(','))); opt.lateb = list(map(int, opt.lateb.split(',')))
    opt.ola = list(map(int, opt.ola.split(',')))
    opt.oinit = list(map(int, opt.oinit.split(',')))
    opt.skip = [x for x in opt.skip.split(',') if x]
    g = Gen(opt)
    txt = g.build()
    open(opt.o, 'w').write(txt)
    if opt.stamps:
        open(opt.o + '.stamps', 'w').write('\n'.join(g.stamp_names))
    print('wrote', opt.o, len(txt), 'bytes; vgpr persistent', _vn[0], 'sgpr', _sn[0], 'stamps', g.nstamp)
```

```python
import re

def R(kind, lo, n=1):
    return f"{kind}{lo}" if n == 1 else f"{kind}[{lo}:{lo+n-1}]"
def v(lo, n=1): return R('v', lo, n)
def a(lo, n=1): return R('a', lo, n)
def s(lo, n=1): return R('s', lo, n)

_reg_re = re.compile(r'(?<![\w.])(-|\|)?([vas])(?:(\d+)\b|\[(\d+):(\d+)\])')
def regs_of(op):
    out = set()
    op = op.strip()
    if op in ('vcc', 'vcc_lo', 'vcc_hi'): return {('s', 'vcc')}
    if op in ('exec', 'exec_lo', 'exec_hi'): return {('s', 'exec')}
    if op == 'm0': return {('s', 'm0')}
    for m in _reg_re.finditer(op):
        k = m.group(2)
        if m.group(3) is not None: out.add((k, int(m.group(3))))
        else:
            for i in range(int(m.group(4)), int(m.group(5)) + 1): out.add((k, i))
    return out

TRANS = ('v_exp_f32', 'v_log_f32', 'v_rcp_f32', 'v_rsq_f32', 'v_sqrt_f32', 'v_sin_f32', 'v_cos_f32', 'v_rcp_iflag')
def split_ops(rest):
    ops, depth, cur = [], 0, ''
    for ch in rest:
        if ch == '[': depth += 1
        if ch == ']': depth -= 1
        if ch == ',' and depth == 0:
            ops.append(cur.strip()); cur = ''
        else: cur += ch
    if cur.strip(): ops.append(cur.strip())
    return ops

class Ins:
    def __init__(self, text):
        self.text = text
        t = text.split(';')[0].strip()
        self.label = t.endswith(':')
        self.directive = t.startswith('.') and not self.label
        self.empty = (t == '')
        self.mn = ''
        self.w = set(); self.r = set(); self.srcC = set(); self.srcAB = set(); self.stdata = set()
        if self.label or self.directive or self.empty: return
        parts = t.split(None, 1)
        mn = self.mn = parts[0]
        rest = parts[1] if len(parts) > 1 else ''
        ops = split_ops(rest)
        clean = []
        for o in ops:
            clean.append(o.split(' ')[0] if not o.startswith('hwreg') else o)
        self.mods = rest
        self.mfma = mn.startswith('v_mfma')
        self.valu = mn.startswith('v_') and not self.mfma
        self.salu = mn.startswith('s_')
        self.trans = mn.startswith(TRANS)
        self.dot = mn.startswith('v_dot')
        self.vmem = mn.startswith(('buffer_', 'global_'))
        self.ds = mn.startswith('ds_')
        self.dpp = ('_dpp' in mn) or ('row_' in rest) or ('quad_perm' in rest)
        self.perml = mn.startswith('v_permlane')
        self.rdlane = mn.startswith(('v_readlane', 'v_readfirstlane'))
        self.ldsdma = self.vmem and (re.search(r'\blds\b', rest) is not None or 'load_lds' in mn)
        rs = [regs_of(o) for o in clean]
        if self.mfma:
            self.w = rs[0]; self.srcAB = rs[1] | rs[2]; self.srcC = rs[3]; self.r = self.srcAB | self.srcC
            self.passes = 8 if '32x32' in mn else (2 if '4x4x4' in mn else 4)
            if mn in ('v_mfma_f32_16x16x4_f32', 'v_mfma_f32_32x32x2_f32'): raise Exception('sgemm not modelled')
        elif self.valu:
            if self.perml:
                self.w = rs[0] | rs[1]; self.r = rs[0] | rs[1]
            else:
                self.w = set(rs[0])
                for x in rs[1:]: self.r |= x
                if mn.startswith(('v_fmac', 'v_dot2c', 'v_writelane', 'v_pk_fmac')): self.r |= rs[0]
                if mn.startswith(('v_add_co', 'v_addc_co', 'v_sub_co')):
                    self.w |= rs[1]
                if self.dot and len(rs) == 4: self.srcC = rs[3]
        elif self.vmem:
            if 'store' in mn or ('atomic' in mn):
                for x in rs: self.r |= x
                if mn.startswith('buffer_'): self.stdata = rs[0]
                else: self.stdata = rs[1]
                if 'atomic' in mn and 'sc0' in rest: self.w = rs[0]
                if not ('x3' in mn or 'x4' in mn): self.stdata = set()
            elif self.ldsdma:
                for x in rs: self.r |= x
                self.r.add(('s', 'm0'))
            elif mn in ('buffer_inv', 'buffer_wbl2'):
                pass
            else:
                self.w = rs[0]
                for x in rs[1:]: self.r |= x
        elif self.ds:
            if 'read' in mn or 'permute' in mn or 'swizzle' in mn:
                self.w = rs[0]
                for x in rs[1:]: self.r |= x
            else:
                for x in rs: self.r |= x
        elif self.salu:
            if mn.startswith(('s_cmp', 's_cbranch', 's_branch', 's_waitcnt', 's_barrier', 's_nop', 's_endpgm', 's_sleep', 's_setprio', 's_bitcmp')):
                for x in rs: self.r |= x
            else:
                if rs: self.w = rs[0]
                for x in rs[1:]: self.r |= x
    def states(self):
        if self.label or self.directive or self.empty: return 0
        if self.mn == 's_nop': return int(self.mods.strip(), 0) + 1
        return 1

def need(p, c):
    n = 0
    vec = lambda S: {x for x in S if x[0] in 'va'}
    sca = lambda S: {x for x in S if x[0] == 's'}
    if p.valu:
        pw = vec(p.w); ps = sca(p.w)
        if c.mfma and (pw & c.r): n = max(n, 3 if p.dot else 2)
        if p.trans and (c.valu and not c.trans or c.vmem or c.ds) and (pw & c.r): n = max(n, 1)
        if c.valu and (c.perml or c.dpp) and (pw & c.r): n = max(n, 2)
        if c.valu and c.rdlane and (pw & c.r): n = max(n, 1)
        if p.dot and (c.valu or c.vmem or c.ds):
            if pw & (c.r | c.w):
                if c.valu and c.dot and c.mn == p.mn and not (pw & (c.r - c.srcC)) : pass
                else: n = max(n, 3)
        if ps:
            if c.valu and (ps & c.r): n = max(n, 4 if c.mn.startswith(('v_readlane', 'v_writelane')) else 2)
            if c.valu and c.mn.startswith('v_cndmask') and ('s', 'vcc') in ps: n = max(n, 2)
            if c.vmem and (ps & c.r): n = max(n, 5)
            if c.salu and (ps & c.r): n = max(n, 1)
    if p.mfma:
        big = {2: 5, 4: 8, 8: 12}[p.passes]
        if c.mfma:
            if p.w & c.srcAB: n = max(n, big)
            if p.w & c.srcC:
                if not (p.w == c.srcC and p.passes == c.passes): n = max(n, max(4, big - 2))
                elif p.passes == 2: n = max(n, 2)
            elif p.w & c.w:
                n = max(n, max(4, big - 2))
        elif c.valu or c.vmem or c.ds:
            if p.w & (c.r | c.w): n = max(n, big)
            if c.valu and (p.srcC & c.w): n = max(n, {2: 1, 4: 3, 8: 7}[p.passes])
    if p.vmem and p.stdata:
        if (c.valu or c.mfma) and (p.stdata & c.w): n = max(n, 2)
        elif (c.vmem or c.ds) and (p.stdata & c.w): n = max(n, 1)
    if p.salu and ('s', 'm0') in p.w and c.vmem and c.ldsdma: n = max(n, 1)
    return n

class Asm:
    def __init__(self):
        self.ins = []
        self.vm = 0
        self.lg = 0
        self.vm_done = 0
        self.lg_done = 0
    def __call__(self, text):
        tag = None
        for line in text.split('\n'):
            if not line.strip(): continue
            i = Ins(line.strip())
            self.ins.append(i)
            if i.mn:
                if i.vmem: self.vm += 1; tag = self.vm
                if i.ds: self.lg += 1; tag = self.lg
        return tag
    def raw(self, text):
        vm, lg = self.vm, self.lg
        self(text)
        self.vm, self.lg = vm, lg
    def wait(self, vm=None, lg=None):
        parts = []
        if vm is not None and vm > self.vm_done:
            n = self.vm - vm
            if n <= 63:
                parts.append(f'vmcnt({n})'); self.vm_done = vm
            else: raise Exception('vmcnt overflow')
        if lg is not None and lg > self.lg_done:
            n = min(self.lg - lg, 15)
            parts.append(f'lgkmcnt({n})'); self.lg_done = self.lg - n
        if parts: self('s_waitcnt ' + ' '.join(parts))
    def wait_all_vm(self):
        self('s_waitcnt vmcnt(0)'); self.vm_done = self.vm
    def wait_all_lg(self):
        self('s_waitcnt lgkmcnt(0)'); self.lg_done = self.lg
    def finish(self):
        pos = {c.text.strip()[:-1]: i for i, c in enumerate(self.ins) if c.label}
        skip_end = [-1] * len(self.ins)

        for i, c in enumerate(self.ins):
            if c.mn.startswith(('s_cbranch', 's_branch')):
                j = pos.get(c.mods.strip(), -1)
                if i < j < i + 200:
                    for t in range(i + 1, j): skip_end[t] = j if skip_end[t] < 0 else min(skip_end[t], j)
        out = []
        hist = []
        for idx, c in enumerate(self.ins):
            if c.label or c.directive or c.empty:
                out.append(c); continue
            req = 0; dist = 0
            for p, se in reversed(hist[-260:]):
                n = need(p, c)
                if n > dist: req = max(req, n - dist)
                if not (0 <= se <= idx): dist += p.states()
                if dist >= 20: break
            while req > 0:
                k = min(req, 16)
                nop = Ins(f's_nop {k-1}')
                out.append(nop); hist.append((nop, skip_end[idx])); req -= k
            out.append(c); hist.append((c, skip_end[idx]))
        lines = []
        for i in out:
            lines.append(i.text if i.label else '    ' + i.text)
        return '\n'.join(lines) + '\n'


import subprocess, tempfile, os
def sizes_of(lines):
    src = '\n'.join(lines) + '\n'
    r = subprocess.run(['llvm-mc', '-triple=amdgcn-amd-amdhsa', '-mcpu=gfx950', '-show-encoding'], input=src, capture_output=True, text=True)
    assert r.returncode == 0, r.stderr[:2000]
    enc = [len(l.split('encoding: [')[1].split(']')[0].split(',')) for l in r.stdout.split('\n') if 'encoding: [' in l]
    out = []; i = 0
    for l in lines:
        t = l.strip()
        if t.endswith(':') or t.startswith('.') or not t: out.append(0)
        else: out.append(enc[i]); i += 1
    assert i == len(enc)
    return out

_PROMO = ('v_add_f32', 'v_mul_f32', 'v_max_f32', 'v_sub_f32', 'v_exp_f32', 'v_rcp_f32', 'v_rsq_f32', 'v_mov_b32', 'v_and_b32', 'v_or_b32',
          'v_xor_b32', 'v_lshlrev_b32', 'v_lshrrev_b32', 'v_add_u32', 'v_min_u32', 'v_max_u32')
def layout(lines, start_label, nchain, align_run=0):
    sz = sizes_of(lines)
    i0 = lines.index(start_label + ':')
    out = lines[:i0 + 1]; pos = 0; page = -1; npad = 0
    last4 = None
    for i in range(i0 + 1, len(lines)):
        l = lines[i]
        if sz[i]:
            if pos >> 12 != page:
                page = pos >> 12
                if nchain:
                    out += [f'L_pad{npad}:', f'    s_cbranch_execz L_pad{npad + nchain}']; npad += 1; pos += 4; last4 = None
            if align_run and sz[i] == 8 and pos % 8 == 4 and last4 is not None:
                run = 0; j = i
                while j < len(lines) and sz[j] in (0, 8) and run < align_run:
                    run += sz[j] == 8 and lines[j].strip().startswith('v_') and 'mfma' not in lines[j]
                    if sz[j] == 8 and not (lines[j].strip().startswith('v_') and 'mfma' not in lines[j]): break
                    j += 1
                if run >= align_run and (pos + 4) >> 12 == page:
                    mn, rest = out[last4].strip().split(None, 1)
                    out[last4] = f'    {mn}_e64 {rest}'; pos += 4
            last4 = len(out) if (sz[i] == 4 and l.strip().split()[0] in _PROMO) else None
            pos += sz[i]
        out.append(l)
    txt = '\n'.join(out) + '\n'
    for k in range(npad, npad + nchain): txt = txt.replace(f'L_pad{k}\n', 'L_warm_done\n')
    return txt, npad
```

```python
import sys, argparse
sys.path.insert(0, 'gen')
from asmlib import *

NAME = 'interleave_layers__linear_attn_block__linear_kernel_hedgehog__prompt'

FLG_O, FLG_X = 0x0000, 0x2000
ZP = 0x10000
STAMP = 0x60000
KVP = 0x100000
EXB, EXSTRIDE = 0x400000, 0x500000
OB, XB, ST = EXB, EXB + 0x200000, EXB + 0x400000
DUMP = 0x2400000
WS_BYTES = 0x4000000
OOB = 0x7F000000
SLOT = 32768
SCR = 4 * SLOT
PL = 2176
L_PK = SCR
L_EX = SCR
L_KV = SCR + 12 * PL
L_CS = L_KV + 2176
L_WP = L_CS + 3072
assert L_WP + 1024 <= 163840

sX, sWA, sWOA, sWB, sWP, sWOB, sOUT, sDBG, sWS, sCODE = 4, 8, 12, 16, 20, 24, 28, 32, 36, 40
_sn = [44]
def salloc(n=1, al=1):
    while _sn[0] % al: _sn[0] += 1
    r = _sn[0]; _sn[0] += n
    assert _sn[0] <= 100
    return r
sW, sR, sG, sRB, sRBO, sJ, sMODE, sBUD, sSTR = [salloc() for _ in range(9)]
sRw, sRo, sCOFF = [salloc() for _ in range(3)]
sXrd, sXwr, sSTrd, sSTwr, sOrd, sOwr, sFOrd, sFOwr, sFXrd, sFXwr = [salloc() for _ in range(10)]
sKVrdA, sKVrdB, sKVwrB, sZrdA, sZrdB, sZwrB, sSKIP = [salloc() for _ in range(7)]
sXO, sONES, sPERM, sHI, sXCC = [salloc() for _ in range(5)]
sROT, sRESP, sDM = salloc(), salloc(), salloc()
sAT = 3
sX0g, sX0l, sW0g, sW0l = sMODE, sSTR, salloc(), salloc()
sL2E = salloc(2, 2); sEPS6 = salloc(2, 2)
sT = [salloc() for _ in range(6)]
sTS = salloc(2, 2)
sE0 = salloc(2, 2); sE1 = salloc(2, 2)

_vn = [1]
def valloc(n=1, al=1):
    while _vn[0] % al: _vn[0] += 1
    r = _vn[0]; _vn[0] += n
    return r
vLane = valloc()
vL16 = valloc(); vL4 = valloc()
vRES = valloc(8, 4)
vWPH = valloc(8, 4)
vSEL = valloc(4, 4)
vCS = valloc(12, 2)
vMF = valloc(2, 2)
vRS = valloc(2, 2)
vPKa, vSVw, vSVo, vCSa = [valloc() for _ in range(4)]
vWtr = valloc(4)
vWdma, vWOdma, vPKwA, vPKwB, vPKrA, vPKrB, vKVw, vZw, vKVrA, vKVrB, vSVt, vE1st, vZst, vSTst, vFl16, vWO = [valloc() for _ in range(16)]
assert _vn[0] <= 64, _vn[0]
vA0, vA1, vWB, vTM = 64, 80, 96, 120
vXF = 128
vM1 = vTM + 2
vXst, vOst = vWtr + 1, vWtr + 2
vPK2 = vLane
vSTAMP = 0

import scheds
BAY = dict(KA=0, VA=1, QA=2, aA=3, bA=4, KB=5, QB=6, VB=7, aB=0, bB=1)
SLOTS = [dict(K=0, V=1, Q=2, a=3, b=0), dict(K=1, V=2, Q=3, a=0, b=1), dict(K=2, V=3, Q=1, a=0, b=3), dict(K=1, V=2, Q=0, a=3, b=1)]

class Gen:
    def __init__(self, opt):
        self.o = opt
        self.e = Asm()
        self.tail = []
        self.nstamp = 0
        self.stamp_names = []
        self.wtr_slot = 0
        self.ndump = 0
        self.bgn = {}; self.bgt = {}; self.seen = set(); self.l = 0
        self.occ = [(0, 'K'), (0, 'V'), (0, 'Q'), (9, 'x')]; self.dead = set(); self.live = {(0, 'K'), (0, 'V')}; self.bayocc = {}; self.in_redo = False
        self.sv = None; self.stag = {}; self.pends = []; self.m0own = None; self.e1chk = None; self.d0 = {}

    def stamp(self, name):
        if self.o.echo and name in self.o.echo[:2]:
            self.e(f'{self.o.clk} {s(sE0 if name == self.o.echo[0] else sE1, 2)}')
            self.e.wait_all_lg()
        if not self.o.stamps: return
        e = self.e
        if self.o.both:
            if self.o.both == 2 and name not in ('start', 'end'): return
            if self.o.both == 4:
                if name.split('.')[-1] not in ('start', 'pub1', 'e1', 'pub2', 'poll2', 'B3', 'poll3', 'end'): return
            elif self.o.both == 3:
                if not (name.startswith(('chunk', 'L0', 'setup', 'g')) or name in ('start', 'end')): return
            elif name.split('.')[-1] not in ('start', 'chunk0', 'x0', 'kvgemm', 'pub1', 'phiq', 'pub2', 'poll2', 'B3', 'end'): return
            e(f's_memtime {s(sTS,2)}\ns_memrealtime {s(sE0,2)}')
            e.wait_all_lg()
            e(f'v_writelane_b32 {v(vSTAMP)}, {s(sTS)}, {self.nstamp}\nv_writelane_b32 {v(vSTAMP)}, {s(sE0)}, {self.nstamp+31}')
            self.nstamp += 1; self.stamp_names.append(name)
            assert self.nstamp <= 31
            return
        e(f'{self.o.clk} {s(sTS,2)}')
        e.wait_all_lg()
        e(f'v_writelane_b32 {v(vSTAMP)}, {s(sTS)}, {self.nstamp}')
        self.nstamp += 1; self.stamp_names.append(name)
    def dump(self, name, regs):
        if name not in self.o.dump: return
        e = self.e
        for r in regs:
            e(f's_lshl_b32 {s(sT[5])}, s2, 2\ns_add_u32 {s(sT[5])}, {s(sT[5])}, {s(sW)}\ns_lshl_b32 {s(sT[5])}, {s(sT[5])}, 14\ns_add_u32 {s(sT[5])}, {s(sT[5])}, {DUMP + self.ndump*256}')
            e(f'buffer_store_dword {r}, {v(vL4)}, {s(sWS,4)}, {s(sT[5])} offen')
            self.ndump += 1
        assert self.ndump <= 64
        e.wait_all_vm()
    def set_wtr(self, slot, l):
        e = self.e
        if l == 0:
            for q in range(4): e(f'v_add_u32 {v(vWtr+q)}, {slot*SLOT}, {v(vWtr+q)}')
        elif l == 1:
            e(f's_lshl_b32 {s(sT[3])}, {s(sW)}, 11\ns_sub_u32 {s(sT[3])}, {slot*SLOT}, {s(sT[3])}\nv_add_u32 {v(vWtr)}, {s(sT[3])}, {v(vSVw)}')
        else: e(f'v_add_u32 {v(vWtr)}, {slot*SLOT}, {v(vL16)}')
    def dma_w(self, typ, kind, n):
        e = self.e; srd = sWA if typ == 0 else sWB
        part = 'QKV'.index(kind); base = SLOTS[typ][kind] * SLOT - part * 1024
        assert base >= 0
        if n & 1 and self.m0own == (typ, kind, n - 1):
            e(f's_add_u32 {s(sDM)}, {s(sDM)}, {49152 - 1024}'); part += 1
        else:
            e(f's_xor_b32 {s(sDM)}, {s(sRw)}, {(n >> 1)*8192 + (n & 1)*1024}')
            e(f's_add_u32 m0, {s(sDM)}, {base}')
            e(f's_mul_i32 {s(sDM)}, {s(sDM)}, 48')
        self.m0own = (typ, kind, n)
        return e(f'buffer_load_dwordx4 {v(vWdma)}, {s(srd,4)}, {s(sDM)} offen offset:{part*1024} lds')
    def dma_wo(self, typ, kind, n):
        e = self.e; srd = sWOA if typ == 0 else sWOB
        off = 0
        if n & 1 and self.m0own == (typ, kind, n - 1):
            e(f's_add_u32 {s(sDM)}, {s(sDM)}, {8192 - 1024}'); off = 1024
        else:
            e(f's_xor_b32 {s(sDM)}, {s(sRo)}, {(n >> 1)*8192 + (n & 1)*1024}')
            e(f's_add_u32 m0, {s(sDM)}, {SLOTS[typ][kind]*SLOT}')
            e(f's_lshl3_add_u32 {s(sDM)}, {s(sDM)}, {0x40000 if kind == "b" else 0}')
        self.m0own = (typ, kind, n)
        return e(f'buffer_load_dwordx4 {v(vWOdma)}, {s(srd,4)}, {s(sDM)} offen offset:{off} lds')
    def park(self, op, item, n):
        e = self.e; r = BAY[item]*32 + 4*n
        slot = SLOTS['AB'.index(item[1]) + (2 if op == 'R' else 0)][item[0]]
        wo = item[0] in 'ab'
        m, x = (n & 3, n >> 2) if wo else (n >> 1, n & 1)
        if op == 'R':
            return e(f'ds_write_b128 {v(vPKa if slot < 2 else vPK2)}, {a(r,4)} offset:{(slot & 1)*SLOT + m*8192 + x*1024}')
        want = (wo, (slot >> 1) * 0x10000 + (64 * x if wo else 0))
        ad = vSVo if wo else vSVw
        if want[1]:
            if want != self.sv: e(f'v_xor_b32 {v(vSVt)}, {want[1]}, {v(ad)}'); self.sv = want
            ad = vSVt
        off = (slot & 1)*SLOT + m*8192 + (0 if wo else x*512)
        e(f'ds_read_b64_tr_b16 {a(r,2)}, {v(ad)} offset:{off}')
        tag = e(f'ds_read_b64_tr_b16 {a(r+2,2)}, {v(ad)} offset:{off + 1024}')
        self.stag[(item, n)] = tag
        return tag
    def colsum(self, item, n):
        e = self.e
        sel, acc = (vA1 + 8, vA1 + 12) if item[0] == 'Q' else (vXF + 104, vXF + 108)
        if n == 0: self.par_sel(sel)
        e.wait(lg=self.stag[(item, n)])
        e(f'v_mfma_f32_16x16x32_bf16 {v(acc,4)}, {v(sel,4)}, {a(BAY[item]*32 + 4*n, 4)}, {v(acc,4) if n else 0}')
        self.csacc = acc
    def bg_op(self, name, n):
        op, item = name[0], name[1:]
        typ = 'AB'.index(item[1])
        if op == 'C': return self.colsum(item, n)
        if op == 'W':
            assert self.bgn.get('C' + item) == 8
            return self.cs_write([v(self.csacc)], ['QKV'.index(item[0])]) if n == 0 else self.bgt[name]
        if op in 'LR':
            slot = SLOTS[typ + (2 if op == 'R' else 0)][item[0]]
            if n == 0:
                prev = self.occ[slot]
                assert prev is None or prev in self.dead, (name, prev)
                if prev and prev[0] < 2:
                    sv = 'S' + prev[1] + 'AB'[prev[0]]
                    assert self.bgn.get(sv) == 8, (name, sv)
                    if op == 'L': self.e.wait(lg=self.bgt[sv])
                self.occ[slot] = (typ + (2 if op == 'R' else 0), item[0])
        if op == 'S':
            if item in ('KA', 'VA'): assert self.k0 >= 8 * (n >> 1) + 2
            if n == 0:
                prev = self.bayocc.get(BAY[item])
                assert prev is None or (self.bgn.get('R' + prev) == 8 and not self.in_redo), (name, prev)
                self.bayocc[BAY[item]] = item
            if (typ, item[0]) not in self.live:
                assert self.bgn.get('L' + item) == 8 and item != 'QA', name
                self.e.wait(vm=self.bgt['L' + item])
        if op == 'L': return self.dma_w(typ, item[0], n) if item[0] in 'QKV' else self.dma_wo(typ, item[0], n)
        return self.park(op, item, n)
    def need(self, kinds, l=None):
        l = self.l if l is None else l
        for k in kinds:
            nm = ('L' if l < 2 else 'R') + k + 'AB'[l & 1]
            assert self.bgn.get(nm) == 8, (self.l, nm)
            if l < 2: self.e.wait(vm=self.bgt[nm])
            else: self.e.wait(lg=self.bgt[nm])
            self.live.add((l, k))
    def free(self, kinds):
        for k in kinds: self.dead.add((self.l, k))
    def bg(self, point):
        for name, cnt in self.sched.get(f'{self.l}.{point}', []):
            if name[0] == 'T':
                self.share_touch(name[1:]); continue
            for _ in range(cnt):
                n = self.bgn.get(name, 0)
                assert n < 8, name
                if any(name.startswith(x) for x in self.o.skip):
                    keep = self.e; self.e = Asm(); self.e.vm, self.e.lg, self.e.vm_done, self.e.lg_done = keep.vm, keep.lg, keep.vm_done, keep.lg_done
                    self.bg_op(name, n); self.e = keep; self.bgt[name] = 0; self.stag[(name[1:], n)] = 0; self.sv = None
                else: self.bgt[name] = self.bg_op(name, n)
                self.bgn[name] = n + 1
        if f'{self.l}.{point}' in self.o.wb:
            self.e(f's_lshl2_add_u32 {s(sT[5])}, {s(sG)}, {s(sW)}\ns_and_b32 {s(sT[5])}, {s(sT[5])}, {self.o.wbmask}\ns_cbranch_scc1 L_nowb{self.l}{point}')
            self.e.raw('buffer_wbl2 sc1')
            self.e(f'L_nowb{self.l}{point}:')
        if self.e1chk and point == self.o.e1chk[self.l]: self.e1chk()
        self.seen.add(f'{self.l}.{point}')
    def tag(self, reg, par):
        self.e(f'v_or_b32 {v(reg)}, 1, {v(reg)}' if par else f'v_and_b32 {v(reg)}, -2, {v(reg)}')
    def chk(self, acc, r0, r1, par, first):
        if first: return f'v_and_b32 {v(acc)}, {v(r0)}, {v(r1)}' if par else f'v_or_b32 {v(acc)}, {v(r0)}, {v(r1)}'
        return f'v_bitop3_b32 {v(acc)}, {v(acc)}, {v(r0)}, {v(r1)} bitop3:0x80' if par else f'v_or3_b32 {v(acc)}, {v(acc)}, {v(r0)}, {v(r1)}'
    def chk_end(self, acc, par, name, tmp=None):
        tmp = acc if tmp is None else tmp
        self.e(f'v_and_b32 {v(tmp)}, 1, {v(acc)}\nv_cmp_ne_u32 vcc, {par}, {v(tmp)}\ns_cbranch_vccnz L_redo_{name}')
    def hop(self, name, sbase, val, r, load, SP, shadow, reinit):
        e = self.e
        ld = f'buffer_load_dword {v(r)}, {v(vFl16)}, {s(sWS,4)}, {s(sbase)} offen sc1'
        cmp = f'v_cmp_gt_u32 vcc, {val}, {v(r)}'
        bud = f's_sub_u32 {s(sBUD)}, {s(sBUD)}, 1\ns_cbranch_scc1 L_fail'
        slow = Asm()
        slow(f'L_redo_{name}:\ns_waitcnt vmcnt(0) lgkmcnt(0)\ns_nop 15')
        self.e = slow; reinit(); self.e = e
        slow(f's_waitcnt lgkmcnt(0)\nL_slow_{name}:\n{ld}\n{bud}\ns_waitcnt vmcnt(0)\n{cmp}\ns_cbranch_vccnz L_slow_{name}')
        for k in range(SP): load(slow, k)
        slow(f's_branch L_ok_{name}')
        self.tail.append(slow)
        again = Asm()
        if self.o.spagain:
            again(f'L_again_{name}:\n{ld}')
            for k in range(SP): load(again, k)
            again(f'{bud}\ns_waitcnt vmcnt({SP})\n{cmp}\ns_cbranch_vccnz L_again_{name}')
        else:
            again(f'L_again_{name}:\n{ld}\n{bud}\ns_waitcnt vmcnt(0)\n{cmp}\ns_cbranch_vccnz L_again_{name}')
            for k in range(SP): load(again, k)
        tag = e(ld)
        if SP:
            e(f's_cmp_lg_u32 {s(sMODE)}, 0\ns_cbranch_scc1 L_nosp_{name}')
            for k in range(SP): load(e, k)
            e(f'L_nosp_{name}:')
        vm = e.vm
        shadow()
        if SP:
            assert e.vm == vm and e.vm_done < tag
            e(f's_cmp_lg_u32 {s(sMODE)}, 0\ns_cbranch_scc1 L_slow_{name}')
        NP = self.o.np
        if NP > 1:
            assert not SP and e.vm == vm
            rs = [r] + [vXF + 124 + i for i in range(NP - 1)]
            pl = lambda x: f'buffer_load_dword {v(x)}, {v(vFl16)}, {s(sWS,4)}, {s(sbase)} offen sc1'
            t = Asm()
            t(pl(rs[1]))
            t(f's_waitcnt vmcnt(1)\n{cmp}\ns_cbranch_vccz L_ok_{name}')
            for x in rs[2:] + rs[:1]:
                t(pl(x))
                if x != rs[0]: t(f's_nop {self.o.npgap}')
            t(f'L_again_{name}:')
            for i in range(NP):
                x = rs[(i + 1) % NP]
                t(f's_waitcnt vmcnt({NP-1})\nv_cmp_gt_u32 vcc, {val}, {v(x)}\ns_cbranch_vccz L_ok_{name}\n{pl(x)}')
            t(f's_sub_u32 {s(sBUD)}, {s(sBUD)}, 1\ns_cbranch_scc0 L_again_{name}\ns_endpgm')
            e.ins += t.ins
            e.vm_done = max(e.vm_done, tag)
        else:
            e.wait(vm=tag)
            if self.o.hopinl:
                e(f'{cmp}\ns_cbranch_vccz L_ok_{name}')
                e.ins += again.ins
            else: e(f'{cmp}\ns_cbranch_vccnz L_slow_{name}')
        e(f'L_ok_{name}:')
        self.in_redo = True; self.sv = None; self.m0own = None
    def modal(self, name, fn):
        e = self.e
        e(f's_cmp_lg_u32 {s(sMODE)}, 0\ns_cbranch_scc1 L_{name}_safe')
        fn(e, '')
        e(f'L_{name}_join:')
        t = Asm(); t(f'L_{name}_safe:\ns_nop 4'); fn(t, ' sc1'); t(f's_nop 1\ns_branch L_{name}_join')
        self.tail.append(t)

    def x_stats(self):
        e = self.e
        S, Q = vTM, vTM + 1
        for i in range(8):
            e(f'v_dot2_f32_bf16 {v(S)}, {v(vRES+i)}, {s(sONES)}, {v(S) if i else 0}')
            e(f'v_dot2_f32_bf16 {v(Q)}, {v(vRES+i)}, {v(vRES+i)}, {v(Q) if i else 0}')
        e(f'v_permlane32_swap_b32 {v(S)}, {v(Q)}')
        e(f'v_add_f32 {v(S)}, {v(S)}, {v(Q)}\nv_mov_b32 {v(Q)}, {v(S)}')
        e(f'v_permlane16_swap_b32 {v(S)}, {v(Q)}')
        e(f'v_add_f32 {v(S)}, {v(S)}, {v(Q)}')
    def flag(self, e, reg, sflag, m):
        e(f's_mov_b64 exec, 1\nbuffer_store_dword {v(reg)}, off, {s(sWS,4)}, {s(sflag)}{m}\ns_mov_b64 exec, -1')

    def e1_addr(self, l, t):
        if l & 1: return vE1st, vZst
        self.e(f'v_add_u32 {v(t)}, {s(sSKIP)}, {v(vE1st)}\nv_add_u32 {v(t+1)}, {s(sSKIP)}, {v(vZst)}')
        return t, t + 1
    def clear_slot(self, l, m1, ak, az):
        e = self.e
        e(f'v_mov_b32 {v(m1)}, -1\nv_mov_b32 {v(m1+1)}, -1')
        e(f's_add_u32 {s(sT[4])}, {s(sKVwrB)}, {l*0x80000}\ns_add_u32 {s(sT[5])}, {s(sZwrB)}, {l*0x10000}')
        e(f'buffer_store_dwordx2 {v(m1,2)}, {v(ak)}, {s(sWS,4)}, {s(sT[4])} offen sc1')
        return e(f'buffer_store_dword {v(m1)}, {v(az)}, {s(sWS,4)}, {s(sT[5])} offen sc1')
    def dma0(self, P, n, again=False):
        e = self.e
        c = self.o.ord0[n]
        if again: self.d0 = {}
        if c in '0123':
            if self.d0.get('m0') != ('x', P): e(f's_add_u32 m0, {s(sX0l)}, {(P % 3) * 16384}')
            if self.d0.get('x') != P: e(f's_xor_b32 {s(sT[0])}, {s(sX0g)}, {P << 7}')
            self.d0.update(m0=('x', P), x=P)
            return e(f'buffer_load_dwordx4 {v(vWPH+int(c))}, {s(sX,4)}, {s(sT[0])} offen offset:{int(c)*1024} {self.o.xmod if P < self.o.xmodp else str()} lds')
        self.d0['m0'] = None
        e(f's_add_u32 m0, {s(sW0l)}, {P*4096 + (SLOT - 1024 if c == "V" else 0)}')
        if self.d0.get('w') != P:
            e(f's_xor_b32 {s(sT[1])}, {s(sW0g)}, {P*4096}\ns_mul_i32 {s(sT[1])}, {s(sT[1])}, 48\ns_add_u32 {s(sT[1])}, {s(sT[1])}, 1024')
        self.d0['w'] = P
        return e(f'buffer_load_dwordx4 {v(vWdma)}, {s(sWA,4)}, {s(sT[1])} offen offset:{1024 if c == "V" else 0} lds')
    def dma0q(self, P):
        e = self.e
        self.d0['m0'] = None
        e(f's_xor_b32 {s(sDM)}, {s(sW0g)}, {P*4096}')
        e(f's_add_u32 m0, {s(sW0l)}, {P*4096 + 2*SLOT}')
        e(f's_mul_i32 {s(sDM)}, {s(sDM)}, 48')
        return e(f'buffer_load_dwordx4 {v(vWdma)}, {s(sWA,4)}, {s(sDM)} offen lds')

    def touch(self, i):
        e = self.e; T = sT; t16, t4 = vCS + 6, vCS + 7
        if i in (0, 9):
            e(f's_lshl2_add_u32 {s(T[5])}, s2, {s(sW)}\ns_lshr_b32 {s(T[4])}, {s(T[5])}, 1\ns_lshl_b32 {s(T[4])}, {s(T[4])}, 11\ns_lshl_b32 {s(T[5])}, {s(T[5])}, 9\ns_add_u32 {s(T[4])}, {s(T[4])}, {s(T[5])}')
            return e(f'buffer_load_dword a255, {v(t4)}, {s(sWA if i == 0 else sWB,4)}, {s(T[4])} offen')
        if i in (1, 5):
            e(f's_lshl2_add_u32 {s(T[5])}, s2, {s(sW)}\ns_lshl_b32 {s(T[5])}, {s(T[5])}, 9')
            return e(f'buffer_load_dword a255, {v(t4)}, {s(sWOA if i == 1 else sWOB,4)}, {s(T[5])} offen')
        if i == 2: return e(f'buffer_load_dword a255, {v(t16)}, {s(sWS,4)}, {s(sOwr)} offen {self.o.tmod}')
        if i == 7:
            e(f's_lshl4_add_u32 {s(T[5])}, {s(sR)}, {s(sG)}\ns_lshl2_add_u32 {s(T[5])}, {s(T[5])}, {s(sW)}\ns_lshl_b32 {s(T[5])}, {s(T[5])}, 11')
            return e(f'buffer_load_dword a255, {v(t16)}, {s(sX,4)}, {s(T[5])} offen')
        if i in (3, 8):
            e(f's_lshl_b32 {s(T[5])}, {s(sW)}, 8\ns_add_u32 {s(T[5])}, {s(T[5])}, s2\ns_min_u32 {s(T[5])}, {s(T[5])}, 767\ns_lshl_b32 {s(T[5])}, {s(T[5])}, 11')
            return e(f'buffer_load_dword a255, {v(t16)}, {s(sWB if i == 3 else sWA,4)}, {s(T[5])} offen')
        if i in (4, 6):
            e(f's_lshl_b32 {s(T[5])}, {s(sG)}, 11\ns_add_u32 {s(T[5])}, {s(T[5])}, {s(sXrd)}')
            return e(f'buffer_load_dword a255, {v(t16)}, {s(sWS,4)}, {s(T[5])} offen {self.o.tmod if i == 4 else str()}')

    def share_touch(self, name):
        e = self.e; t = vSVt; self.sv = None
        kinds, typ = name[:-1], 'AB'.index(name[-1])
        dst = 'a223' if self.l else 'a255'
        if kinds[0] in 'ab':
            e(f's_and_b32 {s(sT[5])}, {s(sG)}, 7\ns_lshl_b32 {s(sT[5])}, {s(sT[5])}, 7\ns_lshl3_add_u32 {s(sT[4])}, {s(sRo)}, {s(sT[5])}')
            if kinds == 'b': e(f's_add_u32 {s(sT[4])}, {s(sT[4])}, 0x40000')
            e(f'v_lshrrev_b32 {v(t)}, 6, {v(vL4)}\nv_lshlrev_b32 {v(t)}, {18 if kinds == "ab" else 26}, {v(t)}\nv_lshl_add_u32 {v(t)}, {v(vFl16)}, 8, {v(t)}')
            return e(f'buffer_load_dword {dst}, {v(t)}, {s(sWOA if typ == 0 else sWOB,4)}, {s(sT[4])} offen')
        e(f's_mul_i32 {s(sT[4])}, {s(sRw)}, 48\ns_lshl_b32 {s(sT[5])}, {s(sG)}, 6\ns_add_u32 {s(sT[4])}, {s(sT[4])}, {s(sT[5])}')
        e(f'v_mul_u32_u24 {v(t)}, 768, {v(vL4)}')
        if kinds == 'KV': e(f's_mov_b64 exec, 0xffffffff\ns_not_b64 exec, exec\nv_subrev_u32 {v(t)}, {32*3072 - 1024}, {v(t)}\ns_mov_b64 exec, -1')
        else: e('s_mov_b64 exec, 0xffffffff')
        tag = e(f'buffer_load_dword {dst}, {v(t)}, {s(sWA if typ == 0 else sWB,4)}, {s(sT[4])} offen offset:{"QKV".index(kinds[0])*1024}')
        if kinds != 'KV': e('s_mov_b64 exec, -1')
        return tag
    def code_touch(self, dst):
        return self.e(f'buffer_load_dword {dst}, {v(vL16)}, {s(sCODE,4)}, {s(sCOFF)} offen')
    def dummy(self, i):
        e = self.e
        if i < 4: return e(f'buffer_store_dwordx4 {v(vSEL,4)}, {v(vL16)}, {s(sWS,4)}, {s((sOwr, sXwr)[i >> 1])} offen offset:{(i & 1)*1024} sc1')
        return e(f'buffer_store_dword {v(vSEL)}, {v(vSTst)}, {s(sWS,4)}, {s(sSTwr)} offen sc1')

    def prologue(self):
        e = self.e
        T = sT
        e('s_cmp_ge_u32 s2, 256\ns_cbranch_scc1 L_fail')
        if self.o.echo and self.o.echo[0] == 'entry': e(f'{self.o.clk} {s(sE0,2)}')
        for srd, off in ((sX, 0), (sWA, 8), (sWS, 72), (sWOA, 16), (sWB, 32), (sWP, 40), (sWOB, 48), (sOUT, 56), (sDBG, 64)):
            e(f's_load_dwordx2 {s(srd,2)}, s[0:1], {off}')
        e(f's_getpc_b64 {s(sCODE,2)}')
        e(f'v_and_b32 {v(vLane)}, 63, v0\nv_lshrrev_b32 {v(vTM)}, 6, v0')
        e(f's_mov_b32 {s(sCODE+2)}, L_code_end-{NAME}_kernel-128\ns_mov_b32 {s(sCODE+3)}, 0x20000')
        e(f'v_readfirstlane_b32 {s(sW)}, {v(vTM)}')
        e(f'v_lshlrev_b32 {v(vL16)}, 4, {v(vLane)}')
        e(f's_lshr_b32 {s(sG)}, s2, 3\ns_lshl2_add_u32 {s(T[0])}, {s(sG)}, {s(sW)}')
        e(f's_and_b32 {s(T[0])}, {s(T[0])}, 63\ns_lshl_b32 {s(T[0])}, {s(T[0])}, 10\ns_min_u32 {s(sCOFF)}, {s(T[0])}, L_code_end-{NAME}_kernel-128-1024')
        self.code_touch('a255')
        e(f'v_lshlrev_b32 {v(vTM+6)}, 7, {v(vLane)}')
        for srd, sz in ((sX, 0x200000), (sWA, 0x180000), (sWS, WS_BYTES)):
            e(f's_mov_b32 {s(srd+2)}, {sz}\ns_mov_b32 {s(srd+3)}, 0x20000')
        t0, t1, t2 = vA1, vA1 + 1, vA1 + 2
        e(f'''
        s_and_b32 {s(sR)}, s2, 7
        s_lshl_b32 {s(sR)}, {s(sR)}, 1
        s_lshr_b32 {s(T[0])}, s2, 7
        s_add_u32 {s(sR)}, {s(sR)}, {s(T[0])}
        s_and_b32 {s(sG)}, {s(sG)}, 15
        s_lshl_b32 {s(sRB)}, {s(sR)}, 2
        s_add_u32 {s(sRB)}, {s(sRB)}, {s(sW)}
        s_and_b32 {s(sROT)}, {s(sG)}, 1
        s_lshl1_add_u32 {s(sROT)}, {s(sROT)}, {s(T[0])}
        s_lshl_b32 {s(sROT)}, {s(sROT)}, 1
        s_and_b32 {s(sROT)}, {s(sROT)}, {self.o.rotm}
        s_lshr_b32 {s(T[1])}, {s(sG)}, 1
        s_xor_b32 {s(sROT)}, {s(sROT)}, {s(T[1])}
        s_xor_b32 {s(sROT)}, {s(sROT)}, s2
        s_cmp_eq_u32 {s(T[1])}, {self.o.p3}
        s_cselect_b32 {s(T[1])}, 6, {self.o.rotf}
        s_and_b32 {s(sROT)}, {s(sROT)}, {s(T[1])}
        s_lshl_b32 {s(sX0g)}, {s(sRB)}, 8
        s_add_u32 {s(sX0g)}, {s(sX0g)}, {s(sROT)}
        s_lshl_b32 {s(sX0g)}, {s(sX0g)}, 7
        s_lshl_b32 {s(sX0l)}, {s(sW)}, 12
        s_add_u32 {s(sX0l)}, {s(sX0l)}, {3*SLOT}
        s_lshl_b32 {s(sW0l)}, {s(sW)}, 10
        s_lshl2_add_u32 {s(sW0g)}, {s(sROT)}, {s(sW)}
        s_lshl_b32 {s(sW0g)}, {s(sW0g)}, 10
        s_lshl_b32 {s(T[2])}, {s(sG)}, 6
        v_lshrrev_b32 {v(vWdma)}, 2, {v(vLane)}
        v_mul_u32_u24 {v(vWdma)}, 3072, {v(vWdma)}
        v_and_b32 {v(vTM+5)}, 3, {v(vLane)}
        v_lshl_add_u32 {v(vWdma)}, {v(vTM+5)}, 4, {v(vWdma)}
        v_add_u32 {v(vWdma)}, {s(T[2])}, {v(vWdma)}
        v_lshrrev_b32 {v(vTM+4)}, 4, {v(vLane)}
        v_and_b32 {v(t2)}, 7, {v(vLane)}
        v_xor_b32 {v(t1)}, {v(t2)}, {v(vTM+4)}
        v_lshlrev_b32 {v(t1)}, 4, {v(t1)}
        v_lshrrev_b32 {v(t0)}, 3, {v(vLane)}
        v_lshl_add_u32 {v(vWPH)}, {v(t0)}, 10, {v(t1)}
        v_xor_b32 {v(vWPH+1)}, 64, {v(vWPH)}
        v_add_u32 {v(vWPH+1)}, {7168}, {v(vWPH+1)}
        v_add_u32 {v(vWPH+2)}, {2*7168}, {v(vWPH)}
        v_add_u32 {v(vWPH+3)}, {2*7168}, {v(vWPH+1)}
        v_and_b32 {v(vTM)}, 31, {v(vLane)}
        v_lshrrev_b32 {v(vTM+1)}, 5, {v(vLane)}
        v_lshlrev_b32 {v(vL4)}, 2, {v(vLane)}
        ''')
        e(f'''
        s_lshl_b32 {s(T[3])}, {s(sG)}, 2
        s_add_u32 {s(T[3])}, {s(T[3])}, {s(sW)}
        s_lshl_b32 {s(sKVrdB)}, {s(T[3])}, 13
        s_add_u32 {s(sKVrdB)}, {s(sKVrdB)}, {KVP}
        s_lshl_b32 {s(sZrdB)}, {s(T[3])}, 10
        s_add_u32 {s(sZrdB)}, {s(sZrdB)}, {ZP}
        s_lshl_b32 {s(T[4])}, {s(sR)}, 9
        s_add_u32 {s(sKVwrB)}, {s(sKVrdB)}, {s(T[4])}
        s_lshl_b32 {s(T[5])}, {s(sR)}, 6
        s_add_u32 {s(sZwrB)}, {s(sZrdB)}, {s(T[5])}
        v_and_b32 {v(vFl16)}, 60, {v(vL4)}
        v_lshlrev_b32 {v(t0)}, 2, {v(vFl16)}
        v_lshl_add_u32 {v(t0)}, {v(vTM+1)}, 8, {v(t0)}
        v_and_b32 {v(t1)}, 1, {v(vTM+4)}
        v_lshl_add_u32 {v(vE1st)}, {v(t1)}, 3, {v(t0)}
        v_lshl_add_u32 {v(vZst)}, {v(vTM+4)}, 26, {v(vFl16)}
        s_lshr_b32 {s(sSKIP)}, {s(sR)}, 3
        s_lshr_b32 {s(T[1])}, {s(sW)}, 1
        s_xor_b32 {s(sSKIP)}, {s(sSKIP)}, {s(T[1])}
        s_lshl_b32 {s(sSKIP)}, {s(sSKIP)}, 28
        v_mov_b32 {v(vA0+4)}, 0
        s_lshr_b32 {s(sFOwr)}, {s(sG)}, 1
        s_lshl_b32 {s(sFOwr)}, {s(sFOwr)}, 13
        s_add_u32 {s(sFOwr)}, {s(sFOwr)}, {s(T[4])}
        s_and_b32 {s(sFOrd)}, {s(sG)}, 1
        s_lshl_b32 {s(sFOrd)}, {s(sFOrd)}, 8
        s_add_u32 {s(sFOwr)}, {s(sFOwr)}, {s(sFOrd)}
        ''')
        e(f'v_lshrrev_b32 {v(t0)}, 2, {v(vLane)}\nv_lshl_add_u32 {v(vCS+7)}, {v(t0)}, 26, {v(vTM+6)}\nv_lshl_add_u32 {v(vCS+6)}, {v(vTM+4)}, 26, {v(vTM+6)}')
        for srd, sz in ((sWOA, 0x80000), (sWB, 0x180000), (sWOB, 0x80000)):
            e(f's_mov_b32 {s(srd+2)}, {sz}\ns_mov_b32 {s(srd+3)}, 0x20000')
        e('s_waitcnt lgkmcnt(0)')
        if self.o.stamps:
            e(f's_memrealtime {s(sTS,2)}'); e.wait_all_lg()
            e(f'v_writelane_b32 {v(vSTAMP)}, {s(sTS)}, 62')
        self.stamp('start')
        self.ct = [None] * 8
        for c in self.o.t0: self.touch(int(c))
        for n in range(6): self.ct[0] = self.dma0(0, n)
        for c in self.o.t1: self.touch(int(c))
        if self.o.q0 > 0: self.dma0q(0)
        for n in range(self.o.c1early): self.ct[1] = self.dma0(1, n)
        e(f's_and_b32 {s(sFOrd)}, {s(T[3])}, 0x33\ns_cbranch_scc1 L_noclr')
        e.raw(f'buffer_store_dword {v(vA0+4)}, {v(vL4)}, {s(sWS,4)}, {s(sFOwr)} offen sc1')
        e('L_noclr:')
        e(f's_and_b32 {s(sFOrd)}, {s(T[3])}, 0x23\ns_cmp_lg_u32 {s(sFOrd)}, 1\ns_cbranch_scc1 L_noclr2')
        e(f's_lshl3_add_u32 {s(sFOrd)}, {s(sR)}, {s(sG)}\ns_lshl_b32 {s(sFOrd)}, {s(sFOrd)}, 10\ns_add_u32 {s(sFOrd)}, {s(sFOrd)}, {ST}')
        for i in range(4): e(f'v_mov_b32 {v(vA0+8+i)}, -1')
        e.raw(f'buffer_store_dwordx4 {v(vA0+8,4)}, {v(vL16)}, {s(sWS,4)}, {s(sFOrd)} offen sc1')
        e('L_noclr2:')
        self.clear_slot(0, vM1, *self.e1_addr(0, vA0 + 6))
        for srd, sz in ((sWP, 0x4000), (sOUT, 0x200000), (sDBG, 256)):
            e(f's_mov_b32 {s(srd+2)}, {sz}\ns_mov_b32 {s(srd+3)}, 0x20000')
        e(f'''
        s_and_b32 {s(T[0])}, {s(sW)}, 1
        s_lshr_b32 {s(T[1])}, {s(sW)}, 1
        s_lshl_b32 {s(sRBO)}, {s(sR)}, 2
        s_lshr_b32 {s(T[4])}, {s(sG)}, 3
        s_lshl_b32 {s(T[4])}, {s(T[4])}, 1
        s_add_u32 {s(T[4])}, {s(T[4])}, {s(T[0])}
        s_add_u32 {s(sRBO)}, {s(sRBO)}, {s(T[4])}
        s_lshl_b32 {s(T[3])}, {s(T[4])}, 12
        s_add_u32 {s(T[3])}, {s(T[3])}, {3*SLOT}
        s_and_b32 {s(sJ)}, {s(sG)}, 7
        s_xor_b32 {s(sRESP)}, {s(sJ)}, {s(sROT)}
        s_lshl_b32 {s(sJ)}, {s(sJ)}, 1
        s_add_u32 {s(sJ)}, {s(sJ)}, {s(T[1])}
        s_lshl_b32 {s(sXO)}, {s(sRBO)}, 15
        s_lshl_b32 {s(T[2])}, {s(T[1])}, 14
        s_add_u32 {s(sXO)}, {s(sXO)}, {s(T[2])}
        s_and_b32 {s(T[2])}, {s(sG)}, 7
        s_lshl_b32 {s(T[2])}, {s(T[2])}, 7
        s_add_u32 {s(sXO)}, {s(sXO)}, {s(T[2])}
        s_and_b32 {s(T[4])}, {s(sG)}, 1
        s_and_b32 {s(T[5])}, {s(sR)}, 1
        s_lshl1_add_u32 {s(T[4])}, {s(T[4])}, {s(T[5])}
        s_and_b32 {s(T[4])}, {s(T[4])}, {self.o.rotw}
        s_lshl2_add_u32 {s(T[4])}, {s(T[4])}, {s(sW)}
        s_lshl_b32 {s(sRw)}, {s(T[4])}, 11
        s_lshr_b32 {s(T[4])}, {s(sG)}, 3
        s_lshl1_add_u32 {s(T[4])}, {s(T[4])}, {s(T[5])}
        s_and_b32 {s(T[4])}, {s(T[4])}, {self.o.roto}
        s_lshl2_add_u32 {s(T[4])}, {s(T[4])}, {s(sW)}
        s_lshl_b32 {s(sRo)}, {s(T[4])}, 11
        s_lshl_b32 {s(T[4])}, {s(T[1])}, 12
        s_add_u32 {s(sKVrdA)}, {s(sKVrdB)}, {s(T[4])}
        s_lshl_b32 {s(T[4])}, {s(T[1])}, 9
        s_add_u32 {s(sZrdA)}, {s(sZrdB)}, {s(T[4])}
        s_lshl_b32 {s(T[4])}, {s(sRB)}, 15
        s_add_u32 {s(sXrd)}, {s(T[4])}, {XB}
        s_lshl_b32 {s(T[5])}, {s(sG)}, 11
        s_add_u32 {s(sOwr)}, {s(T[4])}, {s(T[5])}
        s_add_u32 {s(sOwr)}, {s(sOwr)}, {OB}
        s_lshl_b32 {s(T[4])}, {s(sRBO)}, 15
        s_lshl_b32 {s(T[5])}, {s(T[2])}, 5
        s_add_u32 {s(sXwr)}, {s(T[4])}, {s(T[5])}
        s_lshl_b32 {s(T[5])}, {s(T[1])}, 8
        s_add_u32 {s(sXwr)}, {s(sXwr)}, {s(T[5])}
        s_add_u32 {s(sXwr)}, {s(sXwr)}, {XB}
        s_lshl_b32 {s(T[5])}, {s(T[1])}, 10
        s_add_u32 {s(sOrd)}, {s(T[4])}, {s(T[5])}
        s_add_u32 {s(sOrd)}, {s(sOrd)}, {OB}
        s_lshl_b32 {s(sSTrd)}, {s(sRB)}, 11
        s_add_u32 {s(sSTrd)}, {s(sSTrd)}, {ST}
        s_lshl_b32 {s(sSTwr)}, {s(sRBO)}, 11
        s_and_b32 {s(T[4])}, {s(sG)}, 6
        s_add_u32 {s(T[4])}, {s(T[4])}, {s(T[1])}
        s_lshl_b32 {s(T[5])}, {s(T[4])}, 8
        s_add_u32 {s(sSTwr)}, {s(sSTwr)}, {s(T[5])}
        s_and_b32 {s(T[5])}, {s(sG)}, 1
        s_lshl3_add_u32 {s(sSTwr)}, {s(T[5])}, {s(sSTwr)}
        s_add_u32 {s(sSTwr)}, {s(sSTwr)}, {ST}
        s_lshl_b32 {s(sFXrd)}, {s(sRB)}, 7
        s_lshl_b32 {s(T[5])}, {s(sG)}, 2
        s_add_u32 {s(sFOwr)}, {s(sFXrd)}, {s(T[5])}
        s_add_u32 {s(sFXrd)}, {s(sFXrd)}, {FLG_X}
        s_lshl_b32 {s(sFOrd)}, {s(sRBO)}, 7
        s_lshl_b32 {s(T[5])}, {s(sJ)}, 2
        s_add_u32 {s(sFXwr)}, {s(sFOrd)}, {s(T[5])}
        s_add_u32 {s(sFXwr)}, {s(sFXwr)}, {FLG_X}
        s_mov_b32 {s(sONES)}, 0x3f803f80
        s_mov_b32 {s(sPERM)}, 0x07060302
        s_mov_b32 {s(sHI)}, 0xffff0000
        s_mov_b32 {s(sL2E)}, 0x3fb8aa3b
        s_mov_b32 {s(sL2E+1)}, 0x3fb8aa3b
        s_mov_b32 {s(sEPS6)}, 0x358637bd
        s_mov_b32 {s(sEPS6+1)}, 0x358637bd
        s_getreg_b32 {s(sXCC)}, hwreg(HW_REG_XCC_ID, 0, 3)
        s_lshl_b32 {s(sXCC)}, {s(sXCC)}, 2
        s_mov_b32 {s(sBUD)}, 100000
        ''')
        e(f'''
        v_add_lshl_u32 {v(vSTst)}, {v(vFl16)}, {v(vTM+1)}, 2
        v_lshrrev_b32 {v(t0)}, 3, {v(vLane)}
        v_lshlrev_b32 {v(t1)}, 1, {v(vTM+4)}
        v_xor_b32 {v(t1)}, {v(t1)}, {v(t2)}
        v_lshlrev_b32 {v(t1)}, 4, {v(t1)}
        v_lshl_add_u32 {v(vWOdma)}, {v(t0)}, 10, {v(t1)}
        v_add_u32 {v(vWOdma)}, {s(T[2])}, {v(vWOdma)}
        ''')
        e(f'''
        v_bfe_u32 {v(t0)}, {v(vLane)}, 2, 2
        v_lshl_add_u32 {v(t0)}, {v(vTM+1)}, 4, {v(t0)}
        v_lshlrev_b32 {v(t0)}, 6, {v(t0)}
        v_and_b32 {v(t1)}, 1, {v(vTM+4)}
        v_lshl_add_u32 {v(t0)}, {v(t1)}, 5, {v(t0)}
        v_and_b32 {v(t1)}, 1, {v(vLane)}
        v_lshl_add_u32 {v(t0)}, {v(t1)}, 4, {v(t0)}
        v_bfe_u32 {v(t1)}, {v(vLane)}, 1, 1
        v_lshl_add_u32 {v(t0)}, {v(t1)}, 3, {v(t0)}
        v_bfe_u32 {v(t1)}, {v(vLane)}, 1, 3
        v_lshlrev_b32 {v(t2)}, 1, {v(vTM+1)}
        v_xor_b32 {v(t1)}, {v(t1)}, {v(t2)}
        v_lshlrev_b32 {v(t1)}, 4, {v(t1)}
        v_lshl_add_u32 {v(t1)}, {v(vTM)}, 7, {v(t1)}
        s_lshl_b32 {s(T[4])}, {s(T[1])}, 11
        s_add_u32 {s(T[4])}, {s(T[4])}, {s(T[3])}
        v_bfe_u32 {v(t2)}, {v(vLane)}, 1, 3
        v_xor_b32 {v(t2)}, {v(t2)}, {v(vTM+1)}
        v_lshl_add_u32 {v(t2)}, {v(t2)}, 4, {s(T[4])}
        v_lshl_add_u32 {v(t2)}, {v(vFl16)}, 5, {v(t2)}
        v_and_b32 {v(vA0+5)}, 1, {v(vTM+4)}
        v_lshl_add_u32 {v(vA0+5)}, {v(vA0+5)}, 3, {v(t2)}
        v_add_u32 {v(t1)}, {s(sX0l)}, {v(t1)}
        s_lshl_b32 {s(T[4])}, {s(sW)}, 11
        v_add_u32 {v(vSVw)}, {s(T[4])}, {v(t0)}
        v_mul_u32_u24 {v(t2)}, 768, {v(vTM+1)}
        v_sub_u32 {v(vSVw)}, {v(vSVw)}, {v(t2)}
        v_add_u32 {v(vPKa)}, {s(T[4])}, {v(vL16)}
        s_lshl2_add_u32 {s(T[5])}, {s(sW)}, {L_CS}
        v_lshl_add_u32 {v(vCSa)}, {v(vTM)}, 4, {s(T[5])}
        ''')
        for q in range(4):
            e(f'''
            s_xor_b32 {s(T[4])}, {s(sW)}, {q}
            s_lshr_b32 {s(T[5])}, {s(T[4])}, 1
            s_lshl_b32 {s(T[5])}, {s(T[5])}, 2
            s_and_b32 {s(T[4])}, {s(T[4])}, 1
            s_add_u32 {s(T[4])}, {s(T[4])}, {s(T[5])}
            s_lshl_b32 {s(T[5])}, {s(T[4])}, 9
            v_add_u32 {v(vWtr+q)}, {s(T[5])}, {v(t0)}
            s_lshl_b32 {s(T[5])}, {s(T[4])}, 4
            v_xor_b32 {v(vWPH+4+q)}, {s(T[5])}, {v(t1)}
            ''')
        if self.o.padp == -3: self.warm()
        e(f'''
        s_lshl_b32 {s(T[4])}, {s(sW)}, 9
        s_add_u32 {s(T[4])}, {s(T[4])}, {L_PK}
        v_lshl_add_u32 {v(t0)}, {v(vTM)}, 4, {s(T[4])}
        v_mul_u32_u24 {v(t1)}, {PL}, {v(vTM+1)}
        v_add_u32 {v(vPKwA)}, {v(t0)}, {v(t1)}
        v_lshl_add_u32 {v(vPKwB)}, {v(t1)}, 2, {v(t0)}
        v_bfe_u32 {v(t0)}, {v(vLane)}, 1, 1
        v_mul_u32_u24 {v(t0)}, {PL}, {v(t0)}
        v_lshrrev_b32 {v(t1)}, 2, {v(vLane)}
        v_lshl_add_u32 {v(t0)}, {v(t1)}, 4, {v(t0)}
        v_and_b32 {v(t1)}, 1, {v(vLane)}
        v_lshl_add_u32 {v(t0)}, {v(t1)}, 3, {v(t0)}
        s_mul_i32 {s(T[4])}, {s(sW)}, {2*PL}
        s_add_u32 {s(T[4])}, {s(T[4])}, {L_PK}
        v_add_u32 {v(vPKrB)}, {s(T[4])}, {v(t0)}
        s_mul_i32 {s(T[4])}, {s(T[0])}, {2*PL}
        s_add_u32 {s(T[4])}, {s(T[4])}, {L_PK}
        v_add_u32 {v(vPKrA)}, {s(T[4])}, {v(t0)}
        ''')
        e(f'''
        s_mul_i32 {s(T[4])}, {s(sW)}, 544
        s_add_u32 {s(T[4])}, {s(T[4])}, {L_KV}
        v_lshl_add_u32 {v(t0)}, {v(vFl16)}, 3, {s(T[4])}
        v_lshl_add_u32 {v(vKVw)}, {v(vTM+4)}, 3, {v(t0)}
        v_lshrrev_b32 {v(t0)}, 1, {v(vFl16)}
        v_add_u32 {v(vZw)}, {s(T[4])}, {v(t0)}
        v_min_u32 {v(t0)}, 16, {v(vTM)}
        v_lshlrev_b32 {v(t0)}, 5, {v(t0)}
        v_add_u32 {v(t0)}, {L_KV}, {v(t0)}
        v_lshl_add_u32 {v(vKVrA)}, {v(vTM+1)}, 4, {v(t0)}
        v_mul_u32_u24 {v(t1)}, 1088, {v(vTM+1)}
        v_add_u32 {v(vKVrB)}, {v(t0)}, {v(t1)}
        ''')
        e(f'''
        v_bfe_u32 {v(t0)}, {v(vLane)}, 2, 3
        v_lshlrev_b32 {v(t0)}, 7, {v(t0)}
        v_lshl_add_u32 {v(t0)}, {v(vTM+5)}, 3, {v(t0)}
        v_bfe_u32 {v(t1)}, {v(vLane)}, 3, 2
        v_lshl_add_u32 {v(t0)}, {v(t1)}, 5, {v(t0)}
        v_lshl_add_u32 {v(vWO)}, {v(vTM+1)}, 11, {v(t0)}
        v_lshlrev_b32 {v(t1)}, 5, {v(vTM+1)}
        v_xor_b32 {v(t0)}, {v(t0)}, {v(t1)}
        s_lshl_b32 {s(T[5])}, {s(sW)}, 11
        v_add_u32 {v(vSVo)}, {s(T[5])}, {v(t0)}
        ''')
        e(f'''
        v_and_b32 {v(t0)}, 1, {v(vLane)}
        v_lshlrev_b32 {v(t0)}, 4, {v(t0)}
        v_mov_b32 {v(t1)}, 0x3f80
        v_lshlrev_b32 {v(t0)}, {v(t0)}, {v(t1)}
        v_lshrrev_b32 {v(t1)}, 1, {v(vLane)}
        v_xor_b32 {v(t1)}, {v(t1)}, {v(vLane)}
        v_and_b32 {v(t1)}, 8, {v(t1)}
        v_bfe_u32 {v(t2)}, {v(vLane)}, 1, 2
        v_or_b32 {v(t1)}, {v(t1)}, {v(t2)}
        ''')
        for d in range(4):
            e(f'v_cmp_eq_u32 vcc, {d}, {v(t1)}\nv_cndmask_b32 {v(vSEL+d)}, 0, {v(t0)}, vcc')
        e(f'v_add_u32 {v(vPK2)}, {2*SLOT}, {v(vPKa)}')
        e(f'v_mov_b32 {v(vTM+4)}, {v(vA0+5)}')
        if self.o.padp == -2: self.warm()
        for n in range(self.o.c1early, 6): self.ct[1] = self.dma0(1, n, again=(n == self.o.c1early))
        if self.o.q0 > 1: self.dma0q(1)
        if self.o.dummy < 0:
            for i in range(5): self.dummy(i)
        for c in self.o.t2: self.touch(int(c))
        if self.o.padp == -1: self.warm()
        e('s_branch L_main\n.p2align 12\nL_main:')
        self.stamp('setup')

    def big(self, acc, b, k):
        if not self.o.fake16:
            return self.e(f'v_mfma_f32_32x32x16_bf16 {v(acc,16)}, {v(b,4)}, {v(vXF+4*k,4)}, {v(acc,16) if k else 0}')
        c = acc + 8 * (k & 1)
        self.e(f'v_mfma_f32_16x16x32_bf16 {v(c,4)}, {v(b,4)}, {v(vXF+4*k,4)}, {v(c,4) if k > 1 else 0}')
        self.pend = f'v_mfma_f32_16x16x32_bf16 {v(c+4,4)}, {v(b,4)}, {v(vXF+4*max(k-1,0),4)}, {v(c+4,4) if k > 1 else 0}'
        self.pend_at = len(self.e.ins) + 2
        self.pends.append((self.pend_at, self.pend))
    def warm(self):
        if not self.o.pads: return
        e = self.e
        e(f's_mov_b64 exec, 0')
        for w in range(3): e(f's_cmp_eq_u32 {s(sW)}, {w}\ns_cbranch_scc1 L_pad{w}')
        e('s_branch L_pad3\nL_warm_done:\ns_mov_b64 exec, -1\ns_nop 3')
    def par_sel(self, dst):
        e = self.e
        e(f's_mov_b32 vcc_lo, 0xf0f00f0f\ns_mov_b32 vcc_hi, 0xf0f00f0f\nv_mov_b32 {v(dst+1)}, {s(sONES)}')
        e(f'v_cndmask_b32 {v(dst)}, 0, {v(dst+1)}, vcc')
        for i in (1, 2, 3): e(f'v_mov_b32 {v(dst+i)}, {v(dst)}')
    def rowsum(self, acc, sel, frag, first):
        self.e(f'v_mfma_f32_16x16x32_bf16 {acc}, {v(sel,4)}, {v(frag,4)}, {0 if first else acc}')

    def kv_gemm0(self):
        e = self.e
        sel = vCS + 8
        self.par_sel(sel)
        aS, aK, aV = a(240, 4), a(244, 4), a(248, 4)
        wt = [None] * 32; xt = [None] * 32
        dl = []
        def dma(n):
            for _ in range(n):
                if dl:
                    P, i = dl.pop(0)
                    if P < 8: self.ct[P] = self.dma0(P, i)
                    elif P == 8: self.bgt['LQA'] = self.dma0q(i); self.bgn['LQA'] = i + 1
                    elif P == 9: self.touch(i)
                    elif P == 11: self.dummy(i)
                    elif P == 12: self.code_touch('a255')
                    elif P == 10: self.clr1 = self.clear_slot(1, vM1, vE1st, vZst)
        cK, cV = vCS + 2, vCS + 4
        sb = vWPH
        q0, q1 = vTM, vTM + 1
        dq = []
        sops = [f'v_accvgpr_read_b32 {v(sb)}, a240', f'v_add_f32 {v(sb+1)}, {v(q0)}, {v(q1)}', f'v_mov_b32 {v(sb+3)}, {v(sb+1)}',
                f'v_permlane32_swap_b32 {v(sb+1)}, {v(sb+3)}', f'v_add_f32 {v(sb+1)}, {v(sb+1)}, {v(sb+3)}'] + self.stats_tail(sb)
        def pop(n):
            for _ in range(n):
                if k >= 28 and sops: e(sops.pop(0))
        nq = self.o.q0
        touches = {int(x[0]): [int(c) for c in x[1:]] for x in self.o.touch.split(',') if x}
        for k in range(-2, 32):
            b = vWB + (k % 3) * 8
            nb = vWB + ((k + 2) % 3) * 8
            fr = [k + 1] if -1 <= k < 27 else ([28, 29, 30, 31] if k == 27 else [])
            bound = (k + 2) % 4 == 0 and k + 2 < 32
            if k >= 0:
                e.wait(lg=max(wt[k], xt[k]))
                if k % 4 == 0:
                    self.rowsum(aK, sel, b, k == 0); self.rowsum(aV, sel, b + 4, k == 0)
                self.big(vA0, b, k)
            if bound:
                P = (k + 2) >> 2
                dma(99)
                if P == self.o.padp: self.warm()
                e.wait(vm=self.ct[P])
                e('s_barrier')
                if P == 0 or self.o.fine: self.stamp(f'chunk{P}')
                for q in range(4):
                    xt[4*P+q] = e(f'ds_read_b128 {v(vXF+16*P+4*q,4)}, {v(vWPH+4+q)} offset:{(P%3)*16384}')
                if P + 2 < 8: dl += [(P + 2, i) for i in range(6)]
                if P == self.o.clrp: dl += [(10, 0)]
                for _ in range(int(self.o.qs[P])):
                    dl += [(8, nq)]; nq += 1
                if P == 5 and self.o.ctouch & 4: dl += [(12, 0)]
                dl += [(9, i) for i in touches.get(P, [])]
                if P == 6 and self.o.tq: dl[1:1] = [(9, int(c)) for c in self.o.tq]
                if self.o.dummy == 7 and P == 7: dl += [(11, i) for i in range(4)]
                elif self.o.dummy > 0 and 0 <= P - self.o.dummy < 3: dl += [(11, i) for i in ((0, 1), (2, 3), (4,))[P - self.o.dummy]]
            else:
                dma(1)
            if k + 2 < 32: self.tr_w(nb, k + 2, 0)
            if k == 28:
                dma(99)
                cw = self.cs_write(['a244', 'a248'], [1, 2])
            pop(3 if k == 28 else 5)
            for f in fr:
                e.wait(lg=xt[f])
                if self.o.nomini & 1 and f: continue
                self.rowsum(aS, sel, vXF + 4*f, f == 0)
            if k == 31:
                assert not sops
                e(f'v_mfma_f32_32x32x8_bf16 {v(vA1,16)}, {v(cV,2)}, {v(vMF,2)}, {v(vA1,16)}')
            if k >= 0:
                self.big(vA1, b + 4, k)
            if k + 2 < 32: wt[k + 2] = self.tr_w(nb + 4, k + 2, SLOT)
            if bound:
                e(f's_cmp_lg_u32 {s(sRESP)}, {P}\ns_cbranch_scc1 L_nores{P}')
                for t in range(4):
                    if t: e(f'v_xor_b32 {v(vTM+4)}, {32*(t ^ (t-1))}, {v(vTM+4)}')
                    e.raw(f'ds_read_b64 {v(vRES+2*t,2)}, {v(vTM+4)} offset:{(P%3)*16384}')
                e(f'L_nores{P}:')
            dma(1)
            if k % 4 == 3 and k < 28 or k == -1:
                e.wait(lg=xt[k + 4])
                for f in range(k + 1, k + 5):
                    for i in range(4):
                        e(f'v_dot2_f32_bf16 {v((q0, q1)[i&1])}, {v(vXF+4*f+i)}, {v(vXF+4*f+i)}, {v((q0, q1)[i&1]) if (f or i > 1) else 0}')
            pop(5)
            if k == 4 * self.o.atp - 1:
                e(f'''
                s_cmp_lg_u32 {s(sW)}, 0
                s_cbranch_scc1 L_noat
                s_lshr_b32 {s(sT[5])}, {s(sG)}, 3
                s_lshl1_add_u32 {s(sT[5])}, {s(sR)}, {s(sT[5])}
                s_lshl_b32 {s(sT[5])}, {s(sT[5])}, 2
                s_lshl_b32 {s(sAT)}, 1, {s(sXCC)}
                s_atomic_add {s(sAT)}, {s(sDBG,2)}, {s(sT[5])}
                L_noat:
                ''')
            if k == 28:
                e.wait(lg=cw); e('s_barrier')
                self.dead.add((9, 'x'))
                if self.o.fine: self.stamp('g28')
                r1 = self.cs_read(1, vWPH + 4)
                r2 = self.cs_read(2, vCS + 8)
            self.k0 = k
            if k >= 2: self.bg(f'kv{k}')
            if k == 29:
                assert not sops
                e.wait(lg=r2)
                sops += self.cs_pack_ops(vWPH + 4, cK) + self.cs_pack_ops(vCS + 8, cV)
            if k == 30: e(f'v_mfma_f32_32x32x8_bf16 {v(vA0,16)}, {v(cK,2)}, {v(vMF,2)}, {v(vA0,16)}'); pop(5)
        assert not sops
        self.stamp('L0.kvgemm')

    def cs_write(self, acc, blk):
        tag = None
        for ac, b in zip(acc, blk):
            tag = self.e(f'ds_write_b32 {v(vCSa)}, {ac} offset:{b*512}')
        return tag
    def cs_read(self, blk, dst):
        self.e(f'v_and_b32 {v(dst)}, -16, {v(vCSa)}')
        return self.e(f'ds_read_b128 {v(dst,4)}, {v(dst)} offset:{blk*512}')
    def cs_pack_ops(self, src, out):
        return [f'v_add_f32 {v(src)}, {v(src)}, {v(src+2)}', f'v_add_f32 {v(src+1)}, {v(src+1)}, {v(src+3)}',
                f'v_add_f32 {v(src)}, {v(src)}, {v(src+1)}',
                f'v_and_b32 {v(src+1)}, {s(sHI)}, {v(src)}',
                f'v_sub_f32 {v(src+1)}, {v(src)}, {v(src+1)}',
                f'v_perm_b32 {v(out)}, {v(src+1)}, {v(src)}, {s(sPERM)}',
                f'v_and_b32 {v(src+2)}, {s(sHI)}, {v(src+1)}',
                f'v_sub_f32 {v(src+2)}, {v(src+1)}, {v(src+2)}',
                f'v_lshrrev_b32 {v(out+1)}, 16, {v(src+2)}']
    def cs_pack(self, src, out):
        for op in self.cs_pack_ops(src, out): self.e(op)

    def stats_ops(self, chk, par, init):
        b = vXF + 120; t = vTM
        p1 = []
        for i in range(2):
            p1 += [self.chk(chk, b+4*i, b+4*i+1, par, init and i == 0), self.chk(chk, b+4*i+2, b+4*i+3, par, False)]
            p1 += [f'v_add_f32 {v(b+4*i+j)}, {v(b+4*i+j)}, {v(b+4*i+2+j)}' for j in range(2)]
        p1 += [f'v_add_f32 {v(t+j)}, {v(b+j)}, {v(b+4+j)}' for j in range(2)]
        p2 = [f'v_mov_b32 {v(t+2)}, {v(t)}', f'v_mov_b32 {v(t+3)}, {v(t+1)}',
              f'v_permlane32_swap_b32 {v(t)}, {v(t+2)}', f'v_permlane32_swap_b32 {v(t+1)}, {v(t+3)}',
              f'v_add_f32 {v(t)}, {v(t)}, {v(t+2)}', f'v_add_f32 {v(t+1)}, {v(t+1)}, {v(t+3)}']
        return p1, p2 + self.stats_tail(t)
    def stats_tail(self, b):
        ops = [
                f'v_mul_f32 {v(b)}, 0xbb000000, {v(b)}',
                f'v_mul_f32 {v(b+1)}, 0x3b000000, {v(b+1)}',
                f'v_fma_f32 {v(b+1)}, -{v(b)}, {v(b)}, {v(b+1)}',
                f'v_max_f32 {v(b+1)}, 0, {v(b+1)}',
                f'v_add_f32 {v(b+1)}, 0x3727c5ac, {v(b+1)}',
                f'v_rsq_f32 {v(vRS)}, {v(b+1)}',
                f'v_and_b32 {v(b+2)}, {s(sHI)}, {v(b)}',
                f'v_sub_f32 {v(b+2)}, {v(b)}, {v(b+2)}',
                f's_mov_b64 vcc, 0xffffffff',
                f'v_mul_f32 {v(vRS+1)}, {s(sL2E)}, {v(vRS)}',
                f'v_cndmask_b32 {v(b)}, {v(b+2)}, {v(b)}, vcc',
                f'v_perm_b32 {v(vMF)}, {v(b)}, {v(b)}, {s(sPERM)}',
                f'v_lshrrev_b32 {v(vMF+1)}, 16, {v(b)}']
        return ops

    def tr_w(self, dst, ks, extra):
        e = self.e
        if self.l >= 2: return e(f'ds_read_b128 {v(dst,4)}, {v(vWtr)} offset:{ks*1024 + extra}')
        if self.l == 0: ad, off = vWtr + (ks & 3), (ks >> 2) * 4096 + extra
        else: ad, off = vWtr, (ks >> 1) * 2048 + (ks & 1) * 512 + extra
        e(f'ds_read_b64_tr_b16 {v(dst,2)}, {v(ad)} offset:{off}')
        return e(f'ds_read_b64_tr_b16 {v(dst+2,2)}, {v(ad)} offset:{off + (256 if self.l == 0 else 1024)}')

    def kv_gemm(self, l):
        e = self.e; typ = l & 1
        chk = vTM + 4; par = (l - 1) & 1
        cK, cV = vCS + typ*6 + 2, vCS + typ*6 + 4
        xt = [None] * 32; wt = [None] * 32
        def xload(e, k):
            if k % 4 == 0: e(f's_xor_b32 {s(sT[0])}, {s(sT[2])}, {k*1024}')
            xt[k] = e(f'buffer_load_dwordx4 {v(vXF+4*k,4)}, {v(vL16)}, {s(sWS,4)}, {s(sT[0])} offen offset:{(k&3)*1024} sc1{self.o.lastld if l == 3 else str()}')
        PRE = self.o.xpre; SP = self.o.spx if l > 1 else 0
        def init():
            for k in range(2):
                self.tr_w(vWB + k*8, k, 0)
                wt[k] = self.tr_w(vWB + k*8 + 4, k, SLOT)
        def shadow():
            self.l = l - 1
            self.bg('yp')
            self.need('KV', l)
            if l == 1: e.wait(lg=max(self.bgt['WKB'], self.bgt['WVB']))
            e('s_barrier')
            self.free('ab')
            self.bg('y1')
            self.l = l
            if l == 1:
                r1 = self.cs_read(1, vWB + 16); r2 = self.cs_read(2, vWB + 20)
            init()
            if l == 1:
                e.wait(lg=r2); self.cs_pack(vWB + 16, cK); self.cs_pack(vWB + 20, cV)
            self.bg('kvsh')
        self.hop(f'x{l}', sFXrd, l + 1, vTM + 5, xload, SP, shadow, init)
        self.stamp(f'L{l-1}.poll3')
        for k in range(SP, PRE): xload(e, k)
        self.bg('kvpre')
        stt = None
        p1, p2 = self.stats_ops(chk, par, l == 1)
        SL = self.o.stat_at; S0 = SL + 2 + PRE; SE = 30 - PRE
        assert S0 < SE
        def pop(n):
            for _ in range(n):
                if p1: e(p1.pop(0))
                elif p2: e(p2.pop(0))
        corr = False
        for k in range(32):
            b = vWB + (k % 3) * 8
            nb = vWB + ((k + 2) % 3) * 8
            e.wait(vm=xt[k], lg=wt[k])
            if k == 0: self.stamp(f'L{l}.x0')
            self.big(vA0, b, k)
            if k == SE:
                while p1: pop(1)
            if k + PRE < 32: xload(e, k + PRE)
            if k + 2 < 32: self.tr_w(nb, k + 2, 0)
            if k >= S0:
                if k == S0: e.wait(vm=stt)
                pop(1 if l == 1 else 2)
            self.bg(f'kv{k}')
            self.big(vA1, b + 4, k)
            if SL <= k < SL + 2:
                stt = e(f'buffer_load_dwordx4 {v(vXF+120+4*(k-SL),4)}, {v(vL16)}, {s(sWS,4)}, {s(sSTrd)} offen offset:{(k-SL)*1024} sc1')
            if k + 2 < 32: wt[k + 2] = self.tr_w(nb + 4, k + 2, SLOT)
            if l > 1 and k % 2 == 1:
                e(self.chk(chk, vXF+4*k-4, vXF+4*k, par, k == 1))
                if k <= SP: self.chk_end(chk, par, f'x{l}', vTM + 5)
            self.bg(f'kv{k}b')
            if not corr and not p1 and not p2:
                corr = True
                e(f'v_mfma_f32_32x32x8_bf16 {v(vA0,16)}, {v(cK,2)}, {v(vMF,2)}, {v(vA0,16)}')
                e(f'v_mfma_f32_32x32x8_bf16 {v(vA1,16)}, {v(cV,2)}, {v(vMF,2)}, {v(vA1,16)}')
            if k >= S0: pop(2)
        assert corr
        self.chk_end(chk, par, f'x{l}'); self.in_redo = False
        self.bg('kvend')
        self.stamp(f'L{l}.kvgemm')

    def scale_pack(self, acc, out, mid=None):
        e = self.e
        if mid:
            for i in range(16):
                e(f'v_mul_f32 {v(acc+i)}, {v(vRS)}, {v(acc+i)}')
                if i == 3: mid()
        else:
            for i in range(8):
                e(f'v_pk_mul_f32 {v(acc+2*i,2)}, {v(acc+2*i,2)}, {v(vRS,2)} op_sel_hi:[1,0]')
        for i in range(8):
            e(f'v_cvt_pk_bf16_f32 {v(out+i)}, {v(acc+2*i)}, {v(acc+2*i+1)}')
    def phi_a(self, acc, tmp, out, tag, after=None):
        e = self.e
        for hh in range(2):
            r = range(4*hh, 4*hh+4)
            for i in r: e(f'v_pk_mul_f32 {v(tmp+2*i,2)}, {v(acc+2*i,2)}, {v(vRS,2)} op_sel:[0,1] op_sel_hi:[1,1]')
            for i in r:
                e(f'v_exp_f32_e64 {v(tmp+2*i)}, {v(tmp+2*i)} clamp')
                e(f'v_exp_f32_e64 {v(tmp+2*i+1)}, {v(tmp+2*i+1)} clamp')
            self.bg(f'{tag}{2*hh}')
            for i in r: e(f'v_pk_fma_f32 {v(acc+2*i,2)}, {v(acc+2*i,2)}, {v(vRS,2)}, 1.0 op_sel_hi:[1,0,0]')
            for i in r:
                e(f'v_max_f32 {v(acc+2*i)}, {v(acc+2*i)}, {v(tmp+2*i)}')
                e(f'v_max_f32 {v(acc+2*i+1)}, {v(acc+2*i+1)}, {v(tmp+2*i+1)}')
            for i in r: e(f'v_pk_add_f32 {v(acc+2*i,2)}, {v(acc+2*i,2)}, {s(sEPS6,2)}')
            for i in r: e(f'v_cvt_pk_bf16_f32 {v(out+i)}, {v(acc+2*i)}, {v(acc+2*i+1)}')
            if after: after(hh)
            self.bg(f'{tag}{2*hh+1}')
    def softmax16(self, p, tm, out, tag, mid=None, wr=(), wlast=None):
        wr = list(wr)
        e = self.e
        e(f'v_max3_f32 {v(tm)}, {v(p)}, {v(p+1)}, {v(p+2)}')
        e(f'v_max3_f32 {v(tm+1)}, {v(p+3)}, {v(p+4)}, {v(p+5)}')
        if mid: mid()
        e(f'v_max3_f32 {v(tm)}, {v(tm)}, {v(p+6)}, {v(p+7)}')
        e(f'v_max3_f32 {v(tm+1)}, {v(tm+1)}, {v(p+8)}, {v(p+9)}')
        e(f'v_max3_f32 {v(tm)}, {v(tm)}, {v(p+10)}, {v(p+11)}')
        e(f'v_max3_f32 {v(tm+1)}, {v(tm+1)}, {v(p+12)}, {v(p+13)}')
        e(f'v_max3_f32 {v(tm)}, {v(tm)}, {v(p+14)}, {v(p+15)}')
        e(f'v_max_f32 {v(tm)}, {v(tm)}, {v(tm+1)}')
        e(f'v_mul_f32 {v(tm)}, {v(vRS+1)}, {v(tm)}')
        for i in range(8):
            e(f'v_pk_fma_f32 {v(p+2*i,2)}, {v(p+2*i,2)}, {v(vRS,2)}, {v(tm,2)} op_sel:[0,1,0] op_sel_hi:[1,1,0] neg_lo:[0,0,1] neg_hi:[0,0,1]')
        self.bg(tag + 'a')
        for i in range(16):
            e(f'v_exp_f32 {v(p+i)}, {v(p+i)}')
            if i in (3, 11) and wr: e(wr.pop(0))
            if i == 7: self.bg(tag + 'b')
        self.bg(tag + 'c')
        for i in range(4): e(f'v_pk_add_f32 {v(tm+2*i,2)}, {v(p+4*i,2)}, {v(p+4*i+2,2)}')
        e(f'v_pk_add_f32 {v(tm,2)}, {v(tm,2)}, {v(tm+2,2)}')
        e(f'v_pk_add_f32 {v(tm+4,2)}, {v(tm+4,2)}, {v(tm+6,2)}')
        e(f'v_pk_add_f32 {v(tm,2)}, {v(tm,2)}, {v(tm+4,2)}')
        e(f'v_add_f32 {v(tm)}, {v(tm)}, {v(tm+1)}')
        e(f'v_rcp_f32 {v(tm)}, {v(tm)}')
        self.bg(tag + 'd')
        if wlast:
            for h in range(2):
                for i in range(4*h, 4*h+4): e(f'v_pk_mul_f32 {v(p+2*i,2)}, {v(p+2*i,2)}, {v(tm,2)} op_sel_hi:[1,0]')
                for i in range(4*h, 4*h+4): e(f'v_cvt_pk_bf16_f32 {v(out+i)}, {v(p+2*i)}, {v(p+2*i+1)}')
                e(wlast[h])
            return
        for i in range(8): e(f'v_pk_mul_f32 {v(p+2*i,2)}, {v(p+2*i,2)}, {v(tm,2)} op_sel_hi:[1,0]')
        for i in range(8): e(f'v_cvt_pk_bf16_f32 {v(out+i)}, {v(p+2*i)}, {v(p+2*i+1)}')

    def kv_epilogue(self, l):
        e = self.e; typ = l & 1
        self.dump(f'L{l}.kv', [v(vA0+i) for i in range(32)] + [v(vRS)])
        self.set_wtr(SLOTS[l]['Q'], l)
        e(f's_add_u32 {s(sT[0])}, {s(sKVwrB)}, {l*0x80000}\ns_add_u32 {s(sT[1])}, {s(sZwrB)}, {l*0x10000}')
        if typ == 0:
            def wr(hh): e(f'ds_write_b128 {v(vPKwA)}, {v(vTM+4*hh,4)} offset:{2*hh*PL}')
            self.phi_a(vA0, vWB, vTM, 'ek', wr)
            for h in range(2):
                for i in range(4*h, 4*h+4): e(f'v_pk_mul_f32 {v(vA1+2*i,2)}, {v(vA1+2*i,2)}, {v(vRS,2)} op_sel_hi:[1,0]')
                for i in range(4*h, 4*h+4): e(f'v_cvt_pk_bf16_f32 {v(vA1+i)}, {v(vA1+2*i)}, {v(vA1+2*i+1)}')
                if self.o.defw: e(f'ds_write_b128 {v(vPKwA)}, {v(vA1+4*h,4)} offset:{(8+2*h)*PL}')
            if not self.o.defw:
                for h in range(2): e(f'ds_write_b128 {v(vPKwA)}, {v(vA1+4*h,4)} offset:{(8+2*h)*PL}')
        else:
            for i in range(8):
                e(f'v_cvt_pk_bf16_f32 {v(vTM+i)}, {v(vA0+2*i)}, {v(vA0+2*i+1)}')
                if i == 5: e(f'v_mfma_f32_32x32x16_bf16 {v(vWB,16)}, {v(vWPH,4)}, {v(vTM,4)}, 0')
            self.bg('es0')
            self.scale_pack(vA1, vA1, lambda: e(f'v_mfma_f32_32x32x16_bf16 {v(vA0,16)}, {v(vWPH+4,4)}, {v(vTM+4,4)}, 0'))
            wv = [f'ds_write_b128 {v(vPKwA)}, {v(vA1,4)} offset:{8*PL}', f'ds_write_b128 {v(vPKwA)}, {v(vA1+4,4)} offset:{10*PL}']
            wp = lambda hh, p: [f'ds_write_b128 {v(vPKwB)}, {v(p,4)} offset:{(2*hh)*PL}', f'ds_write_b128 {v(vPKwB)}, {v(p+4,4)} offset:{(2*hh+1)*PL}']
            if self.o.defw:
                self.bg('es1')
                self.softmax16(vWB, vTM, vWB, 'ek0', wr=wv)
                self.softmax16(vA0, vTM, vA0, 'ek1', wr=wp(0, vWB), wlast=wp(1, vA0))
            else:
                for x in wv: e(x)
                self.bg('es1')
                for hh, p in ((0, vWB), (1, vA0)):
                    self.softmax16(p, vTM, p, f'ek{hh}')
                    for x in wp(hh, p): e(x)
        ones = vTM + 4
        for i in range(4): e(f'v_mov_b32 {v(ones+i)}, {s(sONES)}')
        if l == 0: e.wait(vm=self.clr1)
        late = self.o.lateq[l]
        if not late: self.need('Q')
        e.wait_all_lg()
        e('s_barrier')
        self.free('KV')
        self.stamp(f'L{l}.B1')
        pr = vPKrA if typ == 0 else vPKrB
        tags = []
        for st in range(4):
            e(f'ds_read_b64_tr_b16 {v(vA0+4*st,2)}, {v(pr)} offset:{st*512}')
            e(f'ds_read_b64_tr_b16 {v(vA0+4*st+2,2)}, {v(pr)} offset:{st*512+256}')
            e(f'ds_read_b64_tr_b16 {v(vA1+4*st,2)}, {v(vPKrA)} offset:{8*PL+st*512}')
            tags.append(e(f'ds_read_b64_tr_b16 {v(vA1+4*st+2,2)}, {v(vPKrA)} offset:{8*PL+st*512+256}'))
        ak, az = self.e1_addr(l, vTM + 2)
        self.bg('b1')
        ckv, cz = vWB + 16, vWB + 20
        self.qwt = [None] * 32
        for st in range(4):
            e.wait(lg=tags[st])
            e(f'v_mfma_f32_16x16x32_bf16 {v(ckv,4)}, {v(vA0+4*st,4)}, {v(vA1+4*st,4)}, {v(ckv,4) if st else 0}')
            e(f'v_mfma_f32_16x16x32_bf16 {v(cz,4)}, {v(ones,4)}, {v(vA0+4*st,4)}, {v(cz,4) if st else 0}')
            if not late: self.qwt[st] = self.tr_w(vWB + 4*st, st, 0)
        def tail():
            e(f'v_cvt_pk_bf16_f32 {v(vTM)}, {v(ckv)}, {v(ckv+1)}\nv_cvt_pk_bf16_f32 {v(vTM+1)}, {v(ckv+2)}, {v(ckv+3)}')
            e(f'v_min_u32 {v(vTM)}, -2, {v(vTM)}\nv_min_u32 {v(vTM+1)}, -2, {v(vTM+1)}')
            e(f'buffer_store_dwordx2 {v(vTM,2)}, {v(ak)}, {s(sWS,4)}, {s(sT[0])} offen sc1')
            e(f'v_min_u32 {v(vTM+4)}, -2, {v(cz)}')
            e(f'buffer_store_dword {v(vTM+4)}, {v(az)}, {s(sWS,4)}, {s(sT[1])} offen sc1')
            self.stamp(f'L{l}.pub1')
            if late:
                self.need('Q'); e('s_barrier')
                for st in range(4): self.qwt[st] = self.tr_w(vWB + 4*st, st, 0)
        self.pub_tail = tail
        self.clr_next = (lambda: self.clear_slot(l + 2, vTM + 4, ak, az)) if l < 2 else None

    def e1_ops(self, e, l, tags, each=False):
        typ = l & 1
        nk, nz = (4, 2) if typ == 0 else (8, 4)
        sk, sz = (sKVrdA, sZrdA) if typ == 0 else (sKVrdB, sZrdB)
        ops = []
        def zl(t):
            if t == 0 or each: e(f's_add_u32 {s(sT[1])}, {s(sz)}, {l*0x10000}')
            tags['z'] = e(f'buffer_load_dword {v(vXF+32+t)}, {v(vL4)}, {s(sWS,4)}, {s(sT[1])} offen offset:{t*256} sc1')
        def kl(p):
            if p % 4 == 0 or each: e(f's_add_u32 {s(sT[0])}, {s(sk)}, {l*0x80000 + (p & ~3)*1024}')
            tags[p] = e(f'buffer_load_dwordx4 {v(vXF+4*p,4)}, {v(vL16)}, {s(sWS,4)}, {s(sT[0])} offen offset:{(p&3)*1024} sc1')
        return [lambda t=t: zl(t) for t in range(nz)] + [lambda p=p: kl(p) for p in range(nk)]

    def q_phase(self, l):
        e = self.e; typ = l & 1; first = l < 2
        wt = self.qwt
        def wread(k): wt[k] = self.tr_w(vWB + (k % 6) * 4, k, 0)
        cQ = vCS + typ * 6
        st = 0; pk = []
        E1AT = self.o.e1at[l]
        kt = {}
        e1 = self.e1_ops(e, l, kt)
        if self.o.ctouch & 1 and l < 3: e1.insert(0, lambda: self.code_touch(v(vXF + 36)))
        def recheck():
            assert not e1
            e.wait(vm=kt['z'])
            nz = 2 << typ; z = vXF + 32; tz = vXF + 37
            e(f's_mov_b32 {s(sAT)}, 0')
            if nz == 4: e(f'v_max3_u32 {v(tz)}, {v(z)}, {v(z+1)}, {v(z+2)}\nv_max_u32 {v(tz)}, {v(tz)}, {v(z+3)}')
            else: e(f'v_max_u32 {v(tz)}, {v(z)}, {v(z+1)}')
            e(f'v_cmp_eq_u32 vcc, -1, {v(tz)}\ns_cbranch_vccnz L_e1k{l}\nL_e1kj{l}:')
            t_ = Asm(); ops = self.e1_ops(t_, l, {}, True)
            t_(f'L_e1k{l}:\ns_mov_b32 {s(sAT)}, 1')
            for t in range(nz):
                t_(f'v_cmp_eq_u32 vcc, -1, {v(z+t)}\ns_cbranch_vccz L_e1k{l}_{t}')
                ops[t](); ops[nz + 2*t](); ops[nz + 2*t + 1]()
                t_(f'L_e1k{l}_{t}:')
            t_(f's_branch L_e1kj{l}')
            self.tail.append(t_)
            self.e1chk = None; self.rechecked = True
        self.rechecked = False
        self.e1chk = recheck if self.o.e1chk[l] else None
        if not first:
            e(f'v_mfma_f32_32x32x8_bf16 {v(vA0,16)}, {v(cQ,2)}, {v(vMF,2)}, 0')
            if self.o.ptail == 0: self.pub_tail()
        elif self.o.ptail == 0: self.pub_tail()
        for k in range(32):
            if k % 2 == 0: e.wait(lg=wt[k + 1] if k else wt[0])
            if k == 1: e.wait(lg=wt[1])
            b = vWB + (k % 6) * 4
            if first or k: self.big(vA0, b, k)
            else: e(f'v_mfma_f32_32x32x16_bf16 {v(vA0,16)}, {v(b,4)}, {v(vXF,4)}, {v(vA0,16)}')
            if k == 0 and self.o.ptail: self.pub_tail()
            if k + 4 < 32: wread(k + 4)
            if k == 1 and self.clr_next: self.clr_next()
            if k == 2 and l == 0:
                e(f'v_and_b32 {v(vTM+3)}, 0x7c, {v(vL4)}')
                dbt = e(f'buffer_load_dword {v(vTM+2)}, {v(vTM+3)}, {s(sDBG,4)}, 0 offen sc1')
            if k == 3 and l == 0:
                for c in self.o.tw: self.touch(int(c))
            if k == E1AT and l == 0:
                e.wait(vm=dbt)
                e(f's_mov_b32 {s(sT[2])}, 0x11111111')
                e('L_all_chk:')
                e(f'v_dot8_u32_u4 {v(vTM+1)}, {v(vTM+2)}, {s(sT[2])}, 0')
                e(f's_lshl_b32 {s(sT[3])}, 8, {s(sXCC)}')
                e(f'v_cmp_ne_u32 vcc, 8, {v(vTM+1)}\ns_cbranch_vccnz L_all_retry')
                e(f'v_cmp_ne_u32 vcc, {s(sT[3])}, {v(vTM+2)}\ns_lshl_b32 {s(sT[3])}, {s(sR)}, 1')
                e(f's_lshr_b32 {s(sMODE)}, vcc_lo, {s(sT[3])}\ns_and_b32 {s(sMODE)}, {s(sMODE)}, 3')
                if self.o.force_safe: e(f's_or_b32 {s(sMODE)}, {s(sMODE)}, 1')
                e(f's_cselect_b32 {s(sSTR)}, {EXSTRIDE}, 0')
                if self.o.xout:
                    e(f's_cselect_b64 {s(sX,2)}, {s(sWS,2)}, {s(sOUT,2)}\ns_cselect_b32 {s(sX+2)}, {s(sWS+2)}, {s(sOUT+2)}\ns_cselect_b32 {s(sT[3])}, 0, {XB}')
                    for r in (sXrd, sXwr): e(f's_sub_u32 {s(r)}, {s(r)}, {s(sT[3])}')
                for r in (sOrd, sOwr): e(f's_add_u32 {s(r)}, {s(r)}, {s(sSTR)}')
                t = Asm()
                t(f'L_all_retry:\nbuffer_load_dword {v(vTM+2)}, {v(vTM+3)}, {s(sDBG,4)}, 0 offen sc1')
                t(f's_sub_u32 {s(sBUD)}, {s(sBUD)}, 1\ns_cbranch_scc1 L_fail\ns_waitcnt vmcnt(0)\ns_branch L_all_chk')
                self.tail.append(t)
                e1 += [lambda: e(f'buffer_load_dword a255, {v(vFl16)}, {s(sWS,4)}, {s(sFOrd)} offen sc1'),
                       lambda: e(f'buffer_load_dword a255, {v(vFl16)}, {s(sWS,4)}, {s(sFXrd)} offen sc1'),
                       lambda: (setattr(self, 'm0own', None), e(f's_mov_b32 m0, {L_WP}\ns_lshl_b32 {s(sT[4])}, {s(sG)}, 10\nbuffer_load_dwordx4 {v(vL16)}, {s(sWP,4)}, {s(sT[4])} offen lds'))]
                e1 += [lambda c=c: self.touch(int(c)) for c in self.o.te]
            if k >= E1AT:
                for _ in range(self.o.e1rate if k < 31 else 99):
                    if e1: e1.pop(0)()
            self.bg(f'q{k}')
            if l == 3 and self.o.clean & 1 and k in (2, 4):
                e(f'buffer_store_dwordx4 {v(vRES+2*(k-2),4)}, {v(vL16)}, {s(sWS,4)}, {s(sXwr)} offen offset:{(k-2)*512} sc1')
            if first:
                wn = 'WQ' + 'AB'[typ]
                if st == 0 and wn in self.bgt: st = 1; k1 = k + 2
                elif st == 1 and k == k1:
                    e.wait(lg=self.bgt[wn]); e('s_barrier')
                    r0 = self.cs_read(0, vA1); st = 2; k1 = k + 3
                elif st == 2 and k == k1:
                    e.wait(lg=r0); pk = self.cs_pack_ops(vA1, cQ); st = 3
                elif st == 3 and not pk:
                    e(f'v_mfma_f32_32x32x8_bf16 {v(vA0,16)}, {v(cQ,2)}, {v(vMF,2)}, {v(vA0,16)}'); st = 4
                for _ in range(2):
                    if pk: e(pk.pop(0))
        assert st == 4 or not first
        zt = kt['z']
        self.stamp(f'L{l}.qgemm')
        self.dump(f'L{l}.q', [v(vA0+i) for i in range(16)])
        PQ = vXF + 64
        if typ == 0:
            self.phi_a(vA0, vWB, PQ, 'eq')
        else:
            for i in range(8):
                e(f'v_cvt_pk_bf16_f32 {v(vTM+i)}, {v(vA0+2*i)}, {v(vA0+2*i+1)}')
                if i == 5: e(f'v_mfma_f32_32x32x16_bf16 {v(vA1,16)}, {v(vWPH,4)}, {v(vTM,4)}, 0')
            n0 = len(e.ins)
            self.bg('eqs')
            if len(e.ins) - n0 < 4: e(f's_nop {3 - (len(e.ins) - n0)}')
            e(f'v_mfma_f32_32x32x16_bf16 {v(vA0,16)}, {v(vWPH+4,4)}, {v(vTM+4,4)}, 0')
            self.softmax16(vA1, vWB, PQ, 'eq0')
            self.softmax16(vA0, vWB, PQ + 8, 'eq1')
        self.stamp(f'L{l}.phiq')
        nk, nz = (4, 2) if typ == 0 else (8, 4)
        C = vWB; mx = vTM; z = vXF + 32
        assert self.e1chk is None
        if self.rechecked: e(f's_cmp_lg_u32 {s(sAT)}, 0\ns_cbranch_scc1 L_e1w{l}')
        if self.o.e1inl: e(f's_branch L_e1c{l}')
        t = Asm()
        t(f'L_e1r{l}:')
        ops = self.e1_ops(t, l, {}, True)
        for op in ops[:nz]: op()
        for p in range(nk):
            b = vXF + 4*p
            t(f'v_max3_u32 {v(mx)}, {v(b)}, {v(b+1)}, {v(b+2)}\nv_max_u32 {v(mx)}, {v(mx)}, {v(b+3)}\nv_cmp_eq_u32 vcc, -1, {v(mx)}\ns_cbranch_vccz L_e1s{l}_{p}')
            ops[nz + p]()
            t(f'L_e1s{l}_{p}:')
        t(f's_sub_u32 {s(sBUD)}, {s(sBUD)}, 1\ns_cbranch_scc1 L_fail\nL_e1w{l}:\ns_waitcnt vmcnt(0)')
        if self.o.e1inl: e.ins += t.ins
        else:
            t(f's_branch L_e1c{l}'); self.tail.append(t)
        e(f'L_e1c{l}:')
        e.wait(vm=zt)
        if nz == 2:
            e(f'v_max_u32 {v(mx)}, {v(z)}, {v(z+1)}\nv_add_f32 {v(z)}, {v(z)}, {v(z+1)}')
        else:
            e(f'v_max3_u32 {v(mx)}, {v(z)}, {v(z+1)}, {v(z+2)}\nv_max_u32 {v(mx)}, {v(mx)}, {v(z+3)}')
            e(f'v_pk_add_f32 {v(z,2)}, {v(z,2)}, {v(z+2,2)}\nv_add_f32 {v(z)}, {v(z)}, {v(z+1)}')
        zops = [f'v_mov_b32 {v(z+1)}, {v(z)}', f'v_permlane16_swap_b32 {v(z)}, {v(z+1)}', f'v_add_f32 {v(z)}, {v(z)}, {v(z+1)}',
                f'v_mov_b32 {v(z+1)}, {v(z)}', f'v_permlane32_swap_b32 {v(z)}, {v(z+1)}', f'v_add_f32 {v(z)}, {v(z)}, {v(z+1)}',
                f'v_cvt_pk_bf16_f32 {v(z)}, {v(z)}, {v(z)}', f'ds_write_b16 {v(vZw)}, {v(z)} offset:512']
        e(zops.pop(0))
        for p in range(nk):
            e.wait(vm=kt[p])
            b = vXF + 4*p
            e(f'v_mfma_f32_16x16x32_bf16 {v(C,4)}, {v(vSEL,4)}, {v(b,4)}, {v(C,4) if p else 0}')
            e(f'v_max3_u32 {v(mx)}, {v(mx)}, {v(b)}, {v(b+1)}\nv_max3_u32 {v(mx)}, {v(mx)}, {v(b+2)}, {v(b+3)}')
            if p == 0:
                for _ in range(3): e(zops.pop(0))
        e(f'v_cmp_eq_u32 vcc, -1, {v(mx)}\ns_cbranch_vccnz L_e1r{l}')
        for op in zops: e(op)
        self.stamp(f'L{l}.e1')
        e(f'v_cvt_pk_bf16_f32 {v(vTM)}, {v(C)}, {v(C+1)}\nv_cvt_pk_bf16_f32 {v(vTM+1)}, {v(C+2)}, {v(C+3)}')
        e(f'ds_write_b64 {v(vKVw)}, {v(vTM,2)}')
        self.bg('o0')
        if not self.o.lateb[l]: self.need('ab')
        e.wait_all_lg()
        e('s_barrier')
        self.free('Q')
        KF = vWB + 8
        kr = vKVrA if typ == 0 else vKVrB
        tg = []
        for hh in range(2):
            for u in range(2):
                off = (2*u + hh) * 544 if typ == 0 else hh * 544 + u * 16
                tg.append(e(f'ds_read_b128 {v(KF + 4*(2*hh+u),4)}, {v(kr)} offset:{off}'))
        self.bg('o1')
        keep = self.e; self.e = fill = Asm()
        if l < 3: self.set_wtr(SLOTS[l+1]['K'], l + 1)
        self.e = keep
        fill(f'v_mov_b32 {v(vWB)}, {l+1}')
        ad = vTM + 4; sa, sb = SLOTS[l]['a'] * SLOT, SLOTS[l]['b'] * SLOT
        if l > 1:
            if l == 2: fill(f'v_lshrrev_b32 {v(vWO)}, 7, {v(vL4)}\nv_mul_u32_u24 {v(vWO)}, 1536, {v(vWO)}\nv_add_u32 {v(vWO)}, {v(vWO)}, {v(vL16)}')
            fill(f'v_add_u32 {v(ad)}, {sa}, {v(vWO)}\nv_add_u32 {v(ad+1)}, {sb}, {v(vWO)}')
        else:
            fill(f'v_add_u32 {v(ad)}, {sa}, {v(vWO)}')
            for t in (1, 2, 3): fill(f'v_xor_b32 {v(ad+t)}, {32*t}, {v(ad)}')
        if l == 0:
            fill(f'''
            v_lshrrev_b32 {v(vTM)}, 6, {v(vL4)}
            v_lshl_add_u32 {v(vXst)}, {v(vTM)}, 8, {v(vL16)}
            v_and_b32 {v(vTM)}, 1, {v(vTM)}
            v_lshrrev_b32 {v(vTM+1)}, 7, {v(vL4)}
            v_lshl_add_u32 {v(vTM)}, {v(vTM)}, 2, {v(vTM+1)}
            v_lshlrev_b32 {v(vTM+1)}, 2, {v(vFl16)}
            v_lshl_add_u32 {v(vOst)}, {v(vTM)}, 8, {v(vTM+1)}
            ''')
        fl = list(fill.ins)
        if self.o.ofill:
            gaps = max(0, (self.o.ofill - len(fl)) // 4)
            per = -(-len(fl) // (gaps + 1))
            while fl:
                e.ins += fl[:per]; fl = fl[per:]
                if fl: e('s_nop 3')
            fl = [Ins('s_nop 0') for _ in range(9)]
        else:
            while len(fl) > 10: e.ins.append(fl.pop(0))
            while len(fl) < 9: fl.append(Ins('s_nop 0'))
        for hh in range(2):
            acc = (vA0, vA1)[hh]
            for u in range(2):
                e.wait(lg=tg[2*hh+u] if hh == 0 else tg[3])
                pq = PQ + 4*hh if typ == 0 else PQ + 8*hh + 4*u
                e(f'v_mfma_f32_32x32x16_bf16 {v(acc,16)}, {v(KF+4*(2*hh+u),4)}, {v(pq,4)}, {v(acc,16) if u else 0}')
                if 2*hh + u in (1, 2):
                    for _ in range(4 if hh == 0 else 6):
                        if fl: e.ins.append(fl.pop(0))
        self.bg('o2')
        O = vXF + 96
        quick = l > 0 and self.o.quick
        for hh in range(2):
            acc = (vA0, vA1)[hh]
            e(f'v_add_f32 {v(acc+8)}, {s(sEPS6)}, {v(acc+8)}\nv_rcp_f32 {v(acc+8)}, {v(acc+8)}')
            if hh:
                for i in range(4): e(f'v_pk_mul_f32 {v(acc+2*i,2)}, {v(acc+2*i,2)}, {v(acc+8,2)} op_sel_hi:[1,0]')
            else:
                for i in range(6): e(f'v_mul_f32 {v(acc+i)}, {v(acc+8)}, {v(acc+i)}')
                e(f'v_mul_f32 {v(acc+6)}, {v(acc+8)}, {v(acc+6)}\nv_mul_f32 {v(acc+7)}, {v(acc+8)}, {v(acc+7)}')
            for i in range(4):
                e(f'v_cvt_pk_bf16_f32 {v(O+4*hh+i)}, {v(acc+2*i)}, {v(acc+2*i+1)}')
                if i == 1: self.tag(O + 4*hh, l & 1)
            def st(e, m):
                if self.o.stress and quick and not m and hh == (l & 1):
                    self.flag(e, vWB, sFOwr, m)
                    e(f's_and_b32 {s(sT[5])}, s2, {self.o.stress}\ns_cbranch_scc1 L_ns_o{l}\ns_sleep 60\nL_ns_o{l}:')
                e(f'buffer_store_dwordx4 {v(O+4*hh,4)}, {v(vOst)}, {s(sWS,4)}, {s(sOwr)} offen offset:{hh*512}{m or ((self.o.lasto if l == 3 else str()) if l else self.o.pub0)}')
                if hh:
                    if m or not (quick or self.o.noack): e.wait_all_vm()
                    self.flag(e, vWB, sFOwr, m)
            self.modal(f'po{l}{hh}', st)
        self.dump(f'L{l}.o', [v(O+i) for i in range(8)])
        self.stamp(f'L{l}.pub2')

    def o_proj(self, l):
        e = self.e; typ = l & 1; T = 'AB'[typ]
        chk = vTM + 1 if l > 0 else None
        par = l & 1
        self.bg('w0')
        if l == 0:
            t0, t1 = vTM, vTM + 1
            e(f'''
            v_bfe_u32 {v(t0)}, {v(vL4)}, 4, 2
            v_lshrrev_b32 {v(t1)}, 7, {v(vL4)}
            v_lshl_add_u32 {v(t0)}, {v(t1)}, 3, {v(t0)}
            v_lshlrev_b32 {v(t0)}, 5, {v(t0)}
            v_bfe_u32 {v(t1)}, {v(vL4)}, 6, 1
            v_lshl_add_u32 {v(t0)}, {v(t1)}, 4, {v(t0)}
            v_bfe_u32 {v(t1)}, {v(vL4)}, 3, 1
            v_lshl_add_u32 {v(t0)}, {v(t1)}, 3, {v(t0)}
            v_add_u32 {v(t0)}, {L_WP}, {v(t0)}
            ''')
            for hh in range(2):
                for t in range(2):
                    tw = e(f'ds_read_b64_tr_b16 {v(vWPH+4*hh+2*t,2)}, {v(t0)} offset:{hh*512 + t*128}')
            e(f'v_bfe_u32 {v(t1)}, {v(vL4)}, 4, 1\nv_mul_u32_u24 {v(t1)}, 0x8000, {v(t1)}\nv_lshl_or_b32 {v(t1)}, {v(t1)}, 16, {v(t1)}')
            e.wait(lg=tw)
            for i in range(8): e(f'v_xor_b32 {v(vWPH+i)}, {v(t1)}, {v(vWPH+i)}')
        if self.o.lateb[l]:
            self.need('ab'); e('s_barrier')
        ot = [None] * 16; wt = [None] * 64
        def oload(e, k):
            if k % 2 == 0: e(f's_add_u32 {s(sT[0])}, {s(sOrd)}, {k*2048}')
            ot[k] = e(f'buffer_load_dwordx4 {v(vXF+4*k,4)}, {v(vL16)}, {s(sWS,4)}, {s(sT[0])} offen offset:{(k&1)*2048} sc1')
        PRE = self.o.opre; SP = self.o.spo if l else 0
        NB, LA = 10, self.o.ola[l > 1]
        ad = vTM + 4; sa, sb = SLOTS[l]['a'] * SLOT, SLOTS[l]['b'] * SLOT
        buf = lambda f: vA1 + 4 * (f % NB)
        def wrd(f):
            e = self.e; k, t = f >> 2, f & 3
            if l > 1:
                wt[f] = e(f'ds_read_b128 {v(buf(f),4)}, {v(ad + (k >> 3))} offset:{(k & 7)*4096 + t*512}')
                return
            off = (k & 7) * 4096
            if k >= 8:
                if l == 1: off += sb - sa
                elif k == 8: e(f'v_add_u32 {v(ad+t)}, {(sb - sa) & 0xffffffff}, {v(ad+t)}')
            e(f'ds_read_b64_tr_b16 {v(buf(f),2)}, {v(ad+t)} offset:{off}')
            wt[f] = e(f'ds_read_b64_tr_b16 {v(buf(f)+2,2)}, {v(ad+t)} offset:{off+1024}')
        def init():
            e = self.e
            for f in range(LA): wrd(f)
            for i in range(8):
                e(f'v_lshlrev_b32 {v(vA0+2*i)}, 16, {v(vRES+i)}\nv_and_b32 {v(vA0+2*i+1)}, {s(sHI)}, {v(vRES+i)}')
        def shadow():
            self.bg('wp')
            if not self.o.oinit[l]: init()
            self.bg('ws')
        if self.o.oinit[l]: init(); keep = list(wt)
        self.bg('wi')
        self.stamp(f'L{l}.pre2')
        self.hop(f'o{l}', sFOrd, l + 1, vTM, oload, SP, shadow, init)
        if self.o.oinit[l]: wt[:] = keep
        if not l: self.in_redo = False
        self.stamp(f'L{l}.poll2')
        for k in range(SP, PRE): oload(e, k)
        self.bg('w1')
        xo = vTM + 2; fr = vTM + 3
        late = [f's_add_u32 {s(r)}, {s(r)}, {s(sSTR)}' for r in (sXrd, sXwr, sSTrd, sSTwr, sOrd, sOwr)] if l < 3 else []
        for k in range(16):
            for t in range(4):
                f = 4*k + t
                if t % 2 == 0: e.wait(vm=ot[k], lg=wt[f + 1])
                e(f'v_mfma_f32_16x16x32_bf16 {v(vA0+4*t,4)}, {v(buf(f),4)}, {v(vXF+4*k,4)}, {v(vA0+4*t,4)}')
                if f + LA < 64: wrd(f + LA)
                if t == 0:
                    if k + PRE < 16: oload(e, k + PRE)
                    if k + PRE == 16 and self.o.ctouch & 2 and l < 3: self.code_touch(v(vXF + 64))
                    self.bg(f'p{k}')
                if t == 2:
                    if chk and k % 2 == 1:
                        e(self.chk(chk, vXF+4*k-4, vXF+4*k, par, k == 1))
                        if k <= SP or k == 15: self.chk_end(chk, par, f'o{l}', vTM)
                    self.bg(f'p{k}b')
                    if k == 14:
                        if l < 3: e(f'v_mov_b32 {v(fr)}, {l + 2}')
                        else:
                            e(f'v_bfe_u32 {v(xo)}, {v(vL4)}, 6, 1\nv_lshrrev_b32 {v(xo+1)}, 7, {v(vL4)}\nv_lshl_add_u32 {v(xo)}, {v(xo)}, 1, {v(xo+1)}')
                            e(f'v_lshlrev_b32 {v(xo+1)}, 8, {v(vFl16)}\nv_lshl_add_u32 {v(xo)}, {v(xo)}, 4, {v(xo+1)}')
        self.in_redo = False
        for op in late: e(op)
        self.stamp(f'L{l}.B3')
        for m in range(2):
            if l == 3 and self.o.bias:
                for i in range(8):
                    e(f's_mov_b32 {s(sT[0])}, 0x433e0000\nv_cmp_gt_f32 vcc, abs({v(vA0+8*m+i)}), {s(sT[0])}\nv_cndmask_b32 {v(vA0+8*m+i)}, {v(vA0+8*m+i)}, 0, vcc')
            for i in range(4):
                e(f'v_cvt_pk_bf16_f32 {v(vRES+4*m+i)}, {v(vA0+8*m+2*i)}, {v(vA0+8*m+2*i+1)}')
                if i == 1 and l < 3: self.tag(vRES + 4*m, l & 1)
            if l < 3:
                def st(e, mm):
                    if self.o.stress and l and not mm and m == (l & 1):
                        self.flag(e, fr, sFXwr, mm)
                        e(f's_and_b32 {s(sT[5])}, s2, {self.o.stress}\ns_cbranch_scc1 L_ns_x{l}\ns_sleep 60\nL_ns_x{l}:')
                    e(f'buffer_store_dwordx4 {v(vRES+4*m,4)}, {v(vXst)}, {s(sWS,4)}, {s(sXwr)} offen offset:{m*2048}{mm or ((self.o.lastx if l == 2 else str()) if l else (self.o.pub0 if self.o.pub0x is None else self.o.pub0x))}')
                    if m and l and not mm: self.flag(e, fr, sFXwr, mm)
                self.modal(f'px{l}{m}', st)
        if l == 3:
            for m in range(2):
                for i in range(2): e(f'v_permlane16_swap_b32 {v(vRES+4*m+i)}, {v(vRES+4*m+2+i)}')
                e(f'buffer_store_dwordx4 {v(vRES+4*m,4)}, {v(xo)}, {s(sOUT,4)}, {s(sXO)} offen offset:{64*m} {self.o.outmod}')
            return
        self.dump(f'L{l}.x', [v(vRES+i) for i in range(8)])
        if l == 1: e(f's_lshl_b32 {s(sT[2])}, {s(sROT)}, 12\ns_add_u32 {s(sT[2])}, {s(sT[2])}, {s(sXrd)}')
        else: e(f's_mov_b32 {s(sT[2])}, {s(sXrd)}')
        self.x_stats()
        self.tag(vTM, l & 1)
        def st2(e, mm):
            if self.o.stress and not mm:
                if not l:
                    e.wait_all_vm(); self.flag(e, fr, sFXwr, mm)
                e(f's_and_b32 {s(sT[5])}, s2, {self.o.stress}\ns_cbranch_scc0 L_ns_s{l}\ns_sleep 50\nL_ns_s{l}:')
            e(f'buffer_store_dword {v(vTM)}, {v(vSTst)}, {s(sWS,4)}, {s(sSTwr)} offen{mm}')
            if mm or not l:
                if mm or not self.o.noack: e.wait_all_vm()
                self.flag(e, fr, sFXwr, mm)
        self.modal(f'px{l}s', st2)
        self.bg('y0')
        self.stamp(f'L{l}.pub3')

    def build(self):
        e = self.e
        self.sched = scheds.build(self.o.ov)
        self.prologue()
        for l in range(4):
            self.l = l
            if l == 0: self.kv_gemm0()
            else: self.kv_gemm(l)
            self.kv_epilogue(l)
            self.q_phase(l)
            self.o_proj(l)
        for k in self.sched: assert k in self.seen, k
        if self.o.stamps:
            self.stamp('end')
            e(f's_memrealtime {s(sTS,2)}'); e.wait_all_lg()
            e(f'v_writelane_b32 {v(vSTAMP)}, {s(sTS)}, 63')
            if not self.o.both: e(f'v_writelane_b32 {v(vSTAMP)}, {s(sBUD)}, 61')
            e(f's_lshl_b32 {s(sT[0])}, s2, 2\ns_add_u32 {s(sT[0])}, {s(sT[0])}, {s(sW)}\ns_lshl_b32 {s(sT[0])}, {s(sT[0])}, 8\ns_add_u32 {s(sT[0])}, {s(sT[0])}, {STAMP}')
            e(f'buffer_store_dword {v(vSTAMP)}, {v(vL4)}, {s(sWS,4)}, {s(sT[0])} offen')
        if self.o.echo:
            self.stamp('end')
            if self.o.echo[0] == 'fixed':
                e(f's_mov_b32 {s(sE0)}, {self.o.echo[2]}')
            else:
                e(f's_sub_u32 {s(sE0)}, {s(sE1)}, {s(sE0)}\ns_mul_i32 {s(sE0)}, {s(sE0)}, {self.o.echo[2]}')
            e(f'{self.o.clk} {s(sE1,2)}\ns_waitcnt lgkmcnt(0)')
            e(f'L_echo:\n{self.o.clk} {s(sTS,2)}\ns_waitcnt lgkmcnt(0)\ns_sub_u32 {s(sTS)}, {s(sTS)}, {s(sE1)}\ns_cmp_lt_u32 {s(sTS)}, {s(sE0)}\ns_cbranch_scc1 L_echo')
        e('L_fail:\ns_endpgm')
        for at, txt in reversed(self.pends):
            j = at - 2
            while j < at and not (e.ins[j].label or e.ins[j].mn.startswith(('v_mfma', 's_cbranch', 's_barrier', 's_waitcnt', 'v_pk', 's_branch'))): j += 1
            e.ins.insert(j, Ins(txt))
        if self.o.fake16: e.ins = [i for i in e.ins if not i.mn.startswith('v_mfma_f32_32x32x8')]
        body = e.finish() + ''.join(t.finish() for t in self.tail) + 'L_code_end:\n    s_endpgm\n'
        body, npad = layout([f'{NAME}_kernel:'] + body.rstrip('\n').split('\n'), 'L_main', 4 if self.o.pads else 0, self.o.align)
        body = body.split('\n', 1)[1]
        head = open('cdna_kernels/' + NAME + '.s.ref').read().split('; Override launch')[0]
        txt = head + '; @launch grid=(256,1,1) block=(256,1,1) lds=163840\n'
        txt += f'''.amdgcn_target "amdgcn-amd-amdhsa--gfx950"
.text
.globl {NAME}_kernel
.p2align 8
.type {NAME}_kernel,@function
{NAME}_kernel:
{body}.section .rodata,"a"
.p2align 6
.amdhsa_kernel {NAME}_kernel
  .amdhsa_next_free_vgpr 512
  .amdhsa_next_free_sgpr 102
  .amdhsa_accum_offset 256
  .amdhsa_group_segment_fixed_size 0
  .amdhsa_kernarg_size 80
  .amdhsa_user_sgpr_count 2
  .amdhsa_user_sgpr_kernarg_segment_ptr 1
  .amdhsa_system_sgpr_workgroup_id_x 1
  .amdhsa_float_denorm_mode_32 3
.end_amdhsa_kernel
'''
        return txt

if __name__ == '__main__':
    ap = argparse.ArgumentParser()
    ap.add_argument('-o', default='cdna_kernels/' + NAME + '.s')
    ap.add_argument('--stamps', action='store_true')
    ap.add_argument('--force-safe', action='store_true')
    ap.add_argument('--dump', default='')
    ap.add_argument('--echo', default='')
    ap.add_argument('--bias', default='')
    ap.add_argument('--clk', default='s_memtime')
    ap.add_argument('--outmod', default='sc1 nt')
    ap.add_argument('--initmod', default='')
    ap.add_argument('--touch', default='61352')
    ap.add_argument('--c1early', type=int, default=2)
    ap.add_argument('--fine', type=int, default=0)
    ap.add_argument('--atp', type=int, default=1)
    ap.add_argument('--nomini', type=int, default=0)
    ap.add_argument('--touchx', type=int, default=1)
    ap.add_argument('--b0at', type=int, default=24)
    ap.add_argument('--both', type=int, default=0)
    ap.add_argument('--fake', type=int, default=0)
    ap.add_argument('--stouch', default=',,')
    ap.add_argument('--tq', default='')
    ap.add_argument('--tw', default='6')
    ap.add_argument('--dummy', type=int, default=0)
    ap.add_argument('--te', default='')
    ap.add_argument('--quick', type=int, default=1)
    ap.add_argument('--lateb', default='0,0,0,0')
    ap.add_argument('--pub0', default='')
    ap.add_argument('--stat-at', type=int, default=4)
    ap.add_argument('--opre', type=int, default=8)
    ap.add_argument('--ctouch', type=int, default=0)
    ap.add_argument('--e1inl', type=int, default=0)
    ap.add_argument('--t0', default='')
    ap.add_argument('--t1', default='')
    ap.add_argument('--t2', default='')
    ap.add_argument('--qs', default='21111110')
    ap.add_argument('--clrp', type=int, default=6)
    ap.add_argument('--pub0s', default='')
    ap.add_argument('--q0', type=int, default=0)
    ap.add_argument('--clean', type=int, default=0)
    ap.add_argument('--xout', type=int, default=0)
    ap.add_argument('--rotm', type=int, default=6)
    ap.add_argument('--rotw', type=int, default=3)
    ap.add_argument('--roto', type=int, default=3)
    ap.add_argument('--spx', type=int, default=0)
    ap.add_argument('--spo', type=int, default=0)
    ap.add_argument('--ola', default='6,6')
    ap.add_argument('--spagain', type=int, default=0)
    ap.add_argument('--oinit', default='0,1,1,1')
    ap.add_argument('--pads', type=int, default=1)
    ap.add_argument('--align', type=int, default=5)
    ap.add_argument('--skip', default='')
    ap.add_argument('--noack', type=int, default=0)
    ap.add_argument('--fake16', type=int, default=0)
    ap.add_argument('--rotf', type=int, default=7)
    ap.add_argument('--padp', type=int, default=-2)
    ap.add_argument('--xmod', default='')
    ap.add_argument('--xmodp', type=int, default=8)
    ap.add_argument('--tmod', default='')
    ap.add_argument('--pub0x', default=None)
    ap.add_argument('--ov', default='')
    ap.add_argument('--lasto', default='')
    ap.add_argument('--lastx', default='')
    ap.add_argument('--lastld', default='')
    ap.add_argument('--ptail', type=int, default=0)
    ap.add_argument('--e1chk', default=',eq1a,eq2,eq0d')
    ap.add_argument('--stress', type=int, default=0)
    ap.add_argument('--wb', default='')
    ap.add_argument('--wbmask', type=int, default=63)
    ap.add_argument('--ord0', default='01V2K3')
    ap.add_argument('--p3', type=int, default=9)
    ap.add_argument('--ofill', type=int, default=0)
    ap.add_argument('--defw', type=int, default=0)
    ap.add_argument('--hopinl', type=int, default=1)
    ap.add_argument('--np', type=int, default=1)
    ap.add_argument('--npgap', type=int, default=11)
    ap.add_argument('--xpre', type=int, default=8)
    ap.add_argument('--e1at', default='22,20,24,20')
    ap.add_argument('--e1rate', type=int, default=1)
    ap.add_argument('--lateq', default='0,0,0,0')
    ap.add_argument('--sched', default='k')
    opt = ap.parse_args()
    opt.dump = opt.dump.split(',') if opt.dump else []
    opt.echo = opt.echo.split(',') if opt.echo else []
    opt.e1at = list(map(int, opt.e1at.split(','))); opt.lateq = list(map(int, opt.lateq.split(','))); opt.lateb = list(map(int, opt.lateb.split(',')))
    opt.ola = list(map(int, opt.ola.split(',')))
    opt.oinit = list(map(int, opt.oinit.split(',')))
    opt.skip = [x for x in opt.skip.split(',') if x]
    opt.e1chk = opt.e1chk.split(',')
    opt.wb = opt.wb.split(',')
    g = Gen(opt)
    txt = g.build()
    open(opt.o, 'w').write(txt)
    if opt.stamps:
        open(opt.o + '.stamps', 'w').write('\n'.join(g.stamp_names))
    print('wrote', opt.o, len(txt), 'bytes; vgpr persistent', _vn[0], 'sgpr', _sn[0], 'stamps', g.nstamp)
```

```python
import re
BASE = dict(
    LaA='0:kv29,kv30,kv31*2,b1*2,q1,q2', LbA='0:q4-20/2', LKB='0:eq0*2,eq1*2,eq2*2,eq3*2', LVB='0:w1*2,p8-14',
    SaA='0:wp*8', SbA='0:yp*8',
    LQB='1:kv24-32', LaB='1:ek1a,ek1b,ek1c,ek1d,q3-11/2', LbB='1:q11-19/2,eq0a,eq0b,eq0c,eq0d',
    RVA='1:wi*2,ws*4,w1*2', RKA='1:w1*2,y0*3,yp*3', SbB='1:y0*4,yp*4', SaB='1:y1*8',
    RQA='2:kv0-32/4b', RaA='2:kv2-32/4b', RbA='2:q1-32/4', RVB='2:q3-19/4,y0*2,yp*2', RKB='2:wi*2,ws*4,w1*2',
    RQB='3:kv0-32/4b', RaB='3:kv2-32/4b', RbB='3:q1-32/4')
def build(ov=''):
    t = dict(BASE)
    for x in ov.split(';'):
        if x:
            k, val = x.split('=')
            t.pop(k, None); t[k] = val
    d = {}
    for name, spec in t.items():
        l, pts = spec.split(':'); n = 0
        for p in pts.split(','):
            ll = int(l)
            if p[0] in '+-': ll += 1 if p[0] == '+' else -1; p = p[1:]
            c = 1
            if '*' in p: p, c = p.split('*'); c = int(c)
            m = re.fullmatch(r'([a-z]+)(\d+)-(\d+)(?:/(\d+))?([a-z]?)', p)
            lst = [f'{m.group(1)}{k}{m.group(5)}' for k in range(int(m.group(2)), int(m.group(3)), int(m.group(4) or 1))] if m else [p]
            for q in lst:
                d.setdefault(f'{ll}.{q}', []).append((name, c)); n += c
        assert name[0] == 'T' or n == 8, (name, n)
    return d
```

```python
import sys, argparse
sys.path.insert(0, 'gen')
from asmlib import *

NAME = 'interleave_layers__linear_attn_block__linear_kernel_hedgehog__prompt'

FLG_O, FLG_X = 0x0000, 0x2000
ZP = 0x10000
STAMP = 0x60000
KVP = 0x100000
EXB, EXSTRIDE = 0x400000, 0x500000
OB, XB, ST = EXB, EXB + 0x200000, EXB + 0x400000
DUMP = 0x2400000
WS_BYTES = 0x4000000
OOB = 0x7F000000
SLOT = 32768
SCR = 4 * SLOT
PL = 2176
L_PK = SCR
L_EX = SCR
L_KV = SCR + 12 * PL
L_CS = L_KV + 2176
L_WP = L_CS + 3072
assert L_WP + 1024 <= 163840

sX, sWA, sWOA, sWB, sWP, sWOB, sOUT, sDBG, sWS, sCODE = 4, 8, 12, 16, 20, 24, 28, 32, 36, 40
_sn = [44]
def salloc(n=1, al=1):
    while _sn[0] % al: _sn[0] += 1
    r = _sn[0]; _sn[0] += n
    assert _sn[0] <= 100
    return r
sW, sR, sG, sRB, sRBO, sJ, sMODE, sBUD, sSTR = [salloc() for _ in range(9)]
sRw, sRo, sCOFF = [salloc() for _ in range(3)]
sXrd, sXwr, sSTrd, sSTwr, sOrd, sOwr, sFOrd, sFOwr, sFXrd, sFXwr = [salloc() for _ in range(10)]
sKVrdA, sKVrdB, sKVwrB, sZrdA, sZrdB, sZwrB, sSKIP = [salloc() for _ in range(7)]
sXO, sONES, sPERM, sHI, sXCC = [salloc() for _ in range(5)]
sROT, sRESP, sDM = salloc(), salloc(), salloc()
sAT = 3
sX0g, sX0l, sW0g, sW0l = sMODE, sSTR, salloc(), salloc()
sFOe, sFXe = sW0g, sW0l
sL2E = salloc(2, 2); sEPS6 = salloc(2, 2)
sT = [salloc() for _ in range(6)]
sTS = salloc(2, 2)
sE0 = salloc(2, 2); sE1 = salloc(2, 2)

_vn = [1]
def valloc(n=1, al=1):
    while _vn[0] % al: _vn[0] += 1
    r = _vn[0]; _vn[0] += n
    return r
vLane = valloc()
vL16 = valloc(); vL4 = valloc()
vRES = valloc(8, 4)
vWPH = valloc(8, 4)
vSEL = valloc(4, 4)
vCS = valloc(12, 2)
vMF = valloc(2, 2)
vRS = valloc(2, 2)
vPKa, vSVw, vSVo, vCSa = [valloc() for _ in range(4)]
vWtr = valloc(4)
vWdma, vWOdma, vPKwA, vPKwB, vPKrA, vPKrB, vKVw, vZw, vKVrA, vKVrB, vSVt, vE1st, vZst, vSTst, vFl16, vWO = [valloc() for _ in range(16)]
assert _vn[0] <= 64, _vn[0]
vA0, vA1, vWB, vTM = 64, 80, 96, 120
vXF = 128
vM1 = vTM + 2
vXst, vOst = vWtr + 1, vWtr + 2
vPK2 = vLane
vSTAMP = 0

import scheds
BAY = dict(KA=0, VA=1, QA=2, aA=3, bA=4, KB=5, QB=6, VB=7, aB=0, bB=1)
SLOTS = [dict(K=0, V=1, Q=2, a=3, b=0), dict(K=1, V=2, Q=3, a=0, b=1), dict(K=2, V=3, Q=1, a=0, b=3), dict(K=1, V=2, Q=0, a=3, b=1)]

class Gen:
    def __init__(self, opt):
        self.o = opt
        self.e = Asm()
        self.tail = []
        self.nstamp = 0
        self.stamp_names = []
        self.wtr_slot = 0
        self.ndump = 0
        self.bgn = {}; self.bgt = {}; self.seen = set(); self.l = 0
        self.occ = [(0, 'K'), (0, 'V'), (0, 'Q'), (9, 'x')]; self.dead = set(); self.live = {(0, 'K'), (0, 'V')}; self.bayocc = {}; self.in_redo = False
        self.sv = None; self.stag = {}; self.pends = []; self.m0own = None; self.e1chk = None; self.d0 = {}; self.insave = set(); self.rb = {}; self.early = set()

    def stamp(self, name):
        if self.o.echo and name in self.o.echo[:2]:
            self.e(f'{self.o.clk} {s(sE0 if name == self.o.echo[0] else sE1, 2)}')
            self.e.wait_all_lg()
        if not self.o.stamps: return
        e = self.e
        if self.o.both:
            if self.o.both == 2 and name not in ('start', 'end'): return
            if self.o.both == 4:
                if name.split('.')[-1] not in ('start', 'pub1', 'e1', 'pub2', 'poll2', 'B3', 'poll3', 'end'): return
            elif self.o.both == 3:
                if not (name.startswith(('chunk', 'L0', 'setup', 'g')) or name in ('start', 'end')): return
            elif name.split('.')[-1] not in ('start', 'chunk0', 'x0', 'kvgemm', 'pub1', 'phiq', 'pub2', 'poll2', 'B3', 'end'): return
            e(f's_memtime {s(sTS,2)}\ns_memrealtime {s(sE0,2)}')
            e.wait_all_lg()
            e(f'v_writelane_b32 {v(vSTAMP)}, {s(sTS)}, {self.nstamp}\nv_writelane_b32 {v(vSTAMP)}, {s(sE0)}, {self.nstamp+31}')
            self.nstamp += 1; self.stamp_names.append(name)
            assert self.nstamp <= 31
            return
        e(f'{self.o.clk} {s(sTS,2)}')
        e.wait_all_lg()
        e(f'v_writelane_b32 {v(vSTAMP)}, {s(sTS)}, {self.nstamp}')
        self.nstamp += 1; self.stamp_names.append(name)
    def dump(self, name, regs):
        if name not in self.o.dump: return
        e = self.e
        for r in regs:
            e(f's_lshl_b32 {s(sT[5])}, s2, 2\ns_add_u32 {s(sT[5])}, {s(sT[5])}, {s(sW)}\ns_lshl_b32 {s(sT[5])}, {s(sT[5])}, 14\ns_add_u32 {s(sT[5])}, {s(sT[5])}, {DUMP + self.ndump*256}')
            e(f'buffer_store_dword {r}, {v(vL4)}, {s(sWS,4)}, {s(sT[5])} offen')
            self.ndump += 1
        assert self.ndump <= 64
        e.wait_all_vm()
    def set_wtr(self, slot, l):
        e = self.e
        if l == 0:
            for q in range(4): e(f'v_add_u32 {v(vWtr+q)}, {slot*SLOT}, {v(vWtr+q)}')
        elif l == 1:
            e(f'v_add_u32 {v(vWtr)}, {slot*SLOT}, {v(vSVw)}'); self.wq = 0
        else: e(f'v_add_u32 {v(vWtr)}, {slot*SLOT}, {v(vL16)}')
    def dma_w(self, typ, kind, n):
        e = self.e; srd = sWA if typ == 0 else sWB
        part = 'QKV'.index(kind); base = SLOTS[typ][kind] * SLOT - part * 1024
        assert base >= 0
        if self.o.fake == 2:
            if n & 1 and self.m0own == (typ, kind, n - 1): off = 1024
            else:
                off = 0
                e(f's_and_b32 {s(sDM)}, {s(sRw)}, 0x3fff\ns_lshl1_add_u32 {s(sDM)}, {s(sDM)}, 0\ns_and_b32 {s(sT[4])}, {s(sRw)}, 0x1fff\ns_sub_u32 {s(sDM)}, {s(sDM)}, {s(sT[4])}')
                e(f's_xor_b32 {s(sDM)}, {s(sDM)}, {(n >> 1)*8192 + (n & 1)*1024}')
                e(f's_add_u32 m0, {s(sDM)}, {SLOTS[typ][kind] * SLOT}')
                e(f's_mul_i32 {s(sT[4])}, {s(sG)}, 98304\ns_add_u32 {s(sDM)}, {s(sDM)}, {s(sT[4])}\ns_add_u32 {s(sDM)}, {s(sDM)}, {part*32768}')
            self.m0own = (typ, kind, n)
            return e(f'buffer_load_dwordx4 {v(vL16)}, {s(srd,4)}, {s(sDM)} offen offset:{off} lds')
        if n & 1 and self.m0own == (typ, kind, n - 1):
            e(f's_add_u32 {s(sDM)}, {s(sDM)}, {49152 - 1024}'); part += 1
        else:
            e(f's_xor_b32 {s(sDM)}, {s(sRw)}, {(n >> 1)*8192 + (n & 1)*1024}')
            e(f's_add_u32 m0, {s(sDM)}, {base}')
            e(f's_mul_i32 {s(sDM)}, {s(sDM)}, 48')
        self.m0own = (typ, kind, n)
        return e(f'buffer_load_dwordx4 {v(vWdma)}, {s(srd,4)}, {s(sDM)} offen offset:{part*1024} lds')
    def dma_wo(self, typ, kind, n):
        e = self.e; srd = sWOA if typ == 0 else sWOB
        off = 0
        if n & 1 and self.m0own == (typ, kind, n - 1):
            e(f's_add_u32 {s(sDM)}, {s(sDM)}, {8192 - 1024}'); off = 1024
        else:
            e(f's_xor_b32 {s(sDM)}, {s(sRo)}, {(n >> 1)*8192 + (n & 1)*1024}')
            e(f's_add_u32 m0, {s(sDM)}, {SLOTS[typ][kind]*SLOT}')
            e(f's_lshl3_add_u32 {s(sDM)}, {s(sDM)}, {0x40000 if kind == "b" else 0}')
        self.m0own = (typ, kind, n)
        return e(f'buffer_load_dwordx4 {v(vWOdma)}, {s(srd,4)}, {s(sDM)} offen offset:{off} lds')
    def park(self, op, item, n):
        e = self.e; r = BAY[item]*32 + 4*n
        slot = SLOTS['AB'.index(item[1]) + (2 if op == 'R' else 0)][item[0]]
        wo = item[0] in 'ab'
        m, x = (n & 3, n >> 2) if wo else (n >> 1, n & 1)
        if op == 'R':
            sh, off = (11, m*8192 + x*1024) if wo else ((10, n*4096) if item[1] == 'A' else (13, n*1024))
            if item not in self.rb:
                reg = vPK2 if self.rb.get('last') == vPKa else vPKa
                self.rb = {k: r_ for k, r_ in self.rb.items() if r_ != reg}
                self.rb[item] = reg
                e(f's_lshl_b32 {s(sT[4])}, {s(sW)}, {sh}\ns_add_u32 {s(sT[4])}, {s(sT[4])}, {slot*SLOT}\nv_add_u32 {v(reg)}, {s(sT[4])}, {v(vL16)}')
            self.rb['last'] = self.rb[item]
            return e(f'ds_write_b128 {v(self.rb[item])}, {a(r,4)} offset:{off}')
        assert wo
        want = (wo, (slot >> 1) * 0x10000 + (64 * x if wo else 0))
        ad = vSVo if wo else vSVw
        if want[1]:
            if want != self.sv: e(f'v_xor_b32 {v(vSVt)}, {want[1]}, {v(ad)}'); self.sv = want
            ad = vSVt
        off = (slot & 1)*SLOT + m*8192 + (0 if wo else x*512)
        e(f'ds_read_b64_tr_b16 {a(r,2)}, {v(ad)} offset:{off}')
        tag = e(f'ds_read_b64_tr_b16 {a(r+2,2)}, {v(ad)} offset:{off + 1024}')
        self.stag[(item, n)] = tag
        return tag
    def bg_op(self, name, n):
        op, item = name[0], name[1:]
        typ = 'AB'.index(item[1])
        if op in 'LR':
            slot = SLOTS[typ + (2 if op == 'R' else 0)][item[0]]
            if n == 0:
                prev = self.occ[slot]
                assert prev is None or prev in self.dead, (name, prev)
                if prev and prev[0] < 2:
                    sv = 'S' + prev[1] + 'AB'[prev[0]]
                    assert self.bgn.get(sv) == 8, (name, sv)
                    if op == 'L': self.e.wait(lg=self.bgt[sv])
                    assert op == 'L' or item[0] in 'ab' or sv[1:] in self.insave or sv[1:] in self.early, (name, sv)
                self.occ[slot] = (typ + (2 if op == 'R' else 0), item[0])
        if op == 'S':
            if n == 0:
                prev = self.bayocc.get(BAY[item])
                assert prev is None or (self.bgn.get('R' + prev) == 8 and not self.in_redo), (name, prev)
                self.bayocc[BAY[item]] = item
            if (typ, item[0]) not in self.live:
                assert self.bgn.get('L' + item) == 8 and item != 'QA', name
                self.e.wait(vm=self.bgt['L' + item])
        if op == 'L': return self.dma_w(typ, item[0], n) if item[0] in 'QKV' else self.dma_wo(typ, item[0], n)
        return self.park(op, item, n)
    def need(self, kinds, l=None):
        l = self.l if l is None else l
        for k in kinds:
            nm = ('L' if l < 2 else 'R') + k + 'AB'[l & 1]
            assert self.bgn.get(nm) == 8, (self.l, nm)
            if l < 2: self.e.wait(vm=self.bgt[nm])
            else: self.e.wait(lg=self.bgt[nm])
            self.live.add((l, k))
    def free(self, kinds):
        for k in kinds:
            self.dead.add((self.l, k))
            it = k + 'AB'[self.l & 1]
            if self.l < 2 and self.bgn.get('S' + it) == 8 and self.bgt['S' + it] <= self.e.lg_done: self.early.add(it)
    def bg(self, point):
        for name, cnt in self.sched.get(f'{self.l}.{point}', []):
            if name[0] == 'T':
                self.share_touch(name[1:]); continue
            for _ in range(cnt):
                n = self.bgn.get(name, 0)
                assert n < 8, name
                if any(name.startswith(x) for x in self.o.skip):
                    keep = self.e; self.e = Asm(); self.e.vm, self.e.lg, self.e.vm_done, self.e.lg_done = keep.vm, keep.lg, keep.vm_done, keep.lg_done
                    self.bg_op(name, n); self.e = keep; self.bgt[name] = 0; self.stag[(name[1:], n)] = 0; self.sv = None
                else: self.bgt[name] = self.bg_op(name, n)
                self.bgn[name] = n + 1
        if f'{self.l}.{point}' in self.o.wb:
            self.e(f's_lshl2_add_u32 {s(sT[5])}, {s(sG)}, {s(sW)}\ns_and_b32 {s(sT[5])}, {s(sT[5])}, {self.o.wbmask}\ns_cbranch_scc1 L_nowb{self.l}{point}')
            self.e.raw('buffer_wbl2 sc1')
            self.e(f'L_nowb{self.l}{point}:')
        if self.e1chk and point == self.o.e1chk[self.l]: self.e1chk()
        self.seen.add(f'{self.l}.{point}')
    def tag(self, reg, par):
        self.e(f'v_or_b32 {v(reg)}, 1, {v(reg)}' if par else f'v_and_b32 {v(reg)}, -2, {v(reg)}')
    def chk(self, acc, r0, r1, par, first):
        if first: return f'v_and_b32 {v(acc)}, {v(r0)}, {v(r1)}' if par else f'v_or_b32 {v(acc)}, {v(r0)}, {v(r1)}'
        return f'v_bitop3_b32 {v(acc)}, {v(acc)}, {v(r0)}, {v(r1)} bitop3:0x80' if par else f'v_or3_b32 {v(acc)}, {v(acc)}, {v(r0)}, {v(r1)}'
    def chk_end(self, acc, par, name, tmp=None):
        tmp = acc if tmp is None else tmp
        self.e(f'v_and_b32 {v(tmp)}, 1, {v(acc)}\nv_cmp_ne_u32 vcc, {par}, {v(tmp)}\ns_cbranch_vccnz L_redo_{name}')
    def hop(self, name, sbase, val, r, load, SP, shadow, reinit):
        e = self.e
        ld = f'buffer_load_dword {v(r)}, {v(vFl16)}, {s(sWS,4)}, {s(sbase)} offen sc1'
        cmp = f'v_cmp_gt_u32 vcc, {val}, {v(r)}'
        bud = f's_sub_u32 {s(sBUD)}, {s(sBUD)}, 1\ns_cbranch_scc1 L_fail'
        slow = Asm()
        slow(f'L_redo_{name}:\ns_waitcnt vmcnt(0) lgkmcnt(0)\ns_nop 15')
        if self.o.stamps: slow(f's_sub_u32 {s(sBUD)}, {s(sBUD)}, 1000')
        self.e = slow; reinit(); self.e = e
        slow(f's_waitcnt lgkmcnt(0)\nL_slow_{name}:\n{ld}\n{bud}\ns_waitcnt vmcnt(0)\n{cmp}\ns_cbranch_vccnz L_slow_{name}')
        for k in range(SP): load(slow, k)
        slow(f's_branch L_ok_{name}')
        self.tail.append(slow)
        again = Asm()
        if self.o.spagain:
            again(f'L_again_{name}:\n{ld}')
            for k in range(SP): load(again, k)
            again(f'{bud}\ns_waitcnt vmcnt({SP})\n{cmp}\ns_cbranch_vccnz L_again_{name}')
        else:
            again(f'L_again_{name}:\n{ld}\n{bud}\ns_waitcnt vmcnt(0)\n{cmp}\ns_cbranch_vccnz L_again_{name}')
            for k in range(SP): load(again, k)
        tag = e(ld)
        if SP:
            e(f's_cmp_lg_u32 {s(sMODE)}, 0\ns_cbranch_scc1 L_nosp_{name}')
            for k in range(SP): load(e, k)
            e(f'L_nosp_{name}:')
        vm = e.vm
        shadow()
        if SP:
            assert e.vm == vm and e.vm_done < tag
            e(f's_cmp_lg_u32 {s(sMODE)}, 0\ns_cbranch_scc1 L_slow_{name}')
        NP = self.o.np
        if NP > 1:
            assert not SP
            rs = [r] + [vXF + 124 + i for i in range(NP - 1)]
            pl = lambda x: f'buffer_load_dword {v(x)}, {v(vFl16)}, {s(sWS,4)}, {s(sbase)} offen sc1'
            t = Asm()
            t(pl(rs[1]))
            t(f's_waitcnt vmcnt(1)\n{cmp}\ns_cbranch_vccz L_ok_{name}')
            for x in rs[2:] + rs[:1]:
                t(pl(x))
                if x != rs[0]: t(f's_nop {self.o.npgap}')
            t(f'L_again_{name}:')
            for i in range(NP):
                x = rs[(i + 1) % NP]
                t(f's_waitcnt vmcnt({NP-1})\nv_cmp_gt_u32 vcc, {val}, {v(x)}\ns_cbranch_vccz L_ok_{name}\n{pl(x)}')
            t(f's_sub_u32 {s(sBUD)}, {s(sBUD)}, 1\ns_cbranch_scc0 L_again_{name}\ns_endpgm')
            e.ins += t.ins
            e.vm_done = max(e.vm_done, tag)
        else:
            e.wait(vm=tag)
            if self.o.hopinl:
                e(f'{cmp}\ns_cbranch_vccz L_ok_{name}')
                e.ins += again.ins
            else: e(f'{cmp}\ns_cbranch_vccnz L_slow_{name}')
        e(f'L_ok_{name}:')
        self.in_redo = True; self.sv = None; self.m0own = None; self.rb = {}
    def modal(self, name, fn):
        e = self.e
        e(f's_cmp_lg_u32 {s(sMODE)}, 0\ns_cbranch_scc1 L_{name}_safe')
        fn(e, '')
        e(f'L_{name}_join:')
        t = Asm(); t(f'L_{name}_safe:\ns_nop 4'); fn(t, ' sc1'); t(f's_nop 1\ns_branch L_{name}_join')
        self.tail.append(t)

    def x_stats(self):
        e = self.e
        S, Q = vTM, vTM + 1
        for i in range(8):
            e(f'v_dot2_f32_bf16 {v(S)}, {v(vRES+i)}, {s(sONES)}, {v(S) if i else 0}')
            e(f'v_dot2_f32_bf16 {v(Q)}, {v(vRES+i)}, {v(vRES+i)}, {v(Q) if i else 0}')
        e(f'v_permlane32_swap_b32 {v(S)}, {v(Q)}')
        e(f'v_add_f32 {v(S)}, {v(S)}, {v(Q)}\nv_mov_b32 {v(Q)}, {v(S)}')
        e(f'v_permlane16_swap_b32 {v(S)}, {v(Q)}')
        e(f'v_add_f32 {v(S)}, {v(S)}, {v(Q)}')
    def flag(self, e, reg, sflag, m):
        e(f's_mov_b64 exec, 1\nbuffer_store_dword {v(reg)}, off, {s(sWS,4)}, {s(sflag)}{m}\ns_mov_b64 exec, -1')

    def e1_addr(self, l, t):
        if l & 1: return vE1st, vZst
        self.e(f'v_add_u32 {v(t)}, {s(sSKIP)}, {v(vE1st)}\nv_add_u32 {v(t+1)}, {s(sSKIP)}, {v(vZst)}')
        return t, t + 1
    def clear_slot(self, l, m1, ak, az):
        e = self.e
        e(f'v_mov_b32 {v(m1)}, -1\nv_mov_b32 {v(m1+1)}, -1')
        e(f's_add_u32 {s(sT[4])}, {s(sKVwrB)}, {l*0x80000}\ns_add_u32 {s(sT[5])}, {s(sZwrB)}, {l*0x10000}')
        e(f'buffer_store_dwordx2 {v(m1,2)}, {v(ak)}, {s(sWS,4)}, {s(sT[4])} offen sc1')
        return e(f'buffer_store_dword {v(m1)}, {v(az)}, {s(sWS,4)}, {s(sT[5])} offen sc1')
    def dma0(self, P, n, again=False):
        e = self.e
        c = (self.o.twin if P == 0 and self.o.twin else self.o.ord0)[n]
        if again: self.d0 = {}
        if c in '0123':
            if P == 0 and self.o.twin:
                hi = int(c) >> 1; c = str(int(c) & 1)
                if self.d0.get('m0') != ('x', P, hi): e(f's_xor_b32 m0, {s(sT[4])}, {hi*2048}')
                if self.d0.get('x') != (P, hi): e(f's_xor_b32 {s(sT[0])}, {s(sT[5])}, {hi*16384}')
                self.d0.update(m0=('x', P, hi), x=(P, hi))
            else:
                if self.d0.get('m0') != ('x', P): e(f's_add_u32 m0, {s(sX0l)}, {(P % 3) * 16384}')
                if self.d0.get('x') != P: e(f's_xor_b32 {s(sT[0])}, {s(sX0g)}, {P << 7}')
                self.d0.update(m0=('x', P), x=P)
            return e(f'buffer_load_dwordx4 {v(vWPH+int(c))}, {s(sX,4)}, {s(sT[0])} offen offset:{int(c)*1024} {self.o.xmod if P < self.o.xmodp else str()} lds')
        self.d0['m0'] = None
        e(f's_add_u32 m0, {s(sW0l)}, {P*4096 + (SLOT - 1024 if c == "V" else 0)}')
        if self.d0.get('w') != P:
            e(f's_xor_b32 {s(sT[1])}, {s(sW0g)}, {P*4096}\ns_mul_i32 {s(sT[1])}, {s(sT[1])}, 48\ns_add_u32 {s(sT[1])}, {s(sT[1])}, 1024')
        self.d0['w'] = P
        return e(f'buffer_load_dwordx4 {v(vWdma)}, {s(sWA,4)}, {s(sT[1])} offen offset:{1024 if c == "V" else 0} lds')
    def dma0q(self, P):
        e = self.e
        self.d0['m0'] = None
        e(f's_xor_b32 {s(sDM)}, {s(sW0g)}, {P*4096}')
        e(f's_add_u32 m0, {s(sW0l)}, {P*4096 + 2*SLOT}')
        e(f's_mul_i32 {s(sDM)}, {s(sDM)}, 48')
        return e(f'buffer_load_dwordx4 {v(vWdma)}, {s(sWA,4)}, {s(sDM)} offen lds')

    def touch(self, i):
        e = self.e; T = sT; t16, t4 = vCS + 6, vCS + 7
        if i in (0, 9):
            e(f's_lshl2_add_u32 {s(T[5])}, s2, {s(sW)}\ns_lshr_b32 {s(T[4])}, {s(T[5])}, 1\ns_lshl_b32 {s(T[4])}, {s(T[4])}, 11\ns_lshl_b32 {s(T[5])}, {s(T[5])}, 9\ns_add_u32 {s(T[4])}, {s(T[4])}, {s(T[5])}')
            return e(f'buffer_load_dword a255, {v(t4)}, {s(sWA if i == 0 else sWB,4)}, {s(T[4])} offen')
        if i in (1, 5):
            e(f's_lshl2_add_u32 {s(T[5])}, s2, {s(sW)}\ns_lshl_b32 {s(T[5])}, {s(T[5])}, 9')
            return e(f'buffer_load_dword a255, {v(t4)}, {s(sWOA if i == 1 else sWOB,4)}, {s(T[5])} offen')
        if i == 2: return e(f'buffer_load_dword a255, {v(t16)}, {s(sWS,4)}, {s(sOwr)} offen {self.o.tmod}')
        if i in (10, 11):
            tp = vSVt; self.sv = None
            e(f's_lshr_b32 {s(T[5])}, s2, 3\ns_cmp_eq_u32 {s(sW)}, 3\ns_cbranch_scc1 L_p3w{i}')
            e(f's_mul_i32 {s(T[5])}, {s(T[5])}, 48\ns_add_u32 {s(T[5])}, {s(T[5])}, {s(sW)}\ns_lshl_b32 {s(T[5])}, {s(T[5])}, 10')
            e(f'v_mul_u32_u24 {v(tp)}, 736, {v(vFl16)}\nv_add_u32 {v(tp)}, {v(tp)}, {v(vZst)}\nv_lshl_add_u32 {v(tp)}, {v(vFl16)}, 5, {v(tp)}')
            e.raw(f'buffer_load_dword a255, {v(tp)}, {s(sWA if i == 10 else sWB,4)}, {s(T[5])} offen offset:384\ns_branch L_p3j{i}\nL_p3w{i}:')
            e(f's_lshl_b32 {s(T[5])}, {s(T[5])}, 14\nv_lshl_add_u32 {v(tp)}, {v(vFl16)}, 8, {v(vZst)}')
            tag = e(f'buffer_load_dword a255, {v(tp)}, {s(sWOA if i == 10 else sWOB,4)}, {s(T[5])} offen offset:384')
            e(f'L_p3j{i}:')
            return tag
        if i == 7:
            e(f's_lshl4_add_u32 {s(T[5])}, {s(sR)}, {s(sG)}\ns_lshl2_add_u32 {s(T[5])}, {s(T[5])}, {s(sW)}\ns_lshl_b32 {s(T[5])}, {s(T[5])}, 11')
            return e(f'buffer_load_dword a255, {v(t16)}, {s(sX,4)}, {s(T[5])} offen')
        if i in (3, 8):
            e(f's_lshl_b32 {s(T[5])}, {s(sW)}, 8\ns_add_u32 {s(T[5])}, {s(T[5])}, s2\ns_min_u32 {s(T[5])}, {s(T[5])}, 767\ns_lshl_b32 {s(T[5])}, {s(T[5])}, 11')
            return e(f'buffer_load_dword a255, {v(t16)}, {s(sWB if i == 3 else sWA,4)}, {s(T[5])} offen')
        if i == 4:
            e(f's_and_b32 {s(T[5])}, {s(sG)}, 3\ns_lshl_b32 {s(T[5])}, {s(T[5])}, 9\ns_add_u32 {s(T[5])}, {s(T[5])}, {s(sSTrd)}')
            return e(f'buffer_load_dword a255, {v(t4)}, {s(sWS,4)}, {s(T[5])} offen')
        if i == 6:
            e(f's_lshl_b32 {s(T[5])}, {s(sG)}, 11\ns_add_u32 {s(T[5])}, {s(T[5])}, {s(sXrd)}')
            return e(f'buffer_load_dword a255, {v(t16)}, {s(sWS,4)}, {s(T[5])} offen {self.o.tmod if i == 4 else str()}')

    def share_touch(self, name):
        e = self.e; t = vSVt; self.sv = None
        kinds, typ = name[:-1], 'AB'.index(name[-1])
        dst = 'a223' if self.l else 'a255'
        if kinds[0] in 'ab':
            e(f's_and_b32 {s(sT[5])}, {s(sG)}, 7\ns_lshl_b32 {s(sT[5])}, {s(sT[5])}, 7\ns_lshl3_add_u32 {s(sT[4])}, {s(sRo)}, {s(sT[5])}')
            if kinds == 'b': e(f's_add_u32 {s(sT[4])}, {s(sT[4])}, 0x40000')
            e(f'v_lshrrev_b32 {v(t)}, 6, {v(vL4)}\nv_lshlrev_b32 {v(t)}, {18 if kinds == "ab" else 26}, {v(t)}\nv_lshl_add_u32 {v(t)}, {v(vFl16)}, 8, {v(t)}')
            return e(f'buffer_load_dword {dst}, {v(t)}, {s(sWOA if typ == 0 else sWOB,4)}, {s(sT[4])} offen')
        e(f's_mul_i32 {s(sT[4])}, {s(sRw)}, 48\ns_lshl_b32 {s(sT[5])}, {s(sG)}, 6\ns_add_u32 {s(sT[4])}, {s(sT[4])}, {s(sT[5])}')
        e(f'v_mul_u32_u24 {v(t)}, 768, {v(vL4)}')
        if kinds == 'KV': e(f's_mov_b64 exec, 0xffffffff\ns_not_b64 exec, exec\nv_subrev_u32 {v(t)}, {32*3072 - 1024}, {v(t)}\ns_mov_b64 exec, -1')
        else: e('s_mov_b64 exec, 0xffffffff')
        tag = e(f'buffer_load_dword {dst}, {v(t)}, {s(sWA if typ == 0 else sWB,4)}, {s(sT[4])} offen offset:{"QKV".index(kinds[0])*1024}')
        if kinds != 'KV': e('s_mov_b64 exec, -1')
        return tag
    def code_touch(self, dst):
        return self.e(f'buffer_load_dword {dst}, {v(vL16)}, {s(sCODE,4)}, {s(sCOFF)} offen')
    def dummy(self, i):
        e = self.e
        if i < 4: return e(f'buffer_store_dwordx4 {v(vSEL,4)}, {v(vL16)}, {s(sWS,4)}, {s((sOwr, sXwr)[i >> 1])} offen offset:{(i & 1)*1024} sc1')
        return e(f'buffer_store_dword {v(vSEL)}, {v(vSTst)}, {s(sWS,4)}, {s(sSTwr)} offen sc1')

    def prologue(self):
        e = self.e
        T = sT
        e('s_cmp_ge_u32 s2, 256\ns_cbranch_scc1 L_fail')
        if self.o.echo and self.o.echo[0] == 'entry': e(f'{self.o.clk} {s(sE0,2)}')
        for srd, off in ((sX, 0), (sWA, 8), (sWS, 72), (sWOA, 16), (sWB, 32), (sWP, 40), (sWOB, 48), (sOUT, 56), (sDBG, 64)):
            e(f's_load_dwordx2 {s(srd,2)}, s[0:1], {off}')
        e(f's_getpc_b64 {s(sCODE,2)}')
        e(f'v_and_b32 {v(vLane)}, 63, v0\nv_lshrrev_b32 {v(vTM)}, 6, v0')
        e(f's_mov_b32 {s(sCODE+2)}, L_code_end-{NAME}_kernel-128\ns_mov_b32 {s(sCODE+3)}, 0x20000')
        e(f'v_readfirstlane_b32 {s(sW)}, {v(vTM)}')
        e(f'v_lshlrev_b32 {v(vL16)}, 4, {v(vLane)}')
        e(f's_lshr_b32 {s(sG)}, s2, 3\ns_lshl2_add_u32 {s(T[0])}, {s(sG)}, {s(sW)}')
        e(f's_and_b32 {s(T[0])}, {s(T[0])}, 63\ns_lshl_b32 {s(T[0])}, {s(T[0])}, 10\ns_min_u32 {s(sCOFF)}, {s(T[0])}, L_code_end-{NAME}_kernel-128-1024')
        self.code_touch('a255')
        e(f'v_lshlrev_b32 {v(vTM+6)}, 7, {v(vLane)}')
        for srd, sz in ((sX, 0x200000), (sWA, 0x180000), (sWS, WS_BYTES)):
            e(f's_mov_b32 {s(srd+2)}, {sz}\ns_mov_b32 {s(srd+3)}, 0x20000')
        t0, t1, t2 = vA1, vA1 + 1, vA1 + 2
        e(f'''
        s_and_b32 {s(sR)}, s2, 7
        s_lshl_b32 {s(sR)}, {s(sR)}, 1
        s_lshr_b32 {s(T[0])}, s2, 7
        s_add_u32 {s(sR)}, {s(sR)}, {s(T[0])}
        s_and_b32 {s(sG)}, {s(sG)}, 15
        s_lshl_b32 {s(sRB)}, {s(sR)}, 2
        s_add_u32 {s(sRB)}, {s(sRB)}, {s(sW)}
        s_and_b32 {s(sROT)}, {s(sG)}, 1
        s_lshl1_add_u32 {s(sROT)}, {s(sROT)}, {s(T[0])}
        s_lshl_b32 {s(sROT)}, {s(sROT)}, 1
        s_and_b32 {s(sROT)}, {s(sROT)}, {self.o.rotm}
        s_lshr_b32 {s(T[1])}, {s(sG)}, 1
        s_xor_b32 {s(sROT)}, {s(sROT)}, {s(T[1])}
        s_xor_b32 {s(sROT)}, {s(sROT)}, s2
        s_cmp_eq_u32 {s(T[1])}, {self.o.p3}
        s_cselect_b32 {s(T[1])}, 6, {self.o.rotf}
        s_and_b32 {s(sROT)}, {s(sROT)}, {s(T[1])}
        s_lshl_b32 {s(sX0g)}, {s(sRB)}, 8
        s_add_u32 {s(sX0g)}, {s(sX0g)}, {s(sROT)}
        s_lshl_b32 {s(sX0g)}, {s(sX0g)}, 7
        s_lshl_b32 {s(sX0l)}, {s(sW)}, 12
        s_add_u32 {s(sX0l)}, {s(sX0l)}, {3*SLOT}
        s_lshl_b32 {s(sW0l)}, {s(sW)}, 10
        s_lshl2_add_u32 {s(sW0g)}, {s(sROT)}, {s(sW)}
        s_lshl_b32 {s(sW0g)}, {s(sW0g)}, 10
        s_lshl_b32 {s(T[2])}, {s(sG)}, 6
        v_lshrrev_b32 {v(vWdma)}, 2, {v(vLane)}
        v_mul_u32_u24 {v(vWdma)}, 3072, {v(vWdma)}
        v_and_b32 {v(vTM+5)}, 3, {v(vLane)}
        v_lshl_add_u32 {v(vWdma)}, {v(vTM+5)}, 4, {v(vWdma)}
        v_add_u32 {v(vWdma)}, {s(T[2])}, {v(vWdma)}
        v_lshrrev_b32 {v(vTM+4)}, 4, {v(vLane)}
        v_and_b32 {v(t2)}, 7, {v(vLane)}
        v_xor_b32 {v(t1)}, {v(t2)}, {v(vTM+4)}
        v_lshlrev_b32 {v(t1)}, 4, {v(t1)}
        v_lshrrev_b32 {v(t0)}, 3, {v(vLane)}
        v_lshl_add_u32 {v(vWPH)}, {v(t0)}, 10, {v(t1)}
        v_xor_b32 {v(vWPH+1)}, 64, {v(vWPH)}
        v_add_u32 {v(vWPH+1)}, {7168}, {v(vWPH+1)}
        v_add_u32 {v(vWPH+2)}, {2*7168}, {v(vWPH)}
        v_add_u32 {v(vWPH+3)}, {2*7168}, {v(vWPH+1)}
        v_and_b32 {v(vTM)}, 31, {v(vLane)}
        v_lshrrev_b32 {v(vTM+1)}, 5, {v(vLane)}
        v_lshlrev_b32 {v(vL4)}, 2, {v(vLane)}
        ''')
        e(f'''
        s_lshl_b32 {s(T[3])}, {s(sG)}, 2
        s_add_u32 {s(T[3])}, {s(T[3])}, {s(sW)}
        s_lshl_b32 {s(sKVrdB)}, {s(T[3])}, 13
        s_add_u32 {s(sKVrdB)}, {s(sKVrdB)}, {KVP}
        s_lshl_b32 {s(sZrdB)}, {s(T[3])}, 10
        s_add_u32 {s(sZrdB)}, {s(sZrdB)}, {ZP}
        s_lshl_b32 {s(T[4])}, {s(sR)}, 9
        s_add_u32 {s(sKVwrB)}, {s(sKVrdB)}, {s(T[4])}
        s_lshl_b32 {s(T[5])}, {s(sR)}, 6
        s_add_u32 {s(sZwrB)}, {s(sZrdB)}, {s(T[5])}
        v_and_b32 {v(vFl16)}, 60, {v(vL4)}
        v_lshlrev_b32 {v(t0)}, 2, {v(vFl16)}
        v_lshl_add_u32 {v(t0)}, {v(vTM+1)}, 8, {v(t0)}
        v_and_b32 {v(t1)}, 1, {v(vTM+4)}
        v_lshl_add_u32 {v(vE1st)}, {v(t1)}, 3, {v(t0)}
        v_lshl_add_u32 {v(vZst)}, {v(vTM+4)}, 26, {v(vFl16)}
        s_lshr_b32 {s(sSKIP)}, {s(sR)}, 3
        s_lshr_b32 {s(T[1])}, {s(sW)}, 1
        s_xor_b32 {s(sSKIP)}, {s(sSKIP)}, {s(T[1])}
        s_lshl_b32 {s(sSKIP)}, {s(sSKIP)}, 28
        v_mov_b32 {v(vA0+4)}, 0
        s_lshr_b32 {s(sFOwr)}, {s(sG)}, 1
        s_lshl_b32 {s(sFOwr)}, {s(sFOwr)}, 13
        s_add_u32 {s(sFOwr)}, {s(sFOwr)}, {s(T[4])}
        s_and_b32 {s(sFOrd)}, {s(sG)}, 1
        s_lshl_b32 {s(sFOrd)}, {s(sFOrd)}, 8
        s_add_u32 {s(sFOwr)}, {s(sFOwr)}, {s(sFOrd)}
        ''')
        e(f'v_lshrrev_b32 {v(t0)}, 2, {v(vLane)}\nv_lshl_add_u32 {v(vCS+7)}, {v(t0)}, 26, {v(vTM+6)}\nv_lshl_add_u32 {v(vCS+6)}, {v(vTM+4)}, 26, {v(vTM+6)}')
        for srd, sz in ((sWOA, 0x80000), (sWB, 0x180000), (sWOB, 0x80000)):
            e(f's_mov_b32 {s(srd+2)}, {sz}\ns_mov_b32 {s(srd+3)}, 0x20000')
        if self.o.twin: e(f's_and_b32 {s(T[5])}, {s(sG)}, 1\ns_lshl_b32 {s(T[4])}, {s(T[5])}, 11\ns_lshl_b32 {s(T[5])}, {s(T[5])}, 14\ns_add_u32 {s(T[4])}, {s(T[4])}, {s(sX0l)}\ns_add_u32 {s(T[5])}, {s(T[5])}, {s(sX0g)}')
        e('s_waitcnt lgkmcnt(0)')
        if self.o.stamps:
            e(f's_memrealtime {s(sTS,2)}'); e.wait_all_lg()
            e(f'v_writelane_b32 {v(vSTAMP)}, {s(sTS)}, 62')
        self.stamp('start')
        self.ct = [None] * 8
        for c in self.o.t0: self.touch(int(c, 16))
        for n in range(6): self.ct[0] = self.dma0(0, n)
        for c in self.o.t1: self.touch(int(c, 16))
        if self.o.q0 > 0: self.dma0q(0)
        for n in range(self.o.c1early): self.ct[1] = self.dma0(1, n)
        e(f's_and_b32 {s(sFOrd)}, {s(T[3])}, 0x33\ns_cbranch_scc1 L_noclr')
        e.raw(f'buffer_store_dword {v(vA0+4)}, {v(vL4)}, {s(sWS,4)}, {s(sFOwr)} offen sc1')
        e('L_noclr:')
        self.clear_slot(0, vM1, *self.e1_addr(0, vA0 + 6))
        for srd, sz in ((sWP, 0x4000), (sOUT, 0x200000), (sDBG, 256)):
            e(f's_mov_b32 {s(srd+2)}, {sz}\ns_mov_b32 {s(srd+3)}, 0x20000')
        e(f'''
        s_and_b32 {s(T[0])}, {s(sW)}, 1
        s_lshr_b32 {s(T[1])}, {s(sW)}, 1
        s_lshl_b32 {s(sRBO)}, {s(sR)}, 2
        s_lshr_b32 {s(T[4])}, {s(sG)}, 3
        s_lshl_b32 {s(T[4])}, {s(T[4])}, 1
        s_add_u32 {s(T[4])}, {s(T[4])}, {s(T[0])}
        s_add_u32 {s(sRBO)}, {s(sRBO)}, {s(T[4])}
        s_lshl_b32 {s(T[3])}, {s(T[4])}, 12
        s_add_u32 {s(T[3])}, {s(T[3])}, {3*SLOT}
        s_and_b32 {s(sJ)}, {s(sG)}, 7
        s_xor_b32 {s(sRESP)}, {s(sJ)}, {s(sROT)}
        s_lshl_b32 {s(sJ)}, {s(sJ)}, 1
        s_add_u32 {s(sJ)}, {s(sJ)}, {s(T[1])}
        s_lshl_b32 {s(sXO)}, {s(sRBO)}, 15
        s_lshl_b32 {s(T[2])}, {s(T[1])}, 14
        s_add_u32 {s(sXO)}, {s(sXO)}, {s(T[2])}
        s_and_b32 {s(T[2])}, {s(sG)}, 7
        s_lshl_b32 {s(T[2])}, {s(T[2])}, 7
        s_add_u32 {s(sXO)}, {s(sXO)}, {s(T[2])}
        s_and_b32 {s(T[4])}, {s(sG)}, 1
        s_and_b32 {s(T[5])}, {s(sR)}, 1
        s_lshl1_add_u32 {s(T[4])}, {s(T[4])}, {s(T[5])}
        s_and_b32 {s(T[4])}, {s(T[4])}, {self.o.rotw}
        s_lshl2_add_u32 {s(T[4])}, {s(T[4])}, {s(sW)}
        s_lshl_b32 {s(sRw)}, {s(T[4])}, 11
        s_lshr_b32 {s(T[4])}, {s(sG)}, 3
        s_lshl1_add_u32 {s(T[4])}, {s(T[4])}, {s(T[5])}
        s_and_b32 {s(T[4])}, {s(T[4])}, {self.o.roto}
        s_lshl2_add_u32 {s(T[4])}, {s(T[4])}, {s(sW)}
        s_lshl_b32 {s(sRo)}, {s(T[4])}, 11
        s_lshl_b32 {s(T[4])}, {s(T[1])}, 12
        s_add_u32 {s(sKVrdA)}, {s(sKVrdB)}, {s(T[4])}
        s_lshl_b32 {s(T[4])}, {s(T[1])}, 9
        s_add_u32 {s(sZrdA)}, {s(sZrdB)}, {s(T[4])}
        s_lshl_b32 {s(T[4])}, {s(sRB)}, 15
        s_add_u32 {s(sXrd)}, {s(T[4])}, {XB}
        s_lshl_b32 {s(T[5])}, {s(sG)}, 11
        s_add_u32 {s(sOwr)}, {s(T[4])}, {s(T[5])}
        s_add_u32 {s(sOwr)}, {s(sOwr)}, {OB}
        s_lshl_b32 {s(T[4])}, {s(sRBO)}, 15
        s_lshl_b32 {s(T[5])}, {s(T[2])}, 5
        s_add_u32 {s(sXwr)}, {s(T[4])}, {s(T[5])}
        s_lshl_b32 {s(T[5])}, {s(T[1])}, 8
        s_add_u32 {s(sXwr)}, {s(sXwr)}, {s(T[5])}
        s_add_u32 {s(sXwr)}, {s(sXwr)}, {XB}
        s_lshl_b32 {s(T[5])}, {s(T[1])}, 10
        s_add_u32 {s(sOrd)}, {s(T[4])}, {s(T[5])}
        s_add_u32 {s(sOrd)}, {s(sOrd)}, {OB}
        s_lshl_b32 {s(sSTrd)}, {s(sRB)}, 11
        s_add_u32 {s(sSTrd)}, {s(sSTrd)}, {ST}
        s_lshl_b32 {s(sSTwr)}, {s(sRBO)}, 11
        s_and_b32 {s(T[4])}, {s(sG)}, 6
        s_add_u32 {s(T[4])}, {s(T[4])}, {s(T[1])}
        s_lshl_b32 {s(T[5])}, {s(T[4])}, 8
        s_add_u32 {s(sSTwr)}, {s(sSTwr)}, {s(T[5])}
        s_and_b32 {s(T[5])}, {s(sG)}, 1
        s_lshl3_add_u32 {s(sSTwr)}, {s(T[5])}, {s(sSTwr)}
        s_add_u32 {s(sSTwr)}, {s(sSTwr)}, {ST}
        s_lshl_b32 {s(sFXrd)}, {s(sRB)}, 7
        s_lshl_b32 {s(T[5])}, {s(sG)}, 2
        s_add_u32 {s(sFOwr)}, {s(sFXrd)}, {s(T[5])}
        s_add_u32 {s(sFXrd)}, {s(sFXrd)}, {FLG_X}
        s_lshl_b32 {s(sFOrd)}, {s(sRBO)}, 7
        s_lshl_b32 {s(T[5])}, {s(sJ)}, 2
        s_add_u32 {s(sFXwr)}, {s(sFOrd)}, {s(T[5])}
        s_add_u32 {s(sFXwr)}, {s(sFXwr)}, {FLG_X}
        s_mov_b32 {s(sONES)}, 0x3f803f80
        s_mov_b32 {s(sPERM)}, 0x07060302
        s_mov_b32 {s(sHI)}, 0xffff0000
        s_mov_b32 {s(sL2E)}, 0x3fb8aa3b
        s_mov_b32 {s(sL2E+1)}, 0x3fb8aa3b
        s_mov_b32 {s(sEPS6)}, 0x358637bd
        s_mov_b32 {s(sEPS6+1)}, 0x358637bd
        s_getreg_b32 {s(sXCC)}, hwreg(HW_REG_XCC_ID, 0, 3)
        s_lshl_b32 {s(sXCC)}, {s(sXCC)}, 2
        s_mov_b32 {s(sBUD)}, 100000
        ''')
        e(f'''
        v_add_lshl_u32 {v(vSTst)}, {v(vFl16)}, {v(vTM+1)}, 2
        v_lshrrev_b32 {v(t0)}, 3, {v(vLane)}
        v_lshlrev_b32 {v(t1)}, 1, {v(vTM+4)}
        v_xor_b32 {v(t1)}, {v(t1)}, {v(t2)}
        v_lshlrev_b32 {v(t1)}, 4, {v(t1)}
        v_lshl_add_u32 {v(vWOdma)}, {v(t0)}, 10, {v(t1)}
        v_add_u32 {v(vWOdma)}, {s(T[2])}, {v(vWOdma)}
        ''')
        e(f'''
        v_bfe_u32 {v(t0)}, {v(vLane)}, 2, 2
        v_lshl_add_u32 {v(t0)}, {v(vTM+1)}, 2, {v(t0)}
        v_lshlrev_b32 {v(t0)}, 6, {v(t0)}
        v_and_b32 {v(t1)}, 1, {v(vTM+4)}
        v_lshl_add_u32 {v(t0)}, {v(t1)}, 5, {v(t0)}
        v_and_b32 {v(t1)}, 1, {v(vLane)}
        v_lshl_add_u32 {v(t0)}, {v(t1)}, 4, {v(t0)}
        v_bfe_u32 {v(t1)}, {v(vLane)}, 1, 1
        v_lshl_add_u32 {v(t0)}, {v(t1)}, 3, {v(t0)}
        v_bfe_u32 {v(t1)}, {v(vLane)}, 1, 3
        v_lshlrev_b32 {v(t2)}, 1, {v(vTM+1)}
        v_xor_b32 {v(t1)}, {v(t1)}, {v(t2)}
        v_lshlrev_b32 {v(t1)}, 4, {v(t1)}
        v_lshl_add_u32 {v(t1)}, {v(vTM)}, 7, {v(t1)}
        s_lshl_b32 {s(T[4])}, {s(T[1])}, 11
        s_add_u32 {s(T[4])}, {s(T[4])}, {s(T[3])}
        v_bfe_u32 {v(t2)}, {v(vLane)}, 1, 3
        v_xor_b32 {v(t2)}, {v(t2)}, {v(vTM+1)}
        v_lshl_add_u32 {v(t2)}, {v(t2)}, 4, {s(T[4])}
        v_lshl_add_u32 {v(t2)}, {v(vFl16)}, 5, {v(t2)}
        v_and_b32 {v(vA0+5)}, 1, {v(vTM+4)}
        v_lshl_add_u32 {v(vA0+5)}, {v(vA0+5)}, 3, {v(t2)}
        v_add_u32 {v(t1)}, {s(sX0l)}, {v(t1)}
        s_lshl_b32 {s(T[4])}, {s(sW)}, 13
        v_add_u32 {v(vSVw)}, {s(T[4])}, {v(t0)}
        s_lshl2_add_u32 {s(T[5])}, {s(sW)}, {L_CS}
        v_lshl_add_u32 {v(vCSa)}, {v(vTM)}, 4, {s(T[5])}
        ''')
        for q in range(4):
            e(f'''
            s_xor_b32 {s(T[4])}, {s(sW)}, {q}
            s_lshr_b32 {s(T[5])}, {s(T[4])}, 1
            s_lshl_b32 {s(T[5])}, {s(T[5])}, 2
            s_and_b32 {s(T[4])}, {s(T[4])}, 1
            s_add_u32 {s(T[4])}, {s(T[4])}, {s(T[5])}
            s_lshl_b32 {s(T[5])}, {s(T[4])}, 9
            v_add_u32 {v(vWtr+q)}, {s(T[5])}, {v(t0)}
            s_lshl_b32 {s(T[5])}, {s(T[4])}, 4
            v_xor_b32 {v(vWPH+4+q)}, {s(T[5])}, {v(t1)}
            ''')
        if self.o.padp == -3: self.warm()
        e(f'''
        s_lshl_b32 {s(T[4])}, {s(sW)}, 9
        s_add_u32 {s(T[4])}, {s(T[4])}, {L_PK}
        v_lshl_add_u32 {v(t0)}, {v(vTM)}, 4, {s(T[4])}
        v_mul_u32_u24 {v(t1)}, {PL}, {v(vTM+1)}
        v_add_u32 {v(vPKwA)}, {v(t0)}, {v(t1)}
        v_lshl_add_u32 {v(vPKwB)}, {v(t1)}, 2, {v(t0)}
        v_bfe_u32 {v(t0)}, {v(vLane)}, 1, 1
        v_mul_u32_u24 {v(t0)}, {PL}, {v(t0)}
        v_lshrrev_b32 {v(t1)}, 2, {v(vLane)}
        v_lshl_add_u32 {v(t0)}, {v(t1)}, 4, {v(t0)}
        v_and_b32 {v(t1)}, 1, {v(vLane)}
        v_lshl_add_u32 {v(t0)}, {v(t1)}, 3, {v(t0)}
        s_mul_i32 {s(T[4])}, {s(sW)}, {2*PL}
        s_add_u32 {s(T[4])}, {s(T[4])}, {L_PK}
        v_add_u32 {v(vPKrB)}, {s(T[4])}, {v(t0)}
        s_mul_i32 {s(T[4])}, {s(T[0])}, {2*PL}
        s_add_u32 {s(T[4])}, {s(T[4])}, {L_PK}
        v_add_u32 {v(vPKrA)}, {s(T[4])}, {v(t0)}
        ''')
        e(f'''
        s_mul_i32 {s(T[4])}, {s(sW)}, 544
        s_add_u32 {s(T[4])}, {s(T[4])}, {L_KV}
        v_lshl_add_u32 {v(t0)}, {v(vFl16)}, 3, {s(T[4])}
        v_lshl_add_u32 {v(vKVw)}, {v(vTM+4)}, 3, {v(t0)}
        v_lshrrev_b32 {v(t0)}, 1, {v(vFl16)}
        v_add_u32 {v(vZw)}, {s(T[4])}, {v(t0)}
        v_min_u32 {v(t0)}, 16, {v(vTM)}
        v_lshlrev_b32 {v(t0)}, 5, {v(t0)}
        v_add_u32 {v(t0)}, {L_KV}, {v(t0)}
        v_lshl_add_u32 {v(vKVrA)}, {v(vTM+1)}, 4, {v(t0)}
        v_mul_u32_u24 {v(t1)}, 1088, {v(vTM+1)}
        v_add_u32 {v(vKVrB)}, {v(t0)}, {v(t1)}
        ''')
        e(f'''
        v_bfe_u32 {v(t0)}, {v(vLane)}, 2, 3
        v_lshlrev_b32 {v(t0)}, 7, {v(t0)}
        v_lshl_add_u32 {v(t0)}, {v(vTM+5)}, 3, {v(t0)}
        v_bfe_u32 {v(t1)}, {v(vLane)}, 3, 2
        v_lshl_add_u32 {v(t0)}, {v(t1)}, 5, {v(t0)}
        v_lshl_add_u32 {v(vWO)}, {v(vTM+1)}, 11, {v(t0)}
        v_lshlrev_b32 {v(t1)}, 5, {v(vTM+1)}
        v_xor_b32 {v(t0)}, {v(t0)}, {v(t1)}
        s_lshl_b32 {s(T[5])}, {s(sW)}, 11
        v_add_u32 {v(vSVo)}, {s(T[5])}, {v(t0)}
        ''')
        e(f'''
        v_and_b32 {v(t0)}, 1, {v(vLane)}
        v_lshlrev_b32 {v(t0)}, 4, {v(t0)}
        v_mov_b32 {v(t1)}, 0x3f80
        v_lshlrev_b32 {v(t0)}, {v(t0)}, {v(t1)}
        v_lshrrev_b32 {v(t1)}, 1, {v(vLane)}
        v_xor_b32 {v(t1)}, {v(t1)}, {v(vLane)}
        v_and_b32 {v(t1)}, 8, {v(t1)}
        v_bfe_u32 {v(t2)}, {v(vLane)}, 1, 2
        v_or_b32 {v(t1)}, {v(t1)}, {v(t2)}
        ''')
        for d in range(4):
            e(f'v_cmp_eq_u32 vcc, {d}, {v(t1)}\nv_cndmask_b32 {v(vSEL+d)}, 0, {v(t0)}, vcc')
        e(f'v_mov_b32 {v(vTM+4)}, {v(vA0+5)}')
        if self.o.padp == -2: self.warm()
        for n in range(self.o.c1early, 6): self.ct[1] = self.dma0(1, n, again=(n == self.o.c1early))
        if self.o.q0 > 1: self.dma0q(1)
        if self.o.dummy < 0:
            for i in range(5): self.dummy(i)
        for c in self.o.t2: self.touch(int(c, 16))
        if self.o.padp == -1: self.warm()
        e('s_branch L_main\n.p2align 12\nL_main:')
        self.stamp('setup')

    def big(self, acc, w, k, first):
        self.e(f'v_mfma_f32_32x32x16_bf16 {v(acc,16)}, {R(w[0],w[1],4)}, {v(vXF+4*k,4)}, {0 if first else v(acc,16)}')
    def own(self, item, n):
        if n == 0:
            prev = self.bayocc.get(BAY[item]); assert prev is None
            self.bayocc[BAY[item]] = item
        self.bgn['S' + item] = n + 1; self.bgt['S' + item] = 0; self.insave.add(item)
        return ('a', BAY[item]*32 + 4*n)
    def warm(self):
        if not self.o.pads: return
        e = self.e
        e(f's_mov_b64 exec, 0')
        for w in range(3): e(f's_cmp_eq_u32 {s(sW)}, {w}\ns_cbranch_scc1 L_pad{w}')
        e('s_branch L_pad3\nL_warm_done:\ns_mov_b64 exec, -1\ns_nop 3')
    def par_sel(self, dst):
        e = self.e
        e(f's_mov_b32 vcc_lo, 0xf0f00f0f\ns_mov_b32 vcc_hi, 0xf0f00f0f\nv_mov_b32 {v(dst+1)}, {s(sONES)}')
        e(f'v_cndmask_b32 {v(dst)}, 0, {v(dst+1)}, vcc')
        for i in (1, 2, 3): e(f'v_mov_b32 {v(dst+i)}, {v(dst)}')
    def rowsum(self, acc, sel, frag, first):
        self.e(f'v_mfma_f32_16x16x32_bf16 {acc}, {v(sel,4)}, {R(frag[0],frag[1],4)}, {0 if first else acc}')

    def kv_gemm0(self):
        e = self.e
        sel = vCS + 8
        self.par_sel(sel)
        aS, aK, aV = a(240, 4), a(244, 4), a(248, 4)
        wt = [None] * 32; xt = [None] * 32; wk = [None] * 32; wv = [None] * 32
        dl = []
        def dma(n):
            for _ in range(n):
                if dl:
                    P, i = dl.pop(0)
                    if P < 8: self.ct[P] = self.dma0(P, i)
                    elif P == 8: self.bgt['LQA'] = self.dma0q(i); self.bgn['LQA'] = i + 1
                    elif P == 9: self.touch(i)
                    elif P == 11: self.dummy(i)
                    elif P == 12: self.code_touch('a255')
                    elif P == 10: self.clr1 = self.clear_slot(1, vM1, vE1st, vZst)
        cK, cV = vCS + 2, vCS + 4
        sb = vWPH
        q0, q1 = vTM, vTM + 1
        dq = []
        sops = [f'v_accvgpr_read_b32 {v(sb)}, a240', f'v_add_f32 {v(sb+1)}, {v(q0)}, {v(q1)}', f'v_mov_b32 {v(sb+3)}, {v(sb+1)}',
                f'v_permlane32_swap_b32 {v(sb+1)}, {v(sb+3)}', f'v_add_f32 {v(sb+1)}, {v(sb+1)}, {v(sb+3)}'] + self.stats_tail(sb)
        if self.o.sdot:
            sops = [f'v_mov_b32 {v(sb+2)}, {v(q0)}\nv_mov_b32 {v(sb+3)}, {v(q1)}', f'v_permlane32_swap_b32 {v(q0)}, {v(sb+2)}', f'v_permlane32_swap_b32 {v(q1)}, {v(sb+3)}',
                    f'v_add_f32 {v(sb)}, {v(q0)}, {v(sb+2)}', f'v_add_f32 {v(sb+1)}, {v(q1)}, {v(sb+3)}'] + self.stats_tail(sb)
        def pop(n):
            for _ in range(n):
                if k >= 28 and sops: e(sops.pop(0))
        nq = self.o.q0
        touches = {int(x[0]): [int(c, 16) for c in x[1:]] for x in self.o.touch.split(',') if x}
        for k in range(-2, 32):
            if k + 2 < 32:
                nb = vWB + ((k + 2) % 3) * 8
                wk[k+2], wv[k+2] = (self.own('KA', (k+2) >> 2), self.own('VA', (k+2) >> 2)) if (k + 2) % 4 == 0 else (('v', nb), ('v', nb + 4))
            fr = [k + 1] if -1 <= k < 27 else ([28, 29, 30, 31] if k == 27 else [])
            bound = (k + 2) % 4 == 0 and k + 2 < 32
            if k >= 0:
                e.wait(lg=max(wt[k], xt[k]))
                if k % 4 == 0:
                    self.rowsum(aK, sel, wk[k], k == 0); self.rowsum(aV, sel, wv[k], k == 0)
                self.big(vA0, wk[k], k, k == 0)
            if bound:
                P = (k + 2) >> 2
                dma(99)
                if P == self.o.padp: self.warm()
                e.wait(vm=self.ct[P])
                e('s_barrier')
                if P == 0 or self.o.fine: self.stamp(f'chunk{P}')
                for q in range(4):
                    xt[4*P+q] = e(f'ds_read_b128 {v(vXF+16*P+4*q,4)}, {v(vWPH+4+q)} offset:{(P%3)*16384}')
                if P + 2 < 8: dl += [(P + 2, i) for i in range(6)]
                if P == self.o.clrp: dl += [(10, 0)]
                for _ in range(int(self.o.qs[P])):
                    dl += [(8, nq)]; nq += 1
                if P == 5 and self.o.ctouch & 4: dl += [(12, 0)]
                dl += [(9, i) for i in touches.get(P, [])]
                if P == 6 and self.o.tq: dl[1:1] = [(9, int(c)) for c in self.o.tq]
                if self.o.dummy == 7 and P == 7: dl += [(11, i) for i in range(4)]
                elif self.o.dummy > 0 and 0 <= P - self.o.dummy < 3: dl += [(11, i) for i in ((0, 1), (2, 3), (4,))[P - self.o.dummy]]
            else:
                dma(1)
            if k + 2 < 32: self.tr_w(wk[k+2], k + 2, 0)
            if k == 28:
                dma(99)
                cw = self.cs_write(['a244', 'a248'], [1, 2])
            pop(3 if k == 28 else 5)
            for f in fr:
                e.wait(lg=xt[f])
                if not self.o.sdot: self.rowsum(aS, sel, ('v', vXF + 4*f), f == 0)
            if k == 31:
                assert not sops
                e(f'v_mfma_f32_32x32x8_bf16 {v(vA1,16)}, {v(cV,2)}, {v(vMF,2)}, {v(vA1,16)}')
            if k >= 0:
                self.big(vA1, wv[k], k, k == 0)
            if -1 <= k < 31:
                for i in range(2): e(f'v_permlane32_swap_b32 {v(vXF+4*k+4+i)}, {v(vXF+4*k+6+i)}')
            if k + 2 < 32: wt[k + 2] = self.tr_w(wv[k+2], k + 2, SLOT)
            if bound:
                e(f's_cmp_lg_u32 {s(sRESP)}, {P}\ns_cbranch_scc1 L_nores{P}')
                for t in range(4):
                    if t: e(f'v_xor_b32 {v(vTM+4)}, {32*(t ^ (t-1))}, {v(vTM+4)}')
                    e.raw(f'ds_read_b64 {v(vRES+2*t,2)}, {v(vTM+4)} offset:{(P%3)*16384}')
                e(f'L_nores{P}:')
            dma(1)
            if k % 4 == 3 and k < 28 or k == -1:
                e.wait(lg=xt[k + 4])
                for f in range(k + 1, k + 5):
                    for i in range(4):
                        if self.o.sdot:
                            e(f'v_dot2_f32_bf16 {v(q0)}, {v(vXF+4*f+i)}, {s(sONES)}, {v(q0) if (f or i) else 0}')
                            e(f'v_dot2_f32_bf16 {v(q1)}, {v(vXF+4*f+i)}, {v(vXF+4*f+i)}, {v(q1) if (f or i) else 0}')
                        else: e(f'v_dot2_f32_bf16 {v((q0, q1)[i&1])}, {v(vXF+4*f+i)}, {v(vXF+4*f+i)}, {v((q0, q1)[i&1]) if (f or i > 1) else 0}')
            pop(5)
            if k == 4 * self.o.atp - 1:
                e(f'''
                s_cmp_lg_u32 {s(sW)}, 0
                s_cbranch_scc1 L_noat
                s_lshr_b32 {s(sT[5])}, {s(sG)}, 3
                s_lshl1_add_u32 {s(sT[5])}, {s(sR)}, {s(sT[5])}
                s_lshl_b32 {s(sT[5])}, {s(sT[5])}, 2
                s_lshl_b32 {s(sAT)}, 1, {s(sXCC)}
                s_atomic_add {s(sAT)}, {s(sDBG,2)}, {s(sT[5])}
                L_noat:
                ''')
            if k == 28:
                e.wait(lg=cw); e('s_barrier')
                self.dead.add((9, 'x'))
                if self.o.fine: self.stamp('g28')
                r1 = self.cs_read(1, vWPH + 4)
                r2 = self.cs_read(2, vCS + 8)
            self.k0 = k
            if k >= 2: self.bg(f'kv{k}')
            if k == 29:
                assert not sops
                e.wait(lg=r2)
                sops += self.cs_pack_ops(vWPH + 4, cK) + self.cs_pack_ops(vCS + 8, cV)
            if k == 30: e(f'v_mfma_f32_32x32x8_bf16 {v(vA0,16)}, {v(cK,2)}, {v(vMF,2)}, {v(vA0,16)}'); pop(5)
        assert not sops
        self.stamp('L0.kvgemm')

    def cs_write(self, acc, blk):
        tag = None
        for ac, b in zip(acc, blk):
            tag = self.e(f'ds_write_b32 {v(vCSa)}, {ac} offset:{b*512}')
        return tag
    def cs_read(self, blk, dst):
        self.e(f'v_and_b32 {v(dst)}, -16, {v(vCSa)}')
        return self.e(f'ds_read_b128 {v(dst,4)}, {v(dst)} offset:{blk*512}')
    def cs_pack_ops(self, src, out):
        return [f'v_add_f32 {v(src)}, {v(src)}, {v(src+2)}', f'v_add_f32 {v(src+1)}, {v(src+1)}, {v(src+3)}',
                f'v_add_f32 {v(src)}, {v(src)}, {v(src+1)}',
                f'v_and_b32 {v(src+1)}, {s(sHI)}, {v(src)}',
                f'v_sub_f32 {v(src+1)}, {v(src)}, {v(src+1)}',
                f'v_perm_b32 {v(out)}, {v(src+1)}, {v(src)}, {s(sPERM)}',
                f'v_and_b32 {v(src+2)}, {s(sHI)}, {v(src+1)}',
                f'v_sub_f32 {v(src+2)}, {v(src+1)}, {v(src+2)}',
                f'v_lshrrev_b32 {v(out+1)}, 16, {v(src+2)}']
    def cs_pack(self, src, out):
        for op in self.cs_pack_ops(src, out): self.e(op)

    def stats_ops(self, chk, par):
        b = vXF + 120; t = vTM
        p1 = []
        for i in range(2):
            if chk: p1 += [self.chk(chk, b+4*i, b+4*i+1, par, False), self.chk(chk, b+4*i+2, b+4*i+3, par, False)]
            p1 += [f'v_add_f32 {v(b+4*i+j)}, {v(b+4*i+j)}, {v(b+4*i+2+j)}' for j in range(2)]
        p1 += [f'v_add_f32 {v(t+j)}, {v(b+j)}, {v(b+4+j)}' for j in range(2)]
        p2 = [f'v_mov_b32 {v(t+2)}, {v(t)}', f'v_mov_b32 {v(t+3)}, {v(t+1)}',
              f'v_permlane32_swap_b32 {v(t)}, {v(t+2)}', f'v_permlane32_swap_b32 {v(t+1)}, {v(t+3)}',
              f'v_add_f32 {v(t)}, {v(t)}, {v(t+2)}', f'v_add_f32 {v(t+1)}, {v(t+1)}, {v(t+3)}']
        return p1, p2 + self.stats_tail(t)
    def stats_tail(self, b):
        ops = [
                f'v_mul_f32 {v(b)}, 0xbb000000, {v(b)}',
                f'v_mul_f32 {v(b+1)}, 0x3b000000, {v(b+1)}',
                f'v_fma_f32 {v(b+1)}, -{v(b)}, {v(b)}, {v(b+1)}',
                f'v_max_f32 {v(b+1)}, 0, {v(b+1)}',
                f'v_add_f32 {v(b+1)}, 0x3727c5ac, {v(b+1)}',
                f'v_rsq_f32 {v(vRS)}, {v(b+1)}',
                f'v_and_b32 {v(b+2)}, {s(sHI)}, {v(b)}',
                f'v_sub_f32 {v(b+2)}, {v(b)}, {v(b+2)}',
                f's_mov_b64 vcc, 0xffffffff',
                f'v_mul_f32 {v(vRS+1)}, {s(sL2E)}, {v(vRS)}',
                f'v_cndmask_b32 {v(b)}, {v(b+2)}, {v(b)}, vcc',
                f'v_perm_b32 {v(vMF)}, {v(b)}, {v(b)}, {s(sPERM)}',
                f'v_lshrrev_b32 {v(vMF+1)}, 16, {v(b)}']
        return ops

    def tr_w(self, dst, ks, extra):
        e = self.e; kind, r = dst
        if self.l >= 2: return e(f'ds_read_b128 {R(kind,r,4)}, {v(vWtr)} offset:{ks*1024 + extra}')
        if self.l == 0: ad, off = vWtr + (ks & 3), (ks >> 2) * 4096 + extra
        else:
            if ks >> 3 != self.wq: e(f'v_xor_b32 {v(vWtr)}, {((ks >> 3) ^ self.wq) * 8192}, {v(vWtr)}'); self.wq = ks >> 3
            ad, off = vWtr, ((ks & 7) >> 1) * 2048 + (ks & 1) * 512 + extra
        e(f'ds_read_b64_tr_b16 {R(kind,r,2)}, {v(ad)} offset:{off}')
        return e(f'ds_read_b64_tr_b16 {R(kind,r+2,2)}, {v(ad)} offset:{off + 1024}')

    def kv_gemm(self, l):
        e = self.e; typ = l & 1; first = l == 1
        chk = vTM + 4; par = (l - 1) & 1
        cK, cV = vCS + typ*6 + 2, vCS + typ*6 + 4
        xt = [None] * 32; wt = [None] * 32
        wk = [self.own('KB', k) if first and k < 8 else ('v', vWB + (k % 3)*8) for k in range(32)]
        wv = [self.own('VB', k) if first and k < 8 else ('v', vWB + (k % 3)*8 + 4) for k in range(32)]
        def xload(e, k):
            if k % 4 == 0: e(f's_xor_b32 {s(sT[0])}, {s(sT[2])}, {k*1024}')
            xt[k] = e(f'buffer_load_dwordx4 {v(vXF+4*k,4)}, {v(vL16)}, {s(sWS,4)}, {s(sT[0])} offen offset:{(k&3)*1024} sc1')
        PRE = self.o.xpre; SP = self.o.spx if l > 1 else 0
        sel = vCS + 8; aK, aV = a(192, 4), a(196, 4)
        def init():
            for k in range(2):
                self.tr_w(wk[k], k, 0)
                wt[k] = self.tr_w(wv[k], k, SLOT)
        def shadow():
            self.l = l - 1
            if self.late_stats: self.late_stats()
            self.bg('yp')
            self.need('KV', l)
            if l == 2: e.wait_all_lg()
            e('s_barrier')
            self.free('ab')
            self.bg('y1')
            self.l = l
            init()
            if first: self.par_sel(sel)
            self.bg('kvsh')
        self.hop(f'x{l}', sFXrd, l + 1, vTM + 5, xload, SP, shadow, init)
        if first: self.in_redo = False
        self.stamp(f'L{l-1}.poll3')
        for k in range(SP, PRE): xload(e, k)
        nx = PRE
        self.bg('kvpre')
        stt = None
        p1, p2 = self.stats_ops(None if first else chk, par)
        p0 = []
        EX = self.o.xextra if first else 0
        SL = self.o.stat_at; S0 = SL + 2 + PRE + EX
        def pop(n):
            for _ in range(n):
                if p0: e(p0.pop(0))
                elif k < S0: pass
                elif p1: e(p1.pop(0))
                elif p2: e(p2.pop(0))
        corr = False; cs = [(x, n) for n in range(8) for x in (0, 1)] if first else []
        CB = 99
        for k in range(32):
            e.wait(vm=xt[k], lg=wt[k])
            if k == 0: self.stamp(f'L{l}.x0')
            for _ in range(self.o.csrate):
                if cs and cs[0][1] <= k:
                    x, n = cs.pop(0)
                    self.rowsum((aK, aV)[x], sel, (wk, wv)[x][n], n == 0)
                    if not cs: CB = k + 1
            self.big(vA0, wk[k], k, k == 0)
            for _ in range(2 if (k % 2 == 1 and k < 2 * EX) else 1):
                if nx < 32:
                    if nx == 30:
                        assert k >= S0
                        while p1: e(p1.pop(0))
                    xload(e, nx); nx += 1
            if k + 2 < 32: self.tr_w(wk[k+2], k + 2, 0)
            if k == S0: e.wait(vm=stt)
            pop(1 if first else 2)
            self.bg(f'kv{k}')
            self.big(vA1, wv[k], k, k == 0)
            if SL <= k < SL + 2:
                stt = e(f'buffer_load_dwordx4 {v(vXF+120+4*(k-SL),4)}, {v(vL16)}, {s(sWS,4)}, {s(sSTrd)} offen offset:{(k-SL)*1024} sc1')
            if k == CB: cw = self.cs_write(['a192', 'a196'], [1, 2])
            if k + 2 < 32: wt[k + 2] = self.tr_w(wv[k+2], k + 2, SLOT)
            if k == CB + 1:
                e.wait(lg=cw); e('s_barrier')
                r1 = self.cs_read(1, vTM + 4)
            if k == CB + 3:
                e.wait(lg=r1); p0 += self.cs_pack_ops(vTM + 4, cK)
            if k == CB + 6:
                while p0: e(p0.pop(0))
                r2 = self.cs_read(2, vTM + 4)
            if k == CB + 8:
                e.wait(lg=r2); p0 += self.cs_pack_ops(vTM + 4, cV)
            if l > 1 and k % 2 == 1:
                e(self.chk(chk, vXF+4*k-4, vXF+4*k, par, k == 1))
                if k <= SP or k in self.o.echk: self.chk_end(chk, par, f'x{l}', vTM + 5)
            self.bg(f'kv{k}b')
            if not corr and not p0 and not p1 and not p2 and (not first or k > CB + 8):
                corr = True
                e(f'v_mfma_f32_32x32x8_bf16 {v(vA0,16)}, {v(cK,2)}, {v(vMF,2)}, {v(vA0,16)}')
                e(f'v_mfma_f32_32x32x8_bf16 {v(vA1,16)}, {v(cV,2)}, {v(vMF,2)}, {v(vA1,16)}')
            pop(2)
        assert corr
        if not first: self.chk_end(chk, par, f'x{l}')
        self.in_redo = False
        self.bg('kvend')
        self.stamp(f'L{l}.kvgemm')

    def scale_pack(self, acc, out, mid=None):
        e = self.e
        if mid:
            for i in range(16):
                e(f'v_mul_f32 {v(acc+i)}, {v(vRS)}, {v(acc+i)}')
                if i == 3: mid()
        else:
            for i in range(8):
                e(f'v_pk_mul_f32 {v(acc+2*i,2)}, {v(acc+2*i,2)}, {v(vRS,2)} op_sel_hi:[1,0]')
        for i in range(8):
            e(f'v_cvt_pk_bf16_f32 {v(out+i)}, {v(acc+2*i)}, {v(acc+2*i+1)}')
    def phi_a(self, acc, tmp, out, tag, after=None):
        e = self.e
        for hh in range(2):
            r = range(4*hh, 4*hh+4)
            for i in r: e(f'v_pk_mul_f32 {v(tmp+2*i,2)}, {v(acc+2*i,2)}, {v(vRS,2)} op_sel:[0,1] op_sel_hi:[1,1]')
            for i in r:
                e(f'v_exp_f32_e64 {v(tmp+2*i)}, {v(tmp+2*i)} clamp')
                e(f'v_exp_f32_e64 {v(tmp+2*i+1)}, {v(tmp+2*i+1)} clamp')
            self.bg(f'{tag}{2*hh}')
            for i in r: e(f'v_pk_fma_f32 {v(acc+2*i,2)}, {v(acc+2*i,2)}, {v(vRS,2)}, 1.0 op_sel_hi:[1,0,0]')
            for i in r:
                e(f'v_max_f32 {v(acc+2*i)}, {v(acc+2*i)}, {v(tmp+2*i)}')
                e(f'v_max_f32 {v(acc+2*i+1)}, {v(acc+2*i+1)}, {v(tmp+2*i+1)}')
            for i in r: e(f'v_pk_add_f32 {v(acc+2*i,2)}, {v(acc+2*i,2)}, {s(sEPS6,2)}')
            for i in r: e(f'v_cvt_pk_bf16_f32 {v(out+i)}, {v(acc+2*i)}, {v(acc+2*i+1)}')
            if after: after(hh)
            self.bg(f'{tag}{2*hh+1}')
    def softmax16(self, p, tm, out, tag, mid=None, wr=(), wlast=None):
        wr = list(wr)
        e = self.e
        e(f'v_max3_f32 {v(tm)}, {v(p)}, {v(p+1)}, {v(p+2)}')
        e(f'v_max3_f32 {v(tm+1)}, {v(p+3)}, {v(p+4)}, {v(p+5)}')
        if mid: mid()
        e(f'v_max3_f32 {v(tm)}, {v(tm)}, {v(p+6)}, {v(p+7)}')
        e(f'v_max3_f32 {v(tm+1)}, {v(tm+1)}, {v(p+8)}, {v(p+9)}')
        e(f'v_max3_f32 {v(tm)}, {v(tm)}, {v(p+10)}, {v(p+11)}')
        e(f'v_max3_f32 {v(tm+1)}, {v(tm+1)}, {v(p+12)}, {v(p+13)}')
        e(f'v_max3_f32 {v(tm)}, {v(tm)}, {v(p+14)}, {v(p+15)}')
        e(f'v_max_f32 {v(tm)}, {v(tm)}, {v(tm+1)}')
        e(f'v_mul_f32 {v(tm)}, {v(vRS+1)}, {v(tm)}')
        for i in range(8):
            e(f'v_pk_fma_f32 {v(p+2*i,2)}, {v(p+2*i,2)}, {v(vRS,2)}, {v(tm,2)} op_sel:[0,1,0] op_sel_hi:[1,1,0] neg_lo:[0,0,1] neg_hi:[0,0,1]')
        self.bg(tag + 'a')
        for i in range(16):
            e(f'v_exp_f32 {v(p+i)}, {v(p+i)}')
            if i in (3, 11) and wr: e(wr.pop(0))
            if i == 7: self.bg(tag + 'b')
        self.bg(tag + 'c')
        for i in range(4): e(f'v_pk_add_f32 {v(tm+2*i,2)}, {v(p+4*i,2)}, {v(p+4*i+2,2)}')
        e(f'v_pk_add_f32 {v(tm,2)}, {v(tm,2)}, {v(tm+2,2)}')
        e(f'v_pk_add_f32 {v(tm+4,2)}, {v(tm+4,2)}, {v(tm+6,2)}')
        e(f'v_pk_add_f32 {v(tm,2)}, {v(tm,2)}, {v(tm+4,2)}')
        e(f'v_add_f32 {v(tm)}, {v(tm)}, {v(tm+1)}')
        e(f'v_rcp_f32 {v(tm)}, {v(tm)}')
        self.bg(tag + 'd')
        if wlast:
            for h in range(2):
                for i in range(4*h, 4*h+4): e(f'v_pk_mul_f32 {v(p+2*i,2)}, {v(p+2*i,2)}, {v(tm,2)} op_sel_hi:[1,0]')
                for i in range(4*h, 4*h+4): e(f'v_cvt_pk_bf16_f32 {v(out+i)}, {v(p+2*i)}, {v(p+2*i+1)}')
                e(wlast[h])
            return
        for i in range(8): e(f'v_pk_mul_f32 {v(p+2*i,2)}, {v(p+2*i,2)}, {v(tm,2)} op_sel_hi:[1,0]')
        for i in range(8): e(f'v_cvt_pk_bf16_f32 {v(out+i)}, {v(p+2*i)}, {v(p+2*i+1)}')

    def kv_epilogue(self, l):
        e = self.e; typ = l & 1
        self.dump(f'L{l}.kv', [v(vA0+i) for i in range(32)] + [v(vRS)])
        self.set_wtr(SLOTS[l]['Q'], l)
        e(f's_add_u32 {s(sT[0])}, {s(sKVwrB)}, {l*0x80000}\ns_add_u32 {s(sT[1])}, {s(sZwrB)}, {l*0x10000}')
        if typ == 0:
            def wr(hh): e(f'ds_write_b128 {v(vPKwA)}, {v(vTM+4*hh,4)} offset:{2*hh*PL}')
            self.phi_a(vA0, vWB, vTM, 'ek', wr)
            for h in range(2):
                for i in range(4*h, 4*h+4): e(f'v_pk_mul_f32 {v(vA1+2*i,2)}, {v(vA1+2*i,2)}, {v(vRS,2)} op_sel_hi:[1,0]')
                for i in range(4*h, 4*h+4): e(f'v_cvt_pk_bf16_f32 {v(vA1+i)}, {v(vA1+2*i)}, {v(vA1+2*i+1)}')
                if self.o.defw: e(f'ds_write_b128 {v(vPKwA)}, {v(vA1+4*h,4)} offset:{(8+2*h)*PL}')
            if not self.o.defw:
                for h in range(2): e(f'ds_write_b128 {v(vPKwA)}, {v(vA1+4*h,4)} offset:{(8+2*h)*PL}')
        else:
            for i in range(8):
                e(f'v_cvt_pk_bf16_f32 {v(vTM+i)}, {v(vA0+2*i)}, {v(vA0+2*i+1)}')
                if i == 5: e(f'v_mfma_f32_32x32x16_bf16 {v(vWB,16)}, {v(vWPH,4)}, {v(vTM,4)}, 0')
            self.bg('es0')
            self.scale_pack(vA1, vA1, lambda: e(f'v_mfma_f32_32x32x16_bf16 {v(vA0,16)}, {v(vWPH+4,4)}, {v(vTM+4,4)}, 0'))
            wv = [f'ds_write_b128 {v(vPKwA)}, {v(vA1,4)} offset:{8*PL}', f'ds_write_b128 {v(vPKwA)}, {v(vA1+4,4)} offset:{10*PL}']
            wp = lambda hh, p: [f'ds_write_b128 {v(vPKwB)}, {v(p,4)} offset:{(2*hh)*PL}', f'ds_write_b128 {v(vPKwB)}, {v(p+4,4)} offset:{(2*hh+1)*PL}']
            if self.o.defw:
                self.bg('es1')
                self.softmax16(vWB, vTM, vWB, 'ek0', wr=wv)
                self.softmax16(vA0, vTM, vA0, 'ek1', wr=wp(0, vWB), wlast=wp(1, vA0))
            else:
                for x in wv: e(x)
                self.bg('es1')
                for hh, p in ((0, vWB), (1, vA0)):
                    self.softmax16(p, vTM, p, f'ek{hh}')
                    for x in wp(hh, p): e(x)
        ones = vTM + 4
        for i in range(4): e(f'v_mov_b32 {v(ones+i)}, {s(sONES)}')
        if l == 0: e.wait(vm=self.clr1)
        late = self.o.lateq[l]
        if not late: self.need('Q')
        e.wait_all_lg()
        e('s_barrier')
        self.free('KV')
        self.stamp(f'L{l}.B1')
        pr = vPKrA if typ == 0 else vPKrB
        tags = []
        for st in range(4):
            e(f'ds_read_b64_tr_b16 {v(vA0+4*st,2)}, {v(pr)} offset:{st*512}')
            e(f'ds_read_b64_tr_b16 {v(vA0+4*st+2,2)}, {v(pr)} offset:{st*512+256}')
            e(f'ds_read_b64_tr_b16 {v(vA1+4*st,2)}, {v(vPKrA)} offset:{8*PL+st*512}')
            tags.append(e(f'ds_read_b64_tr_b16 {v(vA1+4*st+2,2)}, {v(vPKrA)} offset:{8*PL+st*512+256}'))
        ak, az = self.e1_addr(l, vTM + 2)
        self.bg('b1')
        ckv, cz = vWB + 16, vWB + 20
        self.qwt = [None] * 32
        self.qord = [k for k in range(0, 32, 4)] + [k for k in range(32) if k % 4] if l == 0 else list(range(32))
        self.qw = [self.own('Q' + 'AB'[typ], p) if l < 2 and p < 8 else ('v', vWB + (p % 6)*4) for p in range(32)]
        for st in range(4):
            e.wait(lg=tags[st])
            e(f'v_mfma_f32_16x16x32_bf16 {v(ckv,4)}, {v(vA0+4*st,4)}, {v(vA1+4*st,4)}, {v(ckv,4) if st else 0}')
            e(f'v_mfma_f32_16x16x32_bf16 {v(cz,4)}, {v(ones,4)}, {v(vA0+4*st,4)}, {v(cz,4) if st else 0}')
            if not late: self.qwt[st] = self.tr_w(self.qw[st], self.qord[st], 0)
        def tail():
            e(f'v_cvt_pk_bf16_f32 {v(vTM)}, {v(ckv)}, {v(ckv+1)}\nv_cvt_pk_bf16_f32 {v(vTM+1)}, {v(ckv+2)}, {v(ckv+3)}')
            e(f'v_min_u32 {v(vTM)}, -2, {v(vTM)}\nv_min_u32 {v(vTM+1)}, -2, {v(vTM+1)}')
            e(f'buffer_store_dwordx2 {v(vTM,2)}, {v(ak)}, {s(sWS,4)}, {s(sT[0])} offen sc1')
            e(f'v_min_u32 {v(vTM+4)}, -2, {v(cz)}')
            e(f'buffer_store_dword {v(vTM+4)}, {v(az)}, {s(sWS,4)}, {s(sT[1])} offen sc1')
            self.stamp(f'L{l}.pub1')
            if late:
                self.need('Q'); e('s_barrier')
                for st in range(4): self.qwt[st] = self.tr_w(self.qw[st], self.qord[st], 0)
        self.pub_tail = tail
        self.clr_next = (lambda: self.clear_slot(l + 2, vTM + 4, ak, az)) if l < 2 else None

    def e1_ops(self, e, l, tags, each=False):
        typ = l & 1
        nk, nz = (4, 2) if typ == 0 else (8, 4)
        sk, sz = (sKVrdA, sZrdA) if typ == 0 else (sKVrdB, sZrdB)
        ops = []
        def zl(t):
            if t == 0 or each: e(f's_add_u32 {s(sT[1])}, {s(sz)}, {l*0x10000}')
            tags['z'] = e(f'buffer_load_dword {v(vXF+32+t)}, {v(vL4)}, {s(sWS,4)}, {s(sT[1])} offen offset:{t*256} sc1')
        def kl(p):
            if p % 4 == 0 or each: e(f's_add_u32 {s(sT[0])}, {s(sk)}, {l*0x80000 + (p & ~3)*1024}')
            tags[p] = e(f'buffer_load_dwordx4 {v(vXF+4*p,4)}, {v(vL16)}, {s(sWS,4)}, {s(sT[0])} offen offset:{(p&3)*1024} sc1')
        return [lambda t=t: zl(t) for t in range(nz)] + [lambda p=p: kl(p) for p in range(nk)]

    def q_phase(self, l):
        e = self.e; typ = l & 1; first = l < 2
        wt = self.qwt
        def wread(k): wt[k] = self.tr_w(self.qw[k], self.qord[k], 0)
        sel, aQ = vA1 + 8, v(vA1 + 12, 4)
        assert self.o.e1at[l] >= (16 if l == 0 else 10)
        cQ = vCS + typ * 6
        st = 0; pk = []
        E1AT = self.o.e1at[l]
        kt = {}
        e1 = self.e1_ops(e, l, kt)
        if self.o.ctouch & 1 and l < 3: e1.insert(0, lambda: self.code_touch(v(vXF + 36)))
        def recheck():
            assert not e1
            e.wait(vm=kt['z'])
            nz = 2 << typ; z = vXF + 32; tz = vXF + 37
            e(f's_mov_b32 {s(sAT)}, 0')
            if nz == 4: e(f'v_max3_u32 {v(tz)}, {v(z)}, {v(z+1)}, {v(z+2)}\nv_max_u32 {v(tz)}, {v(tz)}, {v(z+3)}')
            else: e(f'v_max_u32 {v(tz)}, {v(z)}, {v(z+1)}')
            e(f'v_cmp_eq_u32 vcc, -1, {v(tz)}\ns_cbranch_vccnz L_e1k{l}\nL_e1kj{l}:')
            t_ = Asm(); ops = self.e1_ops(t_, l, {}, True)
            t_(f'L_e1k{l}:\ns_mov_b32 {s(sAT)}, 1')
            for t in range(nz):
                t_(f'v_cmp_eq_u32 vcc, -1, {v(z+t)}\ns_cbranch_vccz L_e1k{l}_{t}')
                ops[t](); ops[nz + 2*t](); ops[nz + 2*t + 1]()
                t_(f'L_e1k{l}_{t}:')
            t_(f's_branch L_e1kj{l}')
            self.tail.append(t_)
            self.e1chk = None; self.rechecked = True
        self.rechecked = False
        self.e1chk = recheck if self.o.e1chk[l] else None
        if not first:
            e(f'v_mfma_f32_32x32x8_bf16 {v(vA0,16)}, {v(cQ,2)}, {v(vMF,2)}, 0')
            if self.o.ptail == 0: self.pub_tail()
        elif self.o.ptail == 0: self.pub_tail()
        for k in range(32):
            if k % 2 == 0: e.wait(lg=wt[k + 1] if k else wt[0])
            if k == 1: e.wait(lg=wt[1])
            if first and 2 <= k < 10: self.rowsum(aQ, sel, self.qw[k - 2], k == 2)
            self.big(vA0, self.qw[k], self.qord[k], first and k == 0)
            if first and k == 0: self.par_sel(sel)
            if k == 0 and self.o.ptail: self.pub_tail()
            if k + 4 < 32: wread(k + 4)
            if k == 1 and self.clr_next: self.clr_next()
            if k == 2 and l == 0:
                e(f'v_and_b32 {v(vTM+3)}, 0x7c, {v(vL4)}')
                dbt = e(f'buffer_load_dword {v(vTM+2)}, {v(vTM+3)}, {s(sDBG,4)}, 0 offen sc1')
            if k == 3 and l == 0:
                for c in self.o.tw: self.touch(int(c, 16))
            if k == E1AT and l == 0:
                e.wait(vm=dbt)
                e(f's_mov_b32 {s(sT[2])}, 0x11111111')
                e('L_all_chk:')
                e(f'v_dot8_u32_u4 {v(vTM+1)}, {v(vTM+2)}, {s(sT[2])}, 0')
                e(f's_lshl_b32 {s(sT[3])}, 8, {s(sXCC)}')
                e(f'v_cmp_ne_u32 vcc, 8, {v(vTM+1)}\ns_cbranch_vccnz L_all_retry')
                e(f'v_cmp_ne_u32 vcc, {s(sT[3])}, {v(vTM+2)}\ns_lshl_b32 {s(sT[3])}, {s(sR)}, 1')
                e(f's_lshr_b32 {s(sMODE)}, vcc_lo, {s(sT[3])}\ns_and_b32 {s(sMODE)}, {s(sMODE)}, 3')
                if self.o.force_safe: e(f's_or_b32 {s(sMODE)}, {s(sMODE)}, 1')
                e(f's_cselect_b32 {s(sSTR)}, {EXSTRIDE}, 0')
                if self.o.xout:
                    e(f's_cselect_b64 {s(sX,2)}, {s(sWS,2)}, {s(sOUT,2)}\ns_cselect_b32 {s(sX+2)}, {s(sWS+2)}, {s(sOUT+2)}\ns_cselect_b32 {s(sT[3])}, 0, {XB}')
                    for r in (sXrd, sXwr): e(f's_sub_u32 {s(r)}, {s(r)}, {s(sT[3])}')
                e(f's_cselect_b32 {s(sT[3])}, 0x4000, 0\ns_add_u32 {s(sFOe)}, {s(sFOwr)}, {s(sT[3])}\ns_add_u32 {s(sFXe)}, {s(sFXwr)}, {s(sT[3])}')
                for r in (sOrd, sOwr): e(f's_add_u32 {s(r)}, {s(r)}, {s(sSTR)}')
                t = Asm()
                t(f'L_all_retry:\nbuffer_load_dword {v(vTM+2)}, {v(vTM+3)}, {s(sDBG,4)}, 0 offen sc1')
                t(f's_sub_u32 {s(sBUD)}, {s(sBUD)}, 1\ns_cbranch_scc1 L_fail\ns_waitcnt vmcnt(0)\ns_branch L_all_chk')
                self.tail.append(t)
                e1 += [lambda: e(f'buffer_load_dword a255, {v(vFl16)}, {s(sWS,4)}, {s(sFOrd)} offen sc1'),
                       lambda: e(f'buffer_load_dword a255, {v(vFl16)}, {s(sWS,4)}, {s(sFXrd)} offen sc1'),
                       lambda: (setattr(self, 'm0own', None), e(f's_mov_b32 m0, {L_WP}\ns_lshl_b32 {s(sT[4])}, {s(sG)}, 10\nbuffer_load_dwordx4 {v(vL16)}, {s(sWP,4)}, {s(sT[4])} offen lds'))]
                e1 += [lambda c=c: self.touch(int(c, 16)) for c in self.o.te]
            if k >= E1AT:
                for _ in range(self.o.e1rate if k < 31 else 99):
                    if e1: e1.pop(0)()
            self.bg(f'q{k}')
            if l == 3 and self.o.clean & 1 and k in (2, 4):
                e(f'buffer_store_dwordx4 {v(vRES+2*(k-2),4)}, {v(vL16)}, {s(sWS,4)}, {s(sXwr)} offen offset:{(k-2)*512} sc1')
            if first:
                if st == 0 and k == 11: cw = self.cs_write([v(vA1 + 12)], [0]); st = 1; k1 = k + 2
                elif st == 1 and k == k1:
                    e.wait(lg=cw); e('s_barrier')
                    r0 = self.cs_read(0, vA1); st = 2; k1 = k + 3
                elif st == 2 and k == k1:
                    e.wait(lg=r0); pk = self.cs_pack_ops(vA1, cQ); st = 3
                elif st == 3 and not pk:
                    e(f'v_mfma_f32_32x32x8_bf16 {v(vA0,16)}, {v(cQ,2)}, {v(vMF,2)}, {v(vA0,16)}'); st = 4
                for _ in range(2):
                    if pk: e(pk.pop(0))
        assert st == 4 or not first
        zt = kt['z']
        self.stamp(f'L{l}.qgemm')
        self.dump(f'L{l}.q', [v(vA0+i) for i in range(16)])
        PQ = vXF + 64
        if typ == 0:
            self.phi_a(vA0, vWB, PQ, 'eq')
        else:
            for i in range(8):
                e(f'v_cvt_pk_bf16_f32 {v(vTM+i)}, {v(vA0+2*i)}, {v(vA0+2*i+1)}')
                if i == 5: e(f'v_mfma_f32_32x32x16_bf16 {v(vA1,16)}, {v(vWPH,4)}, {v(vTM,4)}, 0')
            n0 = len(e.ins)
            self.bg('eqs')
            if len(e.ins) - n0 < 4: e(f's_nop {3 - (len(e.ins) - n0)}')
            e(f'v_mfma_f32_32x32x16_bf16 {v(vA0,16)}, {v(vWPH+4,4)}, {v(vTM+4,4)}, 0')
            self.softmax16(vA1, vWB, PQ, 'eq0')
            self.softmax16(vA0, vWB, PQ + 8, 'eq1')
        self.stamp(f'L{l}.phiq')
        nk, nz = (4, 2) if typ == 0 else (8, 4)
        C = vWB; mx = vTM; z = vXF + 32
        assert self.e1chk is None
        if self.rechecked: e(f's_cmp_lg_u32 {s(sAT)}, 0\ns_cbranch_scc1 L_e1w{l}')
        if self.o.e1inl: e(f's_branch L_e1c{l}')
        t = Asm()
        t(f'L_e1r{l}:')
        ops = self.e1_ops(t, l, {}, True)
        for op in ops[:nz]: op()
        for p in range(nk):
            b = vXF + 4*p
            t(f'v_max3_u32 {v(mx)}, {v(b)}, {v(b+1)}, {v(b+2)}\nv_max_u32 {v(mx)}, {v(mx)}, {v(b+3)}\nv_cmp_eq_u32 vcc, -1, {v(mx)}\ns_cbranch_vccz L_e1s{l}_{p}')
            ops[nz + p]()
            t(f'L_e1s{l}_{p}:')
        t(f's_sub_u32 {s(sBUD)}, {s(sBUD)}, 1\ns_cbranch_scc1 L_fail\nL_e1w{l}:\ns_waitcnt vmcnt(0)')
        if self.o.e1inl: e.ins += t.ins
        else:
            t(f's_branch L_e1c{l}'); self.tail.append(t)
        e(f'L_e1c{l}:')
        e.wait(vm=zt)
        if nz == 2:
            e(f'v_max_u32 {v(mx)}, {v(z)}, {v(z+1)}\nv_add_f32 {v(z)}, {v(z)}, {v(z+1)}')
        else:
            e(f'v_max3_u32 {v(mx)}, {v(z)}, {v(z+1)}, {v(z+2)}\nv_max_u32 {v(mx)}, {v(mx)}, {v(z+3)}')
            e(f'v_pk_add_f32 {v(z,2)}, {v(z,2)}, {v(z+2,2)}\nv_add_f32 {v(z)}, {v(z)}, {v(z+1)}')
        zops = [f'v_mov_b32 {v(z+1)}, {v(z)}', f'v_permlane16_swap_b32 {v(z)}, {v(z+1)}', f'v_add_f32 {v(z)}, {v(z)}, {v(z+1)}',
                f'v_mov_b32 {v(z+1)}, {v(z)}', f'v_permlane32_swap_b32 {v(z)}, {v(z+1)}', f'v_add_f32 {v(z)}, {v(z)}, {v(z+1)}',
                f'v_cvt_pk_bf16_f32 {v(z)}, {v(z)}, {v(z)}', f'ds_write_b16 {v(vZw)}, {v(z)} offset:512']
        e(zops.pop(0))
        for p in range(nk):
            e.wait(vm=kt[p])
            b = vXF + 4*p
            e(f'v_mfma_f32_16x16x32_bf16 {v(C,4)}, {v(vSEL,4)}, {v(b,4)}, {v(C,4) if p else 0}')
            e(f'v_max3_u32 {v(mx)}, {v(mx)}, {v(b)}, {v(b+1)}\nv_max3_u32 {v(mx)}, {v(mx)}, {v(b+2)}, {v(b+3)}')
            if p == 0:
                for _ in range(3): e(zops.pop(0))
        e(f'v_cmp_eq_u32 vcc, -1, {v(mx)}\ns_cbranch_vccnz L_e1r{l}')
        for op in zops: e(op)
        self.stamp(f'L{l}.e1')
        e(f'v_cvt_pk_bf16_f32 {v(vTM)}, {v(C)}, {v(C+1)}\nv_cvt_pk_bf16_f32 {v(vTM+1)}, {v(C+2)}, {v(C+3)}')
        e(f'ds_write_b64 {v(vKVw)}, {v(vTM,2)}')
        self.bg('o0')
        if not self.o.lateb[l]: self.need('ab')
        e.wait_all_lg()
        e('s_barrier')
        self.free('Q')
        KF = vWB + 8
        kr = vKVrA if typ == 0 else vKVrB
        tg = []
        for hh in range(2):
            for u in range(2):
                off = (2*u + hh) * 544 if typ == 0 else hh * 544 + u * 16
                tg.append(e(f'ds_read_b128 {v(KF + 4*(2*hh+u),4)}, {v(kr)} offset:{off}'))
        self.bg('o1')
        keep = self.e; self.e = fill = Asm()
        if l < 3: self.set_wtr(SLOTS[l+1]['K'], l + 1)
        self.e = keep
        fill(f'v_mov_b32 {v(vWB)}, {l+1}')
        ad = vTM + 4; sa, sb = SLOTS[l]['a'] * SLOT, SLOTS[l]['b'] * SLOT
        if l > 1:
            if l == 2: fill(f'v_lshrrev_b32 {v(vWO)}, 7, {v(vL4)}\nv_mul_u32_u24 {v(vWO)}, 1536, {v(vWO)}\nv_add_u32 {v(vWO)}, {v(vWO)}, {v(vL16)}')
            fill(f'v_add_u32 {v(ad)}, {sa}, {v(vWO)}\nv_add_u32 {v(ad+1)}, {sb}, {v(vWO)}')
        else:
            fill(f'v_add_u32 {v(ad)}, {sa}, {v(vWO)}')
            for t in (1, 2, 3): fill(f'v_xor_b32 {v(ad+t)}, {32*t}, {v(ad)}')
        if l == 0:
            fill(f'''
            v_lshrrev_b32 {v(vTM)}, 6, {v(vL4)}
            v_lshl_add_u32 {v(vXst)}, {v(vTM)}, 8, {v(vL16)}
            v_and_b32 {v(vTM)}, 1, {v(vTM)}
            v_lshrrev_b32 {v(vTM+1)}, 7, {v(vL4)}
            v_lshl_add_u32 {v(vTM)}, {v(vTM)}, 2, {v(vTM+1)}
            v_lshlrev_b32 {v(vTM+1)}, 2, {v(vFl16)}
            v_lshl_add_u32 {v(vOst)}, {v(vTM)}, 8, {v(vTM+1)}
            ''')
        fl = list(fill.ins)
        if self.o.ofill:
            gaps = max(0, (self.o.ofill - len(fl)) // 4)
            per = -(-len(fl) // (gaps + 1))
            while fl:
                e.ins += fl[:per]; fl = fl[per:]
                if fl: e('s_nop 3')
            fl = [Ins('s_nop 0') for _ in range(9)]
        else:
            while len(fl) > 10: e.ins.append(fl.pop(0))
            while len(fl) < 9: fl.append(Ins('s_nop 0'))
        for hh in range(2):
            acc = (vA0, vA1)[hh]
            for u in range(2):
                e.wait(lg=tg[2*hh+u] if hh == 0 else tg[3])
                pq = PQ + 4*hh if typ == 0 else PQ + 8*hh + 4*u
                e(f'v_mfma_f32_32x32x16_bf16 {v(acc,16)}, {v(KF+4*(2*hh+u),4)}, {v(pq,4)}, {v(acc,16) if u else 0}')
                if 2*hh + u in (1, 2):
                    for _ in range(4 if hh == 0 else 6):
                        if fl: e.ins.append(fl.pop(0))
                if l and self.o.fo == 6 - (2*hh + u): self.flag(e, vWB, sFOe, '')
        self.bg('o2')
        O = vXF + 96
        quick = l > 0 and self.o.quick
        for hh in range(2):
            acc = (vA0, vA1)[hh]
            e(f'v_add_f32 {v(acc+8)}, {s(sEPS6)}, {v(acc+8)}\nv_rcp_f32 {v(acc+8)}, {v(acc+8)}')
            if hh:
                for i in range(4): e(f'v_pk_mul_f32 {v(acc+2*i,2)}, {v(acc+2*i,2)}, {v(acc+8,2)} op_sel_hi:[1,0]')
            else:
                for i in range(6): e(f'v_mul_f32 {v(acc+i)}, {v(acc+8)}, {v(acc+i)}')
                e(f'v_mul_f32 {v(acc+6)}, {v(acc+8)}, {v(acc+6)}\nv_mul_f32 {v(acc+7)}, {v(acc+8)}, {v(acc+7)}')
            for i in range(4):
                e(f'v_cvt_pk_bf16_f32 {v(O+4*hh+i)}, {v(acc+2*i)}, {v(acc+2*i+1)}')
                if i == 1: self.tag(O + 4*hh, l & 1)
            if l and self.o.fo == 2 - hh: self.flag(e, vWB, sFOe, '')
            def st(e, m):
                if self.o.stress and quick and not m and hh == (l & 1):
                    self.flag(e, vWB, sFOwr, m)
                    e(f's_and_b32 {s(sT[5])}, s2, {self.o.stress}\ns_cbranch_scc1 L_ns_o{l}\ns_sleep 60\nL_ns_o{l}:')
                e(f'buffer_store_dwordx4 {v(O+4*hh,4)}, {v(vOst)}, {s(sWS,4)}, {s(sOwr)} offen offset:{hh*512}{m or ((self.o.lasto if l == 3 else str()) if l else self.o.pub0)}')
                if hh:
                    if m or not (quick or self.o.noack): e.wait_all_vm()
                    if m or not (l and self.o.fo): self.flag(e, vWB, sFOwr, m)
            self.modal(f'po{l}{hh}', st)
        self.dump(f'L{l}.o', [v(O+i) for i in range(8)])
        self.stamp(f'L{l}.pub2')

    def o_proj(self, l):
        e = self.e; typ = l & 1; T = 'AB'[typ]
        chk = vTM + 1 if l > 0 else None
        par = l & 1
        self.bg('w0')
        if l == 0:
            t0, t1 = vTM, vTM + 1
            e(f'''
            v_bfe_u32 {v(t0)}, {v(vL4)}, 4, 2
            v_lshrrev_b32 {v(t1)}, 7, {v(vL4)}
            v_lshl_add_u32 {v(t0)}, {v(t1)}, 3, {v(t0)}
            v_lshlrev_b32 {v(t0)}, 5, {v(t0)}
            v_bfe_u32 {v(t1)}, {v(vL4)}, 6, 1
            v_lshl_add_u32 {v(t0)}, {v(t1)}, 4, {v(t0)}
            v_bfe_u32 {v(t1)}, {v(vL4)}, 3, 1
            v_lshl_add_u32 {v(t0)}, {v(t1)}, 3, {v(t0)}
            v_add_u32 {v(t0)}, {L_WP}, {v(t0)}
            ''')
            for hh in range(2):
                for t in range(2):
                    tw = e(f'ds_read_b64_tr_b16 {v(vWPH+4*hh+2*t,2)}, {v(t0)} offset:{hh*512 + t*128}')
            e(f'v_bfe_u32 {v(t1)}, {v(vL4)}, 4, 1\nv_mul_u32_u24 {v(t1)}, 0x8000, {v(t1)}\nv_lshl_or_b32 {v(t1)}, {v(t1)}, 16, {v(t1)}')
            e.wait(lg=tw)
            for i in range(8): e(f'v_xor_b32 {v(vWPH+i)}, {v(t1)}, {v(vWPH+i)}')
        if self.o.lateb[l]:
            self.need('ab'); e('s_barrier')
        ot = [None] * 16; wt = [None] * 64
        def oload(e, k):
            if k % 2 == 0: e(f's_add_u32 {s(sT[0])}, {s(sOrd)}, {k*2048}')
            ot[k] = e(f'buffer_load_dwordx4 {v(vXF+4*k,4)}, {v(vL16)}, {s(sWS,4)}, {s(sT[0])} offen offset:{(k&1)*2048} sc1')
        PRE = self.o.opre; SP = self.o.spo if l else 0
        NB, LA = 10, self.o.ola[l > 1]
        ad = vTM + 4; sa, sb = SLOTS[l]['a'] * SLOT, SLOTS[l]['b'] * SLOT
        buf = lambda f: vA1 + 4 * (f % NB)
        def wrd(f):
            e = self.e; k, t = f >> 2, f & 3
            if l > 1:
                wt[f] = e(f'ds_read_b128 {v(buf(f),4)}, {v(ad + (k >> 3))} offset:{(k & 7)*4096 + t*512}')
                return
            off = (k & 7) * 4096
            if k >= 8:
                if l == 1: off += sb - sa
                elif k == 8: e(f'v_add_u32 {v(ad+t)}, {(sb - sa) & 0xffffffff}, {v(ad+t)}')
            e(f'ds_read_b64_tr_b16 {v(buf(f),2)}, {v(ad+t)} offset:{off}')
            wt[f] = e(f'ds_read_b64_tr_b16 {v(buf(f)+2,2)}, {v(ad+t)} offset:{off+1024}')
        def init():
            e = self.e
            for f in range(LA): wrd(f)
            for i in range(8):
                e(f'v_lshlrev_b32 {v(vA0+2*i)}, 16, {v(vRES+i)}\nv_and_b32 {v(vA0+2*i+1)}, {s(sHI)}, {v(vRES+i)}')
        def shadow():
            self.bg('wp')
            if not self.o.oinit[l]: init()
            self.bg('ws')
        if self.o.oinit[l]: init(); keep = list(wt)
        self.bg('wi')
        self.stamp(f'L{l}.pre2')
        self.hop(f'o{l}', sFOrd, l + 1, vTM, oload, SP, shadow, init)
        if self.o.oinit[l]: wt[:] = keep
        if not l: self.in_redo = False
        self.stamp(f'L{l}.poll2')
        for k in range(SP, PRE): oload(e, k)
        self.bg('w1')
        xo = vTM + 2; fr = vTM + 3
        late = [f's_add_u32 {s(r)}, {s(r)}, {s(sSTR)}' for r in (sXrd, sXwr, sSTrd, sSTwr, sOrd, sOwr)] if l < 3 else []
        for k in range(16):
            for t in range(4):
                f = 4*k + t
                if t % 2 == 0: e.wait(vm=ot[k], lg=wt[f + 1])
                e(f'v_mfma_f32_16x16x32_bf16 {v(vA0+4*t,4)}, {v(buf(f),4)}, {v(vXF+4*k,4)}, {v(vA0+4*t,4)}')
                if f + LA < 64: wrd(f + LA)
                if 0 < l < 3 and self.o.fx > 2 and f == 66 - self.o.fx: self.flag(e, fr, sFXe, '')
                if t == 0:
                    if k + PRE < 16: oload(e, k + PRE)
                    if k + PRE == 16 and self.o.ctouch & 2 and l < 3: self.code_touch(v(vXF + 64))
                    self.bg(f'p{k}')
                if t == 2:
                    if chk and k % 2 == 1:
                        e(self.chk(chk, vXF+4*k-4, vXF+4*k, par, k == 1))
                        if k <= SP or k == 15 or k in self.o.echk: self.chk_end(chk, par, f'o{l}', vTM)
                    self.bg(f'p{k}b')
                    if k == 12:
                        if l < 3: e(f'v_mov_b32 {v(fr)}, {l + 2}')
                        else:
                            e(f'v_bfe_u32 {v(xo)}, {v(vL4)}, 6, 1\nv_lshrrev_b32 {v(xo+1)}, 7, {v(vL4)}\nv_lshl_add_u32 {v(xo)}, {v(xo)}, 1, {v(xo+1)}')
                            e(f'v_lshlrev_b32 {v(xo+1)}, 8, {v(vFl16)}\nv_lshl_add_u32 {v(xo)}, {v(xo)}, 4, {v(xo+1)}')
        self.in_redo = False
        for op in late: e(op)
        self.stamp(f'L{l}.B3')
        for m in range(2):
            if l == 3 and self.o.bias:
                for i in range(8):
                    e(f's_mov_b32 {s(sT[0])}, 0x433e0000\nv_cmp_gt_f32 vcc, abs({v(vA0+8*m+i)}), {s(sT[0])}\nv_cndmask_b32 {v(vA0+8*m+i)}, {v(vA0+8*m+i)}, 0, vcc')
            for i in range(4):
                e(f'v_cvt_pk_bf16_f32 {v(vRES+4*m+i)}, {v(vA0+8*m+2*i)}, {v(vA0+8*m+2*i+1)}')
                if i == 1 and l < 3: self.tag(vRES + 4*m, l & 1)
            if l < 3:
                if l and self.o.fx == 2 - m: self.flag(e, fr, sFXe, '')
                def st(e, mm):
                    if self.o.stress and l and not mm and m == (l & 1):
                        self.flag(e, fr, sFXwr, mm)
                        e(f's_and_b32 {s(sT[5])}, s2, {self.o.stress}\ns_cbranch_scc1 L_ns_x{l}\ns_sleep 60\nL_ns_x{l}:')
                    e(f'buffer_store_dwordx4 {v(vRES+4*m,4)}, {v(vXst)}, {s(sWS,4)}, {s(sXwr)} offen offset:{m*2048}{mm or ((self.o.lastx if l == 2 else str()) if l else (self.o.pub0 if self.o.pub0x is None else self.o.pub0x))}')
                    if m and l and not mm and not self.o.fx: self.flag(e, fr, sFXwr, mm)
                self.modal(f'px{l}{m}', st)
        if l == 3:
            for m in range(2):
                for i in range(2): e(f'v_permlane16_swap_b32 {v(vRES+4*m+i)}, {v(vRES+4*m+2+i)}')
                e(f'buffer_store_dwordx4 {v(vRES+4*m,4)}, {v(xo)}, {s(sOUT,4)}, {s(sXO)} offen offset:{64*m} {self.o.outmod}')
            return
        self.dump(f'L{l}.x', [v(vRES+i) for i in range(8)])
        if l == 1: e(f's_lshl_b32 {s(sT[2])}, {s(sROT)}, 12\ns_add_u32 {s(sT[2])}, {s(sT[2])}, {s(sXrd)}')
        elif l == 0: e(f's_lshl_b32 {s(sT[2])}, {s(sW)}, 13\ns_add_u32 {s(sT[2])}, {s(sT[2])}, {s(sXrd)}')
        else: e(f's_mov_b32 {s(sT[2])}, {s(sXrd)}')
        def stats():
            self.x_stats()
            self.tag(vTM, l & 1)
            def st2(e, mm):
                if self.o.stress and not mm:
                    e(f's_and_b32 {s(sT[5])}, s2, {self.o.stress}\ns_cbranch_scc0 L_ns_s{l}\ns_sleep 50\nL_ns_s{l}:')
                e(f'buffer_store_dword {v(vTM)}, {v(vSTst)}, {s(sWS,4)}, {s(sSTwr)} offen{mm}')
                if mm or not l:
                    if mm or not self.o.noack: e.wait_all_vm()
                    self.flag(e, fr, sFXwr, mm)
            self.modal(f'px{l}s', st2)
        self.late_stats = None
        if l and self.o.lstat: self.late_stats = stats
        else: stats()
        self.bg('y0')
        self.stamp(f'L{l}.pub3')

    def build(self):
        e = self.e
        self.sched = scheds.build(self.o.ov)
        self.prologue()
        for l in range(4):
            self.l = l
            if l == 0: self.kv_gemm0()
            else: self.kv_gemm(l)
            self.kv_epilogue(l)
            self.q_phase(l)
            self.o_proj(l)
        for k in self.sched: assert k in self.seen, k
        if self.o.stamps:
            self.stamp('end')
            e(f's_memrealtime {s(sTS,2)}'); e.wait_all_lg()
            e(f'v_writelane_b32 {v(vSTAMP)}, {s(sTS)}, 63')
            if self.o.both in (0, 2, 4): e(f'v_writelane_b32 {v(vSTAMP)}, {s(sBUD)}, 61')
            e(f's_lshl_b32 {s(sT[0])}, s2, 2\ns_add_u32 {s(sT[0])}, {s(sT[0])}, {s(sW)}\ns_lshl_b32 {s(sT[0])}, {s(sT[0])}, 8\ns_add_u32 {s(sT[0])}, {s(sT[0])}, {STAMP}')
            e(f'buffer_store_dword {v(vSTAMP)}, {v(vL4)}, {s(sWS,4)}, {s(sT[0])} offen')
        if self.o.echo:
            self.stamp('end')
            if self.o.echo[0] == 'fixed':
                e(f's_mov_b32 {s(sE0)}, {self.o.echo[2]}')
            else:
                e(f's_sub_u32 {s(sE0)}, {s(sE1)}, {s(sE0)}\ns_mul_i32 {s(sE0)}, {s(sE0)}, {self.o.echo[2]}')
            e(f'{self.o.clk} {s(sE1,2)}\ns_waitcnt lgkmcnt(0)')
            e(f'L_echo:\n{self.o.clk} {s(sTS,2)}\ns_waitcnt lgkmcnt(0)\ns_sub_u32 {s(sTS)}, {s(sTS)}, {s(sE1)}\ns_cmp_lt_u32 {s(sTS)}, {s(sE0)}\ns_cbranch_scc1 L_echo')
        e('L_fail:\ns_endpgm')
        body = e.finish() + ''.join(t.finish() for t in self.tail) + 'L_code_end:\n    s_endpgm\n'
        body, npad = layout([f'{NAME}_kernel:'] + body.rstrip('\n').split('\n'), 'L_main', 4 if self.o.pads else 0, self.o.align)
        body = body.split('\n', 1)[1]
        head = open('cdna_kernels/' + NAME + '.s.ref').read().split('; Override launch')[0]
        txt = head + '; @launch grid=(256,1,1) block=(256,1,1) lds=163840\n'
        txt += f'''.amdgcn_target "amdgcn-amd-amdhsa--gfx950"
.text
.globl {NAME}_kernel
.p2align 8
.type {NAME}_kernel,@function
{NAME}_kernel:
{body}.section .rodata,"a"
.p2align 6
.amdhsa_kernel {NAME}_kernel
  .amdhsa_next_free_vgpr 512
  .amdhsa_next_free_sgpr 102
  .amdhsa_accum_offset 256
  .amdhsa_group_segment_fixed_size 0
  .amdhsa_kernarg_size 80
  .amdhsa_user_sgpr_count 2
  .amdhsa_user_sgpr_kernarg_segment_ptr 1
  .amdhsa_system_sgpr_workgroup_id_x 1
  .amdhsa_float_denorm_mode_32 3
.end_amdhsa_kernel
'''
        return txt

if __name__ == '__main__':
    ap = argparse.ArgumentParser()
    ap.add_argument('-o', default='cdna_kernels/' + NAME + '.s')
    ap.add_argument('--stamps', action='store_true')
    ap.add_argument('--force-safe', action='store_true')
    ap.add_argument('--dump', default='')
    ap.add_argument('--echo', default='')
    ap.add_argument('--bias', default='')
    ap.add_argument('--clk', default='s_memtime')
    ap.add_argument('--outmod', default='sc1 nt')
    ap.add_argument('--initmod', default='')
    ap.add_argument('--touch', default='61352b')
    ap.add_argument('--c1early', type=int, default=2)
    ap.add_argument('--fine', type=int, default=0)
    ap.add_argument('--atp', type=int, default=1)
    ap.add_argument('--nomini', type=int, default=0)
    ap.add_argument('--touchx', type=int, default=1)
    ap.add_argument('--b0at', type=int, default=24)
    ap.add_argument('--both', type=int, default=0)
    ap.add_argument('--fake', type=int, default=0)
    ap.add_argument('--stouch', default=',,')
    ap.add_argument('--tq', default='')
    ap.add_argument('--tw', default='64')
    ap.add_argument('--dummy', type=int, default=0)
    ap.add_argument('--te', default='')
    ap.add_argument('--quick', type=int, default=1)
    ap.add_argument('--lateb', default='0,0,0,0')
    ap.add_argument('--pub0', default='')
    ap.add_argument('--stat-at', type=int, default=4)
    ap.add_argument('--opre', type=int, default=8)
    ap.add_argument('--ctouch', type=int, default=0)
    ap.add_argument('--e1inl', type=int, default=0)
    ap.add_argument('--t0', default='')
    ap.add_argument('--t1', default='')
    ap.add_argument('--t2', default='')
    ap.add_argument('--qs', default='21111110')
    ap.add_argument('--clrp', type=int, default=6)
    ap.add_argument('--pub0s', default='')
    ap.add_argument('--q0', type=int, default=0)
    ap.add_argument('--clean', type=int, default=0)
    ap.add_argument('--xout', type=int, default=0)
    ap.add_argument('--rotm', type=int, default=6)
    ap.add_argument('--rotw', type=int, default=3)
    ap.add_argument('--roto', type=int, default=3)
    ap.add_argument('--spx', type=int, default=0)
    ap.add_argument('--spo', type=int, default=0)
    ap.add_argument('--ola', default='6,6')
    ap.add_argument('--spagain', type=int, default=0)
    ap.add_argument('--oinit', default='0,1,1,1')
    ap.add_argument('--pads', type=int, default=1)
    ap.add_argument('--align', type=int, default=5)
    ap.add_argument('--skip', default='')
    ap.add_argument('--noack', type=int, default=0)
    ap.add_argument('--fake16', type=int, default=0)
    ap.add_argument('--rotf', type=int, default=7)
    ap.add_argument('--padp', type=int, default=-2)
    ap.add_argument('--xmod', default='')
    ap.add_argument('--xmodp', type=int, default=8)
    ap.add_argument('--tmod', default='')
    ap.add_argument('--pub0x', default=None)
    ap.add_argument('--ov', default='')
    ap.add_argument('--lasto', default='')
    ap.add_argument('--lastx', default='')
    ap.add_argument('--lastld', default='')
    ap.add_argument('--ptail', type=int, default=0)
    ap.add_argument('--e1chk', default=',eq1a,eq2,eq0d')
    ap.add_argument('--stress', type=int, default=0)
    ap.add_argument('--wb', default='')
    ap.add_argument('--wbmask', type=int, default=63)
    ap.add_argument('--ord0', default='01V2K3')
    ap.add_argument('--p3', type=int, default=9)
    ap.add_argument('--ofill', type=int, default=0)
    ap.add_argument('--defw', type=int, default=0)
    ap.add_argument('--hopinl', type=int, default=1)
    ap.add_argument('--np', type=int, default=1)
    ap.add_argument('--npgap', type=int, default=11)
    ap.add_argument('--xextra', type=int, default=3)
    ap.add_argument('--csrate', type=int, default=2)
    ap.add_argument('--fo', type=int, default=1)
    ap.add_argument('--fx', type=int, default=2)
    ap.add_argument('--echk', default='')
    ap.add_argument('--lstat', type=int, default=0)
    ap.add_argument('--twin', default='')
    ap.add_argument('--sdot', type=int, default=0)
    ap.add_argument('--xpre', type=int, default=8)
    ap.add_argument('--e1at', default='22,20,24,20')
    ap.add_argument('--e1rate', type=int, default=1)
    ap.add_argument('--lateq', default='0,0,0,0')
    ap.add_argument('--sched', default='k')
    opt = ap.parse_args()
    opt.dump = opt.dump.split(',') if opt.dump else []
    opt.echo = opt.echo.split(',') if opt.echo else []
    opt.e1at = list(map(int, opt.e1at.split(','))); opt.lateq = list(map(int, opt.lateq.split(','))); opt.lateb = list(map(int, opt.lateb.split(',')))
    opt.ola = list(map(int, opt.ola.split(',')))
    opt.oinit = list(map(int, opt.oinit.split(',')))
    opt.skip = [x for x in opt.skip.split(',') if x]
    opt.e1chk = opt.e1chk.split(',')
    opt.wb = opt.wb.split(',')
    opt.echk = [int(x) for x in opt.echk.split(',') if x]
    g = Gen(opt)
    txt = g.build()
    open(opt.o, 'w').write(txt)
    if opt.stamps:
        open(opt.o + '.stamps', 'w').write('\n'.join(g.stamp_names))
    print('wrote', opt.o, len(txt), 'bytes; vgpr persistent', _vn[0], 'sgpr', _sn[0], 'stamps', g.nstamp)
```

```python
import sys, argparse
sys.path.insert(0, 'gen')
from asmlib import *

NAME = 'interleave_layers__linear_attn_block__linear_kernel_hedgehog__prompt'

FLG_O, FLG_X = 0x0000, 0x2000
ZP = 0x10000
STAMP = 0x60000
KVP = 0x100000
EXB, EXSTRIDE = 0x400000, 0x500000
OB, XB, ST = EXB, EXB + 0x200000, EXB + 0x400000
DUMP = 0x2400000
WS_BYTES = 0x4000000
OOB = 0x7F000000
SLOT = 32768
SCR = 4 * SLOT
PL = 2176
L_PK = SCR
L_EX = SCR
L_KV = SCR + 12 * PL
L_CS = L_KV + 2176
L_WP = L_CS + 3072
assert L_WP + 1024 <= 163840

sX, sWA, sWOA, sWB, sWP, sWOB, sOUT, sDBG, sWS, sCODE = 4, 8, 12, 16, 20, 24, 28, 32, 36, 40
_sn = [44]
def salloc(n=1, al=1):
    while _sn[0] % al: _sn[0] += 1
    r = _sn[0]; _sn[0] += n
    assert _sn[0] <= 100
    return r
sW, sR, sG, sRB, sRBO, sJ, sMODE, sBUD, sSTR = [salloc() for _ in range(9)]
sRw, sRo, sCOFF = [salloc() for _ in range(3)]
sXrd, sXwr, sSTrd, sSTwr, sOrd, sOwr, sFOrd, sFOwr, sFXrd, sFXwr = [salloc() for _ in range(10)]
sKVrdA, sKVrdB, sKVwrB, sZrdA, sZrdB, sZwrB, sSKIP = [salloc() for _ in range(7)]
sXO, sONES, sPERM, sHI, sXCC = [salloc() for _ in range(5)]
sROT, sRESP, sDM = salloc(), salloc(), salloc()
sAT = 3
sX0g, sX0l, sW0g, sW0l = sMODE, sSTR, salloc(), salloc()
sFOe, sFXe = sW0g, sW0l
sL2E = salloc(2, 2); sEPS6 = salloc(2, 2)
sT = [salloc() for _ in range(6)]
sTS = salloc(2, 2)
sE0 = salloc(2, 2); sE1 = salloc(2, 2)

_vn = [1]
def valloc(n=1, al=1):
    while _vn[0] % al: _vn[0] += 1
    r = _vn[0]; _vn[0] += n
    return r
vLane = valloc()
vL16 = valloc(); vL4 = valloc()
vRES = valloc(8, 4)
vWPH = valloc(8, 4)
vSEL = valloc(4, 4)
vCS = valloc(12, 2)
vMF = valloc(2, 2)
vRS = valloc(2, 2)
vPKa, vSVw, vSVo, vCSa = [valloc() for _ in range(4)]
vWtr = valloc(4)
vWdma, vWOdma, vPKwA, vPKwB, vPKrA, vPKrB, vKVw, vZw, vKVrA, vKVrB, vSVt, vE1st, vZst, vSTst, vFl16, vWO = [valloc() for _ in range(16)]
assert _vn[0] <= 64, _vn[0]
vA0, vA1, vWB, vTM = 64, 80, 96, 120
vXF = 128
vM1 = vTM + 2
vXst, vOst = vWtr + 1, vWtr + 2
vPK2 = vLane
vSTAMP = 0

import scheds
BAY = dict(KA=0, VA=1, QA=2, aA=3, bA=4, KB=5, QB=6, VB=7, aB=0, bB=1)
SLOTS = [dict(K=0, V=1, Q=2, a=3, b=0), dict(K=1, V=2, Q=3, a=0, b=1), dict(K=2, V=3, Q=1, a=0, b=3), dict(K=1, V=2, Q=0, a=3, b=1)]

DOC = """;
"""

class Gen:
    def __init__(self, opt):
        self.o = opt
        self.e = Asm()
        self.tail = []
        self.nstamp = 0
        self.stamp_names = []
        self.wtr_slot = 0
        self.ndump = 0
        self.bgn = {}; self.bgt = {}; self.seen = set(); self.l = 0
        self.occ = [(0, 'K'), (0, 'V'), (0, 'Q'), (9, 'x')]; self.dead = set(); self.live = {(0, 'K'), (0, 'V')}; self.bayocc = {}; self.in_redo = False
        self.sv = None; self.stag = {}; self.pends = []; self.m0own = None; self.e1chk = None; self.d0 = {}; self.insave = set(); self.rb = {}; self.early = set()

    def stamp(self, name):
        if self.o.echo and name in self.o.echo[:2]:
            self.e(f'{self.o.clk} {s(sE0 if name == self.o.echo[0] else sE1, 2)}')
            self.e.wait_all_lg()
        if not self.o.stamps: return
        e = self.e
        if self.o.both:
            if self.o.both == 2 and name not in ('start', 'end'): return
            if self.o.both == 4:
                if name.split('.')[-1] not in ('start', 'pub1', 'e1', 'pub2', 'poll2', 'B3', 'poll3', 'end'): return
            elif self.o.both == 3:
                if not (name.startswith(('chunk', 'L0', 'setup', 'g')) or name in ('start', 'end')): return
            elif name.split('.')[-1] not in ('start', 'chunk0', 'x0', 'kvgemm', 'pub1', 'phiq', 'pub2', 'poll2', 'B3', 'end'): return
            e(f's_memtime {s(sTS,2)}\ns_memrealtime {s(sE0,2)}')
            e.wait_all_lg()
            e(f'v_writelane_b32 {v(vSTAMP)}, {s(sTS)}, {self.nstamp}\nv_writelane_b32 {v(vSTAMP)}, {s(sE0)}, {self.nstamp+31}')
            self.nstamp += 1; self.stamp_names.append(name)
            assert self.nstamp <= 31
            return
        e(f'{self.o.clk} {s(sTS,2)}')
        e.wait_all_lg()
        e(f'v_writelane_b32 {v(vSTAMP)}, {s(sTS)}, {self.nstamp}')
        self.nstamp += 1; self.stamp_names.append(name)
    def dump(self, name, regs):
        if name not in self.o.dump: return
        e = self.e
        for r in regs:
            e(f's_lshl_b32 {s(sT[5])}, s2, 2\ns_add_u32 {s(sT[5])}, {s(sT[5])}, {s(sW)}\ns_lshl_b32 {s(sT[5])}, {s(sT[5])}, 14\ns_add_u32 {s(sT[5])}, {s(sT[5])}, {DUMP + self.ndump*256}')
            e(f'buffer_store_dword {r}, {v(vL4)}, {s(sWS,4)}, {s(sT[5])} offen')
            self.ndump += 1
        assert self.ndump <= 64
        e.wait_all_vm()
    def set_wtr(self, slot, l):
        e = self.e
        if l == 0:
            for q in range(4): e(f'v_add_u32 {v(vWtr+q)}, {slot*SLOT}, {v(vWtr+q)}')
        elif l == 1:
            e(f'v_add_u32 {v(vWtr)}, {slot*SLOT}, {v(vSVw)}'); self.wq = 0
        else: e(f'v_add_u32 {v(vWtr)}, {slot*SLOT}, {v(vL16)}')
    def dma_w(self, typ, kind, n):
        e = self.e; srd = sWA if typ == 0 else sWB
        part = 'QKV'.index(kind); base = SLOTS[typ][kind] * SLOT - part * 1024
        assert base >= 0
        if self.o.fake == 2:
            if n & 1 and self.m0own == (typ, kind, n - 1): off = 1024
            else:
                off = 0
                e(f's_and_b32 {s(sDM)}, {s(sRw)}, 0x3fff\ns_lshl1_add_u32 {s(sDM)}, {s(sDM)}, 0\ns_and_b32 {s(sT[4])}, {s(sRw)}, 0x1fff\ns_sub_u32 {s(sDM)}, {s(sDM)}, {s(sT[4])}')
                e(f's_xor_b32 {s(sDM)}, {s(sDM)}, {(n >> 1)*8192 + (n & 1)*1024}')
                e(f's_add_u32 m0, {s(sDM)}, {SLOTS[typ][kind] * SLOT}')
                e(f's_mul_i32 {s(sT[4])}, {s(sG)}, 98304\ns_add_u32 {s(sDM)}, {s(sDM)}, {s(sT[4])}\ns_add_u32 {s(sDM)}, {s(sDM)}, {part*32768}')
            self.m0own = (typ, kind, n)
            return e(f'buffer_load_dwordx4 {v(vL16)}, {s(srd,4)}, {s(sDM)} offen offset:{off} lds')
        if n & 1 and self.m0own == (typ, kind, n - 1):
            e(f's_add_u32 {s(sDM)}, {s(sDM)}, {49152 - 1024}'); part += 1
        else:
            e(f's_xor_b32 {s(sDM)}, {s(sRw)}, {(n >> 1)*8192 + (n & 1)*1024}')
            e(f's_add_u32 m0, {s(sDM)}, {base}')
            e(f's_mul_i32 {s(sDM)}, {s(sDM)}, 48')
        self.m0own = (typ, kind, n)
        return e(f'buffer_load_dwordx4 {v(vWdma)}, {s(srd,4)}, {s(sDM)} offen offset:{part*1024} lds')
    def dma_wo(self, typ, kind, n):
        e = self.e; srd = sWOA if typ == 0 else sWOB
        off = 0
        if n & 1 and self.m0own == (typ, kind, n - 1):
            e(f's_add_u32 {s(sDM)}, {s(sDM)}, {8192 - 1024}'); off = 1024
        else:
            e(f's_xor_b32 {s(sDM)}, {s(sRo)}, {(n >> 1)*8192 + (n & 1)*1024}')
            e(f's_add_u32 m0, {s(sDM)}, {SLOTS[typ][kind]*SLOT}')
            e(f's_lshl3_add_u32 {s(sDM)}, {s(sDM)}, {0x40000 if kind == "b" else 0}')
        self.m0own = (typ, kind, n)
        return e(f'buffer_load_dwordx4 {v(vWOdma)}, {s(srd,4)}, {s(sDM)} offen offset:{off} lds')
    def park(self, op, item, n):
        e = self.e; r = BAY[item]*32 + 4*n
        slot = SLOTS['AB'.index(item[1]) + (2 if op == 'R' else 0)][item[0]]
        wo = item[0] in 'ab'
        m, x = (n & 3, n >> 2) if wo else (n >> 1, n & 1)
        if op == 'R':
            sh, off = (11, m*8192 + x*1024) if wo else ((10, n*4096) if item[1] == 'A' else (13, n*1024))
            if item not in self.rb:
                reg = vPK2 if self.rb.get('last') == vPKa else vPKa
                self.rb = {k: r_ for k, r_ in self.rb.items() if r_ != reg}
                self.rb[item] = reg
                e(f's_lshl_b32 {s(sT[4])}, {s(sW)}, {sh}\ns_add_u32 {s(sT[4])}, {s(sT[4])}, {slot*SLOT}\nv_add_u32 {v(reg)}, {s(sT[4])}, {v(vL16)}')
            self.rb['last'] = self.rb[item]
            return e(f'ds_write_b128 {v(self.rb[item])}, {a(r,4)} offset:{off}')
        assert wo
        want = (wo, (slot >> 1) * 0x10000 + (64 * x if wo else 0))
        ad = vSVo if wo else vSVw
        if want[1]:
            if want != self.sv: e(f'v_xor_b32 {v(vSVt)}, {want[1]}, {v(ad)}'); self.sv = want
            ad = vSVt
        off = (slot & 1)*SLOT + m*8192 + (0 if wo else x*512)
        e(f'ds_read_b64_tr_b16 {a(r,2)}, {v(ad)} offset:{off}')
        tag = e(f'ds_read_b64_tr_b16 {a(r+2,2)}, {v(ad)} offset:{off + 1024}')
        self.stag[(item, n)] = tag
        return tag
    def bg_op(self, name, n):
        op, item = name[0], name[1:]
        typ = 'AB'.index(item[1])
        if op in 'LR':
            slot = SLOTS[typ + (2 if op == 'R' else 0)][item[0]]
            if n == 0:
                prev = self.occ[slot]
                assert prev is None or prev in self.dead, (name, prev)
                if prev and prev[0] < 2:
                    sv = 'S' + prev[1] + 'AB'[prev[0]]
                    assert self.bgn.get(sv) == 8, (name, sv)
                    if op == 'L': self.e.wait(lg=self.bgt[sv])
                    assert op == 'L' or item[0] in 'ab' or sv[1:] in self.insave or sv[1:] in self.early, (name, sv)
                self.occ[slot] = (typ + (2 if op == 'R' else 0), item[0])
        if op == 'S':
            if n == 0:
                prev = self.bayocc.get(BAY[item])
                assert prev is None or (self.bgn.get('R' + prev) == 8 and not self.in_redo), (name, prev)
                self.bayocc[BAY[item]] = item
            if (typ, item[0]) not in self.live:
                assert self.bgn.get('L' + item) == 8 and item != 'QA', name
                self.e.wait(vm=self.bgt['L' + item])
        if op == 'L': return self.dma_w(typ, item[0], n) if item[0] in 'QKV' else self.dma_wo(typ, item[0], n)
        return self.park(op, item, n)
    def need(self, kinds, l=None):
        l = self.l if l is None else l
        for k in kinds:
            nm = ('L' if l < 2 else 'R') + k + 'AB'[l & 1]
            assert self.bgn.get(nm) == 8, (self.l, nm)
            if l < 2: self.e.wait(vm=self.bgt[nm])
            else: self.e.wait(lg=self.bgt[nm])
            self.live.add((l, k))
    def free(self, kinds):
        for k in kinds:
            self.dead.add((self.l, k))
            it = k + 'AB'[self.l & 1]
            if self.l < 2 and self.bgn.get('S' + it) == 8 and self.bgt['S' + it] <= self.e.lg_done: self.early.add(it)
    def bg(self, point):
        for name, cnt in self.sched.get(f'{self.l}.{point}', []):
            if name[0] == 'T':
                self.share_touch(name[1:]); continue
            for _ in range(cnt):
                n = self.bgn.get(name, 0)
                assert n < 8, name
                if any(name.startswith(x) for x in self.o.skip):
                    keep = self.e; self.e = Asm(); self.e.vm, self.e.lg, self.e.vm_done, self.e.lg_done = keep.vm, keep.lg, keep.vm_done, keep.lg_done
                    self.bg_op(name, n); self.e = keep; self.bgt[name] = 0; self.stag[(name[1:], n)] = 0; self.sv = None
                else: self.bgt[name] = self.bg_op(name, n)
                self.bgn[name] = n + 1
        if f'{self.l}.{point}' in self.o.wb:
            self.e(f's_lshl2_add_u32 {s(sT[5])}, {s(sG)}, {s(sW)}\ns_and_b32 {s(sT[5])}, {s(sT[5])}, {self.o.wbmask}\ns_cbranch_scc1 L_nowb{self.l}{point}')
            self.e.raw('buffer_wbl2 sc1')
            self.e(f'L_nowb{self.l}{point}:')
        if self.e1chk and point == self.o.e1chk[self.l]: self.e1chk()
        self.seen.add(f'{self.l}.{point}')
    def tag(self, reg, par):
        self.e(f'v_or_b32 {v(reg)}, 1, {v(reg)}' if par else f'v_and_b32 {v(reg)}, -2, {v(reg)}')
    def chk(self, acc, r0, r1, par, first):
        if first: return f'v_and_b32 {v(acc)}, {v(r0)}, {v(r1)}' if par else f'v_or_b32 {v(acc)}, {v(r0)}, {v(r1)}'
        return f'v_bitop3_b32 {v(acc)}, {v(acc)}, {v(r0)}, {v(r1)} bitop3:0x80' if par else f'v_or3_b32 {v(acc)}, {v(acc)}, {v(r0)}, {v(r1)}'
    def chk_end(self, acc, par, name, tmp=None):
        tmp = acc if tmp is None else tmp
        self.e(f'v_and_b32 {v(tmp)}, 1, {v(acc)}\nv_cmp_ne_u32 vcc, {par}, {v(tmp)}\ns_cbranch_vccnz L_redo_{name}')
    def hop(self, name, sbase, val, r, load, SP, shadow, reinit):
        e = self.e
        ld = f'buffer_load_dword {v(r)}, {v(vFl16)}, {s(sWS,4)}, {s(sbase)} offen sc1'
        cmp = f'v_cmp_gt_u32 vcc, {val}, {v(r)}'
        bud = f's_sub_u32 {s(sBUD)}, {s(sBUD)}, 1\ns_cbranch_scc1 L_fail'
        slow = Asm()
        slow(f'L_redo_{name}:\ns_waitcnt vmcnt(0) lgkmcnt(0)\ns_nop 15')
        if self.o.stamps: slow(f's_sub_u32 {s(sBUD)}, {s(sBUD)}, 1000')
        self.e = slow; reinit(); self.e = e
        slow(f's_waitcnt lgkmcnt(0)\nL_slow_{name}:\n{ld}\n{bud}\ns_waitcnt vmcnt(0)\n{cmp}\ns_cbranch_vccnz L_slow_{name}')
        for k in range(SP): load(slow, k)
        slow(f's_branch L_ok_{name}')
        self.tail.append(slow)
        again = Asm()
        if self.o.spagain:
            again(f'L_again_{name}:\n{ld}')
            for k in range(SP): load(again, k)
            again(f'{bud}\ns_waitcnt vmcnt({SP})\n{cmp}\ns_cbranch_vccnz L_again_{name}')
        else:
            again(f'L_again_{name}:\n{ld}\n{bud}\ns_waitcnt vmcnt(0)\n{cmp}\ns_cbranch_vccnz L_again_{name}')
            for k in range(SP): load(again, k)
        tag = e(ld)
        if SP:
            e(f's_cmp_lg_u32 {s(sMODE)}, 0\ns_cbranch_scc1 L_nosp_{name}')
            for k in range(SP): load(e, k)
            e(f'L_nosp_{name}:')
        vm = e.vm
        shadow()
        if SP:
            assert e.vm == vm and e.vm_done < tag
            e(f's_cmp_lg_u32 {s(sMODE)}, 0\ns_cbranch_scc1 L_slow_{name}')
        NP = self.o.np
        if NP > 1:
            assert not SP
            rs = [r] + [vXF + 124 + i for i in range(NP - 1)]
            pl = lambda x: f'buffer_load_dword {v(x)}, {v(vFl16)}, {s(sWS,4)}, {s(sbase)} offen sc1'
            t = Asm()
            t(pl(rs[1]))
            t(f's_waitcnt vmcnt(1)\n{cmp}\ns_cbranch_vccz L_ok_{name}')
            for x in rs[2:] + rs[:1]:
                t(pl(x))
                if x != rs[0]: t(f's_nop {self.o.npgap}')
            t(f'L_again_{name}:')
            for i in range(NP):
                x = rs[(i + 1) % NP]
                t(f's_waitcnt vmcnt({NP-1})\nv_cmp_gt_u32 vcc, {val}, {v(x)}\ns_cbranch_vccz L_ok_{name}\n{pl(x)}')
            t(f's_sub_u32 {s(sBUD)}, {s(sBUD)}, 1\ns_cbranch_scc0 L_again_{name}\ns_endpgm')
            e.ins += t.ins
            e.vm_done = max(e.vm_done, tag)
        else:
            e.wait(vm=tag)
            if self.o.hopinl:
                e(f'{cmp}\ns_cbranch_vccz L_ok_{name}')
                e.ins += again.ins
            else: e(f'{cmp}\ns_cbranch_vccnz L_slow_{name}')
        e(f'L_ok_{name}:')
        self.in_redo = True; self.sv = None; self.m0own = None; self.rb = {}
    def modal(self, name, fn):
        e = self.e
        e(f's_cmp_lg_u32 {s(sMODE)}, 0\ns_cbranch_scc1 L_{name}_safe')
        fn(e, '')
        e(f'L_{name}_join:')
        t = Asm(); t(f'L_{name}_safe:\ns_nop 4'); fn(t, ' sc1'); t(f's_nop 1\ns_branch L_{name}_join')
        self.tail.append(t)

    def x_stats(self):
        e = self.e
        S, Q = vTM, vTM + 1
        for i in range(8):
            e(f'v_dot2_f32_bf16 {v(S)}, {v(vRES+i)}, {s(sONES)}, {v(S) if i else 0}')
            e(f'v_dot2_f32_bf16 {v(Q)}, {v(vRES+i)}, {v(vRES+i)}, {v(Q) if i else 0}')
        e(f'v_permlane32_swap_b32 {v(S)}, {v(Q)}')
        e(f'v_add_f32 {v(S)}, {v(S)}, {v(Q)}\nv_mov_b32 {v(Q)}, {v(S)}')
        e(f'v_permlane16_swap_b32 {v(S)}, {v(Q)}')
        e(f'v_add_f32 {v(S)}, {v(S)}, {v(Q)}')
    def flag(self, e, reg, sflag, m):
        e(f's_mov_b64 exec, 1\nbuffer_store_dword {v(reg)}, off, {s(sWS,4)}, {s(sflag)}{m}\ns_mov_b64 exec, -1')

    def e1_addr(self, l, t):
        if l & 1: return vE1st, vZst
        self.e(f'v_add_u32 {v(t)}, {s(sSKIP)}, {v(vE1st)}\nv_add_u32 {v(t+1)}, {s(sSKIP)}, {v(vZst)}')
        return t, t + 1
    def clear_slot(self, l, m1, ak, az):
        e = self.e
        e(f'v_mov_b32 {v(m1)}, -1\nv_mov_b32 {v(m1+1)}, -1')
        e(f's_add_u32 {s(sT[4])}, {s(sKVwrB)}, {l*0x80000}\ns_add_u32 {s(sT[5])}, {s(sZwrB)}, {l*0x10000}')
        e(f'buffer_store_dwordx2 {v(m1,2)}, {v(ak)}, {s(sWS,4)}, {s(sT[4])} offen sc1')
        return e(f'buffer_store_dword {v(m1)}, {v(az)}, {s(sWS,4)}, {s(sT[5])} offen sc1')
    def dma0(self, P, n, again=False):
        e = self.e
        c = (self.o.twin if P == 0 and self.o.twin else self.o.ord0)[n]
        if again: self.d0 = {}
        if c in '0123':
            if P == 0 and self.o.twin:
                hi = int(c) >> 1; c = str(int(c) & 1)
                if self.d0.get('m0') != ('x', P, hi): e(f's_xor_b32 m0, {s(sT[4])}, {hi*2048}')
                if self.d0.get('x') != (P, hi): e(f's_xor_b32 {s(sT[0])}, {s(sT[5])}, {hi*16384}')
                self.d0.update(m0=('x', P, hi), x=(P, hi))
            else:
                if self.d0.get('m0') != ('x', P): e(f's_add_u32 m0, {s(sX0l)}, {(P % 3) * 16384}')
                if self.d0.get('x') != P: e(f's_xor_b32 {s(sT[0])}, {s(sX0g)}, {P << 7}')
                self.d0.update(m0=('x', P), x=P)
            return e(f'buffer_load_dwordx4 {v(vWPH+int(c))}, {s(sX,4)}, {s(sT[0])} offen offset:{int(c)*1024} {self.o.xmod if P < self.o.xmodp else str()} lds')
        self.d0['m0'] = None
        e(f's_add_u32 m0, {s(sW0l)}, {P*4096 + (SLOT - 1024 if c == "V" else 0)}')
        if self.d0.get('w') != P:
            e(f's_xor_b32 {s(sT[1])}, {s(sW0g)}, {P*4096}\ns_mul_i32 {s(sT[1])}, {s(sT[1])}, 48\ns_add_u32 {s(sT[1])}, {s(sT[1])}, 1024')
        self.d0['w'] = P
        return e(f'buffer_load_dwordx4 {v(vWdma)}, {s(sWA,4)}, {s(sT[1])} offen offset:{1024 if c == "V" else 0} lds')
    def dma0q(self, P):
        e = self.e
        self.d0['m0'] = None
        e(f's_xor_b32 {s(sDM)}, {s(sW0g)}, {P*4096}')
        e(f's_add_u32 m0, {s(sW0l)}, {P*4096 + 2*SLOT}')
        e(f's_mul_i32 {s(sDM)}, {s(sDM)}, 48')
        return e(f'buffer_load_dwordx4 {v(vWdma)}, {s(sWA,4)}, {s(sDM)} offen lds')

    def touch(self, i):
        e = self.e; T = sT; t16, t4 = vCS + 6, vCS + 7
        if i in (0, 9):
            e(f's_lshl2_add_u32 {s(T[5])}, s2, {s(sW)}\ns_lshr_b32 {s(T[4])}, {s(T[5])}, 1\ns_lshl_b32 {s(T[4])}, {s(T[4])}, 11\ns_lshl_b32 {s(T[5])}, {s(T[5])}, 9\ns_add_u32 {s(T[4])}, {s(T[4])}, {s(T[5])}')
            return e(f'buffer_load_dword a255, {v(t4)}, {s(sWA if i == 0 else sWB,4)}, {s(T[4])} offen')
        if i in (1, 5):
            e(f's_lshl2_add_u32 {s(T[5])}, s2, {s(sW)}\ns_lshl_b32 {s(T[5])}, {s(T[5])}, 9')
            return e(f'buffer_load_dword a255, {v(t4)}, {s(sWOA if i == 1 else sWOB,4)}, {s(T[5])} offen')
        if i == 2: return e(f'buffer_load_dword a255, {v(t16)}, {s(sWS,4)}, {s(sOwr)} offen {self.o.tmod}')
        if i in (10, 11):
            tp = vSVt; self.sv = None
            e(f's_lshr_b32 {s(T[5])}, s2, 3\ns_cmp_eq_u32 {s(sW)}, 3\ns_cbranch_scc1 L_p3w{i}')
            e(f's_mul_i32 {s(T[5])}, {s(T[5])}, 48\ns_add_u32 {s(T[5])}, {s(T[5])}, {s(sW)}\ns_lshl_b32 {s(T[5])}, {s(T[5])}, 10')
            e(f'v_mul_u32_u24 {v(tp)}, 736, {v(vFl16)}\nv_add_u32 {v(tp)}, {v(tp)}, {v(vZst)}\nv_lshl_add_u32 {v(tp)}, {v(vFl16)}, 5, {v(tp)}')
            e.raw(f'buffer_load_dword a255, {v(tp)}, {s(sWA if i == 10 else sWB,4)}, {s(T[5])} offen offset:384\ns_branch L_p3j{i}\nL_p3w{i}:')
            e(f's_lshl_b32 {s(T[5])}, {s(T[5])}, 14\nv_lshl_add_u32 {v(tp)}, {v(vFl16)}, 8, {v(vZst)}')
            tag = e(f'buffer_load_dword a255, {v(tp)}, {s(sWOA if i == 10 else sWOB,4)}, {s(T[5])} offen offset:384')
            e(f'L_p3j{i}:')
            return tag
        if i == 7:
            e(f's_lshl4_add_u32 {s(T[5])}, {s(sR)}, {s(sG)}\ns_lshl2_add_u32 {s(T[5])}, {s(T[5])}, {s(sW)}\ns_lshl_b32 {s(T[5])}, {s(T[5])}, 11')
            return e(f'buffer_load_dword a255, {v(t16)}, {s(sX,4)}, {s(T[5])} offen')
        if i in (3, 8):
            e(f's_lshl_b32 {s(T[5])}, {s(sW)}, 8\ns_add_u32 {s(T[5])}, {s(T[5])}, s2\ns_min_u32 {s(T[5])}, {s(T[5])}, 767\ns_lshl_b32 {s(T[5])}, {s(T[5])}, 11')
            return e(f'buffer_load_dword a255, {v(t16)}, {s(sWB if i == 3 else sWA,4)}, {s(T[5])} offen')
        if i == 4:
            e(f's_and_b32 {s(T[5])}, {s(sG)}, 3\ns_lshl_b32 {s(T[5])}, {s(T[5])}, 9\ns_add_u32 {s(T[5])}, {s(T[5])}, {s(sSTrd)}')
            return e(f'buffer_load_dword a255, {v(t4)}, {s(sWS,4)}, {s(T[5])} offen')
        if i == 6:
            e(f's_lshl_b32 {s(T[5])}, {s(sG)}, 11\ns_add_u32 {s(T[5])}, {s(T[5])}, {s(sXrd)}')
            return e(f'buffer_load_dword a255, {v(t16)}, {s(sWS,4)}, {s(T[5])} offen {self.o.tmod if i == 4 else str()}')

    def share_touch(self, name):
        e = self.e; t = vSVt; self.sv = None
        kinds, typ = name[:-1], 'AB'.index(name[-1])
        dst = 'a223' if self.l else 'a255'
        if kinds[0] in 'ab':
            e(f's_and_b32 {s(sT[5])}, {s(sG)}, 7\ns_lshl_b32 {s(sT[5])}, {s(sT[5])}, 7\ns_lshl3_add_u32 {s(sT[4])}, {s(sRo)}, {s(sT[5])}')
            if kinds == 'b': e(f's_add_u32 {s(sT[4])}, {s(sT[4])}, 0x40000')
            e(f'v_lshrrev_b32 {v(t)}, 6, {v(vL4)}\nv_lshlrev_b32 {v(t)}, {18 if kinds == "ab" else 26}, {v(t)}\nv_lshl_add_u32 {v(t)}, {v(vFl16)}, 8, {v(t)}')
            return e(f'buffer_load_dword {dst}, {v(t)}, {s(sWOA if typ == 0 else sWOB,4)}, {s(sT[4])} offen')
        e(f's_mul_i32 {s(sT[4])}, {s(sRw)}, 48\ns_lshl_b32 {s(sT[5])}, {s(sG)}, 6\ns_add_u32 {s(sT[4])}, {s(sT[4])}, {s(sT[5])}')
        e(f'v_mul_u32_u24 {v(t)}, 768, {v(vL4)}')
        if kinds == 'KV': e(f's_mov_b64 exec, 0xffffffff\ns_not_b64 exec, exec\nv_subrev_u32 {v(t)}, {32*3072 - 1024}, {v(t)}\ns_mov_b64 exec, -1')
        else: e('s_mov_b64 exec, 0xffffffff')
        tag = e(f'buffer_load_dword {dst}, {v(t)}, {s(sWA if typ == 0 else sWB,4)}, {s(sT[4])} offen offset:{"QKV".index(kinds[0])*1024}')
        if kinds != 'KV': e('s_mov_b64 exec, -1')
        return tag
    def code_touch(self, dst):
        return self.e(f'buffer_load_dword {dst}, {v(vL16)}, {s(sCODE,4)}, {s(sCOFF)} offen')
    def dummy(self, i):
        e = self.e
        if i < 4: return e(f'buffer_store_dwordx4 {v(vSEL,4)}, {v(vL16)}, {s(sWS,4)}, {s((sOwr, sXwr)[i >> 1])} offen offset:{(i & 1)*1024} sc1')
        return e(f'buffer_store_dword {v(vSEL)}, {v(vSTst)}, {s(sWS,4)}, {s(sSTwr)} offen sc1')

    def prologue(self):
        e = self.e
        T = sT
        e('s_cmp_ge_u32 s2, 256\ns_cbranch_scc1 L_fail')
        if self.o.echo and self.o.echo[0] == 'entry': e(f'{self.o.clk} {s(sE0,2)}')
        for srd, off in ((sX, 0), (sWA, 8), (sWS, 72), (sWOA, 16), (sWB, 32), (sWP, 40), (sWOB, 48), (sOUT, 56), (sDBG, 64)):
            e(f's_load_dwordx2 {s(srd,2)}, s[0:1], {off}')
        e(f's_getpc_b64 {s(sCODE,2)}')
        e(f'v_and_b32 {v(vLane)}, 63, v0\nv_lshrrev_b32 {v(vTM)}, 6, v0')
        e(f's_mov_b32 {s(sCODE+2)}, L_code_end-{NAME}_kernel-128\ns_mov_b32 {s(sCODE+3)}, 0x20000')
        e(f'v_readfirstlane_b32 {s(sW)}, {v(vTM)}')
        e(f'v_lshlrev_b32 {v(vL16)}, 4, {v(vLane)}')
        e(f's_lshr_b32 {s(sG)}, s2, 3\ns_lshl2_add_u32 {s(T[0])}, {s(sG)}, {s(sW)}')
        e(f's_and_b32 {s(T[0])}, {s(T[0])}, 63\ns_lshl_b32 {s(T[0])}, {s(T[0])}, 10\ns_min_u32 {s(sCOFF)}, {s(T[0])}, L_code_end-{NAME}_kernel-128-1024')
        self.code_touch('a255')
        e(f'v_lshlrev_b32 {v(vTM+6)}, 7, {v(vLane)}')
        for srd, sz in ((sX, 0x200000), (sWA, 0x180000), (sWS, WS_BYTES)):
            e(f's_mov_b32 {s(srd+2)}, {sz}\ns_mov_b32 {s(srd+3)}, 0x20000')
        t0, t1, t2 = vA1, vA1 + 1, vA1 + 2
        e(f'''
        s_and_b32 {s(sR)}, s2, 7
        s_lshl_b32 {s(sR)}, {s(sR)}, 1
        s_lshr_b32 {s(T[0])}, s2, 7
        s_add_u32 {s(sR)}, {s(sR)}, {s(T[0])}
        s_and_b32 {s(sG)}, {s(sG)}, 15
        s_lshl_b32 {s(sRB)}, {s(sR)}, 2
        s_add_u32 {s(sRB)}, {s(sRB)}, {s(sW)}
        s_and_b32 {s(sROT)}, {s(sG)}, 1
        s_lshl1_add_u32 {s(sROT)}, {s(sROT)}, {s(T[0])}
        s_lshl_b32 {s(sROT)}, {s(sROT)}, 1
        s_and_b32 {s(sROT)}, {s(sROT)}, {self.o.rotm}
        s_lshr_b32 {s(T[1])}, {s(sG)}, 1
        s_xor_b32 {s(sROT)}, {s(sROT)}, {s(T[1])}
        s_xor_b32 {s(sROT)}, {s(sROT)}, s2
        s_cmp_eq_u32 {s(T[1])}, {self.o.p3}
        s_cselect_b32 {s(T[1])}, 6, {self.o.rotf}
        s_and_b32 {s(sROT)}, {s(sROT)}, {s(T[1])}
        s_lshl_b32 {s(sX0g)}, {s(sRB)}, 8
        s_add_u32 {s(sX0g)}, {s(sX0g)}, {s(sROT)}
        s_lshl_b32 {s(sX0g)}, {s(sX0g)}, 7
        s_lshl_b32 {s(sX0l)}, {s(sW)}, 12
        s_add_u32 {s(sX0l)}, {s(sX0l)}, {3*SLOT}
        s_lshl_b32 {s(sW0l)}, {s(sW)}, 10
        s_lshl2_add_u32 {s(sW0g)}, {s(sROT)}, {s(sW)}
        s_lshl_b32 {s(sW0g)}, {s(sW0g)}, 10
        s_lshl_b32 {s(T[2])}, {s(sG)}, 6
        v_lshrrev_b32 {v(vWdma)}, 2, {v(vLane)}
        v_mul_u32_u24 {v(vWdma)}, 3072, {v(vWdma)}
        v_and_b32 {v(vTM+5)}, 3, {v(vLane)}
        v_lshl_add_u32 {v(vWdma)}, {v(vTM+5)}, 4, {v(vWdma)}
        v_add_u32 {v(vWdma)}, {s(T[2])}, {v(vWdma)}
        v_lshrrev_b32 {v(vTM+4)}, 4, {v(vLane)}
        v_and_b32 {v(t2)}, 7, {v(vLane)}
        v_xor_b32 {v(t1)}, {v(t2)}, {v(vTM+4)}
        v_lshlrev_b32 {v(t1)}, 4, {v(t1)}
        v_lshrrev_b32 {v(t0)}, 3, {v(vLane)}
        v_lshl_add_u32 {v(vWPH)}, {v(t0)}, 10, {v(t1)}
        v_xor_b32 {v(vWPH+1)}, 64, {v(vWPH)}
        v_add_u32 {v(vWPH+1)}, {7168}, {v(vWPH+1)}
        v_add_u32 {v(vWPH+2)}, {2*7168}, {v(vWPH)}
        v_add_u32 {v(vWPH+3)}, {2*7168}, {v(vWPH+1)}
        v_and_b32 {v(vTM)}, 31, {v(vLane)}
        v_lshrrev_b32 {v(vTM+1)}, 5, {v(vLane)}
        v_lshlrev_b32 {v(vL4)}, 2, {v(vLane)}
        ''')
        e(f'''
        s_lshl_b32 {s(T[3])}, {s(sG)}, 2
        s_add_u32 {s(T[3])}, {s(T[3])}, {s(sW)}
        s_lshl_b32 {s(sKVrdB)}, {s(T[3])}, 13
        s_add_u32 {s(sKVrdB)}, {s(sKVrdB)}, {KVP}
        s_lshl_b32 {s(sZrdB)}, {s(T[3])}, 10
        s_add_u32 {s(sZrdB)}, {s(sZrdB)}, {ZP}
        s_lshl_b32 {s(T[4])}, {s(sR)}, 9
        s_add_u32 {s(sKVwrB)}, {s(sKVrdB)}, {s(T[4])}
        s_lshl_b32 {s(T[5])}, {s(sR)}, 6
        s_add_u32 {s(sZwrB)}, {s(sZrdB)}, {s(T[5])}
        v_and_b32 {v(vFl16)}, 60, {v(vL4)}
        v_lshlrev_b32 {v(t0)}, 2, {v(vFl16)}
        v_lshl_add_u32 {v(t0)}, {v(vTM+1)}, 8, {v(t0)}
        v_and_b32 {v(t1)}, 1, {v(vTM+4)}
        v_lshl_add_u32 {v(vE1st)}, {v(t1)}, 3, {v(t0)}
        v_lshl_add_u32 {v(vZst)}, {v(vTM+4)}, 26, {v(vFl16)}
        s_lshr_b32 {s(sSKIP)}, {s(sR)}, 3
        s_lshr_b32 {s(T[1])}, {s(sW)}, 1
        s_xor_b32 {s(sSKIP)}, {s(sSKIP)}, {s(T[1])}
        s_lshl_b32 {s(sSKIP)}, {s(sSKIP)}, 28
        v_mov_b32 {v(vA0+4)}, 0
        s_lshr_b32 {s(sFOwr)}, {s(sG)}, 1
        s_lshl_b32 {s(sFOwr)}, {s(sFOwr)}, 13
        s_add_u32 {s(sFOwr)}, {s(sFOwr)}, {s(T[4])}
        s_and_b32 {s(sFOrd)}, {s(sG)}, 1
        s_lshl_b32 {s(sFOrd)}, {s(sFOrd)}, 8
        s_add_u32 {s(sFOwr)}, {s(sFOwr)}, {s(sFOrd)}
        ''')
        e(f'v_lshrrev_b32 {v(t0)}, 2, {v(vLane)}\nv_lshl_add_u32 {v(vCS+7)}, {v(t0)}, 26, {v(vTM+6)}\nv_lshl_add_u32 {v(vCS+6)}, {v(vTM+4)}, 26, {v(vTM+6)}')
        for srd, sz in ((sWOA, 0x80000), (sWB, 0x180000), (sWOB, 0x80000)):
            e(f's_mov_b32 {s(srd+2)}, {sz}\ns_mov_b32 {s(srd+3)}, 0x20000')
        if self.o.twin: e(f's_and_b32 {s(T[5])}, {s(sG)}, 1\ns_lshl_b32 {s(T[4])}, {s(T[5])}, 11\ns_lshl_b32 {s(T[5])}, {s(T[5])}, 14\ns_add_u32 {s(T[4])}, {s(T[4])}, {s(sX0l)}\ns_add_u32 {s(T[5])}, {s(T[5])}, {s(sX0g)}')
        e('s_waitcnt lgkmcnt(0)')
        if self.o.stamps:
            e(f's_memrealtime {s(sTS,2)}'); e.wait_all_lg()
            e(f'v_writelane_b32 {v(vSTAMP)}, {s(sTS)}, 62')
        self.stamp('start')
        self.ct = [None] * 8
        for c in self.o.t0: self.touch(int(c, 16))
        for n in range(6): self.ct[0] = self.dma0(0, n)
        for c in self.o.t1: self.touch(int(c, 16))
        if self.o.q0 > 0: self.dma0q(0)
        for n in range(self.o.c1early): self.ct[1] = self.dma0(1, n)
        e(f's_and_b32 {s(sFOrd)}, {s(T[3])}, 0x33\ns_cbranch_scc1 L_noclr')
        e.raw(f'buffer_store_dword {v(vA0+4)}, {v(vL4)}, {s(sWS,4)}, {s(sFOwr)} offen sc1')
        e('L_noclr:')
        self.clear_slot(0, vM1, *self.e1_addr(0, vA0 + 6))
        for srd, sz in ((sWP, 0x4000), (sOUT, 0x200000), (sDBG, 256)):
            e(f's_mov_b32 {s(srd+2)}, {sz}\ns_mov_b32 {s(srd+3)}, 0x20000')
        e(f'''
        s_and_b32 {s(T[0])}, {s(sW)}, 1
        s_lshr_b32 {s(T[1])}, {s(sW)}, 1
        s_lshl_b32 {s(sRBO)}, {s(sR)}, 2
        s_lshr_b32 {s(T[4])}, {s(sG)}, 3
        s_lshl_b32 {s(T[4])}, {s(T[4])}, 1
        s_add_u32 {s(T[4])}, {s(T[4])}, {s(T[0])}
        s_add_u32 {s(sRBO)}, {s(sRBO)}, {s(T[4])}
        s_lshl_b32 {s(T[3])}, {s(T[4])}, 12
        s_add_u32 {s(T[3])}, {s(T[3])}, {3*SLOT}
        s_and_b32 {s(sJ)}, {s(sG)}, 7
        s_xor_b32 {s(sRESP)}, {s(sJ)}, {s(sROT)}
        s_lshl_b32 {s(sJ)}, {s(sJ)}, 1
        s_add_u32 {s(sJ)}, {s(sJ)}, {s(T[1])}
        s_lshl_b32 {s(sXO)}, {s(sRBO)}, 15
        s_lshl_b32 {s(T[2])}, {s(T[1])}, 14
        s_add_u32 {s(sXO)}, {s(sXO)}, {s(T[2])}
        s_and_b32 {s(T[2])}, {s(sG)}, 7
        s_lshl_b32 {s(T[2])}, {s(T[2])}, 7
        s_add_u32 {s(sXO)}, {s(sXO)}, {s(T[2])}
        s_and_b32 {s(T[4])}, {s(sG)}, 1
        s_and_b32 {s(T[5])}, {s(sR)}, 1
        s_lshl1_add_u32 {s(T[4])}, {s(T[4])}, {s(T[5])}
        s_and_b32 {s(T[4])}, {s(T[4])}, {self.o.rotw}
        s_lshl2_add_u32 {s(T[4])}, {s(T[4])}, {s(sW)}
        s_lshl_b32 {s(sRw)}, {s(T[4])}, 11
        s_lshr_b32 {s(T[4])}, {s(sG)}, 3
        s_lshl1_add_u32 {s(T[4])}, {s(T[4])}, {s(T[5])}
        s_and_b32 {s(T[4])}, {s(T[4])}, {self.o.roto}
        s_lshl2_add_u32 {s(T[4])}, {s(T[4])}, {s(sW)}
        s_lshl_b32 {s(sRo)}, {s(T[4])}, 11
        s_lshl_b32 {s(T[4])}, {s(T[1])}, 12
        s_add_u32 {s(sKVrdA)}, {s(sKVrdB)}, {s(T[4])}
        s_lshl_b32 {s(T[4])}, {s(T[1])}, 9
        s_add_u32 {s(sZrdA)}, {s(sZrdB)}, {s(T[4])}
        s_lshl_b32 {s(T[4])}, {s(sRB)}, 15
        s_add_u32 {s(sXrd)}, {s(T[4])}, {XB}
        s_lshl_b32 {s(T[5])}, {s(sG)}, 11
        s_add_u32 {s(sOwr)}, {s(T[4])}, {s(T[5])}
        s_add_u32 {s(sOwr)}, {s(sOwr)}, {OB}
        s_lshl_b32 {s(T[4])}, {s(sRBO)}, 15
        s_lshl_b32 {s(T[5])}, {s(T[2])}, 5
        s_add_u32 {s(sXwr)}, {s(T[4])}, {s(T[5])}
        s_lshl_b32 {s(T[5])}, {s(T[1])}, 8
        s_add_u32 {s(sXwr)}, {s(sXwr)}, {s(T[5])}
        s_add_u32 {s(sXwr)}, {s(sXwr)}, {XB}
        s_lshl_b32 {s(T[5])}, {s(T[1])}, 10
        s_add_u32 {s(sOrd)}, {s(T[4])}, {s(T[5])}
        s_add_u32 {s(sOrd)}, {s(sOrd)}, {OB}
        s_lshl_b32 {s(sSTrd)}, {s(sRB)}, 11
        s_add_u32 {s(sSTrd)}, {s(sSTrd)}, {ST}
        s_lshl_b32 {s(sSTwr)}, {s(sRBO)}, 11
        s_and_b32 {s(T[4])}, {s(sG)}, 6
        s_add_u32 {s(T[4])}, {s(T[4])}, {s(T[1])}
        s_lshl_b32 {s(T[5])}, {s(T[4])}, 8
        s_add_u32 {s(sSTwr)}, {s(sSTwr)}, {s(T[5])}
        s_and_b32 {s(T[5])}, {s(sG)}, 1
        s_lshl3_add_u32 {s(sSTwr)}, {s(T[5])}, {s(sSTwr)}
        s_add_u32 {s(sSTwr)}, {s(sSTwr)}, {ST}
        s_lshl_b32 {s(sFXrd)}, {s(sRB)}, 7
        s_lshl_b32 {s(T[5])}, {s(sG)}, 2
        s_add_u32 {s(sFOwr)}, {s(sFXrd)}, {s(T[5])}
        s_add_u32 {s(sFXrd)}, {s(sFXrd)}, {FLG_X}
        s_lshl_b32 {s(sFOrd)}, {s(sRBO)}, 7
        s_lshl_b32 {s(T[5])}, {s(sJ)}, 2
        s_add_u32 {s(sFXwr)}, {s(sFOrd)}, {s(T[5])}
        s_add_u32 {s(sFXwr)}, {s(sFXwr)}, {FLG_X}
        s_mov_b32 {s(sONES)}, 0x3f803f80
        s_mov_b32 {s(sPERM)}, 0x07060302
        s_mov_b32 {s(sHI)}, 0xffff0000
        s_mov_b32 {s(sL2E)}, 0x3fb8aa3b
        s_mov_b32 {s(sL2E+1)}, 0x3fb8aa3b
        s_mov_b32 {s(sEPS6)}, 0x358637bd
        s_mov_b32 {s(sEPS6+1)}, 0x358637bd
        s_getreg_b32 {s(sXCC)}, hwreg(HW_REG_XCC_ID, 0, 3)
        s_lshl_b32 {s(sXCC)}, {s(sXCC)}, 2
        s_mov_b32 {s(sBUD)}, {100000 if self.o.stamps else 400000}
        ''')
        e(f'''
        v_add_lshl_u32 {v(vSTst)}, {v(vFl16)}, {v(vTM+1)}, 2
        v_lshrrev_b32 {v(t0)}, 3, {v(vLane)}
        v_lshlrev_b32 {v(t1)}, 1, {v(vTM+4)}
        v_xor_b32 {v(t1)}, {v(t1)}, {v(t2)}
        v_lshlrev_b32 {v(t1)}, 4, {v(t1)}
        v_lshl_add_u32 {v(vWOdma)}, {v(t0)}, 10, {v(t1)}
        v_add_u32 {v(vWOdma)}, {s(T[2])}, {v(vWOdma)}
        ''')
        e(f'''
        v_bfe_u32 {v(t0)}, {v(vLane)}, 2, 2
        v_lshl_add_u32 {v(t0)}, {v(vTM+1)}, 2, {v(t0)}
        v_lshlrev_b32 {v(t0)}, 6, {v(t0)}
        v_and_b32 {v(t1)}, 1, {v(vTM+4)}
        v_lshl_add_u32 {v(t0)}, {v(t1)}, 5, {v(t0)}
        v_and_b32 {v(t1)}, 1, {v(vLane)}
        v_lshl_add_u32 {v(t0)}, {v(t1)}, 4, {v(t0)}
        v_bfe_u32 {v(t1)}, {v(vLane)}, 1, 1
        v_lshl_add_u32 {v(t0)}, {v(t1)}, 3, {v(t0)}
        v_bfe_u32 {v(t1)}, {v(vLane)}, 1, 3
        v_lshlrev_b32 {v(t2)}, 1, {v(vTM+1)}
        v_xor_b32 {v(t1)}, {v(t1)}, {v(t2)}
        v_lshlrev_b32 {v(t1)}, 4, {v(t1)}
        v_lshl_add_u32 {v(t1)}, {v(vTM)}, 7, {v(t1)}
        s_lshl_b32 {s(T[4])}, {s(T[1])}, 11
        s_add_u32 {s(T[4])}, {s(T[4])}, {s(T[3])}
        v_bfe_u32 {v(t2)}, {v(vLane)}, 1, 3
        v_xor_b32 {v(t2)}, {v(t2)}, {v(vTM+1)}
        v_lshl_add_u32 {v(t2)}, {v(t2)}, 4, {s(T[4])}
        v_lshl_add_u32 {v(t2)}, {v(vFl16)}, 5, {v(t2)}
        v_and_b32 {v(vA0+5)}, 1, {v(vTM+4)}
        v_lshl_add_u32 {v(vA0+5)}, {v(vA0+5)}, 3, {v(t2)}
        v_add_u32 {v(t1)}, {s(sX0l)}, {v(t1)}
        s_lshl_b32 {s(T[4])}, {s(sW)}, 13
        v_add_u32 {v(vSVw)}, {s(T[4])}, {v(t0)}
        s_lshl2_add_u32 {s(T[5])}, {s(sW)}, {L_CS}
        v_lshl_add_u32 {v(vCSa)}, {v(vTM)}, 4, {s(T[5])}
        ''')
        for q in range(4):
            e(f'''
            s_xor_b32 {s(T[4])}, {s(sW)}, {q}
            s_lshr_b32 {s(T[5])}, {s(T[4])}, 1
            s_lshl_b32 {s(T[5])}, {s(T[5])}, 2
            s_and_b32 {s(T[4])}, {s(T[4])}, 1
            s_add_u32 {s(T[4])}, {s(T[4])}, {s(T[5])}
            s_lshl_b32 {s(T[5])}, {s(T[4])}, 9
            v_add_u32 {v(vWtr+q)}, {s(T[5])}, {v(t0)}
            s_lshl_b32 {s(T[5])}, {s(T[4])}, 4
            v_xor_b32 {v(vWPH+4+q)}, {s(T[5])}, {v(t1)}
            ''')
        if self.o.padp == -3: self.warm()
        e(f'''
        s_lshl_b32 {s(T[4])}, {s(sW)}, 9
        s_add_u32 {s(T[4])}, {s(T[4])}, {L_PK}
        v_lshl_add_u32 {v(t0)}, {v(vTM)}, 4, {s(T[4])}
        v_mul_u32_u24 {v(t1)}, {PL}, {v(vTM+1)}
        v_add_u32 {v(vPKwA)}, {v(t0)}, {v(t1)}
        v_lshl_add_u32 {v(vPKwB)}, {v(t1)}, 2, {v(t0)}
        v_bfe_u32 {v(t0)}, {v(vLane)}, 1, 1
        v_mul_u32_u24 {v(t0)}, {PL}, {v(t0)}
        v_lshrrev_b32 {v(t1)}, 2, {v(vLane)}
        v_lshl_add_u32 {v(t0)}, {v(t1)}, 4, {v(t0)}
        v_and_b32 {v(t1)}, 1, {v(vLane)}
        v_lshl_add_u32 {v(t0)}, {v(t1)}, 3, {v(t0)}
        s_mul_i32 {s(T[4])}, {s(sW)}, {2*PL}
        s_add_u32 {s(T[4])}, {s(T[4])}, {L_PK}
        v_add_u32 {v(vPKrB)}, {s(T[4])}, {v(t0)}
        s_mul_i32 {s(T[4])}, {s(T[0])}, {2*PL}
        s_add_u32 {s(T[4])}, {s(T[4])}, {L_PK}
        v_add_u32 {v(vPKrA)}, {s(T[4])}, {v(t0)}
        ''')
        e(f'''
        s_mul_i32 {s(T[4])}, {s(sW)}, 544
        s_add_u32 {s(T[4])}, {s(T[4])}, {L_KV}
        v_lshl_add_u32 {v(t0)}, {v(vFl16)}, 3, {s(T[4])}
        v_lshl_add_u32 {v(vKVw)}, {v(vTM+4)}, 3, {v(t0)}
        v_lshrrev_b32 {v(t0)}, 1, {v(vFl16)}
        v_add_u32 {v(vZw)}, {s(T[4])}, {v(t0)}
        v_min_u32 {v(t0)}, 16, {v(vTM)}
        v_lshlrev_b32 {v(t0)}, 5, {v(t0)}
        v_add_u32 {v(t0)}, {L_KV}, {v(t0)}
        v_lshl_add_u32 {v(vKVrA)}, {v(vTM+1)}, 4, {v(t0)}
        v_mul_u32_u24 {v(t1)}, 1088, {v(vTM+1)}
        v_add_u32 {v(vKVrB)}, {v(t0)}, {v(t1)}
        ''')
        e(f'''
        v_bfe_u32 {v(t0)}, {v(vLane)}, 2, 3
        v_lshlrev_b32 {v(t0)}, 7, {v(t0)}
        v_lshl_add_u32 {v(t0)}, {v(vTM+5)}, 3, {v(t0)}
        v_bfe_u32 {v(t1)}, {v(vLane)}, 3, 2
        v_lshl_add_u32 {v(t0)}, {v(t1)}, 5, {v(t0)}
        v_lshl_add_u32 {v(vWO)}, {v(vTM+1)}, 11, {v(t0)}
        v_lshlrev_b32 {v(t1)}, 5, {v(vTM+1)}
        v_xor_b32 {v(t0)}, {v(t0)}, {v(t1)}
        s_lshl_b32 {s(T[5])}, {s(sW)}, 11
        v_add_u32 {v(vSVo)}, {s(T[5])}, {v(t0)}
        ''')
        e(f'''
        v_and_b32 {v(t0)}, 1, {v(vLane)}
        v_lshlrev_b32 {v(t0)}, 4, {v(t0)}
        v_mov_b32 {v(t1)}, 0x3f80
        v_lshlrev_b32 {v(t0)}, {v(t0)}, {v(t1)}
        v_lshrrev_b32 {v(t1)}, 1, {v(vLane)}
        v_xor_b32 {v(t1)}, {v(t1)}, {v(vLane)}
        v_and_b32 {v(t1)}, 8, {v(t1)}
        v_bfe_u32 {v(t2)}, {v(vLane)}, 1, 2
        v_or_b32 {v(t1)}, {v(t1)}, {v(t2)}
        ''')
        for d in range(4):
            e(f'v_cmp_eq_u32 vcc, {d}, {v(t1)}\nv_cndmask_b32 {v(vSEL+d)}, 0, {v(t0)}, vcc')
        e(f'v_mov_b32 {v(vTM+4)}, {v(vA0+5)}')
        if self.o.padp == -2: self.warm()
        for n in range(self.o.c1early, 6): self.ct[1] = self.dma0(1, n, again=(n == self.o.c1early))
        if self.o.q0 > 1: self.dma0q(1)
        if self.o.dummy < 0:
            for i in range(5): self.dummy(i)
        for c in self.o.t2: self.touch(int(c, 16))
        if self.o.padp == -1: self.warm()
        e('s_branch L_main\n.p2align 12\nL_main:')
        self.stamp('setup')

    def big(self, acc, w, k, first):
        self.e(f'v_mfma_f32_32x32x16_bf16 {v(acc,16)}, {R(w[0],w[1],4)}, {v(vXF+4*k,4)}, {0 if first else v(acc,16)}')
    def own(self, item, n):
        if n == 0:
            prev = self.bayocc.get(BAY[item]); assert prev is None
            self.bayocc[BAY[item]] = item
        self.bgn['S' + item] = n + 1; self.bgt['S' + item] = 0; self.insave.add(item)
        return ('a', BAY[item]*32 + 4*n)
    def warm(self):
        if not self.o.pads: return
        e = self.e
        e(f's_mov_b64 exec, 0')
        for w in range(3): e(f's_cmp_eq_u32 {s(sW)}, {w}\ns_cbranch_scc1 L_pad{w}')
        e('s_branch L_pad3\nL_warm_done:\ns_mov_b64 exec, -1\ns_nop 3')
    def par_sel(self, dst):
        e = self.e
        e(f's_mov_b32 vcc_lo, 0xf0f00f0f\ns_mov_b32 vcc_hi, 0xf0f00f0f\nv_mov_b32 {v(dst+1)}, {s(sONES)}')
        e(f'v_cndmask_b32 {v(dst)}, 0, {v(dst+1)}, vcc')
        for i in (1, 2, 3): e(f'v_mov_b32 {v(dst+i)}, {v(dst)}')
    def rowsum(self, acc, sel, frag, first):
        self.e(f'v_mfma_f32_16x16x32_bf16 {acc}, {v(sel,4)}, {R(frag[0],frag[1],4)}, {0 if first else acc}')

    def kv_gemm0(self):
        e = self.e
        sel = vCS + 8
        self.par_sel(sel)
        aS, aK, aV = a(240, 4), a(244, 4), a(248, 4)
        wt = [None] * 32; xt = [None] * 32; wk = [None] * 32; wv = [None] * 32
        dl = []
        def dma(n):
            for _ in range(n):
                if dl:
                    P, i = dl.pop(0)
                    if P < 8: self.ct[P] = self.dma0(P, i)
                    elif P == 8: self.bgt['LQA'] = self.dma0q(i); self.bgn['LQA'] = i + 1
                    elif P == 9: self.touch(i)
                    elif P == 11: self.dummy(i)
                    elif P == 12: self.code_touch('a255')
                    elif P == 10: self.clr1 = self.clear_slot(1, vM1, vE1st, vZst)
        cK, cV = vCS + 2, vCS + 4
        sb = vWPH
        q0, q1 = vTM, vTM + 1
        dq = []
        sops = [f'v_accvgpr_read_b32 {v(sb)}, a240', f'v_add_f32 {v(sb+1)}, {v(q0)}, {v(q1)}', f'v_mov_b32 {v(sb+3)}, {v(sb+1)}',
                f'v_permlane32_swap_b32 {v(sb+1)}, {v(sb+3)}', f'v_add_f32 {v(sb+1)}, {v(sb+1)}, {v(sb+3)}'] + self.stats_tail(sb)
        if self.o.sdot:
            sops = [f'v_mov_b32 {v(sb+2)}, {v(q0)}\nv_mov_b32 {v(sb+3)}, {v(q1)}', f'v_permlane32_swap_b32 {v(q0)}, {v(sb+2)}', f'v_permlane32_swap_b32 {v(q1)}, {v(sb+3)}',
                    f'v_add_f32 {v(sb)}, {v(q0)}, {v(sb+2)}', f'v_add_f32 {v(sb+1)}, {v(q1)}, {v(sb+3)}'] + self.stats_tail(sb)
        def pop(n):
            for _ in range(n):
                if k >= 28 and sops: e(sops.pop(0))
        nq = self.o.q0
        touches = {int(x[0]): [int(c, 16) for c in x[1:]] for x in self.o.touch.split(',') if x}
        for k in range(-2, 32):
            if k + 2 < 32:
                nb = vWB + ((k + 2) % 3) * 8
                wk[k+2], wv[k+2] = (self.own('KA', (k+2) >> 2), self.own('VA', (k+2) >> 2)) if (k + 2) % 4 == 0 else (('v', nb), ('v', nb + 4))
            fr = [k + 1] if -1 <= k < 27 else ([28, 29, 30, 31] if k == 27 else [])
            bound = (k + 2) % 4 == 0 and k + 2 < 32
            if k >= 0:
                e.wait(lg=max(wt[k], xt[k]))
                if k % 4 == 0:
                    self.rowsum(aK, sel, wk[k], k == 0); self.rowsum(aV, sel, wv[k], k == 0)
                self.big(vA0, wk[k], k, k == 0)
            if bound:
                P = (k + 2) >> 2
                dma(99)
                if P == self.o.padp: self.warm()
                e.wait(vm=self.ct[P])
                e('s_barrier')
                if P == 0 or self.o.fine: self.stamp(f'chunk{P}')
                for q in range(4):
                    xt[4*P+q] = e(f'ds_read_b128 {v(vXF+16*P+4*q,4)}, {v(vWPH+4+q)} offset:{(P%3)*16384}')
                if P + 2 < 8: dl += [(P + 2, i) for i in range(6)]
                if P == self.o.clrp: dl += [(10, 0)]
                for _ in range(int(self.o.qs[P])):
                    dl += [(8, nq)]; nq += 1
                if P == 5 and self.o.ctouch & 4: dl += [(12, 0)]
                dl += [(9, i) for i in touches.get(P, [])]
                if P == 6 and self.o.tq: dl[1:1] = [(9, int(c)) for c in self.o.tq]
                if self.o.dummy == 7 and P == 7: dl += [(11, i) for i in range(4)]
                elif self.o.dummy > 0 and 0 <= P - self.o.dummy < 3: dl += [(11, i) for i in ((0, 1), (2, 3), (4,))[P - self.o.dummy]]
            else:
                dma(1)
            if k + 2 < 32: self.tr_w(wk[k+2], k + 2, 0)
            if k == 28:
                dma(99)
                cw = self.cs_write(['a244', 'a248'], [1, 2])
            pop(3 if k == 28 else 5)
            for f in fr:
                e.wait(lg=xt[f])
                if not self.o.sdot: self.rowsum(aS, sel, ('v', vXF + 4*f), f == 0)
            if k == 31:
                assert not sops
                e(f'v_mfma_f32_32x32x8_bf16 {v(vA1,16)}, {v(cV,2)}, {v(vMF,2)}, {v(vA1,16)}')
            if k >= 0:
                self.big(vA1, wv[k], k, k == 0)
            if -1 <= k < 31:
                for i in range(2): e(f'v_permlane32_swap_b32 {v(vXF+4*k+4+i)}, {v(vXF+4*k+6+i)}')
            if k + 2 < 32: wt[k + 2] = self.tr_w(wv[k+2], k + 2, SLOT)
            if bound:
                e(f's_cmp_lg_u32 {s(sRESP)}, {P}\ns_cbranch_scc1 L_nores{P}')
                for t in range(4):
                    if t: e(f'v_xor_b32 {v(vTM+4)}, {32*(t ^ (t-1))}, {v(vTM+4)}')
                    e.raw(f'ds_read_b64 {v(vRES+2*t,2)}, {v(vTM+4)} offset:{(P%3)*16384}')
                e(f'L_nores{P}:')
            dma(1)
            if k % 4 == 3 and k < 28 or k == -1:
                e.wait(lg=xt[k + 4])
                for f in range(k + 1, k + 5):
                    for i in range(4):
                        if self.o.sdot:
                            e(f'v_dot2_f32_bf16 {v(q0)}, {v(vXF+4*f+i)}, {s(sONES)}, {v(q0) if (f or i) else 0}')
                            e(f'v_dot2_f32_bf16 {v(q1)}, {v(vXF+4*f+i)}, {v(vXF+4*f+i)}, {v(q1) if (f or i) else 0}')
                        else: e(f'v_dot2_f32_bf16 {v((q0, q1)[i&1])}, {v(vXF+4*f+i)}, {v(vXF+4*f+i)}, {v((q0, q1)[i&1]) if (f or i > 1) else 0}')
            pop(5)
            if k == 4 * self.o.atp - 1:
                e(f'''
                s_cmp_lg_u32 {s(sW)}, 0
                s_cbranch_scc1 L_noat
                s_lshr_b32 {s(sT[5])}, {s(sG)}, 3
                s_lshl1_add_u32 {s(sT[5])}, {s(sR)}, {s(sT[5])}
                s_lshl_b32 {s(sT[5])}, {s(sT[5])}, 2
                s_lshl_b32 {s(sAT)}, 1, {s(sXCC)}
                s_atomic_add {s(sAT)}, {s(sDBG,2)}, {s(sT[5])}
                L_noat:
                ''')
            if k == 28:
                e.wait(lg=cw); e('s_barrier')
                self.dead.add((9, 'x'))
                if self.o.fine: self.stamp('g28')
                r1 = self.cs_read(1, vWPH + 4)
                r2 = self.cs_read(2, vCS + 8)
            self.k0 = k
            if k >= 2: self.bg(f'kv{k}')
            if k == 29:
                assert not sops
                e.wait(lg=r2)
                sops += self.cs_pack_ops(vWPH + 4, cK) + self.cs_pack_ops(vCS + 8, cV)
            if k == 30: e(f'v_mfma_f32_32x32x8_bf16 {v(vA0,16)}, {v(cK,2)}, {v(vMF,2)}, {v(vA0,16)}'); pop(5)
        assert not sops
        self.stamp('L0.kvgemm')

    def cs_write(self, acc, blk):
        tag = None
        for ac, b in zip(acc, blk):
            tag = self.e(f'ds_write_b32 {v(vCSa)}, {ac} offset:{b*512}')
        return tag
    def cs_read(self, blk, dst):
        self.e(f'v_and_b32 {v(dst)}, -16, {v(vCSa)}')
        return self.e(f'ds_read_b128 {v(dst,4)}, {v(dst)} offset:{blk*512}')
    def cs_pack_ops(self, src, out):
        return [f'v_add_f32 {v(src)}, {v(src)}, {v(src+2)}', f'v_add_f32 {v(src+1)}, {v(src+1)}, {v(src+3)}',
                f'v_add_f32 {v(src)}, {v(src)}, {v(src+1)}',
                f'v_and_b32 {v(src+1)}, {s(sHI)}, {v(src)}',
                f'v_sub_f32 {v(src+1)}, {v(src)}, {v(src+1)}',
                f'v_perm_b32 {v(out)}, {v(src+1)}, {v(src)}, {s(sPERM)}',
                f'v_and_b32 {v(src+2)}, {s(sHI)}, {v(src+1)}',
                f'v_sub_f32 {v(src+2)}, {v(src+1)}, {v(src+2)}',
                f'v_lshrrev_b32 {v(out+1)}, 16, {v(src+2)}']
    def cs_pack(self, src, out):
        for op in self.cs_pack_ops(src, out): self.e(op)

    def stats_ops(self, chk, par):
        b = vXF + 120; t = vTM
        p1 = []
        for i in range(2):
            if chk: p1 += [self.chk(chk, b+4*i, b+4*i+1, par, False), self.chk(chk, b+4*i+2, b+4*i+3, par, False)]
            p1 += [f'v_add_f32 {v(b+4*i+j)}, {v(b+4*i+j)}, {v(b+4*i+2+j)}' for j in range(2)]
        p1 += [f'v_add_f32 {v(t+j)}, {v(b+j)}, {v(b+4+j)}' for j in range(2)]
        p2 = [f'v_mov_b32 {v(t+2)}, {v(t)}', f'v_mov_b32 {v(t+3)}, {v(t+1)}',
              f'v_permlane32_swap_b32 {v(t)}, {v(t+2)}', f'v_permlane32_swap_b32 {v(t+1)}, {v(t+3)}',
              f'v_add_f32 {v(t)}, {v(t)}, {v(t+2)}', f'v_add_f32 {v(t+1)}, {v(t+1)}, {v(t+3)}']
        return p1, p2 + self.stats_tail(t)
    def stats_tail(self, b):
        ops = [
                f'v_mul_f32 {v(b)}, 0xbb000000, {v(b)}',
                f'v_mul_f32 {v(b+1)}, 0x3b000000, {v(b+1)}',
                f'v_fma_f32 {v(b+1)}, -{v(b)}, {v(b)}, {v(b+1)}',
                f'v_max_f32 {v(b+1)}, 0, {v(b+1)}',
                f'v_add_f32 {v(b+1)}, 0x3727c5ac, {v(b+1)}',
                f'v_rsq_f32 {v(vRS)}, {v(b+1)}',
                f'v_and_b32 {v(b+2)}, {s(sHI)}, {v(b)}',
                f'v_sub_f32 {v(b+2)}, {v(b)}, {v(b+2)}',
                f's_mov_b64 vcc, 0xffffffff',
                f'v_mul_f32 {v(vRS+1)}, {s(sL2E)}, {v(vRS)}',
                f'v_cndmask_b32 {v(b)}, {v(b+2)}, {v(b)}, vcc',
                f'v_perm_b32 {v(vMF)}, {v(b)}, {v(b)}, {s(sPERM)}',
                f'v_lshrrev_b32 {v(vMF+1)}, 16, {v(b)}']
        return ops

    def tr_w(self, dst, ks, extra):
        e = self.e; kind, r = dst
        if self.l >= 2: return e(f'ds_read_b128 {R(kind,r,4)}, {v(vWtr)} offset:{ks*1024 + extra}')
        if self.l == 0: ad, off = vWtr + (ks & 3), (ks >> 2) * 4096 + extra
        else:
            if ks >> 3 != self.wq: e(f'v_xor_b32 {v(vWtr)}, {((ks >> 3) ^ self.wq) * 8192}, {v(vWtr)}'); self.wq = ks >> 3
            ad, off = vWtr, ((ks & 7) >> 1) * 2048 + (ks & 1) * 512 + extra
        e(f'ds_read_b64_tr_b16 {R(kind,r,2)}, {v(ad)} offset:{off}')
        return e(f'ds_read_b64_tr_b16 {R(kind,r+2,2)}, {v(ad)} offset:{off + 1024}')

    def kv_gemm(self, l):
        e = self.e; typ = l & 1; first = l == 1
        chk = vTM + 4; par = (l - 1) & 1
        cK, cV = vCS + typ*6 + 2, vCS + typ*6 + 4
        xt = [None] * 32; wt = [None] * 32
        wk = [self.own('KB', k) if first and k < 8 else ('v', vWB + (k % 3)*8) for k in range(32)]
        wv = [self.own('VB', k) if first and k < 8 else ('v', vWB + (k % 3)*8 + 4) for k in range(32)]
        def xload(e, k):
            if k % 4 == 0: e(f's_xor_b32 {s(sT[0])}, {s(sT[2])}, {k*1024}')
            xt[k] = e(f'buffer_load_dwordx4 {v(vXF+4*k,4)}, {v(vL16)}, {s(sWS,4)}, {s(sT[0])} offen offset:{(k&3)*1024} sc1')
        PRE = self.o.xpre; SP = self.o.spx if l > 1 else 0
        sel = vCS + 8; aK, aV = a(192, 4), a(196, 4)
        def init():
            for k in range(2):
                self.tr_w(wk[k], k, 0)
                wt[k] = self.tr_w(wv[k], k, SLOT)
        def shadow():
            self.l = l - 1
            if self.late_stats: self.late_stats()
            self.bg('yp')
            self.need('KV', l)
            if l == 2: e.wait_all_lg()
            e('s_barrier')
            self.free('ab')
            self.bg('y1')
            self.l = l
            init()
            if first: self.par_sel(sel)
            self.bg('kvsh')
        self.hop(f'x{l}', sFXrd, l + 1, vTM + 5, xload, SP, shadow, init)
        if first: self.in_redo = False
        self.stamp(f'L{l-1}.poll3')
        for k in range(SP, PRE): xload(e, k)
        nx = PRE
        self.bg('kvpre')
        stt = None
        p1, p2 = self.stats_ops(None if first else chk, par)
        p0 = []
        EX = self.o.xextra if first else 0
        SL = self.o.stat_at; S0 = SL + 2 + PRE + EX
        def pop(n):
            for _ in range(n):
                if p0: e(p0.pop(0))
                elif k < S0: pass
                elif p1: e(p1.pop(0))
                elif p2: e(p2.pop(0))
        corr = False; cs = [(x, n) for n in range(8) for x in (0, 1)] if first else []
        CB = 99
        for k in range(32):
            e.wait(vm=xt[k], lg=wt[k])
            if k == 0: self.stamp(f'L{l}.x0')
            for _ in range(self.o.csrate):
                if cs and cs[0][1] <= k:
                    x, n = cs.pop(0)
                    self.rowsum((aK, aV)[x], sel, (wk, wv)[x][n], n == 0)
                    if not cs: CB = k + 1
            self.big(vA0, wk[k], k, k == 0)
            for _ in range(2 if (k % 2 == 1 and k < 2 * EX) else 1):
                if nx < 32:
                    if nx == 30:
                        assert k >= S0
                        while p1: e(p1.pop(0))
                    xload(e, nx); nx += 1
            if k + 2 < 32: self.tr_w(wk[k+2], k + 2, 0)
            if k == S0: e.wait(vm=stt)
            pop(1 if first else 2)
            self.bg(f'kv{k}')
            self.big(vA1, wv[k], k, k == 0)
            if SL <= k < SL + 2:
                stt = e(f'buffer_load_dwordx4 {v(vXF+120+4*(k-SL),4)}, {v(vL16)}, {s(sWS,4)}, {s(sSTrd)} offen offset:{(k-SL)*1024} sc1')
            if k == CB: cw = self.cs_write(['a192', 'a196'], [1, 2])
            if k + 2 < 32: wt[k + 2] = self.tr_w(wv[k+2], k + 2, SLOT)
            if k == CB + 1:
                e.wait(lg=cw); e('s_barrier')
                r1 = self.cs_read(1, vTM + 4)
            if k == CB + 3:
                e.wait(lg=r1); p0 += self.cs_pack_ops(vTM + 4, cK)
            if k == CB + 6:
                while p0: e(p0.pop(0))
                r2 = self.cs_read(2, vTM + 4)
            if k == CB + 8:
                e.wait(lg=r2); p0 += self.cs_pack_ops(vTM + 4, cV)
            if l > 1 and k % 2 == 1:
                e(self.chk(chk, vXF+4*k-4, vXF+4*k, par, k == 1))
                if k <= SP or k in self.o.echk: self.chk_end(chk, par, f'x{l}', vTM + 5)
            self.bg(f'kv{k}b')
            if not corr and not p0 and not p1 and not p2 and (not first or k > CB + 8):
                corr = True
                e(f'v_mfma_f32_32x32x8_bf16 {v(vA0,16)}, {v(cK,2)}, {v(vMF,2)}, {v(vA0,16)}')
                e(f'v_mfma_f32_32x32x8_bf16 {v(vA1,16)}, {v(cV,2)}, {v(vMF,2)}, {v(vA1,16)}')
            pop(2)
        assert corr
        if not first: self.chk_end(chk, par, f'x{l}')
        self.in_redo = False
        self.bg('kvend')
        self.stamp(f'L{l}.kvgemm')

    def scale_pack(self, acc, out, mid=None):
        e = self.e
        if mid:
            for i in range(16):
                e(f'v_mul_f32 {v(acc+i)}, {v(vRS)}, {v(acc+i)}')
                if i == 3: mid()
        else:
            for i in range(8):
                e(f'v_pk_mul_f32 {v(acc+2*i,2)}, {v(acc+2*i,2)}, {v(vRS,2)} op_sel_hi:[1,0]')
        for i in range(8):
            e(f'v_cvt_pk_bf16_f32 {v(out+i)}, {v(acc+2*i)}, {v(acc+2*i+1)}')
    def phi_a(self, acc, tmp, out, tag, after=None):
        e = self.e
        for hh in range(2):
            r = range(4*hh, 4*hh+4)
            for i in r: e(f'v_pk_mul_f32 {v(tmp+2*i,2)}, {v(acc+2*i,2)}, {v(vRS,2)} op_sel:[0,1] op_sel_hi:[1,1]')
            for i in r:
                e(f'v_exp_f32_e64 {v(tmp+2*i)}, {v(tmp+2*i)} clamp')
                e(f'v_exp_f32_e64 {v(tmp+2*i+1)}, {v(tmp+2*i+1)} clamp')
            self.bg(f'{tag}{2*hh}')
            for i in r: e(f'v_pk_fma_f32 {v(acc+2*i,2)}, {v(acc+2*i,2)}, {v(vRS,2)}, 1.0 op_sel_hi:[1,0,0]')
            for i in r:
                e(f'v_max_f32 {v(acc+2*i)}, {v(acc+2*i)}, {v(tmp+2*i)}')
                e(f'v_max_f32 {v(acc+2*i+1)}, {v(acc+2*i+1)}, {v(tmp+2*i+1)}')
            for i in r: e(f'v_pk_add_f32 {v(acc+2*i,2)}, {v(acc+2*i,2)}, {s(sEPS6,2)}')
            for i in r: e(f'v_cvt_pk_bf16_f32 {v(out+i)}, {v(acc+2*i)}, {v(acc+2*i+1)}')
            if after: after(hh)
            self.bg(f'{tag}{2*hh+1}')
    def softmax16(self, p, tm, out, tag, mid=None, wr=(), wlast=None):
        wr = list(wr)
        e = self.e
        e(f'v_max3_f32 {v(tm)}, {v(p)}, {v(p+1)}, {v(p+2)}')
        e(f'v_max3_f32 {v(tm+1)}, {v(p+3)}, {v(p+4)}, {v(p+5)}')
        if mid: mid()
        e(f'v_max3_f32 {v(tm)}, {v(tm)}, {v(p+6)}, {v(p+7)}')
        e(f'v_max3_f32 {v(tm+1)}, {v(tm+1)}, {v(p+8)}, {v(p+9)}')
        e(f'v_max3_f32 {v(tm)}, {v(tm)}, {v(p+10)}, {v(p+11)}')
        e(f'v_max3_f32 {v(tm+1)}, {v(tm+1)}, {v(p+12)}, {v(p+13)}')
        e(f'v_max3_f32 {v(tm)}, {v(tm)}, {v(p+14)}, {v(p+15)}')
        e(f'v_max_f32 {v(tm)}, {v(tm)}, {v(tm+1)}')
        e(f'v_mul_f32 {v(tm)}, {v(vRS+1)}, {v(tm)}')
        for i in range(8):
            e(f'v_pk_fma_f32 {v(p+2*i,2)}, {v(p+2*i,2)}, {v(vRS,2)}, {v(tm,2)} op_sel:[0,1,0] op_sel_hi:[1,1,0] neg_lo:[0,0,1] neg_hi:[0,0,1]')
        self.bg(tag + 'a')
        for i in range(16):
            e(f'v_exp_f32 {v(p+i)}, {v(p+i)}')
            if i in (3, 11) and wr: e(wr.pop(0))
            if i == 7: self.bg(tag + 'b')
        self.bg(tag + 'c')
        for i in range(4): e(f'v_pk_add_f32 {v(tm+2*i,2)}, {v(p+4*i,2)}, {v(p+4*i+2,2)}')
        e(f'v_pk_add_f32 {v(tm,2)}, {v(tm,2)}, {v(tm+2,2)}')
        e(f'v_pk_add_f32 {v(tm+4,2)}, {v(tm+4,2)}, {v(tm+6,2)}')
        e(f'v_pk_add_f32 {v(tm,2)}, {v(tm,2)}, {v(tm+4,2)}')
        e(f'v_add_f32 {v(tm)}, {v(tm)}, {v(tm+1)}')
        e(f'v_rcp_f32 {v(tm)}, {v(tm)}')
        self.bg(tag + 'd')
        if wlast:
            for h in range(2):
                for i in range(4*h, 4*h+4): e(f'v_pk_mul_f32 {v(p+2*i,2)}, {v(p+2*i,2)}, {v(tm,2)} op_sel_hi:[1,0]')
                for i in range(4*h, 4*h+4): e(f'v_cvt_pk_bf16_f32 {v(out+i)}, {v(p+2*i)}, {v(p+2*i+1)}')
                e(wlast[h])
            return
        for i in range(8): e(f'v_pk_mul_f32 {v(p+2*i,2)}, {v(p+2*i,2)}, {v(tm,2)} op_sel_hi:[1,0]')
        for i in range(8): e(f'v_cvt_pk_bf16_f32 {v(out+i)}, {v(p+2*i)}, {v(p+2*i+1)}')

    def kv_epilogue(self, l):
        e = self.e; typ = l & 1
        self.dump(f'L{l}.kv', [v(vA0+i) for i in range(32)] + [v(vRS)])
        self.set_wtr(SLOTS[l]['Q'], l)
        e(f's_add_u32 {s(sT[0])}, {s(sKVwrB)}, {l*0x80000}\ns_add_u32 {s(sT[1])}, {s(sZwrB)}, {l*0x10000}')
        if typ == 0:
            def wr(hh): e(f'ds_write_b128 {v(vPKwA)}, {v(vTM+4*hh,4)} offset:{2*hh*PL}')
            self.phi_a(vA0, vWB, vTM, 'ek', wr)
            for h in range(2):
                for i in range(4*h, 4*h+4): e(f'v_pk_mul_f32 {v(vA1+2*i,2)}, {v(vA1+2*i,2)}, {v(vRS,2)} op_sel_hi:[1,0]')
                for i in range(4*h, 4*h+4): e(f'v_cvt_pk_bf16_f32 {v(vA1+i)}, {v(vA1+2*i)}, {v(vA1+2*i+1)}')
                if self.o.defw: e(f'ds_write_b128 {v(vPKwA)}, {v(vA1+4*h,4)} offset:{(8+2*h)*PL}')
            if not self.o.defw:
                for h in range(2): e(f'ds_write_b128 {v(vPKwA)}, {v(vA1+4*h,4)} offset:{(8+2*h)*PL}')
        else:
            for i in range(8):
                e(f'v_cvt_pk_bf16_f32 {v(vTM+i)}, {v(vA0+2*i)}, {v(vA0+2*i+1)}')
                if i == 5: e(f'v_mfma_f32_32x32x16_bf16 {v(vWB,16)}, {v(vWPH,4)}, {v(vTM,4)}, 0')
            self.bg('es0')
            self.scale_pack(vA1, vA1, lambda: e(f'v_mfma_f32_32x32x16_bf16 {v(vA0,16)}, {v(vWPH+4,4)}, {v(vTM+4,4)}, 0'))
            wv = [f'ds_write_b128 {v(vPKwA)}, {v(vA1,4)} offset:{8*PL}', f'ds_write_b128 {v(vPKwA)}, {v(vA1+4,4)} offset:{10*PL}']
            wp = lambda hh, p: [f'ds_write_b128 {v(vPKwB)}, {v(p,4)} offset:{(2*hh)*PL}', f'ds_write_b128 {v(vPKwB)}, {v(p+4,4)} offset:{(2*hh+1)*PL}']
            if self.o.defw:
                self.bg('es1')
                self.softmax16(vWB, vTM, vWB, 'ek0', wr=wv)
                self.softmax16(vA0, vTM, vA0, 'ek1', wr=wp(0, vWB), wlast=wp(1, vA0))
            else:
                for x in wv: e(x)
                self.bg('es1')
                for hh, p in ((0, vWB), (1, vA0)):
                    self.softmax16(p, vTM, p, f'ek{hh}')
                    for x in wp(hh, p): e(x)
        ones = vTM + 4
        for i in range(4): e(f'v_mov_b32 {v(ones+i)}, {s(sONES)}')
        if l == 0: e.wait(vm=self.clr1)
        late = self.o.lateq[l]
        if not late: self.need('Q')
        e.wait_all_lg()
        e('s_barrier')
        self.free('KV')
        self.stamp(f'L{l}.B1')
        pr = vPKrA if typ == 0 else vPKrB
        tags = []
        for st in range(4):
            e(f'ds_read_b64_tr_b16 {v(vA0+4*st,2)}, {v(pr)} offset:{st*512}')
            e(f'ds_read_b64_tr_b16 {v(vA0+4*st+2,2)}, {v(pr)} offset:{st*512+256}')
            e(f'ds_read_b64_tr_b16 {v(vA1+4*st,2)}, {v(vPKrA)} offset:{8*PL+st*512}')
            tags.append(e(f'ds_read_b64_tr_b16 {v(vA1+4*st+2,2)}, {v(vPKrA)} offset:{8*PL+st*512+256}'))
        ak, az = self.e1_addr(l, vTM + 2)
        self.bg('b1')
        ckv, cz = vWB + 16, vWB + 20
        self.qwt = [None] * 32
        self.qord = [k for k in range(0, 32, 4)] + [k for k in range(32) if k % 4] if l == 0 else list(range(32))
        self.qw = [self.own('Q' + 'AB'[typ], p) if l < 2 and p < 8 else ('v', vWB + (p % 6)*4) for p in range(32)]
        for st in range(4):
            e.wait(lg=tags[st])
            e(f'v_mfma_f32_16x16x32_bf16 {v(ckv,4)}, {v(vA0+4*st,4)}, {v(vA1+4*st,4)}, {v(ckv,4) if st else 0}')
            e(f'v_mfma_f32_16x16x32_bf16 {v(cz,4)}, {v(ones,4)}, {v(vA0+4*st,4)}, {v(cz,4) if st else 0}')
            if not late: self.qwt[st] = self.tr_w(self.qw[st], self.qord[st], 0)
        def tail():
            e(f'v_cvt_pk_bf16_f32 {v(vTM)}, {v(ckv)}, {v(ckv+1)}\nv_cvt_pk_bf16_f32 {v(vTM+1)}, {v(ckv+2)}, {v(ckv+3)}')
            e(f'v_min_u32 {v(vTM)}, -2, {v(vTM)}\nv_min_u32 {v(vTM+1)}, -2, {v(vTM+1)}')
            e(f'buffer_store_dwordx2 {v(vTM,2)}, {v(ak)}, {s(sWS,4)}, {s(sT[0])} offen sc1')
            e(f'v_min_u32 {v(vTM+4)}, -2, {v(cz)}')
            e(f'buffer_store_dword {v(vTM+4)}, {v(az)}, {s(sWS,4)}, {s(sT[1])} offen sc1')
            self.stamp(f'L{l}.pub1')
            if late:
                self.need('Q'); e('s_barrier')
                for st in range(4): self.qwt[st] = self.tr_w(self.qw[st], self.qord[st], 0)
        self.pub_tail = tail
        self.clr_next = (lambda: self.clear_slot(l + 2, vTM + 4, ak, az)) if l < 2 else None

    def e1_ops(self, e, l, tags, each=False):
        typ = l & 1
        nk, nz = (4, 2) if typ == 0 else (8, 4)
        sk, sz = (sKVrdA, sZrdA) if typ == 0 else (sKVrdB, sZrdB)
        ops = []
        def zl(t):
            if t == 0 or each: e(f's_add_u32 {s(sT[1])}, {s(sz)}, {l*0x10000}')
            tags['z'] = e(f'buffer_load_dword {v(vXF+32+t)}, {v(vL4)}, {s(sWS,4)}, {s(sT[1])} offen offset:{t*256} sc1')
        def kl(p):
            if p % 4 == 0 or each: e(f's_add_u32 {s(sT[0])}, {s(sk)}, {l*0x80000 + (p & ~3)*1024}')
            tags[p] = e(f'buffer_load_dwordx4 {v(vXF+4*p,4)}, {v(vL16)}, {s(sWS,4)}, {s(sT[0])} offen offset:{(p&3)*1024} sc1')
        return [lambda t=t: zl(t) for t in range(nz)] + [lambda p=p: kl(p) for p in range(nk)]

    def q_phase(self, l):
        e = self.e; typ = l & 1; first = l < 2
        wt = self.qwt
        def wread(k): wt[k] = self.tr_w(self.qw[k], self.qord[k], 0)
        sel, aQ = vA1 + 8, v(vA1 + 12, 4)
        assert self.o.e1at[l] >= (16 if l == 0 else 10)
        cQ = vCS + typ * 6
        st = 0; pk = []
        E1AT = self.o.e1at[l]
        kt = {}
        e1 = self.e1_ops(e, l, kt)
        if self.o.ctouch & 1 and l < 3: e1.insert(0, lambda: self.code_touch(v(vXF + 36)))
        def recheck():
            assert not e1
            e.wait(vm=kt['z'])
            nz = 2 << typ; z = vXF + 32; tz = vXF + 37
            e(f's_mov_b32 {s(sAT)}, 0')
            if nz == 4: e(f'v_max3_u32 {v(tz)}, {v(z)}, {v(z+1)}, {v(z+2)}\nv_max_u32 {v(tz)}, {v(tz)}, {v(z+3)}')
            else: e(f'v_max_u32 {v(tz)}, {v(z)}, {v(z+1)}')
            e(f'v_cmp_eq_u32 vcc, -1, {v(tz)}\ns_cbranch_vccnz L_e1k{l}\nL_e1kj{l}:')
            t_ = Asm(); ops = self.e1_ops(t_, l, {}, True)
            t_(f'L_e1k{l}:\ns_mov_b32 {s(sAT)}, 1')
            for t in range(nz):
                t_(f'v_cmp_eq_u32 vcc, -1, {v(z+t)}\ns_cbranch_vccz L_e1k{l}_{t}')
                ops[t](); ops[nz + 2*t](); ops[nz + 2*t + 1]()
                t_(f'L_e1k{l}_{t}:')
            t_(f's_branch L_e1kj{l}')
            self.tail.append(t_)
            self.e1chk = None; self.rechecked = True
        self.rechecked = False
        self.e1chk = recheck if self.o.e1chk[l] else None
        if not first:
            e(f'v_mfma_f32_32x32x8_bf16 {v(vA0,16)}, {v(cQ,2)}, {v(vMF,2)}, 0')
            if self.o.ptail == 0: self.pub_tail()
        elif self.o.ptail == 0: self.pub_tail()
        for k in range(32):
            if k % 2 == 0: e.wait(lg=wt[k + 1] if k else wt[0])
            if k == 1: e.wait(lg=wt[1])
            if first and 2 <= k < 10: self.rowsum(aQ, sel, self.qw[k - 2], k == 2)
            self.big(vA0, self.qw[k], self.qord[k], first and k == 0)
            if first and k == 0: self.par_sel(sel)
            if k == 0 and self.o.ptail: self.pub_tail()
            if k + 4 < 32: wread(k + 4)
            if k == 1 and self.clr_next: self.clr_next()
            if k == 2 and l == 0:
                e(f'v_and_b32 {v(vTM+3)}, 0x7c, {v(vL4)}')
                dbt = e(f'buffer_load_dword {v(vTM+2)}, {v(vTM+3)}, {s(sDBG,4)}, 0 offen sc1')
            if k == 3 and l == 0:
                for c in self.o.tw: self.touch(int(c, 16))
            if k == E1AT and l == 0:
                e.wait(vm=dbt)
                e(f's_mov_b32 {s(sT[2])}, 0x11111111')
                e('L_all_chk:')
                e(f'v_dot8_u32_u4 {v(vTM+1)}, {v(vTM+2)}, {s(sT[2])}, 0')
                e(f's_lshl_b32 {s(sT[3])}, 8, {s(sXCC)}')
                e(f'v_cmp_ne_u32 vcc, 8, {v(vTM+1)}\ns_cbranch_vccnz L_all_retry')
                e(f'v_cmp_ne_u32 vcc, {s(sT[3])}, {v(vTM+2)}\ns_lshl_b32 {s(sT[3])}, {s(sR)}, 1')
                e(f's_lshr_b32 {s(sMODE)}, vcc_lo, {s(sT[3])}\ns_and_b32 {s(sMODE)}, {s(sMODE)}, 3')
                if self.o.force_safe: e(f's_or_b32 {s(sMODE)}, {s(sMODE)}, 1')
                e(f's_cselect_b32 {s(sSTR)}, {EXSTRIDE}, 0')
                if self.o.xout:
                    e(f's_cselect_b64 {s(sX,2)}, {s(sWS,2)}, {s(sOUT,2)}\ns_cselect_b32 {s(sX+2)}, {s(sWS+2)}, {s(sOUT+2)}\ns_cselect_b32 {s(sT[3])}, 0, {XB}')
                    for r in (sXrd, sXwr): e(f's_sub_u32 {s(r)}, {s(r)}, {s(sT[3])}')
                e(f's_cselect_b32 {s(sT[3])}, 0x4000, 0\ns_add_u32 {s(sFOe)}, {s(sFOwr)}, {s(sT[3])}\ns_add_u32 {s(sFXe)}, {s(sFXwr)}, {s(sT[3])}')
                for r in (sOrd, sOwr): e(f's_add_u32 {s(r)}, {s(r)}, {s(sSTR)}')
                t = Asm()
                t(f'L_all_retry:\nbuffer_load_dword {v(vTM+2)}, {v(vTM+3)}, {s(sDBG,4)}, 0 offen sc1')
                t(f's_sub_u32 {s(sBUD)}, {s(sBUD)}, 1\ns_cbranch_scc1 L_fail\ns_waitcnt vmcnt(0)\ns_branch L_all_chk')
                self.tail.append(t)
                e1 += [lambda: e(f'buffer_load_dword a255, {v(vFl16)}, {s(sWS,4)}, {s(sFOrd)} offen sc1'),
                       lambda: e(f'buffer_load_dword a255, {v(vFl16)}, {s(sWS,4)}, {s(sFXrd)} offen sc1'),
                       lambda: (setattr(self, 'm0own', None), e(f's_mov_b32 m0, {L_WP}\ns_lshl_b32 {s(sT[4])}, {s(sG)}, 10\nbuffer_load_dwordx4 {v(vL16)}, {s(sWP,4)}, {s(sT[4])} offen lds'))]
                e1 += [lambda c=c: self.touch(int(c, 16)) for c in self.o.te]
            if k >= E1AT:
                for _ in range(self.o.e1rate if k < 31 else 99):
                    if e1: e1.pop(0)()
            self.bg(f'q{k}')
            if l == 3 and self.o.clean & 1 and k in (2, 4):
                e(f'buffer_store_dwordx4 {v(vRES+2*(k-2),4)}, {v(vL16)}, {s(sWS,4)}, {s(sXwr)} offen offset:{(k-2)*512} sc1')
            if first:
                if st == 0 and k == 11: cw = self.cs_write([v(vA1 + 12)], [0]); st = 1; k1 = k + 2
                elif st == 1 and k == k1:
                    e.wait(lg=cw); e('s_barrier')
                    r0 = self.cs_read(0, vA1); st = 2; k1 = k + 3
                elif st == 2 and k == k1:
                    e.wait(lg=r0); pk = self.cs_pack_ops(vA1, cQ); st = 3
                elif st == 3 and not pk:
                    e(f'v_mfma_f32_32x32x8_bf16 {v(vA0,16)}, {v(cQ,2)}, {v(vMF,2)}, {v(vA0,16)}'); st = 4
                for _ in range(2):
                    if pk: e(pk.pop(0))
        assert st == 4 or not first
        zt = kt['z']
        self.stamp(f'L{l}.qgemm')
        self.dump(f'L{l}.q', [v(vA0+i) for i in range(16)])
        PQ = vXF + 64
        if typ == 0:
            self.phi_a(vA0, vWB, PQ, 'eq')
        else:
            for i in range(8):
                e(f'v_cvt_pk_bf16_f32 {v(vTM+i)}, {v(vA0+2*i)}, {v(vA0+2*i+1)}')
                if i == 5: e(f'v_mfma_f32_32x32x16_bf16 {v(vA1,16)}, {v(vWPH,4)}, {v(vTM,4)}, 0')
            n0 = len(e.ins)
            self.bg('eqs')
            if len(e.ins) - n0 < 4: e(f's_nop {3 - (len(e.ins) - n0)}')
            e(f'v_mfma_f32_32x32x16_bf16 {v(vA0,16)}, {v(vWPH+4,4)}, {v(vTM+4,4)}, 0')
            self.softmax16(vA1, vWB, PQ, 'eq0')
            self.softmax16(vA0, vWB, PQ + 8, 'eq1')
        self.stamp(f'L{l}.phiq')
        nk, nz = (4, 2) if typ == 0 else (8, 4)
        C = vWB; mx = vTM; z = vXF + 32
        assert self.e1chk is None
        if self.rechecked: e(f's_cmp_lg_u32 {s(sAT)}, 0\ns_cbranch_scc1 L_e1w{l}')
        if self.o.e1inl: e(f's_branch L_e1c{l}')
        t = Asm()
        t(f'L_e1r{l}:')
        ops = self.e1_ops(t, l, {}, True)
        for op in ops[:nz]: op()
        for p in range(nk):
            b = vXF + 4*p
            t(f'v_max3_u32 {v(mx)}, {v(b)}, {v(b+1)}, {v(b+2)}\nv_max_u32 {v(mx)}, {v(mx)}, {v(b+3)}\nv_cmp_eq_u32 vcc, -1, {v(mx)}\ns_cbranch_vccz L_e1s{l}_{p}')
            ops[nz + p]()
            t(f'L_e1s{l}_{p}:')
        t(f's_sub_u32 {s(sBUD)}, {s(sBUD)}, 1\ns_cbranch_scc1 L_fail\nL_e1w{l}:\ns_waitcnt vmcnt(0)')
        if self.o.e1inl: e.ins += t.ins
        else:
            t(f's_branch L_e1c{l}'); self.tail.append(t)
        e(f'L_e1c{l}:')
        e.wait(vm=zt)
        if nz == 2:
            e(f'v_max_u32 {v(mx)}, {v(z)}, {v(z+1)}\nv_add_f32 {v(z)}, {v(z)}, {v(z+1)}')
        else:
            e(f'v_max3_u32 {v(mx)}, {v(z)}, {v(z+1)}, {v(z+2)}\nv_max_u32 {v(mx)}, {v(mx)}, {v(z+3)}')
            e(f'v_pk_add_f32 {v(z,2)}, {v(z,2)}, {v(z+2,2)}\nv_add_f32 {v(z)}, {v(z)}, {v(z+1)}')
        zops = [f'v_mov_b32 {v(z+1)}, {v(z)}', f'v_permlane16_swap_b32 {v(z)}, {v(z+1)}', f'v_add_f32 {v(z)}, {v(z)}, {v(z+1)}',
                f'v_mov_b32 {v(z+1)}, {v(z)}', f'v_permlane32_swap_b32 {v(z)}, {v(z+1)}', f'v_add_f32 {v(z)}, {v(z)}, {v(z+1)}',
                f'v_cvt_pk_bf16_f32 {v(z)}, {v(z)}, {v(z)}', f'ds_write_b16 {v(vZw)}, {v(z)} offset:512']
        e(zops.pop(0))
        for p in range(nk):
            e.wait(vm=kt[p])
            b = vXF + 4*p
            e(f'v_mfma_f32_16x16x32_bf16 {v(C,4)}, {v(vSEL,4)}, {v(b,4)}, {v(C,4) if p else 0}')
            e(f'v_max3_u32 {v(mx)}, {v(mx)}, {v(b)}, {v(b+1)}\nv_max3_u32 {v(mx)}, {v(mx)}, {v(b+2)}, {v(b+3)}')
            if p == 0:
                for _ in range(3): e(zops.pop(0))
        e(f'v_cmp_eq_u32 vcc, -1, {v(mx)}\ns_cbranch_vccnz L_e1r{l}')
        for op in zops: e(op)
        self.stamp(f'L{l}.e1')
        e(f'v_cvt_pk_bf16_f32 {v(vTM)}, {v(C)}, {v(C+1)}\nv_cvt_pk_bf16_f32 {v(vTM+1)}, {v(C+2)}, {v(C+3)}')
        e(f'ds_write_b64 {v(vKVw)}, {v(vTM,2)}')
        self.bg('o0')
        if not self.o.lateb[l]: self.need('ab')
        e.wait_all_lg()
        e('s_barrier')
        self.free('Q')
        KF = vWB + 8
        kr = vKVrA if typ == 0 else vKVrB
        tg = []
        for hh in range(2):
            for u in range(2):
                off = (2*u + hh) * 544 if typ == 0 else hh * 544 + u * 16
                tg.append(e(f'ds_read_b128 {v(KF + 4*(2*hh+u),4)}, {v(kr)} offset:{off}'))
        self.bg('o1')
        keep = self.e; self.e = fill = Asm()
        if l < 3: self.set_wtr(SLOTS[l+1]['K'], l + 1)
        self.e = keep
        fill(f'v_mov_b32 {v(vWB)}, {l+1}')
        ad = vTM + 4; sa, sb = SLOTS[l]['a'] * SLOT, SLOTS[l]['b'] * SLOT
        if l > 1:
            if l == 2: fill(f'v_lshrrev_b32 {v(vWO)}, 7, {v(vL4)}\nv_mul_u32_u24 {v(vWO)}, 1536, {v(vWO)}\nv_add_u32 {v(vWO)}, {v(vWO)}, {v(vL16)}')
            fill(f'v_add_u32 {v(ad)}, {sa}, {v(vWO)}\nv_add_u32 {v(ad+1)}, {sb}, {v(vWO)}')
        else:
            fill(f'v_add_u32 {v(ad)}, {sa}, {v(vWO)}')
            for t in (1, 2, 3): fill(f'v_xor_b32 {v(ad+t)}, {32*t}, {v(ad)}')
        if l == 0:
            fill(f'''
            v_lshrrev_b32 {v(vTM)}, 6, {v(vL4)}
            v_lshl_add_u32 {v(vXst)}, {v(vTM)}, 8, {v(vL16)}
            v_and_b32 {v(vTM)}, 1, {v(vTM)}
            v_lshrrev_b32 {v(vTM+1)}, 7, {v(vL4)}
            v_lshl_add_u32 {v(vTM)}, {v(vTM)}, 2, {v(vTM+1)}
            v_lshlrev_b32 {v(vTM+1)}, 2, {v(vFl16)}
            v_lshl_add_u32 {v(vOst)}, {v(vTM)}, 8, {v(vTM+1)}
            ''')
        fl = list(fill.ins)
        if self.o.ofill:
            gaps = max(0, (self.o.ofill - len(fl)) // 4)
            per = -(-len(fl) // (gaps + 1))
            while fl:
                e.ins += fl[:per]; fl = fl[per:]
                if fl: e('s_nop 3')
            fl = [Ins('s_nop 0') for _ in range(9)]
        else:
            while len(fl) > 10: e.ins.append(fl.pop(0))
            while len(fl) < 9: fl.append(Ins('s_nop 0'))
        for hh in range(2):
            acc = (vA0, vA1)[hh]
            for u in range(2):
                e.wait(lg=tg[2*hh+u] if hh == 0 else tg[3])
                pq = PQ + 4*hh if typ == 0 else PQ + 8*hh + 4*u
                e(f'v_mfma_f32_32x32x16_bf16 {v(acc,16)}, {v(KF+4*(2*hh+u),4)}, {v(pq,4)}, {v(acc,16) if u else 0}')
                if 2*hh + u in (1, 2):
                    for _ in range(4 if hh == 0 else 6):
                        if fl: e.ins.append(fl.pop(0))
                if l and self.o.fo == 6 - (2*hh + u): self.flag(e, vWB, sFOe, '')
        self.bg('o2')
        O = vXF + 96
        quick = l > 0 and self.o.quick
        for hh in range(2):
            acc = (vA0, vA1)[hh]
            e(f'v_add_f32 {v(acc+8)}, {s(sEPS6)}, {v(acc+8)}\nv_rcp_f32 {v(acc+8)}, {v(acc+8)}')
            if hh:
                for i in range(4): e(f'v_pk_mul_f32 {v(acc+2*i,2)}, {v(acc+2*i,2)}, {v(acc+8,2)} op_sel_hi:[1,0]')
            else:
                for i in range(6): e(f'v_mul_f32 {v(acc+i)}, {v(acc+8)}, {v(acc+i)}')
                e(f'v_mul_f32 {v(acc+6)}, {v(acc+8)}, {v(acc+6)}\nv_mul_f32 {v(acc+7)}, {v(acc+8)}, {v(acc+7)}')
            for i in range(4):
                e(f'v_cvt_pk_bf16_f32 {v(O+4*hh+i)}, {v(acc+2*i)}, {v(acc+2*i+1)}')
                if i == 1: self.tag(O + 4*hh, l & 1)
            if l and self.o.fo == 2 - hh: self.flag(e, vWB, sFOe, '')
            def st(e, m):
                if self.o.stress and quick and not m and hh == (l & 1):
                    self.flag(e, vWB, sFOwr, m)
                    e(f's_and_b32 {s(sT[5])}, s2, {self.o.stress}\ns_cbranch_scc1 L_ns_o{l}\ns_sleep 60\nL_ns_o{l}:')
                e(f'buffer_store_dwordx4 {v(O+4*hh,4)}, {v(vOst)}, {s(sWS,4)}, {s(sOwr)} offen offset:{hh*512}{m or ((self.o.lasto if l == 3 else str()) if l else self.o.pub0)}')
                if hh:
                    if m or not (quick or self.o.noack): e.wait_all_vm()
                    if m or not (l and self.o.fo): self.flag(e, vWB, sFOwr, m)
            self.modal(f'po{l}{hh}', st)
        self.dump(f'L{l}.o', [v(O+i) for i in range(8)])
        self.stamp(f'L{l}.pub2')

    def o_proj(self, l):
        e = self.e; typ = l & 1; T = 'AB'[typ]
        chk = vTM + 1 if l > 0 else None
        par = l & 1
        self.bg('w0')
        if l == 0:
            t0, t1 = vTM, vTM + 1
            e(f'''
            v_bfe_u32 {v(t0)}, {v(vL4)}, 4, 2
            v_lshrrev_b32 {v(t1)}, 7, {v(vL4)}
            v_lshl_add_u32 {v(t0)}, {v(t1)}, 3, {v(t0)}
            v_lshlrev_b32 {v(t0)}, 5, {v(t0)}
            v_bfe_u32 {v(t1)}, {v(vL4)}, 6, 1
            v_lshl_add_u32 {v(t0)}, {v(t1)}, 4, {v(t0)}
            v_bfe_u32 {v(t1)}, {v(vL4)}, 3, 1
            v_lshl_add_u32 {v(t0)}, {v(t1)}, 3, {v(t0)}
            v_add_u32 {v(t0)}, {L_WP}, {v(t0)}
            ''')
            for hh in range(2):
                for t in range(2):
                    tw = e(f'ds_read_b64_tr_b16 {v(vWPH+4*hh+2*t,2)}, {v(t0)} offset:{hh*512 + t*128}')
            e(f'v_bfe_u32 {v(t1)}, {v(vL4)}, 4, 1\nv_mul_u32_u24 {v(t1)}, 0x8000, {v(t1)}\nv_lshl_or_b32 {v(t1)}, {v(t1)}, 16, {v(t1)}')
            e.wait(lg=tw)
            for i in range(8): e(f'v_xor_b32 {v(vWPH+i)}, {v(t1)}, {v(vWPH+i)}')
        if self.o.lateb[l]:
            self.need('ab'); e('s_barrier')
        ot = [None] * 16; wt = [None] * 64
        def oload(e, k):
            if k % 2 == 0: e(f's_add_u32 {s(sT[0])}, {s(sOrd)}, {k*2048}')
            ot[k] = e(f'buffer_load_dwordx4 {v(vXF+4*k,4)}, {v(vL16)}, {s(sWS,4)}, {s(sT[0])} offen offset:{(k&1)*2048} sc1')
        PRE = self.o.opre; SP = self.o.spo if l else 0
        NB, LA = 10, self.o.ola[l > 1]
        ad = vTM + 4; sa, sb = SLOTS[l]['a'] * SLOT, SLOTS[l]['b'] * SLOT
        buf = lambda f: vA1 + 4 * (f % NB)
        def wrd(f):
            e = self.e; k, t = f >> 2, f & 3
            if l > 1:
                wt[f] = e(f'ds_read_b128 {v(buf(f),4)}, {v(ad + (k >> 3))} offset:{(k & 7)*4096 + t*512}')
                return
            off = (k & 7) * 4096
            if k >= 8:
                if l == 1: off += sb - sa
                elif k == 8: e(f'v_add_u32 {v(ad+t)}, {(sb - sa) & 0xffffffff}, {v(ad+t)}')
            e(f'ds_read_b64_tr_b16 {v(buf(f),2)}, {v(ad+t)} offset:{off}')
            wt[f] = e(f'ds_read_b64_tr_b16 {v(buf(f)+2,2)}, {v(ad+t)} offset:{off+1024}')
        def init():
            e = self.e
            for f in range(LA): wrd(f)
            for i in range(8):
                e(f'v_lshlrev_b32 {v(vA0+2*i)}, 16, {v(vRES+i)}\nv_and_b32 {v(vA0+2*i+1)}, {s(sHI)}, {v(vRES+i)}')
        def shadow():
            self.bg('wp')
            if not self.o.oinit[l]: init()
            self.bg('ws')
        if self.o.oinit[l]: init(); keep = list(wt)
        self.bg('wi')
        self.stamp(f'L{l}.pre2')
        self.hop(f'o{l}', sFOrd, l + 1, vTM, oload, SP, shadow, init)
        if self.o.oinit[l]: wt[:] = keep
        if not l: self.in_redo = False
        self.stamp(f'L{l}.poll2')
        for k in range(SP, PRE): oload(e, k)
        self.bg('w1')
        xo = vTM + 2; fr = vTM + 3
        late = [f's_add_u32 {s(r)}, {s(r)}, {s(sSTR)}' for r in (sXrd, sXwr, sSTrd, sSTwr, sOrd, sOwr)] if l < 3 else []
        for k in range(16):
            for t in range(4):
                f = 4*k + t
                if t % 2 == 0: e.wait(vm=ot[k], lg=wt[f + 1])
                e(f'v_mfma_f32_16x16x32_bf16 {v(vA0+4*t,4)}, {v(buf(f),4)}, {v(vXF+4*k,4)}, {v(vA0+4*t,4)}')
                if f + LA < 64: wrd(f + LA)
                if 0 < l < 3 and self.o.fx > 2 and f == 66 - self.o.fx: self.flag(e, fr, sFXe, '')
                if t == 0:
                    if k + PRE < 16: oload(e, k + PRE)
                    if k + PRE == 16 and self.o.ctouch & 2 and l < 3: self.code_touch(v(vXF + 64))
                    self.bg(f'p{k}')
                if t == 2:
                    if chk and k % 2 == 1:
                        e(self.chk(chk, vXF+4*k-4, vXF+4*k, par, k == 1))
                        if k <= SP or k == 15 or k in self.o.echk: self.chk_end(chk, par, f'o{l}', vTM)
                    self.bg(f'p{k}b')
                    if k == 12:
                        if l < 3: e(f'v_mov_b32 {v(fr)}, {l + 2}')
                        else:
                            e(f'v_bfe_u32 {v(xo)}, {v(vL4)}, 6, 1\nv_lshrrev_b32 {v(xo+1)}, 7, {v(vL4)}\nv_lshl_add_u32 {v(xo)}, {v(xo)}, 1, {v(xo+1)}')
                            e(f'v_lshlrev_b32 {v(xo+1)}, 8, {v(vFl16)}\nv_lshl_add_u32 {v(xo)}, {v(xo)}, 4, {v(xo+1)}')
        self.in_redo = False
        for op in late: e(op)
        self.stamp(f'L{l}.B3')
        for m in range(2):
            if l == 3 and self.o.bias:
                for i in range(8):
                    e(f's_mov_b32 {s(sT[0])}, 0x433e0000\nv_cmp_gt_f32 vcc, abs({v(vA0+8*m+i)}), {s(sT[0])}\nv_cndmask_b32 {v(vA0+8*m+i)}, {v(vA0+8*m+i)}, 0, vcc')
            for i in range(4):
                e(f'v_cvt_pk_bf16_f32 {v(vRES+4*m+i)}, {v(vA0+8*m+2*i)}, {v(vA0+8*m+2*i+1)}')
                if i == 1 and l < 3: self.tag(vRES + 4*m, l & 1)
            if l < 3:
                if l and self.o.fx == 2 - m: self.flag(e, fr, sFXe, '')
                def st(e, mm):
                    if self.o.stress and l and not mm and m == (l & 1):
                        self.flag(e, fr, sFXwr, mm)
                        e(f's_and_b32 {s(sT[5])}, s2, {self.o.stress}\ns_cbranch_scc1 L_ns_x{l}\ns_sleep 60\nL_ns_x{l}:')
                    e(f'buffer_store_dwordx4 {v(vRES+4*m,4)}, {v(vXst)}, {s(sWS,4)}, {s(sXwr)} offen offset:{m*2048}{mm or ((self.o.lastx if l == 2 else str()) if l else (self.o.pub0 if self.o.pub0x is None else self.o.pub0x))}')
                    if m and l and not mm and not self.o.fx: self.flag(e, fr, sFXwr, mm)
                self.modal(f'px{l}{m}', st)
        if l == 3:
            for m in range(2):
                for i in range(2): e(f'v_permlane16_swap_b32 {v(vRES+4*m+i)}, {v(vRES+4*m+2+i)}')
                e(f'buffer_store_dwordx4 {v(vRES+4*m,4)}, {v(xo)}, {s(sOUT,4)}, {s(sXO)} offen offset:{64*m} {self.o.outmod}')
            return
        self.dump(f'L{l}.x', [v(vRES+i) for i in range(8)])
        if l == 1: e(f's_lshl_b32 {s(sT[2])}, {s(sROT)}, 12\ns_add_u32 {s(sT[2])}, {s(sT[2])}, {s(sXrd)}')
        elif l == 0: e(f's_lshl_b32 {s(sT[2])}, {s(sW)}, 13\ns_add_u32 {s(sT[2])}, {s(sT[2])}, {s(sXrd)}')
        else: e(f's_mov_b32 {s(sT[2])}, {s(sXrd)}')
        def stats():
            self.x_stats()
            self.tag(vTM, l & 1)
            def st2(e, mm):
                if self.o.stress and not mm:
                    e(f's_and_b32 {s(sT[5])}, s2, {self.o.stress}\ns_cbranch_scc0 L_ns_s{l}\ns_sleep 50\nL_ns_s{l}:')
                e(f'buffer_store_dword {v(vTM)}, {v(vSTst)}, {s(sWS,4)}, {s(sSTwr)} offen{mm}')
                if mm or not l:
                    if mm or not self.o.noack: e.wait_all_vm()
                    self.flag(e, fr, sFXwr, mm)
            self.modal(f'px{l}s', st2)
        self.late_stats = None
        if l and self.o.lstat: self.late_stats = stats
        else: stats()
        self.bg('y0')
        self.stamp(f'L{l}.pub3')

    def build(self):
        e = self.e
        self.sched = scheds.build(self.o.ov)
        self.prologue()
        for l in range(4):
            self.l = l
            if l == 0: self.kv_gemm0()
            else: self.kv_gemm(l)
            self.kv_epilogue(l)
            self.q_phase(l)
            self.o_proj(l)
        for k in self.sched: assert k in self.seen, k
        if self.o.stamps:
            self.stamp('end')
            e(f's_memrealtime {s(sTS,2)}'); e.wait_all_lg()
            e(f'v_writelane_b32 {v(vSTAMP)}, {s(sTS)}, 63')
            if self.o.both in (0, 2, 4): e(f'v_writelane_b32 {v(vSTAMP)}, {s(sBUD)}, 61')
            e(f's_lshl_b32 {s(sT[0])}, s2, 2\ns_add_u32 {s(sT[0])}, {s(sT[0])}, {s(sW)}\ns_lshl_b32 {s(sT[0])}, {s(sT[0])}, 8\ns_add_u32 {s(sT[0])}, {s(sT[0])}, {STAMP}')
            e(f'buffer_store_dword {v(vSTAMP)}, {v(vL4)}, {s(sWS,4)}, {s(sT[0])} offen')
        if self.o.ptrs:
            for i, r in enumerate((sX, sWA, sWOA, sWB, sWP, sWOB, sOUT, sDBG, sWS, sCODE)):
                e(f'v_mov_b32 {v(vTM)}, {s(r)}\nbuffer_store_dword {v(vTM)}, off, {s(sDBG,4)}, 0 offset:{4*i} sc1')
        if self.o.echo:
            self.stamp('end')
            if self.o.echo[0] == 'fixed':
                e(f's_mov_b32 {s(sE0)}, {self.o.echo[2]}')
            else:
                e(f's_sub_u32 {s(sE0)}, {s(sE1)}, {s(sE0)}\ns_mul_i32 {s(sE0)}, {s(sE0)}, {self.o.echo[2]}')
            e(f'{self.o.clk} {s(sE1,2)}\ns_waitcnt lgkmcnt(0)')
            e(f'L_echo:\n{self.o.clk} {s(sTS,2)}\ns_waitcnt lgkmcnt(0)\ns_sub_u32 {s(sTS)}, {s(sTS)}, {s(sE1)}\ns_cmp_lt_u32 {s(sTS)}, {s(sE0)}\ns_cbranch_scc1 L_echo')
        e('L_fail:\ns_endpgm')
        body = e.finish() + ''.join(t.finish() for t in self.tail) + 'L_code_end:\n    s_endpgm\n'
        body, npad = layout([f'{NAME}_kernel:'] + body.rstrip('\n').split('\n'), 'L_main', 4 if self.o.pads else 0, self.o.align)
        body = body.split('\n', 1)[1]
        head = open('cdna_kernels/' + NAME + '.s.ref').read().split('; Override launch')[0]
        txt = head + '; @launch grid=(256,1,1) block=(256,1,1) lds=163840\n' + DOC
        txt += f'''.amdgcn_target "amdgcn-amd-amdhsa--gfx950"
.text
.globl {NAME}_kernel
.p2align 8
.type {NAME}_kernel,@function
{NAME}_kernel:
{body}.section .rodata,"a"
.p2align 6
.amdhsa_kernel {NAME}_kernel
  .amdhsa_next_free_vgpr 512
  .amdhsa_next_free_sgpr 102
  .amdhsa_accum_offset 256
  .amdhsa_group_segment_fixed_size 0
  .amdhsa_kernarg_size 80
  .amdhsa_user_sgpr_count 2
  .amdhsa_user_sgpr_kernarg_segment_ptr 1
  .amdhsa_system_sgpr_workgroup_id_x 1
  .amdhsa_float_denorm_mode_32 3
.end_amdhsa_kernel
'''
        return txt

if __name__ == '__main__':
    ap = argparse.ArgumentParser()
    ap.add_argument('-o', default='cdna_kernels/' + NAME + '.s')
    ap.add_argument('--stamps', action='store_true')
    ap.add_argument('--force-safe', action='store_true')
    ap.add_argument('--dump', default='')
    ap.add_argument('--echo', default='')
    ap.add_argument('--bias', default='')
    ap.add_argument('--clk', default='s_memtime')
    ap.add_argument('--outmod', default='sc1 nt')
    ap.add_argument('--initmod', default='')
    ap.add_argument('--touch', default='61352b')
    ap.add_argument('--c1early', type=int, default=2)
    ap.add_argument('--fine', type=int, default=0)
    ap.add_argument('--atp', type=int, default=1)
    ap.add_argument('--nomini', type=int, default=0)
    ap.add_argument('--touchx', type=int, default=1)
    ap.add_argument('--b0at', type=int, default=24)
    ap.add_argument('--both', type=int, default=0)
    ap.add_argument('--fake', type=int, default=0)
    ap.add_argument('--stouch', default=',,')
    ap.add_argument('--tq', default='')
    ap.add_argument('--tw', default='64')
    ap.add_argument('--dummy', type=int, default=0)
    ap.add_argument('--te', default='')
    ap.add_argument('--quick', type=int, default=1)
    ap.add_argument('--lateb', default='0,0,0,0')
    ap.add_argument('--pub0', default='')
    ap.add_argument('--stat-at', type=int, default=4)
    ap.add_argument('--opre', type=int, default=8)
    ap.add_argument('--ctouch', type=int, default=0)
    ap.add_argument('--e1inl', type=int, default=0)
    ap.add_argument('--t0', default='')
    ap.add_argument('--t1', default='')
    ap.add_argument('--t2', default='')
    ap.add_argument('--qs', default='21111110')
    ap.add_argument('--clrp', type=int, default=6)
    ap.add_argument('--pub0s', default='')
    ap.add_argument('--q0', type=int, default=0)
    ap.add_argument('--clean', type=int, default=0)
    ap.add_argument('--xout', type=int, default=0)
    ap.add_argument('--rotm', type=int, default=6)
    ap.add_argument('--rotw', type=int, default=3)
    ap.add_argument('--roto', type=int, default=3)
    ap.add_argument('--spx', type=int, default=0)
    ap.add_argument('--spo', type=int, default=0)
    ap.add_argument('--ola', default='6,6')
    ap.add_argument('--spagain', type=int, default=0)
    ap.add_argument('--oinit', default='0,1,1,1')
    ap.add_argument('--pads', type=int, default=1)
    ap.add_argument('--align', type=int, default=5)
    ap.add_argument('--skip', default='')
    ap.add_argument('--noack', type=int, default=0)
    ap.add_argument('--fake16', type=int, default=0)
    ap.add_argument('--rotf', type=int, default=7)
    ap.add_argument('--padp', type=int, default=-2)
    ap.add_argument('--xmod', default='')
    ap.add_argument('--xmodp', type=int, default=8)
    ap.add_argument('--tmod', default='')
    ap.add_argument('--pub0x', default=None)
    ap.add_argument('--ov', default='')
    ap.add_argument('--lasto', default='')
    ap.add_argument('--lastx', default='')
    ap.add_argument('--lastld', default='')
    ap.add_argument('--ptail', type=int, default=0)
    ap.add_argument('--e1chk', default=',eq1a,eq2,eq0d')
    ap.add_argument('--stress', type=int, default=0)
    ap.add_argument('--wb', default='')
    ap.add_argument('--wbmask', type=int, default=63)
    ap.add_argument('--ord0', default='01V2K3')
    ap.add_argument('--p3', type=int, default=9)
    ap.add_argument('--ofill', type=int, default=0)
    ap.add_argument('--defw', type=int, default=0)
    ap.add_argument('--hopinl', type=int, default=1)
    ap.add_argument('--np', type=int, default=1)
    ap.add_argument('--npgap', type=int, default=11)
    ap.add_argument('--xextra', type=int, default=3)
    ap.add_argument('--csrate', type=int, default=2)
    ap.add_argument('--fo', type=int, default=1)
    ap.add_argument('--fx', type=int, default=2)
    ap.add_argument('--echk', default='')
    ap.add_argument('--lstat', type=int, default=0)
    ap.add_argument('--twin', default='')
    ap.add_argument('--sdot', type=int, default=0)
    ap.add_argument('--ptrs', type=int, default=0)
    ap.add_argument('--xpre', type=int, default=8)
    ap.add_argument('--e1at', default='22,20,24,20')
    ap.add_argument('--e1rate', type=int, default=1)
    ap.add_argument('--lateq', default='0,0,0,0')
    ap.add_argument('--sched', default='k')
    opt = ap.parse_args()
    opt.dump = opt.dump.split(',') if opt.dump else []
    opt.echo = opt.echo.split(',') if opt.echo else []
    opt.e1at = list(map(int, opt.e1at.split(','))); opt.lateq = list(map(int, opt.lateq.split(','))); opt.lateb = list(map(int, opt.lateb.split(',')))
    opt.ola = list(map(int, opt.ola.split(',')))
    opt.oinit = list(map(int, opt.oinit.split(',')))
    opt.skip = [x for x in opt.skip.split(',') if x]
    opt.e1chk = opt.e1chk.split(',')
    opt.wb = opt.wb.split(',')
    opt.echk = [int(x) for x in opt.echk.split(',') if x]
    g = Gen(opt)
    txt = g.build()
    open(opt.o, 'w').write(txt)
    if opt.stamps:
        open(opt.o + '.stamps', 'w').write('\n'.join(g.stamp_names))
    print('wrote', opt.o, len(txt), 'bytes; vgpr persistent', _vn[0], 'sgpr', _sn[0], 'stamps', g.nstamp)
```

```python
import sys, argparse
sys.path.insert(0, 'gen')
from asmlib import *

NAME = 'interleave_layers__linear_attn_block__linear_kernel_hedgehog__prompt'

FLG_O, FLG_X = 0x0000, 0x2000
ZP = 0x10000
STAMP = 0x60000
KVP = 0x100000
EXB, EXSTRIDE = 0x400000, 0x500000
OB, XB, ST = EXB, EXB + 0x200000, EXB + 0x400000
DUMP = 0x2400000
WS_BYTES = 0x4000000
OOB = 0x7F000000
SLOT = 32768
SCR = 4 * SLOT
PL = 2176
L_PK = SCR
L_EX = SCR
L_KV = SCR + 12 * PL
L_CS = L_KV + 2176
L_WP = L_CS + 3072
assert L_WP + 1024 <= 163840

sX, sWA, sWOA, sWB, sWP, sWOB, sOUT, sDBG, sWS, sCODE = 4, 8, 12, 16, 20, 24, 28, 32, 36, 40
_sn = [44]
def salloc(n=1, al=1):
    while _sn[0] % al: _sn[0] += 1
    r = _sn[0]; _sn[0] += n
    assert _sn[0] <= 100
    return r
sW, sR, sG, sRB, sRBO, sJ, sMODE, sBUD, sSTR = [salloc() for _ in range(9)]
sRw, sRo, sCOFF = [salloc() for _ in range(3)]
sXrd, sXwr, sSTrd, sSTwr, sOrd, sOwr, sFOrd, sFOwr, sFXrd, sFXwr = [salloc() for _ in range(10)]
sKVrdA, sKVrdB, sKVwrB, sZrdA, sZrdB, sZwrB, sSKIP = [salloc() for _ in range(7)]
sXO, sONES, sPERM, sHI, sXCC = [salloc() for _ in range(5)]
sROT, sRESP, sDM = salloc(), salloc(), salloc()
sAT = 3
sX0g, sX0l, sW0g, sW0l = sMODE, sSTR, salloc(), salloc()
sFOe, sFXe = sW0g, sW0l
sL2E = salloc(2, 2); sEPS6 = salloc(2, 2)
sT = [salloc() for _ in range(6)]
sTS = salloc(2, 2)
sE0 = salloc(2, 2); sE1 = salloc(2, 2)

_vn = [1]
def valloc(n=1, al=1):
    while _vn[0] % al: _vn[0] += 1
    r = _vn[0]; _vn[0] += n
    return r
vLane = valloc()
vL16 = valloc(); vL4 = valloc()
vRES = valloc(8, 4)
vWPH = valloc(8, 4)
vSEL = valloc(4, 4)
vCS = valloc(12, 2)
vMF = valloc(2, 2)
vRS = valloc(2, 2)
vPKa, vSVw, vSVo, vCSa = [valloc() for _ in range(4)]
vWtr = valloc(4)
vWdma, vWOdma, vPKwA, vPKwB, vPKrA, vPKrB, vKVw, vZw, vKVrA, vKVrB, vSVt, vE1st, vZst, vSTst, vFl16, vWO = [valloc() for _ in range(16)]
assert _vn[0] <= 64, _vn[0]
vA0, vA1, vWB, vTM = 64, 80, 96, 120
vXF = 128
vM1 = vTM + 2
vXst, vOst = vWtr + 1, vWtr + 2
vPK2 = vLane
vSTAMP = 0

import scheds
BAY = dict(KA=0, VA=1, QA=2, aA=3, bA=4, KB=5, QB=6, VB=7, aB=0, bB=1)
SLOTS = [dict(K=0, V=1, Q=2, a=3, b=0), dict(K=1, V=2, Q=3, a=0, b=1), dict(K=2, V=3, Q=1, a=0, b=3), dict(K=1, V=2, Q=0, a=3, b=1)]

DOC = """;
"""

class Gen:
    def __init__(self, opt):
        self.o = opt
        self.e = Asm()
        self.tail = []
        self.nstamp = 0
        self.stamp_names = []
        self.wtr_slot = 0
        self.ndump = 0
        self.bgn = {}; self.bgt = {}; self.seen = set(); self.l = 0
        self.occ = [(0, 'K'), (0, 'V'), (0, 'Q'), (9, 'x')]; self.dead = set(); self.live = {(0, 'K'), (0, 'V')}; self.bayocc = {}; self.in_redo = False
        self.sv = None; self.stag = {}; self.pends = []; self.m0own = None; self.e1chk = None; self.d0 = {}; self.insave = set(); self.rb = {}; self.early = set()

    def stamp(self, name):
        if self.o.echo and name in self.o.echo[:2]:
            self.e(f'{self.o.clk} {s(sE0 if name == self.o.echo[0] else sE1, 2)}')
            self.e.wait_all_lg()
        if not self.o.stamps: return
        e = self.e
        if self.o.both:
            if self.o.both == 2 and name not in ('start', 'end'): return
            if self.o.both == 4:
                if name.split('.')[-1] not in ('start', 'pub1', 'e1', 'pub2', 'poll2', 'B3', 'poll3', 'end'): return
            elif self.o.both == 3:
                if not (name.startswith(('chunk', 'L0', 'setup', 'g')) or name in ('start', 'end')): return
            elif name.split('.')[-1] not in ('start', 'chunk0', 'x0', 'kvgemm', 'pub1', 'phiq', 'pub2', 'poll2', 'B3', 'end'): return
            e(f's_memtime {s(sTS,2)}\ns_memrealtime {s(sE0,2)}')
            e.wait_all_lg()
            e(f'v_writelane_b32 {v(vSTAMP)}, {s(sTS)}, {self.nstamp}\nv_writelane_b32 {v(vSTAMP)}, {s(sE0)}, {self.nstamp+31}')
            self.nstamp += 1; self.stamp_names.append(name)
            assert self.nstamp <= 31
            return
        e(f'{self.o.clk} {s(sTS,2)}')
        e.wait_all_lg()
        e(f'v_writelane_b32 {v(vSTAMP)}, {s(sTS)}, {self.nstamp}')
        self.nstamp += 1; self.stamp_names.append(name)
    def dump(self, name, regs):
        if name not in self.o.dump: return
        e = self.e
        for r in regs:
            e(f's_lshl_b32 {s(sT[5])}, s2, 2\ns_add_u32 {s(sT[5])}, {s(sT[5])}, {s(sW)}\ns_lshl_b32 {s(sT[5])}, {s(sT[5])}, 14\ns_add_u32 {s(sT[5])}, {s(sT[5])}, {DUMP + self.ndump*256}')
            e(f'buffer_store_dword {r}, {v(vL4)}, {s(sWS,4)}, {s(sT[5])} offen')
            self.ndump += 1
        assert self.ndump <= 64
        e.wait_all_vm()
    def set_wtr(self, slot, l):
        e = self.e
        if l == 0:
            for q in range(4): e(f'v_add_u32 {v(vWtr+q)}, {slot*SLOT}, {v(vWtr+q)}')
        elif l == 1:
            e(f'v_add_u32 {v(vWtr)}, {slot*SLOT}, {v(vSVw)}'); self.wq = 0
        else: e(f'v_add_u32 {v(vWtr)}, {slot*SLOT}, {v(vL16)}')
    def dma_w(self, typ, kind, n):
        e = self.e; srd = sWA if typ == 0 else sWB
        part = 'QKV'.index(kind); base = SLOTS[typ][kind] * SLOT - part * 1024
        assert base >= 0
        if self.o.fake == 2:
            if n & 1 and self.m0own == (typ, kind, n - 1): off = 1024
            else:
                off = 0
                e(f's_and_b32 {s(sDM)}, {s(sRw)}, 0x3fff\ns_lshl1_add_u32 {s(sDM)}, {s(sDM)}, 0\ns_and_b32 {s(sT[4])}, {s(sRw)}, 0x1fff\ns_sub_u32 {s(sDM)}, {s(sDM)}, {s(sT[4])}')
                e(f's_xor_b32 {s(sDM)}, {s(sDM)}, {(n >> 1)*8192 + (n & 1)*1024}')
                e(f's_add_u32 m0, {s(sDM)}, {SLOTS[typ][kind] * SLOT}')
                e(f's_mul_i32 {s(sT[4])}, {s(sG)}, 98304\ns_add_u32 {s(sDM)}, {s(sDM)}, {s(sT[4])}\ns_add_u32 {s(sDM)}, {s(sDM)}, {part*32768}')
            self.m0own = (typ, kind, n)
            return e(f'buffer_load_dwordx4 {v(vL16)}, {s(srd,4)}, {s(sDM)} offen offset:{off} lds')
        if n & 1 and self.m0own == (typ, kind, n - 1):
            e(f's_add_u32 {s(sDM)}, {s(sDM)}, {49152 - 1024}'); part += 1
        else:
            e(f's_xor_b32 {s(sDM)}, {s(sRw)}, {(n >> 1)*8192 + (n & 1)*1024}')
            e(f's_add_u32 m0, {s(sDM)}, {base}')
            e(f's_mul_i32 {s(sDM)}, {s(sDM)}, 48')
        self.m0own = (typ, kind, n)
        return e(f'buffer_load_dwordx4 {v(vWdma)}, {s(srd,4)}, {s(sDM)} offen offset:{part*1024} lds')
    def dma_wo(self, typ, kind, n):
        e = self.e; srd = sWOA if typ == 0 else sWOB
        off = 0
        if n & 1 and self.m0own == (typ, kind, n - 1):
            e(f's_add_u32 {s(sDM)}, {s(sDM)}, {8192 - 1024}'); off = 1024
        else:
            e(f's_xor_b32 {s(sDM)}, {s(sRo)}, {(n >> 1)*8192 + (n & 1)*1024}')
            e(f's_add_u32 m0, {s(sDM)}, {SLOTS[typ][kind]*SLOT}')
            e(f's_lshl3_add_u32 {s(sDM)}, {s(sDM)}, {0x40000 if kind == "b" else 0}')
        self.m0own = (typ, kind, n)
        return e(f'buffer_load_dwordx4 {v(vWOdma)}, {s(srd,4)}, {s(sDM)} offen offset:{off} lds')
    def park(self, op, item, n):
        e = self.e; r = BAY[item]*32 + 4*n
        slot = SLOTS['AB'.index(item[1]) + (2 if op == 'R' else 0)][item[0]]
        wo = item[0] in 'ab'
        m, x = (n & 3, n >> 2) if wo else (n >> 1, n & 1)
        if op == 'R':
            sh, off = (11, m*8192 + x*1024) if wo else ((10, n*4096) if item[1] == 'A' else (13, n*1024))
            if item not in self.rb:
                reg = vPK2 if self.rb.get('last') == vPKa else vPKa
                self.rb = {k: r_ for k, r_ in self.rb.items() if r_ != reg}
                self.rb[item] = reg
                e(f's_lshl_b32 {s(sT[4])}, {s(sW)}, {sh}\ns_add_u32 {s(sT[4])}, {s(sT[4])}, {slot*SLOT}\nv_add_u32 {v(reg)}, {s(sT[4])}, {v(vL16)}')
            self.rb['last'] = self.rb[item]
            return e(f'ds_write_b128 {v(self.rb[item])}, {a(r,4)} offset:{off}')
        assert wo
        want = (wo, (slot >> 1) * 0x10000 + (64 * x if wo else 0))
        ad = vSVo if wo else vSVw
        if want[1]:
            if want != self.sv: e(f'v_xor_b32 {v(vSVt)}, {want[1]}, {v(ad)}'); self.sv = want
            ad = vSVt
        off = (slot & 1)*SLOT + m*8192 + (0 if wo else x*512)
        e(f'ds_read_b64_tr_b16 {a(r,2)}, {v(ad)} offset:{off}')
        tag = e(f'ds_read_b64_tr_b16 {a(r+2,2)}, {v(ad)} offset:{off + 1024}')
        self.stag[(item, n)] = tag
        return tag
    def bg_op(self, name, n):
        op, item = name[0], name[1:]
        typ = 'AB'.index(item[1])
        if op in 'LR':
            slot = SLOTS[typ + (2 if op == 'R' else 0)][item[0]]
            if n == 0:
                prev = self.occ[slot]
                assert prev is None or prev in self.dead, (name, prev)
                if prev and prev[0] < 2:
                    sv = 'S' + prev[1] + 'AB'[prev[0]]
                    assert self.bgn.get(sv) == 8, (name, sv)
                    if op == 'L': self.e.wait(lg=self.bgt[sv])
                    assert op == 'L' or item[0] in 'ab' or sv[1:] in self.insave or sv[1:] in self.early, (name, sv)
                self.occ[slot] = (typ + (2 if op == 'R' else 0), item[0])
        if op == 'S':
            if n == 0:
                prev = self.bayocc.get(BAY[item])
                assert prev is None or (self.bgn.get('R' + prev) == 8 and not self.in_redo), (name, prev)
                self.bayocc[BAY[item]] = item
            if (typ, item[0]) not in self.live:
                assert self.bgn.get('L' + item) == 8 and item != 'QA', name
                self.e.wait(vm=self.bgt['L' + item])
        if op == 'L': return self.dma_w(typ, item[0], n) if item[0] in 'QKV' else self.dma_wo(typ, item[0], n)
        return self.park(op, item, n)
    def need(self, kinds, l=None):
        l = self.l if l is None else l
        for k in kinds:
            nm = ('L' if l < 2 else 'R') + k + 'AB'[l & 1]
            assert self.bgn.get(nm) == 8, (self.l, nm)
            if l < 2: self.e.wait(vm=self.bgt[nm])
            else: self.e.wait(lg=self.bgt[nm])
            self.live.add((l, k))
    def free(self, kinds):
        for k in kinds:
            self.dead.add((self.l, k))
            it = k + 'AB'[self.l & 1]
            if self.l < 2 and self.bgn.get('S' + it) == 8 and self.bgt['S' + it] <= self.e.lg_done: self.early.add(it)
    def bg(self, point):
        for name, cnt in self.sched.get(f'{self.l}.{point}', []):
            if name[0] == 'T':
                self.share_touch(name[1:]); continue
            for _ in range(cnt):
                n = self.bgn.get(name, 0)
                assert n < 8, name
                if any(name.startswith(x) for x in self.o.skip):
                    keep = self.e; self.e = Asm(); self.e.vm, self.e.lg, self.e.vm_done, self.e.lg_done = keep.vm, keep.lg, keep.vm_done, keep.lg_done
                    self.bg_op(name, n); self.e = keep; self.bgt[name] = 0; self.stag[(name[1:], n)] = 0; self.sv = None
                else: self.bgt[name] = self.bg_op(name, n)
                self.bgn[name] = n + 1
        if f'{self.l}.{point}' in self.o.wb:
            self.e(f's_lshl2_add_u32 {s(sT[5])}, {s(sG)}, {s(sW)}\ns_and_b32 {s(sT[5])}, {s(sT[5])}, {self.o.wbmask}\ns_cbranch_scc1 L_nowb{self.l}{point}')
            self.e.raw('buffer_wbl2 sc1')
            self.e(f'L_nowb{self.l}{point}:')
        if self.e1chk and point == self.o.e1chk[self.l]: self.e1chk()
        self.seen.add(f'{self.l}.{point}')
    def tag(self, reg, par):
        self.e(f'v_or_b32 {v(reg)}, 1, {v(reg)}' if par else f'v_and_b32 {v(reg)}, -2, {v(reg)}')
    def chk(self, acc, r0, r1, par, first):
        if first: return f'v_and_b32 {v(acc)}, {v(r0)}, {v(r1)}' if par else f'v_or_b32 {v(acc)}, {v(r0)}, {v(r1)}'
        return f'v_bitop3_b32 {v(acc)}, {v(acc)}, {v(r0)}, {v(r1)} bitop3:0x80' if par else f'v_or3_b32 {v(acc)}, {v(acc)}, {v(r0)}, {v(r1)}'
    def chk_end(self, acc, par, name, tmp=None):
        tmp = acc if tmp is None else tmp
        self.e(f'v_and_b32 {v(tmp)}, 1, {v(acc)}\nv_cmp_ne_u32 vcc, {par}, {v(tmp)}\ns_cbranch_vccnz L_redo_{name}')
    def hop(self, name, sbase, val, r, load, SP, shadow, reinit):
        e = self.e
        ld = f'buffer_load_dword {v(r)}, {v(vFl16)}, {s(sWS,4)}, {s(sbase)} offen sc1'
        cmp = f'v_cmp_gt_u32 vcc, {val}, {v(r)}'
        bud = f's_sub_u32 {s(sBUD)}, {s(sBUD)}, 1\ns_cbranch_scc1 L_fail'
        slow = Asm()
        slow(f'L_redo_{name}:\ns_waitcnt vmcnt(0) lgkmcnt(0)\ns_nop 15')
        if self.o.stamps: slow(f's_sub_u32 {s(sBUD)}, {s(sBUD)}, 1000')
        self.e = slow; reinit(); self.e = e
        slow(f's_waitcnt lgkmcnt(0)\nL_slow_{name}:\n{ld}\n{bud}\ns_waitcnt vmcnt(0)\n{cmp}\ns_cbranch_vccnz L_slow_{name}')
        for k in range(SP): load(slow, k)
        slow(f's_branch L_ok_{name}')
        self.tail.append(slow)
        again = Asm()
        if self.o.spagain:
            again(f'L_again_{name}:\n{ld}')
            for k in range(SP): load(again, k)
            again(f'{bud}\ns_waitcnt vmcnt({SP})\n{cmp}\ns_cbranch_vccnz L_again_{name}')
        else:
            again(f'L_again_{name}:\n{ld}\n{bud}\ns_waitcnt vmcnt(0)\n{cmp}\ns_cbranch_vccnz L_again_{name}')
            for k in range(SP): load(again, k)
        tag = e(ld)
        if SP:
            e(f's_cmp_lg_u32 {s(sMODE)}, 0\ns_cbranch_scc1 L_nosp_{name}')
            for k in range(SP): load(e, k)
            e(f'L_nosp_{name}:')
        vm = e.vm
        shadow()
        if SP:
            assert e.vm == vm and e.vm_done < tag
            e(f's_cmp_lg_u32 {s(sMODE)}, 0\ns_cbranch_scc1 L_slow_{name}')
        NP = self.o.np
        if NP > 1:
            assert not SP
            rs = [r] + [vXF + 124 + i for i in range(NP - 1)]
            pl = lambda x: f'buffer_load_dword {v(x)}, {v(vFl16)}, {s(sWS,4)}, {s(sbase)} offen sc1'
            t = Asm()
            t(pl(rs[1]))
            t(f's_waitcnt vmcnt(1)\n{cmp}\ns_cbranch_vccz L_ok_{name}')
            if name in self.o.npd: t(f's_sleep {self.o.npdn}')
            for x in rs[2:] + rs[:1]:
                t(pl(x))
                if x != rs[0]: t(f's_nop {self.o.npgap}')
            t(f'L_again_{name}:')
            for i in range(NP):
                x = rs[(i + 1) % NP]
                t(f's_waitcnt vmcnt({NP-1})\nv_cmp_gt_u32 vcc, {val}, {v(x)}\ns_cbranch_vccz L_ok_{name}\n{pl(x)}')
            t(f's_sub_u32 {s(sBUD)}, {s(sBUD)}, 1\ns_cbranch_scc0 L_again_{name}\ns_endpgm')
            e.ins += t.ins
            e.vm_done = max(e.vm_done, tag)
        else:
            e.wait(vm=tag)
            if self.o.hopinl:
                e(f'{cmp}\ns_cbranch_vccz L_ok_{name}')
                e.ins += again.ins
            else: e(f'{cmp}\ns_cbranch_vccnz L_slow_{name}')
        e(f'L_ok_{name}:')
        self.in_redo = True; self.sv = None; self.m0own = None; self.rb = {}
    def modal(self, name, fn):
        e = self.e
        e(f's_cmp_lg_u32 {s(sMODE)}, 0\ns_cbranch_scc1 L_{name}_safe')
        fn(e, '')
        e(f'L_{name}_join:')
        t = Asm(); t(f'L_{name}_safe:\ns_nop 4'); fn(t, ' sc1'); t(f's_nop 1\ns_branch L_{name}_join')
        self.tail.append(t)

    def x_stats(self):
        e = self.e
        S, Q = vTM, vTM + 1
        for i in range(8):
            e(f'v_dot2_f32_bf16 {v(S)}, {v(vRES+i)}, {s(sONES)}, {v(S) if i else 0}')
            e(f'v_dot2_f32_bf16 {v(Q)}, {v(vRES+i)}, {v(vRES+i)}, {v(Q) if i else 0}')
        e(f'v_permlane32_swap_b32 {v(S)}, {v(Q)}')
        e(f'v_add_f32 {v(S)}, {v(S)}, {v(Q)}\nv_mov_b32 {v(Q)}, {v(S)}')
        e(f'v_permlane16_swap_b32 {v(S)}, {v(Q)}')
        e(f'v_add_f32 {v(S)}, {v(S)}, {v(Q)}')
    def flag(self, e, reg, sflag, m):
        e(f's_mov_b64 exec, 1\nbuffer_store_dword {v(reg)}, off, {s(sWS,4)}, {s(sflag)}{m}\ns_mov_b64 exec, -1')

    def e1_addr(self, l, t):
        if l & 1: return vE1st, vZst
        self.e(f'v_add_u32 {v(t)}, {s(sSKIP)}, {v(vE1st)}\nv_add_u32 {v(t+1)}, {s(sSKIP)}, {v(vZst)}')
        return t, t + 1
    def clear_slot(self, l, m1, ak, az):
        e = self.e
        e(f'v_mov_b32 {v(m1)}, -1\nv_mov_b32 {v(m1+1)}, -1')
        e(f's_add_u32 {s(sT[4])}, {s(sKVwrB)}, {l*0x80000}\ns_add_u32 {s(sT[5])}, {s(sZwrB)}, {l*0x10000}')
        e(f'buffer_store_dwordx2 {v(m1,2)}, {v(ak)}, {s(sWS,4)}, {s(sT[4])} offen sc1')
        return e(f'buffer_store_dword {v(m1)}, {v(az)}, {s(sWS,4)}, {s(sT[5])} offen sc1')
    def dma0(self, P, n, again=False):
        e = self.e
        c = (self.o.twin if P == 0 and self.o.twin else self.o.ord0)[n]
        if again: self.d0 = {}
        if c in '0123':
            if P == 0 and self.o.twin:
                hi = int(c) >> 1; c = str(int(c) & 1)
                if self.d0.get('m0') != ('x', P, hi): e(f's_xor_b32 m0, {s(sT[4])}, {hi*2048}')
                if self.d0.get('x') != (P, hi): e(f's_xor_b32 {s(sT[0])}, {s(sT[5])}, {hi*16384}')
                self.d0.update(m0=('x', P, hi), x=(P, hi))
            else:
                if self.d0.get('m0') != ('x', P): e(f's_add_u32 m0, {s(sX0l)}, {(P % 3) * 16384}')
                if self.d0.get('x') != P: e(f's_xor_b32 {s(sT[0])}, {s(sX0g)}, {P << 7}')
                self.d0.update(m0=('x', P), x=P)
            return e(f'buffer_load_dwordx4 {v(vWPH+int(c))}, {s(sX,4)}, {s(sT[0])} offen offset:{int(c)*1024} {self.o.xmod if P < self.o.xmodp else str()} lds')
        self.d0['m0'] = None
        e(f's_add_u32 m0, {s(sW0l)}, {P*4096 + (SLOT - 1024 if c == "V" else 0)}')
        if self.d0.get('w') != P:
            e(f's_xor_b32 {s(sT[1])}, {s(sW0g)}, {P*4096}\ns_mul_i32 {s(sT[1])}, {s(sT[1])}, 48\ns_add_u32 {s(sT[1])}, {s(sT[1])}, 1024')
        self.d0['w'] = P
        return e(f'buffer_load_dwordx4 {v(vWdma)}, {s(sWA,4)}, {s(sT[1])} offen offset:{1024 if c == "V" else 0} lds')
    def dma0q(self, P):
        e = self.e
        self.d0['m0'] = None
        e(f's_xor_b32 {s(sDM)}, {s(sW0g)}, {P*4096}')
        e(f's_add_u32 m0, {s(sW0l)}, {P*4096 + 2*SLOT}')
        e(f's_mul_i32 {s(sDM)}, {s(sDM)}, 48')
        return e(f'buffer_load_dwordx4 {v(vWdma)}, {s(sWA,4)}, {s(sDM)} offen lds')

    def touch(self, i):
        e = self.e; T = sT; t16, t4 = vCS + 6, vCS + 7
        if i in (0, 9):
            e(f's_lshl2_add_u32 {s(T[5])}, s2, {s(sW)}\ns_lshr_b32 {s(T[4])}, {s(T[5])}, 1\ns_lshl_b32 {s(T[4])}, {s(T[4])}, 11\ns_lshl_b32 {s(T[5])}, {s(T[5])}, 9\ns_add_u32 {s(T[4])}, {s(T[4])}, {s(T[5])}')
            return e(f'buffer_load_dword a255, {v(t4)}, {s(sWA if i == 0 else sWB,4)}, {s(T[4])} offen')
        if i in (1, 5):
            e(f's_lshl2_add_u32 {s(T[5])}, s2, {s(sW)}\ns_lshl_b32 {s(T[5])}, {s(T[5])}, 9')
            return e(f'buffer_load_dword a255, {v(t4)}, {s(sWOA if i == 1 else sWOB,4)}, {s(T[5])} offen')
        if i == 2: return e(f'buffer_load_dword a255, {v(t16)}, {s(sWS,4)}, {s(sOwr)} offen {self.o.tmod}')
        if i in (10, 11):
            tp = vSVt; self.sv = None
            e(f's_lshr_b32 {s(T[5])}, s2, 3\ns_cmp_eq_u32 {s(sW)}, 3\ns_cbranch_scc1 L_p3w{i}')
            e(f's_mul_i32 {s(T[5])}, {s(T[5])}, 48\ns_add_u32 {s(T[5])}, {s(T[5])}, {s(sW)}\ns_lshl_b32 {s(T[5])}, {s(T[5])}, 10')
            e(f'v_mul_u32_u24 {v(tp)}, 736, {v(vFl16)}\nv_add_u32 {v(tp)}, {v(tp)}, {v(vZst)}\nv_lshl_add_u32 {v(tp)}, {v(vFl16)}, 5, {v(tp)}')
            e.raw(f'buffer_load_dword a255, {v(tp)}, {s(sWA if i == 10 else sWB,4)}, {s(T[5])} offen offset:384\ns_branch L_p3j{i}\nL_p3w{i}:')
            e(f's_lshl_b32 {s(T[5])}, {s(T[5])}, 14\nv_lshl_add_u32 {v(tp)}, {v(vFl16)}, 8, {v(vZst)}')
            tag = e(f'buffer_load_dword a255, {v(tp)}, {s(sWOA if i == 10 else sWOB,4)}, {s(T[5])} offen offset:384')
            e(f'L_p3j{i}:')
            return tag
        if i == 7:
            e(f's_lshl4_add_u32 {s(T[5])}, {s(sR)}, {s(sG)}\ns_lshl2_add_u32 {s(T[5])}, {s(T[5])}, {s(sW)}\ns_lshl_b32 {s(T[5])}, {s(T[5])}, 11')
            return e(f'buffer_load_dword a255, {v(t16)}, {s(sX,4)}, {s(T[5])} offen')
        if i in (3, 8):
            e(f's_lshl_b32 {s(T[5])}, {s(sW)}, 8\ns_add_u32 {s(T[5])}, {s(T[5])}, s2\ns_min_u32 {s(T[5])}, {s(T[5])}, 767\ns_lshl_b32 {s(T[5])}, {s(T[5])}, 11')
            return e(f'buffer_load_dword a255, {v(t16)}, {s(sWB if i == 3 else sWA,4)}, {s(T[5])} offen')
        if i == 4:
            e(f's_and_b32 {s(T[5])}, {s(sG)}, 3\ns_lshl_b32 {s(T[5])}, {s(T[5])}, 9\ns_add_u32 {s(T[5])}, {s(T[5])}, {s(sSTrd)}')
            return e(f'buffer_load_dword a255, {v(t4)}, {s(sWS,4)}, {s(T[5])} offen')
        if i == 6:
            e(f's_lshl_b32 {s(T[5])}, {s(sG)}, 11\ns_add_u32 {s(T[5])}, {s(T[5])}, {s(sXrd)}')
            return e(f'buffer_load_dword a255, {v(t16)}, {s(sWS,4)}, {s(T[5])} offen {self.o.tmod if i == 4 else str()}')

    def share_touch(self, name):
        e = self.e; t = vSVt; self.sv = None
        kinds, typ = name[:-1], 'AB'.index(name[-1])
        dst = 'a223' if self.l else 'a255'
        if kinds[0] in 'ab':
            e(f's_and_b32 {s(sT[5])}, {s(sG)}, 7\ns_lshl_b32 {s(sT[5])}, {s(sT[5])}, 7\ns_lshl3_add_u32 {s(sT[4])}, {s(sRo)}, {s(sT[5])}')
            if kinds == 'b': e(f's_add_u32 {s(sT[4])}, {s(sT[4])}, 0x40000')
            e(f'v_lshrrev_b32 {v(t)}, 6, {v(vL4)}\nv_lshlrev_b32 {v(t)}, {18 if kinds == "ab" else 26}, {v(t)}\nv_lshl_add_u32 {v(t)}, {v(vFl16)}, 8, {v(t)}')
            return e(f'buffer_load_dword {dst}, {v(t)}, {s(sWOA if typ == 0 else sWOB,4)}, {s(sT[4])} offen')
        e(f's_mul_i32 {s(sT[4])}, {s(sRw)}, 48\ns_lshl_b32 {s(sT[5])}, {s(sG)}, 6\ns_add_u32 {s(sT[4])}, {s(sT[4])}, {s(sT[5])}')
        e(f'v_mul_u32_u24 {v(t)}, 768, {v(vL4)}')
        if kinds == 'KV': e(f's_mov_b64 exec, 0xffffffff\ns_not_b64 exec, exec\nv_subrev_u32 {v(t)}, {32*3072 - 1024}, {v(t)}\ns_mov_b64 exec, -1')
        else: e('s_mov_b64 exec, 0xffffffff')
        tag = e(f'buffer_load_dword {dst}, {v(t)}, {s(sWA if typ == 0 else sWB,4)}, {s(sT[4])} offen offset:{"QKV".index(kinds[0])*1024}')
        if kinds != 'KV': e('s_mov_b64 exec, -1')
        return tag
    def code_touch(self, dst):
        return self.e(f'buffer_load_dword {dst}, {v(vL16)}, {s(sCODE,4)}, {s(sCOFF)} offen')
    def dummy(self, i):
        e = self.e
        if i < 4: return e(f'buffer_store_dwordx4 {v(vSEL,4)}, {v(vL16)}, {s(sWS,4)}, {s((sOwr, sXwr)[i >> 1])} offen offset:{(i & 1)*1024} sc1')
        return e(f'buffer_store_dword {v(vSEL)}, {v(vSTst)}, {s(sWS,4)}, {s(sSTwr)} offen sc1')

    def prologue(self):
        e = self.e
        T = sT
        e('s_cmp_ge_u32 s2, 256\ns_cbranch_scc1 L_fail')
        if self.o.echo and self.o.echo[0] == 'entry': e(f'{self.o.clk} {s(sE0,2)}')
        for srd, off in ((sX, 0), (sWA, 8), (sWS, 72), (sWOA, 16), (sWB, 32), (sWP, 40), (sWOB, 48), (sOUT, 56), (sDBG, 64)):
            e(f's_load_dwordx2 {s(srd,2)}, s[0:1], {off}')
        e(f's_getpc_b64 {s(sCODE,2)}')
        e(f'v_and_b32 {v(vLane)}, 63, v0\nv_lshrrev_b32 {v(vTM)}, 6, v0')
        e(f's_mov_b32 {s(sCODE+2)}, L_code_end-{NAME}_kernel-128\ns_mov_b32 {s(sCODE+3)}, 0x20000')
        e(f'v_readfirstlane_b32 {s(sW)}, {v(vTM)}')
        e(f'v_lshlrev_b32 {v(vL16)}, 4, {v(vLane)}')
        e(f's_lshr_b32 {s(sG)}, s2, 3\ns_lshl2_add_u32 {s(T[0])}, {s(sG)}, {s(sW)}')
        e(f's_and_b32 {s(T[0])}, {s(T[0])}, 63\ns_lshl_b32 {s(T[0])}, {s(T[0])}, 10\ns_min_u32 {s(sCOFF)}, {s(T[0])}, L_code_end-{NAME}_kernel-128-1024')
        self.code_touch('a255')
        e(f'v_lshlrev_b32 {v(vTM+6)}, 7, {v(vLane)}')
        for srd, sz in ((sX, 0x200000), (sWA, 0x180000), (sWS, WS_BYTES)):
            e(f's_mov_b32 {s(srd+2)}, {sz}\ns_mov_b32 {s(srd+3)}, 0x20000')
        t0, t1, t2 = vA1, vA1 + 1, vA1 + 2
        e(f'''
        s_and_b32 {s(sR)}, s2, 7
        s_lshl_b32 {s(sR)}, {s(sR)}, 1
        s_lshr_b32 {s(T[0])}, s2, 7
        s_add_u32 {s(sR)}, {s(sR)}, {s(T[0])}
        s_and_b32 {s(sG)}, {s(sG)}, 15
        s_lshl_b32 {s(sRB)}, {s(sR)}, 2
        s_add_u32 {s(sRB)}, {s(sRB)}, {s(sW)}
        s_and_b32 {s(sROT)}, {s(sG)}, 1
        s_lshl1_add_u32 {s(sROT)}, {s(sROT)}, {s(T[0])}
        s_lshl_b32 {s(sROT)}, {s(sROT)}, 1
        s_and_b32 {s(sROT)}, {s(sROT)}, {self.o.rotm}
        s_lshr_b32 {s(T[1])}, {s(sG)}, 1
        s_xor_b32 {s(sROT)}, {s(sROT)}, {s(T[1])}
        s_xor_b32 {s(sROT)}, {s(sROT)}, s2
        s_cmp_eq_u32 {s(T[1])}, {self.o.p3}
        s_cselect_b32 {s(T[1])}, 6, {self.o.rotf}
        s_and_b32 {s(sROT)}, {s(sROT)}, {s(T[1])}
        s_lshl_b32 {s(sX0g)}, {s(sRB)}, 8
        s_add_u32 {s(sX0g)}, {s(sX0g)}, {s(sROT)}
        s_lshl_b32 {s(sX0g)}, {s(sX0g)}, 7
        s_lshl_b32 {s(sX0l)}, {s(sW)}, 12
        s_add_u32 {s(sX0l)}, {s(sX0l)}, {3*SLOT}
        s_lshl_b32 {s(sW0l)}, {s(sW)}, 10
        s_lshl2_add_u32 {s(sW0g)}, {s(sROT)}, {s(sW)}
        s_lshl_b32 {s(sW0g)}, {s(sW0g)}, 10
        s_lshl_b32 {s(T[2])}, {s(sG)}, 6
        v_lshrrev_b32 {v(vWdma)}, 2, {v(vLane)}
        v_mul_u32_u24 {v(vWdma)}, 3072, {v(vWdma)}
        v_and_b32 {v(vTM+5)}, 3, {v(vLane)}
        v_lshl_add_u32 {v(vWdma)}, {v(vTM+5)}, 4, {v(vWdma)}
        v_add_u32 {v(vWdma)}, {s(T[2])}, {v(vWdma)}
        v_lshrrev_b32 {v(vTM+4)}, 4, {v(vLane)}
        v_and_b32 {v(t2)}, 7, {v(vLane)}
        v_xor_b32 {v(t1)}, {v(t2)}, {v(vTM+4)}
        v_lshlrev_b32 {v(t1)}, 4, {v(t1)}
        v_lshrrev_b32 {v(t0)}, 3, {v(vLane)}
        v_lshl_add_u32 {v(vWPH)}, {v(t0)}, 10, {v(t1)}
        v_xor_b32 {v(vWPH+1)}, 64, {v(vWPH)}
        v_add_u32 {v(vWPH+1)}, {7168}, {v(vWPH+1)}
        v_add_u32 {v(vWPH+2)}, {2*7168}, {v(vWPH)}
        v_add_u32 {v(vWPH+3)}, {2*7168}, {v(vWPH+1)}
        v_and_b32 {v(vTM)}, 31, {v(vLane)}
        v_lshrrev_b32 {v(vTM+1)}, 5, {v(vLane)}
        v_lshlrev_b32 {v(vL4)}, 2, {v(vLane)}
        ''')
        e(f'''
        s_lshl_b32 {s(T[3])}, {s(sG)}, 2
        s_add_u32 {s(T[3])}, {s(T[3])}, {s(sW)}
        s_lshl_b32 {s(sKVrdB)}, {s(T[3])}, 13
        s_add_u32 {s(sKVrdB)}, {s(sKVrdB)}, {KVP}
        s_lshl_b32 {s(sZrdB)}, {s(T[3])}, 10
        s_add_u32 {s(sZrdB)}, {s(sZrdB)}, {ZP}
        s_lshl_b32 {s(T[4])}, {s(sR)}, 9
        s_add_u32 {s(sKVwrB)}, {s(sKVrdB)}, {s(T[4])}
        s_lshl_b32 {s(T[5])}, {s(sR)}, 6
        s_add_u32 {s(sZwrB)}, {s(sZrdB)}, {s(T[5])}
        v_and_b32 {v(vFl16)}, 60, {v(vL4)}
        v_lshlrev_b32 {v(t0)}, 2, {v(vFl16)}
        v_lshl_add_u32 {v(t0)}, {v(vTM+1)}, 8, {v(t0)}
        v_and_b32 {v(t1)}, 1, {v(vTM+4)}
        v_lshl_add_u32 {v(vE1st)}, {v(t1)}, 3, {v(t0)}
        v_lshl_add_u32 {v(vZst)}, {v(vTM+4)}, 26, {v(vFl16)}
        s_lshr_b32 {s(sSKIP)}, {s(sR)}, 3
        s_lshr_b32 {s(T[1])}, {s(sW)}, 1
        s_xor_b32 {s(sSKIP)}, {s(sSKIP)}, {s(T[1])}
        s_lshl_b32 {s(sSKIP)}, {s(sSKIP)}, 28
        v_mov_b32 {v(vA0+4)}, 0
        s_lshr_b32 {s(sFOwr)}, {s(sG)}, 1
        s_lshl_b32 {s(sFOwr)}, {s(sFOwr)}, 13
        s_add_u32 {s(sFOwr)}, {s(sFOwr)}, {s(T[4])}
        s_and_b32 {s(sFOrd)}, {s(sG)}, 1
        s_lshl_b32 {s(sFOrd)}, {s(sFOrd)}, 8
        s_add_u32 {s(sFOwr)}, {s(sFOwr)}, {s(sFOrd)}
        ''')
        e(f'v_lshrrev_b32 {v(t0)}, 2, {v(vLane)}\nv_lshl_add_u32 {v(vCS+7)}, {v(t0)}, 26, {v(vTM+6)}\nv_lshl_add_u32 {v(vCS+6)}, {v(vTM+4)}, 26, {v(vTM+6)}')
        for srd, sz in ((sWOA, 0x80000), (sWB, 0x180000), (sWOB, 0x80000)):
            e(f's_mov_b32 {s(srd+2)}, {sz}\ns_mov_b32 {s(srd+3)}, 0x20000')
        if self.o.twin: e(f's_and_b32 {s(T[5])}, {s(sG)}, 1\ns_lshl_b32 {s(T[4])}, {s(T[5])}, 11\ns_lshl_b32 {s(T[5])}, {s(T[5])}, 14\ns_add_u32 {s(T[4])}, {s(T[4])}, {s(sX0l)}\ns_add_u32 {s(T[5])}, {s(T[5])}, {s(sX0g)}')
        e('s_waitcnt lgkmcnt(0)')
        if self.o.stamps:
            e(f's_memrealtime {s(sTS,2)}'); e.wait_all_lg()
            e(f'v_writelane_b32 {v(vSTAMP)}, {s(sTS)}, 62')
        self.stamp('start')
        self.ct = [None] * 8
        for c in self.o.t0: self.touch(int(c, 16))
        for n in range(6): self.ct[0] = self.dma0(0, n)
        for c in self.o.t1: self.touch(int(c, 16))
        if self.o.q0 > 0: self.dma0q(0)
        for n in range(self.o.c1early): self.ct[1] = self.dma0(1, n)
        e(f's_and_b32 {s(sFOrd)}, {s(T[3])}, 0x33\ns_cbranch_scc1 L_noclr')
        e.raw(f'buffer_store_dword {v(vA0+4)}, {v(vL4)}, {s(sWS,4)}, {s(sFOwr)} offen sc1')
        e('L_noclr:')
        self.clear_slot(0, vM1, *self.e1_addr(0, vA0 + 6))
        for srd, sz in ((sWP, 0x4000), (sOUT, 0x200000), (sDBG, 256)):
            e(f's_mov_b32 {s(srd+2)}, {sz}\ns_mov_b32 {s(srd+3)}, 0x20000')
        e(f'''
        s_and_b32 {s(T[0])}, {s(sW)}, 1
        s_lshr_b32 {s(T[1])}, {s(sW)}, 1
        s_lshl_b32 {s(sRBO)}, {s(sR)}, 2
        s_lshr_b32 {s(T[4])}, {s(sG)}, 3
        s_lshl_b32 {s(T[4])}, {s(T[4])}, 1
        s_add_u32 {s(T[4])}, {s(T[4])}, {s(T[0])}
        s_add_u32 {s(sRBO)}, {s(sRBO)}, {s(T[4])}
        s_lshl_b32 {s(T[3])}, {s(T[4])}, 12
        s_add_u32 {s(T[3])}, {s(T[3])}, {3*SLOT}
        s_and_b32 {s(sJ)}, {s(sG)}, 7
        s_xor_b32 {s(sRESP)}, {s(sJ)}, {s(sROT)}
        s_lshl_b32 {s(sJ)}, {s(sJ)}, 1
        s_add_u32 {s(sJ)}, {s(sJ)}, {s(T[1])}
        s_lshl_b32 {s(sXO)}, {s(sRBO)}, 15
        s_lshl_b32 {s(T[2])}, {s(T[1])}, 14
        s_add_u32 {s(sXO)}, {s(sXO)}, {s(T[2])}
        s_and_b32 {s(T[2])}, {s(sG)}, 7
        s_lshl_b32 {s(T[2])}, {s(T[2])}, 7
        s_add_u32 {s(sXO)}, {s(sXO)}, {s(T[2])}
        s_and_b32 {s(T[4])}, {s(sG)}, 1
        s_and_b32 {s(T[5])}, {s(sR)}, 1
        s_lshl1_add_u32 {s(T[4])}, {s(T[4])}, {s(T[5])}
        s_and_b32 {s(T[4])}, {s(T[4])}, {self.o.rotw}
        s_lshl2_add_u32 {s(T[4])}, {s(T[4])}, {s(sW)}
        s_lshl_b32 {s(sRw)}, {s(T[4])}, 11
        s_lshr_b32 {s(T[4])}, {s(sG)}, 3
        s_lshl1_add_u32 {s(T[4])}, {s(T[4])}, {s(T[5])}
        s_and_b32 {s(T[4])}, {s(T[4])}, {self.o.roto}
        s_lshl2_add_u32 {s(T[4])}, {s(T[4])}, {s(sW)}
        s_lshl_b32 {s(sRo)}, {s(T[4])}, 11
        s_lshl_b32 {s(T[4])}, {s(T[1])}, 12
        s_add_u32 {s(sKVrdA)}, {s(sKVrdB)}, {s(T[4])}
        s_lshl_b32 {s(T[4])}, {s(T[1])}, 9
        s_add_u32 {s(sZrdA)}, {s(sZrdB)}, {s(T[4])}
        s_lshl_b32 {s(T[4])}, {s(sRB)}, 15
        s_add_u32 {s(sXrd)}, {s(T[4])}, {XB}
        s_lshl_b32 {s(T[5])}, {s(sG)}, 11
        s_add_u32 {s(sOwr)}, {s(T[4])}, {s(T[5])}
        s_add_u32 {s(sOwr)}, {s(sOwr)}, {OB}
        s_lshl_b32 {s(T[4])}, {s(sRBO)}, 15
        s_lshl_b32 {s(T[5])}, {s(T[2])}, 5
        s_add_u32 {s(sXwr)}, {s(T[4])}, {s(T[5])}
        s_lshl_b32 {s(T[5])}, {s(T[1])}, 8
        s_add_u32 {s(sXwr)}, {s(sXwr)}, {s(T[5])}
        s_add_u32 {s(sXwr)}, {s(sXwr)}, {XB}
        s_lshl_b32 {s(T[5])}, {s(T[1])}, 10
        s_add_u32 {s(sOrd)}, {s(T[4])}, {s(T[5])}
        s_add_u32 {s(sOrd)}, {s(sOrd)}, {OB}
        s_lshl_b32 {s(sSTrd)}, {s(sRB)}, 11
        s_add_u32 {s(sSTrd)}, {s(sSTrd)}, {ST}
        s_lshl_b32 {s(sSTwr)}, {s(sRBO)}, 11
        s_and_b32 {s(T[4])}, {s(sG)}, 6
        s_add_u32 {s(T[4])}, {s(T[4])}, {s(T[1])}
        s_lshl_b32 {s(T[5])}, {s(T[4])}, 8
        s_add_u32 {s(sSTwr)}, {s(sSTwr)}, {s(T[5])}
        s_and_b32 {s(T[5])}, {s(sG)}, 1
        s_lshl3_add_u32 {s(sSTwr)}, {s(T[5])}, {s(sSTwr)}
        s_add_u32 {s(sSTwr)}, {s(sSTwr)}, {ST}
        s_lshl_b32 {s(sFXrd)}, {s(sRB)}, 7
        s_lshl_b32 {s(T[5])}, {s(sG)}, 2
        s_add_u32 {s(sFOwr)}, {s(sFXrd)}, {s(T[5])}
        s_add_u32 {s(sFXrd)}, {s(sFXrd)}, {FLG_X}
        s_lshl_b32 {s(sFOrd)}, {s(sRBO)}, 7
        s_lshl_b32 {s(T[5])}, {s(sJ)}, 2
        s_add_u32 {s(sFXwr)}, {s(sFOrd)}, {s(T[5])}
        s_add_u32 {s(sFXwr)}, {s(sFXwr)}, {FLG_X}
        s_mov_b32 {s(sONES)}, 0x3f803f80
        s_mov_b32 {s(sPERM)}, 0x07060302
        s_mov_b32 {s(sHI)}, 0xffff0000
        s_mov_b32 {s(sL2E)}, 0x3fb8aa3b
        s_mov_b32 {s(sL2E+1)}, 0x3fb8aa3b
        s_mov_b32 {s(sEPS6)}, 0x358637bd
        s_mov_b32 {s(sEPS6+1)}, 0x358637bd
        s_getreg_b32 {s(sXCC)}, hwreg(HW_REG_XCC_ID, 0, 3)
        s_lshl_b32 {s(sXCC)}, {s(sXCC)}, 2
        s_mov_b32 {s(sBUD)}, {100000 if self.o.stamps else 400000}
        ''')
        e(f'''
        v_add_lshl_u32 {v(vSTst)}, {v(vFl16)}, {v(vTM+1)}, 2
        v_lshrrev_b32 {v(t0)}, 3, {v(vLane)}
        v_lshlrev_b32 {v(t1)}, 1, {v(vTM+4)}
        v_xor_b32 {v(t1)}, {v(t1)}, {v(t2)}
        v_lshlrev_b32 {v(t1)}, 4, {v(t1)}
        v_lshl_add_u32 {v(vWOdma)}, {v(t0)}, 10, {v(t1)}
        v_add_u32 {v(vWOdma)}, {s(T[2])}, {v(vWOdma)}
        ''')
        e(f'''
        v_bfe_u32 {v(t0)}, {v(vLane)}, 2, 2
        v_lshl_add_u32 {v(t0)}, {v(vTM+1)}, 2, {v(t0)}
        v_lshlrev_b32 {v(t0)}, 6, {v(t0)}
        v_and_b32 {v(t1)}, 1, {v(vTM+4)}
        v_lshl_add_u32 {v(t0)}, {v(t1)}, 5, {v(t0)}
        v_and_b32 {v(t1)}, 1, {v(vLane)}
        v_lshl_add_u32 {v(t0)}, {v(t1)}, 4, {v(t0)}
        v_bfe_u32 {v(t1)}, {v(vLane)}, 1, 1
        v_lshl_add_u32 {v(t0)}, {v(t1)}, 3, {v(t0)}
        v_bfe_u32 {v(t1)}, {v(vLane)}, 1, 3
        v_lshlrev_b32 {v(t2)}, 1, {v(vTM+1)}
        v_xor_b32 {v(t1)}, {v(t1)}, {v(t2)}
        v_lshlrev_b32 {v(t1)}, 4, {v(t1)}
        v_lshl_add_u32 {v(t1)}, {v(vTM)}, 7, {v(t1)}
        s_lshl_b32 {s(T[4])}, {s(T[1])}, 11
        s_add_u32 {s(T[4])}, {s(T[4])}, {s(T[3])}
        v_bfe_u32 {v(t2)}, {v(vLane)}, 1, 3
        v_xor_b32 {v(t2)}, {v(t2)}, {v(vTM+1)}
        v_lshl_add_u32 {v(t2)}, {v(t2)}, 4, {s(T[4])}
        v_lshl_add_u32 {v(t2)}, {v(vFl16)}, 5, {v(t2)}
        v_and_b32 {v(vA0+5)}, 1, {v(vTM+4)}
        v_lshl_add_u32 {v(vA0+5)}, {v(vA0+5)}, 3, {v(t2)}
        v_add_u32 {v(t1)}, {s(sX0l)}, {v(t1)}
        s_lshl_b32 {s(T[4])}, {s(sW)}, 13
        v_add_u32 {v(vSVw)}, {s(T[4])}, {v(t0)}
        s_lshl2_add_u32 {s(T[5])}, {s(sW)}, {L_CS}
        v_lshl_add_u32 {v(vCSa)}, {v(vTM)}, 4, {s(T[5])}
        ''')
        for q in range(4):
            e(f'''
            s_xor_b32 {s(T[4])}, {s(sW)}, {q}
            s_lshr_b32 {s(T[5])}, {s(T[4])}, 1
            s_lshl_b32 {s(T[5])}, {s(T[5])}, 2
            s_and_b32 {s(T[4])}, {s(T[4])}, 1
            s_add_u32 {s(T[4])}, {s(T[4])}, {s(T[5])}
            s_lshl_b32 {s(T[5])}, {s(T[4])}, 9
            v_add_u32 {v(vWtr+q)}, {s(T[5])}, {v(t0)}
            s_lshl_b32 {s(T[5])}, {s(T[4])}, 4
            v_xor_b32 {v(vWPH+4+q)}, {s(T[5])}, {v(t1)}
            ''')
        if self.o.padp == -3: self.warm()
        e(f'''
        s_lshl_b32 {s(T[4])}, {s(sW)}, 9
        s_add_u32 {s(T[4])}, {s(T[4])}, {L_PK}
        v_lshl_add_u32 {v(t0)}, {v(vTM)}, 4, {s(T[4])}
        v_mul_u32_u24 {v(t1)}, {PL}, {v(vTM+1)}
        v_add_u32 {v(vPKwA)}, {v(t0)}, {v(t1)}
        v_lshl_add_u32 {v(vPKwB)}, {v(t1)}, 2, {v(t0)}
        v_bfe_u32 {v(t0)}, {v(vLane)}, 1, 1
        v_mul_u32_u24 {v(t0)}, {PL}, {v(t0)}
        v_lshrrev_b32 {v(t1)}, 2, {v(vLane)}
        v_lshl_add_u32 {v(t0)}, {v(t1)}, 4, {v(t0)}
        v_and_b32 {v(t1)}, 1, {v(vLane)}
        v_lshl_add_u32 {v(t0)}, {v(t1)}, 3, {v(t0)}
        s_mul_i32 {s(T[4])}, {s(sW)}, {2*PL}
        s_add_u32 {s(T[4])}, {s(T[4])}, {L_PK}
        v_add_u32 {v(vPKrB)}, {s(T[4])}, {v(t0)}
        s_mul_i32 {s(T[4])}, {s(T[0])}, {2*PL}
        s_add_u32 {s(T[4])}, {s(T[4])}, {L_PK}
        v_add_u32 {v(vPKrA)}, {s(T[4])}, {v(t0)}
        ''')
        e(f'''
        s_mul_i32 {s(T[4])}, {s(sW)}, 544
        s_add_u32 {s(T[4])}, {s(T[4])}, {L_KV}
        v_lshl_add_u32 {v(t0)}, {v(vFl16)}, 3, {s(T[4])}
        v_lshl_add_u32 {v(vKVw)}, {v(vTM+4)}, 3, {v(t0)}
        v_lshrrev_b32 {v(t0)}, 1, {v(vFl16)}
        v_add_u32 {v(vZw)}, {s(T[4])}, {v(t0)}
        v_min_u32 {v(t0)}, 16, {v(vTM)}
        v_lshlrev_b32 {v(t0)}, 5, {v(t0)}
        v_add_u32 {v(t0)}, {L_KV}, {v(t0)}
        v_lshl_add_u32 {v(vKVrA)}, {v(vTM+1)}, 4, {v(t0)}
        v_mul_u32_u24 {v(t1)}, 1088, {v(vTM+1)}
        v_add_u32 {v(vKVrB)}, {v(t0)}, {v(t1)}
        ''')
        e(f'''
        v_bfe_u32 {v(t0)}, {v(vLane)}, 2, 3
        v_lshlrev_b32 {v(t0)}, 7, {v(t0)}
        v_lshl_add_u32 {v(t0)}, {v(vTM+5)}, 3, {v(t0)}
        v_bfe_u32 {v(t1)}, {v(vLane)}, 3, 2
        v_lshl_add_u32 {v(t0)}, {v(t1)}, 5, {v(t0)}
        v_lshl_add_u32 {v(vWO)}, {v(vTM+1)}, 11, {v(t0)}
        v_lshlrev_b32 {v(t1)}, 5, {v(vTM+1)}
        v_xor_b32 {v(t0)}, {v(t0)}, {v(t1)}
        s_lshl_b32 {s(T[5])}, {s(sW)}, 11
        v_add_u32 {v(vSVo)}, {s(T[5])}, {v(t0)}
        ''')
        e(f'''
        v_and_b32 {v(t0)}, 1, {v(vLane)}
        v_lshlrev_b32 {v(t0)}, 4, {v(t0)}
        v_mov_b32 {v(t1)}, 0x3f80
        v_lshlrev_b32 {v(t0)}, {v(t0)}, {v(t1)}
        v_lshrrev_b32 {v(t1)}, 1, {v(vLane)}
        v_xor_b32 {v(t1)}, {v(t1)}, {v(vLane)}
        v_and_b32 {v(t1)}, 8, {v(t1)}
        v_bfe_u32 {v(t2)}, {v(vLane)}, 1, 2
        v_or_b32 {v(t1)}, {v(t1)}, {v(t2)}
        ''')
        for d in range(4):
            e(f'v_cmp_eq_u32 vcc, {d}, {v(t1)}\nv_cndmask_b32 {v(vSEL+d)}, 0, {v(t0)}, vcc')
        e(f'v_mov_b32 {v(vTM+4)}, {v(vA0+5)}')
        if self.o.padp == -2: self.warm()
        for n in range(self.o.c1early, 6): self.ct[1] = self.dma0(1, n, again=(n == self.o.c1early))
        if self.o.q0 > 1: self.dma0q(1)
        if self.o.dummy < 0:
            for i in range(5): self.dummy(i)
        for c in self.o.t2: self.touch(int(c, 16))
        if self.o.padp == -1: self.warm()
        e('s_branch L_main\n.p2align 12\nL_main:')
        self.stamp('setup')

    def big(self, acc, w, k, first):
        self.e(f'v_mfma_f32_32x32x16_bf16 {v(acc,16)}, {R(w[0],w[1],4)}, {v(vXF+4*k,4)}, {0 if first else v(acc,16)}')
    def own(self, item, n):
        if n == 0:
            prev = self.bayocc.get(BAY[item]); assert prev is None
            self.bayocc[BAY[item]] = item
        self.bgn['S' + item] = n + 1; self.bgt['S' + item] = 0; self.insave.add(item)
        return ('a', BAY[item]*32 + 4*n)
    def warm(self):
        if not self.o.pads: return
        e = self.e
        e(f's_mov_b64 exec, 0')
        for w in range(3): e(f's_cmp_eq_u32 {s(sW)}, {w}\ns_cbranch_scc1 L_pad{w}')
        e('s_branch L_pad3\nL_warm_done:\ns_mov_b64 exec, -1\ns_nop 3')
    def par_sel(self, dst):
        e = self.e
        e(f's_mov_b32 vcc_lo, 0xf0f00f0f\ns_mov_b32 vcc_hi, 0xf0f00f0f\nv_mov_b32 {v(dst+1)}, {s(sONES)}')
        e(f'v_cndmask_b32 {v(dst)}, 0, {v(dst+1)}, vcc')
        for i in (1, 2, 3): e(f'v_mov_b32 {v(dst+i)}, {v(dst)}')
    def rowsum(self, acc, sel, frag, first):
        self.e(f'v_mfma_f32_16x16x32_bf16 {acc}, {v(sel,4)}, {R(frag[0],frag[1],4)}, {0 if first else acc}')

    def kv_gemm0(self):
        e = self.e
        sel = vCS + 8
        self.par_sel(sel)
        aS, aK, aV = a(240, 4), a(244, 4), a(248, 4)
        wt = [None] * 32; xt = [None] * 32; wk = [None] * 32; wv = [None] * 32
        dl = []
        def dma(n):
            for _ in range(n):
                if dl:
                    P, i = dl.pop(0)
                    if P < 8: self.ct[P] = self.dma0(P, i)
                    elif P == 8: self.bgt['LQA'] = self.dma0q(i); self.bgn['LQA'] = i + 1
                    elif P == 9: self.touch(i)
                    elif P == 11: self.dummy(i)
                    elif P == 12: self.code_touch('a255')
                    elif P == 10: self.clr1 = self.clear_slot(1, vM1, vE1st, vZst)
        cK, cV = vCS + 2, vCS + 4
        sb = vWPH
        q0, q1 = vTM, vTM + 1
        dq = []
        sops = [f'v_accvgpr_read_b32 {v(sb)}, a240', f'v_add_f32 {v(sb+1)}, {v(q0)}, {v(q1)}', f'v_mov_b32 {v(sb+3)}, {v(sb+1)}',
                f'v_permlane32_swap_b32 {v(sb+1)}, {v(sb+3)}', f'v_add_f32 {v(sb+1)}, {v(sb+1)}, {v(sb+3)}'] + self.stats_tail(sb)
        if self.o.sdot:
            sops = [f'v_mov_b32 {v(sb+2)}, {v(q0)}\nv_mov_b32 {v(sb+3)}, {v(q1)}', f'v_permlane32_swap_b32 {v(q0)}, {v(sb+2)}', f'v_permlane32_swap_b32 {v(q1)}, {v(sb+3)}',
                    f'v_add_f32 {v(sb)}, {v(q0)}, {v(sb+2)}', f'v_add_f32 {v(sb+1)}, {v(q1)}, {v(sb+3)}'] + self.stats_tail(sb)
        def pop(n):
            for _ in range(n):
                if k >= 28 and sops: e(sops.pop(0))
        nq = self.o.q0
        touches = {int(x[0]): [int(c, 16) for c in x[1:]] for x in self.o.touch.split(',') if x}
        for k in range(-2, 32):
            if k + 2 < 32:
                nb = vWB + ((k + 2) % 3) * 8
                wk[k+2], wv[k+2] = (self.own('KA', (k+2) >> 2), self.own('VA', (k+2) >> 2)) if (k + 2) % 4 == 0 else (('v', nb), ('v', nb + 4))
            fr = [k + 1] if -1 <= k < 27 else ([28, 29, 30, 31] if k == 27 else [])
            bound = (k + 2) % 4 == 0 and k + 2 < 32
            if k >= 0:
                e.wait(lg=max(wt[k], xt[k]))
                if k % 4 == 0:
                    self.rowsum(aK, sel, wk[k], k == 0); self.rowsum(aV, sel, wv[k], k == 0)
                self.big(vA0, wk[k], k, k == 0)
            if bound:
                P = (k + 2) >> 2
                dma(99)
                if P == self.o.padp: self.warm()
                e.wait(vm=self.ct[P])
                e('s_barrier')
                if P == 0 or self.o.fine: self.stamp(f'chunk{P}')
                for q in range(4):
                    xt[4*P+q] = e(f'ds_read_b128 {v(vXF+16*P+4*q,4)}, {v(vWPH+4+q)} offset:{(P%3)*16384}')
                if P + 2 < 8: dl += [(P + 2, i) for i in range(6)]
                if P == self.o.clrp: dl += [(10, 0)]
                for _ in range(int(self.o.qs[P])):
                    dl += [(8, nq)]; nq += 1
                if P == 5 and self.o.ctouch & 4: dl += [(12, 0)]
                dl += [(9, i) for i in touches.get(P, [])]
                if P == 6 and self.o.tq: dl[1:1] = [(9, int(c)) for c in self.o.tq]
                if self.o.dummy == 7 and P == 7: dl += [(11, i) for i in range(4)]
                elif self.o.dummy > 0 and 0 <= P - self.o.dummy < 3: dl += [(11, i) for i in ((0, 1), (2, 3), (4,))[P - self.o.dummy]]
            else:
                dma(1)
            if k + 2 < 32: self.tr_w(wk[k+2], k + 2, 0)
            if k == 28:
                dma(99)
                cw = self.cs_write(['a244', 'a248'], [1, 2])
            pop(3 if k == 28 else 5)
            for f in fr:
                e.wait(lg=xt[f])
                if not self.o.sdot: self.rowsum(aS, sel, ('v', vXF + 4*f), f == 0)
            if k == 31:
                assert not sops
                e(f'v_mfma_f32_32x32x8_bf16 {v(vA1,16)}, {v(cV,2)}, {v(vMF,2)}, {v(vA1,16)}')
            if k >= 0:
                self.big(vA1, wv[k], k, k == 0)
            if -1 <= k < 31:
                for i in range(2): e(f'v_permlane32_swap_b32 {v(vXF+4*k+4+i)}, {v(vXF+4*k+6+i)}')
            if k + 2 < 32: wt[k + 2] = self.tr_w(wv[k+2], k + 2, SLOT)
            if bound:
                e(f's_cmp_lg_u32 {s(sRESP)}, {P}\ns_cbranch_scc1 L_nores{P}')
                for t in range(4):
                    if t: e(f'v_xor_b32 {v(vTM+4)}, {32*(t ^ (t-1))}, {v(vTM+4)}')
                    e.raw(f'ds_read_b64 {v(vRES+2*t,2)}, {v(vTM+4)} offset:{(P%3)*16384}')
                e(f'L_nores{P}:')
            dma(1)
            if k % 4 == 3 and k < 28 or k == -1:
                e.wait(lg=xt[k + 4])
                for f in range(k + 1, k + 5):
                    for i in range(4):
                        if self.o.sdot:
                            e(f'v_dot2_f32_bf16 {v(q0)}, {v(vXF+4*f+i)}, {s(sONES)}, {v(q0) if (f or i) else 0}')
                            e(f'v_dot2_f32_bf16 {v(q1)}, {v(vXF+4*f+i)}, {v(vXF+4*f+i)}, {v(q1) if (f or i) else 0}')
                        else: e(f'v_dot2_f32_bf16 {v((q0, q1)[i&1])}, {v(vXF+4*f+i)}, {v(vXF+4*f+i)}, {v((q0, q1)[i&1]) if (f or i > 1) else 0}')
            pop(5)
            if k == 4 * self.o.atp - 1:
                e(f'''
                s_cmp_lg_u32 {s(sW)}, 0
                s_cbranch_scc1 L_noat
                s_lshr_b32 {s(sT[5])}, {s(sG)}, 3
                s_lshl1_add_u32 {s(sT[5])}, {s(sR)}, {s(sT[5])}
                s_lshl_b32 {s(sT[5])}, {s(sT[5])}, 2
                s_lshl_b32 {s(sAT)}, 1, {s(sXCC)}
                s_atomic_add {s(sAT)}, {s(sDBG,2)}, {s(sT[5])}
                L_noat:
                ''')
            if k == 28:
                e.wait(lg=cw); e('s_barrier')
                self.dead.add((9, 'x'))
                if self.o.fine: self.stamp('g28')
                r1 = self.cs_read(1, vWPH + 4)
                r2 = self.cs_read(2, vCS + 8)
            self.k0 = k
            if k >= 2: self.bg(f'kv{k}')
            if k == 29:
                assert not sops
                e.wait(lg=r2)
                sops += self.cs_pack_ops(vWPH + 4, cK) + self.cs_pack_ops(vCS + 8, cV)
            if k == 30: e(f'v_mfma_f32_32x32x8_bf16 {v(vA0,16)}, {v(cK,2)}, {v(vMF,2)}, {v(vA0,16)}'); pop(5)
        assert not sops
        self.stamp('L0.kvgemm')

    def cs_write(self, acc, blk):
        tag = None
        for ac, b in zip(acc, blk):
            tag = self.e(f'ds_write_b32 {v(vCSa)}, {ac} offset:{b*512}')
        return tag
    def cs_read(self, blk, dst):
        self.e(f'v_and_b32 {v(dst)}, -16, {v(vCSa)}')
        return self.e(f'ds_read_b128 {v(dst,4)}, {v(dst)} offset:{blk*512}')
    def cs_pack_ops(self, src, out):
        return [f'v_add_f32 {v(src)}, {v(src)}, {v(src+2)}', f'v_add_f32 {v(src+1)}, {v(src+1)}, {v(src+3)}',
                f'v_add_f32 {v(src)}, {v(src)}, {v(src+1)}',
                f'v_and_b32 {v(src+1)}, {s(sHI)}, {v(src)}',
                f'v_sub_f32 {v(src+1)}, {v(src)}, {v(src+1)}',
                f'v_perm_b32 {v(out)}, {v(src+1)}, {v(src)}, {s(sPERM)}',
                f'v_and_b32 {v(src+2)}, {s(sHI)}, {v(src+1)}',
                f'v_sub_f32 {v(src+2)}, {v(src+1)}, {v(src+2)}',
                f'v_lshrrev_b32 {v(out+1)}, 16, {v(src+2)}']
    def cs_pack(self, src, out):
        for op in self.cs_pack_ops(src, out): self.e(op)

    def stats_ops(self, chk, par):
        b = vXF + 120; t = vTM
        p1 = []
        for i in range(2):
            if chk: p1 += [self.chk(chk, b+4*i, b+4*i+1, par, False), self.chk(chk, b+4*i+2, b+4*i+3, par, False)]
            p1 += [f'v_add_f32 {v(b+4*i+j)}, {v(b+4*i+j)}, {v(b+4*i+2+j)}' for j in range(2)]
        p1 += [f'v_add_f32 {v(t+j)}, {v(b+j)}, {v(b+4+j)}' for j in range(2)]
        p2 = [f'v_mov_b32 {v(t+2)}, {v(t)}', f'v_mov_b32 {v(t+3)}, {v(t+1)}',
              f'v_permlane32_swap_b32 {v(t)}, {v(t+2)}', f'v_permlane32_swap_b32 {v(t+1)}, {v(t+3)}',
              f'v_add_f32 {v(t)}, {v(t)}, {v(t+2)}', f'v_add_f32 {v(t+1)}, {v(t+1)}, {v(t+3)}']
        return p1, p2 + self.stats_tail(t)
    def stats_tail(self, b):
        ops = [
                f'v_mul_f32 {v(b)}, 0xbb000000, {v(b)}',
                f'v_mul_f32 {v(b+1)}, 0x3b000000, {v(b+1)}',
                f'v_fma_f32 {v(b+1)}, -{v(b)}, {v(b)}, {v(b+1)}',
                f'v_max_f32 {v(b+1)}, 0, {v(b+1)}',
                f'v_add_f32 {v(b+1)}, 0x3727c5ac, {v(b+1)}',
                f'v_rsq_f32 {v(vRS)}, {v(b+1)}',
                f'v_and_b32 {v(b+2)}, {s(sHI)}, {v(b)}',
                f'v_sub_f32 {v(b+2)}, {v(b)}, {v(b+2)}',
                f's_mov_b64 vcc, 0xffffffff',
                f'v_mul_f32 {v(vRS+1)}, {s(sL2E)}, {v(vRS)}',
                f'v_cndmask_b32 {v(b)}, {v(b+2)}, {v(b)}, vcc',
                f'v_perm_b32 {v(vMF)}, {v(b)}, {v(b)}, {s(sPERM)}',
                f'v_lshrrev_b32 {v(vMF+1)}, 16, {v(b)}']
        return ops

    def tr_w(self, dst, ks, extra):
        e = self.e; kind, r = dst
        if self.l >= 2: return e(f'ds_read_b128 {R(kind,r,4)}, {v(vWtr)} offset:{ks*1024 + extra}')
        if self.l == 0: ad, off = vWtr + (ks & 3), (ks >> 2) * 4096 + extra
        else:
            if ks >> 3 != self.wq: e(f'v_xor_b32 {v(vWtr)}, {((ks >> 3) ^ self.wq) * 8192}, {v(vWtr)}'); self.wq = ks >> 3
            ad, off = vWtr, ((ks & 7) >> 1) * 2048 + (ks & 1) * 512 + extra
        e(f'ds_read_b64_tr_b16 {R(kind,r,2)}, {v(ad)} offset:{off}')
        return e(f'ds_read_b64_tr_b16 {R(kind,r+2,2)}, {v(ad)} offset:{off + 1024}')

    def kv_gemm(self, l):
        e = self.e; typ = l & 1; first = l == 1
        chk = vTM + 4; par = (l - 1) & 1
        cK, cV = vCS + typ*6 + 2, vCS + typ*6 + 4
        xt = [None] * 32; wt = [None] * 32
        wk = [self.own('KB', k) if first and k < 8 else ('v', vWB + (k % 3)*8) for k in range(32)]
        wv = [self.own('VB', k) if first and k < 8 else ('v', vWB + (k % 3)*8 + 4) for k in range(32)]
        def xload(e, k):
            if k % 4 == 0: e(f's_xor_b32 {s(sT[0])}, {s(sT[2])}, {k*1024}')
            xt[k] = e(f'buffer_load_dwordx4 {v(vXF+4*k,4)}, {v(vL16)}, {s(sWS,4)}, {s(sT[0])} offen offset:{(k&3)*1024} sc1')
        PRE = self.o.xpre; SP = self.o.spx if l > 1 else 0
        sel = vCS + 8; aK, aV = a(192, 4), a(196, 4)
        def init():
            for k in range(2):
                self.tr_w(wk[k], k, 0)
                wt[k] = self.tr_w(wv[k], k, SLOT)
        def shadow():
            self.l = l - 1
            if self.late_stats: self.late_stats()
            self.bg('yp')
            self.need('KV', l)
            if l == 2: e.wait_all_lg()
            e('s_barrier')
            self.free('ab')
            self.bg('y1')
            self.l = l
            init()
            if first: self.par_sel(sel)
            self.bg('kvsh')
        self.hop(f'x{l}', sFXrd, l + 1, vTM + 5, xload, SP, shadow, init)
        if first: self.in_redo = False
        self.stamp(f'L{l-1}.poll3')
        for k in range(SP, PRE): xload(e, k)
        nx = PRE
        self.bg('kvpre')
        stt = None
        p1, p2 = self.stats_ops(None if first else chk, par)
        p0 = []
        EX = self.o.xextra if first else 0
        SL = self.o.stat_at; S0 = SL + 2 + PRE + EX
        def pop(n):
            for _ in range(n):
                if p0: e(p0.pop(0))
                elif k < S0: pass
                elif p1: e(p1.pop(0))
                elif p2: e(p2.pop(0))
        corr = False; cs = [(x, n) for n in range(8) for x in (0, 1)] if first else []
        CB = 99
        for k in range(32):
            e.wait(vm=xt[k], lg=wt[k])
            if k == 0: self.stamp(f'L{l}.x0')
            for _ in range(self.o.csrate):
                if cs and cs[0][1] <= k:
                    x, n = cs.pop(0)
                    self.rowsum((aK, aV)[x], sel, (wk, wv)[x][n], n == 0)
                    if not cs: CB = k + 1
            self.big(vA0, wk[k], k, k == 0)
            for _ in range(2 if (k % 2 == 1 and k < 2 * EX) else 1):
                if nx < 32:
                    if nx == 30:
                        assert k >= S0
                        while p1: e(p1.pop(0))
                    xload(e, nx); nx += 1
            if k + 2 < 32: self.tr_w(wk[k+2], k + 2, 0)
            if k == S0: e.wait(vm=stt)
            pop(1 if first else 2)
            self.bg(f'kv{k}')
            self.big(vA1, wv[k], k, k == 0)
            if SL <= k < SL + 2:
                stt = e(f'buffer_load_dwordx4 {v(vXF+120+4*(k-SL),4)}, {v(vL16)}, {s(sWS,4)}, {s(sSTrd)} offen offset:{(k-SL)*1024} sc1')
            if k == CB: cw = self.cs_write(['a192', 'a196'], [1, 2])
            if k + 2 < 32: wt[k + 2] = self.tr_w(wv[k+2], k + 2, SLOT)
            if k == CB + 1:
                e.wait(lg=cw); e('s_barrier')
                r1 = self.cs_read(1, vTM + 4)
            if k == CB + 3:
                e.wait(lg=r1); p0 += self.cs_pack_ops(vTM + 4, cK)
            if k == CB + 6:
                while p0: e(p0.pop(0))
                r2 = self.cs_read(2, vTM + 4)
            if k == CB + 8:
                e.wait(lg=r2); p0 += self.cs_pack_ops(vTM + 4, cV)
            if l > 1 and k % 2 == 1:
                e(self.chk(chk, vXF+4*k-4, vXF+4*k, par, k == 1))
                if k <= SP or k in self.o.echk: self.chk_end(chk, par, f'x{l}', vTM + 5)
            self.bg(f'kv{k}b')
            if not corr and not p0 and not p1 and not p2 and (not first or k > CB + 8):
                corr = True
                e(f'v_mfma_f32_32x32x8_bf16 {v(vA0,16)}, {v(cK,2)}, {v(vMF,2)}, {v(vA0,16)}')
                e(f'v_mfma_f32_32x32x8_bf16 {v(vA1,16)}, {v(cV,2)}, {v(vMF,2)}, {v(vA1,16)}')
            pop(2)
        assert corr
        if not first: self.chk_end(chk, par, f'x{l}')
        self.in_redo = False
        self.bg('kvend')
        self.stamp(f'L{l}.kvgemm')

    def scale_pack(self, acc, out, mid=None):
        e = self.e
        if mid:
            for i in range(16):
                e(f'v_mul_f32 {v(acc+i)}, {v(vRS)}, {v(acc+i)}')
                if i == 3: mid()
        else:
            for i in range(8):
                e(f'v_pk_mul_f32 {v(acc+2*i,2)}, {v(acc+2*i,2)}, {v(vRS,2)} op_sel_hi:[1,0]')
        for i in range(8):
            e(f'v_cvt_pk_bf16_f32 {v(out+i)}, {v(acc+2*i)}, {v(acc+2*i+1)}')
    def phi_a(self, acc, tmp, out, tag, after=None):
        e = self.e
        for hh in range(2):
            r = range(4*hh, 4*hh+4)
            for i in r: e(f'v_pk_mul_f32 {v(tmp+2*i,2)}, {v(acc+2*i,2)}, {v(vRS,2)} op_sel:[0,1] op_sel_hi:[1,1]')
            for i in r:
                e(f'v_exp_f32_e64 {v(tmp+2*i)}, {v(tmp+2*i)} clamp')
                e(f'v_exp_f32_e64 {v(tmp+2*i+1)}, {v(tmp+2*i+1)} clamp')
            self.bg(f'{tag}{2*hh}')
            for i in r: e(f'v_pk_fma_f32 {v(acc+2*i,2)}, {v(acc+2*i,2)}, {v(vRS,2)}, 1.0 op_sel_hi:[1,0,0]')
            for i in r:
                e(f'v_max_f32 {v(acc+2*i)}, {v(acc+2*i)}, {v(tmp+2*i)}')
                e(f'v_max_f32 {v(acc+2*i+1)}, {v(acc+2*i+1)}, {v(tmp+2*i+1)}')
            for i in r: e(f'v_pk_add_f32 {v(acc+2*i,2)}, {v(acc+2*i,2)}, {s(sEPS6,2)}')
            for i in r: e(f'v_cvt_pk_bf16_f32 {v(out+i)}, {v(acc+2*i)}, {v(acc+2*i+1)}')
            if after: after(hh)
            self.bg(f'{tag}{2*hh+1}')
    def softmax16(self, p, tm, out, tag, mid=None, wr=(), wlast=None):
        wr = list(wr)
        e = self.e
        e(f'v_max3_f32 {v(tm)}, {v(p)}, {v(p+1)}, {v(p+2)}')
        e(f'v_max3_f32 {v(tm+1)}, {v(p+3)}, {v(p+4)}, {v(p+5)}')
        if mid: mid()
        e(f'v_max3_f32 {v(tm)}, {v(tm)}, {v(p+6)}, {v(p+7)}')
        e(f'v_max3_f32 {v(tm+1)}, {v(tm+1)}, {v(p+8)}, {v(p+9)}')
        e(f'v_max3_f32 {v(tm)}, {v(tm)}, {v(p+10)}, {v(p+11)}')
        e(f'v_max3_f32 {v(tm+1)}, {v(tm+1)}, {v(p+12)}, {v(p+13)}')
        e(f'v_max3_f32 {v(tm)}, {v(tm)}, {v(p+14)}, {v(p+15)}')
        e(f'v_max_f32 {v(tm)}, {v(tm)}, {v(tm+1)}')
        e(f'v_mul_f32 {v(tm)}, {v(vRS+1)}, {v(tm)}')
        for i in range(8):
            e(f'v_pk_fma_f32 {v(p+2*i,2)}, {v(p+2*i,2)}, {v(vRS,2)}, {v(tm,2)} op_sel:[0,1,0] op_sel_hi:[1,1,0] neg_lo:[0,0,1] neg_hi:[0,0,1]')
        self.bg(tag + 'a')
        for i in range(16):
            e(f'v_exp_f32 {v(p+i)}, {v(p+i)}')
            if i in (3, 11) and wr: e(wr.pop(0))
            if i == 7: self.bg(tag + 'b')
        self.bg(tag + 'c')
        for i in range(4): e(f'v_pk_add_f32 {v(tm+2*i,2)}, {v(p+4*i,2)}, {v(p+4*i+2,2)}')
        e(f'v_pk_add_f32 {v(tm,2)}, {v(tm,2)}, {v(tm+2,2)}')
        e(f'v_pk_add_f32 {v(tm+4,2)}, {v(tm+4,2)}, {v(tm+6,2)}')
        e(f'v_pk_add_f32 {v(tm,2)}, {v(tm,2)}, {v(tm+4,2)}')
        e(f'v_add_f32 {v(tm)}, {v(tm)}, {v(tm+1)}')
        e(f'v_rcp_f32 {v(tm)}, {v(tm)}')
        self.bg(tag + 'd')
        if wlast:
            for h in range(2):
                for i in range(4*h, 4*h+4): e(f'v_pk_mul_f32 {v(p+2*i,2)}, {v(p+2*i,2)}, {v(tm,2)} op_sel_hi:[1,0]')
                for i in range(4*h, 4*h+4): e(f'v_cvt_pk_bf16_f32 {v(out+i)}, {v(p+2*i)}, {v(p+2*i+1)}')
                e(wlast[h])
            return
        for i in range(8): e(f'v_pk_mul_f32 {v(p+2*i,2)}, {v(p+2*i,2)}, {v(tm,2)} op_sel_hi:[1,0]')
        for i in range(8): e(f'v_cvt_pk_bf16_f32 {v(out+i)}, {v(p+2*i)}, {v(p+2*i+1)}')

    def kv_epilogue(self, l):
        e = self.e; typ = l & 1
        self.dump(f'L{l}.kv', [v(vA0+i) for i in range(32)] + [v(vRS)])
        self.set_wtr(SLOTS[l]['Q'], l)
        e(f's_add_u32 {s(sT[0])}, {s(sKVwrB)}, {l*0x80000}\ns_add_u32 {s(sT[1])}, {s(sZwrB)}, {l*0x10000}')
        if typ == 0:
            def wr(hh): e(f'ds_write_b128 {v(vPKwA)}, {v(vTM+4*hh,4)} offset:{2*hh*PL}')
            self.phi_a(vA0, vWB, vTM, 'ek', wr)
            for h in range(2):
                for i in range(4*h, 4*h+4): e(f'v_pk_mul_f32 {v(vA1+2*i,2)}, {v(vA1+2*i,2)}, {v(vRS,2)} op_sel_hi:[1,0]')
                for i in range(4*h, 4*h+4): e(f'v_cvt_pk_bf16_f32 {v(vA1+i)}, {v(vA1+2*i)}, {v(vA1+2*i+1)}')
                if self.o.defw: e(f'ds_write_b128 {v(vPKwA)}, {v(vA1+4*h,4)} offset:{(8+2*h)*PL}')
            if not self.o.defw:
                for h in range(2): e(f'ds_write_b128 {v(vPKwA)}, {v(vA1+4*h,4)} offset:{(8+2*h)*PL}')
        else:
            for i in range(8):
                e(f'v_cvt_pk_bf16_f32 {v(vTM+i)}, {v(vA0+2*i)}, {v(vA0+2*i+1)}')
                if i == 5: e(f'v_mfma_f32_32x32x16_bf16 {v(vWB,16)}, {v(vWPH,4)}, {v(vTM,4)}, 0')
            self.bg('es0')
            self.scale_pack(vA1, vA1, lambda: e(f'v_mfma_f32_32x32x16_bf16 {v(vA0,16)}, {v(vWPH+4,4)}, {v(vTM+4,4)}, 0'))
            wv = [f'ds_write_b128 {v(vPKwA)}, {v(vA1,4)} offset:{8*PL}', f'ds_write_b128 {v(vPKwA)}, {v(vA1+4,4)} offset:{10*PL}']
            wp = lambda hh, p: [f'ds_write_b128 {v(vPKwB)}, {v(p,4)} offset:{(2*hh)*PL}', f'ds_write_b128 {v(vPKwB)}, {v(p+4,4)} offset:{(2*hh+1)*PL}']
            if self.o.defw:
                self.bg('es1')
                self.softmax16(vWB, vTM, vWB, 'ek0', wr=wv)
                self.softmax16(vA0, vTM, vA0, 'ek1', wr=wp(0, vWB), wlast=wp(1, vA0))
            else:
                for x in wv: e(x)
                self.bg('es1')
                for hh, p in ((0, vWB), (1, vA0)):
                    self.softmax16(p, vTM, p, f'ek{hh}')
                    for x in wp(hh, p): e(x)
        ones = vTM + 4
        for i in range(4): e(f'v_mov_b32 {v(ones+i)}, {s(sONES)}')
        if l == 0: e.wait(vm=self.clr1)
        late = self.o.lateq[l]
        if not late: self.need('Q')
        e.wait_all_lg()
        e('s_barrier')
        self.free('KV')
        self.stamp(f'L{l}.B1')
        pr = vPKrA if typ == 0 else vPKrB
        tags = []
        for st in range(4):
            e(f'ds_read_b64_tr_b16 {v(vA0+4*st,2)}, {v(pr)} offset:{st*512}')
            e(f'ds_read_b64_tr_b16 {v(vA0+4*st+2,2)}, {v(pr)} offset:{st*512+256}')
            e(f'ds_read_b64_tr_b16 {v(vA1+4*st,2)}, {v(vPKrA)} offset:{8*PL+st*512}')
            tags.append(e(f'ds_read_b64_tr_b16 {v(vA1+4*st+2,2)}, {v(vPKrA)} offset:{8*PL+st*512+256}'))
        ak, az = self.e1_addr(l, vTM + 2)
        self.bg('b1')
        ckv, cz = vWB + 16, vWB + 20
        self.qwt = [None] * 32
        self.qord = [k for k in range(0, 32, 4)] + [k for k in range(32) if k % 4] if l == 0 else list(range(32))
        self.qw = [self.own('Q' + 'AB'[typ], p) if l < 2 and p < 8 else ('v', vWB + (p % 6)*4) for p in range(32)]
        for st in range(4):
            e.wait(lg=tags[st])
            e(f'v_mfma_f32_16x16x32_bf16 {v(ckv,4)}, {v(vA0+4*st,4)}, {v(vA1+4*st,4)}, {v(ckv,4) if st else 0}')
            e(f'v_mfma_f32_16x16x32_bf16 {v(cz,4)}, {v(ones,4)}, {v(vA0+4*st,4)}, {v(cz,4) if st else 0}')
            if not late: self.qwt[st] = self.tr_w(self.qw[st], self.qord[st], 0)
        def tail():
            e(f'v_cvt_pk_bf16_f32 {v(vTM)}, {v(ckv)}, {v(ckv+1)}\nv_cvt_pk_bf16_f32 {v(vTM+1)}, {v(ckv+2)}, {v(ckv+3)}')
            e(f'v_min_u32 {v(vTM)}, -2, {v(vTM)}\nv_min_u32 {v(vTM+1)}, -2, {v(vTM+1)}')
            e(f'buffer_store_dwordx2 {v(vTM,2)}, {v(ak)}, {s(sWS,4)}, {s(sT[0])} offen sc1')
            e(f'v_min_u32 {v(vTM+4)}, -2, {v(cz)}')
            e(f'buffer_store_dword {v(vTM+4)}, {v(az)}, {s(sWS,4)}, {s(sT[1])} offen sc1')
            self.stamp(f'L{l}.pub1')
            if late:
                self.need('Q'); e('s_barrier')
                for st in range(4): self.qwt[st] = self.tr_w(self.qw[st], self.qord[st], 0)
        self.pub_tail = tail
        self.clr_next = (lambda: self.clear_slot(l + 2, vTM + 4, ak, az)) if l < 2 else None

    def e1_ops(self, e, l, tags, each=False):
        typ = l & 1
        nk, nz = (4, 2) if typ == 0 else (8, 4)
        sk, sz = (sKVrdA, sZrdA) if typ == 0 else (sKVrdB, sZrdB)
        ops = []
        def zl(t):
            if t == 0 or each: e(f's_add_u32 {s(sT[1])}, {s(sz)}, {l*0x10000}')
            tags['z'] = e(f'buffer_load_dword {v(vXF+32+t)}, {v(vL4)}, {s(sWS,4)}, {s(sT[1])} offen offset:{t*256} sc1')
        def kl(p):
            if p % 4 == 0 or each: e(f's_add_u32 {s(sT[0])}, {s(sk)}, {l*0x80000 + (p & ~3)*1024}')
            tags[p] = e(f'buffer_load_dwordx4 {v(vXF+4*p,4)}, {v(vL16)}, {s(sWS,4)}, {s(sT[0])} offen offset:{(p&3)*1024} sc1')
        return [lambda t=t: zl(t) for t in range(nz)] + [lambda p=p: kl(p) for p in range(nk)]

    def q_phase(self, l):
        e = self.e; typ = l & 1; first = l < 2
        wt = self.qwt
        def wread(k): wt[k] = self.tr_w(self.qw[k], self.qord[k], 0)
        sel, aQ = vA1 + 8, v(vA1 + 12, 4)
        assert self.o.e1at[l] >= (16 if l == 0 else 10)
        cQ = vCS + typ * 6
        st = 0; pk = []
        E1AT = self.o.e1at[l]
        kt = {}
        e1 = self.e1_ops(e, l, kt)
        if self.o.ctouch & 1 and l < 3: e1.insert(0, lambda: self.code_touch(v(vXF + 36)))
        def recheck():
            assert not e1
            e.wait(vm=kt['z'])
            nz = 2 << typ; z = vXF + 32; tz = vXF + 37
            e(f's_mov_b32 {s(sAT)}, 0')
            if nz == 4: e(f'v_max3_u32 {v(tz)}, {v(z)}, {v(z+1)}, {v(z+2)}\nv_max_u32 {v(tz)}, {v(tz)}, {v(z+3)}')
            else: e(f'v_max_u32 {v(tz)}, {v(z)}, {v(z+1)}')
            e(f'v_cmp_eq_u32 vcc, -1, {v(tz)}\ns_cbranch_vccnz L_e1k{l}\nL_e1kj{l}:')
            t_ = Asm(); ops = self.e1_ops(t_, l, {}, True)
            t_(f'L_e1k{l}:\ns_mov_b32 {s(sAT)}, 1')
            for t in range(nz):
                t_(f'v_cmp_eq_u32 vcc, -1, {v(z+t)}\ns_cbranch_vccz L_e1k{l}_{t}')
                ops[t](); ops[nz + 2*t](); ops[nz + 2*t + 1]()
                t_(f'L_e1k{l}_{t}:')
            t_(f's_branch L_e1kj{l}')
            self.tail.append(t_)
            self.e1chk = None; self.rechecked = True
        self.rechecked = False
        self.e1chk = recheck if self.o.e1chk[l] else None
        if not first:
            e(f'v_mfma_f32_32x32x8_bf16 {v(vA0,16)}, {v(cQ,2)}, {v(vMF,2)}, 0')
            if self.o.ptail == 0: self.pub_tail()
        elif self.o.ptail == 0: self.pub_tail()
        for k in range(32):
            if k % 2 == 0: e.wait(lg=wt[k + 1] if k else wt[0])
            if k == 1: e.wait(lg=wt[1])
            if first and 2 <= k < 10: self.rowsum(aQ, sel, self.qw[k - 2], k == 2)
            self.big(vA0, self.qw[k], self.qord[k], first and k == 0)
            if first and k == 0: self.par_sel(sel)
            if k == 0 and self.o.ptail: self.pub_tail()
            if k + 4 < 32: wread(k + 4)
            if k == 1 and self.clr_next: self.clr_next()
            if k == 2 and l == 0:
                e(f'v_and_b32 {v(vTM+3)}, 0x7c, {v(vL4)}')
                dbt = e(f'buffer_load_dword {v(vTM+2)}, {v(vTM+3)}, {s(sDBG,4)}, 0 offen sc1')
            if k == 3 and l == 0:
                for c in self.o.tw: self.touch(int(c, 16))
            if k == E1AT and l == 0:
                e.wait(vm=dbt)
                e(f's_mov_b32 {s(sT[2])}, 0x11111111')
                e('L_all_chk:')
                e(f'v_dot8_u32_u4 {v(vTM+1)}, {v(vTM+2)}, {s(sT[2])}, 0')
                e(f's_lshl_b32 {s(sT[3])}, 8, {s(sXCC)}')
                e(f'v_cmp_ne_u32 vcc, 8, {v(vTM+1)}\ns_cbranch_vccnz L_all_retry')
                e(f'v_cmp_ne_u32 vcc, {s(sT[3])}, {v(vTM+2)}\ns_lshl_b32 {s(sT[3])}, {s(sR)}, 1')
                e(f's_lshr_b32 {s(sMODE)}, vcc_lo, {s(sT[3])}\ns_and_b32 {s(sMODE)}, {s(sMODE)}, 3')
                if self.o.force_safe: e(f's_or_b32 {s(sMODE)}, {s(sMODE)}, 1')
                e(f's_cselect_b32 {s(sSTR)}, {EXSTRIDE}, 0')
                if self.o.xout:
                    e(f's_cselect_b64 {s(sX,2)}, {s(sWS,2)}, {s(sOUT,2)}\ns_cselect_b32 {s(sX+2)}, {s(sWS+2)}, {s(sOUT+2)}\ns_cselect_b32 {s(sT[3])}, 0, {XB}')
                    for r in (sXrd, sXwr): e(f's_sub_u32 {s(r)}, {s(r)}, {s(sT[3])}')
                e(f's_cselect_b32 {s(sT[3])}, 0x4000, 0\ns_add_u32 {s(sFOe)}, {s(sFOwr)}, {s(sT[3])}\ns_add_u32 {s(sFXe)}, {s(sFXwr)}, {s(sT[3])}')
                for r in (sOrd, sOwr): e(f's_add_u32 {s(r)}, {s(r)}, {s(sSTR)}')
                t = Asm()
                t(f'L_all_retry:\nbuffer_load_dword {v(vTM+2)}, {v(vTM+3)}, {s(sDBG,4)}, 0 offen sc1')
                t(f's_sub_u32 {s(sBUD)}, {s(sBUD)}, 1\ns_cbranch_scc1 L_fail\ns_waitcnt vmcnt(0)\ns_branch L_all_chk')
                self.tail.append(t)
                e1 += [lambda: e(f'buffer_load_dword a255, {v(vFl16)}, {s(sWS,4)}, {s(sFOrd)} offen sc1'),
                       lambda: e(f'buffer_load_dword a255, {v(vFl16)}, {s(sWS,4)}, {s(sFXrd)} offen sc1'),
                       lambda: (setattr(self, 'm0own', None), e(f's_mov_b32 m0, {L_WP}\ns_lshl_b32 {s(sT[4])}, {s(sG)}, 10\nbuffer_load_dwordx4 {v(vL16)}, {s(sWP,4)}, {s(sT[4])} offen lds'))]
                e1 += [lambda c=c: self.touch(int(c, 16)) for c in self.o.te]
            if k >= E1AT:
                for _ in range(self.o.e1rate if k < 31 else 99):
                    if e1: e1.pop(0)()
            self.bg(f'q{k}')
            if l == 3 and self.o.clean & 1 and k in (2, 4):
                e(f'buffer_store_dwordx4 {v(vRES+2*(k-2),4)}, {v(vL16)}, {s(sWS,4)}, {s(sXwr)} offen offset:{(k-2)*512} sc1')
            if first:
                if st == 0 and k == 11: cw = self.cs_write([v(vA1 + 12)], [0]); st = 1; k1 = k + 2
                elif st == 1 and k == k1:
                    e.wait(lg=cw); e('s_barrier')
                    r0 = self.cs_read(0, vA1); st = 2; k1 = k + 3
                elif st == 2 and k == k1:
                    e.wait(lg=r0); pk = self.cs_pack_ops(vA1, cQ); st = 3
                elif st == 3 and not pk:
                    e(f'v_mfma_f32_32x32x8_bf16 {v(vA0,16)}, {v(cQ,2)}, {v(vMF,2)}, {v(vA0,16)}'); st = 4
                for _ in range(2):
                    if pk: e(pk.pop(0))
        assert st == 4 or not first
        zt = kt['z']
        self.stamp(f'L{l}.qgemm')
        self.dump(f'L{l}.q', [v(vA0+i) for i in range(16)])
        PQ = vXF + 64
        if typ == 0:
            self.phi_a(vA0, vWB, PQ, 'eq')
        else:
            for i in range(8):
                e(f'v_cvt_pk_bf16_f32 {v(vTM+i)}, {v(vA0+2*i)}, {v(vA0+2*i+1)}')
                if i == 5: e(f'v_mfma_f32_32x32x16_bf16 {v(vA1,16)}, {v(vWPH,4)}, {v(vTM,4)}, 0')
            n0 = len(e.ins)
            self.bg('eqs')
            if len(e.ins) - n0 < 4: e(f's_nop {3 - (len(e.ins) - n0)}')
            e(f'v_mfma_f32_32x32x16_bf16 {v(vA0,16)}, {v(vWPH+4,4)}, {v(vTM+4,4)}, 0')
            self.softmax16(vA1, vWB, PQ, 'eq0')
            self.softmax16(vA0, vWB, PQ + 8, 'eq1')
        self.stamp(f'L{l}.phiq')
        nk, nz = (4, 2) if typ == 0 else (8, 4)
        C = vWB; mx = vTM; z = vXF + 32
        assert self.e1chk is None
        if self.rechecked: e(f's_cmp_lg_u32 {s(sAT)}, 0\ns_cbranch_scc1 L_e1w{l}')
        if self.o.e1inl: e(f's_branch L_e1c{l}')
        t = Asm()
        t(f'L_e1r{l}:')
        ops = self.e1_ops(t, l, {}, True)
        for op in ops[:nz]: op()
        for p in range(nk):
            b = vXF + 4*p
            t(f'v_max3_u32 {v(mx)}, {v(b)}, {v(b+1)}, {v(b+2)}\nv_max_u32 {v(mx)}, {v(mx)}, {v(b+3)}\nv_cmp_eq_u32 vcc, -1, {v(mx)}\ns_cbranch_vccz L_e1s{l}_{p}')
            ops[nz + p]()
            t(f'L_e1s{l}_{p}:')
        t(f's_sub_u32 {s(sBUD)}, {s(sBUD)}, 1\ns_cbranch_scc1 L_fail\nL_e1w{l}:\ns_waitcnt vmcnt(0)')
        if self.o.e1inl: e.ins += t.ins
        else:
            t(f's_branch L_e1c{l}'); self.tail.append(t)
        e(f'L_e1c{l}:')
        e.wait(vm=zt)
        if nz == 2:
            e(f'v_max_u32 {v(mx)}, {v(z)}, {v(z+1)}\nv_add_f32 {v(z)}, {v(z)}, {v(z+1)}')
        else:
            e(f'v_max3_u32 {v(mx)}, {v(z)}, {v(z+1)}, {v(z+2)}\nv_max_u32 {v(mx)}, {v(mx)}, {v(z+3)}')
            e(f'v_pk_add_f32 {v(z,2)}, {v(z,2)}, {v(z+2,2)}\nv_add_f32 {v(z)}, {v(z)}, {v(z+1)}')
        zops = [f'v_mov_b32 {v(z+1)}, {v(z)}', f'v_permlane16_swap_b32 {v(z)}, {v(z+1)}', f'v_add_f32 {v(z)}, {v(z)}, {v(z+1)}',
                f'v_mov_b32 {v(z+1)}, {v(z)}', f'v_permlane32_swap_b32 {v(z)}, {v(z+1)}', f'v_add_f32 {v(z)}, {v(z)}, {v(z+1)}',
                f'v_cvt_pk_bf16_f32 {v(z)}, {v(z)}, {v(z)}', f'ds_write_b16 {v(vZw)}, {v(z)} offset:512']
        e(zops.pop(0))
        for p in range(nk):
            e.wait(vm=kt[p])
            b = vXF + 4*p
            e(f'v_mfma_f32_16x16x32_bf16 {v(C,4)}, {v(vSEL,4)}, {v(b,4)}, {v(C,4) if p else 0}')
            e(f'v_max3_u32 {v(mx)}, {v(mx)}, {v(b)}, {v(b+1)}\nv_max3_u32 {v(mx)}, {v(mx)}, {v(b+2)}, {v(b+3)}')
            if p == 0:
                for _ in range(3): e(zops.pop(0))
        e(f'v_cmp_eq_u32 vcc, -1, {v(mx)}\ns_cbranch_vccnz L_e1r{l}')
        for op in zops: e(op)
        self.stamp(f'L{l}.e1')
        e(f'v_cvt_pk_bf16_f32 {v(vTM)}, {v(C)}, {v(C+1)}\nv_cvt_pk_bf16_f32 {v(vTM+1)}, {v(C+2)}, {v(C+3)}')
        e(f'ds_write_b64 {v(vKVw)}, {v(vTM,2)}')
        self.bg('o0')
        if not self.o.lateb[l]: self.need('ab')
        e.wait_all_lg()
        e('s_barrier')
        self.free('Q')
        KF = vWB + 8
        kr = vKVrA if typ == 0 else vKVrB
        tg = []
        for hh in range(2):
            for u in range(2):
                off = (2*u + hh) * 544 if typ == 0 else hh * 544 + u * 16
                tg.append(e(f'ds_read_b128 {v(KF + 4*(2*hh+u),4)}, {v(kr)} offset:{off}'))
        self.bg('o1')
        keep = self.e; self.e = fill = Asm()
        if l < 3: self.set_wtr(SLOTS[l+1]['K'], l + 1)
        self.e = keep
        fill(f'v_mov_b32 {v(vWB)}, {l+1}')
        ad = vTM + 4; sa, sb = SLOTS[l]['a'] * SLOT, SLOTS[l]['b'] * SLOT
        if l > 1:
            if l == 2: fill(f'v_lshrrev_b32 {v(vWO)}, 7, {v(vL4)}\nv_mul_u32_u24 {v(vWO)}, 1536, {v(vWO)}\nv_add_u32 {v(vWO)}, {v(vWO)}, {v(vL16)}')
            fill(f'v_add_u32 {v(ad)}, {sa}, {v(vWO)}\nv_add_u32 {v(ad+1)}, {sb}, {v(vWO)}')
        else:
            fill(f'v_add_u32 {v(ad)}, {sa}, {v(vWO)}')
            for t in (1, 2, 3): fill(f'v_xor_b32 {v(ad+t)}, {32*t}, {v(ad)}')
        if l == 0:
            fill(f'''
            v_lshrrev_b32 {v(vTM)}, 6, {v(vL4)}
            v_lshl_add_u32 {v(vXst)}, {v(vTM)}, 8, {v(vL16)}
            v_and_b32 {v(vTM)}, 1, {v(vTM)}
            v_lshrrev_b32 {v(vTM+1)}, 7, {v(vL4)}
            v_lshl_add_u32 {v(vTM)}, {v(vTM)}, 2, {v(vTM+1)}
            v_lshlrev_b32 {v(vTM+1)}, 2, {v(vFl16)}
            v_lshl_add_u32 {v(vOst)}, {v(vTM)}, 8, {v(vTM+1)}
            ''')
        fl = list(fill.ins)
        if self.o.ofill:
            gaps = max(0, (self.o.ofill - len(fl)) // 4)
            per = -(-len(fl) // (gaps + 1))
            while fl:
                e.ins += fl[:per]; fl = fl[per:]
                if fl: e('s_nop 3')
            fl = [Ins('s_nop 0') for _ in range(9)]
        else:
            while len(fl) > 10: e.ins.append(fl.pop(0))
            while len(fl) < 9: fl.append(Ins('s_nop 0'))
        for hh in range(2):
            acc = (vA0, vA1)[hh]
            for u in range(2):
                e.wait(lg=tg[2*hh+u] if hh == 0 else tg[3])
                pq = PQ + 4*hh if typ == 0 else PQ + 8*hh + 4*u
                e(f'v_mfma_f32_32x32x16_bf16 {v(acc,16)}, {v(KF+4*(2*hh+u),4)}, {v(pq,4)}, {v(acc,16) if u else 0}')
                if 2*hh + u in (1, 2):
                    for _ in range(4 if hh == 0 else 6):
                        if fl: e.ins.append(fl.pop(0))
                if l and self.o.fo == 6 - (2*hh + u): self.flag(e, vWB, sFOe, '')
        self.bg('o2')
        O = vXF + 96
        quick = l > 0 and self.o.quick
        for hh in range(2):
            acc = (vA0, vA1)[hh]
            e(f'v_add_f32 {v(acc+8)}, {s(sEPS6)}, {v(acc+8)}\nv_rcp_f32 {v(acc+8)}, {v(acc+8)}')
            if hh:
                for i in range(4): e(f'v_pk_mul_f32 {v(acc+2*i,2)}, {v(acc+2*i,2)}, {v(acc+8,2)} op_sel_hi:[1,0]')
            else:
                for i in range(6): e(f'v_mul_f32 {v(acc+i)}, {v(acc+8)}, {v(acc+i)}')
                e(f'v_mul_f32 {v(acc+6)}, {v(acc+8)}, {v(acc+6)}\nv_mul_f32 {v(acc+7)}, {v(acc+8)}, {v(acc+7)}')
            for i in range(4):
                e(f'v_cvt_pk_bf16_f32 {v(O+4*hh+i)}, {v(acc+2*i)}, {v(acc+2*i+1)}')
                if i == 1: self.tag(O + 4*hh, l & 1)
            if l and self.o.fo == 2 - hh: self.flag(e, vWB, sFOe, '')
            def st(e, m):
                if self.o.stress and quick and not m and hh == (l & 1):
                    self.flag(e, vWB, sFOwr, m)
                    e(f's_and_b32 {s(sT[5])}, s2, {self.o.stress}\ns_cbranch_scc1 L_ns_o{l}\ns_sleep 60\nL_ns_o{l}:')
                e(f'buffer_store_dwordx4 {v(O+4*hh,4)}, {v(vOst)}, {s(sWS,4)}, {s(sOwr)} offen offset:{hh*512}{m or ((self.o.lasto if l == 3 else str()) if l else self.o.pub0)}')
                if hh:
                    if m or not (quick or self.o.noack): e.wait_all_vm()
                    if m or not (l and self.o.fo): self.flag(e, vWB, sFOwr, m)
            self.modal(f'po{l}{hh}', st)
        self.dump(f'L{l}.o', [v(O+i) for i in range(8)])
        self.stamp(f'L{l}.pub2')

    def o_proj(self, l):
        e = self.e; typ = l & 1; T = 'AB'[typ]
        chk = vTM + 1 if l > 0 else None
        par = l & 1
        self.bg('w0')
        if l == 0:
            t0, t1 = vTM, vTM + 1
            e(f'''
            v_bfe_u32 {v(t0)}, {v(vL4)}, 4, 2
            v_lshrrev_b32 {v(t1)}, 7, {v(vL4)}
            v_lshl_add_u32 {v(t0)}, {v(t1)}, 3, {v(t0)}
            v_lshlrev_b32 {v(t0)}, 5, {v(t0)}
            v_bfe_u32 {v(t1)}, {v(vL4)}, 6, 1
            v_lshl_add_u32 {v(t0)}, {v(t1)}, 4, {v(t0)}
            v_bfe_u32 {v(t1)}, {v(vL4)}, 3, 1
            v_lshl_add_u32 {v(t0)}, {v(t1)}, 3, {v(t0)}
            v_add_u32 {v(t0)}, {L_WP}, {v(t0)}
            ''')
            for hh in range(2):
                for t in range(2):
                    tw = e(f'ds_read_b64_tr_b16 {v(vWPH+4*hh+2*t,2)}, {v(t0)} offset:{hh*512 + t*128}')
            e(f'v_bfe_u32 {v(t1)}, {v(vL4)}, 4, 1\nv_mul_u32_u24 {v(t1)}, 0x8000, {v(t1)}\nv_lshl_or_b32 {v(t1)}, {v(t1)}, 16, {v(t1)}')
            e.wait(lg=tw)
            for i in range(8): e(f'v_xor_b32 {v(vWPH+i)}, {v(t1)}, {v(vWPH+i)}')
        if self.o.lateb[l]:
            self.need('ab'); e('s_barrier')
        ot = [None] * 16; wt = [None] * 64
        def oload(e, k):
            if k % 2 == 0: e(f's_add_u32 {s(sT[0])}, {s(sOrd)}, {k*2048}')
            ot[k] = e(f'buffer_load_dwordx4 {v(vXF+4*k,4)}, {v(vL16)}, {s(sWS,4)}, {s(sT[0])} offen offset:{(k&1)*2048} sc1')
        PRE = self.o.opre; SP = self.o.spo if l else 0
        NB, LA = 10, self.o.ola[l > 1]
        ad = vTM + 4; sa, sb = SLOTS[l]['a'] * SLOT, SLOTS[l]['b'] * SLOT
        buf = lambda f: vA1 + 4 * (f % NB)
        def wrd(f):
            e = self.e; k, t = f >> 2, f & 3
            if l > 1:
                wt[f] = e(f'ds_read_b128 {v(buf(f),4)}, {v(ad + (k >> 3))} offset:{(k & 7)*4096 + t*512}')
                return
            off = (k & 7) * 4096
            if k >= 8:
                if l == 1: off += sb - sa
                elif k == 8: e(f'v_add_u32 {v(ad+t)}, {(sb - sa) & 0xffffffff}, {v(ad+t)}')
            e(f'ds_read_b64_tr_b16 {v(buf(f),2)}, {v(ad+t)} offset:{off}')
            wt[f] = e(f'ds_read_b64_tr_b16 {v(buf(f)+2,2)}, {v(ad+t)} offset:{off+1024}')
        def init():
            e = self.e
            for f in range(LA): wrd(f)
            for i in range(8):
                e(f'v_lshlrev_b32 {v(vA0+2*i)}, 16, {v(vRES+i)}\nv_and_b32 {v(vA0+2*i+1)}, {s(sHI)}, {v(vRES+i)}')
        def shadow():
            self.bg('wp')
            if not self.o.oinit[l]: init()
            self.bg('ws')
        if self.o.oinit[l]: init(); keep = list(wt)
        self.bg('wi')
        self.stamp(f'L{l}.pre2')
        self.hop(f'o{l}', sFOrd, l + 1, vTM, oload, SP, shadow, init)
        if self.o.oinit[l]: wt[:] = keep
        if not l: self.in_redo = False
        self.stamp(f'L{l}.poll2')
        for k in range(SP, PRE): oload(e, k)
        self.bg('w1')
        xo = vTM + 2; fr = vTM + 3
        late = [f's_add_u32 {s(r)}, {s(r)}, {s(sSTR)}' for r in (sXrd, sXwr, sSTrd, sSTwr, sOrd, sOwr)] if l < 3 else []
        for k in range(16):
            for t in range(4):
                f = 4*k + t
                if t % 2 == 0: e.wait(vm=ot[k], lg=wt[f + 1])
                e(f'v_mfma_f32_16x16x32_bf16 {v(vA0+4*t,4)}, {v(buf(f),4)}, {v(vXF+4*k,4)}, {v(vA0+4*t,4)}')
                if f + LA < 64: wrd(f + LA)
                if 0 < l < 3 and self.o.fx > 2 and f == 66 - self.o.fx: self.flag(e, fr, sFXe, '')
                if t == 0:
                    if k + PRE < 16: oload(e, k + PRE)
                    if k + PRE == 16 and self.o.ctouch & 2 and l < 3: self.code_touch(v(vXF + 64))
                    self.bg(f'p{k}')
                if t == 2:
                    if chk and k % 2 == 1:
                        e(self.chk(chk, vXF+4*k-4, vXF+4*k, par, k == 1))
                        if k <= SP or k == 15 or k in self.o.echk: self.chk_end(chk, par, f'o{l}', vTM)
                    self.bg(f'p{k}b')
                    if k == 12:
                        if l < 3: e(f'v_mov_b32 {v(fr)}, {l + 2}')
                        else:
                            e(f'v_bfe_u32 {v(xo)}, {v(vL4)}, 6, 1\nv_lshrrev_b32 {v(xo+1)}, 7, {v(vL4)}\nv_lshl_add_u32 {v(xo)}, {v(xo)}, 1, {v(xo+1)}')
                            e(f'v_lshlrev_b32 {v(xo+1)}, 8, {v(vFl16)}\nv_lshl_add_u32 {v(xo)}, {v(xo)}, 4, {v(xo+1)}')
        self.in_redo = False
        for op in late: e(op)
        self.stamp(f'L{l}.B3')
        for m in range(2):
            if l == 3 and self.o.bias:
                for i in range(8):
                    e(f's_mov_b32 {s(sT[0])}, 0x433e0000\nv_cmp_gt_f32 vcc, abs({v(vA0+8*m+i)}), {s(sT[0])}\nv_cndmask_b32 {v(vA0+8*m+i)}, {v(vA0+8*m+i)}, 0, vcc')
            for i in range(4):
                e(f'v_cvt_pk_bf16_f32 {v(vRES+4*m+i)}, {v(vA0+8*m+2*i)}, {v(vA0+8*m+2*i+1)}')
                if i == 1 and l < 3: self.tag(vRES + 4*m, l & 1)
            if l < 3:
                if l and self.o.fx == 2 - m: self.flag(e, fr, sFXe, '')
                def st(e, mm):
                    if self.o.stress and l and not mm and m == (l & 1):
                        self.flag(e, fr, sFXwr, mm)
                        e(f's_and_b32 {s(sT[5])}, s2, {self.o.stress}\ns_cbranch_scc1 L_ns_x{l}\ns_sleep 60\nL_ns_x{l}:')
                    e(f'buffer_store_dwordx4 {v(vRES+4*m,4)}, {v(vXst)}, {s(sWS,4)}, {s(sXwr)} offen offset:{m*2048}{mm or ((self.o.lastx if l == 2 else str()) if l else (self.o.pub0 if self.o.pub0x is None else self.o.pub0x))}')
                    if m and l and not mm and not self.o.fx: self.flag(e, fr, sFXwr, mm)
                self.modal(f'px{l}{m}', st)
        if l == 3:
            for m in range(2):
                for i in range(2): e(f'v_permlane16_swap_b32 {v(vRES+4*m+i)}, {v(vRES+4*m+2+i)}')
                e(f'buffer_store_dwordx4 {v(vRES+4*m,4)}, {v(xo)}, {s(sOUT,4)}, {s(sXO)} offen offset:{64*m} {self.o.outmod}')
            self.bg('fin')
            return
        self.dump(f'L{l}.x', [v(vRES+i) for i in range(8)])
        if l == 1: e(f's_lshl_b32 {s(sT[2])}, {s(sROT)}, 12\ns_add_u32 {s(sT[2])}, {s(sT[2])}, {s(sXrd)}')
        elif l == 0: e(f's_lshl_b32 {s(sT[2])}, {s(sW)}, 13\ns_add_u32 {s(sT[2])}, {s(sT[2])}, {s(sXrd)}')
        else: e(f's_mov_b32 {s(sT[2])}, {s(sXrd)}')
        def stats():
            self.x_stats()
            self.tag(vTM, l & 1)
            def st2(e, mm):
                if self.o.stress and not mm:
                    e(f's_and_b32 {s(sT[5])}, s2, {self.o.stress}\ns_cbranch_scc0 L_ns_s{l}\ns_sleep 50\nL_ns_s{l}:')
                e(f'buffer_store_dword {v(vTM)}, {v(vSTst)}, {s(sWS,4)}, {s(sSTwr)} offen{mm}')
                if mm or not l:
                    if mm or not self.o.noack: e.wait_all_vm()
                    self.flag(e, fr, sFXwr, mm)
            self.modal(f'px{l}s', st2)
        self.late_stats = None
        if l and self.o.lstat: self.late_stats = stats
        else: stats()
        self.bg('y0')
        self.stamp(f'L{l}.pub3')

    def build(self):
        e = self.e
        self.sched = scheds.build(self.o.ov)
        self.prologue()
        for l in range(4):
            self.l = l
            if l == 0: self.kv_gemm0()
            else: self.kv_gemm(l)
            self.kv_epilogue(l)
            self.q_phase(l)
            self.o_proj(l)
        for k in self.sched: assert k in self.seen, k
        if self.o.stamps:
            self.stamp('end')
            e(f's_memrealtime {s(sTS,2)}'); e.wait_all_lg()
            e(f'v_writelane_b32 {v(vSTAMP)}, {s(sTS)}, 63')
            if self.o.both in (0, 2, 4): e(f'v_writelane_b32 {v(vSTAMP)}, {s(sBUD)}, 61')
            e(f's_lshl_b32 {s(sT[0])}, s2, 2\ns_add_u32 {s(sT[0])}, {s(sT[0])}, {s(sW)}\ns_lshl_b32 {s(sT[0])}, {s(sT[0])}, 8\ns_add_u32 {s(sT[0])}, {s(sT[0])}, {STAMP}')
            e(f'buffer_store_dword {v(vSTAMP)}, {v(vL4)}, {s(sWS,4)}, {s(sT[0])} offen')
        if self.o.ptrs:
            for i, r in enumerate((sX, sWA, sWOA, sWB, sWP, sWOB, sOUT, sDBG, sWS, sCODE)):
                e(f'v_mov_b32 {v(vTM)}, {s(r)}\nbuffer_store_dword {v(vTM)}, off, {s(sDBG,4)}, 0 offset:{4*i} sc1')
        if self.o.echo:
            self.stamp('end')
            if self.o.echo[0] == 'fixed':
                e(f's_mov_b32 {s(sE0)}, {self.o.echo[2]}')
            else:
                e(f's_sub_u32 {s(sE0)}, {s(sE1)}, {s(sE0)}\ns_mul_i32 {s(sE0)}, {s(sE0)}, {self.o.echo[2]}')
            e(f'{self.o.clk} {s(sE1,2)}\ns_waitcnt lgkmcnt(0)')
            e(f'L_echo:\n{self.o.clk} {s(sTS,2)}\ns_waitcnt lgkmcnt(0)\ns_sub_u32 {s(sTS)}, {s(sTS)}, {s(sE1)}\ns_cmp_lt_u32 {s(sTS)}, {s(sE0)}\ns_cbranch_scc1 L_echo')
        e('L_fail:\ns_endpgm')
        body = e.finish() + ''.join(t.finish() for t in self.tail) + 'L_code_end:\n    s_endpgm\n'
        body, npad = layout([f'{NAME}_kernel:'] + body.rstrip('\n').split('\n'), 'L_main', 4 if self.o.pads else 0, self.o.align)
        body = body.split('\n', 1)[1]
        head = open('cdna_kernels/' + NAME + '.s.ref').read().split('; Override launch')[0]
        txt = head + '; @launch grid=(256,1,1) block=(256,1,1) lds=163840\n' + DOC
        txt += f'''.amdgcn_target "amdgcn-amd-amdhsa--gfx950"
.text
.globl {NAME}_kernel
.p2align 8
.type {NAME}_kernel,@function
{NAME}_kernel:
{body}.section .rodata,"a"
.p2align 6
.amdhsa_kernel {NAME}_kernel
  .amdhsa_next_free_vgpr 512
  .amdhsa_next_free_sgpr 102
  .amdhsa_accum_offset 256
  .amdhsa_group_segment_fixed_size 0
  .amdhsa_kernarg_size 80
  .amdhsa_user_sgpr_count 2
  .amdhsa_user_sgpr_kernarg_segment_ptr 1
  .amdhsa_system_sgpr_workgroup_id_x 1
  .amdhsa_float_denorm_mode_32 3
.end_amdhsa_kernel
'''
        return txt

if __name__ == '__main__':
    ap = argparse.ArgumentParser()
    ap.add_argument('-o', default='cdna_kernels/' + NAME + '.s')
    ap.add_argument('--stamps', action='store_true')
    ap.add_argument('--force-safe', action='store_true')
    ap.add_argument('--dump', default='')
    ap.add_argument('--echo', default='')
    ap.add_argument('--bias', default='')
    ap.add_argument('--clk', default='s_memtime')
    ap.add_argument('--outmod', default='sc1 nt')
    ap.add_argument('--initmod', default='')
    ap.add_argument('--touch', default='61352b')
    ap.add_argument('--c1early', type=int, default=2)
    ap.add_argument('--fine', type=int, default=0)
    ap.add_argument('--atp', type=int, default=1)
    ap.add_argument('--nomini', type=int, default=0)
    ap.add_argument('--touchx', type=int, default=1)
    ap.add_argument('--b0at', type=int, default=24)
    ap.add_argument('--both', type=int, default=0)
    ap.add_argument('--fake', type=int, default=0)
    ap.add_argument('--stouch', default=',,')
    ap.add_argument('--tq', default='')
    ap.add_argument('--tw', default='64')
    ap.add_argument('--dummy', type=int, default=0)
    ap.add_argument('--te', default='')
    ap.add_argument('--quick', type=int, default=1)
    ap.add_argument('--lateb', default='0,0,0,0')
    ap.add_argument('--pub0', default='')
    ap.add_argument('--stat-at', type=int, default=4)
    ap.add_argument('--opre', type=int, default=6)
    ap.add_argument('--ctouch', type=int, default=0)
    ap.add_argument('--e1inl', type=int, default=0)
    ap.add_argument('--t0', default='')
    ap.add_argument('--t1', default='')
    ap.add_argument('--t2', default='')
    ap.add_argument('--qs', default='21111110')
    ap.add_argument('--clrp', type=int, default=6)
    ap.add_argument('--pub0s', default='')
    ap.add_argument('--q0', type=int, default=0)
    ap.add_argument('--clean', type=int, default=0)
    ap.add_argument('--xout', type=int, default=0)
    ap.add_argument('--rotm', type=int, default=6)
    ap.add_argument('--rotw', type=int, default=3)
    ap.add_argument('--roto', type=int, default=3)
    ap.add_argument('--spx', type=int, default=0)
    ap.add_argument('--spo', type=int, default=0)
    ap.add_argument('--ola', default='6,6')
    ap.add_argument('--spagain', type=int, default=0)
    ap.add_argument('--oinit', default='1,1,1,1')
    ap.add_argument('--pads', type=int, default=1)
    ap.add_argument('--align', type=int, default=5)
    ap.add_argument('--skip', default='')
    ap.add_argument('--noack', type=int, default=0)
    ap.add_argument('--fake16', type=int, default=0)
    ap.add_argument('--rotf', type=int, default=7)
    ap.add_argument('--padp', type=int, default=-2)
    ap.add_argument('--xmod', default='')
    ap.add_argument('--xmodp', type=int, default=8)
    ap.add_argument('--tmod', default='')
    ap.add_argument('--pub0x', default=None)
    ap.add_argument('--ov', default='')
    ap.add_argument('--lasto', default='')
    ap.add_argument('--lastx', default='')
    ap.add_argument('--lastld', default='')
    ap.add_argument('--ptail', type=int, default=0)
    ap.add_argument('--e1chk', default=',eq1a,eq2,eq0d')
    ap.add_argument('--stress', type=int, default=0)
    ap.add_argument('--wb', default='')
    ap.add_argument('--wbmask', type=int, default=63)
    ap.add_argument('--ord0', default='01V2K3')
    ap.add_argument('--p3', type=int, default=9)
    ap.add_argument('--ofill', type=int, default=0)
    ap.add_argument('--defw', type=int, default=0)
    ap.add_argument('--hopinl', type=int, default=1)
    ap.add_argument('--np', type=int, default=2)
    ap.add_argument('--npgap', type=int, default=11)
    ap.add_argument('--xextra', type=int, default=3)
    ap.add_argument('--csrate', type=int, default=2)
    ap.add_argument('--fo', type=int, default=1)
    ap.add_argument('--fx', type=int, default=2)
    ap.add_argument('--echk', default='')
    ap.add_argument('--lstat', type=int, default=0)
    ap.add_argument('--twin', default='')
    ap.add_argument('--sdot', type=int, default=0)
    ap.add_argument('--ptrs', type=int, default=0)
    ap.add_argument('--npd', default='')
    ap.add_argument('--npdn', type=int, default=2)
    ap.add_argument('--xpre', type=int, default=7)
    ap.add_argument('--e1at', default='22,20,24,20')
    ap.add_argument('--e1rate', type=int, default=1)
    ap.add_argument('--lateq', default='0,0,0,0')
    ap.add_argument('--sched', default='k')
    opt = ap.parse_args()
    opt.dump = opt.dump.split(',') if opt.dump else []
    opt.echo = opt.echo.split(',') if opt.echo else []
    opt.e1at = list(map(int, opt.e1at.split(','))); opt.lateq = list(map(int, opt.lateq.split(','))); opt.lateb = list(map(int, opt.lateb.split(',')))
    opt.ola = list(map(int, opt.ola.split(',')))
    opt.oinit = list(map(int, opt.oinit.split(',')))
    opt.skip = [x for x in opt.skip.split(',') if x]
    opt.e1chk = opt.e1chk.split(',')
    opt.wb = opt.wb.split(',')
    opt.echk = [int(x) for x in opt.echk.split(',') if x]
    opt.npd = opt.npd.split(',')
    g = Gen(opt)
    txt = g.build()
    open(opt.o, 'w').write(txt)
    if opt.stamps:
        open(opt.o + '.stamps', 'w').write('\n'.join(g.stamp_names))
    print('wrote', opt.o, len(txt), 'bytes; vgpr persistent', _vn[0], 'sgpr', _sn[0], 'stamps', g.nstamp)
```
